```python
import torch

def _softmax(x, axis=-1):
    return torch.softmax(x, dim=axis)

def _gelu(x):
    return torch.nn.functional.gelu(x, approximate='tanh')

def _silu(x):
    return torch.nn.functional.silu(x)

def _sigmoid(x):
    return torch.sigmoid(x)

def _layernorm(x, axis=-1, eps=1e-05):
    m = x.mean(dim=axis, keepdim=True)
    v = x.var(dim=axis, keepdim=True, unbiased=False)
    return (x - m) / torch.sqrt(v + eps)

def _scatter_add(tgt, idx, src, axis=0):
    return tgt.clone().index_add_(axis, idx, src)

def _segment_sum(src, seg, n):
    out = torch.zeros((n,) + src.shape[1:], dtype=src.dtype)
    return out.index_add_(0, seg, src)

def _pad(x, pw):
    flat = tuple((v for pair in reversed(pw) for v in pair))
    return torch.nn.functional.pad(x, flat)
kernel_name = 'concat_heads__ssm_conv_h3__memory_aug_recurrent_mem_tr__prompt'

def setup_inputs():

    _w = lambda a: (lambda t: t.to(torch.bfloat16) if t.is_floating_point() else t)(torch.as_tensor(a))

    def _A_setup():
        B, S, D = (1, 2048, 1024)
        ks = 4
        return {'q': _w((lambda *s: torch.randn(*s, dtype=torch.bfloat16) * 0.05)(B, S, D)), 'k': _w((lambda *s: torch.randn(*s, dtype=torch.bfloat16) * 0.4)(B, S, D)), 'v': _w((lambda *s: torch.randn(*s, dtype=torch.bfloat16) * 0.4)(B, S, D)), 'shift_k': _w((lambda *s: torch.randn(*s, dtype=torch.bfloat16) * 0.4)(D, ks) * 0.5), 'ssm_k': _w((lambda *s: torch.randn(*s, dtype=torch.bfloat16) * 0.4)(D, S) * (1.0 / S ** 0.5)), 'ssm_D': _w((lambda *s: torch.randn(*s, dtype=torch.bfloat16) * 0.4)(D))}
    _A_in = _A_setup()

    def _B_setup():
        B, S, Dm = (1, 2048, 1024)
        H, Dh = (32, 128)
        M, seg = (8, 32)
        seg = min(seg, S)
        S = S // seg * seg
        return {'x': _w((lambda *s: torch.randn(*s, dtype=torch.bfloat16) * 0.05)(B, S, Dm)), 'mem0': _w((lambda *s: torch.randn(*s, dtype=torch.bfloat16) * 0.4)(B, M, Dm)), 'Wq': _w((lambda *s: torch.randn(*s, dtype=torch.bfloat16) * 6.4)(Dm, H, Dh) * Dm ** (-0.5)), 'Wk': _w((lambda *s: torch.randn(*s, dtype=torch.bfloat16) * 6.4)(Dm, H, Dh) * Dm ** (-0.5)), 'Wv': _w((lambda *s: torch.randn(*s, dtype=torch.bfloat16) * 0.4)(Dm, H, Dh) * Dm ** (-0.5)), 'Wo': _w((lambda *s: torch.randn(*s, dtype=torch.bfloat16) * 0.4)(H, Dh, Dm) * (H * Dh) ** (-0.5)), 'seg_len': seg}
    _B_in = _B_setup()
    return {'A_q': _A_in['q'], 'A_k': _A_in['k'], 'A_v': _A_in['v'], 'A_shift_k': _A_in['shift_k'], 'A_ssm_k': _A_in['ssm_k'], 'A_ssm_D': _A_in['ssm_D'], 'B_x': _B_in['x'], 'B_mem0': _B_in['mem0'], 'B_Wq': _B_in['Wq'], 'B_Wk': _B_in['Wk'], 'B_Wv': _B_in['Wv'], 'B_Wo': _B_in['Wo'], 'B_seg_len': _B_in['seg_len']}

def reference(A_q, A_k, A_v, A_shift_k, A_ssm_k, A_ssm_D, B_x, B_mem0, B_Wq, B_Wk, B_Wv, B_Wo, B_seg_len):

    def _A_ref(q, k, v, shift_k, ssm_k, ssm_D):
        B, S, D = q.shape
        ks = shift_k.shape[-1]
        k_pad = _pad(k, ((0, 0), (ks - 1, 0), (0, 0)))
        k_shift = torch.zeros_like(k)
        for t in range(ks):
            k_shift = k_shift + k_pad[:, t:t + S, :] * shift_k[:, ks - 1 - t][None, None, :]
        kv = k_shift * v
        L = 2 * S
        kv_pad = _pad(kv, ((0, 0), (0, S), (0, 0)))
        kf_pad = _pad(ssm_k, ((0, 0), (0, S)))
        kv_f = (lambda x, axes=(-2, -1): torch.fft.rfft2(x.float(), dim=axes))(kv_pad[:, None, :, :], axes=(1, 2))
        kf_f = (lambda x, axes=(-2, -1): torch.fft.rfft2(x.float(), dim=axes))(kf_pad[:, None, :], axes=(1, 2))
        kf_f = (lambda x, *d: x.permute(*d))(kf_f, 1, 2, 0)
        y_f = kv_f * kf_f[None, :, :, :]
        y = (lambda x, s, axes=(-2, -1): torch.fft.irfft2(x, s=s, dim=axes).to(torch.bfloat16))(y_f, (1, L), axes=(1, 2))[:, 0, :S, :]
        y = y + kv * ssm_D[None, None, :]
        return q * y

    def _B_ref(x, mem0, Wq, Wk, Wv, Wo, seg_len):
        B, S, Dm = x.shape
        H, Dh = (Wq.shape[1], Wq.shape[2])
        M = mem0.shape[1]
        scale = Dh ** (-0.5)
        n_seg = S // seg_len
        L = M + seg_len
        idx = torch.arange(L)
        mask = (idx[:, None] < M) | (idx[:, None] >= idx[None, :])
        mem = mem0
        outs = []
        for s in range(n_seg):
            xs = x[:, s * seg_len:(s + 1) * seg_len, :].clone()
            h = torch.concatenate([mem, xs], axis=1)
            q = torch.einsum('btd,dhe->bhte', h, Wq)
            k = torch.einsum('btd,dhe->bhte', h, Wk)
            v = torch.einsum('btd,dhe->bhte', h, Wv)
            scores = torch.einsum('bhqe,bhke->bhqk', q, k) * scale
            scores = torch.where(mask[None, None], scores, -1000000000.0)
            p = _softmax(scores, axis=-1)
            o = torch.einsum('bhqk,bhke->bhqe', p, v)
            o = torch.einsum('bhte,hed->btd', o, Wo)
            mem = o[:, :M, :].clone()
            outs.append(o[:, M:, :])
        return torch.concatenate(outs, axis=1)
    a = _A_ref(A_q, A_k, A_v, A_shift_k, A_ssm_k, A_ssm_D)
    b = _B_ref(B_x, B_mem0, B_Wq, B_Wk, B_Wv, B_Wo, B_seg_len)
    return torch.concatenate([a, b], axis=-1)
```

```python
import re

TRANS = ('v_exp_f32','v_log_f32','v_rcp_f32','v_rsq_f32','v_sqrt_f32','v_sin_f32','v_cos_f32','v_rcp_iflag_f32')

def regs_of(tok):
    tok = tok.strip()
    tok = re.sub(r'^-', '', tok)
    m = re.match(r'^abs\((.*)\)$', tok) or re.match(r'^\|(.*)\|$', tok)
    if m: tok = m.group(1)
    m = re.match(r'^([vas])(\d+)$', tok)
    if m: return [m.group(1) + m.group(2)]
    m = re.match(r'^([vas])\[(\d+):(\d+)\]$', tok)
    if m: return [m.group(1) + str(i) for i in range(int(m.group(2)), int(m.group(3)) + 1)]
    if tok in ('vcc', 'vcc_lo', 'vcc_hi'): return ['vcc']
    if tok in ('exec', 'exec_lo', 'exec_hi'): return ['exec']
    if tok == 'm0': return ['m0']
    return []

class Ins:
    __slots__ = ('text','mn','ops','kind','defs','uses','passes','srcC','srcAB','label','target','ws','wide','lds','dpp','shape')
    def __init__(s, text):
        s.text = text; s.label = None; s.target = None; s.defs = set(); s.uses = set()
        s.passes = 0; s.srcC = set(); s.srcAB = set(); s.ws = 1; s.wide = set(); s.lds = False; s.dpp = False; s.shape=None
        t = text.split(';')[0].strip()
        if not t or t.startswith('.') and not t.endswith(':'):
            s.kind = 'none'; s.ws = 0; s.mn = ''; return
        if t.endswith(':'):
            s.kind = 'label'; s.label = t[:-1]; s.ws = 0; s.mn = ''; return
        parts = t.split(None, 1)
        mn = parts[0]; s.mn = mn
        rest = parts[1] if len(parts) > 1 else ''
        rest = re.sub(r'(\w+):\[([^\]]*)\]', lambda m: m.group(1) + ':<' + m.group(2).replace(',', '.') + '>', rest)
        ops = [o.strip() for o in rest.split(',')]
        mods = ''
        if ops:
            sp = ops[-1].split(None, 1)
            if len(sp) > 1: ops[-1] = sp[0]; mods = sp[1]
        s.ops = ops
        R = [regs_of(o) for o in ops]
        base = re.sub(r'_(e32|e64|dpp|sdwa)$', '', mn)
        if mn.startswith('v_mfma') or mn.startswith('v_smfmac'):
            s.kind = 'mfma'
            s.passes = 8 if '32x32' in mn else 4
            s.shape = mn
            s.defs = set(R[0]); s.srcAB = set(R[1]) | set(R[2])
            if mn.startswith('v_smfmac'):
                s.srcC = set(R[0]); s.srcAB |= set(R[3])
            else:
                s.srcC = set(R[3])
            s.uses = s.srcAB | s.srcC
        elif mn.startswith('v_'):
            s.kind = 'valu'
            s.dpp = mn.endswith('_dpp') or 'row_' in mods or 'quad_perm' in mods or 'wave_' in mods
            if base.startswith('v_permlane'):
                s.kind = 'perml'; s.defs = set(R[0]) | set(R[1]); s.uses = set(s.defs)
            elif base.startswith('v_cmp'):
                s.defs = set(R[0]); s.uses = set(sum(R[1:], []))
            elif base in ('v_readfirstlane_b32', 'v_readlane_b32'):
                s.kind = 'rdlane'; s.defs = set(R[0]); s.uses = set(sum(R[1:], []))
            elif base in ('v_add_co_u32','v_sub_co_u32','v_addc_co_u32','v_subb_co_u32'):
                s.defs = set(R[0]) | set(R[1]); s.uses = set(sum(R[2:], []))
            elif base == 'v_nop':
                pass
            else:
                s.defs = set(R[0]); s.uses = set(sum(R[1:], []))
                if base.startswith('v_fmac') or base.startswith('v_dot2c') or s.dpp or base=='v_writelane_b32': s.uses |= set(R[0])
                if base == 'v_cndmask_b32' and len(ops) == 3: s.uses.add('vcc')
                if base in TRANS: s.kind = 'trans'
        elif mn.startswith('buffer_') or mn.startswith('global_'):
            s.kind = 'vmem'
            allmods = ' ' + mods + ' '
            if mn.startswith('buffer_wbl2') or mn.startswith('buffer_inv'):
                pass
            elif ' lds ' in allmods or 'load_lds' in mn:
                s.lds = True; s.uses = set(sum(R, [])) | {'m0'}
            elif 'load' in mn:
                s.defs = set(R[0]); s.uses = set(sum(R[1:], []))
            elif 'atomic' in mn:
                s.uses = set(sum(R, []))
                if ' sc0 ' in allmods: s.defs = set(R[0])
            else:
                s.uses = set(sum(R, []))
                d = R[0] if mn.startswith('buffer_') else R[1]
                if len(d) >= 3: s.wide = set(d)
        elif mn.startswith('ds_'):
            s.kind = 'ds'
            if 'read' in mn or 'permute' in mn or 'swizzle' in mn:
                s.defs = set(R[0]); s.uses = set(sum(R[1:], []))
            else:
                s.uses = set(sum(R, []))
        elif mn.startswith('s_'):
            s.kind = 'salu'
            if mn == 's_nop': s.ws = int(ops[0], 0) + 1
            elif mn.startswith('s_cbranch') or mn == 's_branch':
                s.kind = 'branch'; s.target = ops[0]
            elif mn == 's_endpgm': s.kind = 'end'
            elif mn.startswith('s_cmp') or mn.startswith('s_waitcnt') or mn in ('s_barrier','s_sleep','s_setprio') or mn.startswith('s_bitcmp'):
                s.uses = set(sum(R, []))
            else:
                s.defs = set(R[0]); s.uses = set(sum(R[1:], []))
                if 'saveexec' in mn: s.defs.add('exec')
        else:
            raise ValueError('unknown instr: ' + text)

VALUK = ('valu', 'trans', 'perml', 'rdlane')
def need(p, c):
    n = 0
    if p.kind in VALUK:
        vd = {r for r in p.defs if r[0] in 'va' and r != 'vcc'}
        sd = {r for r in p.defs if r[0] == 's' or r == 'vcc'}
        if c.kind == 'mfma' and vd & c.uses: n = max(n, 2)
        if c.kind == 'perml' and vd & c.uses: n = max(n, 2)
        if c.kind in VALUK and c.dpp and vd & c.uses: n = max(n, 2)
        if c.kind == 'rdlane' and vd & c.uses: n = max(n, 1)
        if p.kind == 'trans' and c.kind in VALUK + ('vmem','ds','mfma') and vd & c.uses: n = max(n, 1)
        if c.kind in VALUK and sd & c.uses: n = max(n, 4 if c.kind == 'rdlane' else 2)
        if c.kind == 'vmem' and sd & c.uses: n = max(n, 5)
        if c.kind in ('salu','branch') and (sd & c.uses or ('vcc' in sd and 'vcc' in c.mn)): n = max(n, 1)
    if p.kind == 'mfma':
        big = 12 if p.passes == 8 else 8
        if c.kind in VALUK + ('vmem', 'ds') and p.defs & (c.uses | c.defs): n = max(n, big)
        if c.kind == 'mfma':
            if p.defs & c.srcAB: n = max(n, big)
            if p.defs & c.srcC:
                if not (p.defs == c.srcC and p.shape == c.shape): n = max(n, big - 2)
            elif p.defs & c.defs: n = max(n, big - 2)
        if c.kind in VALUK and p.srcC & c.defs: n = max(n, 7 if p.passes == 8 else 3)
    if p.kind == 'salu' and 'm0' in p.defs and c.kind == 'vmem' and c.lds: n = max(n, 1)
    if p.kind == 'vmem' and p.wide and p.wide & c.defs: n = max(n, 2 if c.kind in VALUK else 1)
    return n

class Asm:
    def __init__(s):
        s.L = []
        s.nlab = 0
    def __call__(s, text):
        for line in text.split('\n'):
            if line.strip(): s.L.append(Ins(line.strip()))
    def raw(s, text):
        i = Ins(''); i.text = text; s.L.append(i)
    def label(s, name): s(name + ':')
    def newlabel(s, stem='L'):
        s.nlab += 1
        return '%s_%d' % (stem, s.nlab)
    def finalize(s, verbose=False):
        L = s.L
        MAXD = 13
        i = 0
        added = 0
        br = {}
        for x in L:
            if x.kind == 'branch': br.setdefault(x.target, []).append(x)
        pos = {id(x): k for k, x in enumerate(L)}
        out_pad = {}
        def pad_of(k): return out_pad.get(k, 0)
        for i, c in enumerate(L):
            if c.kind in ('none', 'label'): continue
            if not (c.uses or c.defs or c.kind == 'branch'): continue
            worst = 0
            stack = [(i - 1, 0)]
            seen = set()
            while stack:
                k, d = stack.pop()
                while k >= 0 and d < MAXD:
                    if (k, d) in seen: break
                    seen.add((k, d))
                    p = L[k]
                    if p.kind == 'label':
                        for b in br.get(p.label, []):
                            stack.append((pos[id(b)], d))
                        kk = k - 1
                        while kk >= 0 and L[kk].kind == 'none': kk -= 1
                        if kk >= 0 and (L[kk].mn == 's_branch' or L[kk].kind == 'end'): break
                        k -= 1; continue
                    if p.kind != 'none':
                        n = need(p, c)
                        if n - d > worst: worst = n - d
                        d += p.ws + pad_of(k)
                    k -= 1
            if worst > 0:
                out_pad[i] = worst; added += worst
        lines = []
        for i, c in enumerate(L):
            n = out_pad.get(i, 0)
            if n: lines.append('    s_nop %d' % (n - 1))
            if c.kind == 'label' or c.text.startswith('.') or c.text.startswith(';'): lines.append(c.text)
            else: lines.append('    ' + c.text)
        if verbose: print('hazard nop states added:', added)
        return '\n'.join(lines) + '\n'

def vr(b, n=1, f='v'):
    return '%s%d' % (f, b) if n == 1 else '%s[%d:%d]' % (f, b, b + n - 1)
def ar(b, n=1): return vr(b, n, 'a')
def sr(b, n=1): return vr(b, n, 's')

def kernel_head(name):
    return '.globl %s\n.p2align 8\n.type %s,@function\n%s:\n' % (name, name, name)
def kernel_desc(name, vgpr=512, sgpr=102, accum=256, kernarg=128):
    return ('.amdhsa_kernel %s\n  .amdhsa_next_free_vgpr %d\n  .amdhsa_next_free_sgpr %d\n  .amdhsa_accum_offset %d\n'
            '  .amdhsa_group_segment_fixed_size 0\n  .amdhsa_kernarg_size %d\n  .amdhsa_user_sgpr_count 2\n'
            '  .amdhsa_user_sgpr_kernarg_segment_ptr 1\n  .amdhsa_system_sgpr_workgroup_id_x 1\n'
            '  .amdhsa_float_denorm_mode_32 3\n  .amdhsa_float_denorm_mode_16_64 3\n.end_amdhsa_kernel\n') % (name, vgpr, sgpr, accum, kernarg)
```

```python
MB = 1 << 20
WS_KF = 0
WS_VF = 16 * MB
WS_QF = 32 * MB
WS_O = 48 * MB
WS_KVM = 64 * MB
WS_PART = 80 * MB
WS_MT = 74 * MB
WS_QKV = 75 * MB
WS_PROF = 100 * MB
WS_BYTES = 256 * MB
KA = dict(A_q=0, A_k=8, A_v=16, A_shift=24, A_ssmk=32, A_ssmD=40, B_x=48, B_mem0=56, Wq=64, Wk=72, Wv=80, Wo=88, seg=96, out=104, dbg=112, ws=120)
WS_CTR = 77 * MB + 512 * 1024
WS_PO = 112 * MB
WS_DUMP = 256 * MB
WS_KVT = 146 * MB
```

```python
import math, struct
from ag import *
from common import *
from gen_g1 import S_WS, S_WO, S_DBG, sW, sT0, sT1, sT2, sT3
def f2u(x): return struct.unpack('<I', struct.pack('<f', x))[0]

S_OUT = 80; S_AQ = 84; S_AK = 88; S_AV = 92; S_AH = 96
sTeam, sMem = 53, 54
sTmo = 55

def bits(a, dst, terms, init=None, tmp=31):
    first = init is None
    if not first: a('v_mov_b32 v%d, %s' % (dst, init))
    for (src, n, sh) in terms:
        a('v_bfe_u32 v%d, v0, %d, %d' % (tmp, src, n))
        if first: a('v_lshlrev_b32 v%d, %d, v%d' % (dst, sh, tmp)); first = False
        else: a('v_lshl_add_u32 v%d, v%d, %d, v%d' % (dst, tmp, sh, dst))

class AO:
    sSeg, sPf, sBuf, sScale, sKm, sOst, sOld, sCtr, sOut = 45, 46, 47, 48, 49, 50, 51, 52, 56
    sMask = 58
    sHi = 74
    vL16, vQr, vKr, vVr, vMr, vIdx, vNeg, vRw, vOst, vKmw = range(1, 11)
    vT = 12
    vQ = 32
    vK = 48
    vKm = 80
    vS = 88
    vA = 100
    vD = 124
    vB = 140
    L_IN = 0
    L_KM = 24576
    L_RED = 28672
    def __init__(s, a): s.a = a
    def prefetch(s):
        a = s.a
        a('s_lshl_b32 s%d, s%d, 18' % (sT0, s.sPf))
        a('s_lshl_b32 s%d, s%d, 12' % (sT1, sMem))
        a('s_add_u32 s%d, s%d, s%d' % (sT0, sT0, sT1))
        a('s_lshl_b32 s%d, s%d, 10' % (sT1, sW))
        a('s_add_u32 s%d, s%d, s%d' % (sT0, sT0, sT1))
        a('s_add_u32 s%d, s%d, s%d' % (sT1, sT1, s.sBuf))
        for mi, base in enumerate((WS_QF, WS_KF, WS_VF)):
            for tau in range(2):
                a('s_add_u32 m0, s%d, %d' % (sT1, mi * 8192 + tau * 4096))
                a('s_add_u32 s%d, s%d, 0x%x' % (sT2, sT0, base + tau * 131072))
                a('buffer_load_dwordx4 v%d, s[%d:%d], s%d offen sc1 lds' % (s.vL16, S_WS, S_WS + 3, sT2))
    def load_wo(s):
        a = s.a; vT = s.vT
        a('s_lshl_b32 s%d, s%d, 6' % (sT0, sMem))
        bits(a, vT, [(2, 4, 11), (0, 2, 4)], 's%d' % sT0)
        a('s_lshl_b32 s%d, s%d, 15' % (sT3, sW))
        bits(a, vT + 1, [(2, 4, 6), (0, 2, 3)], 's%d' % sT3)
        a('s_lshl_b32 s%d, s%d, 21' % (sT0, sW))
        for half in range(2):
            for i in range(32):
                a('s_add_u32 m0, s%d, %d' % (sT3, i * 1024))
                a('buffer_load_dwordx4 v%d, s[%d:%d], s%d offen lds' % (vT, S_WO, S_WO + 3, sT0))
                a('s_add_u32 s%d, s%d, 0x8000' % (sT0, sT0))
            for k in range(16):
                a('s_waitcnt vmcnt(%d)' % (30 - 2 * k))
                for nt in range(2):
                    for v2 in range(2):
                        a('ds_read_b64_tr_b16 %s, v%d offset:%d' % (ar(((half * 16 + k) * 2 + nt) * 4 + 2 * v2, 2), vT + 1, (32 * k + 16 * v2) * 64 + nt * 32))
                a('s_waitcnt lgkmcnt(8)')
            a('s_waitcnt lgkmcnt(0)')
    def setup(s):
        a = s.a; vT = s.vT
        a('v_lshlrev_b32 v%d, 4, v0' % s.vL16)
        a('s_and_b32 s%d, s%d, 1' % (sT0, sW))
        a('s_lshr_b32 s%d, s%d, 1' % (sT1, sW))
        a('s_lshl_b32 s%d, s%d, 12' % (sT2, sT0))
        a('v_add_u32 v%d, s%d, v%d' % (s.vQr, sT2, s.vL16))
        a('v_add_u32 v%d, 8192, v%d' % (s.vKr, s.vL16))
        a('s_lshl_b32 s%d, s%d, 11' % (sT2, sT1))
        a('s_add_u32 s%d, s%d, 16384' % (sT2, sT2))
        bits(a, s.vVr, [(0, 2, 8), (2, 4, 4)], 's%d' % sT2)
        a('s_lshl_b32 s%d, s%d, 10' % (sT2, sT1))
        a('s_add_u32 s%d, s%d, %d' % (sT2, sT2, s.L_KM + 2048))
        bits(a, s.vMr, [(3, 1, 8), (4, 2, 6), (1, 1, 5), (2, 1, 3), (0, 1, 1)], 's%d' % sT2)
        for i in range(2): a('s_mov_b32 s%d, 0xcccccccc' % (s.sHi + i))
        a('v_mov_b32 v%d, 0x4444' % vT)
        a('v_mov_b32 v%d, 0xeeee' % (vT + 1))
        a('v_cndmask_b32 v%d, v%d, v%d, s[%d:%d]' % (s.vIdx, vT, vT + 1, s.sHi, s.sHi + 1))
        a('v_mov_b32 v%d, 0x%x' % (s.vNeg, f2u(-1e9 * math.sqrt(128))))
        a('s_mov_b32 s%d, 0x%x' % (s.sScale, f2u(math.log2(math.e) / math.sqrt(128))))
        a('s_lshl_b32 s%d, s%d, 4' % (sT2, sT0))
        bits(a, vT, [(0, 4, 0)], 's%d' % sT2)
        bits(a, vT + 1, [(4, 2, 2)])
        a('v_sub_u32 v%d, v%d, v%d' % (vT, vT, vT + 1))
        for k in range(8):
            a('v_cmp_le_i32 s[%d:%d], %d, v%d' % (s.sMask + 2 * k, s.sMask + 2 * k + 1, 16 * (k // 4) + k % 4, vT))
        a('s_lshl_b32 s%d, s%d, 12' % (sT2, sW))
        a('s_add_u32 s%d, s%d, %d' % (sT2, sT2, s.L_RED))
        a('v_add_u32 v%d, s%d, v%d' % (s.vRw, sT2, s.vL16))
        a('s_lshl_b32 s%d, s%d, 10' % (sT2, sW))
        a('v_add_u32 v%d, s%d, v%d' % (s.vKmw, sT2, s.vL16))
        a('s_lshl_b32 s%d, s%d, 16' % (sT2, sT1))
        a('s_lshl_b32 s%d, s%d, 5' % (sT3, sT0))
        a('s_add_u32 s%d, s%d, s%d' % (sT2, sT2, sT3))
        a('s_lshl_b32 s%d, s%d, 6' % (sT3, sMem))
        a('s_add_u32 s%d, s%d, s%d' % (sT2, sT2, sT3))
        a('s_add_u32 s%d, s%d, 2048' % (sT2, sT2))
        bits(a, s.vOst, [(0, 4, 12), (4, 2, 3)], 's%d' % sT2)
        for et in range(4): a('v_mov_b32 v%d, 0' % (s.vA + 6 * et + 5))
    def attn(s):
        a = s.a; vT = s.vT; vQ, vK, vKm, vS, vA, vD = s.vQ, s.vK, s.vKm, s.vS, s.vA, s.vD
        a('s_lshl_b32 s%d, s%d, 17' % (s.sKm, s.sSeg))
        a('s_lshl_b32 s%d, s%d, 12' % (sT0, sMem))
        a('s_add_u32 s%d, s%d, s%d' % (s.sKm, s.sKm, sT0))
        a('s_add_u32 s%d, s%d, 0x%x' % (s.sKm, s.sKm, WS_KVM))
        a('s_lshl_b32 s%d, s%d, 1' % (s.sOst, s.sSeg))
        a('s_and_b32 s%d, s%d, 1' % (sT1, sW))
        a('s_add_u32 s%d, s%d, s%d' % (s.sOst, s.sOst, sT1))
        a('s_lshl_b32 s%d, s%d, 17' % (s.sOst, s.sOst))
        a('s_add_u32 s%d, s%d, s%d' % (s.sOst, s.sOst, sT0))
        a('s_lshr_b32 s%d, s%d, 1' % (sT1, sW))
        a('s_lshl_b32 s%d, s%d, 11' % (sT1, sT1))
        a('s_add_u32 s%d, s%d, s%d' % (s.sOst, s.sOst, sT1))
        a('s_add_u32 s%d, s%d, 0x%x' % (s.sOst, s.sOst, WS_O))
        a('s_lshl_b32 s%d, s%d, 7' % (s.sCtr, s.sSeg))
        a('s_add_u32 s%d, s%d, 0x%x' % (s.sCtr, s.sCtr, WS_CTR))
        l, ok = a.newlabel('Lkm'), a.newlabel('Lkm')
        a.label(l)
        a('buffer_load_dwordx4 %s, v%d, s[%d:%d], s%d offen sc1' % (vr(vT, 4), s.vKmw, S_WS, S_WS + 3, s.sKm))
        a('s_waitcnt vmcnt(0)')
        a('v_max3_u32 v%d, v%d, v%d, v%d' % (vT + 4, vT, vT + 1, vT + 2))
        a('v_max_u32 v%d, v%d, v%d' % (vT + 4, vT + 4, vT + 3))
        a('v_cmp_eq_u32 vcc, -1, v%d' % (vT + 4))
        a('s_cbranch_vccz %s' % ok)
        a('s_sleep 4')
        a('s_sub_u32 s%d, s%d, 1' % (sTmo, sTmo))
        a('s_cbranch_scc0 %s' % l)
        a('s_branch L_side_fail')
        a.label(ok)
        a('ds_write_b128 v%d, %s offset:%d' % (s.vKmw, vr(vT, 4), s.L_KM))
        for i in range(4): a('v_mov_b32 v%d, 0' % (vS + 8 + i))
        a('s_waitcnt lgkmcnt(0)')
        a('s_barrier')
        for t in range(4): a('ds_read_b128 %s, v%d offset:%d' % (vr(vQ + 4 * t, 4), s.vQr, t * 1024))
        for i in range(8): a('ds_read_b128 %s, v%d offset:%d' % (vr(vK + 4 * i, 4), s.vKr, i * 1024))
        for T in range(2): a('ds_read_b128 %s, v%d offset:%d' % (vr(vKm + 4 * T, 4), s.vL16, s.L_KM + T * 1024))
        a('s_waitcnt lgkmcnt(0)')
        for et in range(4):
            for tau in range(2):
                a('ds_read_b64_tr_b16 %s, v%d offset:%d' % (vr(vA + 6 * et + 2 * tau, 2), s.vVr, tau * 4096 + (et // 2) * 1024 + (et % 2) * 8))
        for t in range(4):
            for tau in range(2):
                a('v_mfma_f32_16x16x32_bf16 %s, %s, %s, %s' % (vr(vS + 4 * tau, 4), vr(vK + 16 * tau + 4 * t, 4), vr(vQ + 4 * t, 4), '0' if t == 0 else vr(vS + 4 * tau, 4)))
        for T in range(2):
            a('v_smfmac_f32_16x16x64_bf16 %s, %s, %s, v%d' % (vr(vS + 8, 4), vr(vKm + 4 * T, 4), vr(vQ + 8 * T, 8), s.vIdx))
        a('s_waitcnt lgkmcnt(0)')
        for et in range(4):
            a('ds_read_u16 v%d, v%d offset:%d' % (vA + 6 * et + 4, s.vMr, (et // 2) * 512 + (et % 2) * 4))
            a('ds_read_u16 v%d, v%d offset:%d' % (vT + 8 + et, s.vMr, (et // 2) * 512 + (et % 2) * 4 + 16))
        for k in range(8): a('v_cndmask_b32 v%d, v%d, v%d, s[%d:%d]' % (vS + k, s.vNeg, vS + k, s.sMask + 2 * k, s.sMask + 2 * k + 1))
        a('v_pk_add_f32 %s, %s, %s' % (vr(vS + 8, 2), vr(vS + 8, 2), vr(vS + 10, 2)))
        m, m2 = vT, vT + 1
        def xred(op):
            for sw in ('v_permlane16_swap_b32', 'v_permlane32_swap_b32'):
                a('v_mov_b32 v%d, v%d' % (m2, m))
                a('%s v%d, v%d' % (sw, m, m2))
                a('%s v%d, v%d, v%d' % (op, m, m, m2))
        a('v_max3_f32 v%d, v%d, v%d, v%d' % (m, vS, vS + 1, vS + 2))
        for k in range(3, 9, 2): a('v_max3_f32 v%d, v%d, v%d, v%d' % (m, m, vS + k, vS + k + 1))
        a('v_max_f32 v%d, v%d, v%d' % (m, m, vS + 9))
        xred('v_max_f32')
        a('v_mul_f32 v%d, s%d, v%d' % (m, s.sScale, m))
        for k in range(10): a('v_fma_f32 v%d, v%d, s%d, -v%d' % (vS + k, vS + k, s.sScale, m))
        for k in range(10): a('v_exp_f32 v%d, v%d' % (vS + k, vS + k))
        a('v_pk_add_f32 %s, %s, %s' % (vr(m, 2), vr(vS, 2), vr(vS + 2, 2)))
        for k in (4, 6, 8): a('v_pk_add_f32 %s, %s, %s' % (vr(m, 2), vr(m, 2), vr(vS + k, 2)))
        a('v_add_f32 v%d, v%d, v%d' % (m, m, m2))
        xred('v_add_f32')
        a('v_rcp_f32 v%d, v%d' % (m, m))
        for k in range(10): a('v_mul_f32 v%d, v%d, v%d' % (vS + k, vS + k, m))
        p = vT + 2
        for k in range(5): a('v_cvt_pk_bf16_f32 v%d, v%d, v%d' % (p + k, vS + 2 * k, vS + 2 * k + 1))
        a('v_mov_b32 v%d, 0' % (p + 5))
        a('s_waitcnt lgkmcnt(0)')
        for et in range(4): a('v_lshl_or_b32 v%d, v%d, 16, v%d' % (vA + 6 * et + 4, vT + 8 + et, vA + 6 * et + 4))
        for et in range(4): a('v_mfma_f32_16x16x32_bf16 %s, %s, %s, 0' % (vr(vD + 4 * et, 4), vr(vA + 6 * et, 4), vr(p, 4)))
        for et in range(4): a('v_mfma_f32_16x16x16_bf16 %s, %s, %s, %s' % (vr(vD + 4 * et, 4), vr(vA + 6 * et + 4, 2), vr(p + 4, 2), vr(vD + 4 * et, 4)))
        for pr in range(2):
            r = vD + 8 * pr
            for i in range(4): a('v_cvt_pk_bf16_f32 v%d, v%d, v%d' % (r + i, r + 2 * i, r + 2 * i + 1))
            a('buffer_store_dwordx4 %s, v%d, s[%d:%d], s%d offen offset:%d sc1' % (vr(r, 4), s.vL16, S_WS, S_WS + 3, s.sOst, pr * 1024))
        a('s_waitcnt vmcnt(0)')
        a('s_barrier')
        l = a.newlabel('Lsig')
        a('s_cmp_eq_u32 s%d, 0' % sW)
        a('s_cbranch_scc0 %s' % l)
        a('v_mov_b32 v%d, 1' % vT)
        a('s_mov_b64 exec, 1')
        a('buffer_atomic_add v%d, off, s[%d:%d], s%d sc1' % (vT, S_WS, S_WS + 3, s.sCtr))
        a('s_mov_b64 exec, -1')
        a.label(l)
    def oproj(s):
        a = s.a; vT = s.vT; vD = s.vD; vB = s.vB
        a('s_lshl_b32 s%d, s%d, 18' % (s.sOld, s.sSeg))
        a('s_lshl_b32 s%d, s%d, 15' % (sT0, sW))
        a('s_add_u32 s%d, s%d, s%d' % (s.sOld, s.sOld, sT0))
        a('s_add_u32 s%d, s%d, 0x%x' % (s.sOld, s.sOld, WS_O))
        a('s_lshl_b32 s%d, s%d, 17' % (s.sOut, s.sSeg))
        l, ok = a.newlabel('Lop'), a.newlabel('Lop')
        a('s_cmp_eq_u32 s%d, 0' % sW)
        a('s_cbranch_scc0 %s' % ok)
        a.label(l)
        a('buffer_load_dword v%d, off, s[%d:%d], s%d sc1' % (vT, S_WS, S_WS + 3, s.sCtr))
        a('s_waitcnt vmcnt(0)')
        a('v_readfirstlane_b32 s%d, v%d' % (sT0, vT))
        a('s_cmp_eq_u32 s%d, 32' % sT0)
        a('s_cbranch_scc1 %s' % ok)
        a('s_sleep 2')
        a('s_sub_u32 s%d, s%d, 1' % (sTmo, sTmo))
        a('s_cbranch_scc0 %s' % l)
        a('s_branch L_side_fail')
        a.label(ok)
        a('s_barrier')
        NB = 28
        seq = [(rt, k) for k4 in range(8) for rt in range(2) for k in range(4 * k4, 4 * k4 + 4)]
        def ld(i):
            rt, k = seq[i]
            if k % 4 == 0: a('s_add_u32 s%d, s%d, 0x%x' % (sT0, s.sOld, rt * 131072 + (k // 4) * 4096))
            a('buffer_load_dwordx4 %s, v%d, s[%d:%d], s%d offen offset:%d sc1' % (vr(vB + 4 * (i % NB), 4), s.vL16, S_WS, S_WS + 3, sT0, (k % 4) * 1024))
        AH = NB - 2
        for i in range(AH): ld(i)
        for i, (rt, k) in enumerate(seq):
            if i + AH < 64: ld(i + AH)
            a('s_waitcnt vmcnt(%d)' % min(AH, 63 - i))
            for nt in range(2):
                d = vr(vD + 4 * (2 * rt + nt), 4)
                a('v_mfma_f32_16x16x32_bf16 %s, %s, %s, %s' % (d, ar((k * 2 + nt) * 4, 4), vr(vB + 4 * (i % NB), 4), '0' if k == 0 else d))
        for t in range(4): a('ds_write_b128 v%d, %s offset:%d' % (s.vRw, vr(vD + 4 * t, 4), t * 1024))
        a('s_waitcnt lgkmcnt(0)')
        a('s_barrier')
        for i in range(4): a('ds_read_b128 %s, v%d offset:%d' % (vr(vB + 4 * i, 4), s.vKmw, s.L_RED + i * 4096))
        a('s_waitcnt lgkmcnt(0)')
        for h in range(2):
            a('v_pk_add_f32 %s, %s, %s' % (vr(vB + 2 * h, 2), vr(vB + 2 * h, 2), vr(vB + 4 + 2 * h, 2)))
            a('v_pk_add_f32 %s, %s, %s' % (vr(vB + 8 + 2 * h, 2), vr(vB + 8 + 2 * h, 2), vr(vB + 12 + 2 * h, 2)))
            a('v_pk_add_f32 %s, %s, %s' % (vr(vB + 2 * h, 2), vr(vB + 2 * h, 2), vr(vB + 8 + 2 * h, 2)))
            a('v_cvt_pk_bf16_f32 v%d, v%d, v%d' % (vT + h, vB + 2 * h, vB + 2 * h + 1))
        a('buffer_store_dwordx2 %s, v%d, s[%d:%d], s%d offen' % (vr(vT, 2), s.vOst, S_OUT, S_OUT + 3, s.sOut))
    def run(s, wait_g1):
        a = s.a
        a('s_barrier')
        s.load_wo()
        s.setup()
        wait_g1()
        a('s_barrier')
        a('s_mov_b32 s%d, s%d' % (s.sSeg, sTeam))
        a('s_mov_b32 s%d, s%d' % (s.sPf, sTeam))
        a('s_mov_b32 s%d, 0' % s.sBuf)
        s.prefetch()
        a.label('L_ao_loop')
        s.attn()
        a('s_add_u32 s%d, s%d, 4' % (s.sPf, s.sSeg))
        a('s_min_u32 s%d, s%d, 63' % (s.sPf, s.sPf))
        s.prefetch()
        s.oproj()
        a('s_add_u32 s%d, s%d, 4' % (s.sSeg, s.sSeg))
        a('s_cmp_lt_u32 s%d, 64' % s.sSeg)
        a('s_cbranch_scc1 L_ao_loop')

class Conv:
    CH = 7600
    L_H = 8 * 7600
    HC = 4160
    sSh = 56
    def __init__(s, a): s.a = a
    def run(s):
        a = s.a
        CH, L_H, HC = s.CH, s.L_H, s.HC
        sD0, sCh, sRaw = 45, 46, 56
        vRow, vW, vG, vBp, vY, vHl, vHw, vT = 1, 2, 3, 4, 5, 6, 7, 8
        vKV = 32
        vC = 64
        vK = 104
        vV = 148
        vE = 180
        a('s_barrier')
        a('s_lshl_b32 s%d, s%d, 5' % (sD0, sTeam))
        a('s_add_u32 s%d, s%d, s%d' % (sD0, sD0, sMem))
        a('s_load_dwordx2 s[72:73], s[0:1], %d' % KA['A_shift'])
        a('s_load_dwordx2 s[74:75], s[0:1], %d' % KA['A_ssmD'])
        a('s_lshl_b32 s%d, s%d, 6' % (sT0, sD0))
        a('s_lshl_b32 s%d, s%d, 4' % (sT1, sD0))
        a('s_waitcnt lgkmcnt(0)')
        a('s_load_dwordx16 s[56:71], s[72:73], s%d' % sT0)
        a('s_load_dwordx4 s[76:79], s[74:75], s%d' % sT1)
        a('s_lshl_b32 s%d, s%d, 20' % (sT0, sW))
        a('s_add_u32 s%d, s%d, s%d' % (sT0, sT0, sT1))
        bits(a, vRow, [(0, 6, 14)], 's%d' % sT0)
        for r in range(-3, 8):
            a('v_add_u32 v%d, 0x%x, v%d' % (vT, (r * 2048) & 0xffffffff, vRow))
            a('buffer_load_dwordx4 %s, v%d, s[%d:%d], 0 offen' % (vr(vK + 4 * (r + 3), 4), vT, S_AK, S_AK + 3))
            if r >= 0: a('buffer_load_dwordx4 %s, v%d, s[%d:%d], 0 offen' % (vr(vV + 4 * r, 4), vT, S_AV, S_AV + 3))
        for i in range(4): a('v_mov_b32 v%d, 0' % (vT + 4 + i))
        a('s_lshl_b32 s%d, s%d, 10' % (sT0, sW))
        bits(a, vT, [(0, 6, 4)], 's%d' % sT0)
        a('v_cmp_gt_u32 vcc, 2480, v%d' % vT)
        a('s_and_saveexec_b64 s[72:73], vcc')
        for ch in range(8): a('ds_write_b128 v%d, %s offset:%d' % (vT, vr(vT + 4, 4), ch * CH))
        a('s_mov_b64 exec, 0xffff')
        a('s_mul_i32 s%d, s%d, %d' % (sT2, sW, 4 * HC))
        a('s_add_u32 s%d, s%d, %d' % (sT2, sT2, L_H))
        a('s_add_u32 s%d, s%d, 4096' % (sT0, sT2))
        bits(a, vT, [(2, 2, 12), (2, 2, 6), (0, 2, 4)], 's%d' % sT0)
        a('ds_write_b128 v%d, %s' % (vT, vr(vT + 4, 4)))
        a('s_mov_b64 exec, -1')
        a('s_mul_i32 s%d, s%d, %d' % (sT0, sW, 16 * 80))
        a('s_add_u32 s%d, s%d, %d' % (sT0, sT0, 31 * 80))
        bits(a, vW, [(2, 4, 6), (2, 4, 4), (0, 2, 4)], 's%d' % sT0)
        a('v_and_b32 v%d, 31, v0' % vT)
        a('v_sub_u32 v%d, 31, v%d' % (vT, vT))
        a('v_and_b32 v%d, 3, v%d' % (vT + 1, vT))
        a('v_and_b32 v%d, 28, v%d' % (vT, vT))
        a('v_mul_u32_u24 v%d, %d, v%d' % (vT + 1, HC, vT + 1))
        a('v_lshl_add_u32 v%d, v%d, 1, v%d' % (vT, vT, vT + 1))
        bits(a, vG, [(5, 1, 4)], 's%d' % sT2)
        a('v_add_u32 v%d, v%d, v%d' % (vG, vG, vT))
        a('v_sub_u32 v%d, 63, v0' % vT)
        a('v_lshlrev_b32 v%d, 4, v%d' % (vT, vT))
        a('v_add_u32 v%d, s%d, v%d' % (vHw, sT2, vT))
        a('v_lshlrev_b32 v%d, 4, v0' % vHl)
        a('s_waitcnt lgkmcnt(0)')
        for ch in range(8):
            for j in range(4):
                src = sRaw + 2 * ch + j // 2
                if j % 2 == 0: a('s_lshl_b32 s%d, s%d, 16' % (sT0, src))
                else: a('s_and_b32 s%d, s%d, 0xffff0000' % (sT0, src))
                a('v_mov_b32 v%d, s%d' % (vC + 8 * j + ch, sT0))
            if ch % 2 == 0: a('s_lshl_b32 s%d, s%d, 16' % (sT0, 76 + ch // 2))
            else: a('s_and_b32 s%d, s%d, 0xffff0000' % (sT0, 76 + ch // 2))
            a('v_mov_b32 v%d, s%d' % (vC + 32 + ch, sT0))
        a('s_waitcnt vmcnt(0)')
        def unpack(dst, src):
            a('v_lshlrev_b32 v%d, 16, v%d' % (dst, src))
            a('v_and_b32 v%d, 0xffff0000, v%d' % (dst + 1, src))
        for cp in range(4):
            kf = vE; vf = vE + 22; ac = vE + 38
            for r in range(11): unpack(kf + 2 * r, vK + 4 * r + cp)
            for r in range(8): unpack(vf + 2 * r, vV + 4 * r + cp)
            for r in range(8):
                a('v_pk_mul_f32 %s, %s, %s' % (vr(ac + 2 * r, 2), vr(kf + 2 * r, 2), vr(vC + 24 + 2 * cp, 2)))
            for j in (2, 1, 0):
                for r in range(8):
                    a('v_pk_fma_f32 %s, %s, %s, %s' % (vr(ac + 2 * r, 2), vr(kf + 2 * (r + 3 - j), 2), vr(vC + 8 * j + 2 * cp, 2), vr(ac + 2 * r, 2)))
            for r in range(8):
                a('v_pk_mul_f32 %s, %s, %s' % (vr(ac + 2 * r, 2), vr(ac + 2 * r, 2), vr(vf + 2 * r, 2)))
            for e in range(2):
                ch = 2 * cp + e
                for k in range(4): a('v_cvt_pk_bf16_f32 v%d, v%d, v%d' % (vKV + 4 * ch + k, ac + 4 * k + e, ac + 4 * k + 2 + e))
                a('ds_write_b128 v%d, %s offset:%d' % (vW, vr(vKV + 4 * ch, 4), ch * CH))
        for r in range(8):
            a('v_add_u32 v%d, 0x%x, v%d' % (vT, r * 2048, vRow))
            a('buffer_load_dwordx4 %s, v%d, s[%d:%d], 0 offen' % (vr(vV + 4 * r, 4), vT, S_AQ, S_AQ + 3))
        a('s_waitcnt lgkmcnt(0)')
        a('s_barrier')
        a('s_mov_b32 s%d, 0' % sCh)
        a('s_mov_b32 s72, 0xffff')
        a.label('L_conv_ch')
        a('s_lshl_b32 s%d, s%d, 1' % (sT0, sW))
        a('s_add_u32 s%d, s%d, s%d' % (sT0, sT0, sCh))
        a('s_mul_i32 s%d, s%d, %d' % (sT1, sT0, CH))
        bits(a, vBp, [(0, 5, 6), (0, 5, 4), (5, 1, 4)], 's%d' % sT1)
        a('s_add_u32 s%d, s%d, %d' % (sT1, sT1, 31 * 80))
        bits(a, vY, [(0, 5, 6), (0, 5, 4), (5, 1, 3)], 's%d' % sT1)
        a('s_lshl_b32 s%d, s%d, 3' % (sT1, sD0))
        a('s_add_u32 s%d, s%d, s%d' % (sT0, sT0, sT1))
        a('s_lshl_b32 s%d, s%d, 12' % (sT0, sT0))
        a('v_add_u32 v%d, s%d, v%d' % (vT, sT0, vHl))
        a('v_subrev_u32 v%d, 8, v%d' % (vT + 1, vT))
        hw = vK
        for i in range(4):
            a('buffer_load_dwordx2 %s, v%d, s[%d:%d], 0 offen offset:%d' % (vr(hw + 6 * i, 2), vT + 1 if i == 0 else vT, S_AH, S_AH + 3, 0 if i == 0 else i * 1024 - 8))
            a('buffer_load_dwordx4 %s, v%d, s[%d:%d], 0 offen offset:%d' % (vr(hw + 6 * i + 2, 4), vT, S_AH, S_AH + 3, i * 1024))
        a('v_cmp_ne_u32 vcc, 0, v0')
        a('s_waitcnt vmcnt(0)')
        for k in range(2): a('v_cndmask_b32 v%d, 0, v%d, vcc' % (hw + k, hw + k))
        for i in range(4):
            wv = lambda idx: hw + 6 * i + 2 + idx
            for r in range(4):
                o = vE + 16 * (i % 2) + 4 * r
                for k in range(4):
                    if r % 2 == 0:
                        x = wv((6 - r - 2 * k) // 2)
                        a('v_alignbit_b32 v%d, v%d, v%d, 16' % (o + k, x, x))
                    else:
                        e0 = (7 - r - 2 * k) // 2
                        a('v_bfi_b32 v%d, s72, v%d, v%d' % (o + k, wv(e0), wv(e0 - 1)))
                a('ds_write_b128 v%d, %s offset:%d' % (vHw, vr(o, 4), r * HC + (3 - i) * 1024))
        steps = [(c, kk) for c in range(64) for kk in range(2)]
        NB = 6
        fb = vE + 4
        def rd(i):
            c, kk = steps[i]; m = 2 * c - kk; b = fb + 12 * (i % NB); n = 3
            for h in range(2): a('ds_read_b64 %s, v%d offset:%d' % (vr(b + 2 * h, 2), vG, (126 - m) * 32 + 8 * h))
            a('ds_read_b128 %s, v%d offset:%d' % (vr(b + 4, 4), vBp, (63 - c) * 80 + kk * 32))
            if c < 32:
                a('ds_read_b128 %s, v%d offset:%d' % (vr(b + 8, 4), vBp, (31 - c) * 80 + kk * 32)); n = 4
            return n
        a('s_waitcnt lgkmcnt(0)')
        AH = 3
        cnt = [rd(i) for i in range(AH)]
        for i, (c, kk) in enumerate(steps):
            a('s_waitcnt lgkmcnt(%d)' % sum(cnt[i + 1:]))
            if i + AH < len(steps): cnt.append(rd(i + AH))
            b = fb + 12 * (i % NB)
            a('v_mfma_f32_32x32x16_bf16 a[16:31], %s, %s, %s' % (vr(b, 4), vr(b + 4, 4), '0' if i == 0 else 'a[16:31]'))
            if c < 32: a('v_mfma_f32_32x32x16_bf16 a[0:15], %s, %s, %s' % (vr(b, 4), vr(b + 8, 4), '0' if i == 0 else 'a[0:15]'))
        for half in range(2):
            for q in range(4):
                o = vK + 6 * (half * 4 + q) % 36
                for j in range(4): a('v_accvgpr_read_b32 v%d, a%d' % (o + 2 + j, 16 * half + 4 * q + j))
                for h in range(2): a('v_cvt_pk_bf16_f32 v%d, v%d, v%d' % (o + h, o + 2 + 2 * h, o + 3 + 2 * h))
                a('ds_write_b64 v%d, %s offset:%d' % (vY, vr(o, 2), half * 32 * 80 + q * 16))
        a('s_add_u32 s%d, s%d, 1' % (sCh, sCh))
        a('s_cmp_lt_u32 s%d, 2' % sCh)
        a('s_waitcnt lgkmcnt(0)')
        a('s_cbranch_scc1 L_conv_ch')
        a('s_barrier')
        yb = vK
        for ch in range(8): a('ds_read_b128 %s, v%d offset:%d' % (vr(yb + 4 * ch, 4), vW, ch * CH))
        a('s_waitcnt lgkmcnt(0)')
        for cp in range(4):
            for k in range(4):
                t = vE + 12 * (k % 2)
                for e in range(2):
                    ch = 2 * cp + e
                    unpack(t + 4 * e, yb + 4 * ch + k)
                    unpack(t + 4 * e + 2, vKV + 4 * ch + k)
                    for h in range(2): a('v_fma_f32 v%d, v%d, v%d, v%d' % (t + 4 * e + h, t + 4 * e + 2 + h, vC + 32 + ch, t + 4 * e + h))
                for h in range(2):
                    q = vV + 4 * (2 * k + h) + cp
                    unpack(t + 8, q)
                    for e in range(2): a('v_mul_f32 v%d, v%d, v%d' % (t + 8 + e, t + 8 + e, t + 4 * e + h))
                    a('v_cvt_pk_bf16_f32 v%d, v%d, v%d' % (q, t + 8, t + 9))
        a('s_lshl_b32 s%d, s%d, 21' % (sT0, sW))
        a('s_lshl_b32 s%d, s%d, 4' % (sT1, sD0))
        a('s_add_u32 s%d, s%d, s%d' % (sT0, sT0, sT1))
        bits(a, vRow, [(0, 6, 15)])
        for r in range(8):
            a('buffer_store_dwordx4 %s, v%d, s[%d:%d], s%d offen' % (vr(vV + 4 * r, 4), vRow, S_OUT, S_OUT + 3, sT0))
            a('s_add_u32 s%d, s%d, 4096' % (sT0, sT0))
```

```python
import math, struct
from ag import *
from common import *

def f2u(x): return struct.unpack('<I', struct.pack('<f', x))[0]

L_R, L_P, L_KX, L_VX = 0, 20480, 32768, 65536
R_W, R_T, R_G = 4864, 776, 192
L_END = 131072
QKV_G = 12288
QKV_SLOT = 16 * QKV_G
PART_SLOT = 262144
MT_SLOT = 65536

S_WS, S_WQ, S_WK, S_WV, S_WO, S_M0, S_DBG = 4, 8, 12, 16, 20, 24, 28
sW, sX, sC, sG, sJ, sStep, sLocal, sTmo = 32, 33, 34, 35, 36, 37, 38, 39
sQKst, sVst, sPARTst, sREDld, sMTst, sMTld, sCld, sKVMst, sKVoff = 40, 41, 42, 43, 44, 45, 46, 47, 48
sT0, sT1, sT2, sT3 = 49, 50, 51, 52
sA, sB, sCc, sD, sE, sF, sH = 53, 54, 55, 56, 57, 58, 59
sHiMask = 60
sTS = 62
sPrev = 64
sLdsC = 65
sScale = 66
sAcc = 68
sWarm = 84
sStMask = 86
sP = 88
sTP = 96
vL16, vL4, vRw, vRr, vRr2, vPw, vPw2, vKX, vVX, vIdx, vGate, vRed, vMld, vMst = range(1, 15)
vT = 16
vSent = 28
vD = 32
vU = 64
vWo2 = 128
vM = 192
vF = 224
vSel = 240
vK = 64
vX = 96

def wo(tt, off, n):
    return ar(192 + 32 * tt + off, n) if tt < 2 else vr(vWo2 + 32 * (tt - 2) + off, n)

class Chain:
    def __init__(s, a, prof=False, nsteps=64, opt=None):
        s.a = a; s.prof = prof; s.nsteps = nsteps; s.opt = opt or {}
    def stamp(s, i):
        a = s.a
        if s.opt.get('trace'):
            if i in s.opt['trace']:
                a('s_memrealtime s[%d:%d]' % (sTS, sTS + 1))
                a('s_waitcnt lgkmcnt(0)')
                a('s_mov_b32 m0, s%d' % sStep)
                a('s_nop 0')
                a('v_writelane_b32 v%d, s%d, m0' % (244 + i, sTS))
            return
        if not s.prof: return
        if s.opt.get('gprof') is not None:
            if i < 20: return
            i -= 20
        elif i >= 20: return
        a('s_memtime s[%d:%d]' % (sTS, sTS + 1))
        a('s_waitcnt lgkmcnt(0)')
        a('s_sub_u32 s%d, s%d, s%d' % (sTS + 1, sTS, sPrev))
        a('s_add_u32 s%d, s%d, s%d' % (sAcc + i, sAcc + i, sTS + 1))
        a('s_mov_b32 s%d, s%d' % (sPrev, sTS))
    def count(s, i):
        if s.prof: s.a('s_add_u32 s%d, s%d, 1' % (sAcc + i, sAcc + i))
    def st(s, data, voff, soff, off=0, n=1, sc1=True):
        op = {1: 'buffer_store_dword', 2: 'buffer_store_dwordx2', 4: 'buffer_store_dwordx4'}[n]
        s.a('%s %s, v%d, s[%d:%d], s%d offen offset:%d%s' % (op, vr(data, n), voff, S_WS, S_WS + 3, soff, off, ' sc1' if sc1 else ''))
    def lst(s, data, voff, soff, off=0, n=1): s.st(data, voff, soff, off, n, sc1=not s.local)
    def dma(s, soff, off, voff=vL16): s.a('buffer_load_dwordx4 v%d, s[%d:%d], s%d offen offset:%d sc1 lds' % (voff, S_WS, S_WS + 3, soff, off))
    def delay(s, key):
        for i in range(s.opt.get(key, 0)): s.a('s_nop 7')
    def tmo(s, retry):
        a = s.a
        a('s_sub_u32 s%d, s%d, 1' % (sTmo, sTmo))
        a('s_cbranch_scc0 %s' % retry)
        a('s_branch L_chain_fail')
    def maxtree(s, base, n, dst, first=True):
        a = s.a
        i = 0
        if first:
            a('v_max3_u32 v%d, v%d, v%d, v%d' % (dst, base, base + 1, base + 2)); i = 3
        while i + 1 < n:
            a('v_max3_u32 v%d, v%d, v%d, v%d' % (dst, dst, base + i, base + i + 1)); i += 2
        if i < n: a('v_max_u32 v%d, v%d, v%d' % (dst, dst, base + i))
    def halfsum(s, d, dst=None):
        s.a('v_pk_add_f32 %s, %s, %s' % (vr(d if dst is None else dst, 2), vr(d, 2), vr(d + 2, 2)))
    def zero(s, regs):
        regs = list(regs)
        for i in range(0, len(regs), 2):
            assert regs[i] % 2 == 0 and regs[i + 1] == regs[i] + 1
            s.a('v_mov_b64 %s, 0' % vr(regs[i], 2))
    def hopb_s1(s, tag, tail=None):
        a = s.a
        def ld(u): a('buffer_load_dwordx4 %s, v%d, s[%d:%d], s%d offen offset:%d sc1' % (vr(vM + 4 * u, 4), vMld, S_WS, S_WS + 3, sH, u * 1024))
        def chk(u):
            return ['s_waitcnt vmcnt(%d)' % (3 - u),
                    'v_max3_u32 v%d, v%d, v%d, v%d' % (vT, vM + 4 * u, vM + 4 * u + 1, vM + 4 * u + 2),
                    'v_max_u32 v%d, v%d, v%d' % (vT, vT, vM + 4 * u + 3),
                    'v_cmp_eq_u32 vcc, -1, v%d' % vT]
        def mf(u, t6): a('v_smfmac_f32_16x16x64_bf16 %s, %s, %s, v%d' % (vr(vD + 4 * t6, 4), vr(vM + 4 * u, 4), ar((t6 * 4 + u) * 8, 8), vIdx))
        for u in range(4): ld(u)
        for x in chk(0): a(x)
        for u in range(4):
            a('s_cbranch_vccnz L_b%d_retry_%s' % (u, tag))
            a.label('L_b%d_ok_%s' % (u, tag))
            if u < 3:
                c = chk(u + 1)
                mf(u, 0); mf(u, 1); a(c[0]); a(c[1]); mf(u, 2); a(c[2]); a(c[3]); mf(u, 3); mf(u, 4); mf(u, 5)
            else:
                for t6 in range(6):
                    mf(u, t6)
                    if tail and t6 < len(tail): tail[t6]()
        def stubs():
            for u in range(4):
                a.label('L_b%d_retry_%s' % (u, tag))
                s.count(11)
                a('s_sub_u32 s%d, s%d, 1' % (sTmo, sTmo))
                a('s_cbranch_scc1 L_chain_fail')
                for uu in range(u, 4): ld(uu)
                for x in chk(u): a(x)
                a('s_cbranch_vccnz L_b%d_retry_%s' % (u, tag))
                a('s_branch L_b%d_ok_%s' % (u, tag))
        return stubs
    def s1unit(s, u):
        for t6 in range(6):
            s.a('v_smfmac_f32_16x16x64_bf16 %s, %s, %s, v%d' % (vr(vD + 4 * t6, 4), vr(vM + 4 * u, 4), ar((t6 * 4 + u) * 8, 8), vIdx))
    def ux(s, hooks=None):
        a = s.a
        hooks = hooks or {}
        seq = [(hl, tau, t) for hl in range(2) for tau in range(2) for t in range(4)]
        def rd(i):
            hl, tau, t = seq[i]
            a('ds_read_b128 %s, v%d offset:%d' % (vr(vM + 4 * (i % 8), 4), vVX, hl * 8192 + tau * 4096 + t * 1024))
        for i in range(6): rd(i)
        def cvt(gi, tt, h):
            hl, tau = gi // 2, gi % 2
            d = vD + 16 * (gi % 2) + 4 * tt
            u = vU + 16 * tt + 8 * hl + 2 * tau
            a('v_cvt_pk_bf16_f32 v%d, v%d, v%d' % (u + h, d + 2 * h, d + 2 * h + 1))
        n = 0
        for i, (hl, tau, t) in enumerate(seq):
            if i + 6 < 16: rd(i + 6)
            a('s_waitcnt lgkmcnt(%d)' % min(6, 15 - i))
            gi = i // 4
            for tt in range(4):
                if n in hooks: hooks[n]()
                n += 1
                d = vD + 16 * (gi % 2) + 4 * tt
                a('v_mfma_f32_16x16x32_bf16 %s, %s, %s, %s' % (vr(d, 4), vr(vM + 4 * (i % 8), 4), wo(tt, 16 * hl + 4 * t, 4), '0' if t == 0 else vr(d, 4)))
                if gi > 0 and t >= 2: cvt(gi - 1, tt, t - 2)
        for tt in range(4):
            for h in range(2): cvt(3, tt, h)
        a('v_xor_b32 v%d, 0x4000, v%d' % (vVX, vVX))
    def dma_kv(s, sSeg, wsbase, lds):
        a = s.a
        a('s_lshl_b32 s%d, s%d, 18' % (sT0, sSeg))
        a('s_add_u32 s%d, s%d, s%d' % (sT0, sT0, sKVoff))
        a('s_and_b32 s%d, s%d, 1' % (sT1, sW))
        a('s_lshl_b32 s%d, s%d, 13' % (sT1, sT1))
        a('s_add_u32 s%d, s%d, %s' % (sT1, sT1, lds))
        for tau in range(2):
            a('s_add_u32 s%d, s%d, 0x%x' % (sT0, sT0, wsbase if tau == 0 else 131072))
            a('s_add_u32 m0, s%d, %d' % (sT1, tau * 4096))
            for t in range(4): s.dma(sT0, t * 1024)
    def bits(s, dst, terms, init=None):
        a = s.a
        first = init is None
        if not first: a('v_mov_b32 v%d, %s' % (dst, init))
        for (src, n, sh) in terms:
            a('v_bfe_u32 v%d, v0, %d, %d' % (vT + 11, src, n))
            if first: a('v_lshlrev_b32 v%d, %d, v%d' % (dst, sh, vT + 11)); first = False
            else: a('v_lshl_add_u32 v%d, v%d, %d, v%d' % (dst, vT + 11, sh, dst))
    def init(s):
        a = s.a
        a('s_and_b32 s%d, s2, 7' % sX)
        a('s_lshr_b32 s%d, s2, 3' % sC)
        a('s_and_b32 s%d, s%d, 7' % (sJ, sC))
        a('s_lshr_b32 s%d, s%d, 3' % (sG, sC))
        a('s_lshl_b32 s%d, s%d, 2' % (sT0, sX))
        a('s_add_u32 s%d, s%d, s%d' % (sG, sG, sT0))
        a('v_lshrrev_b32 v%d, 6, v0' % vT)
        a('v_readfirstlane_b32 s%d, v%d' % (sW, vT))
        a('v_and_b32 v0, 63, v0')
        vA, vB = vT + 8, vT + 9
        a('s_lshl_b32 s%d, s%d, 9' % (sT0, sG))
        a('s_lshl_b32 s%d, s%d, 6' % (sT1, sJ))
        a('s_add_u32 s%d, s%d, s%d' % (sT0, sT0, sT1))
        s.bits(vA, [(2, 4, 13), (0, 2, 4)], 's%d' % sT0)
        def dma_w1(srdreg, ldsbase):
            a('s_lshl_b32 s%d, s%d, 21' % (sT0, sW))
            a('s_lshl_b32 s%d, s%d, 14' % (sT1, sW))
            a('s_add_u32 s%d, s%d, %d' % (sT1, sT1, ldsbase))
            for i in range(16):
                a('s_mov_b32 m0, s%d' % sT1)
                a('buffer_load_dwordx4 v%d, s[%d:%d], s%d offen lds' % (vA, srdreg, srdreg + 3, sT0))
                a('s_add_u32 s%d, s%d, 0x20000' % (sT0, sT0))
                a('s_add_u32 s%d, s%d, 1024' % (sT1, sT1))
        dma_w1(S_WQ, 0); dma_w1(S_WK, 65536)
        a('s_mov_b32 s%d, 0x%x' % (sTmo, 400000))
        for i in range(2): a('s_mov_b32 s%d, 0x%x' % (sScale + i, f2u(math.log2(math.e) / math.sqrt(128))))
        for i in range(2): a('s_mov_b32 s%d, 0xcccccccc' % (sHiMask + i))
        for i in range(2): a('s_mov_b32 s%d, 0x00ff00ff' % (sStMask + i))
        a('v_lshlrev_b32 v%d, 4, v0' % vL16)
        a('v_lshlrev_b32 v%d, 2, v0' % vL4)
        for i in range(4): a('v_mov_b32 v%d, -1' % (vSent + i))
        a('v_mov_b32 v%d, 0x4444' % vT)
        a('v_mov_b32 v%d, 0xeeee' % (vT + 1))
        a('v_cndmask_b32 v%d, v%d, v%d, s[%d:%d]' % (vIdx, vT, vT + 1, sHiMask, sHiMask + 1))
        s.bits(vGate, [(0, 6, 7)])
        s.bits(vRed, [(4, 2, 12), (0, 4, 4)])
        s.bits(vMld, [(2, 2, 8), (4, 2, 6), (0, 2, 4)])
        s.bits(vMst, [(1, 2, 6), (5, 1, 5), (0, 1, 4), (4, 1, 3)])
        a('s_mul_i32 s%d, s%d, %d' % (sT0, sW, R_W))
        s.bits(vRw, [(0, 4, 3), (4, 2, 7), (4, 2, 6)], 's%d' % sT0)
        a('s_lshr_b32 s%d, s%d, 1' % (sT0, sW))
        a('s_mul_i32 s%d, s%d, %d' % (sT0, sT0, 2 * R_T))
        a('s_and_b32 s%d, s%d, 1' % (sT1, sW))
        a('s_lshl_b32 s%d, s%d, 6' % (sT1, sT1))
        a('s_add_u32 s%d, s%d, s%d' % (sT0, sT0, sT1))
        s.bits(vRr, [(0, 1, 9), (0, 1, 8), (0, 1, 3), (4, 2, 7), (4, 2, 6), (1, 1, 5), (3, 1, 4), (2, 1, 2)], 's%d' % sT0)
        a('v_add_u32 v%d, 8, v%d' % (vRr2, vRr))
        a('v_bfe_u32 v%d, v0, 0, 1' % vT)
        a('v_lshlrev_b32 v%d, 4, v%d' % (vT, vT))
        a('v_mov_b32 v%d, 0x3f80' % (vT + 1))
        a('v_lshlrev_b32 v%d, v%d, v%d' % (vT, vT, vT + 1))
        a('v_bfe_u32 v%d, v0, 1, 3' % (vT + 1))
        for k in range(4):
            a('v_cmp_eq_u32 vcc, %d, v%d' % (k, vT + 1))
            a('v_cndmask_b32 v%d, 0, v%d, vcc' % (vSel + k, vT))
        a('s_and_b32 s%d, s%d, 1' % (sT3, sW))
        a('s_lshl_b32 s%d, s%d, 10' % (sT0, sT3))
        a('s_add_u32 s%d, s%d, %d' % (sT0, sT0, L_P))
        a('v_add_u32 v%d, s%d, v%d' % (vPw, sT0, vL4))
        s.bits(vPw2, [(2, 4, 4), (0, 1, 3), (1, 1, 2)], 's%d' % sT0)
        lh = a.newlabel('Li')
        a('s_cmp_lt_u32 s%d, 2' % sW)
        a('s_cbranch_scc1 %s' % lh)
        s.bits(vPw, [(5, 1, 9), (3, 1, 8), (0, 2, 6), (4, 1, 5), (2, 1, 3)], str(L_P))
        a('v_add_u32 v%d, %d, v%d' % (vPw2, 2 * R_T, vRr))
        a('v_add_u32 v%d, %d, v%d' % (vRed, 2 * R_T + 8, vRr))
        a.label(lh)
        a('s_lshl_b32 s%d, s%d, 13' % (sT0, sT3))
        a('s_add_u32 s%d, s%d, %d' % (sT0, sT0, L_KX))
        a('s_mov_b32 s%d, s%d' % (sLdsC, sT0))
        s.bits(vKX, [(2, 4, 6), (0, 1, 5), (1, 1, 4)], 's%d' % sT0)
        a('v_add_u32 v%d, %d, v%d' % (vVX, L_VX, vL16))
        a('s_and_b32 s%d, s%d, 3' % (sT2, sJ))
        a('s_lshl_b32 s%d, s%d, 9' % (sT2, sT2))
        a('s_lshl_b32 s%d, s%d, 8' % (sT0, sT3))
        a('s_add_u32 s%d, s%d, s%d' % (sT2, sT2, sT0))
        a('s_lshr_b32 s%d, s%d, 2' % (sT1, sJ))
        a('s_mul_i32 s%d, s%d, %d' % (sCld, sG, QKV_G))
        a('s_add_u32 s%d, s%d, 0x%x' % (sCld, sCld, WS_QKV))
        a('s_lshl_b32 s%d, s%d, 12' % (sT0, sT1))
        a('s_add_u32 s%d, s%d, s%d' % (sQKst, sCld, sT0))
        a('s_add_u32 s%d, s%d, s%d' % (sQKst, sQKst, sT2))
        a('s_lshr_b32 s%d, s%d, 1' % (sT0, sW))
        a('s_lshl_b32 s%d, s%d, 11' % (sT0, sT0))
        a('s_add_u32 s%d, s%d, s%d' % (sQKst, sQKst, sT0))
        a('s_lshl_b32 s%d, s%d, 11' % (sT0, sT1))
        a('s_add_u32 s%d, s%d, s%d' % (sVst, sCld, sT0))
        a('s_add_u32 s%d, s%d, s%d' % (sVst, sVst, sT2))
        a('s_add_u32 s%d, s%d, 8192' % (sVst, sVst))
        a('s_lshl_b32 s%d, s%d, 1' % (sKVMst, sG))
        a('s_add_u32 s%d, s%d, s%d' % (sKVMst, sKVMst, sT1))
        a('s_lshl_b32 s%d, s%d, 12' % (sKVMst, sKVMst))
        a('s_add_u32 s%d, s%d, s%d' % (sKVMst, sKVMst, sT2))
        a('s_add_u32 s%d, s%d, 0x%x' % (sKVMst, sKVMst, WS_KVM))
        a('s_min_u32 s%d, s%d, 2' % (sT0, sW))
        a('s_lshl_b32 s%d, s%d, 12' % (sT0, sT0))
        a('s_add_u32 s%d, s%d, s%d' % (sCld, sCld, sT0))
        a('s_lshl_b32 s%d, s%d, 1' % (sT0, sJ))
        a('s_add_u32 s%d, s%d, s%d' % (sT0, sT0, sT3))
        a('s_lshl_b32 s%d, s%d, 14' % (sT0, sT0))
        a('s_lshl_b32 s%d, s%d, 10' % (sT1, sG))
        a('s_add_u32 s%d, s%d, s%d' % (sPARTst, sT0, sT1))
        a('s_add_u32 s%d, s%d, 0x%x' % (sPARTst, sPARTst, WS_PART))
        a('s_lshl_b32 s%d, s%d, 1' % (sT0, sC))
        a('s_add_u32 s%d, s%d, s%d' % (sT0, sT0, sT3))
        a('s_lshr_b32 s%d, s%d, 2' % (sT1, sT0))
        a('s_lshl_b32 s%d, s%d, 14' % (sREDld, sT1))
        a('s_and_b32 s%d, s%d, 3' % (sT1, sT0))
        a('s_lshl_b32 s%d, s%d, 8' % (sT1, sT1))
        a('s_add_u32 s%d, s%d, s%d' % (sREDld, sREDld, sT1))
        a('s_add_u32 s%d, s%d, 0x%x' % (sREDld, sREDld, WS_PART))
        a('s_lshl_b32 s%d, s%d, 14' % (sMTld, sX))
        a('s_add_u32 s%d, s%d, 0x%x' % (sMTld, sMTld, WS_MT))
        a('s_lshl_b32 s%d, s%d, 8' % (sT0, sT0))
        a('s_add_u32 s%d, s%d, s%d' % (sMTst, sMTld, sT0))
        a('s_lshl_b32 s%d, s%d, 12' % (sT0, sW))
        a('s_add_u32 s%d, s%d, s%d' % (sMTld, sMTld, sT0))
        a('s_lshl_b32 s%d, s%d, 1' % (sKVoff, sG))
        a('s_add_u32 s%d, s%d, s%d' % (sKVoff, sKVoff, sT3))
        a('s_lshl_b32 s%d, s%d, 12' % (sKVoff, sKVoff))
        a('s_and_b32 s%d, s%d, 1' % (sT0, sJ))
        a('s_lshl_b32 s%d, s%d, 12' % (sT0, sT0))
        a('s_lshl_b32 s%d, s%d, 13' % (sWarm, sG))
        a('s_add_u32 s%d, s%d, s%d' % (sWarm, sWarm, sT0))
        a('s_bfe_u32 s%d, s%d, 0x10001' % (sT0, sJ))
        a('s_lshl_b32 s%d, s%d, 17' % (sT0, sT0))
        a('s_add_u32 s%d, s%d, s%d' % (sWarm, sWarm, sT0))
        a('s_lshr_b32 s%d, s%d, 2' % (sT0, sJ))
        a('s_mul_i32 s%d, s%d, 0x%x' % (sT0, sT0, WS_VF - WS_KF + 262144))
        a('s_add_u32 s%d, s%d, s%d' % (sWarm, sWarm, sT0))
        a('s_add_u32 s%d, s%d, 0x%x' % (sWarm, sWarm, WS_KF + 2 * 262144))
        a('s_lshl_b32 s%d, s%d, 11' % (sT0, sT3))
        a('s_add_u32 s%d, s%d, s%d' % (sWarm, sWarm, sT0))
        for slot in range(4):
            a('s_add_u32 s%d, s%d, 0x%x' % (sT0, sQKst, slot * QKV_SLOT)); s.st(vSent, vL4, sT0)
            a('s_add_u32 s%d, s%d, 0x%x' % (sT0, sVst, slot * QKV_SLOT)); s.st(vSent, vL4, sT0)
            if slot < 2:
                a('s_add_u32 s%d, s%d, 0x%x' % (sT0, sPARTst, slot * PART_SLOT)); s.st(vSent, vL16, sT0, n=4)
            a('s_add_u32 s%d, s%d, 0x%x' % (sT0, sMTst, slot * MT_SLOT)); s.st(vSent, vL4, sT0)
        a('s_waitcnt vmcnt(0)')
        a('s_barrier')
        lskip = a.newlabel('Lann')
        a('s_cmp_eq_u32 s%d, 0' % sW)
        a('s_cbranch_scc0 %s' % lskip)
        a('s_getreg_b32 s%d, hwreg(HW_REG_XCC_ID)' % sT0)
        a('s_and_b32 s%d, s%d, 15' % (sT0, sT0))
        a('s_lshl_b32 s%d, 1, s%d' % (sT0, sT0))
        a('s_lshl_b32 s%d, s%d, 2' % (sT1, sX))
        a('v_mov_b32 v%d, s%d' % (vT + 6, sT0))
        a('v_mov_b32 v%d, 1' % (vT + 7))
        a('s_mov_b64 exec, 1')
        a('buffer_atomic_or v%d, off, s[%d:%d], s%d offset:16 sc1' % (vT + 6, S_DBG, S_DBG + 3, sT1))
        a('s_waitcnt vmcnt(0)')
        a('buffer_atomic_add v%d, off, s[%d:%d], 0 offset:0 sc1' % (vT + 7, S_DBG, S_DBG + 3))
        a('s_mov_b64 exec, -1')
        a.label(lskip)
        a('s_lshl_b32 s%d, s%d, 14' % (sT0, sW))
        s.bits(vB, [(0, 2, 3), (5, 1, 10), (4, 1, 8), (3, 1, 9), (2, 1, 6)], 's%d' % sT0)
        def tr_w1(vaddr, mat):
            for half in range(2):
                for Tl in range(4):
                    for v in range(4):
                        a('ds_read_b64_tr_b16 %s, v%d offset:%d' % (ar(((2 * mat + half) * 4 + Tl) * 8 + 2 * v, 2), vaddr, Tl * 4096 + (32 * (v // 2) + 2 * (v % 2)) * 64 + half * 32))
                    a('s_waitcnt lgkmcnt(4)')
            a('s_waitcnt lgkmcnt(0)')
        tr_w1(vB, 0)
        dma_w1(S_WV, 0)
        a('v_add_u32 v%d, 0x10000, v%d' % (vT + 10, vB))
        tr_w1(vT + 10, 1)
        a('s_lshl_b32 s%d, s%d, 8' % (sT0, sJ))
        s.bits(vA, [(4, 2, 11), (0, 4, 4)], 's%d' % sT0)
        a('s_lshl_b32 s%d, s%d, 19' % (sT0, sG))
        a('s_lshl_b32 s%d, s%d, 17' % (sT1, sW))
        a('s_add_u32 s%d, s%d, s%d' % (sT0, sT0, sT1))
        a('s_lshl_b32 s%d, s%d, 14' % (sT1, sW))
        a('s_add_u32 s%d, s%d, 65536' % (sT1, sT1))
        for i in range(16):
            a('s_mov_b32 m0, s%d' % sT1)
            a('buffer_load_dwordx4 v%d, s[%d:%d], s%d offen lds' % (vA, S_WO, S_WO + 3, sT0))
            a('s_add_u32 s%d, s%d, 8192' % (sT0, sT0))
            a('s_add_u32 s%d, s%d, 1024' % (sT1, sT1))
        a('s_waitcnt vmcnt(16)')
        tr_w1(vB, 2)
        a('s_waitcnt vmcnt(0)')
        a('s_barrier')
        lj = a.newlabel('Li')
        a('s_cmp_lt_u32 s%d, 2' % sW)
        a('s_cbranch_scc1 %s' % lj)
        a('s_lshl_b32 s%d, s%d, 7' % (sT0, sT3))
        a('s_add_u32 s%d, s%d, 65536' % (sT0, sT0))
        s.bits(vB, [(2, 4, 8), (0, 2, 3)], 's%d' % sT0)
        for tt in range(4):
            for hl in range(2):
                for t in range(4):
                    for v2 in range(2):
                        a('ds_read_b64_tr_b16 %s, v%d offset:%d' % (wo(tt, 16 * hl + 4 * t + 2 * v2, 2), vB, (hl * 128 + 32 * t + 16 * v2) * 256 + tt * 32))
                a('s_waitcnt lgkmcnt(0)')
        for i in range(8):
            a('v_mov_b32 v%d, 0' % (vU + 8 * i + 6)); a('v_mov_b32 v%d, 0' % (vU + 8 * i + 7))
        a.label(lj)
        a('s_barrier')
        s.kv_wait_init()
        a('s_mov_b32 s%d, 0' % sStep)
        lh, lj = a.newlabel('Li'), a.newlabel('Li')
        a('s_cmp_ge_u32 s%d, 2' % sW)
        a('s_cbranch_scc1 %s' % lh)
        s.dma_kv(sStep, WS_KF, str(L_KX))
        a('s_mov_b32 s%d, 1' % sT2)
        s.dma_kv(sT2, WS_VF, str(L_VX + 16384))
        a('v_mov_b32 v%d, 0' % vT)
        a('ds_write_b32 v%d, v%d offset:768' % (vPw, vT))
        a('s_branch %s' % lj)
        a.label(lh)
        s.dma_kv(sStep, WS_VF, str(L_VX))
        a.label(lj)
        a('s_waitcnt vmcnt(0) lgkmcnt(0)')
        a('s_barrier')
        lj = a.newlabel('Li')
        a('s_cmp_lt_u32 s%d, 2' % sW)
        a('s_cbranch_scc1 %s' % lj)
        s.ux()
        a.label(lj)
        a('s_lshl_b32 s%d, s%d, 9' % (sT0, sW))
        s.bits(vA, [(2, 2, 12), (0, 1, 11), (4, 2, 5), (1, 1, 4)], 's%d' % sT0)
        for u in range(4):
            a('buffer_load_dwordx4 %s, v%d, s[%d:%d], 0 offen offset:%d' % (vr(vM + 4 * u, 4), vA, S_M0, S_M0 + 3, u * 128))
        lw, lok = a.newlabel('Lw'), a.newlabel('Lw')
        a.label(lw)
        a('buffer_load_dword v%d, off, s[%d:%d], 0 sc1' % (vT, S_DBG, S_DBG + 3))
        a('s_waitcnt vmcnt(0)')
        a('v_readfirstlane_b32 s%d, v%d' % (sT0, vT))
        a('s_cmp_eq_u32 s%d, %d' % (sT0, s.opt.get('ninit', 128)))
        a('s_cbranch_scc1 %s' % lok)
        a('s_sleep 2')
        s.tmo(lw)
        a.label(lok)
        a('s_lshl_b32 s%d, s%d, 2' % (sT1, sX))
        a('buffer_load_dword v%d, off, s[%d:%d], s%d offset:16 sc1' % (vT, S_DBG, S_DBG + 3, sT1))
        a('s_waitcnt vmcnt(0)')
        a('v_readfirstlane_b32 s%d, v%d' % (sT0, vT))
        a('s_bcnt1_i32_b32 s%d, s%d' % (sLocal, sT0))
        s.prep_stage1()
        for u in range(4): s.s1unit(u)
        s.mark(1)
        if s.opt.get('tot', True):
            a('s_memrealtime s[98:99]')
            a('s_waitcnt lgkmcnt(0)')
        if s.prof:
            for i in range(16): a('s_mov_b32 s%d, 0' % (sAcc + i))
            a('s_memtime s[%d:%d]' % (sTS, sTS + 1)); a('s_waitcnt lgkmcnt(0)'); a('s_mov_b32 s%d, s%d' % (sPrev, sTS))
    def slot(s, dst, base, mul, rst=False):
        a = s.a
        a('s_and_b32 s%d, s%d, 3' % (dst, sStep))
        if rst: a('s_xor_b32 s%d, s%d, 2' % (dst, dst))
        a('s_mul_i32 s%d, s%d, %d' % (dst, dst, mul))
        a('s_add_u32 s%d, s%d, s%d' % (dst, dst, base))
    def prep_stage1(s):
        a = s.a
        s.slot(sA, sQKst, QKV_SLOT); s.slot(sB, sVst, QKV_SLOT); s.slot(sCc, sCld, QKV_SLOT)
        s.zero(range(vD, vD + 24))
    def s1finish(s, second):
        a = s.a
        for t6 in range(6):
            s.halfsum(vD + 4 * t6)
            a('ds_write_b64 v%d, %s offset:%d' % (vRw, vr(vD + 4 * t6, 2), L_R + t6 * R_T))
        a('s_waitcnt lgkmcnt(0)')
        s.stamp(6)
        a('s_barrier')
        s.stamp(7)
        tiles = [(vRr, vRr2, vM + 16, vT + 10, sA)] + ([(vPw2, vRed, vM + 24, vT + 11, sB)] if second else [])
        k = R_W // 256
        for a0, a1, r, o, so in tiles:
            for e, ad in enumerate((a0, a1)):
                for h in range(2):
                    a('ds_read2st64_b32 %s, v%d offset0:%d offset1:%d' % (vr(r + 4 * e + 2 * h, 2), ad, 2 * h * k, (2 * h + 1) * k))
        for n, (a0, a1, r, o, so) in enumerate(tiles):
            rem = 4 * (len(tiles) - 1 - n)
            a('s_waitcnt lgkmcnt(%d)' % (rem + 2))
            a('v_pk_add_f32 %s, %s, %s' % (vr(r, 2), vr(r, 2), vr(r + 2, 2)))
            a('v_add_f32 v%d, v%d, v%d' % (r, r, r + 1))
            a('s_waitcnt lgkmcnt(%d)' % rem)
            a('v_pk_add_f32 %s, %s, %s' % (vr(r + 4, 2), vr(r + 4, 2), vr(r + 6, 2)))
            a('v_add_f32 v%d, v%d, v%d' % (r + 4, r + 4, r + 5))
            a('v_cvt_pk_bf16_f32 v%d, v%d, v%d' % (o, r, r + 4))
            a('v_min_u32 v%d, -2, v%d' % (o, o))
            s.lst(o, vL4, so)
        s.stamp(0)
    def hopc(s, tag):
        a = s.a
        a.label('L_hopc_%s' % tag)
        for i in range(4):
            a('buffer_load_dwordx4 %s, v%d, s[%d:%d], s%d offen offset:%d sc1' % (vr(vM + 4 * i, 4), vL16, S_WS, S_WS + 3, sCc, i * 1024))
        a('s_waitcnt vmcnt(2)')
        s.maxtree(vM, 8, vT)
        a('s_waitcnt vmcnt(0)')
        s.maxtree(vM + 8, 8, vT, first=False)
        a('v_cmp_eq_u32 vcc, -1, v%d' % vT)
        a('s_cbranch_vccnz L_cretry_%s' % tag)
    def cretry(s, tag):
        s.a.label('L_cretry_%s' % tag)
        s.count(9)
        s.tmo('L_hopc_%s' % tag)
    def loop_S(s, tag):
        a = s.a
        vS = vD + 24
        vSm = vF + 4
        for i in range(8): a('v_mov_b32 v%d, 0' % (vS + i))
        a.label('L_loop_%s' % tag)
        s.s1finish(False)
        a('s_cmp_eq_u32 s%d, %d' % (sStep, s.nsteps - 1))
        a('s_cbranch_scc1 L_chain_done')
        for i in range(8): a('ds_read_b128 %s, v%d offset:%d' % (vr(vK + 4 * i, 4), vKX, i * 1024))
        a('s_min_u32 s%d, s%d, 60' % (sT2, sStep))
        a('s_lshl_b32 s%d, s%d, 18' % (sT2, sT2))
        a('s_add_u32 s%d, s%d, s%d' % (sT2, sT2, sWarm))
        a('s_lshl_b32 s%d, s%d, 18' % (sD, sStep))
        a('s_add_u32 s%d, s%d, s%d' % (sD, sD, sREDld))
        s.slot(sE, sMTst, MT_SLOT); s.slot(sH, sMTld, MT_SLOT)
        s.slot(sB, sQKst, QKV_SLOT, True); s.slot(sF, sMTst, MT_SLOT, True)
        s.zero(range(vD, vD + 24))
        s.delay('cdelay')
        s.stamp(1)
        a('s_waitcnt lgkmcnt(0)')
        s.hopc(tag)
        s.stamp(2)
        for T in range(2):
            for tau in range(2):
                a('v_smfmac_f32_16x16x64_bf16 %s, %s, %s, v%d' % (vr(vS + 4 * tau, 4), vr(vM + 4 * T, 4), vr(vK + 16 * tau + 8 * T, 8), vIdx))
        for T in range(2):
            a('v_mfma_f32_16x16x32_bf16 %s, %s, %s, %s' % (vr(vSm, 4), vr(vM + 4 * T, 4), vr(vM + 8 + 4 * T, 4), '0' if T == 0 else vr(vSm, 4)))
        if s.opt.get('warm', True):
            a('s_mov_b64 exec, 0xffff')
            a('buffer_load_dword v%d, v%d, s[%d:%d], s%d offen sc1' % (vT + 11, vGate, S_WS, S_WS + 3, sT2))
            a('s_mov_b64 exec, -1')
        x = vT + 2
        m = vT + 8
        s.halfsum(vS, x); s.halfsum(vS + 4, x + 2)
        for i in range(2): a('v_cndmask_b32 v%d, v%d, v%d, s[%d:%d]' % (x + 4 + i, vSm + i, vSm + 2 + i, sHiMask, sHiMask + 1))
        for i in range(2): a('v_add_f32_dpp v%d, v%d, v%d quad_perm:[2,3,0,1] row_mask:0xf bank_mask:0xf' % (x + 4 + i, x + 4 + i, x + 4 + i))
        def xreduce(op):
            for sh in (8, 4, 2, 1):
                for i in range(2): a('%s_dpp v%d, v%d, v%d row_ror:%d row_mask:0xf bank_mask:0xf' % (op, m + i, m + i, m + i, sh))
        for i in range(2): a('v_max3_f32 v%d, v%d, v%d, v%d' % (m + i, x + i, x + 2 + i, x + 4 + i))
        xreduce('v_max_f32')
        a('v_pk_mul_f32 %s, %s, %s' % (vr(m, 2), vr(m, 2), sr(sScale, 2)))
        for k in range(3): a('v_pk_fma_f32 %s, %s, %s, %s neg_lo:[0,0,1] neg_hi:[0,0,1]' % (vr(x + 2 * k, 2), vr(x + 2 * k, 2), sr(sScale, 2), vr(m, 2)))
        for i in range(6): a('v_exp_f32 v%d, v%d' % (x + i, x + i))
        a('v_pk_add_f32 %s, %s, %s' % (vr(m, 2), vr(x, 2), vr(x + 2, 2)))
        for i in range(2): a('v_fma_f32 v%d, v%d, 0.5, v%d' % (m + i, x + 4 + i, m + i))
        xreduce('v_add_f32')
        for i in range(2): a('v_rcp_f32 v%d, v%d' % (m + i, m + i))
        for k in range(3): a('v_pk_mul_f32 %s, %s, %s' % (vr(x + 2 * k, 2), vr(x + 2 * k, 2), vr(m, 2)))
        for k in range(3): a('v_cvt_pk_bf16_f32 v%d, v%d, v%d' % (x + 2 * k, x + 2 * k, x + 2 * k + 1))
        a('ds_write2_b32 v%d, v%d, v%d offset0:0 offset1:64' % (vPw, x, x + 2))
        a('ds_write_b32 v%d, v%d offset:512' % (vPw2, x + 4))
        a('s_waitcnt lgkmcnt(0)')
        s.stamp(3)
        a('s_barrier')
        s.stamp(4)
        a('s_add_u32 s%d, s%d, 1' % (sStep, sStep))
        s.slot(sA, sQKst, QKV_SLOT); s.slot(sCc, sCld, QKV_SLOT)
        s.zero(range(vS, vS + 8))
        a('v_xor_b32 v%d, 0x4000, v%d' % (vKX, vKX))
        a('s_barrier')
        tail = [lambda: s.lst(vSent, vL4, sB), lambda: s.lst(vSent, vL4, sF)]
        if not s.opt.get('latetail'):
            for f in tail: f()
            tail = None
        s.delay('adelay')
        s.stamp(8)
        r = vF
        a.label('L_hopa_%s' % tag)
        for i in range(4):
            a('buffer_load_dwordx4 %s, v%d, s[%d:%d], s%d offen offset:%d sc1' % (vr(vM + 4 * i, 4), vRed, S_WS, S_WS + 3, sD, i * 1024))
        a('s_mov_b64 exec, -1')
        for i in range(4):
            a('s_waitcnt vmcnt(%d)' % (3 - i))
            a('v_mfma_f32_16x16x32_bf16 %s, %s, %s, %s' % (vr(r, 4), vr(vM + 4 * i, 4), vr(vSel, 4), '0' if i == 0 else vr(r, 4)))
        a('v_pk_add_f32 %s, %s, %s' % (vr(vT, 2), vr(r, 2), vr(r + 2, 2)))
        for h in range(2): a('v_cvt_pk_bf16_f32 v%d, v%d, v%d' % (r + h, r + 2 * h, r + 2 * h + 1))
        a('v_cmp_u_f32 vcc, v%d, v%d' % (vT, vT + 1))
        for h in range(2): a('v_min_u32 v%d, -2, v%d' % (r + h, r + h))
        a('s_mov_b64 exec, s[%d:%d]' % (sStMask, sStMask + 1))
        a('s_cbranch_vccnz L_aslow_%s' % tag)
        a.label('L_aok_%s' % tag)
        s.lst(r, vMst, sE, n=2)
        a('s_mov_b64 exec, -1')
        s.stamp(5)
        stubs = s.hopb_s1(tag, tail)
        a('s_branch L_loop_%s' % tag)
        stubs()
        a.label('L_aslow_%s' % tag)
        a('s_mov_b64 exec, -1')
        s.maxtree(vM, 16, vT + 1)
        a('v_cmp_eq_u32 vcc, -1, v%d' % (vT + 1))
        a('s_mov_b64 exec, s[%d:%d]' % (sStMask, sStMask + 1))
        a('s_cbranch_vccz L_aok_%s' % tag)
        a('s_mov_b64 exec, vcc')
        s.count(10)
        s.tmo('L_hopa_%s' % tag)
        s.cretry(tag)
    def um(s):
        a = s.a
        def cvt(hl, tt):
            d = vD + 16 * hl + 4 * tt
            a('v_cvt_pk_bf16_f32 v%d, v%d, v%d' % (vU + 16 * tt + 8 * hl + 4, d, d + 1))
            a('v_cvt_pk_bf16_f32 v%d, v%d, v%d' % (vU + 16 * tt + 8 * hl + 5, d + 2, d + 3))
        n = 0
        for hl in range(2):
            for T in range(2):
                indma = s.opt.get('dmapos', 'um') == 'um'
                if indma: a('s_mov_b32 m0, s%d' % (sP + 4 + n))
                for tt in range(4):
                    a('v_smfmac_f32_16x16x64_bf16 %s, %s, %s, v%d' % (vr(vD + 16 * hl + 4 * tt, 4), vr(vM + 8 * hl + 4 * T, 4), wo(tt, 16 * hl + 8 * T, 8), vIdx))
                    if indma: s.dma(sP + n, tt * 1024)
                    if hl == 1 and T == 1: cvt(0, tt)
                n += 1
        for tt in range(4): cvt(1, tt)
    def kv_addr(s):
        a = s.a
        a('s_add_u32 s%d, s%d, 1' % (sT0, sStep))
        a('s_lshl_b32 s%d, s%d, 18' % (sP, sT0))
        a('s_add_u32 s%d, s%d, s%d' % (sP, sP, sKVoff))
        if WS_KF: a('s_add_u32 s%d, s%d, 0x%x' % (sP, sP, WS_KF))
        a('s_add_u32 s%d, s%d, 0x20000' % (sP + 1, sP))
        a('s_and_b32 s%d, s%d, 1' % (sT0, sT0))
        a('s_lshl_b32 s%d, s%d, 14' % (sT0, sT0))
        a('s_add_u32 s%d, s%d, s%d' % (sP + 4, sT0, sLdsC))
        a('s_add_u32 s%d, s%d, 4096' % (sP + 5, sP + 4))
        a('s_xor_b32 s%d, s%d, 0x4000' % (sP + 6, sP + 4))
        a('s_add_u32 s%d, s%d, %d' % (sP + 6, sP + 6, L_VX - L_KX))
        a('s_add_u32 s%d, s%d, 4096' % (sP + 7, sP + 6))
        a('s_add_u32 s%d, s%d, 2' % (sT0, sStep))
        a('s_min_u32 s%d, s%d, 63' % (sT0, sT0))
        a('s_lshl_b32 s%d, s%d, 18' % (sP + 2, sT0))
        a('s_add_u32 s%d, s%d, s%d' % (sP + 2, sP + 2, sKVoff))
        a('s_add_u32 s%d, s%d, 0x%x' % (sP + 2, sP + 2, WS_VF))
        a('s_add_u32 s%d, s%d, 0x20000' % (sP + 3, sP + 2))
    def loop_H(s, tag):
        a = s.a
        vO = vT + 2
        zs = [vD + i for i in range(32)] + [vF + i for i in range(16)]
        for z in zs[24:]: a('v_mov_b32 v%d, 0' % z)
        s.kv_addr()
        a.label('L_loop_%s' % tag)
        s.s1finish(True)
        a('s_lshl_b32 s%d, s%d, 17' % (sF, sStep))
        a('s_add_u32 s%d, s%d, s%d' % (sF, sF, sKVMst))
        a('s_cmp_eq_u32 s%d, %d' % (sStep, s.nsteps - 1))
        a('s_cbranch_scc1 L_last_%s' % tag)
        a('s_lshl_b32 s%d, s%d, 18' % (sD, sStep))
        a('s_add_u32 s%d, s%d, s%d' % (sD, sD, sPARTst))
        s.slot(sH, sMTld, MT_SLOT)
        s.zero(zs[:24])
        s.delay('hdelay')
        s.stamp(1)
        s.hopc(tag)
        s.stamp(2)
        s.um()
        s.stamp(3)
        a('s_barrier')
        s.stamp(4)
        for hl in range(2):
            for u in range(2):
                a('ds_read_b64_tr_b16 %s, v%d offset:%d' % (vr(vM + 4 * hl + 2 * u, 2), vPw, hl * 1024 + u * 16))
        for hl in range(2):
            a('s_waitcnt lgkmcnt(%d)' % (2 - 2 * hl))
            for tt in range(4):
                a('v_smfmac_f32_16x16x64_bf16 %s, %s, %s, v%d' % (vr(vF + 4 * tt, 4), vr(vM + 4 * hl, 4), vr(vU + 16 * tt + 8 * hl, 8), vIdx))
        for tt in range(4):
            s.halfsum(vF + 4 * tt)
            a('v_cvt_pk_bf16_f32 v%d, v%d, v%d' % (vO + tt, vF + 4 * tt, vF + 4 * tt + 1))
            a('v_min_u32 v%d, -2, v%d' % (vO + tt, vO + tt))
        s.st(vO, vL16, sD, n=4)
        s.stamp(5)
        def late():
            s.st(vT + 10, vL4, sF)
            s.st(vT + 11, vL4, sF, 2048)
            s.slot(sT0, sQKst, QKV_SLOT, True); s.lst(vSent, vL4, sT0)
            s.slot(sT0, sVst, QKV_SLOT, True); s.lst(vSent, vL4, sT0)
            a('s_add_u32 s%d, s%d, 0x%x' % (sD, sD, 2 * PART_SLOT))
            s.st(vSent, vL16, sD, n=4)
        def nxt():
            a('s_add_u32 s%d, s%d, 1' % (sStep, sStep))
            s.slot(sA, sQKst, QKV_SLOT); s.slot(sB, sVst, QKV_SLOT); s.slot(sCc, sCld, QKV_SLOT)
            s.kv_addr()
            s.kv_wait_loop()
        tail = None
        if s.opt.get('latetail'):
            def late():
                s.slot(sT2, sQKst, QKV_SLOT, True); s.slot(sT3, sVst, QKV_SLOT, True)
                a('s_add_u32 s%d, s%d, 0x%x' % (sD, sD, 2 * PART_SLOT))
            tail = [lambda: s.st(vSent, vL16, sD, n=4), lambda: s.st(vT + 10, vL4, sF), lambda: s.st(vT + 11, vL4, sF, 2048),
                    lambda: s.lst(vSent, vL4, sT2), lambda: s.lst(vSent, vL4, sT3)]
        hooks = {s.opt.get('latepos', 36): late, 48: nxt, s.opt.get('b3pos', 12): lambda: a('s_barrier')}
        def addhook(pos, f):
            old = hooks.get(pos)
            hooks[pos] = (lambda: (old(), f())) if old else f
        for k in range(8): addhook(52 + k, (lambda k=k: s.zero(range(vF + 2 * k, vF + 2 * k + 2))))
        if s.opt.get('dmapos', 'um') not in ('um', 'none'):
            d0 = s.opt['dmapos']
            def dm(k):
                if k % 4 == 0:
                    a('s_mov_b32 m0, s%d' % (sP + 4 + k // 4))
                s.dma(sP + k // 4, (k % 4) * 1024)
            for k in range(16): addhook(d0 + k, (lambda k=k: dm(k)))
        s.ux(hooks)
        s.zero(range(vD, vD + 32))
        s.stamp(8)
        stubs = s.hopb_s1(tag, tail)
        a('s_branch L_loop_%s' % tag)
        stubs()
        s.cretry(tag)
        a.label('L_last_%s' % tag)
        s.st(vT + 10, vL4, sF)
        s.st(vT + 11, vL4, sF, 2048)
        a('s_branch L_chain_done')
    def emit(s):
        a = s.a
        s.init()
        a('s_cmp_eq_u32 s%d, 1' % sLocal)
        a('s_cbranch_scc0 L_remote')
        for local in (True, False):
            s.local = local
            t = 'l' if local else 'r'
            if not local: a.label('L_remote')
            a('s_cmp_ge_u32 s%d, 2' % sW)
            a('s_cbranch_scc1 L_H%s' % t)
            s.loop_S('S' + t)
            a.label('L_H%s' % t)
            s.loop_H('H' + t)
        a.label('L_chain_fail')
        a('s_mov_b64 exec, -1')
        a('v_mov_b32 v%d, 1' % vT)
        a('buffer_atomic_add v%d, off, s[%d:%d], 0 offset:4 sc1' % (vT, S_DBG, S_DBG + 3))
        a.label('L_chain_done')
        if s.opt.get('tot', True):
            a('s_memrealtime s[100:101]')
            a('s_waitcnt lgkmcnt(0)')
            a('s_sub_u32 s100, s100, s98')
            a('v_mov_b32 v%d, s100' % vT)
            a('buffer_store_dword v%d, off, s[%d:%d], 0 offset:8' % (vT, S_DBG, S_DBG + 3))
        if s.opt.get('trace'):
            a('s_lshl_b32 s%d, s2, 2' % sT0)
            a('s_add_u32 s%d, s%d, s%d' % (sT0, sT0, sW))
            a('s_lshl_b32 s%d, s%d, 12' % (sT0, sT0))
            a('s_add_u32 s%d, s%d, 0x%x' % (sT0, sT0, WS_PROF))
            for i in range(11): s.st(244 + i, vL4, sT0, 256 * i, sc1=False)
        if s.prof:
            a('s_lshl_b32 s%d, s2, 2' % sT0)
            a('s_add_u32 s%d, s%d, s%d' % (sT0, sT0, sW))
            a('s_lshl_b32 s%d, s%d, 6' % (sT0, sT0))
            a('s_add_u32 s%d, s%d, 0x%x' % (sT0, sT0, WS_PROF))
            a('s_mov_b32 s%d, s%d' % (sAcc + 15, sTmo))
            a('s_mov_b32 s%d, s%d' % (sAcc + 14, sLocal))
            for i in range(16):
                a('v_mov_b32 v%d, s%d' % (vT, sAcc + i))
                a('buffer_store_dword v%d, off, s[%d:%d], s%d offset:%d' % (vT, S_WS, S_WS + 3, sT0, 4 * i))
        a('s_waitcnt vmcnt(0)')
    def mark(s, i): pass
    def kv_wait_init(s): pass
    def kv_wait_loop(s): pass

def chain_kernel(name='chain_kernel', prof=False, opt=None):
    a = Asm()
    a('s_and_b32 s3, s2, 7')
    a('s_cmp_ge_u32 s3, 4')
    a('s_cbranch_scc1 L_chain_exit')
    a('s_cmp_ge_u32 s2, 256')
    a('s_cbranch_scc1 L_chain_exit')
    for sreg, k in [(S_WS, 'ws'), (S_WQ, 'Wq'), (S_WK, 'Wk'), (S_WV, 'Wv'), (S_WO, 'Wo'), (S_M0, 'B_mem0'), (S_DBG, 'dbg')]:
        a('s_load_dwordx2 s[%d:%d], s[0:1], %d' % (sreg, sreg + 1, KA[k]))
    a('s_waitcnt lgkmcnt(0)')
    for sreg, n in [(S_WS, WS_BYTES), (S_WQ, 8 * MB), (S_WK, 8 * MB), (S_WV, 8 * MB), (S_WO, 8 * MB), (S_M0, 16384), (S_DBG, 256)]:
        a('s_mov_b32 s%d, 0x%x' % (sreg + 2, n)); a('s_mov_b32 s%d, 0x20000' % (sreg + 3))
    Chain(a, prof, opt=opt).emit()
    a.label('L_chain_exit')
    a('s_endpgm')
    return kernel_head(name) + a.finalize()

def write(path, prof, opt):
    txt = '; @launch grid=(256,1,1) block=(256,1,1) lds=%d\n.amdgcn_target "amdgcn-amd-amdhsa--gfx950"\n.text\n' % L_END
    txt += chain_kernel(prof=prof, opt=opt)
    txt += '.section .rodata,"a"\n.p2align 6\n' + kernel_desc('chain_kernel')
    open(path, 'w').write(txt)

if __name__ == '__main__':
    import sys, json
    for spec in sys.argv[1:]:
        name, _, o = spec.partition('=')
        opt = json.loads(o) if o else {}
        write(name + '.s', 'prof' in name, opt)
```

```python
from ag import *
from common import *

S_WS, S_WQ, S_WK, S_WV, S_WO, S_M0, S_DBG = 4, 8, 12, 16, 20, 24, 28
S_X = 32
S_WC = 36
sW, sT0, sT1, sT2, sT3 = 40, 41, 42, 43, 44
sXo, sWo, sIt, sOut, sXl, sWl, sCnt = 45, 46, 47, 48, 49, 50, 51
sJob = 52
sSt, sXm, sWm, sRd, sOutN = 64, 65, 66, 67, 68
sSigN, sSigC, sSigD = 69, 70, 71
sNX, sNW, sNP = 74, 75, 76
vXr0, vXr1, vL16 = 1, 2, 3
vWr = 4
vXs = 8
vWs = 16
vT = 20
vFr = 32
vAcc = 128

class G1:
    def __init__(s, a, MT, tag):
        s.a = a; s.MT = MT; s.tag = tag
        s.XB = 32 * MT * 128
        s.ST = s.XB + 16384
        s.nxd = s.XB // 4096
        s.NS = 3
    def bits(s, dst, terms, init=None):
        a = s.a
        first = init is None
        if not first: a('v_mov_b32 v%d, %s' % (dst, init))
        for (src, n, sh) in terms:
            a('v_bfe_u32 v%d, v0, %d, %d' % (vT + 1, src, n))
            if first: a('v_lshlrev_b32 v%d, %d, v%d' % (dst, sh, vT + 1)); first = False
            else: a('v_lshl_add_u32 v%d, v%d, %d, v%d' % (dst, vT + 1, sh, dst))
    def setup(s):
        a = s.a; MT = s.MT
        a('v_lshrrev_b32 v%d, 3, v0' % vT)
        a('v_xor_b32 v%d, v0, v%d' % (vXs, vT))
        a('v_and_b32 v%d, 7, v%d' % (vXs, vXs))
        a('v_lshlrev_b32 v%d, 4, v%d' % (vXs, vXs))
        a('v_lshl_add_u32 v%d, v%d, 11, v%d' % (vXs, vT, vXs))
        a('s_mul_i32 s%d, s%d, %d' % (sT0, sW, s.nxd * 8 * 2048))
        a('v_add_u32 v%d, s%d, v%d' % (vXs, sT0, vXs))
        for i in range(1, s.nxd): a('v_add_u32 v%d, 0x%x, v%d' % (vXs + i, i * 8 * 2048, vXs))
        a('s_mul_i32 s%d, s%d, %d' % (sXl, sW, s.nxd * 1024))
        a('v_lshrrev_b32 v%d, 4, v0' % vT)
        a('s_and_b32 s%d, s%d, 1' % (sT0, sW))
        a('s_lshl_b32 s%d, s%d, 2' % (sT1, sT0))
        a('v_or_b32 v%d, s%d, v%d' % (vT + 1, sT1, vT))
        a('v_lshlrev_b32 v%d, 1, v%d' % (vT + 1, vT + 1))
        a('v_xor_b32 v%d, v0, v%d' % (vWs, vT + 1))
        a('v_and_b32 v%d, 15, v%d' % (vWs, vWs))
        a('v_lshlrev_b32 v%d, 4, v%d' % (vWs, vWs))
        a('v_lshl_add_u32 v%d, v%d, 13, v%d' % (vWs, vT, vWs))
        a('s_lshl_b32 s%d, s%d, 3' % (sT0, sT0))
        a('s_lshr_b32 s%d, s%d, 1' % (sT1, sW))
        a('s_lshl_b32 s%d, s%d, 2' % (sT1, sT1))
        a('s_add_u32 s%d, s%d, s%d' % (sT0, sT0, sT1))
        a('s_lshl_b32 s%d, s%d, 13' % (sT1, sT0))
        a('v_add_u32 v%d, s%d, v%d' % (vWs, sT1, vWs))
        for i in range(1, 4): a('v_add_u32 v%d, 0x%x, v%d' % (vWs + i, i * 16 * 8192, vWs))
        a('s_lshl_b32 s%d, s%d, 8' % (sWl, sT0))
        a('s_add_u32 s%d, s%d, %d' % (sWl, sWl, s.XB))
        a('v_lshrrev_b32 v%d, 4, v0' % vT)
        a('v_xor_b32 v%d, v0, v%d' % (vXr0, vT))
        a('v_and_b32 v%d, 7, v%d' % (vXr0, vXr0))
        a('v_lshlrev_b32 v%d, 4, v%d' % (vXr0, vXr0))
        a('v_and_b32 v%d, 15, v0' % vT)
        a('v_lshl_add_u32 v%d, v%d, 7, v%d' % (vXr0, vT, vXr0))
        a('s_and_b32 s%d, s%d, 1' % (sT0, sW))
        a('s_mul_i32 s%d, s%d, %d' % (sT0, sT0, MT * 2048))
        a('v_add_u32 v%d, s%d, v%d' % (vXr0, sT0, vXr0))
        a('v_xor_b32 v%d, 64, v%d' % (vXr1, vXr0))
        s.bits(vT, [(2, 3, 0)])
        a('s_lshr_b32 s%d, s%d, 1' % (sT0, sW))
        a('s_lshl_b32 s%d, s%d, 2' % (sT0, sT0))
        a('v_xor_b32 v%d, s%d, v%d' % (vT, sT0, vT))
        s.bits(vT + 2, [(4, 2, 11), (2, 2, 8), (0, 2, 3)], str(s.XB))
        for nt in range(4):
            a('v_xor_b32 v%d, %d, v%d' % (vT + 3, nt, vT))
            a('v_lshl_add_u32 v%d, v%d, 5, v%d' % (vWr + nt, vT + 3, vT + 2))
        a('v_lshlrev_b32 v%d, 4, v0' % vL16)
    def dmas(s):
        out = []
        for i in range(s.nxd):
            out.append(('s_add_u32 m0, s%d, %d' % (sXm, i * 1024), 'buffer_load_dwordx4 v%d, s[%d:%d], s%d offen lds' % (vXs + i, S_X, S_X + 3, sXo)))
        for i in range(4):
            out.append(('s_add_u32 m0, s%d, %d' % (sWm, i * 4096), 'buffer_load_dwordx4 v%d, s[%d:%d], s%d offen lds' % (vWs + i, S_WC, S_WC + 3, sWo)))
        return out
    def adv(s, switch=False):
        if switch:
            o = ['s_mov_b32 s%d, s%d' % (sXo, sNX), 's_mov_b32 s%d, s%d' % (sWo, sNW), 's_mov_b64 s[%d:%d], s[%d:%d]' % (S_WC, S_WC + 1, sNP, sNP + 1)]
        else:
            o = ['s_add_u32 s%d, s%d, 128' % (sXo, sXo), 's_add_u32 s%d, s%d, 0x80000' % (sWo, sWo)]
        return o + ['s_add_u32 s%d, s%d, %d' % (sSt, sSt, s.ST),
                    ['s_cmp_eq_u32 s%d, %d' % (sSt, s.NS * s.ST), 's_cselect_b32 s%d, 0, s%d' % (sSt, sSt)],
                    's_add_u32 s%d, s%d, s%d' % (sXm, sXl, sSt), 's_add_u32 s%d, s%d, s%d' % (sWm, sWl, sSt),
                    ['s_cmp_eq_u32 s%d, %d' % (sSt, (s.NS - 1) * s.ST), 's_cselect_b32 s%d, s%d, %d' % (sT3, sRd, s.ST)]]
    def fx(s, st, mt): return vFr + st * (4 * s.MT + 16) + 4 * mt
    def fw(s, st, nt): return vFr + st * (4 * s.MT + 16) + 4 * s.MT + 4 * nt
    def reads(s, st, ks, flip=False):
        out = []
        for nt in range(4):
            for v2 in range(2):
                out.append('ds_read_b64_tr_b16 %s, v%d offset:%d' % (vr(s.fw(st, nt) + 2 * v2, 2), vWr + nt, (32 * ks + 4 * v2) * 256))
        xs = ['ds_read_b128 %s, v%d offset:%d' % (vr(s.fx(st, mt), 4), vXr1 if ks else vXr0, mt * 2048) for mt in range(s.MT)]
        return out[:2] + xs[:1] + out[2:] + xs[1:]
    def flips(s): return ['v_add_u32 v%d, s%d, v%d' % (r, sT3, r) for r in [vXr0, vWr, vWr + 1, vWr + 2, vWr + 3, vXr1]]
    def phase(s, st, slots, first=False):
        a = s.a
        k = 0
        for mt in range(s.MT):
            for nt in range(4):
                d = vr(vAcc + (mt * 4 + nt) * 4, 4)
                a('v_mfma_f32_16x16x32_bf16 %s, %s, %s, %s' % (d, vr(s.fw(st, nt), 4), vr(s.fx(st, mt), 4), '0' if first else d))
                for x in slots.get(k, []): a(x)
                k += 1
    def sched(s, reads, dm, tail, extra=()):
        n = 4 * s.MT
        slots = {}
        def put(k, x):
            slots.setdefault(min(k, n - 1), []).extend([x] if isinstance(x, str) else x)
        nr = len(reads)
        span = int(n * 0.72)
        for i, r in enumerate(reads): put(i * span // nr, r)
        last = 0
        for i, (m, d) in enumerate(dm):
            k = 1 + (i * (n - 2 - (len(tail) + 1) // 2)) // len(dm)
            put(k, m); put(k + 1, d); last = k + 1
        for i, x in enumerate(tail): put(max(last + 1, n - (len(tail) + 1) // 2 - 1) + i // 2, x)
        ex = list(extra)
        for i, x in enumerate(ex): put(i * n // max(len(ex), 1), x)
        return slots
    def run(s, next_job, more, signal):
        a = s.a; t = s.tag
        nd = s.nxd + 4; h = nd // 2
        dl = s.dmas()
        def flat(L):
            for x in L:
                for y in ([x] if isinstance(x, str) else x): a(y)
        a('s_mov_b32 s%d, %d' % (sSt, (s.NS - 1) * s.ST))
        a('s_mov_b32 s%d, %d' % (sRd, (-(s.NS - 1) * s.ST) & 0xffffffff))
        flat(next_job())
        flat(s.adv(True))
        a('s_barrier')
        for k in range(s.NS):
            flat(dl if k < s.NS - 1 else dl[:h])
            if k < s.NS - 1: flat(s.adv())
        a('s_waitcnt vmcnt(%d)' % (nd * (s.NS - 2) + h))
        a('s_barrier')
        flat(s.reads(0, 0))
        a('s_mov_b32 s%d, 0' % sCnt)
        w = nd * (s.NS - 2)
        nst = 2 * s.MT
        def body(first=False, wait=w, post=None, switch=False, extra=(), loop=None):
            a('s_waitcnt lgkmcnt(0)')
            s.phase(0, s.sched(s.reads(1, 1), dl[h:], s.adv(switch) + s.flips(), extra), first)
            a('s_waitcnt vmcnt(%d) lgkmcnt(0)' % wait)
            a('s_barrier')
            if post: post()
            s.phase(1, s.sched(s.reads(0, 0), dl[:h], loop or []))
        a.label('L_g1tile_%s' % t)
        a('s_mov_b32 s%d, s%d' % (sOut, sOutN))
        a('s_mov_b32 s%d, s%d' % (sSigC, sSigN))
        body(first=True, wait=w + s.first_extra)
        def post():
            l2 = a.newlabel('Lg1')
            a('s_cmp_eq_u32 s%d, 0' % sCnt)
            a('s_cbranch_scc1 %s' % l2)
            signal()
            a.label(l2)
        body(post=post, extra=next_job(), loop=['s_mov_b32 s%d, 2' % sIt])
        a.label('L_g1loop_%s' % t)
        body(loop=['s_add_u32 s%d, s%d, 1' % (sIt, sIt), 's_cmp_lt_u32 s%d, %d' % (sIt, 16 - s.NS)])
        a('s_cbranch_scc1 L_g1loop_%s' % t)
        body(switch=True)
        for i in range(s.NS - 1): body()
        for mt in range(s.MT):
            for pr in range(2):
                r = vAcc + (mt * 4 + 2 * pr) * 4
                for i in range(4): a('v_cvt_pk_bf16_f32 v%d, v%d, v%d' % (r + i, r + 2 * i, r + 2 * i + 1))
                a('buffer_store_dwordx4 %s, v%d, s[%d:%d], s%d offen offset:%d sc1' % (vr(r, 4), vL16, S_WS, S_WS + 3, sOut, pr * 1024))
            a('s_add_u32 s%d, s%d, 0x20000' % (sOut, sOut))
        a('s_mov_b32 s%d, 1' % sCnt)
        a('s_mov_b32 s%d, s%d' % (sSigD, sSigC))
        more()
        a('s_cbranch_scc1 L_g1tile_%s' % t)
        a('s_waitcnt vmcnt(0) lgkmcnt(0)')
        a('s_barrier')
        signal()
    first_extra = 0
    def job(s, sRow, sCol):
        return ['s_mul_i32 s%d, s%d, %d' % (sNX, sRow, 32 * s.MT * 2048),
                's_and_b32 s%d, s%d, 31' % (sT0, sCol),
                's_lshl_b32 s%d, s%d, 8' % (sNW, sT0),
                's_lshr_b32 s%d, s%d, 5' % (sT1, sCol),
                ['s_cmp_eq_u32 s%d, 1' % sT1, 's_cselect_b64 s[%d:%d], s[%d:%d], s[%d:%d]' % (sNP, sNP + 1, S_WV, S_WV + 1, S_WK, S_WK + 1)],
                ['s_cmp_eq_u32 s%d, 2' % sT1, 's_cselect_b64 s[%d:%d], s[%d:%d], s[%d:%d]' % (sNP, sNP + 1, S_WQ, S_WQ + 1, sNP, sNP + 1)],
                's_lshl_b32 s%d, s%d, 24' % (sOutN, sT1),
                's_lshl_b32 s%d, s%d, 12' % (sT0, sT0),
                's_add_u32 s%d, s%d, s%d' % (sOutN, sOutN, sT0),
                's_lshl_b32 s%d, s%d, 1' % (sT0, sRow),
                's_and_b32 s%d, s%d, 1' % (sT1, sW),
                's_add_u32 s%d, s%d, s%d' % (sT0, sT0, sT1),
                's_mul_i32 s%d, s%d, %d' % (sT0, sT0, s.MT * 131072),
                's_add_u32 s%d, s%d, s%d' % (sOutN, sOutN, sT0),
                's_lshr_b32 s%d, s%d, 1' % (sT1, sW),
                's_lshl_b32 s%d, s%d, 11' % (sT1, sT1),
                's_add_u32 s%d, s%d, s%d' % (sOutN, sOutN, sT1)]

def test_kernel(MT, RB):
    a = Asm()
    for sreg, k in [(S_WS, 'ws'), (S_WQ, 'Wq'), (S_WK, 'Wk'), (S_WV, 'Wv'), (S_X, 'B_x'), (S_DBG, 'dbg')]:
        a('s_load_dwordx2 s[%d:%d], s[0:1], %d' % (sreg, sreg + 1, KA[k]))
    a('s_waitcnt lgkmcnt(0)')
    for sreg, n in [(S_WS, WS_BYTES), (S_X, 4 * MB), (S_WC, 8 * MB), (S_DBG, 256)]:
        a('s_mov_b32 s%d, 0x%x' % (sreg + 2, n)); a('s_mov_b32 s%d, 0x20000' % (sreg + 3))
    a('s_mov_b64 s[%d:%d], s[%d:%d]' % (S_WC, S_WC + 1, S_WK, S_WK + 1))
    a('s_cmp_ge_u32 s2, 256'); a('s_cbranch_scc1 L_exit')
    a('s_and_b32 s53, s2, 7')
    a('s_cmp_lt_u32 s53, 4'); a('s_cbranch_scc1 L_exit')
    a('s_sub_u32 s53, s53, 4')
    a('s_lshr_b32 s54, s2, 3')
    a('v_lshrrev_b32 v%d, 6, v0' % vT)
    a('v_readfirstlane_b32 s%d, v%d' % (sW, vT))
    a('v_and_b32 v0, 63, v0')
    a('s_memrealtime s[60:61]')
    a('s_memtime s[78:79]')
    g = G1(a, MT, 'a')
    g.setup()
    nrows = 2048 // (32 * MT)
    a('s_mov_b32 s%d, 0' % sJob)
    njobs = nrows * 24 // 32
    CB = 32 // RB
    def next_job():
        nb_c = 24 // CB
        return ['s_min_u32 s55, s%d, %d' % (sJob, njobs - 1),
                's_mul_i32 s56, s55, %d' % (65536 // nb_c + 1),
                's_lshr_b32 s56, s56, 16',
                's_mul_i32 s57, s56, %d' % nb_c,
                's_sub_u32 s57, s55, s57',
                's_mul_i32 s56, s56, %d' % RB,
                's_and_b32 s58, s54, %d' % (RB - 1),
                's_add_u32 s56, s56, s58',
                's_mul_i32 s57, s57, %d' % CB,
                's_lshr_b32 s58, s54, %d' % (RB.bit_length() - 1),
                's_add_u32 s57, s57, s58',
                's_mul_i32 s58, s53, 24',
                's_add_u32 s57, s57, s58'] + g.job(56, 57) + ['s_add_u32 s%d, s%d, 1' % (sJob, sJob)]
    g.run(next_job, lambda: a('s_cmp_le_u32 s%d, %d' % (sJob, njobs)), lambda: None)
    a('s_waitcnt vmcnt(0)')
    a('s_memrealtime s[62:63]')
    a('s_memtime s[72:73]')
    a('s_waitcnt lgkmcnt(0)')
    a('s_sub_u32 s72, s72, s78')
    a('v_mov_b32 v%d, s72' % vT)
    a('buffer_store_dword v%d, off, s[%d:%d], 0 offset:12' % (vT, S_DBG, S_DBG + 3))
    a('s_sub_u32 s62, s62, s60')
    a('v_mov_b32 v%d, s62' % vT)
    a('buffer_store_dword v%d, off, s[%d:%d], 0 offset:8' % (vT, S_DBG, S_DBG + 3))
    a.label('L_exit')
    a('s_endpgm')
    txt = '; @launch grid=(256,1,1) block=(256,1,1) lds=147456\n.amdgcn_target "amdgcn-amd-amdhsa--gfx950"\n.text\n'
    txt += kernel_head('g1_kernel') + a.finalize(True)
    txt += '.section .rodata,"a"\n.p2align 6\n' + kernel_desc('g1_kernel')
    return txt

if __name__ == '__main__':
    open('g1_8.s', 'w').write(test_kernel(8, 4))
    open('g1_4.s', 'w').write(test_kernel(4, 4))
```

```python
import sys, json
from ag import *
from common import *
import gen_chain8 as gc
import gen_g1 as g1
import gen_ao as ao

NAME = 'concat_heads__ssm_conv_h3__memory_aug_recurrent_mem_tr__prompt'
LDS = 147456

class Chain(gc.Chain):
    def poll_ctr(s, soff, off, target):
        a = s.a
        l, ok = a.newlabel('Lkv'), a.newlabel('Lkv')
        a.label(l)
        a('buffer_load_dword v%d, off, s[%d:%d], %s offset:%d sc1' % (gc.vT, gc.S_DBG, gc.S_DBG + 3, soff, off))
        a('s_waitcnt vmcnt(0)')
        a('v_readfirstlane_b32 s%d, v%d' % (gc.sT1, gc.vT))
        a('s_cmp_eq_u32 s%d, %d' % (gc.sT1, target))
        a('s_cbranch_scc1 %s' % ok)
        a('s_sleep 4')
        s.tmo(l)
        a.label(ok)
    def kv_wait_init(s): s.poll_ctr('0', 32, 128)
    def kv_wait_loop(s):
        a = s.a
        sk = a.newlabel('Lkv')
        a('s_add_u32 s%d, s%d, 2' % (gc.sT0, gc.sStep))
        a('s_and_b32 s%d, s%d, 0x47' % (gc.sT1, gc.sT0))
        a('s_cbranch_scc1 %s' % sk)
        a('s_lshr_b32 s%d, s%d, 1' % (gc.sT0, gc.sT0))
        s.poll_ctr('s%d' % gc.sT0, 32, 128)
        a.label(sk)

def mark(a, i, opt):
    if not opt.get('marks'): return
    a('s_memrealtime s[100:101]')
    a('s_waitcnt lgkmcnt(0)')
    a('v_mov_b32 v255, s100')
    a('s_lshl_b32 s100, s2, 6')
    a('s_add_u32 s100, s100, 0x%x' % (WS_PROF + 8 * MB))
    a('buffer_store_dword v255, off, s[4:7], s100 offset:%d' % (4 * i))

def build(opt):
    a = Asm()
    ptrs = [(4, 'ws', WS_BYTES), (8, 'Wq', 8 * MB), (12, 'Wk', 8 * MB), (16, 'Wv', 8 * MB), (20, 'Wo', 8 * MB), (24, 'B_mem0', 16384), (28, 'dbg', 256)]
    side = [(g1.S_X, 'B_x', 4 * MB), (g1.S_WC, 'Wk', 8 * MB), (ao.S_OUT, 'out', 8 * MB), (ao.S_AQ, 'A_q', 4 * MB), (ao.S_AK, 'A_k', 4 * MB), (ao.S_AV, 'A_v', 4 * MB), (ao.S_AH, 'A_ssmk', 4 * MB)]
    a('s_cmp_ge_u32 s2, 256')
    a('s_cbranch_scc1 L_exit')
    for r, k, n in ptrs + side: a('s_load_dwordx2 s[%d:%d], s[0:1], %d' % (r, r + 1, KA[k]))
    for r, k, n in ptrs + side:
        a('s_mov_b32 s%d, 0x%x' % (r + 2, n)); a('s_mov_b32 s%d, 0x20000' % (r + 3))
    a('s_waitcnt lgkmcnt(0)')
    mark(a, 0, opt)
    a('s_and_b32 s3, s2, 7')
    a('s_cmp_ge_u32 s3, 4')
    a('s_cbranch_scc1 L_side')
    copt = dict(b3pos=32, latepos=40, tot=False, ninit=256)
    copt.update(opt.get('chain', {}))
    ch = Chain(a, opt=copt)
    ch.mark = lambda i: mark(a, i, opt)
    ch.emit()
    mark(a, 2, opt)
    a('s_endpgm')
    a.label('L_side')
    sW, sT0, sT1 = g1.sW, g1.sT0, g1.sT1
    sTeam, sMem, sTmo = ao.sTeam, ao.sMem, ao.sTmo
    a('s_sub_u32 s%d, s3, 4' % sTeam)
    a('s_lshr_b32 s%d, s2, 3' % sMem)
    a('s_mov_b32 s%d, 400000' % sTmo)
    a('v_lshrrev_b32 v20, 6, v0')
    a('v_readfirstlane_b32 s%d, v20' % sW)
    a('v_and_b32 v0, 63, v0')
    def one_lane_add(val, soff, off):
        l = a.newlabel('Lone')
        a('s_cmp_eq_u32 s%d, 0' % sW)
        a('s_cbranch_scc0 %s' % l)
        a('v_mov_b32 v20, %d' % val)
        a('s_mov_b64 exec, 1')
        a('buffer_atomic_add v20, off, s[28:31], %s offset:%d sc1' % (soff, off))
        a('s_mov_b64 exec, -1')
        a.label(l)
    for i in range(4): a('v_mov_b32 v%d, -1' % (24 + i))
    a('v_lshlrev_b32 v21, 4, v0')
    a('s_lshl_b32 s%d, s%d, 17' % (sT0, sTeam))
    a('s_lshl_b32 s%d, s%d, 12' % (sT1, sMem))
    a('s_add_u32 s%d, s%d, s%d' % (sT0, sT0, sT1))
    a('s_lshl_b32 s%d, s%d, 10' % (sT1, sW))
    a('s_add_u32 s%d, s%d, s%d' % (sT0, sT0, sT1))
    a('s_add_u32 s%d, s%d, 0x%x' % (sT0, sT0, WS_KVM))
    for i in range(16):
        a('buffer_store_dwordx4 v[24:27], v21, s[4:7], s%d offen sc1' % sT0)
        a('s_add_u32 s%d, s%d, 0x80000' % (sT0, sT0))
    a('v_mov_b32 v22, 0')
    a('s_and_b32 s%d, s%d, 15' % (sT0, sMem))
    a('s_lshl_b32 s%d, s%d, 2' % (sT0, sT0))
    a('s_add_u32 s%d, s%d, s%d' % (sT0, sT0, sTeam))
    a('s_lshl_b32 s%d, s%d, 7' % (sT0, sT0))
    a('s_add_u32 s%d, s%d, 0x%x' % (sT0, sT0, WS_CTR))
    a('buffer_store_dword v22, off, s[4:7], s%d sc1' % sT0)
    a('s_waitcnt vmcnt(0)')
    a('s_barrier')
    one_lane_add(1, '0', 0)
    sJob = g1.sJob
    ga = g1.G1(a, 4, 'a')
    ga.setup()
    a('s_mov_b32 s%d, 0' % sJob)
    def nj0():
        return ['s_min_u32 s56, s%d, 1' % sJob, 's_lshl_b32 s%d, s56, 2' % g1.sSigN, 's_lshl_b32 s56, s56, 1', 's_and_b32 s57, s%d, 1' % sMem, 's_add_u32 s56, s56, s57',
                's_lshr_b32 s57, s%d, 1' % sMem, 's_lshl_b32 s58, s%d, 4' % sTeam, 's_add_u32 s57, s57, s58'] + ga.job(56, 57) + ['s_add_u32 s%d, s%d, 1' % (sJob, sJob)]
    ga.run(nj0, lambda: a('s_cmp_le_u32 s%d, 2' % sJob), lambda: one_lane_add(1, 's%d' % g1.sSigD, 32))
    mark(a, 1, opt)
    gb = g1.G1(a, 8, 'b')
    gb.setup()
    a('s_mov_b32 s%d, 0' % sJob)
    def nj1():
        return ['s_min_u32 s59, s%d, 4' % sJob,
                's_lshl_b32 s56, s59, 1', 's_and_b32 s57, s%d, 1' % sMem, 's_add_u32 s56, s56, s57', 's_add_u32 s56, s56, 2',
                's_lshr_b32 s57, s%d, 1' % sMem, 's_lshl_b32 s58, s%d, 4' % sTeam, 's_add_u32 s57, s57, s58',
                's_lshl_b32 s60, s59, 2', 's_and_b32 s61, s%d, 3' % sMem, 's_add_u32 s60, s60, s61', 's_sub_u32 s60, s60, 12',
                's_lshr_b32 s61, s%d, 2' % sMem, 's_lshl_b32 s58, s%d, 3' % sTeam, 's_add_u32 s61, s61, s58', 's_add_u32 s61, s61, 64',
                's_lshl_b32 s%d, s56, 2' % g1.sSigN,
                ['s_cmp_ge_u32 s59, 3', 's_cselect_b32 s56, s60, s56', 's_cselect_b32 s57, s61, s57', 's_cselect_b32 s%d, 36, s%d' % (g1.sSigN, g1.sSigN)]] + gb.job(56, 57) + ['s_add_u32 s%d, s%d, 1' % (sJob, sJob)]
    gb.run(nj1, lambda: a('s_cmp_le_u32 s%d, 5' % sJob), lambda: one_lane_add(2, 's%d' % g1.sSigD, 32))
    one_lane_add(1, '0', 64)
    mark(a, 2, opt)
    ao.Conv(a).run()
    mark(a, 3, opt)
    def wait_g1():
        l, ok = a.newlabel('Lwg'), a.newlabel('Lwg')
        a.label(l)
        a('buffer_load_dword v20, off, s[28:31], 0 offset:64 sc1')
        a('s_waitcnt vmcnt(0)')
        a('v_readfirstlane_b32 s%d, v20' % sT0)
        a('s_cmp_eq_u32 s%d, 128' % sT0)
        a('s_cbranch_scc1 %s' % ok)
        a('s_sleep 8')
        a('s_sub_u32 s%d, s%d, 1' % (sTmo, sTmo))
        a('s_cbranch_scc0 %s' % l)
        a('s_branch L_side_fail')
        a.label(ok)
        mark(a, 4, opt)
    ao.AO(a).run(wait_g1)
    mark(a, 5, opt)
    a.label('L_side_fail')
    a.label('L_exit')
    a('s_endpgm')
    head = open('cdna_kernels/%s.s.ref' % NAME).read().split('; Override launch')[0]
    txt = head + '; @launch grid=(256,1,1) block=(256,1,1) lds=%d\n.amdgcn_target "amdgcn-amd-amdhsa--gfx950"\n.text\n' % LDS
    txt += kernel_head(NAME + '_kernel') + a.finalize()
    txt += '.section .rodata,"a"\n.p2align 6\n' + kernel_desc(NAME + '_kernel')
    return txt

if __name__ == '__main__':
    for spec in sys.argv[1:]:
        name, _, o = spec.partition('=')
        open(name, 'w').write(build(json.loads(o) if o else {}))
```

```python
import math, struct
from ag import *
from common import *
from gen_g1 import S_WS, S_WO, S_DBG, sW, sT0, sT1, sT2, sT3
def f2u(x): return struct.unpack('<I', struct.pack('<f', x))[0]

S_OUT = 80; S_AQ = 84; S_AK = 88; S_AV = 92; S_AH = 96
sTeam, sMem = 53, 54
sTmo = 55

def bits(a, dst, terms, init=None, tmp=31):
    first = init is None
    if not first: a('v_mov_b32 v%d, %s' % (dst, init))
    for (src, n, sh) in terms:
        a('v_bfe_u32 v%d, v0, %d, %d' % (tmp, src, n))
        if first: a('v_lshlrev_b32 v%d, %d, v%d' % (dst, sh, tmp)); first = False
        else: a('v_lshl_add_u32 v%d, v%d, %d, v%d' % (dst, tmp, sh, dst))

class AO:
    def mark(s, i): pass
    sA, sPf, sBuf, sScale, sKm, sOst, sOld, sI, sO = 45, 46, 47, 48, 49, 50, 51, 52, 56
    sF = 57
    sMask = 58
    sHi = 74
    sCO, sCP, sKq, sCb = 76, 77, 78, 79
    sS, sPst, sPld, sDo = 32, 33, 34, 35
    sDn, sPo, sFo, bKm = 36, 37, 38, 39
    bOst, bOld, bCO, bCP = 84, 85, 86, 87
    NIT = 21
    sched = [sum(1 << i for i in L) for L in (list(range(15)) + [18], list(range(1, 16)) + [19], list(range(3, 18)) + [20], list(range(2, 17)) + [20])]
    vL16, vQr, vKr, vVr, vMr, vIdx, vNeg, vOr, vOst, vKmw = range(1, 11)
    vT = 12
    vP = 24
    vQ = 32; vK = 48; vKm = 80; vS = 88; vA = 100; vD = 124
    vF = 140
    vB = 156
    L_KM = 24576
    L_O = 32768
    BUF1 = 98304
    def __init__(s, a): s.a = a
    def prefetch_list(s):
        o = [['s_lshl_b32 s%d, s%d, 18' % (sT0, s.sPf), 's_lshl_b32 s%d, s%d, 12' % (sT1, sMem), 's_add_u32 s%d, s%d, s%d' % (sT0, sT0, sT1),
              's_lshl_b32 s%d, s%d, 10' % (sT1, sW), 's_add_u32 s%d, s%d, s%d' % (sT0, sT0, sT1), 's_add_u32 s%d, s%d, s%d' % (sT1, sT1, s.sBuf)]]
        for mi, base in enumerate((WS_QF, WS_KF, WS_VF)):
            for tau in range(2):
                o.append(['s_add_u32 m0, s%d, %d' % (sT1, mi * 8192 + tau * 4096), 's_add_u32 s%d, s%d, 0x%x' % (sT2, sT0, base + tau * 131072),
                          'buffer_load_dwordx4 v%d, s[%d:%d], s%d offen sc1 lds' % (s.vL16, S_WS, S_WS + 3, sT2)])
        return o
    def odma_list(s):
        o = []
        for i in range(16):
            g = []
            if i % 4 == 0:
                g += ['s_add_u32 m0, s%d, %d' % (sT3, i * 1024), 's_add_u32 s%d, s%d, %d' % (sT2, s.sOld, i * 1024)]
            g.append('buffer_load_dwordx4 v%d, s[%d:%d], s%d offen offset:%d sc1 lds' % (s.vL16, S_WS, S_WS + 3, sT2, (i % 4) * 1024))
            o.append(g)
        o[0] = ['s_and_b32 s%d, s%d, 1' % (sT3, sW), 's_lshl_b32 s%d, s%d, 15' % (sT3, sT3), 's_lshr_b32 s%d, s%d, 1' % (sT2, sW), 's_lshl_b32 s%d, s%d, 14' % (sT2, sT2),
                's_add_u32 s%d, s%d, s%d' % (sT3, sT3, sT2), 's_add_u32 s%d, s%d, %d' % (sT3, sT3, s.L_O)] + o[0]
        return o
    def flat(s, L):
        for g in L:
            for x in g: s.a(x)
    def ids(s):
        s.a('s_lshr_b32 s%d, s%d, 3' % (s.sKq, sMem))
        s.a('s_and_b32 s%d, s%d, 7' % (s.sCb, sMem))
    def load_wo(s):
        a = s.a; vT = s.vT
        a('s_and_b32 s%d, s%d, 1' % (sT0, sW))
        a('s_lshl_b32 s%d, s%d, 2' % (sT0, sT0))
        bits(a, vT + 2, [(4, 2, 0)], 's%d' % sT0)
        a('v_lshlrev_b32 v%d, 1, v%d' % (vT + 3, vT + 2))
        a('v_xor_b32 v%d, v0, v%d' % (vT + 3, vT + 3))
        a('v_and_b32 v%d, 15, v%d' % (vT + 3, vT + 3))
        a('v_lshlrev_b32 v%d, 4, v%d' % (vT + 3, vT + 3))
        a('v_lshl_add_u32 v%d, v%d, 11, v%d' % (vT, vT + 2, vT + 3))
        a('s_lshl_b32 s%d, s%d, 10' % (sT3, sW))
        a('s_lshl_b32 s%d, s%d, 21' % (sT0, s.sKq))
        a('s_lshl_b32 s%d, s%d, 8' % (sT1, s.sCb))
        a('s_add_u32 s%d, s%d, s%d' % (sT0, sT0, sT1))
        a('s_lshr_b32 s%d, s%d, 1' % (sT1, sW))
        a('s_lshl_b32 s%d, s%d, 14' % (sT1, sT1))
        a('s_add_u32 s%d, s%d, s%d' % (sT0, sT0, sT1))
        bits(a, vT + 2, [(2, 3, 0)])
        a('s_lshl_b32 s%d, s%d, 1' % (sT1, sW))
        a('v_xor_b32 v%d, s%d, v%d' % (vT + 2, sT1, vT + 2))
        bits(a, vT + 3, [(2, 4, 8), (0, 2, 3)])
        for nt in range(2):
            a('v_xor_b32 v%d, %d, v%d' % (vT + 4, nt, vT + 2))
            a('v_lshl_add_u32 v%d, v%d, 5, v%d' % (vT + 5 + nt, vT + 4, vT + 3))
            a('v_add_u32 v%d, 0x10000, v%d' % (vT + 7 + nt, vT + 5 + nt))
        def dma(q):
            for i in range(16):
                a('s_add_u32 m0, s%d, %d' % (sT3, (q % 2) * 65536 + i * 4096))
                a('buffer_load_dwordx4 v%d, s[%d:%d], s%d offen lds' % (vT, S_WO, S_WO + 3, sT0))
                a('s_add_u32 s%d, s%d, 0x8000' % (sT0, sT0))
        dma(0); dma(1)
        for q in range(4):
            a('s_waitcnt vmcnt(%d)' % (16 if q < 3 else 0))
            a('s_barrier')
            for k in range(8):
                for nt in range(2):
                    for v2 in range(2):
                        a('ds_read_b64_tr_b16 %s, v%d offset:%d' % (ar(((q * 8 + k) * 2 + nt) * 4 + 2 * v2, 2), vT + 5 + 2 * (q % 2) + nt, (32 * k + 16 * v2) * 256))
                a('s_waitcnt lgkmcnt(8)')
            a('s_waitcnt lgkmcnt(0)')
            a('s_barrier')
            if q < 2: dma(q + 2)
    def setup(s):
        a = s.a; vT = s.vT
        a('v_lshlrev_b32 v%d, 4, v0' % s.vL16)
        a('v_add_u32 v%d, %d, v%d' % (s.vOr, s.L_O, s.vL16))
        a('s_and_b32 s%d, s%d, 1' % (sT0, sW))
        a('s_lshr_b32 s%d, s%d, 1' % (sT1, sW))
        a('s_lshl_b32 s%d, s%d, 12' % (sT2, sT0))
        a('v_add_u32 v%d, s%d, v%d' % (s.vQr, sT2, s.vL16))
        a('v_add_u32 v%d, 8192, v%d' % (s.vKr, s.vL16))
        a('s_lshl_b32 s%d, s%d, 11' % (sT2, sT1))
        a('s_add_u32 s%d, s%d, 16384' % (sT2, sT2))
        bits(a, s.vVr, [(0, 2, 8), (2, 4, 4)], 's%d' % sT2)
        a('s_lshl_b32 s%d, s%d, 10' % (sT2, sT1))
        a('s_add_u32 s%d, s%d, %d' % (sT2, sT2, s.L_KM + 2048))
        bits(a, s.vMr, [(3, 1, 8), (4, 2, 6), (1, 1, 5), (2, 1, 3), (0, 1, 1)], 's%d' % sT2)
        for i in range(2): a('s_mov_b32 s%d, 0xcccccccc' % (s.sHi + i))
        a('v_mov_b32 v%d, 0x4444' % vT)
        a('v_mov_b32 v%d, 0xeeee' % (vT + 1))
        a('v_cndmask_b32 v%d, v%d, v%d, s[%d:%d]' % (s.vIdx, vT, vT + 1, s.sHi, s.sHi + 1))
        a('v_mov_b32 v%d, 0x%x' % (s.vNeg, f2u(-1e9 * math.sqrt(128))))
        a('s_mov_b32 s%d, 0x%x' % (s.sScale, f2u(math.log2(math.e) / math.sqrt(128))))
        a('s_lshl_b32 s%d, s%d, 4' % (sT2, sT0))
        bits(a, vT, [(0, 4, 0)], 's%d' % sT2)
        bits(a, vT + 1, [(4, 2, 2)])
        a('v_sub_u32 v%d, v%d, v%d' % (vT, vT, vT + 1))
        for k in range(8):
            a('v_cmp_le_i32 s[%d:%d], %d, v%d' % (s.sMask + 2 * k, s.sMask + 2 * k + 1, 16 * (k // 4) + k % 4, vT))
        a('s_lshl_b32 s%d, s%d, 10' % (sT2, sW))
        a('v_add_u32 v%d, s%d, v%d' % (s.vKmw, sT2, s.vL16))
        a('s_lshl_b32 s%d, s%d, 16' % (sT2, sT1))
        a('s_lshl_b32 s%d, s%d, 5' % (sT3, sT0))
        a('s_add_u32 s%d, s%d, s%d' % (sT2, sT2, sT3))
        a('s_lshl_b32 s%d, s%d, 6' % (sT3, s.sKq))
        a('s_add_u32 s%d, s%d, s%d' % (sT2, sT2, sT3))
        a('s_lshl_b32 s%d, s%d, 8' % (sT3, s.sCb))
        a('s_add_u32 s%d, s%d, s%d' % (sT2, sT2, sT3))
        a('s_add_u32 s%d, s%d, 2048' % (sT2, sT2))
        bits(a, s.vOst, [(0, 4, 12), (4, 2, 3)], 's%d' % sT2)
        for et in range(4): a('v_mov_b32 v%d, 0' % (s.vA + 6 * et + 5))
        a('s_lshl_b32 s%d, s%d, 16' % (sT2, s.sCb))
        a('s_add_u32 s%d, s%d, 0x%x' % (sT2, sT2, WS_PO))
        a('s_lshl_b32 s%d, s%d, 14' % (s.sPst, sW))
        a('s_lshl_b32 s%d, s%d, 10' % (sT3, s.sKq))
        a('s_add_u32 s%d, s%d, s%d' % (s.sPst, s.sPst, sT3))
        a('s_add_u32 s%d, s%d, s%d' % (s.sPst, s.sPst, sT2))
        a('s_lshl_b32 s%d, s%d, 14' % (s.sPld, s.sKq))
        a('s_lshl_b32 s%d, s%d, 12' % (sT3, sW))
        a('s_add_u32 s%d, s%d, s%d' % (s.sPld, s.sPld, sT3))
        a('s_add_u32 s%d, s%d, s%d' % (s.sPld, s.sPld, sT2))
    def next_list(s):
        o = []
        for bit, r in ((0, s.sA), (1, s.sO), (2, s.sF), (3, s.sS)):
            o += ['s_bfe_u32 s%d, s%d, 0x%x' % (sT0, s.sDo, 0x10000 | bit), 's_lshl2_add_u32 s%d, s%d, s%d' % (r, sT0, r)]
        o += ['s_add_u32 s%d, s%d, 1' % (s.sI, s.sI)]
        for k, m in enumerate(s.sched):
            o += ['s_lshr_b32 s%d, 0x%x, s%d' % (sT0, m, s.sI), 's_and_b32 s%d, s%d, 1' % (sT0 if k else s.sDn, sT0)]
            if k: o += ['s_lshl_b32 s%d, s%d, %d' % (sT0, sT0, k), 's_or_b32 s%d, s%d, s%d' % (s.sDn, s.sDn, sT0)]
        o += ['s_lshl_b32 s%d, s%d, 17' % (s.sKm, s.sA), 's_add_u32 s%d, s%d, s%d' % (s.sKm, s.sKm, s.bKm),
              's_lshl_b32 s%d, s%d, 11' % (s.sCO, s.sO), 's_add_u32 s%d, s%d, s%d' % (s.sCO, s.sCO, s.bCO),
              s.km_ld(), s.ld_ctr(0),
              's_lshl_b32 s%d, s%d, 18' % (s.sOst, s.sA), 's_add_u32 s%d, s%d, s%d' % (s.sOst, s.sOst, s.bOst),
              's_lshl_b32 s%d, s%d, 18' % (s.sOld, s.sO), 's_add_u32 s%d, s%d, s%d' % (s.sOld, s.sOld, s.bOld),
              's_lshl_b32 s%d, s%d, 11' % (s.sCP, s.sF), 's_add_u32 s%d, s%d, s%d' % (s.sCP, s.sCP, s.bCP),
              'v_mov_b32 v%d, 0' % (s.vP + 5)]
        return o
    def bases(s):
        a = s.a
        a('s_lshl_b32 s%d, s%d, 12' % (sT0, sMem))
        a('s_add_u32 s%d, s%d, 0x%x' % (s.bKm, sT0, WS_KVM))
        a('s_and_b32 s%d, s%d, 1' % (sT1, sW))
        a('s_lshl_b32 s%d, s%d, 17' % (sT1, sT1))
        a('s_add_u32 s%d, s%d, 0x%x' % (sT1, sT1, WS_O))
        a('s_lshr_b32 s%d, s%d, 1' % (sT2, sW))
        a('s_add_u32 s%d, s%d, s%d' % (s.bOst, sT1, sT0))
        a('s_lshl_b32 s%d, s%d, 11' % (sT0, sT2))
        a('s_add_u32 s%d, s%d, s%d' % (s.bOst, s.bOst, sT0))
        a('s_lshl_b32 s%d, s%d, 15' % (sT0, s.sKq))
        a('s_add_u32 s%d, s%d, s%d' % (s.bOld, sT1, sT0))
        a('s_lshl_b32 s%d, s%d, 14' % (sT0, sT2))
        a('s_add_u32 s%d, s%d, s%d' % (s.bOld, s.bOld, sT0))
        a('s_lshl_b32 s%d, s%d, 7' % (sT0, s.sKq))
        a('s_add_u32 s%d, s%d, 0x%x' % (s.bCO, sT0, WS_CTR))
        a('s_lshl_b32 s%d, s%d, 7' % (sT0, s.sCb))
        a('s_add_u32 s%d, s%d, 0x%x' % (s.bCP, sT0, WS_CTR + 512))
    def km_ld(s): return 'buffer_load_dwordx4 %s, v%d, s[%d:%d], s%d offen sc1' % (vr(s.vP, 4), s.vKmw, S_WS, S_WS + 3, s.sKm)
    def ld_km(s): s.a('buffer_load_dwordx4 %s, v%d, s[%d:%d], s%d offen sc1' % (vr(s.vP, 4), s.vKmw, S_WS, S_WS + 3, s.sKm))
    def ld_ctr(s, k): return 'buffer_load_dword v%d, off, s[%d:%d], s%d sc1' % (s.vP + 4 + k, S_WS, S_WS + 3, (s.sCO, s.sCP)[k])
    def spin(s, ld, chk, sleep):
        a = s.a
        l, ok = a.newlabel('Lsp'), a.newlabel('Lsp')
        a.label(l)
        chk(ok)
        a('s_sleep %d' % sleep)
        ld()
        a('s_waitcnt vmcnt(0)')
        a('s_sub_u32 s%d, s%d, 1' % (sTmo, sTmo))
        a('s_cbranch_scc0 %s' % l)
        a('s_branch L_side_fail')
        a.label(ok)
    def wait_km(s):
        a = s.a; vP = s.vP
        def chk(ok):
            a('v_max3_u32 v%d, v%d, v%d, v%d' % (s.vT, vP, vP + 1, vP + 2))
            a('v_max_u32 v%d, v%d, v%d' % (s.vT, s.vT, vP + 3))
            a('v_cmp_eq_u32 vcc, -1, v%d' % s.vT)
            a('s_cbranch_vccz %s' % ok)
        s.spin(s.ld_km, chk, 4)
    def wait_ctr(s, k):
        a = s.a
        def chk(ok):
            a('v_readfirstlane_b32 s%d, v%d' % (sT0, s.vP + 4 + k))
            a('s_cmp_eq_u32 s%d, %d' % (sT0, (8, 4)[k]))
            a('s_cbranch_scc1 %s' % ok)
        s.spin(lambda: a(s.ld_ctr(k)), chk, 2)
    def signals(s):
        a = s.a
        l = a.newlabel('Lsig')
        a('s_cmp_eq_u32 s%d, 0' % sW)
        a('s_cbranch_scc0 %s' % l)
        a('v_mov_b32 v%d, 1' % (s.vT + 2))
        a('s_mov_b64 exec, 1')
        for bit, r, b in ((0, s.sA, s.bCO), (3, s.sS, s.bCP)):
            a('s_lshl_b32 s%d, s%d, 11' % (sT0, r))
            a('s_add_u32 s%d, s%d, s%d' % (sT0, sT0, b))
            a('s_bitcmp1_b32 s%d, %d' % (s.sDo, bit))
            a('s_cselect_b32 s%d, s%d, 0x%x' % (sT0, sT0, WS_DUMP))
            a('buffer_atomic_add v%d, off, s[%d:%d], s%d sc1' % (s.vT + 2, S_WS, S_WS + 3, sT0))
        a('s_mov_b64 exec, -1')
        a.label(l)
    def cond(s, bit, label):
        s.a('s_bitcmp1_b32 s%d, %d' % (s.sDo, bit))
        s.a('s_cbranch_scc0 %s' % label)
    def attn(s):
        A = s.a; vT = s.vT; vQ, vK, vKm, vS, vA, vD = s.vQ, s.vK, s.vKm, s.vS, s.vA, s.vD
        fill = s.prefetch_list() + s.odma_list() + [[s.ld_ctr(1)]]
        st = {'n': 0}
        def a(x):
            A(x)
            st['n'] += 1
            if st['n'] % 5 == 0 and fill:
                for y in fill.pop(0): A(y)
        for i in range(4): a('v_mov_b32 v%d, 0' % (vS + 8 + i))
        for t in range(4): a('ds_read_b128 %s, v%d offset:%d' % (vr(vQ + 4 * t, 4), s.vQr, t * 1024))
        for i in range(8): a('ds_read_b128 %s, v%d offset:%d' % (vr(vK + 4 * i, 4), s.vKr, i * 1024))
        for T in range(2): a('ds_read_b128 %s, v%d offset:%d' % (vr(vKm + 4 * T, 4), s.vL16, s.L_KM + T * 1024))
        a('s_waitcnt lgkmcnt(0)')
        for et in range(4):
            for tau in range(2):
                a('ds_read_b64_tr_b16 %s, v%d offset:%d' % (vr(vA + 6 * et + 2 * tau, 2), s.vVr, tau * 4096 + (et // 2) * 1024 + (et % 2) * 8))
        for t in range(4):
            for tau in range(2):
                a('v_mfma_f32_16x16x32_bf16 %s, %s, %s, %s' % (vr(vS + 4 * tau, 4), vr(vK + 16 * tau + 4 * t, 4), vr(vQ + 4 * t, 4), '0' if t == 0 else vr(vS + 4 * tau, 4)))
        for T in range(2):
            a('v_smfmac_f32_16x16x64_bf16 %s, %s, %s, v%d' % (vr(vS + 8, 4), vr(vKm + 4 * T, 4), vr(vQ + 8 * T, 8), s.vIdx))
        a('s_waitcnt lgkmcnt(0)')
        for et in range(4):
            a('ds_read_u16 v%d, v%d offset:%d' % (vA + 6 * et + 4, s.vMr, (et // 2) * 512 + (et % 2) * 4))
            a('ds_read_u16 v%d, v%d offset:%d' % (vT + 8 + et, s.vMr, (et // 2) * 512 + (et % 2) * 4 + 16))
        for k in range(8): a('v_cndmask_b32 v%d, v%d, v%d, s[%d:%d]' % (vS + k, s.vNeg, vS + k, s.sMask + 2 * k, s.sMask + 2 * k + 1))
        a('v_pk_add_f32 %s, %s, %s' % (vr(vS + 8, 2), vr(vS + 8, 2), vr(vS + 10, 2)))
        m, m2 = vT, vT + 1
        def xred(op):
            for sw in ('v_permlane16_swap_b32', 'v_permlane32_swap_b32'):
                a('v_mov_b32 v%d, v%d' % (m2, m))
                a('%s v%d, v%d' % (sw, m, m2))
                a('%s v%d, v%d, v%d' % (op, m, m, m2))
        a('v_max3_f32 v%d, v%d, v%d, v%d' % (m, vS, vS + 1, vS + 2))
        for k in range(3, 9, 2): a('v_max3_f32 v%d, v%d, v%d, v%d' % (m, m, vS + k, vS + k + 1))
        a('v_max_f32 v%d, v%d, v%d' % (m, m, vS + 9))
        xred('v_max_f32')
        a('v_mul_f32 v%d, s%d, v%d' % (m, s.sScale, m))
        for k in range(10): a('v_fma_f32 v%d, v%d, s%d, -v%d' % (vS + k, vS + k, s.sScale, m))
        for k in range(10): a('v_exp_f32 v%d, v%d' % (vS + k, vS + k))
        a('v_pk_add_f32 %s, %s, %s' % (vr(m, 2), vr(vS, 2), vr(vS + 2, 2)))
        for k in (4, 6, 8): a('v_pk_add_f32 %s, %s, %s' % (vr(m, 2), vr(m, 2), vr(vS + k, 2)))
        a('v_add_f32 v%d, v%d, v%d' % (m, m, m2))
        xred('v_add_f32')
        a('v_rcp_f32 v%d, v%d' % (m, m))
        for k in range(10): a('v_mul_f32 v%d, v%d, v%d' % (vS + k, vS + k, m))
        p = vT + 2
        for k in range(5): a('v_cvt_pk_bf16_f32 v%d, v%d, v%d' % (p + k, vS + 2 * k, vS + 2 * k + 1))
        a('v_mov_b32 v%d, 0' % (p + 5))
        a('s_waitcnt lgkmcnt(0)')
        for et in range(4): a('v_lshl_or_b32 v%d, v%d, 16, v%d' % (vA + 6 * et + 4, vT + 8 + et, vA + 6 * et + 4))
        for et in range(4): a('v_mfma_f32_16x16x32_bf16 %s, %s, %s, 0' % (vr(vD + 4 * et, 4), vr(vA + 6 * et, 4), vr(p, 4)))
        for et in range(4): a('v_mfma_f32_16x16x16_bf16 %s, %s, %s, %s' % (vr(vD + 4 * et, 4), vr(vA + 6 * et + 4, 2), vr(p + 4, 2), vr(vD + 4 * et, 4)))
        for pr in range(2):
            r = vD + 8 * pr
            for i in range(4): a('v_cvt_pk_bf16_f32 v%d, v%d, v%d' % (r + i, r + 2 * i, r + 2 * i + 1))
            a('buffer_store_dwordx4 %s, v%d, s[%d:%d], s%d offen offset:%d sc1' % (vr(r, 4), s.vL16, S_WS, S_WS + 3, s.sOst, pr * 1024))
        assert not fill
        a = A
        for r in (s.vQr, s.vKr, s.vVr): a('v_xor_b32 v%d, 0x%x, v%d' % (r, s.BUF1, r))
    def fload(s):
        a = s.a
        l = a.newlabel('Lf')
        s.cond(2, l)
        s.wait_ctr(1)
        a('s_lshl_b32 s%d, s%d, 19' % (sT0, s.sF))
        a('s_add_u32 s%d, s%d, s%d' % (sT0, sT0, s.sPld))
        for i in range(4): a('buffer_load_dwordx4 %s, v%d, s[%d:%d], s%d offen offset:%d sc1' % (vr(s.vF + 4 * i, 4), s.vL16, S_WS, S_WS + 3, sT0, i * 1024))
        a.label(l)
        a('s_lshl_b32 s%d, s%d, 17' % (s.sFo, s.sF))
    def oproj(s):
        a = s.a; vD = s.vD; vB = s.vB
        seq = [(rt, k) for k in range(32) for rt in range(2)]
        NB, AH = 12, 10
        def rd(i):
            rt, k = seq[i]
            a('ds_read_b128 %s, v%d offset:%d' % (vr(vB + 4 * (i % NB), 4), s.vOr, rt * 32768 + k * 1024))
        for i in range(AH): rd(i)
        a('s_lshl_b32 s%d, s%d, 19' % (s.sPo, s.sO))
        a('s_add_u32 s%d, s%d, s%d' % (s.sPo, s.sPo, s.sPst))
        nl = s.next_list()
        for i, (rt, k) in enumerate(seq):
            if i + AH < 64: rd(i + AH)
            a('s_waitcnt lgkmcnt(%d)' % min(AH, 63 - i))
            for nt in range(2):
                d = vr(vD + 4 * (2 * rt + nt), 4)
                a('v_mfma_f32_16x16x32_bf16 %s, %s, %s, %s' % (d, ar((k * 2 + nt) * 4, 4), vr(vB + 4 * (i % NB), 4), '0' if k == 0 else d))
                if i >= 38 and nl: a(nl.pop(0))
            if i == 16:
                a('s_waitcnt vmcnt(0)')
                a('s_barrier')
                s.signals()
                s.fload()
        assert not nl
        a('s_waitcnt vmcnt(0)')
        for t in range(4):
            a('buffer_store_dwordx4 %s, v%d, s[%d:%d], s%d offen sc1' % (vr(vD + 4 * t, 4), s.vL16, S_WS, S_WS + 3, s.sPo))
            a('s_add_u32 s%d, s%d, 4096' % (s.sPo, s.sPo))
    def run(s, wait_g1):
        a = s.a; vT = s.vT; vF = s.vF
        s.setup()
        s.bases()
        wait_g1()
        a('s_barrier')
        for r in (s.sA, s.sO, s.sF, s.sS, s.sPf): a('s_mov_b32 s%d, s%d' % (r, sTeam))
        a('s_mov_b32 s%d, 0' % s.sBuf)
        a('s_mov_b32 s%d, -1' % s.sI)
        a('s_mov_b32 s%d, 0' % s.sDo)
        s.flat(s.prefetch_list())
        for x in s.next_list(): a(x)
        a('s_waitcnt vmcnt(0)')
        a.label('L_ao_loop')
        s.mark(10); s.mark(9)
        a('s_mov_b32 s%d, s%d' % (s.sDo, s.sDn))
        a('s_bitcmp1_b32 s%d, 1' % s.sDo)
        a('s_cselect_b32 s%d, s%d, 0x%x' % (s.sOld, s.sOld, WS_DUMP))
        a('s_cbranch_scc0 L_ao_2')
        s.wait_ctr(0)
        a.label('L_ao_2')
        s.cond(0, 'L_ao_noA')
        s.wait_km()
        a('ds_write_b128 v%d, %s offset:%d' % (s.vKmw, vr(s.vP, 4), s.L_KM))
        a('s_add_u32 s%d, s%d, 4' % (s.sPf, s.sA))
        a('s_cmp_lt_u32 s%d, 64' % s.sPf)
        a('s_cselect_b32 s%d, s%d, 1024' % (s.sPf, s.sPf))
        a('s_xor_b32 s%d, s%d, 0x%x' % (s.sBuf, s.sBuf, s.BUF1))
        a('s_waitcnt lgkmcnt(0)')
        a('s_barrier')
        s.mark(11)
        s.attn()
        s.cond(1, 'L_ao_noO')
        a('s_waitcnt vmcnt(2)')
        a('s_branch L_ao_3')
        a.label('L_ao_noA')
        s.cond(1, 'L_ao_noO')
        a('s_barrier')
        s.flat(s.odma_list())
        a('s_waitcnt vmcnt(0)')
        a.label('L_ao_3')
        a('s_barrier')
        s.mark(12)
        s.oproj()
        a('s_branch L_ao_6')
        a.label('L_ao_noO')
        a('s_waitcnt vmcnt(0)')
        a('s_barrier')
        s.signals()
        s.fload()
        for x in s.next_list(): a(x)
        a('s_waitcnt vmcnt(0)')
        a.label('L_ao_6')
        s.cond(2, 'L_ao_7')
        for h in range(2):
            a('v_pk_add_f32 %s, %s, %s' % (vr(vF + 2 * h, 2), vr(vF + 2 * h, 2), vr(vF + 4 + 2 * h, 2)))
            a('v_pk_add_f32 %s, %s, %s' % (vr(vF + 8 + 2 * h, 2), vr(vF + 8 + 2 * h, 2), vr(vF + 12 + 2 * h, 2)))
            a('v_pk_add_f32 %s, %s, %s' % (vr(vF + 2 * h, 2), vr(vF + 2 * h, 2), vr(vF + 8 + 2 * h, 2)))
            a('v_cvt_pk_bf16_f32 v%d, v%d, v%d' % (vT + h, vF + 2 * h, vF + 2 * h + 1))
        a('buffer_store_dwordx2 %s, v%d, s[%d:%d], s%d offen' % (vr(vT, 2), s.vOst, S_OUT, S_OUT + 3, s.sFo))
        a.label('L_ao_7')
        a('s_cmp_lt_u32 s%d, %d' % (s.sI, s.NIT))
        a('s_cbranch_scc1 L_ao_loop')

class Conv:
    def mark(s, i): pass
    CH = 7600
    L_H = 8 * 7600
    HC = 4160
    L_W = 8 * 7600 + 16 * 4160
    def __init__(s, a): s.a = a
    def warm(s, NX=4):
        a = s.a
        a('s_and_b32 s%d, s%d, %d' % (sT0, sMem, 31 if NX == 4 else 15))
        a('s_lshl_b32 s%d, s%d, 2' % (sT0, sT0))
        a('s_add_u32 s%d, s%d, s%d' % (sT0, sT0, sW))
        a('s_lshl_b32 s%d, s%d, %d' % (sT0, sT0, 15 if NX == 4 else 16))
        a('s_lshl_b32 s%d, s%d, 9' % (sT1, sTeam))
        a('s_add_u32 s%d, s%d, s%d' % (sT0, sT0, sT1))
        if NX == 4: bits(a, 28, [(2, 4, 11), (0, 2, 7)])
        else:
            a('s_lshr_b32 s%d, s%d, 4' % (sT1, sMem))
            a('s_lshl_b32 s%d, s%d, 8' % (sT1, sT1))
            a('s_add_u32 s%d, s%d, s%d' % (sT0, sT0, sT1))
            bits(a, 28, [(1, 5, 11), (0, 1, 7)])
        for i, srd in enumerate((S_AK, S_AV, S_AQ)): a('buffer_load_dword v%d, v28, s[%d:%d], s%d offen' % (20 + i, srd, srd + 3, sT0))
        a('s_lshl_b32 s%d, s%d, 5' % (sT0, sTeam))
        a('s_add_u32 s%d, s%d, s%d' % (sT0, sT0, sMem))
        a('s_lshl_b32 s%d, s%d, 2' % (sT0, sT0))
        a('s_add_u32 s%d, s%d, s%d' % (sT0, sT0, sW))
        a('s_lshl_b32 s%d, s%d, 13' % (sT0, sT0))
        a('v_lshlrev_b32 v28, 7, v0')
        a('buffer_load_dword v23, v28, s[%d:%d], s%d offen' % (S_AH, S_AH + 3, sT0))
    def run(s, sKq, sCb):
        a = s.a
        CH, L_H, HC = s.CH, s.L_H, s.HC
        sD0, sWs, sWl, sRaw = 45, 46, 47, 56
        vRow, vW, vG, vBp, vY, vHl, vHw, vWs, vWr, vT = 1, 2, 3, 4, 5, 6, 7, 8, 9, 10
        vKV = 32; vC = 64; vK = 104; vV = 148; vE = 180; hw = 232
        vm = []
        def issue(tag, x): a(x); vm.append(tag)
        def wait(tag):
            k = max(i for i, t in enumerate(vm) if t == tag)
            a('s_waitcnt vmcnt(%d)' % (len(vm) - 1 - k))
        a('s_barrier')
        a('s_lshl_b32 s%d, s%d, 5' % (sD0, sTeam))
        a('s_add_u32 s%d, s%d, s%d' % (sD0, sD0, sMem))
        a('s_load_dwordx2 s[72:73], s[0:1], %d' % KA['A_shift'])
        a('s_load_dwordx2 s[74:75], s[0:1], %d' % KA['A_ssmD'])
        a('s_lshl_b32 s%d, s%d, 6' % (sT0, sD0))
        a('s_lshl_b32 s%d, s%d, 4' % (sT1, sD0))
        a('s_waitcnt lgkmcnt(0)')
        a('s_load_dwordx16 s[56:71], s[72:73], s%d' % sT0)
        a('s_load_dwordx4 s[48:51], s[74:75], s%d' % sT1)
        a('s_lshl_b32 s%d, s%d, 20' % (sT0, sW))
        a('s_add_u32 s%d, s%d, s%d' % (sT0, sT0, sT1))
        bits(a, vRow, [(0, 6, 14)], 's%d' % sT0)
        for r in range(-3, 8):
            a('v_add_u32 v%d, 0x%x, v%d' % (vT, (r * 2048) & 0xffffffff, vRow))
            issue('kv', 'buffer_load_dwordx4 %s, v%d, s[%d:%d], 0 offen' % (vr(vK + 4 * (r + 3), 4), vT, S_AK, S_AK + 3))
            if r >= 0: issue('kv', 'buffer_load_dwordx4 %s, v%d, s[%d:%d], 0 offen' % (vr(vV + 4 * r, 4), vT, S_AV, S_AV + 3))
        a('s_lshl_b32 s%d, s%d, 15' % (sT0, sD0))
        a('s_lshl_b32 s%d, s%d, 13' % (sT1, sW))
        a('s_add_u32 s%d, s%d, s%d' % (sT0, sT0, sT1))
        bits(a, vHl, [(0, 6, 4)], 's%d' % sT0)
        def hload(ch):
            if ch: a('v_add_u32 v%d, 4096, v%d' % (vHl, vHl))
            a('v_subrev_u32 v%d, 8, v%d' % (vT + 1, vHl))
            for i in range(4):
                issue('h%d' % ch, 'buffer_load_dwordx2 %s, v%d, s[%d:%d], 0 offen offset:%d' % (vr(hw + 6 * i, 2), vT + 1 if i == 0 else vHl, S_AH, S_AH + 3, 0 if i == 0 else i * 1024 - 8))
                issue('h%d' % ch, 'buffer_load_dwordx4 %s, v%d, s[%d:%d], 0 offen offset:%d' % (vr(hw + 6 * i + 2, 4), vHl, S_AH, S_AH + 3, i * 1024))
        hload(0)
        a('s_lshl_b32 s%d, s%d, 21' % (sWs, sKq))
        a('s_lshl_b32 s%d, s%d, 8' % (sT0, sCb))
        a('s_add_u32 s%d, s%d, s%d' % (sWs, sWs, sT0))
        a('s_lshl_b32 s%d, s%d, 6' % (sT0, sW))
        a('s_add_u32 s%d, s%d, s%d' % (sWs, sWs, sT0))
        bits(a, vWs, [(2, 4, 11), (0, 2, 4)])
        a('s_lshl_b32 s%d, s%d, 13' % (sWl, sW))
        a('s_add_u32 s%d, s%d, %d' % (sWl, sWl, s.L_W))
        bits(a, vWr, [(2, 4, 6), (0, 2, 3)], 's%d' % sWl)
        def wdma(j):
            a('s_add_u32 m0, s%d, %d' % (sWl, (j % 8) * 1024))
            issue('w%d' % j, 'buffer_load_dwordx4 v%d, s[%d:%d], s%d offen lds' % (vWs, S_WO, S_WO + 3, sWs))
            a('s_add_u32 s%d, s%d, 0x8000' % (sWs, sWs))
        def wtr(j):
            wait('w%d' % j)
            for nt in range(2):
                a('ds_read_b64_tr_b16 %s, v%d offset:%d' % (ar(((j // 2) * 2 + nt) * 4 + 2 * (j % 2), 2), vWr, (j % 8) * 1024 + nt * 32))
        for j in range(7): wdma(j)
        for i in range(4): a('v_mov_b32 v%d, 0' % (vT + 4 + i))
        a('s_lshl_b32 s%d, s%d, 10' % (sT0, sW))
        bits(a, vT, [(0, 6, 4)], 's%d' % sT0)
        a('v_cmp_gt_u32 vcc, 2480, v%d' % vT)
        a('s_and_saveexec_b64 s[72:73], vcc')
        for ch in range(8): a('ds_write_b128 v%d, %s offset:%d' % (vT, vr(vT + 4, 4), ch * CH))
        a('s_mov_b64 exec, 0xffff')
        a('s_mul_i32 s%d, s%d, %d' % (sT2, sW, 4 * HC))
        a('s_add_u32 s%d, s%d, %d' % (sT2, sT2, L_H))
        a('s_add_u32 s%d, s%d, 4096' % (sT0, sT2))
        bits(a, vT, [(2, 2, 12), (2, 2, 6), (0, 2, 4)], 's%d' % sT0)
        a('ds_write_b128 v%d, %s' % (vT, vr(vT + 4, 4)))
        a('s_mov_b64 exec, -1')
        a('s_mul_i32 s%d, s%d, %d' % (sT0, sW, 16 * 80))
        a('s_add_u32 s%d, s%d, %d' % (sT0, sT0, 31 * 80))
        bits(a, vW, [(2, 4, 6), (2, 4, 4), (0, 2, 4)], 's%d' % sT0)
        a('v_and_b32 v%d, 31, v0' % vT)
        a('v_sub_u32 v%d, 31, v%d' % (vT, vT))
        a('v_and_b32 v%d, 3, v%d' % (vT + 1, vT))
        a('v_and_b32 v%d, 28, v%d' % (vT, vT))
        a('v_mul_u32_u24 v%d, %d, v%d' % (vT + 1, HC, vT + 1))
        a('v_lshl_add_u32 v%d, v%d, 1, v%d' % (vT, vT, vT + 1))
        bits(a, vG, [(5, 1, 4)], 's%d' % sT2)
        a('v_add_u32 v%d, v%d, v%d' % (vG, vG, vT))
        a('v_sub_u32 v%d, 63, v0' % vT)
        a('v_lshlrev_b32 v%d, 4, v%d' % (vT, vT))
        a('v_add_u32 v%d, s%d, v%d' % (vHw, sT2, vT))
        a('s_mul_i32 s%d, s%d, %d' % (sT1, sW, 2 * CH))
        bits(a, vBp, [(0, 5, 6), (0, 5, 4), (5, 1, 4)], 's%d' % sT1)
        a('s_add_u32 s%d, s%d, %d' % (sT1, sT1, 31 * 80))
        bits(a, vY, [(0, 5, 6), (0, 5, 4), (5, 1, 3)], 's%d' % sT1)
        a('s_waitcnt lgkmcnt(0)')
        for ch in range(8):
            for j in range(4):
                src = sRaw + 2 * ch + j // 2
                if j % 2 == 0: a('v_lshlrev_b32 v%d, 16, s%d' % (vC + 8 * j + ch, src))
                else:
                    a('s_and_b32 s%d, s%d, 0xffff0000' % (sT0, src))
                    a('v_mov_b32 v%d, s%d' % (vC + 8 * j + ch, sT0))
            if ch % 2 == 0: a('v_lshlrev_b32 v%d, 16, s%d' % (vC + 32 + ch, 48 + ch // 2))
            else:
                a('s_and_b32 s%d, s%d, 0xffff0000' % (sT0, 48 + ch // 2))
                a('v_mov_b32 v%d, s%d' % (vC + 32 + ch, sT0))
        a('s_mov_b32 s72, 0xffff')
        wait('kv')
        s.mark(6)
        def unpack(dst, src):
            a('v_lshlrev_b32 v%d, 16, v%d' % (dst, src))
            a('v_and_b32 v%d, 0xffff0000, v%d' % (dst + 1, src))
        for cp in range(4):
            kf = vE; ac = vE + 22; vf = vE + 38
            for r in range(11): unpack(kf + 2 * r, vK + 4 * r + cp)
            for r in range(8):
                a('v_pk_mul_f32 %s, %s, %s' % (vr(ac + 2 * r, 2), vr(kf + 2 * r, 2), vr(vC + 24 + 2 * cp, 2)))
            for j in (2, 1, 0):
                for r in range(8):
                    a('v_pk_fma_f32 %s, %s, %s, %s' % (vr(ac + 2 * r, 2), vr(kf + 2 * (r + 3 - j), 2), vr(vC + 8 * j + 2 * cp, 2), vr(ac + 2 * r, 2)))
            for r in range(8):
                unpack(vf + 2 * (r % 4), vV + 4 * r + cp)
                a('v_pk_mul_f32 %s, %s, %s' % (vr(ac + 2 * r, 2), vr(ac + 2 * r, 2), vr(vf + 2 * (r % 4), 2)))
            for e in range(2):
                ch = 2 * cp + e
                for k in range(4): a('v_cvt_pk_bf16_f32 v%d, v%d, v%d' % (vKV + 4 * ch + k, ac + 4 * k + e, ac + 4 * k + 2 + e))
                a('ds_write_b128 v%d, %s offset:%d' % (vW, vr(vKV + 4 * ch, 4), ch * CH))
        wj = {'tr': 0}
        for chn in range(2):
            a('v_cmp_ne_u32 vcc, 0, v0')
            wait('h%d' % chn)
            for k in range(2): a('v_cndmask_b32 v%d, 0, v%d, vcc' % (hw + k, hw + k))
            for i in range(4):
                wv = lambda idx: hw + 6 * i + 2 + idx
                for r in range(4):
                    o = vE + 16 * (i % 2) + 4 * r
                    for k in range(4):
                        if r % 2 == 0:
                            x = wv((6 - r - 2 * k) // 2)
                            a('v_alignbit_b32 v%d, v%d, v%d, 16' % (o + k, x, x))
                        else:
                            e0 = (7 - r - 2 * k) // 2
                            a('v_bfi_b32 v%d, s72, v%d, v%d' % (o + k, wv(e0), wv(e0 - 1)))
                    a('ds_write_b128 v%d, %s offset:%d' % (vHw, vr(o, 4), r * HC + (3 - i) * 1024))
                a('s_waitcnt lgkmcnt(4)')
            a('s_waitcnt lgkmcnt(0)')
            if chn == 0:
                a('s_barrier')
                s.mark(7)
                hload(1)
            steps = [(c, kk) for c in range(64) for kk in range(2)]
            NB, AH = 4, 3
            cb = chn * CH
            def rd(i):
                c, kk = steps[i]; m = 2 * c - kk; b = vE + 12 * (i % NB); n = 3
                for h in range(2): a('ds_read_b64 %s, v%d offset:%d' % (vr(b + 2 * h, 2), vG, (126 - m) * 32 + 8 * h))
                a('ds_read_b128 %s, v%d offset:%d' % (vr(b + 4, 4), vBp, cb + (63 - c) * 80 + kk * 32))
                if c < 32:
                    a('ds_read_b128 %s, v%d offset:%d' % (vr(b + 8, 4), vBp, cb + (31 - c) * 80 + kk * 32)); n = 4
                return n
            cnt = [rd(i) for i in range(AH)]
            y0, y1 = vr(vK, 16), vr(vK + 16, 16)
            nm = 0
            for i, (c, kk) in enumerate(steps):
                a('s_waitcnt lgkmcnt(%d)' % sum(cnt[i + 1:]))
                b = vE + 12 * (i % NB)
                a('v_mfma_f32_32x32x16_bf16 %s, %s, %s, %s' % (y1, vr(b, 4), vr(b + 4, 4), '0' if i == 0 else y1))
                n = rd(i + AH) if i + AH < len(steps) else 0
                if c < 32: a('v_mfma_f32_32x32x16_bf16 %s, %s, %s, %s' % (y0, vr(b, 4), vr(b + 8, 4), '0' if i == 0 else y0))
                pm = nm; nm += 2 if c < 32 else 1
                if nm // 6 != pm // 6:
                    j = wj['tr']; wj['tr'] += 1
                    if j >= 1 and j + 6 < 64: wdma(j + 6)
                    wtr(j); n += 2
                if chn == 1 and i % 8 == 4 and i < 64:
                    r = i // 8
                    a('v_add_u32 v%d, 0x%x, v%d' % (vT, r * 2048, vRow))
                    issue('q', 'buffer_load_dwordx4 %s, v%d, s[%d:%d], 0 offen' % (vr(vV + 4 * r, 4), vT, S_AQ, S_AQ + 3))
                cnt.append(n)
            for half in range(2):
                for q in range(4):
                    o = vK + 16 * half + 4 * q
                    for h in range(2): a('v_cvt_pk_bf16_f32 v%d, v%d, v%d' % (o + h, o + 2 * h, o + 1 + 2 * h))
                    a('ds_write_b64 v%d, %s offset:%d' % (vY, vr(o, 2), cb + half * 32 * 80 + q * 16))
        assert wj['tr'] == 64
        a('s_waitcnt vmcnt(0) lgkmcnt(0)')
        a('s_barrier')
        s.mark(8)
        yb = vK
        for ch in range(8): a('ds_read_b128 %s, v%d offset:%d' % (vr(yb + 4 * ch, 4), vW, ch * CH))
        a('s_lshl_b32 s%d, s%d, 21' % (sT0, sW))
        a('s_lshl_b32 s%d, s%d, 4' % (sT1, sD0))
        a('s_add_u32 s%d, s%d, s%d' % (sT0, sT0, sT1))
        bits(a, vRow, [(0, 6, 15)])
        a('s_waitcnt lgkmcnt(0)')
        for k in range(4):
            for cp in range(4):
                t = vE + 12 * (cp % 2)
                for e in range(2):
                    ch = 2 * cp + e
                    unpack(t + 4 * e, yb + 4 * ch + k)
                    unpack(t + 4 * e + 2, vKV + 4 * ch + k)
                    for h in range(2): a('v_fma_f32 v%d, v%d, v%d, v%d' % (t + 4 * e + h, t + 4 * e + 2 + h, vC + 32 + ch, t + 4 * e + h))
                for h in range(2):
                    q = vV + 4 * (2 * k + h) + cp
                    unpack(t + 8, q)
                    for e in range(2): a('v_mul_f32 v%d, v%d, v%d' % (t + 8 + e, t + 8 + e, t + 4 * e + h))
                    a('v_cvt_pk_bf16_f32 v%d, v%d, v%d' % (q, t + 8, t + 9))
            for h in range(2):
                a('buffer_store_dwordx4 %s, v%d, s[%d:%d], s%d offen' % (vr(vV + 4 * (2 * k + h), 4), vRow, S_OUT, S_OUT + 3, sT0))
                a('s_add_u32 s%d, s%d, 4096' % (sT0, sT0))
```

```python
import math, struct
from ag import *
from common import *

def f2u(x): return struct.unpack('<I', struct.pack('<f', x))[0]

L_R, L_P, L_KX, L_VX = 0, 20480, 32768, 65536
R_W, R_T, R_G = 4864, 776, 192
L_END = 131072
QKV_G = 12288
QKV_SLOT = 16 * QKV_G
PART_SLOT = 262144
MT_SLOT = 131072

S_WS, S_WQ, S_WK, S_WV, S_WO, S_M0, S_DBG = 4, 8, 12, 16, 20, 24, 28
sW, sX, sC, sG, sJ, sStep, sLocal, sTmo = 32, 33, 34, 35, 36, 37, 38, 39
sQKst, sVst, sPARTst, sREDld, sMTst, sMTld, sCld, sKVMst, sKVoff = 40, 41, 42, 43, 44, 45, 46, 47, 48
sT0, sT1, sT2, sT3 = 49, 50, 51, 52
sA, sB, sCc, sD, sE, sF, sH = 53, 54, 55, 56, 57, 58, 59
sHiMask = 60
sTS = 62
sPrev = 64
sLdsC = 65
sScale = 66
sAcc = 68
sWarm = 84
sStMask = 86
sP = 88
sKst = 96
sK2 = 97
vL16, vL4, vRw, vRr, vRr2, vPw, vPw2, vKX, vVX, vIdx, vGate, vRed, vMld, vMst = range(1, 15)
vT = 16
vSent = 28
vD = 32
vU = 64
vWo2 = 128
vM = 192
vF = 224
vSel = 240
vK = 64
vX = 96

def wo(tt, off, n):
    return ar(192 + 32 * tt + off, n) if tt < 2 else vr(vWo2 + 32 * (tt - 2) + off, n)

class Chain:
    def __init__(s, a, prof=False, nsteps=64, opt=None):
        s.a = a; s.prof = prof; s.nsteps = nsteps; s.opt = opt or {}
        s.NX = s.opt.get('NX', 4); s.NP = s.NX // 4
    def stamp(s, i):
        a = s.a
        if s.opt.get('trace'):
            if i in s.opt['trace']:
                a('s_memrealtime s[%d:%d]' % (sTS, sTS + 1))
                a('s_waitcnt lgkmcnt(0)')
                a('s_mov_b32 m0, s%d' % sStep)
                a('s_nop 0')
                a('v_writelane_b32 v%d, s%d, m0' % (244 + i, sTS))
            return
        if not s.prof: return
        if s.opt.get('gprof') is not None:
            if i < 20: return
            i -= 20
        elif i >= 20: return
        a('s_memtime s[%d:%d]' % (sTS, sTS + 1))
        a('s_waitcnt lgkmcnt(0)')
        a('s_sub_u32 s%d, s%d, s%d' % (sTS + 1, sTS, sPrev))
        a('s_add_u32 s%d, s%d, s%d' % (sAcc + i, sAcc + i, sTS + 1))
        a('s_mov_b32 s%d, s%d' % (sPrev, sTS))
    def count(s, i):
        if s.prof: s.a('s_add_u32 s%d, s%d, 1' % (sAcc + i, sAcc + i))
    def st(s, data, voff, soff, off=0, n=1, sc1=True):
        op = {1: 'buffer_store_dword', 2: 'buffer_store_dwordx2', 4: 'buffer_store_dwordx4'}[n]
        s.a('%s %s, v%d, s[%d:%d], s%d offen offset:%d%s' % (op, vr(data, n), voff, S_WS, S_WS + 3, soff, off, ' sc1' if sc1 else ''))
    def lst(s, data, voff, soff, off=0, n=1): s.st(data, voff, soff, off, n, sc1=not s.local)
    def dma(s, soff, off, voff=vL16): s.a('buffer_load_dwordx4 v%d, s[%d:%d], s%d offen offset:%d sc1 lds' % (voff, S_WS, S_WS + 3, soff, off))
    def delay(s, key):
        for i in range(s.opt.get(key, 0)): s.a('s_nop 7')
    def tmo(s, retry):
        a = s.a
        a('s_sub_u32 s%d, s%d, 1' % (sTmo, sTmo))
        a('s_cbranch_scc0 %s' % retry)
        a('s_branch L_chain_fail')
    def maxtree(s, base, n, dst, first=True):
        a = s.a
        i = 0
        if first:
            a('v_max3_u32 v%d, v%d, v%d, v%d' % (dst, base, base + 1, base + 2)); i = 3
        while i + 1 < n:
            a('v_max3_u32 v%d, v%d, v%d, v%d' % (dst, dst, base + i, base + i + 1)); i += 2
        if i < n: a('v_max_u32 v%d, v%d, v%d' % (dst, dst, base + i))
    def halfsum(s, d, dst=None):
        s.a('v_pk_add_f32 %s, %s, %s' % (vr(d if dst is None else dst, 2), vr(d, 2), vr(d + 2, 2)))
    def zero(s, regs):
        regs = list(regs)
        for i in range(0, len(regs), 2):
            assert regs[i] % 2 == 0 and regs[i + 1] == regs[i] + 1
            s.a('v_mov_b64 %s, 0' % vr(regs[i], 2))
    def hopb_s1(s, tag, tail=None):
        if not s.opt.get('tree', True): return s.hopb_seq(tag, tail)
        a = s.a
        def ld(u): a('buffer_load_dwordx4 %s, v%d, s[%d:%d], s%d offen offset:%d sc1' % (vr(vM + 4 * u, 4), vMld, S_WS, S_WS + 3, sH, u * 1024))
        def chk(u, n):
            return ['s_waitcnt vmcnt(%d)' % n,
                    'v_max3_u32 v%d, v%d, v%d, v%d' % (vT, vM + 4 * u, vM + 4 * u + 1, vM + 4 * u + 2),
                    'v_max_u32 v%d, v%d, v%d' % (vT, vT, vM + 4 * u + 3),
                    'v_cmp_eq_u32 vcc, -1, v%d' % vT]
        def mf(u, t6): a('v_smfmac_f32_16x16x64_bf16 %s, %s, %s, v%d' % (vr(vD + 4 * t6, 4), vr(vM + 4 * u, 4), ar((t6 * 4 + u) * 8, 8), vIdx))
        nm = lambda kind, F, R: 'L_b%s_%s_%s_%s' % (kind, ''.join(map(str, F)), ''.join(map(str, R)), tag)
        todo, seen = [], set()
        def want(kind, F, R):
            key = (kind, F, R)
            if key not in seen: seen.add(key); todo.append(key)
            return nm(kind, F, R)
        def chain(F, R):
            while True:
                u, rest = R[0], R[1:]
                a('s_cbranch_vccnz %s' % want('f', F + (u,), rest))
                if rest:
                    c = chk(rest[0], len(rest) - 1)
                    mf(u, 0); mf(u, 1); a(c[0]); a(c[1]); mf(u, 2); a(c[2]); a(c[3]); mf(u, 3); mf(u, 4); mf(u, 5)
                    R = rest
                    continue
                if F:
                    for x in F: ld(x)
                    for t6 in range(6): mf(u, t6)
                    a('s_branch %s' % want('c', (), F))
                else:
                    for t6 in range(6): mf(u, t6)
                    a('s_branch L_loop_%s' % tag)
                return
        for u in range(4): ld(u)
        seen.add(('c', (), (0, 1, 2, 3)))
        a.label(nm('c', (), (0, 1, 2, 3)))
        for x in chk(0, 3): a(x)
        chain((), (0, 1, 2, 3))
        def stubs():
            while todo:
                kind, F, R = todo.pop(0)
                if kind == 'c' and (kind, F, R, 'done') in seen: continue
                a.label(nm(kind, F, R))
                if kind == 'f' and not R:
                    for x in F: ld(x)
                    s.count(11)
                    a('s_sub_u32 s%d, s%d, 1' % (sTmo, sTmo))
                    a('s_cbranch_scc1 L_chain_fail')
                    if ('c', (), F) in emitted:
                        a('s_branch %s' % nm('c', (), F))
                        continue
                    seen.add(('c', (), F)); seen.add(('c', (), F, 'done'))
                    a.label(nm('c', (), F))
                    F, R = (), F
                    kind = 'c'
                if kind == 'c': emitted.add(('c', F, R))
                for x in chk(R[0], len(R) - 1): a(x)
                chain(F, R)
        emitted = {('c', (), (0, 1, 2, 3))}
        return stubs
    def hopb_seq(s, tag, tail=None):
        a = s.a
        def ld(u): a('buffer_load_dwordx4 %s, v%d, s[%d:%d], s%d offen offset:%d sc1' % (vr(vM + 4 * u, 4), vMld, S_WS, S_WS + 3, sH, u * 1024))
        def chk(u):
            return ['s_waitcnt vmcnt(%d)' % (3 - u),
                    'v_max3_u32 v%d, v%d, v%d, v%d' % (vT, vM + 4 * u, vM + 4 * u + 1, vM + 4 * u + 2),
                    'v_max_u32 v%d, v%d, v%d' % (vT, vT, vM + 4 * u + 3),
                    'v_cmp_eq_u32 vcc, -1, v%d' % vT]
        def mf(u, t6): a('v_smfmac_f32_16x16x64_bf16 %s, %s, %s, v%d' % (vr(vD + 4 * t6, 4), vr(vM + 4 * u, 4), ar((t6 * 4 + u) * 8, 8), vIdx))
        for u in range(4): ld(u)
        for x in chk(0): a(x)
        for u in range(4):
            a('s_cbranch_vccnz L_b%d_retry_%s' % (u, tag))
            a.label('L_b%d_ok_%s' % (u, tag))
            if u < 3:
                c = chk(u + 1)
                mf(u, 0); mf(u, 1); a(c[0]); a(c[1]); mf(u, 2); a(c[2]); a(c[3]); mf(u, 3); mf(u, 4); mf(u, 5)
            else:
                for t6 in range(6):
                    mf(u, t6)
                    if tail and t6 < len(tail): tail[t6]()
        a('s_branch L_loop_%s' % tag)
        def stubs():
            for u in range(4):
                a.label('L_b%d_retry_%s' % (u, tag))
                s.count(11)
                a('s_sub_u32 s%d, s%d, 1' % (sTmo, sTmo))
                a('s_cbranch_scc1 L_chain_fail')
                for uu in range(u, 4): ld(uu)
                for x in chk(u): a(x)
                a('s_cbranch_vccnz L_b%d_retry_%s' % (u, tag))
                a('s_branch L_b%d_ok_%s' % (u, tag))
        return stubs
    def s1unit(s, u, base=vM):
        for t6 in range(6):
            s.a('v_smfmac_f32_16x16x64_bf16 %s, %s, %s, v%d' % (vr(vD + 4 * t6, 4), vr(base + 4 * u, 4), ar((t6 * 4 + u) * 8, 8), vIdx))
    def ux(s, hooks=None):
        a = s.a
        hooks = hooks or {}
        seq = [(hl, tau, t) for hl in range(2) for tau in range(2) for t in range(4)]
        def rd(i):
            hl, tau, t = seq[i]
            a('ds_read_b128 %s, v%d offset:%d' % (vr(vM + 4 * (i % 8), 4), vVX, hl * 8192 + tau * 4096 + t * 1024))
        for i in range(6): rd(i)
        def cvt(gi, tt, h):
            hl, tau = gi // 2, gi % 2
            d = vD + 16 * (gi % 2) + 4 * tt
            u = vU + 16 * tt + 8 * hl + 2 * tau
            a('v_cvt_pk_bf16_f32 v%d, v%d, v%d' % (u + h, d + 2 * h, d + 2 * h + 1))
        n = 0
        for i, (hl, tau, t) in enumerate(seq):
            if i + 6 < 16: rd(i + 6)
            a('s_waitcnt lgkmcnt(%d)' % min(6, 15 - i))
            gi = i // 4
            for tt in range(4):
                if n in hooks: hooks[n]()
                n += 1
                d = vD + 16 * (gi % 2) + 4 * tt
                if s.opt.get('noux') and hooks: a('s_nop 3')
                else: a('v_mfma_f32_16x16x32_bf16 %s, %s, %s, %s' % (vr(d, 4), vr(vM + 4 * (i % 8), 4), wo(tt, 16 * hl + 4 * t, 4), '0' if t == 0 else vr(d, 4)))
                if gi > 0 and t >= 2: cvt(gi - 1, tt, t - 2)
        for tt in range(4):
            for h in range(2): cvt(3, tt, h)
        a('v_xor_b32 v%d, 0x4000, v%d' % (vVX, vVX))
    def dma_kv(s, sSeg, wsbase, lds):
        a = s.a
        a('s_lshl_b32 s%d, s%d, 18' % (sT0, sSeg))
        a('s_add_u32 s%d, s%d, s%d' % (sT0, sT0, sKVoff))
        a('s_and_b32 s%d, s%d, 1' % (sT1, sW))
        a('s_lshl_b32 s%d, s%d, 13' % (sT1, sT1))
        a('s_add_u32 s%d, s%d, %s' % (sT1, sT1, lds))
        for tau in range(2):
            a('s_add_u32 s%d, s%d, 0x%x' % (sT0, sT0, wsbase if tau == 0 else 131072))
            a('s_add_u32 m0, s%d, %d' % (sT1, tau * 4096))
            for t in range(4): s.dma(sT0, t * 1024)
    def bits(s, dst, terms, init=None):
        a = s.a
        first = init is None
        if not first: a('v_mov_b32 v%d, %s' % (dst, init))
        for (src, n, sh) in terms:
            a('v_bfe_u32 v%d, v0, %d, %d' % (vT + 11, src, n))
            if first: a('v_lshlrev_b32 v%d, %d, v%d' % (dst, sh, vT + 11)); first = False
            else: a('v_lshl_add_u32 v%d, v%d, %d, v%d' % (dst, vT + 11, sh, dst))
    def init(s):
        a = s.a
        a('s_and_b32 s%d, s2, 7' % sX)
        a('s_lshr_b32 s%d, s2, 3' % sC)
        a('s_and_b32 s%d, s%d, 7' % (sJ, sC))
        a('s_lshr_b32 s%d, s%d, 3' % (sG, sC))
        a('s_mul_i32 s%d, s%d, %d' % (sT0, sX, 16 // s.NX))
        a('s_add_u32 s%d, s%d, s%d' % (sG, sG, sT0))
        a('v_lshrrev_b32 v%d, 6, v0' % vT)
        a('v_readfirstlane_b32 s%d, v%d' % (sW, vT))
        a('v_and_b32 v0, 63, v0')
        vA, vB = vT + 8, vT + 9
        a('s_bitcmp1_b32 s%d, 1' % sJ)
        a('s_cselect_b64 s[%d:%d], s[%d:%d], s[%d:%d]' % (sP, sP + 1, S_WK, S_WK + 1, S_WQ, S_WQ + 1))
        a('s_mov_b32 s%d, 0x%x' % (sP + 2, 8 * MB)); a('s_mov_b32 s%d, 0x20000' % (sP + 3))
        s.bits(vA, [(3, 3, 13), (0, 3, 4)])
        a('s_lshl_b32 s%d, s%d, 9' % (sA, sG))
        a('s_lshl_b32 s%d, s%d, 21' % (sT0, sW))
        a('s_add_u32 s%d, s%d, s%d' % (sA, sA, sT0))
        a('s_lshr_b32 s%d, s%d, 2' % (sT0, sJ))
        a('s_lshl_b32 s%d, s%d, 8' % (sT0, sT0))
        a('s_and_b32 s%d, s%d, 1' % (sT1, sJ))
        a('s_lshl_b32 s%d, s%d, 7' % (sT1, sT1))
        a('s_add_u32 s%d, s%d, s%d' % (sT0, sT0, sT1))
        a('s_add_u32 s%d, s%d, s%d' % (sT0, sT0, sA))
        a('s_lshl_b32 s%d, s%d, 15' % (sT1, sW))
        s.early0()
        for i in range(32):
            a('s_add_u32 m0, s%d, %d' % (sT1, i * 1024))
            a('buffer_load_dwordx4 v%d, s[%d:%d], s%d offen lds' % (vA, sP, sP + 3, sT0))
            a('s_add_u32 s%d, s%d, 0x10000' % (sT0, sT0))
        s.early1()
        a('s_xor_b32 s%d, s%d, 4' % (sB, sJ))
        a('s_lshl_b32 s%d, s%d, 6' % (sT0, sB))
        a('s_add_u32 s%d, s%d, s%d' % (sT0, sT0, sA))
        s.bits(vA, [(2, 4, 13), (0, 2, 4)])
        for i in range(16):
            a('buffer_load_dwordx4 %s, v%d, s[%d:%d], s%d offen' % (vr(64 + 4 * i, 4), vA, S_WV, S_WV + 3, sT0))
            a('s_add_u32 s%d, s%d, 0x20000' % (sT0, sT0))
        a('s_lshl_b32 s%d, s%d, 8' % (sT0, sJ))
        s.bits(vA, [(4, 2, 11), (0, 4, 4)], 's%d' % sT0)
        a('s_lshl_b32 s%d, s%d, 19' % (sT0, sG))
        a('s_lshl_b32 s%d, s%d, 17' % (sT1, sW))
        a('s_add_u32 s%d, s%d, s%d' % (sT0, sT0, sT1))
        for i in range(14):
            a('buffer_load_dwordx4 %s, v%d, s[%d:%d], s%d offen%s' % (vr(128 + 4 * i, 4), vA, S_WO, S_WO + 3, sT0, s.nt(S_WO)))
            a('s_add_u32 s%d, s%d, 8192' % (sT0, sT0))
        a('s_mov_b32 s%d, s%d' % (sH, sT0))
        a('s_mov_b32 s%d, 0x%x' % (sTmo, 400000))
        for i in range(2): a('s_mov_b32 s%d, 0x%x' % (sScale + i, f2u(math.log2(math.e) / math.sqrt(128))))
        for i in range(2): a('s_mov_b32 s%d, 0xcccccccc' % (sHiMask + i))
        for i in range(2): a('s_mov_b32 s%d, 0x00ff00ff' % (sStMask + i))
        a('v_lshlrev_b32 v%d, 4, v0' % vL16)
        a('v_lshlrev_b32 v%d, 2, v0' % vL4)
        for i in range(4): a('v_mov_b32 v%d, -1' % (vSent + i))
        a('v_mov_b32 v%d, 0x4444' % vT)
        a('v_mov_b32 v%d, 0xeeee' % (vT + 1))
        a('v_cndmask_b32 v%d, v%d, v%d, s[%d:%d]' % (vIdx, vT, vT + 1, sHiMask, sHiMask + 1))
        s.bits(vGate, [(0, 6, 7)])
        s.bits(vRed, [(4, 2, 12), (0, 4, 4)])
        s.bits(vMld, [(2, 2, 8), (4, 2, 6), (0, 2, 4)])
        a('s_mul_i32 s%d, s%d, %d' % (sT0, sW, R_W))
        s.bits(vRw, [(0, 4, 3), (4, 2, 7), (4, 2, 6)], 's%d' % sT0)
        a('s_lshr_b32 s%d, s%d, 1' % (sT0, sW))
        a('s_mul_i32 s%d, s%d, %d' % (sT0, sT0, 2 * R_T))
        a('s_and_b32 s%d, s%d, 1' % (sT1, sW))
        a('s_lshl_b32 s%d, s%d, 6' % (sT1, sT1))
        a('s_add_u32 s%d, s%d, s%d' % (sT0, sT0, sT1))
        s.bits(vRr, [(0, 1, 9), (0, 1, 8), (0, 1, 3), (4, 2, 7), (4, 2, 6), (1, 1, 5), (3, 1, 4), (2, 1, 2)], 's%d' % sT0)
        a('v_add_u32 v%d, 8, v%d' % (vRr2, vRr))
        a('v_bfe_u32 v%d, v0, 2, 1' % vT)
        a('v_lshlrev_b32 v%d, 4, v%d' % (vT, vT))
        a('v_mov_b32 v%d, 0x3f80' % (vT + 1))
        a('v_lshlrev_b32 v%d, v%d, v%d' % (vT, vT, vT + 1))
        a('v_bfe_u32 v%d, v0, 0, 2' % (vT + 1))
        for k in range(4):
            a('v_cmp_eq_u32 vcc, %d, v%d' % (k, vT + 1))
            a('v_cndmask_b32 v%d, 0, v%d, vcc' % (vSel + k, vT))
        a('s_and_b32 s%d, s%d, 1' % (sT3, sW))
        a('s_lshl_b32 s%d, s%d, 10' % (sT0, sT3))
        a('s_add_u32 s%d, s%d, %d' % (sT0, sT0, L_P))
        a('v_add_u32 v%d, s%d, v%d' % (vPw, sT0, vL4))
        s.bits(vPw2, [(2, 4, 4), (0, 1, 3), (1, 1, 2)], 's%d' % sT0)
        lh = a.newlabel('Li')
        a('s_cmp_lt_u32 s%d, 2' % sW)
        a('s_cbranch_scc1 %s' % lh)
        s.bits(vPw, [(5, 1, 9), (3, 1, 8), (0, 2, 6), (4, 1, 5), (2, 1, 3)], str(L_P))
        a('v_add_u32 v%d, %d, v%d' % (vPw2, 2 * R_T, vRr))
        a('v_add_u32 v%d, %d, v%d' % (vRed, 2 * R_T + 8, vRr))
        a.label(lh)
        a('s_lshl_b32 s%d, s%d, 13' % (sT0, sT3))
        a('s_add_u32 s%d, s%d, %d' % (sT0, sT0, L_KX))
        a('s_mov_b32 s%d, s%d' % (sLdsC, sT0))
        s.bits(vKX, [(2, 4, 6), (0, 1, 5), (1, 1, 4)], 's%d' % sT0)
        a('v_add_u32 v%d, %d, v%d' % (vVX, L_VX, vL16))
        a('s_mul_i32 s%d, s%d, %d' % (sCld, sG, QKV_G))
        a('s_add_u32 s%d, s%d, 0x%x' % (sCld, sCld, WS_QKV))
        a('s_lshl_b32 s%d, s%d, 10' % (sT0, sJ))
        a('s_lshl_b32 s%d, s%d, 8' % (sT1, sW))
        a('s_add_u32 s%d, s%d, s%d' % (sT0, sT0, sT1))
        a('s_add_u32 s%d, s%d, s%d' % (sQKst, sCld, sT0))
        a('s_lshl_b32 s%d, s%d, 13' % (sT2, sG))
        a('s_add_u32 s%d, s%d, 0x%x' % (sT2, sT2, WS_KVM))
        a('s_add_u32 s%d, s%d, s%d' % (sKst, sT2, sT0))
        a('s_sub_u32 s%d, s%d, 2048' % (sKst, sKst))
        a('s_bitcmp1_b32 s%d, 1' % sJ)
        a('s_cselect_b32 s%d, s%d, 0x%x' % (sKst, sKst, WS_DUMP))
        a('s_lshl_b32 s%d, s%d, 9' % (sT0, sB))
        a('s_lshl_b32 s%d, s%d, 8' % (sT1, sT3))
        a('s_add_u32 s%d, s%d, s%d' % (sT0, sT0, sT1))
        a('s_add_u32 s%d, s%d, s%d' % (sVst, sCld, sT0))
        a('s_add_u32 s%d, s%d, 8192' % (sVst, sVst))
        a('s_and_b32 s%d, s%d, 2048' % (sT1, sT0))
        a('s_add_u32 s%d, s%d, s%d' % (sT0, sT0, sT1))
        a('s_add_u32 s%d, s%d, s%d' % (sKVMst, sT2, sT0))
        a('s_min_u32 s%d, s%d, 2' % (sT0, sW))
        a('s_lshl_b32 s%d, s%d, 12' % (sT0, sT0))
        a('s_add_u32 s%d, s%d, s%d' % (sCld, sCld, sT0))
        a('s_lshl_b32 s%d, s%d, 1' % (sT0, sJ))
        a('s_add_u32 s%d, s%d, s%d' % (sT0, sT0, sT3))
        a('s_lshl_b32 s%d, s%d, 14' % (sT0, sT0))
        a('s_lshl_b32 s%d, s%d, 10' % (sT1, sG))
        a('s_add_u32 s%d, s%d, s%d' % (sPARTst, sT0, sT1))
        a('s_add_u32 s%d, s%d, 0x%x' % (sPARTst, sPARTst, WS_PART))
        a('s_lshl_b32 s%d, s%d, 1' % (sT0, sC))
        a('s_add_u32 s%d, s%d, s%d' % (sT0, sT0, sT3))
        a('s_mul_i32 s%d, s%d, %d' % (sT0, sT0, s.NP))
        if s.NP == 2: a('v_lshlrev_b32 v%d, 3, v0' % vMst)
        a('s_lshr_b32 s%d, s%d, 2' % (sT1, sT0))
        a('s_lshl_b32 s%d, s%d, 14' % (sREDld, sT1))
        a('s_and_b32 s%d, s%d, 3' % (sT1, sT0))
        a('s_lshl_b32 s%d, s%d, 8' % (sT1, sT1))
        a('s_add_u32 s%d, s%d, s%d' % (sREDld, sREDld, sT1))
        a('s_add_u32 s%d, s%d, 0x%x' % (sREDld, sREDld, WS_PART))
        a('s_lshl_b32 s%d, s%d, 14' % (sMTld, sX))
        a('s_add_u32 s%d, s%d, 0x%x' % (sMTld, sMTld, WS_MT))
        a('s_lshl_b32 s%d, s%d, 8' % (sT0, sT0))
        a('s_add_u32 s%d, s%d, s%d' % (sMTst, sMTld, sT0))
        a('s_lshl_b32 s%d, s%d, 12' % (sT0, sW))
        a('s_add_u32 s%d, s%d, s%d' % (sMTld, sMTld, sT0))
        a('s_lshl_b32 s%d, s%d, 1' % (sKVoff, sG))
        a('s_add_u32 s%d, s%d, s%d' % (sKVoff, sKVoff, sT3))
        a('s_lshl_b32 s%d, s%d, 12' % (sKVoff, sKVoff))
        a('s_and_b32 s%d, s%d, 1' % (sT0, sJ))
        a('s_lshl_b32 s%d, s%d, 12' % (sT0, sT0))
        a('s_lshl_b32 s%d, s%d, 13' % (sWarm, sG))
        a('s_add_u32 s%d, s%d, s%d' % (sWarm, sWarm, sT0))
        a('s_bfe_u32 s%d, s%d, 0x10001' % (sT0, sJ))
        a('s_lshl_b32 s%d, s%d, 17' % (sT0, sT0))
        a('s_add_u32 s%d, s%d, s%d' % (sWarm, sWarm, sT0))
        a('s_lshr_b32 s%d, s%d, 2' % (sT0, sJ))
        a('s_mul_i32 s%d, s%d, 0x%x' % (sT0, sT0, WS_VF - WS_KF + 262144))
        a('s_add_u32 s%d, s%d, s%d' % (sWarm, sWarm, sT0))
        a('s_add_u32 s%d, s%d, 0x%x' % (sWarm, sWarm, WS_KF + 2 * 262144))
        a('s_lshl_b32 s%d, s%d, 11' % (sT0, sT3))
        a('s_add_u32 s%d, s%d, s%d' % (sWarm, sWarm, sT0))
        a('s_lshl_b32 s%d, s%d, 15' % (sT0, sW))
        s.bits(vB, [(0, 2, 3), (4, 1, 11), (5, 1, 8), (2, 2, 6)], 's%d' % sT0)
        s.bits(vT + 10, [(0, 2, 3), (4, 1, 12), (5, 1, 9), (2, 2, 7)], 's%d' % sT0)
        a('v_add_u32 v%d, s%d, v%d' % (vT + 7, sT0, vL16))
        def tr_w1(vaddr, t0, nt, rowb, Tls=range(4)):
            for Tl in Tls:
                for tl in range(nt):
                    for v in range(4):
                        a('ds_read_b64_tr_b16 %s, v%d offset:%d' % (ar(((t0 + tl) * 4 + Tl) * 8 + 2 * v, 2), vaddr, (Tl * 64 + 8 * (v // 2) + 16 * (v % 2)) * rowb + tl * 32))
                    a('s_waitcnt lgkmcnt(4)')
            a('s_waitcnt lgkmcnt(0)')
        s.mark(5)
        a('s_waitcnt vmcnt(46)')
        s.mark(6)
        for i in range(14, 16):
            a('buffer_load_dwordx4 %s, v%d, s[%d:%d], s%d offen%s' % (vr(128 + 4 * i, 4), vA, S_WO, S_WO + 3, sH, s.nt(S_WO)))
            a('s_add_u32 s%d, s%d, 8192' % (sH, sH))
        for slot in range(4):
            a('s_add_u32 s%d, s%d, 0x%x' % (sT0, sQKst, slot * QKV_SLOT)); s.st(vSent, vL4, sT0)
            a('s_add_u32 s%d, s%d, 0x%x' % (sT0, sVst, slot * QKV_SLOT)); s.st(vSent, vL4, sT0)
            if slot < 2:
                a('s_add_u32 s%d, s%d, 0x%x' % (sT0, sPARTst, slot * PART_SLOT)); s.st(vSent, vL16, sT0, n=4)
            a('s_add_u32 s%d, s%d, 0x%x' % (sT0, sMTst, slot * MT_SLOT)); s.st(vSent, vL4 if s.NP == 1 else vMst, sT0, n=s.NP)
        tr_w1(vT + 10, 0, 4, 128, (0, 1))
        a('s_waitcnt vmcnt(46)')
        tr_w1(vT + 10, 0, 4, 128, (2, 3))
        a('s_waitcnt vmcnt(30)')
        for i in range(16):
            a('ds_write_b128 v%d, %s offset:%d' % (vT + 7, vr(64 + 4 * i, 4), i * 1024))
            if i % 8 == 7: a('s_waitcnt lgkmcnt(0)')
        tr_w1(vB, 4, 2, 64)
        a('s_waitcnt vmcnt(14)')
        s.mark(7)
        for i in range(16):
            a('ds_write_b128 v%d, %s offset:%d' % (vT + 7, vr(128 + 4 * i, 4), 16384 + i * 1024))
            if i % 8 == 7: a('s_waitcnt lgkmcnt(0)')
        a('s_waitcnt vmcnt(0)')
        a('s_barrier')
        lskip = a.newlabel('Lann')
        a('s_getreg_b32 s%d, hwreg(HW_REG_XCC_ID)' % sT0)
        a('s_and_b32 s%d, s%d, 15' % (sT0, sT0))
        a('s_mul_i32 s%d, s%d, s%d' % (sT1, sT0, sT0))
        a('s_lshl_b32 s%d, s%d, 18' % (sT1, sT1))
        a('s_lshl_b32 s%d, s%d, 8' % (sT0, sT0))
        a('s_add_u32 s%d, s%d, s%d' % (sT0, sT0, sT1))
        a('s_add_u32 s%d, s%d, 1' % (sLocal, sT0))
        a('s_cmp_eq_u32 s%d, 0' % sW)
        a('s_cbranch_scc0 %s' % lskip)
        a('s_lshl_b32 s%d, s%d, 2' % (sT1, sX))
        a('v_mov_b32 v%d, s%d' % (vT + 6, sLocal))
        a('s_mov_b64 exec, 1')
        a('buffer_atomic_add v%d, off, s[%d:%d], s%d offset:16 sc1' % (vT + 6, S_DBG, S_DBG + 3, sT1))
        a('s_mov_b64 exec, -1')
        a.label(lskip)
        lj = a.newlabel('Li')
        a('s_cmp_lt_u32 s%d, 2' % sW)
        a('s_cbranch_scc1 %s' % lj)
        a('s_lshl_b32 s%d, s%d, 7' % (sT0, sT3))
        a('s_add_u32 s%d, s%d, 16384' % (sT0, sT0))
        s.bits(vB, [(2, 4, 8), (0, 2, 3)], 's%d' % sT0)
        a('v_add_u32 v%d, 0x10000, v%d' % (vB + 1, vB))
        for tt in range(4):
            for hl in range(2):
                for t in range(4):
                    for v2 in range(2):
                        a('ds_read_b64_tr_b16 %s, v%d offset:%d' % (wo(tt, 16 * hl + 4 * t + 2 * v2, 2), vB + hl, (t // 2) * 32768 + (32 * (t % 2) + 16 * v2) * 256 + tt * 32))
                a('s_waitcnt lgkmcnt(0)')
        for i in range(8):
            a('v_mov_b32 v%d, 0' % (vU + 8 * i + 6)); a('v_mov_b32 v%d, 0' % (vU + 8 * i + 7))
        a.label(lj)
        a('s_barrier')
        a('s_lshl_b32 s%d, s%d, 9' % (sT0, sW))
        s.bits(vA, [(2, 2, 12), (0, 1, 11), (4, 2, 3), (1, 1, 2)], 's%d' % sT0)
        for u in range(4):
            for p in range(4):
                a('buffer_load_dword v%d, v%d, s[%d:%d], 0 offen offset:%d' % (vF + 4 * u + p, vA, S_M0, S_M0 + 3, u * 128 + p * 32))
        lw, lok = a.newlabel('Lw'), a.newlabel('Lw')
        a('v_and_b32 v%d, %d, v%d' % (vT + 1, 4 * s.NX - 4, vL4))
        a.label(lw)
        a('buffer_load_dword v%d, v%d, s[%d:%d], 0 offen offset:16 sc1' % (vT, vT + 1, S_DBG, S_DBG + 3))
        a('s_waitcnt vmcnt(0)')
        a('v_and_b32 v%d, 0xff, v%d' % (vT + 2, vT))
        a('v_cmp_ne_u32 vcc, %d, v%d' % (128 // s.NX, vT + 2))
        a('s_cbranch_vccz %s' % lok)
        a('s_sleep 8')
        s.tmo(lw)
        a.label(lok)
        a('v_readlane_b32 s%d, v%d, s%d' % (sT0, vT, sX))
        a('s_mul_i32 s%d, s%d, %d' % (sLocal, sLocal, 128 // s.NX))
        a('s_cmp_eq_u32 s%d, s%d' % (sT0, sLocal))
        a('s_cselect_b32 s%d, 1, 0' % sLocal)
        s.kv_wait_init()
        a('s_mov_b32 s%d, 0' % sStep)
        lh, lj = a.newlabel('Li'), a.newlabel('Li')
        a('s_cmp_ge_u32 s%d, 2' % sW)
        a('s_cbranch_scc1 %s' % lh)
        s.dma_kv(sStep, WS_KF, str(L_KX))
        a('s_mov_b32 s%d, 1' % sT2)
        s.dma_kv(sT2, WS_VF, str(L_VX + 16384))
        a('v_mov_b32 v%d, 0' % vT)
        a('ds_write_b32 v%d, v%d offset:768' % (vPw, vT))
        a('s_branch %s' % lj)
        a.label(lh)
        s.dma_kv(sStep, WS_VF, str(L_VX))
        a.label(lj)
        a('s_waitcnt vmcnt(0) lgkmcnt(0)')
        a('s_barrier')
        lj = a.newlabel('Li')
        a('s_cmp_lt_u32 s%d, 2' % sW)
        a('s_cbranch_scc1 %s' % lj)
        s.ux()
        a.label(lj)
        s.prep_stage1()
        for u in range(4): s.s1unit(u, vF)
        s.mark(1)
        if s.opt.get('tot', True):
            a('s_memrealtime s[98:99]')
            a('s_memtime s[82:83]')
            a('s_waitcnt lgkmcnt(0)')
        if s.prof:
            for i in range(16): a('s_mov_b32 s%d, 0' % (sAcc + i))
            a('s_memtime s[%d:%d]' % (sTS, sTS + 1)); a('s_waitcnt lgkmcnt(0)'); a('s_mov_b32 s%d, s%d' % (sPrev, sTS))
    def slot(s, dst, base, mul, rst=False):
        a = s.a
        a('s_and_b32 s%d, s%d, 3' % (dst, sStep))
        if rst: a('s_xor_b32 s%d, s%d, 2' % (dst, dst))
        a('s_mul_i32 s%d, s%d, %d' % (dst, dst, mul))
        a('s_add_u32 s%d, s%d, s%d' % (dst, dst, base))
    def prep_stage1(s):
        a = s.a
        s.slot(sA, sQKst, QKV_SLOT); s.slot(sB, sVst, QKV_SLOT); s.slot(sCc, sCld, QKV_SLOT)
        s.zero(range(vD, vD + 24))
    def s1finish(s, second):
        a = s.a
        s.stamp(9 if s.opt.get('trace') else 12)
        for t6 in range(6):
            s.halfsum(vD + 4 * t6)
            a('ds_write_b64 v%d, %s offset:%d' % (vRw, vr(vD + 4 * t6, 2), L_R + t6 * R_T))
        a('s_waitcnt lgkmcnt(0)')
        s.stamp(6)
        a('s_barrier')
        s.stamp(7)
        tiles = [(vRr, vRr2, vM + 16, vT + 10, sA)] + ([(vPw2, vRed, vM + 24, vT + 11, sB)] if second else [])
        k = R_W // 256
        for a0, a1, r, o, so in tiles:
            for e, ad in enumerate((a0, a1)):
                for h in range(2):
                    a('ds_read2st64_b32 %s, v%d offset0:%d offset1:%d' % (vr(r + 4 * e + 2 * h, 2), ad, 2 * h * k, (2 * h + 1) * k))
        for n, (a0, a1, r, o, so) in enumerate(tiles):
            rem = 4 * (len(tiles) - 1 - n)
            a('s_waitcnt lgkmcnt(%d)' % (rem + 2))
            a('v_pk_add_f32 %s, %s, %s' % (vr(r, 2), vr(r, 2), vr(r + 2, 2)))
            a('v_add_f32 v%d, v%d, v%d' % (r, r, r + 1))
            a('s_waitcnt lgkmcnt(%d)' % rem)
            a('v_pk_add_f32 %s, %s, %s' % (vr(r + 4, 2), vr(r + 4, 2), vr(r + 6, 2)))
            a('v_add_f32 v%d, v%d, v%d' % (r + 4, r + 4, r + 5))
            a('v_cvt_pk_bf16_f32 v%d, v%d, v%d' % (o, r, r + 4))
            a('v_min_u32 v%d, -2, v%d' % (o, o))
            s.lst(o, vL4, so)
        s.stamp(0)
    def hopc(s, tag):
        a = s.a
        a.label('L_hopc_%s' % tag)
        for i in range(4):
            a('buffer_load_dwordx4 %s, v%d, s[%d:%d], s%d offen offset:%d sc1' % (vr(vM + 4 * i, 4), vL16, S_WS, S_WS + 3, sCc, i * 1024))
        a('s_waitcnt vmcnt(2)')
        s.maxtree(vM, 8, vT)
        a('s_waitcnt vmcnt(0)')
        s.maxtree(vM + 8, 8, vT, first=False)
        a('v_cmp_eq_u32 vcc, -1, v%d' % vT)
        a('s_cbranch_vccnz L_cretry_%s' % tag)
    def cretry(s, tag):
        s.a.label('L_cretry_%s' % tag)
        s.count(9)
        s.tmo('L_hopc_%s' % tag)
    def loop_S(s, tag):
        a = s.a
        vS = vD + 24
        vSm = vF + 4
        for i in range(8): a('v_mov_b32 v%d, 0' % (vS + i))
        a.label('L_loop_%s' % tag)
        s.s1finish(False)
        a('s_lshl_b32 s%d, s%d, 17' % (sK2, sStep))
        a('s_add_u32 s%d, s%d, s%d' % (sK2, sK2, sKst))
        a('s_cmp_eq_u32 s%d, %d' % (sStep, s.nsteps - 1))
        a('s_cbranch_scc1 L_lastk')
        A = a; buf = []
        s.a = a = buf.append
        for i in range(8): a('ds_read_b128 %s, v%d offset:%d' % (vr(vK + 4 * i, 4), vKX, i * 1024))
        a('s_min_u32 s%d, s%d, 60' % (sT2, sStep))
        a('s_lshl_b32 s%d, s%d, 18' % (sT2, sT2))
        a('s_add_u32 s%d, s%d, s%d' % (sT2, sT2, sWarm))
        a('s_lshl_b32 s%d, s%d, 18' % (sD, sStep))
        a('s_add_u32 s%d, s%d, s%d' % (sD, sD, sREDld))
        s.slot(sE, sMTst, MT_SLOT); s.slot(sH, sMTld, MT_SLOT)
        s.slot(sB, sQKst, QKV_SLOT, True); s.slot(sF, sMTst, MT_SLOT, True)
        s.zero(range(vD, vD + 24))
        s.a = a = A
        npre = s.opt.get('npre', 20)
        def cld():
            for i in range(4):
                a('buffer_load_dwordx4 %s, v%d, s[%d:%d], s%d offen offset:%d sc1' % (vr(vM + 4 * i, 4), vL16, S_WS, S_WS + 3, sCc, i * 1024))
        for y in buf[:npre]: a(y)
        s.stamp(1)
        cld()
        for y in buf[npre:]: a(y)
        a('s_waitcnt lgkmcnt(0)')
        a.label('L_hopc_%s' % tag)
        mx = lambda k, first: 'v_max3_u32 v%d, v%d, v%d, v%d' % (vT, vM + 2 * k if first else vT, vM + 2 * k, vM + 2 * k + 1)
        for T in range(2):
            a('s_waitcnt vmcnt(%d)' % (3 - T))
            for tau in range(2):
                a('v_smfmac_f32_16x16x64_bf16 %s, %s, %s, v%d' % (vr(vS + 4 * tau, 4), vr(vM + 4 * T, 4), vr(vK + 16 * tau + 8 * T, 8), vIdx))
                a(mx(2 * T + tau, T + tau == 0))
        for T in range(2):
            a('s_waitcnt vmcnt(%d)' % (1 - T))
            a('v_mfma_f32_16x16x32_bf16 %s, %s, %s, %s' % (vr(vSm, 4), vr(vM + 4 * T, 4), vr(vM + 8 + 4 * T, 4), '0' if T == 0 else vr(vSm, 4)))
            for k in range(2): a(mx(4 + 2 * T + k, False))
        a('v_cmp_eq_u32 vcc, -1, v%d' % vT)
        s.halfsum(vS, vT + 2); s.halfsum(vS + 4, vT + 4)
        a('s_cbranch_vccnz L_cretry_%s' % tag)
        s.stamp(2)
        def warm():
            a('s_mov_b64 exec, 0xffff')
            a('buffer_load_dword v%d, v%d, s[%d:%d], s%d offen sc1' % (vT + 11, vGate, S_WS, S_WS + 3, sT2))
            a('s_mov_b64 exec, -1')
        if s.opt.get('warm', 1) == 1: warm()
        x = vT + 2
        m = vT + 8
        for i in range(2): a('v_cndmask_b32 v%d, v%d, v%d, s[%d:%d]' % (x + 4 + i, vSm + i, vSm + 2 + i, sHiMask, sHiMask + 1))
        for i in range(2): a('v_add_f32_dpp v%d, v%d, v%d quad_perm:[2,3,0,1] row_mask:0xf bank_mask:0xf' % (x + 4 + i, x + 4 + i, x + 4 + i))
        def xreduce(op):
            for sh in (8, 4, 2, 1):
                for i in range(2): a('%s_dpp v%d, v%d, v%d row_ror:%d row_mask:0xf bank_mask:0xf' % (op, m + i, m + i, m + i, sh))
        for i in range(2): a('v_max3_f32 v%d, v%d, v%d, v%d' % (m + i, x + i, x + 2 + i, x + 4 + i))
        xreduce('v_max_f32')
        a('v_pk_mul_f32 %s, %s, %s' % (vr(m, 2), vr(m, 2), sr(sScale, 2)))
        for k in range(3): a('v_pk_fma_f32 %s, %s, %s, %s neg_lo:[0,0,1] neg_hi:[0,0,1]' % (vr(x + 2 * k, 2), vr(x + 2 * k, 2), sr(sScale, 2), vr(m, 2)))
        for i in range(6): a('v_exp_f32 v%d, v%d' % (x + i, x + i))
        a('v_pk_add_f32 %s, %s, %s' % (vr(m, 2), vr(x, 2), vr(x + 2, 2)))
        for i in range(2): a('v_fma_f32 v%d, v%d, 0.5, v%d' % (m + i, x + 4 + i, m + i))
        xreduce('v_add_f32')
        for i in range(2): a('v_rcp_f32 v%d, v%d' % (m + i, m + i))
        for k in range(3): a('v_pk_mul_f32 %s, %s, %s' % (vr(x + 2 * k, 2), vr(x + 2 * k, 2), vr(m, 2)))
        for k in range(3): a('v_cvt_pk_bf16_f32 v%d, v%d, v%d' % (x + 2 * k, x + 2 * k, x + 2 * k + 1))
        a('ds_write2_b32 v%d, v%d, v%d offset0:0 offset1:64' % (vPw, x, x + 2))
        a('ds_write_b32 v%d, v%d offset:512' % (vPw2, x + 4))
        a('s_waitcnt lgkmcnt(0)')
        s.stamp(3)
        a('s_barrier')
        s.stamp(4)
        a('s_add_u32 s%d, s%d, 1' % (sStep, sStep))
        s.slot(sA, sQKst, QKV_SLOT); s.slot(sCc, sCld, QKV_SLOT)
        s.zero(range(vS, vS + 8))
        a('v_xor_b32 v%d, 0x4000, v%d' % (vKX, vKX))
        tail = None
        if s.opt.get('warm', 1) == 2: warm()
        s.st(vT + 10, vL4, sK2)
        s.lst(vSent, vL4, sB); s.lst(vSent, vL4 if s.NP == 1 else vMst, sF, n=s.NP)
        a('s_barrier')
        s.delay('adelay')
        s.stamp(8)
        r = vF
        a.label('L_hopa_%s' % tag)
        NP = s.NP
        r = vF + 8
        for i in range(4 * NP):
            a('buffer_load_dwordx4 %s, v%d, s[%d:%d], s%d offen offset:%d sc1' % (vr(vM + 4 * i, 4), vRed, S_WS, S_WS + 3, sD, (i // NP) * 1024 + (i % NP) * 256))
        a('s_mov_b64 exec, -1')
        for i in range(4 * NP):
            a('s_waitcnt vmcnt(%d)' % (4 * NP - 1 - i))
            rr = vr(r + 4 * (i % NP), 4)
            a('v_mfma_f32_16x16x32_bf16 %s, %s, %s, %s' % (rr, vr(vM + 4 * i, 4), vr(vSel, 4), '0' if i < NP else rr))
        a('v_pk_add_f32 %s, %s, %s' % (vr(vT, 2), vr(r, 2), vr(r + 2, 2)))
        if NP == 2:
            a('v_pk_add_f32 %s, %s, %s' % (vr(vT, 2), vr(vT, 2), vr(r + 4, 2)))
            a('v_pk_add_f32 %s, %s, %s' % (vr(vT, 2), vr(vT, 2), vr(r + 6, 2)))
        for k in range(NP):
            for h in range(2): a('v_cvt_pk_bf16_f32 v%d, v%d, v%d' % (r + 4 * k + h, r + 4 * k + 2 * h, r + 4 * k + 2 * h + 1))
        a('v_cmp_u_f32 vcc, v%d, v%d' % (vT, vT + 1))
        for k in range(NP):
            a('v_cndmask_b32 v%d, v%d, v%d, s[%d:%d]' % (r + 4 * k, r + 4 * k + 1, r + 4 * k, sStMask, sStMask + 1))
            a('v_min_u32 v%d, -2, v%d' % (r + 4 * k, r + 4 * k))
        a('s_cbranch_vccnz L_aslow_%s' % tag)
        a.label('L_aok_%s' % tag)
        for k in range(NP): s.lst(r + 4 * k, vL4, sE, 256 * k)
        s.stamp(5)
        if s.opt.get('b4'): a('s_barrier')
        s.delay('b4delay')
        stubs = s.hopb_s1(tag, tail)
        stubs()
        a.label('L_aslow_%s' % tag)
        s.maxtree(vM, 16 * NP, vT + 1)
        a('v_cmp_eq_u32 vcc, -1, v%d' % (vT + 1))
        a('s_cbranch_vccz L_aok_%s' % tag)
        a('s_mov_b64 exec, vcc')
        s.count(10)
        s.tmo('L_hopa_%s' % tag)
        a.label('L_cretry_%s' % tag)
        cld()
        s.zero(range(vS, vS + 8))
        s.count(9)
        s.tmo('L_hopc_%s' % tag)
    def um(s):
        a = s.a
        def cvt(hl, tt):
            d = vD + 16 * hl + 4 * tt
            a('v_cvt_pk_bf16_f32 v%d, v%d, v%d' % (vU + 16 * tt + 8 * hl + 4, d, d + 1))
            a('v_cvt_pk_bf16_f32 v%d, v%d, v%d' % (vU + 16 * tt + 8 * hl + 5, d + 2, d + 3))
        n = 0
        for hl in range(2):
            for T in range(2):
                indma = s.opt.get('dmapos', 'um') == 'um'
                if indma: a('s_mov_b32 m0, s%d' % (sP + 4 + n))
                for tt in range(4):
                    a('v_smfmac_f32_16x16x64_bf16 %s, %s, %s, v%d' % (vr(vD + 16 * hl + 4 * tt, 4), vr(vM + 8 * hl + 4 * T, 4), wo(tt, 16 * hl + 8 * T, 8), vIdx))
                    if indma: s.dma(sP + n, tt * 1024)
                    if hl == 1 and T == 1: cvt(0, tt)
                n += 1
        for tt in range(4): cvt(1, tt)
    def kv_addr(s):
        a = s.a
        a('s_add_u32 s%d, s%d, 1' % (sT0, sStep))
        a('s_lshl_b32 s%d, s%d, 18' % (sP, sT0))
        a('s_add_u32 s%d, s%d, s%d' % (sP, sP, sKVoff))
        if WS_KF: a('s_add_u32 s%d, s%d, 0x%x' % (sP, sP, WS_KF))
        a('s_add_u32 s%d, s%d, 0x20000' % (sP + 1, sP))
        a('s_and_b32 s%d, s%d, 1' % (sT0, sT0))
        a('s_lshl_b32 s%d, s%d, 14' % (sT0, sT0))
        a('s_add_u32 s%d, s%d, s%d' % (sP + 4, sT0, sLdsC))
        a('s_add_u32 s%d, s%d, 4096' % (sP + 5, sP + 4))
        a('s_xor_b32 s%d, s%d, 0x4000' % (sP + 6, sP + 4))
        a('s_add_u32 s%d, s%d, %d' % (sP + 6, sP + 6, L_VX - L_KX))
        a('s_add_u32 s%d, s%d, 4096' % (sP + 7, sP + 6))
        a('s_add_u32 s%d, s%d, 2' % (sT0, sStep))
        a('s_min_u32 s%d, s%d, 63' % (sT0, sT0))
        a('s_lshl_b32 s%d, s%d, 18' % (sP + 2, sT0))
        a('s_add_u32 s%d, s%d, s%d' % (sP + 2, sP + 2, sKVoff))
        a('s_add_u32 s%d, s%d, 0x%x' % (sP + 2, sP + 2, WS_VF))
        a('s_add_u32 s%d, s%d, 0x20000' % (sP + 3, sP + 2))
    def loop_H(s, tag):
        a = s.a
        vO = vT + 2
        zs = [vD + i for i in range(32)] + [vF + i for i in range(16)]
        for z in zs[24:]: a('v_mov_b32 v%d, 0' % z)
        s.kv_addr()
        a.label('L_loop_%s' % tag)
        s.s1finish(True)
        a('s_lshl_b32 s%d, s%d, 17' % (sF, sStep))
        a('s_add_u32 s%d, s%d, s%d' % (sK2, sF, sKst))
        a('s_add_u32 s%d, s%d, s%d' % (sF, sF, sKVMst))
        a('s_cmp_eq_u32 s%d, %d' % (sStep, s.nsteps - 1))
        a('s_cbranch_scc1 L_last_%s' % tag)
        a('s_lshl_b32 s%d, s%d, 18' % (sD, sStep))
        a('s_add_u32 s%d, s%d, s%d' % (sD, sD, sPARTst))
        s.slot(sH, sMTld, MT_SLOT)
        s.zero(zs[:24])
        s.delay('hdelay')
        s.stamp(1)
        s.hopc(tag)
        s.stamp(2)
        s.um()
        s.stamp(3)
        a('s_barrier')
        s.stamp(4)
        for hl in range(2):
            for u in range(2):
                a('ds_read_b64_tr_b16 %s, v%d offset:%d' % (vr(vM + 4 * hl + 2 * u, 2), vPw, hl * 1024 + u * 16))
        for hl in range(2):
            a('s_waitcnt lgkmcnt(%d)' % (2 - 2 * hl))
            for tt in range(4):
                a('v_smfmac_f32_16x16x64_bf16 %s, %s, %s, v%d' % (vr(vF + 4 * tt, 4), vr(vM + 4 * hl, 4), vr(vU + 16 * tt + 8 * hl, 8), vIdx))
        for tt in range(4):
            s.halfsum(vF + 4 * tt)
            a('v_cvt_pk_bf16_f32 v%d, v%d, v%d' % (vO + tt, vF + 4 * tt, vF + 4 * tt + 1))
            a('v_min_u32 v%d, -2, v%d' % (vO + tt, vO + tt))
        s.st(vO, vL16, sD, n=4)
        s.stamp(5)
        def late():
            s.st(vT + 10, vL4, sK2)
            s.st(vT + 11, vL4, sF, 2048)
            s.slot(sT0, sQKst, QKV_SLOT, True); s.lst(vSent, vL4, sT0)
            s.slot(sT0, sVst, QKV_SLOT, True); s.lst(vSent, vL4, sT0)
            a('s_add_u32 s%d, s%d, 0x%x' % (sD, sD, 2 * PART_SLOT))
            s.st(vSent, vL16, sD, n=4)
        def nxt():
            a('s_add_u32 s%d, s%d, 1' % (sStep, sStep))
            s.slot(sA, sQKst, QKV_SLOT); s.slot(sB, sVst, QKV_SLOT); s.slot(sCc, sCld, QKV_SLOT)
            s.kv_addr()
            s.kv_wait_loop()
        tail = None
        if s.opt.get('latetail'):
            def late():
                s.slot(sT2, sQKst, QKV_SLOT, True); s.slot(sT3, sVst, QKV_SLOT, True)
                a('s_add_u32 s%d, s%d, 0x%x' % (sD, sD, 2 * PART_SLOT))
            tail = [lambda: s.st(vSent, vL16, sD, n=4), lambda: s.st(vT + 10, vL4, sF), lambda: s.st(vT + 11, vL4, sF, 2048),
                    lambda: s.lst(vSent, vL4, sT2), lambda: s.lst(vSent, vL4, sT3)]
        hooks = {s.opt.get('latepos', 36): late, 48: nxt, s.opt.get('b3pos', 12): lambda: a('s_barrier')}
        def addhook(pos, f):
            old = hooks.get(pos)
            hooks[pos] = (lambda: (old(), f())) if old else f
        for k in range(8): addhook(52 + k, (lambda k=k: s.zero(range(vF + 2 * k, vF + 2 * k + 2))))
        if s.opt.get('dmapos', 'um') not in ('um', 'none'):
            d0 = s.opt['dmapos']
            def dm(k):
                if k % 4 == 0:
                    a('s_mov_b32 m0, s%d' % (sP + 4 + k // 4))
                s.dma(sP + k // 4, (k % 4) * 1024)
            for k in range(16): addhook(d0 + k, (lambda k=k: dm(k)))
        s.ux(hooks)
        s.zero(range(vD, vD + 32))
        s.stamp(8)
        if s.opt.get('b4'): a('s_barrier')
        s.delay('b4delay')
        stubs = s.hopb_s1(tag, tail)
        stubs()
        s.cretry(tag)
        a.label('L_last_%s' % tag)
        s.st(vT + 11, vL4, sF, 2048)
        a('s_branch L_lastk')
    def emit(s):
        a = s.a
        s.init()
        a('s_cmp_eq_u32 s%d, 1' % sLocal)
        a('s_cbranch_scc0 L_remote')
        for local in (True, False):
            s.local = local
            t = 'l' if local else 'r'
            if not local: a.label('L_remote')
            a('s_cmp_ge_u32 s%d, 2' % sW)
            a('s_cbranch_scc1 L_H%s' % t)
            s.loop_S('S' + t)
            a.label('L_H%s' % t)
            s.loop_H('H' + t)
        a.label('L_lastk')
        s.st(vT + 10, vL4, sK2)
        a('s_branch L_chain_done')
        a.label('L_chain_fail')
        a('s_mov_b64 exec, -1')
        a('v_mov_b32 v%d, 1' % vT)
        a('buffer_atomic_add v%d, off, s[%d:%d], 0 offset:4 sc1' % (vT, S_DBG, S_DBG + 3))
        a.label('L_chain_done')
        if s.opt.get('tot', True):
            a('s_memrealtime s[100:101]')
            a('s_waitcnt lgkmcnt(0)')
            a('s_sub_u32 s100, s100, s98')
            a('v_mov_b32 v%d, s100' % vT)
            a('buffer_store_dword v%d, off, s[%d:%d], 0 offset:8' % (vT, S_DBG, S_DBG + 3))
            a('s_memtime s[100:101]')
            a('s_waitcnt lgkmcnt(0)')
            a('s_sub_u32 s100, s100, s82')
            a('v_mov_b32 v%d, s100' % vT)
            a('s_lshl_b32 s%d, s%d, 2' % (sT0, sX))
            a('buffer_store_dword v%d, off, s[%d:%d], s%d offset:64' % (vT, S_DBG, S_DBG + 3, sT0))
        if s.opt.get('trace'):
            a('s_lshl_b32 s%d, s2, 2' % sT0)
            a('s_add_u32 s%d, s%d, s%d' % (sT0, sT0, sW))
            a('s_lshl_b32 s%d, s%d, 12' % (sT0, sT0))
            a('s_add_u32 s%d, s%d, 0x%x' % (sT0, sT0, WS_PROF))
            for i in range(11): s.st(244 + i, vL4, sT0, 256 * i, sc1=False)
        if s.prof:
            a('s_lshl_b32 s%d, s2, 2' % sT0)
            a('s_add_u32 s%d, s%d, s%d' % (sT0, sT0, sW))
            a('s_lshl_b32 s%d, s%d, 6' % (sT0, sT0))
            a('s_add_u32 s%d, s%d, 0x%x' % (sT0, sT0, WS_PROF))
            a('s_mov_b32 s%d, s%d' % (sAcc + 15, sTmo))
            a('s_mov_b32 s%d, s%d' % (sAcc + 14, sLocal))
            for i in range(16):
                a('v_mov_b32 v%d, s%d' % (vT, sAcc + i))
                a('buffer_store_dword v%d, off, s[%d:%d], s%d offset:%d' % (vT, S_WS, S_WS + 3, sT0, 4 * i))
        a('s_waitcnt vmcnt(0)')
    def nt(s, srd): return ' nt' if srd in s.opt.get('nt', []) else ''
    def mark(s, i): pass
    def early0(s): pass
    def early1(s): pass
    def kv_wait_init(s): pass
    def kv_wait_loop(s): pass

def chain_kernel(name='chain_kernel', prof=False, opt=None):
    a = Asm()
    NX = (opt or {}).get('NX', 4)
    a('s_and_b32 s3, s2, 7')
    a('s_cmp_ge_u32 s3, %d' % NX)
    a('s_cbranch_scc1 L_chain_exit')
    a('s_cmp_ge_u32 s2, %d' % (1024 // NX))
    a('s_cbranch_scc1 L_chain_exit')
    for sreg, k in [(S_WS, 'ws'), (S_WQ, 'Wq'), (S_WK, 'Wk'), (S_WV, 'Wv'), (S_WO, 'Wo'), (S_M0, 'B_mem0'), (S_DBG, 'dbg')]:
        a('s_load_dwordx2 s[%d:%d], s[0:1], %d' % (sreg, sreg + 1, KA[k]))
    a('s_waitcnt lgkmcnt(0)')
    for sreg, n in [(S_WS, WS_BYTES), (S_WQ, 8 * MB), (S_WK, 8 * MB), (S_WV, 8 * MB), (S_WO, 8 * MB), (S_M0, 16384), (S_DBG, 256)]:
        a('s_mov_b32 s%d, 0x%x' % (sreg + 2, n)); a('s_mov_b32 s%d, 0x20000' % (sreg + 3))
    Chain(a, prof, opt=opt).emit()
    a.label('L_chain_exit')
    a('s_endpgm')
    return kernel_head(name) + a.finalize()

def write(path, prof, opt):
    txt = '; @launch grid=(256,1,1) block=(256,1,1) lds=%d\n.amdgcn_target "amdgcn-amd-amdhsa--gfx950"\n.text\n' % L_END
    txt += chain_kernel(prof=prof, opt=opt)
    txt += '.section .rodata,"a"\n.p2align 6\n' + kernel_desc('chain_kernel')
    open(path, 'w').write(txt)

if __name__ == '__main__':
    import sys, json
    for spec in sys.argv[1:]:
        name, _, o = spec.partition('=')
        opt = json.loads(o) if o else {}
        write(name + '.s', 'prof' in name, opt)
```

```python
from ag import *
from common import *

S_WS, S_WQ, S_WK, S_WV, S_WO, S_M0, S_DBG = 4, 8, 12, 16, 20, 24, 28
S_X = 32
S_WC = 36
sW, sT0, sT1, sT2, sT3 = 40, 41, 42, 43, 44
sXo, sWo, sIt, sOut, sXl, sWl, sCnt = 45, 46, 47, 48, 49, 50, 51
sJob = 52
sSt, sXm, sWm, sRd, sOutN = 64, 65, 66, 67, 68
sSigN, sSigC, sSigD = 69, 70, 71
sNX, sNW, sNP = 74, 75, 76
vXr0, vXr1, vL16 = 1, 2, 3
vWr = 4
vXs = 8
vWs = 16
vT = 20
vFr = 0
vStg = 32
sKv, sKvN, sOutP, sDmp, sKvm = 72, 73, 78, 79, 14
sXp, sWp = 10, 11
vXp, vWp = 96, 97
vAcc = 128

class G1:
    def __init__(s, a, MT, tag):
        s.a = a; s.MT = MT; s.tag = tag
        s.XB = 32 * MT * 128
        s.ST = s.XB + 16384
        s.nxd = s.XB // 4096
        s.NS = 3
    def bits(s, dst, terms, init=None):
        a = s.a
        first = init is None
        if not first: a('v_mov_b32 v%d, %s' % (dst, init))
        for (src, n, sh) in terms:
            a('v_bfe_u32 v%d, v0, %d, %d' % (vT + 1, src, n))
            if first: a('v_lshlrev_b32 v%d, %d, v%d' % (dst, sh, vT + 1)); first = False
            else: a('v_lshl_add_u32 v%d, v%d, %d, v%d' % (dst, vT + 1, sh, dst))
    def setup(s):
        a = s.a; MT = s.MT
        a('v_lshrrev_b32 v%d, 3, v0' % vT)
        a('v_xor_b32 v%d, v0, v%d' % (vXs, vT))
        a('v_and_b32 v%d, 7, v%d' % (vXs, vXs))
        a('v_lshlrev_b32 v%d, 4, v%d' % (vXs, vXs))
        a('v_lshl_add_u32 v%d, v%d, 11, v%d' % (vXs, vT, vXs))
        a('s_mul_i32 s%d, s%d, %d' % (sT0, sW, s.nxd * 8 * 2048))
        a('v_add_u32 v%d, s%d, v%d' % (vXs, sT0, vXs))
        for i in range(1, s.nxd): a('v_add_u32 v%d, 0x%x, v%d' % (vXs + i, i * 8 * 2048, vXs))
        a('s_mul_i32 s%d, s%d, %d' % (sXl, sW, s.nxd * 1024))
        a('v_lshrrev_b32 v%d, 4, v0' % vT)
        a('s_and_b32 s%d, s%d, 1' % (sT0, sW))
        a('s_lshl_b32 s%d, s%d, 2' % (sT1, sT0))
        a('v_or_b32 v%d, s%d, v%d' % (vT + 1, sT1, vT))
        a('v_lshlrev_b32 v%d, 1, v%d' % (vT + 1, vT + 1))
        a('v_xor_b32 v%d, v0, v%d' % (vWs, vT + 1))
        a('v_and_b32 v%d, 15, v%d' % (vWs, vWs))
        a('v_lshlrev_b32 v%d, 4, v%d' % (vWs, vWs))
        a('v_lshl_add_u32 v%d, v%d, 13, v%d' % (vWs, vT, vWs))
        a('s_lshl_b32 s%d, s%d, 3' % (sT0, sT0))
        a('s_lshr_b32 s%d, s%d, 1' % (sT1, sW))
        a('s_lshl_b32 s%d, s%d, 2' % (sT1, sT1))
        a('s_add_u32 s%d, s%d, s%d' % (sT0, sT0, sT1))
        a('s_lshl_b32 s%d, s%d, 13' % (sT1, sT0))
        a('v_add_u32 v%d, s%d, v%d' % (vWs, sT1, vWs))
        for i in range(1, 4): a('v_add_u32 v%d, 0x%x, v%d' % (vWs + i, i * 16 * 8192, vWs))
        a('s_lshl_b32 s%d, s%d, 8' % (sWl, sT0))
        a('s_add_u32 s%d, s%d, %d' % (sWl, sWl, s.XB))
        a('v_lshrrev_b32 v%d, 4, v0' % vT)
        a('v_xor_b32 v%d, v0, v%d' % (vXr0, vT))
        a('v_and_b32 v%d, 7, v%d' % (vXr0, vXr0))
        a('v_lshlrev_b32 v%d, 4, v%d' % (vXr0, vXr0))
        a('v_and_b32 v%d, 15, v0' % vT)
        a('v_lshl_add_u32 v%d, v%d, 7, v%d' % (vXr0, vT, vXr0))
        a('s_and_b32 s%d, s%d, 1' % (sT0, sW))
        a('s_mul_i32 s%d, s%d, %d' % (sT0, sT0, MT * 2048))
        a('v_add_u32 v%d, s%d, v%d' % (vXr0, sT0, vXr0))
        a('v_xor_b32 v%d, 64, v%d' % (vXr1, vXr0))
        s.bits(vT, [(2, 3, 0)])
        a('s_lshr_b32 s%d, s%d, 1' % (sT0, sW))
        a('s_lshl_b32 s%d, s%d, 2' % (sT0, sT0))
        a('v_xor_b32 v%d, s%d, v%d' % (vT, sT0, vT))
        s.bits(vT + 2, [(4, 2, 11), (2, 2, 8), (0, 2, 3)], str(s.XB))
        for nt in range(4):
            a('v_xor_b32 v%d, %d, v%d' % (vT + 3, nt, vT))
            a('v_lshl_add_u32 v%d, v%d, 5, v%d' % (vWr + nt, vT + 3, vT + 2))
        a('v_lshlrev_b32 v%d, 4, v0' % vL16)
        a('s_mov_b32 s%d, 0x%x' % (sDmp, WS_DUMP))
        a('s_mov_b32 s%d, 0x%x' % (sKvm, WS_KVM))
    def dmas(s):
        out = []
        for i in range(s.nxd):
            out.append(('s_add_u32 m0, s%d, %d' % (sXm, i * 1024), 'buffer_load_dwordx4 v%d, s[%d:%d], s%d offen lds' % (vXs + i, S_X, S_X + 3, sXo)))
        for i in range(4):
            out.append(('s_add_u32 m0, s%d, %d' % (sWm, i * 4096), 'buffer_load_dwordx4 v%d, s[%d:%d], s%d offen lds' % (vWs + i, S_WC, S_WC + 3, sWo)))
        return out
    def adv(s, switch=False):
        if switch:
            o = ['s_mov_b32 s%d, s%d' % (sXo, sNX), 's_mov_b32 s%d, s%d' % (sWo, sNW), 's_mov_b64 s[%d:%d], s[%d:%d]' % (S_WC, S_WC + 1, sNP, sNP + 1)]
        else:
            o = ['s_add_u32 s%d, s%d, 128' % (sXo, sXo), 's_add_u32 s%d, s%d, 0x80000' % (sWo, sWo)]
        return o + ['s_add_u32 s%d, s%d, %d' % (sSt, sSt, s.ST),
                    ['s_cmp_eq_u32 s%d, %d' % (sSt, s.NS * s.ST), 's_cselect_b32 s%d, 0, s%d' % (sSt, sSt)],
                    's_add_u32 s%d, s%d, s%d' % (sXm, sXl, sSt), 's_add_u32 s%d, s%d, s%d' % (sWm, sWl, sSt),
                    ['s_cmp_eq_u32 s%d, %d' % (sSt, (s.NS - 1) * s.ST), 's_cselect_b32 s%d, s%d, %d' % (sT3, sRd, s.ST)]]
    def fx(s, st, mt): return vFr + st * (4 * s.MT + 16) + 4 * mt
    def fw(s, st, nt): return vFr + st * (4 * s.MT + 16) + 4 * s.MT + 4 * nt
    def reads(s, st, ks, flip=False):
        out = []
        for nt in range(4):
            for v2 in range(2):
                out.append('ds_read_b64_tr_b16 %s, v%d offset:%d' % (ar(s.fw(st, nt) + 2 * v2, 2), vWr + nt, (32 * ks + 4 * v2) * 256))
        xs = ['ds_read_b128 %s, v%d offset:%d' % (ar(s.fx(st, mt), 4), vXr1 if ks else vXr0, mt * 2048) for mt in range(s.MT)]
        return out[:2] + xs[:1] + out[2:] + xs[1:]
    def flips(s): return ['v_add_u32 v%d, s%d, v%d' % (r, sT3, r) for r in [vXr0, vWr, vWr + 1, vWr + 2, vWr + 3, vXr1]]
    def phase(s, st, slots, first=False):
        a = s.a
        k = 0
        for mt in range(s.MT):
            for nt in range(4):
                d = vr(vAcc + (mt * 4 + nt) * 4, 4)
                a('v_mfma_f32_16x16x32_bf16 %s, %s, %s, %s' % (d, ar(s.fw(st, nt), 4), ar(s.fx(st, mt), 4), '0' if first else d))
                for x in slots.get(k, []): a(x)
                k += 1
    def sched(s, reads, dm, tail, extra=()):
        n = 4 * s.MT
        slots = {}
        def put(k, x):
            slots.setdefault(min(k, n - 1), []).extend([x] if isinstance(x, str) else x)
        nr = len(reads)
        span = int(n * 0.72)
        for i, r in enumerate(reads): put(i * span // nr, r)
        last = 0
        for i, (m, d) in enumerate(dm):
            k = 1 + (i * max(n - 2 - (len(tail) + 1) // 2, 2 * len(dm) - 2)) // len(dm) if n > 8 else 2 * i
            put(k, m); put(k + 1, d); last = k + 1
        t0 = max(last + 1, n - (len(tail) + 1) // 2 - 1)
        for i, x in enumerate(tail):
            k = t0 + i // 2
            if isinstance(x, str) and x.startswith('v_add'): k = max(k, span)
            put(k, x)
        ex = list(extra)
        for i, x in enumerate(ex): put(i * n // max(len(ex), 1), x)
        return slots
    def run(s, next_job, more, signal, after_prologue=None, at_signal=None, immediate=False, pre_epi=None):
        a = s.a; t = s.tag
        nd = s.nxd + 4; h = nd // 2
        dl = s.dmas()
        def flat(L):
            for x in L:
                for y in ([x] if isinstance(x, str) else x): a(y)
        a('s_mov_b32 s%d, %d' % (sSt, (s.NS - 1) * s.ST))
        a('s_mov_b32 s%d, %d' % (sRd, (-(s.NS - 1) * s.ST) & 0xffffffff))
        flat(next_job())
        flat(s.adv(True))
        a('s_barrier')
        for k in range(s.NS):
            flat(dl if k < s.NS - 1 else dl[:h])
            if k < s.NS - 1: flat(s.adv())
        nx = after_prologue() if after_prologue else 0
        if s.touch and not immediate:
            a('s_add_u32 s%d, s%d, %d' % (sXp, sNX, (s.NS + s.touch) * 128))
            a('s_add_u32 s%d, s%d, 0x%x' % (sWp, sNW, (s.NS + s.touch) * 0x80000))
            a('s_mov_b64 s[%d:%d], s[%d:%d]' % (s.S_WP, s.S_WP + 1, sNP, sNP + 1))
            a('s_mov_b32 s%d, 0x%x' % (s.S_WP + 2, 8 * MB)); a('s_mov_b32 s%d, 0x20000' % (s.S_WP + 3))
            a('s_and_b32 s%d, s54, 1' % sT0)
            a('s_lshl_b32 s%d, s%d, 2' % (sT0, sT0))
            a('s_add_u32 s%d, s%d, s%d' % (sT0, sT0, sW))
            a('s_lshl_b32 s%d, s%d, 16' % (sT0, sT0))
            s.bits(vWp, [(1, 3, 13), (0, 1, 7)], 's%d' % sT0)
            a('s_and_b32 s%d, s54, 28' % sT0)
            a('s_add_u32 s%d, s%d, s%d' % (sT0, sT0, sW))
            a('s_lshl_b32 s%d, s%d, 14' % (sT0, sT0))
            s.bits(vXp, [(0, 3, 11)], 's%d' % sT0)
            for i in range(2): a('buffer_load_dword v98, off, s[%d:%d], 0' % (S_X, S_X + 3))
            nx += 2
        a('s_waitcnt vmcnt(%d)' % (nd * (s.NS - 2) + h + nx))
        if s.after_wait: s.after_wait()
        a('s_barrier')
        flat(s.reads(0, 0))
        a('s_mov_b32 s%d, 0' % sCnt)
        w = nd * (s.NS - 2)
        for i in range(4): a('v_mov_b32 v%d, -1' % (vT + 4 + i))
        a('s_mov_b32 s%d, 0x%x' % (sOutP, WS_DUMP))
        def body(first=False, wait=w, post=None, switch=False, extra=(), loop=None, extraB=(), slotsB=None):
            a('s_waitcnt lgkmcnt(0)')
            s.phase(0, s.sched(s.reads(1, 1), dl[h:], s.adv(switch) + s.flips(), extra), first)
            a('s_waitcnt vmcnt(%d) lgkmcnt(0)' % wait)
            a('s_barrier')
            if post: post()
            sl = s.sched(s.reads(0, 0), dl[:h], loop or [], extraB)
            for k, v in (slotsB or {}).items(): sl.setdefault(k, []).extend(v)
            s.phase(1, sl)
        def stores(sreg, mts):
            o = []
            for mt in mts:
                for pr in range(2):
                    o.append('buffer_store_dwordx4 %s, v%d, s[%d:%d], s%d offen offset:%d sc1' % (vr(vStg + 8 * mt + 4 * pr, 4), vL16, S_WS, S_WS + 3, sreg, pr * 1024))
                o.append('s_add_u32 s%d, s%d, 0x20000' % (sreg, sreg))
            return o
        kv = ['buffer_store_dwordx4 %s, v%d, s[%d:%d], s%d offen sc1' % (vr(vT + 4, 4), vL16, S_WS, S_WS + 3, sKv), 's_add_u32 s%d, s%d, 0x40000' % (sKv, sKv)]
        def post():
            l2 = a.newlabel('Lg1')
            a('s_cmp_eq_u32 s%d, 0' % sCnt)
            a('s_cbranch_scc1 %s' % l2)
            signal()
            a.label(l2)
        a.label('L_g1tile_%s' % t)
        a('s_mov_b32 s%d, s%d' % (sOut, sOutN))
        a('s_mov_b32 s%d, s%d' % (sSigC, sSigN))
        a('s_mov_b32 s%d, s%d' % (sKv, sKvN))
        if immediate:
            nk = s.MT // 4
            oob = ['s_mov_b32 s%d, 0x%x' % (sNX, 8 * MB), 's_mov_b32 s%d, 0x%x' % (sNW, 8 * MB)]
            body(first=True, extraB=kv * nk)
            body(wait=w + nk, extra=oob if s.single else next_job(), loop=['s_mov_b32 s%d, 2' % sIt], extraB=kv * nk)
            a.label('L_g1loop_%s' % t)
            body(loop=['s_add_u32 s%d, s%d, 1' % (sIt, sIt), 's_cmp_lt_u32 s%d, %d' % (sIt, 16 - s.NS)])
            a('s_cbranch_scc1 L_g1loop_%s' % t)
            body(switch=True)
            for i in range(s.NS - 2): body()
            last = {}
        else:
            NBs = s.spread
            q = s.MT // NBs
            D = s.touch
            prev = 2 if D else 0
            for i in range(16):
                ex = []; n = 0
                if D:
                    tc = ['s_mov_b64 exec, 0xffff',
                          'buffer_load_dword v%d, v%d, s[%d:%d], s%d offen' % (98, vWp, s.S_WP, s.S_WP + 3, sWp),
                          'buffer_load_dword v%d, v%d, s[%d:%d], s%d offen' % (99, vXp, S_X, S_X + 3, sXp), 's_mov_b64 exec, -1']
                    if i == 16 - s.NS - D - 1:
                        nx = ['s_mov_b32 s%d, s%d' % (sXp, sNX), 's_mov_b32 s%d, s%d' % (sWp, sNW), 's_mov_b64 s[%d:%d], s[%d:%d]' % (s.S_WP, s.S_WP + 1, sNP, sNP + 1)]
                    else:
                        nx = ['s_add_u32 s%d, s%d, 128' % (sXp, sXp), 's_add_u32 s%d, s%d, 0x80000' % (sWp, sWp)]
                    ex += [tc, nx]; n += 2
                if i < NBs:
                    ex += stores(sOutP, range(i * q, (i + 1) * q))
                    nk = [j for j in range(4) if j * NBs // 4 == i]
                    for j in nk: ex = ex + kv
                    n += 2 * q + len(nk)
                kw = dict(first=(i == 0), wait=w + prev, extra=next_job() if i == 1 else (), extraB=ex, post=post if i == NBs + 1 else None, switch=(i == 16 - s.NS))
                prev = n
                if i < 15: body(**kw)
                else: last = kw
        n = 4 * s.MT; LAG = 4
        cv = lambda k: ['v_cvt_pk_bf16_f32 v%d, v%d, v%d' % (vStg + 2 * k + i, vAcc + 4 * k + 2 * i, vAcc + 4 * k + 2 * i + 1) for i in range(2)]
        body(slotsB={k + LAG: cv(k) for k in range(n - LAG)}, **last)
        for k in range(n - LAG, n): flat(cv(k))
        if pre_epi: pre_epi()
        a('s_mov_b32 s%d, 1' % sCnt)
        a('s_mov_b32 s%d, s%d' % (sSigD, sSigC))
        a('s_mov_b32 s%d, s%d' % (sOutP, sOut))
        if not immediate:
            more()
            a('s_cbranch_scc1 L_g1tile_%s' % t)
        flat(stores(sOutP, range(s.MT)))
        a('s_waitcnt vmcnt(0) lgkmcnt(0)')
        a('s_barrier')
        signal()
        if immediate:
            if at_signal: at_signal()
            more()
            a('s_cbranch_scc1 L_g1tile_%s' % t)
    spread = 8
    single = False
    after_wait = None
    touch = 0
    S_WP = 24
    def job(s, sRow, sCol):
        return ['s_mul_i32 s%d, s%d, %d' % (sNX, sRow, 32 * s.MT * 2048),
                's_and_b32 s%d, s%d, 31' % (sT0, sCol),
                's_lshl_b32 s%d, s%d, 8' % (sNW, sT0),
                's_lshr_b32 s%d, s%d, 5' % (sT1, sCol),
                ['s_cmp_eq_u32 s%d, 1' % sT1, 's_cselect_b64 s[%d:%d], s[%d:%d], s[%d:%d]' % (sNP, sNP + 1, S_WV, S_WV + 1, S_WK, S_WK + 1)],
                ['s_cmp_eq_u32 s%d, 2' % sT1, 's_cselect_b64 s[%d:%d], s[%d:%d], s[%d:%d]' % (sNP, sNP + 1, S_WQ, S_WQ + 1, sNP, sNP + 1)],
                's_lshl_b32 s%d, s%d, 24' % (sOutN, sT1),
                's_lshl_b32 s%d, s%d, 12' % (sT0, sT0),
                's_add_u32 s%d, s%d, s%d' % (sOutN, sOutN, sT0),
                's_lshl_b32 s%d, s%d, 1' % (sT0, sRow),
                's_and_b32 s%d, s%d, 1' % (sT1, sW),
                's_add_u32 s%d, s%d, s%d' % (sT0, sT0, sT1),
                's_mul_i32 s%d, s%d, %d' % (sT0, sT0, s.MT * 131072),
                's_add_u32 s%d, s%d, s%d' % (sOutN, sOutN, sT0),
                's_lshr_b32 s%d, s%d, 1' % (sT1, sW),
                's_lshl_b32 s%d, s%d, 11' % (sT1, sT1),
                's_add_u32 s%d, s%d, s%d' % (sOutN, sOutN, sT1),
                's_mul_i32 s%d, s%d, %d' % (sKvN, sRow, s.MT),
                's_lshr_b32 s%d, s%d, 1' % (sT0, sW),
                's_add_u32 s%d, s%d, s%d' % (sKvN, sKvN, sT0),
                's_lshl_b32 s%d, s%d, 17' % (sKvN, sKvN),
                's_lshl_b32 s%d, s%d, 4' % (sT0, sNW),
                's_add_u32 s%d, s%d, s%d' % (sKvN, sKvN, sT0),
                's_and_b32 s%d, s%d, 1' % (sT0, sW),
                's_lshl_b32 s%d, s%d, 10' % (sT0, sT0),
                's_add_u32 s%d, s%d, s%d' % (sKvN, sKvN, sT0),
                's_lshr_b32 s%d, s%d, 5' % (sT1, sCol),
                's_lshl_b32 s%d, s%d, 11' % (sT0, sT1),
                's_add_u32 s%d, s%d, s%d' % (sKvN, sKvN, sT0),
                ['s_cmp_eq_u32 s%d, 2' % sT1, 's_cselect_b32 s%d, s%d, s%d' % (sT0, sDmp, sKvm)],
                's_add_u32 s%d, s%d, s%d' % (sKvN, sKvN, sT0)]

def test_kernel(MT, RB, spread=8, touch=0):
    a = Asm()
    for sreg, k in [(S_WS, 'ws'), (S_WQ, 'Wq'), (S_WK, 'Wk'), (S_WV, 'Wv'), (S_X, 'B_x'), (S_DBG, 'dbg')]:
        a('s_load_dwordx2 s[%d:%d], s[0:1], %d' % (sreg, sreg + 1, KA[k]))
    a('s_waitcnt lgkmcnt(0)')
    for sreg, n in [(S_WS, WS_BYTES), (S_X, 4 * MB), (S_WC, 8 * MB), (S_DBG, 256)]:
        a('s_mov_b32 s%d, 0x%x' % (sreg + 2, n)); a('s_mov_b32 s%d, 0x20000' % (sreg + 3))
    a('s_mov_b64 s[%d:%d], s[%d:%d]' % (S_WC, S_WC + 1, S_WK, S_WK + 1))
    a('s_cmp_ge_u32 s2, 256'); a('s_cbranch_scc1 L_exit')
    a('s_and_b32 s53, s2, 7')
    a('s_cmp_lt_u32 s53, 4'); a('s_cbranch_scc1 L_exit')
    a('s_sub_u32 s53, s53, 4')
    a('s_lshr_b32 s54, s2, 3')
    a('v_lshrrev_b32 v%d, 6, v0' % vT)
    a('v_readfirstlane_b32 s%d, v%d' % (sW, vT))
    a('v_and_b32 v0, 63, v0')
    a('s_memrealtime s[60:61]')
    a('s_memtime s[80:81]')
    big = MT == 16
    if big: MT = 8
    g = G2(a, 'a') if big else G1(a, MT, 'a')
    NC = 12 if big else 24
    g.spread = spread; g.touch = touch
    g.setup()
    nrows = 2048 // (32 * MT)
    a('s_mov_b32 s%d, 0' % sJob)
    njobs = nrows * NC // 32
    CB = 32 // RB
    def next_job():
        nb_c = NC // CB
        return ['s_min_u32 s55, s%d, %d' % (sJob, njobs - 1),
                's_mul_i32 s56, s55, %d' % (65536 // nb_c + 1),
                's_lshr_b32 s56, s56, 16',
                's_mul_i32 s57, s56, %d' % nb_c,
                's_sub_u32 s57, s55, s57',
                's_mul_i32 s56, s56, %d' % RB,
                's_and_b32 s58, s54, %d' % (RB - 1),
                's_add_u32 s56, s56, s58',
                's_mul_i32 s57, s57, %d' % CB,
                's_lshr_b32 s58, s54, %d' % (RB.bit_length() - 1),
                's_add_u32 s57, s57, s58',
                's_mul_i32 s58, s53, %d' % NC,
                's_add_u32 s57, s57, s58'] + g.job(56, 57) + ['s_add_u32 s%d, s%d, 1' % (sJob, sJob)]
    g.run(next_job, lambda: a('s_cmp_le_u32 s%d, %d' % (sJob, njobs)), lambda: None)
    a('s_waitcnt vmcnt(0)')
    a('s_memrealtime s[62:63]')
    a('s_memtime s[82:83]')
    a('s_waitcnt lgkmcnt(0)')
    a('s_sub_u32 s82, s82, s80')
    a('v_mov_b32 v%d, s82' % vT)
    a('buffer_store_dword v%d, off, s[%d:%d], 0 offset:12' % (vT, S_DBG, S_DBG + 3))
    a('s_sub_u32 s62, s62, s60')
    a('v_mov_b32 v%d, s62' % vT)
    a('buffer_store_dword v%d, off, s[%d:%d], 0 offset:8' % (vT, S_DBG, S_DBG + 3))
    a.label('L_exit')
    a('s_endpgm')
    txt = '; @launch grid=(256,1,1) block=(256,1,1) lds=163840\n.amdgcn_target "amdgcn-amd-amdhsa--gfx950"\n.text\n'
    txt += kernel_head('g1_kernel') + a.finalize(True)
    txt += '.section .rodata,"a"\n.p2align 6\n' + kernel_desc('g1_kernel')
    return txt

class G2(G1):
    vWr8, vWs8, vF2 = 32, 40, 128
    WB = 98304
    def __init__(s, a, tag):
        G1.__init__(s, a, 8, tag)
    def setup(s):
        a = s.a
        G1.setup(s)
        for i in range(4):
            a('v_mov_b32 v%d, v%d' % (s.vWs8 + i, vWs + i))
            a('v_add_u32 v%d, 256, v%d' % (s.vWs8 + 4 + i, vWs + i))
        a('s_add_u32 s%d, s%d, %d' % (sWl, sWl, s.WB - s.XB))
        s.bits(vT, [(2, 3, 0)])
        a('s_lshr_b32 s%d, s%d, 1' % (sT0, sW))
        a('s_lshl_b32 s%d, s%d, 14' % (sT0, sT0))
        a('s_add_u32 s%d, s%d, %d' % (sT0, sT0, s.WB))
        s.bits(vT + 2, [(4, 2, 11), (2, 2, 8), (0, 2, 3)], 's%d' % sT0)
        for nt in range(8):
            a('v_xor_b32 v%d, %d, v%d' % (vT + 3, nt, vT))
            a('v_lshl_add_u32 v%d, v%d, 5, v%d' % (s.vWr8 + nt, vT + 3, vT + 2))
    def xd(s): return [('s_add_u32 m0, s%d, %d' % (sXm, i * 1024), 'buffer_load_dwordx4 v%d, s[%d:%d], s%d offen lds' % (vXs + i, S_X, S_X + 3, sXo)) for i in range(8)]
    def wd(s, par): return [('s_add_u32 m0, s%d, %d' % (sWl, par * 32768 + i * 4096), 'buffer_load_dwordx4 v%d, s[%d:%d], s%d offen lds' % (s.vWs8 + i, S_WC, S_WC + 3, sWo)) for i in range(8)]
    def xadv(s, sw):
        return ['s_mov_b32 s%d, s%d' % (sXo, sNX) if sw else 's_add_u32 s%d, s%d, 128' % (sXo, sXo), 's_add_u32 s%d, s%d, 32768' % (sSt, sSt),
                ['s_cmp_eq_u32 s%d, 98304' % sSt, 's_cselect_b32 s%d, 0, s%d' % (sSt, sSt)], 's_add_u32 s%d, s%d, s%d' % (sXm, sXl, sSt),
                ['s_cmp_eq_u32 s%d, 65536' % sSt, 's_cselect_b32 s%d, s%d, 32768' % (sT3, sRd)]]
    def wadv(s, sw):
        return ['s_mov_b32 s%d, s%d' % (sWo, sNW), 's_mov_b64 s[%d:%d], s[%d:%d]' % (S_WC, S_WC + 1, sNP, sNP + 1)] if sw else ['s_add_u32 s%d, s%d, 0x80000' % (sWo, sWo)]
    def rd2(s, st, ks, par):
        b = s.vF2 + 64 * st
        w = ['ds_read_b64_tr_b16 %s, v%d offset:%d' % (vr(b + 32 + 4 * nt + 2 * v2, 2), s.vWr8 + nt, par * 32768 + (32 * ks + 4 * v2) * 256) for nt in range(8) for v2 in range(2)]
        x = ['ds_read_b128 %s, v%d offset:%d' % (vr(b + 4 * mt, 4), vXr1 if ks else vXr0, mt * 2048) for mt in range(8)]
        return w[:2] + x[:1] + w[2:] + x[1:]
    def ph(s, st, reads, dm, tail, extra=(), first=False):
        a = s.a; n = 64
        slots = {}
        def put(k, x): slots.setdefault(min(k, n - 1), []).extend([x] if isinstance(x, str) else x)
        for i, r in enumerate(reads): put(2 * i, r)
        for i, (m, d) in enumerate(dm): put(1 + 6 * i, m); put(3 + 6 * i, d)
        for i, x in enumerate(tail): put(50 + i, x)
        ex = list(extra)
        for i, x in enumerate(ex): put(1 + (i * 60 // max(len(ex), 1)), x)
        b = s.vF2 + 64 * st
        k = 0
        for mt in range(8):
            for nt in range(8):
                d = ar((mt * 8 + nt) * 4, 4)
                a('v_mfma_f32_16x16x32_bf16 %s, %s, %s, %s' % (d, vr(b + 32 + 4 * nt, 4), vr(b + 4 * mt, 4), '0' if first else d))
                for x in slots.get(k, []): a(x)
                k += 1
    def run(s, next_job, more, signal, pre_epi=None):
        a = s.a; t = s.tag
        def flat(L):
            for x in L:
                for y in ([x] if isinstance(x, str) else x): a(y)
        a('s_mov_b32 s%d, 65536' % sSt)
        a('s_mov_b32 s%d, %d' % (sRd, (-65536) & 0xffffffff))
        flat(next_job()); flat(s.xadv(True)); flat(s.wadv(True))
        a('s_barrier')
        for k in range(2):
            flat(s.xd()); flat(s.xadv(False)); flat(s.wd(k)); flat(s.wadv(False))
        for i in range(4): a('v_mov_b32 v%d, -1' % (vT + 4 + i))
        a('s_mov_b32 s%d, 0' % sCnt)
        a('s_waitcnt vmcnt(16)')
        a('s_barrier')
        flat(s.rd2(0, 0, 0)[:12]); a('s_waitcnt lgkmcnt(3)'); flat(s.rd2(0, 0, 0)[12:])
        a('s_waitcnt vmcnt(0)')
        flips = ['v_add_u32 v%d, s%d, v%d' % (r, sT3, r) for r in (vXr0, vXr1)]
        kv = ['buffer_store_dwordx4 %s, v%d, s[%d:%d], s%d offen sc1' % (vr(vT + 4, 4), vL16, S_WS, S_WS + 3, sKv), 's_add_u32 s%d, s%d, 0x20000' % (sKv, sKv)]
        def body(par, first=False, sw=False, post=None, extra=(), tailB=(), nA=0):
            a('s_waitcnt lgkmcnt(0)')
            s.ph(0, s.rd2(1, 1, par), s.xd(), s.xadv(sw) + flips, extra, first)
            a('s_waitcnt vmcnt(%d) lgkmcnt(0)' % (8 + nA))
            a('s_barrier')
            if post: post()
            s.ph(1, s.rd2(0, 0, 1 - par), s.wd(par), s.wadv(sw) + list(tailB))
        def post():
            l2 = a.newlabel('Lg2')
            a('s_cmp_eq_u32 s%d, 0' % sCnt)
            a('s_cbranch_scc1 %s' % l2)
            signal()
            a.label(l2)
        a.label('L_g2tile_%s' % t)
        a('s_mov_b32 s%d, s%d' % (sOut, sOutN))
        a('s_mov_b32 s%d, s%d' % (sSigC, sSigN))
        a('s_mov_b32 s%d, s%d' % (sKv, sKvN))
        body(0, first=True, nA=32)
        body(1, post=post, extra=next_job(), tailB=['s_mov_b32 s%d, 0' % sIt])
        a.label('L_g2loop_%s' % t)
        body(0, extra=kv, nA=1)
        body(1, extra=kv, nA=1, tailB=['s_add_u32 s%d, s%d, 1' % (sIt, sIt), ['s_cmp_eq_u32 s%d, 4' % sIt, 's_cselect_b32 s%d, s%d, s%d' % (sKv, sDmp, sKv)], 's_cmp_lt_u32 s%d, 5' % sIt])
        a('s_cbranch_scc1 L_g2loop_%s' % t)
        body(0); body(1, sw=True); body(0); body(1)
        if pre_epi: pre_epi()
        e0 = s.vF2 + 64
        for mt in range(8):
            for pr in range(4):
                r = e0 + 12 * ((4 * mt + pr) % 5)
                for i in range(8): a('v_accvgpr_read_b32 v%d, a%d' % (r + 4 + i, (mt * 8 + 2 * pr) * 4 + i))
                for i in range(4): a('v_cvt_pk_bf16_f32 v%d, v%d, v%d' % (r + i, r + 4 + 2 * i, r + 5 + 2 * i))
                a('buffer_store_dwordx4 %s, v%d, s[%d:%d], s%d offen offset:%d sc1' % (vr(r, 4), vL16, S_WS, S_WS + 3, sOut, pr * 1024))
            a('s_add_u32 s%d, s%d, 0x20000' % (sOut, sOut))
        a('s_mov_b32 s%d, 1' % sCnt)
        a('s_mov_b32 s%d, s%d' % (sSigD, sSigC))
        more()
        a('s_cbranch_scc1 L_g2tile_%s' % t)
        a('s_waitcnt vmcnt(0) lgkmcnt(0)')
        a('s_barrier')
        signal()
    def job(s, sRow, sCol):
        return ['s_lshl_b32 s%d, s%d, 19' % (sNX, sRow),
                's_and_b32 s%d, s%d, 15' % (sT0, sCol),
                's_lshl_b32 s%d, s%d, 9' % (sNW, sT0),
                's_lshr_b32 s%d, s%d, 4' % (sT1, sCol),
                ['s_cmp_eq_u32 s%d, 1' % sT1, 's_cselect_b64 s[%d:%d], s[%d:%d], s[%d:%d]' % (sNP, sNP + 1, S_WV, S_WV + 1, S_WK, S_WK + 1)],
                ['s_cmp_eq_u32 s%d, 2' % sT1, 's_cselect_b64 s[%d:%d], s[%d:%d], s[%d:%d]' % (sNP, sNP + 1, S_WQ, S_WQ + 1, sNP, sNP + 1), 's_cselect_b32 s%d, s%d, s%d' % (sKvN, sDmp, sKvm)],
                's_lshl_b32 s%d, s%d, 24' % (sOutN, sT1),
                's_lshl_b32 s%d, s%d, 11' % (sT1, sT1),
                's_add_u32 s%d, s%d, s%d' % (sKvN, sKvN, sT1),
                's_lshl_b32 s%d, s%d, 1' % (sT0, sT0),
                's_lshr_b32 s%d, s%d, 1' % (sT1, sW),
                's_add_u32 s%d, s%d, s%d' % (sT0, sT0, sT1),
                's_lshl_b32 s%d, s%d, 12' % (sT0, sT0),
                's_add_u32 s%d, s%d, s%d' % (sOutN, sOutN, sT0),
                's_add_u32 s%d, s%d, s%d' % (sKvN, sKvN, sT0),
                's_lshl_b32 s%d, s%d, 20' % (sT0, sRow),
                's_add_u32 s%d, s%d, s%d' % (sKvN, sKvN, sT0),
                's_and_b32 s%d, s%d, 1' % (sT1, sW),
                's_lshl_b32 s%d, s%d, 10' % (sT0, sT1),
                's_add_u32 s%d, s%d, s%d' % (sKvN, sKvN, sT0),
                's_lshl_b32 s%d, s%d, 1' % (sT0, sRow),
                's_add_u32 s%d, s%d, s%d' % (sT0, sT0, sT1),
                's_lshl_b32 s%d, s%d, 20' % (sT0, sT0),
                's_add_u32 s%d, s%d, s%d' % (sOutN, sOutN, sT0)]

if __name__ == '__main__':
    open('g1_t0.s', 'w').write(test_kernel(8, 4, 8, 0))
    open('g2.s', 'w').write(test_kernel(16, 8))
```

```python
import sys, json
from ag import *
from common import *
import gen_chain9 as gc
import gen_g1 as g1
import gen_ao as ao

NAME = 'concat_heads__ssm_conv_h3__memory_aug_recurrent_mem_tr__prompt'
LDS = 163840
WS_KVC = WS_CTR + 262144
sKVC = 85

class Chain(gc.Chain):
    def early0(s):
        a = s.a
        a('s_lshl_b32 s%d, s%d, 10' % (sKVC, gc.sG))
        a('s_add_u32 s%d, s%d, 0x%x' % (sKVC, sKVC, WS_KVC))
        a('s_or_b32 s%d, s%d, s%d' % (gc.sT2, gc.sJ, gc.sW))
        l = a.newlabel('Le')
        a('s_cbranch_scc1 %s' % l)
        a('v_lshlrev_b32 v%d, 4, v0' % gc.vT)
        a('v_mov_b32 v%d, 0' % (gc.vT + 1))
        a('buffer_store_dword v%d, v%d, s[4:7], s%d offen sc1' % (gc.vT + 1, gc.vT, sKVC))
        a.label(l)
    def early1(s):
        a = s.a
        l = a.newlabel('Le')
        a('s_cmp_eq_u32 s%d, 0' % gc.sT2)
        a('s_cbranch_scc0 %s' % l)
        a('s_waitcnt vmcnt(32)')
        a('v_mov_b32 v%d, 1' % (gc.vT + 1))
        a('s_mov_b64 exec, 1')
        a('buffer_atomic_add v%d, off, s[28:31], 0 offset:128 sc1' % (gc.vT + 1))
        a('s_mov_b64 exec, -1')
        a.label(l)
    def poll_ctr(s, soff):
        a = s.a
        l, ok = a.newlabel('Lkv'), a.newlabel('Lkv')
        a.label(l)
        a('buffer_load_dword v%d, off, s[4:7], s%d sc1' % (gc.vT, soff))
        a('s_waitcnt vmcnt(0)')
        a('v_readfirstlane_b32 s%d, v%d' % (gc.sT1, gc.vT))
        a('s_cmp_eq_u32 s%d, 8' % gc.sT1)
        a('s_cbranch_scc1 %s' % ok)
        a('s_sleep 4')
        s.tmo(l)
        a.label(ok)
    def kv_wait_init(s):
        a = s.a
        s.mark(3)
        l, ok = a.newlabel('Lkv'), a.newlabel('Lkv')
        a.label(l)
        a('buffer_load_dword v%d, off, s[28:31], 0 offset:128 sc1' % gc.vT)
        a('s_waitcnt vmcnt(0)')
        a('v_readfirstlane_b32 s%d, v%d' % (gc.sT1, gc.vT))
        a('s_cmp_eq_u32 s%d, 16' % gc.sT1)
        a('s_cbranch_scc1 %s' % ok)
        a('s_sleep 4')
        s.tmo(l)
        a.label(ok)
        s.poll_ctr(sKVC)
        s.mark(4)
    def kv_wait_loop(s):
        a = s.a
        sk = a.newlabel('Lkv')
        a('s_add_u32 s%d, s%d, 2' % (gc.sT0, gc.sStep))
        a('s_cmp_lt_u32 s%d, 16' % gc.sT0)
        a('s_cselect_b32 s%d, 3, 0x47' % gc.sT1)
        a('s_and_b32 s%d, s%d, s%d' % (gc.sT1, gc.sT1, gc.sT0))
        a('s_cbranch_scc1 %s' % sk)
        a('s_lshl_b32 s%d, s%d, 4' % (gc.sT1, gc.sT0))
        a('s_lshl_b32 s%d, s%d, 3' % (gc.sT0, gc.sT0))
        a('s_add_u32 s%d, s%d, 128' % (gc.sT0, gc.sT0))
        a('s_min_u32 s%d, s%d, s%d' % (gc.sT0, gc.sT0, gc.sT1))
        a('s_add_u32 s%d, s%d, s%d' % (gc.sT0, gc.sT0, sKVC))
        s.poll_ctr(gc.sT0)
        a.label(sk)

def mark(a, i, opt, v=30):
    if not opt.get('marks'): return
    a('s_memrealtime s[100:101]')
    a('s_waitcnt lgkmcnt(0)')
    a('v_mov_b32 v%d, s100' % v)
    a('s_lshl_b32 s100, s2, 6')
    a('s_add_u32 s100, s100, 0x%x' % (WS_PROF + 8 * MB))
    a('buffer_store_dword v%d, off, s[4:7], s100 offset:%d' % (v, 4 * i))
    if i < 6:
        a('s_memtime s[100:101]')
        a('s_waitcnt lgkmcnt(0)')
        a('v_mov_b32 v%d, s100' % v)
        a('s_lshl_b32 s100, s2, 6')
        a('s_add_u32 s100, s100, 0x%x' % (WS_PROF + 9 * MB))
        a('buffer_store_dword v%d, off, s[4:7], s100 offset:%d' % (v, 4 * i))

def build(opt):
    a = Asm()
    ptrs = [(4, 'ws', WS_BYTES), (8, 'Wq', 8 * MB), (12, 'Wk', 8 * MB), (16, 'Wv', 8 * MB), (20, 'Wo', 8 * MB), (24, 'B_mem0', 16384), (28, 'dbg', 256)]
    side = [(g1.S_X, 'B_x', 4 * MB), (g1.S_WC, 'Wk', 8 * MB), (ao.S_OUT, 'out', 8 * MB), (ao.S_AQ, 'A_q', 4 * MB), (ao.S_AK, 'A_k', 4 * MB), (ao.S_AV, 'A_v', 4 * MB), (ao.S_AH, 'A_ssmk', 4 * MB)]
    a('s_cmp_ge_u32 s2, 256')
    a('s_cbranch_scc1 L_exit')
    for r, k, n in ptrs + side: a('s_load_dwordx2 s[%d:%d], s[0:1], %d' % (r, r + 1, KA[k]))
    for r, k, n in ptrs + side:
        a('s_mov_b32 s%d, 0x%x' % (r + 2, n)); a('s_mov_b32 s%d, 0x20000' % (r + 3))
    a('s_waitcnt lgkmcnt(0)')
    mark(a, 0, opt)
    NX = opt.get('NX', 4)
    a('s_and_b32 s3, s2, 7')
    if NX == 4: a('s_cmp_ge_u32 s3, 4')
    else: a('s_cmp_ge_u32 s2, 128')
    a('s_cbranch_scc1 L_side')
    copt = dict(b3pos=32, latepos=40, npre=28, hdelay=2, warm=2, tot=False, NX=NX)
    copt.update(opt.get('chain', {}))
    ch = Chain(a, opt=copt)
    ch.mark = lambda i: mark(a, i, opt, 255)
    if opt.get('only'): a('s_endpgm')
    ch.emit()
    mark(a, 2, opt)
    a('s_endpgm')
    a.label('L_side')
    sW, sT0, sT1 = g1.sW, g1.sT0, g1.sT1
    sTeam, sMem, sTmo = ao.sTeam, ao.sMem, ao.sTmo
    if NX == 4:
        a('s_sub_u32 s%d, s3, 4' % sTeam)
        a('s_lshr_b32 s%d, s2, 3' % sMem)
    else:
        a('s_lshr_b32 s%d, s3, 1' % sTeam)
        a('s_bfe_u32 s%d, s2, 0x40003' % sMem)
        a('s_and_b32 s3, s3, 1')
        a('s_lshl_b32 s3, s3, 4')
        a('s_add_u32 s%d, s%d, s3' % (sMem, sMem))
    a('s_mov_b32 s%d, 400000' % sTmo)
    a('v_lshrrev_b32 v20, 6, v0')
    a('v_readfirstlane_b32 s%d, v20' % sW)
    a('v_and_b32 v0, 63, v0')
    def one_lane_add(val, soff, off, srd=28):
        l = a.newlabel('Lone')
        a('s_cmp_eq_u32 s%d, 0' % sW)
        a('s_cbranch_scc0 %s' % l)
        a('v_mov_b32 v20, %s' % val)
        a('s_mov_b64 exec, 1')
        a('buffer_atomic_add v20, off, s[%d:%d], %s offset:%d sc1' % (srd, srd + 3, soff, off))
        a('s_mov_b64 exec, -1')
        a.label(l)
    sCol = 62
    sGrp = 63
    a('s_lshr_b32 s%d, s%d, 1' % (sCol, sMem))
    a('s_lshl_b32 s%d, s%d, 4' % (sT0, sTeam))
    a('s_add_u32 s%d, s%d, s%d' % (sCol, sCol, sT0))
    a('s_bfe_u32 s%d, s%d, 0x40001' % (sGrp, sCol))
    a('s_lshl_b32 s%d, s%d, 10' % (sGrp, sGrp))
    a('s_add_u32 s%d, s%d, 0x%x' % (sGrp, sGrp, WS_KVC))
    def wait_dbg(off, target, w0only):
        l, ok = a.newlabel('Lwg'), a.newlabel('Lwg')
        if w0only:
            a('s_cmp_eq_u32 s%d, 0' % sW)
            a('s_cbranch_scc0 %s' % ok)
        a.label(l)
        a('buffer_load_dword v20, off, s[28:31], 0 offset:%d sc1' % off)
        a('s_waitcnt vmcnt(0)')
        a('v_readfirstlane_b32 s%d, v20' % sT0)
        a('s_cmp_eq_u32 s%d, %d' % (sT0, target))
        a('s_cbranch_scc1 %s' % ok)
        a('s_sleep 16')
        a('s_sub_u32 s%d, s%d, 1' % (sTmo, sTmo))
        a('s_cbranch_scc0 %s' % l)
        a('s_branch L_side_fail')
        a.label(ok)
    def first_extra():
        a('v_mov_b32 v28, 0')
        a('s_and_b32 s%d, s%d, 15' % (sT0, sMem))
        a('s_lshl_b32 s%d, s%d, 2' % (sT0, sT0))
        a('s_add_u32 s%d, s%d, s%d' % (sT0, sT0, sTeam))
        a('s_lshl_b32 s%d, s%d, 11' % (sT0, sT0))
        a('s_add_u32 s%d, s%d, 0x%x' % (sT0, sT0, WS_CTR))
        a('v_lshlrev_b32 v29, 5, v0')
        a('buffer_store_dword v28, v29, s[4:7], s%d offen sc1' % sT0)
        mark(a, 14, opt)
        return 1
    sJob = g1.sJob
    def cmark(i):
        if not opt.get('marks'): return
        l = a.newlabel('Lmk')
        a('s_cmp_eq_u32 s%d, 2' % sJob)
        a('s_cbranch_scc0 %s' % l)
        mark(a, i, opt)
        a.label(l)
    def sig0():
        ok = a.newlabel('Ls0')
        a('v_readfirstlane_b32 s%d, v21' % sT0)
        a('s_cmp_eq_u32 s%d, 16' % sT0)
        a('s_cbranch_scc1 %s' % ok)
        if not opt.get('only'): wait_dbg(128, 16, True)
        a.label(ok)
        a('s_cmp_le_u32 s%d, 3' % sJob)
        a('s_cselect_b32 s%d, 2, 1' % sT1)
        one_lane_add('s%d' % sT1, 's%d' % g1.sSigD, 0, 4)
        cmark(15)
    NA = 2 if opt.get('mid', False) else 4
    ga = g1.G1(a, 4, 'a')
    ga.NS = opt.get('ns0', 3)
    ga.setup()
    a('s_mov_b32 s%d, 0' % sJob)
    def nj0():
        return ['s_lshl_b32 s56, s%d, 1' % sJob, 's_and_b32 s57, s%d, 1' % sMem, 's_add_u32 s56, s56, s57',
                's_add_u32 s57, s%d, 2' % sJob, ['s_cmp_lt_u32 s%d, 2' % sJob, 's_cselect_b32 s57, s56, s57'],
                's_lshl_b32 s%d, s57, 6' % g1.sSigN, 's_add_u32 s%d, s%d, s%d' % (g1.sSigN, g1.sSigN, sGrp)] + ga.job(56, sCol) + \
               [['s_cmp_ge_u32 s%d, %d' % (sJob, NA), 's_cselect_b32 s%d, 0x%x, s%d' % (g1.sNX, 8 * MB, g1.sNX), 's_cselect_b32 s%d, 0x%x, s%d' % (g1.sNW, 8 * MB, g1.sNW)], 's_add_u32 s%d, s%d, 1' % (sJob, sJob)]
    ga.run(nj0, lambda: a('s_cmp_le_u32 s%d, %d' % (sJob, NA)), sig0, first_extra, None, True, lambda: (cmark(13), a('buffer_load_dword v21, off, s[28:31], 0 offset:128 sc1')))
    mark(a, 1, opt)
    if opt.get('only'): a('s_endpgm')
    if opt.get('mid', False):
        gb = g1.G1(a, 8, 'b')
        gb.setup()
        def nj1():
            return ['s_and_b32 s57, s%d, 1' % sMem, 's_add_u32 s56, s57, 2', 's_lshl_b32 s%d, s56, 6' % g1.sSigN,
                    's_add_u32 s%d, s%d, s%d' % (g1.sSigN, g1.sSigN, sGrp), 's_add_u32 s%d, s%d, 128' % (g1.sSigN, g1.sSigN)] + gb.job(56, sCol)
        gb.single = True
        gb.run(nj1, lambda: a('s_cmp_eq_u32 0, 1'), lambda: one_lane_add(2, 's%d' % g1.sSigD, 0, 4), None, None, True)
    mark(a, 12, opt)
    gc2 = g1.G2(a, 'c')
    gc2.setup()
    a('s_mov_b32 s%d, 0' % sJob)
    def nj2():
        return ['s_and_b32 s56, s%d, 3' % sMem, 's_add_u32 s56, s56, 4', 's_lshr_b32 s57, s%d, 2' % sMem, 's_lshl_b32 s58, s%d, 3' % sTeam, 's_add_u32 s57, s57, s58',
                's_and_b32 s58, s57, 15', 's_lshl_b32 s58, s58, 10', 's_lshl_b32 s%d, s56, 6' % g1.sSigN, 's_add_u32 s%d, s%d, s58' % (g1.sSigN, g1.sSigN),
                's_add_u32 s%d, s%d, 0x%x' % (g1.sSigN, g1.sSigN, WS_KVC + 128),
                's_and_b32 s60, s%d, 7' % sMem, 's_lshr_b32 s61, s%d, 3' % sMem, 's_lshl_b32 s58, s%d, 2' % sTeam, 's_add_u32 s61, s61, s58', 's_add_u32 s61, s61, 32',
                ['s_cmp_ge_u32 s%d, 1' % sJob, 's_cselect_b32 s56, s60, s56', 's_cselect_b32 s57, s61, s57', 's_cselect_b32 s%d, 0x%x, s%d' % (g1.sSigN, WS_DUMP, g1.sSigN)]] + gc2.job(56, 57) + \
               [['s_cmp_ge_u32 s%d, 2' % sJob, 's_cselect_b32 s%d, 0x%x, s%d' % (g1.sNX, 8 * MB, g1.sNX), 's_cselect_b32 s%d, 0x%x, s%d' % (g1.sNW, 8 * MB, g1.sNW)], 's_add_u32 s%d, s%d, 1' % (sJob, sJob)]
    cv = ao.Conv(a); cv.mark = lambda i: mark(a, i, opt)
    def pre_epi():
        l = a.newlabel('Lcw')
        a('s_cmp_le_u32 s%d, 2' % sJob)
        a('s_cbranch_scc1 %s' % l)
        cv.warm(NX)
        a.label(l)
    gc2.run(nj2, lambda: a('s_cmp_le_u32 s%d, 2' % sJob), lambda: one_lane_add(4, 's%d' % g1.sSigD, 0, 4), pre_epi=pre_epi)
    one_lane_add(1, '0', 64)
    mark(a, 2, opt)
    A = ao.AO(a)
    A.ids()
    cv.run(A.sKq, A.sCb)
    mark(a, 3, opt)
    def wait_g1():
        wait_dbg(64, 128, True)
        mark(a, 4, opt)
    def amark(i):
        if not opt.get('marks'): return
        l = a.newlabel('Lmk')
        a('s_cmp_eq_u32 s52, %d' % (opt.get('aopass', 15) + (1 if i == 9 else 0)))
        a('s_cbranch_scc0 %s' % l)
        mark(a, i, opt)
        a.label(l)
    A.mark = amark
    A.run(wait_g1)
    mark(a, 5, opt)
    a.label('L_side_fail')
    a.label('L_exit')
    a('s_endpgm')
    head = open('cdna_kernels/%s.s.ref' % NAME).read().split('; Override launch')[0]
    txt = head + '; @launch grid=(256,1,1) block=(256,1,1) lds=%d\n.amdgcn_target "amdgcn-amd-amdhsa--gfx950"\n.text\n' % LDS
    txt += kernel_head(NAME + '_kernel') + a.finalize()
    txt += '.section .rodata,"a"\n.p2align 6\n' + kernel_desc(NAME + '_kernel')
    return txt

if __name__ == '__main__':
    for spec in sys.argv[1:]:
        name, _, o = spec.partition('=')
        open(name, 'w').write(build(json.loads(o) if o else {}))
```

```python
import math, struct
from ag import *
from common import *
from gen_g1 import S_WS, S_WO, S_DBG, sW, sT0, sT1, sT2, sT3
def f2u(x): return struct.unpack('<I', struct.pack('<f', x))[0]

S_OUT = 80; S_AQ = 84; S_AK = 88; S_AV = 92; S_AH = 96
sTeam, sMem = 53, 54
sTmo = 55

def bits(a, dst, terms, init=None, tmp=31):
    first = init is None
    if not first: a('v_mov_b32 v%d, %s' % (dst, init))
    for (src, n, sh) in terms:
        a('v_bfe_u32 v%d, v0, %d, %d' % (tmp, src, n))
        if first: a('v_lshlrev_b32 v%d, %d, v%d' % (dst, sh, tmp)); first = False
        else: a('v_lshl_add_u32 v%d, v%d, %d, v%d' % (dst, tmp, sh, dst))

class AO:
    def mark(s, i): pass
    sA, sPf, sBuf, sScale, sKm, sOst, sOld, sI, sO = 45, 46, 47, 48, 49, 50, 51, 52, 56
    sF = 57
    sMask = 58
    sHi = 74
    sCO, sCP, sKq, sCb = 76, 77, 78, 79
    sS, sPst, sPld, sDo = 32, 33, 34, 35
    sDn, sPo, sFo, bKm = 36, 37, 38, 39
    bOst, bOld, bCO, bCP = 84, 85, 86, 87
    sSch, sNit = 88, 92
    @staticmethod
    def sched(N): return [sum(1 << i for i in L) for L in (list(range(N - 1)) + [N + 2], list(range(1, N)) + [N + 3], list(range(3, N + 2)) + [N + 4], list(range(2, N + 1)) + [N + 4])]
    vL16, vQr, vKr, vVr, vMr, vIdx, vNeg, vOr, vOst, vKmw = range(1, 11)
    vT = 12
    vP = 24
    vQ = 32; vK = 48; vKm = 80; vS = 88; vA = 100; vD = 124
    vF = 140
    vB = 156
    L_KM = 24576
    L_O = 32768
    BUF1 = 98304
    DENS = 3
    RB = True
    def __init__(s, a): s.a = a
    def prefetch_list(s):
        o = [['s_lshl_b32 s%d, s%d, 18' % (sT0, s.sPf), 's_lshl_b32 s%d, s%d, 12' % (sT1, sMem), 's_add_u32 s%d, s%d, s%d' % (sT0, sT0, sT1),
              's_lshl_b32 s%d, s%d, 10' % (sT1, sW), 's_add_u32 s%d, s%d, s%d' % (sT0, sT0, sT1), 's_add_u32 s%d, s%d, s%d' % (sT1, sT1, s.sBuf)]]
        for mi, base in enumerate((WS_QF, WS_KF, WS_VF)):
            for tau in range(2):
                o.append(['s_add_u32 m0, s%d, %d' % (sT1, mi * 8192 + tau * 4096), 's_add_u32 s%d, s%d, 0x%x' % (sT2, sT0, base + tau * 131072),
                          'buffer_load_dwordx4 v%d, s[%d:%d], s%d offen sc1 lds' % (s.vL16, S_WS, S_WS + 3, sT2)])
        return o
    def odma_list(s):
        o = []
        for i in range(16):
            g = []
            if i % 4 == 0:
                g += ['s_add_u32 m0, s%d, %d' % (sT3, i * 1024), 's_add_u32 s%d, s%d, %d' % (sT2, s.sOld, i * 1024)]
            g.append('buffer_load_dwordx4 v%d, s[%d:%d], s%d offen offset:%d sc1 lds' % (s.vL16, S_WS, S_WS + 3, sT2, (i % 4) * 1024))
            o.append(g)
        o[0] = ['s_and_b32 s%d, s%d, 1' % (sT3, sW), 's_lshl_b32 s%d, s%d, 15' % (sT3, sT3), 's_lshr_b32 s%d, s%d, 1' % (sT2, sW), 's_lshl_b32 s%d, s%d, 14' % (sT2, sT2),
                's_add_u32 s%d, s%d, s%d' % (sT3, sT3, sT2), 's_add_u32 s%d, s%d, %d' % (sT3, sT3, s.L_O)] + o[0]
        return o
    def flat(s, L):
        for g in L:
            for x in g: s.a(x)
    def ids(s):
        s.a('s_lshr_b32 s%d, s%d, 3' % (s.sKq, sMem))
        s.a('s_and_b32 s%d, s%d, 7' % (s.sCb, sMem))
    def load_wo(s, first=None):
        a = s.a; vT = s.vT
        a('s_and_b32 s%d, s%d, 1' % (sT0, sW))
        a('s_lshl_b32 s%d, s%d, 2' % (sT0, sT0))
        bits(a, vT + 2, [(4, 2, 0)], 's%d' % sT0)
        a('v_lshlrev_b32 v%d, 1, v%d' % (vT + 3, vT + 2))
        a('v_xor_b32 v%d, v0, v%d' % (vT + 3, vT + 3))
        a('v_and_b32 v%d, 15, v%d' % (vT + 3, vT + 3))
        a('v_lshlrev_b32 v%d, 4, v%d' % (vT + 3, vT + 3))
        a('v_lshl_add_u32 v%d, v%d, 11, v%d' % (vT, vT + 2, vT + 3))
        a('s_lshl_b32 s%d, s%d, 10' % (sT3, sW))
        a('s_lshl_b32 s%d, s%d, 21' % (sT0, s.sKq))
        a('s_lshl_b32 s%d, s%d, 8' % (sT1, s.sCb))
        a('s_add_u32 s%d, s%d, s%d' % (sT0, sT0, sT1))
        a('s_lshr_b32 s%d, s%d, 1' % (sT1, sW))
        a('s_lshl_b32 s%d, s%d, 14' % (sT1, sT1))
        a('s_add_u32 s%d, s%d, s%d' % (sT0, sT0, sT1))
        bits(a, vT + 2, [(2, 3, 0)])
        a('s_lshl_b32 s%d, s%d, 1' % (sT1, sW))
        a('v_xor_b32 v%d, s%d, v%d' % (vT + 2, sT1, vT + 2))
        bits(a, vT + 3, [(2, 4, 8), (0, 2, 3)])
        for nt in range(2):
            a('v_xor_b32 v%d, %d, v%d' % (vT + 4, nt, vT + 2))
            a('v_lshl_add_u32 v%d, v%d, 5, v%d' % (vT + 5 + nt, vT + 4, vT + 3))
            a('v_add_u32 v%d, 0x10000, v%d' % (vT + 7 + nt, vT + 5 + nt))
        def dma(q):
            for i in range(16):
                a('s_add_u32 m0, s%d, %d' % (sT3, (q % 2) * 65536 + i * 4096))
                a('buffer_load_dwordx4 v%d, s[%d:%d], s%d offen lds' % (vT, S_WO, S_WO + 3, sT0))
                a('s_add_u32 s%d, s%d, 0x8000' % (sT0, sT0))
        dma(0); dma(1)
        for q in range(4):
            a('s_waitcnt vmcnt(%d)' % (16 if q < 3 else 0))
            a('s_barrier')
            if q == 0 and first: first()
            for k in range(8):
                for nt in range(2):
                    for v2 in range(2):
                        a('ds_read_b64_tr_b16 %s, v%d offset:%d' % (ar(((q * 8 + k) * 2 + nt) * 4 + 2 * v2, 2), vT + 5 + 2 * (q % 2) + nt, (32 * k + 16 * v2) * 256))
                a('s_waitcnt lgkmcnt(8)')
            a('s_waitcnt lgkmcnt(0)')
            a('s_barrier')
            if q < 2: dma(q + 2)
    def setup(s):
        a = s.a; vT = s.vT
        a('v_lshlrev_b32 v%d, 4, v0' % s.vL16)
        a('v_add_u32 v%d, %d, v%d' % (s.vOr, s.L_O, s.vL16))
        a('v_lshlrev_b32 v11, 7, v0')
        a('s_and_b32 s%d, s%d, 1' % (sT0, sW))
        a('s_lshr_b32 s%d, s%d, 1' % (sT1, sW))
        a('s_lshl_b32 s%d, s%d, 12' % (sT2, sT0))
        a('v_add_u32 v%d, s%d, v%d' % (s.vQr, sT2, s.vL16))
        a('v_add_u32 v%d, 8192, v%d' % (s.vKr, s.vL16))
        a('s_lshl_b32 s%d, s%d, 11' % (sT2, sT1))
        a('s_add_u32 s%d, s%d, 16384' % (sT2, sT2))
        bits(a, s.vVr, [(0, 2, 8), (2, 4, 4)], 's%d' % sT2)
        a('s_lshl_b32 s%d, s%d, 10' % (sT2, sT1))
        a('s_add_u32 s%d, s%d, %d' % (sT2, sT2, s.L_KM + 2048))
        bits(a, s.vMr, [(3, 1, 8), (4, 2, 6), (1, 1, 5), (2, 1, 3), (0, 1, 1)], 's%d' % sT2)
        for i in range(2): a('s_mov_b32 s%d, 0xcccccccc' % (s.sHi + i))
        a('v_mov_b32 v%d, 0x4444' % vT)
        a('v_mov_b32 v%d, 0xeeee' % (vT + 1))
        a('v_cndmask_b32 v%d, v%d, v%d, s[%d:%d]' % (s.vIdx, vT, vT + 1, s.sHi, s.sHi + 1))
        a('v_mov_b32 v%d, 0x%x' % (s.vNeg, f2u(-1e9 * math.sqrt(128))))
        a('s_mov_b32 s%d, 0x%x' % (s.sScale, f2u(math.log2(math.e) / math.sqrt(128))))
        a('s_lshl_b32 s%d, s%d, 4' % (sT2, sT0))
        bits(a, vT, [(0, 4, 0)], 's%d' % sT2)
        bits(a, vT + 1, [(4, 2, 2)])
        a('v_sub_u32 v%d, v%d, v%d' % (vT, vT, vT + 1))
        for k in range(8):
            a('v_cmp_le_i32 s[%d:%d], %d, v%d' % (s.sMask + 2 * k, s.sMask + 2 * k + 1, 16 * (k // 4) + k % 4, vT))
        a('s_lshl_b32 s%d, s%d, 10' % (sT2, sW))
        a('v_add_u32 v%d, s%d, v%d' % (s.vKmw, sT2, s.vL16))
        a('s_lshl_b32 s%d, s%d, 16' % (sT2, sT1))
        a('s_lshl_b32 s%d, s%d, 5' % (sT3, sT0))
        a('s_add_u32 s%d, s%d, s%d' % (sT2, sT2, sT3))
        a('s_lshl_b32 s%d, s%d, 6' % (sT3, s.sKq))
        a('s_add_u32 s%d, s%d, s%d' % (sT2, sT2, sT3))
        a('s_lshl_b32 s%d, s%d, 8' % (sT3, s.sCb))
        a('s_add_u32 s%d, s%d, s%d' % (sT2, sT2, sT3))
        a('s_add_u32 s%d, s%d, 2048' % (sT2, sT2))
        bits(a, s.vOst, [(0, 4, 12), (4, 2, 3)], 's%d' % sT2)
        for et in range(4): a('v_mov_b32 v%d, 0' % (s.vA + 6 * et + 5))
        a('s_lshl_b32 s%d, s%d, 16' % (sT2, s.sCb))
        a('s_add_u32 s%d, s%d, 0x%x' % (sT2, sT2, WS_PO))
        a('s_lshl_b32 s%d, s%d, 14' % (s.sPst, sW))
        a('s_lshl_b32 s%d, s%d, 10' % (sT3, s.sKq))
        a('s_add_u32 s%d, s%d, s%d' % (s.sPst, s.sPst, sT3))
        a('s_add_u32 s%d, s%d, s%d' % (s.sPst, s.sPst, sT2))
        a('s_lshl_b32 s%d, s%d, 14' % (s.sPld, s.sKq))
        a('s_lshl_b32 s%d, s%d, 12' % (sT3, sW))
        a('s_add_u32 s%d, s%d, s%d' % (s.sPld, s.sPld, sT3))
        a('s_add_u32 s%d, s%d, s%d' % (s.sPld, s.sPld, sT2))
    def next_list(s):
        o = []
        for bit, r in ((0, s.sA), (1, s.sO), (2, s.sF), (3, s.sS)):
            o += [['s_cmp_lt_u32 s%d, 24' % r, 's_cselect_b32 s%d, 3, 4' % sT0], ['s_bitcmp1_b32 s%d, %d' % (s.sDo, bit), 's_cselect_b32 s%d, s%d, 0' % (sT0, sT0)], 's_add_u32 s%d, s%d, s%d' % (r, r, sT0)]
        o += ['s_add_u32 s%d, s%d, 1' % (s.sI, s.sI)]
        for k in range(4):
            o += ['s_lshr_b32 s%d, s%d, s%d' % (sT0, s.sSch + k, s.sI), 's_and_b32 s%d, s%d, 1' % (sT0 if k else s.sDn, sT0)]
            if k: o += ['s_lshl_b32 s%d, s%d, %d' % (sT0, sT0, k), 's_or_b32 s%d, s%d, s%d' % (s.sDn, s.sDn, sT0)]
        o += ['s_lshl_b32 s%d, s%d, 17' % (s.sKm, s.sA), 's_add_u32 s%d, s%d, s%d' % (s.sKm, s.sKm, s.bKm),
              's_lshl_b32 s%d, s%d, 11' % (s.sCO, s.sO), 's_add_u32 s%d, s%d, s%d' % (s.sCO, s.sCO, s.bCO),
              s.km_ld(), s.ld_ctr(0),
              's_lshl_b32 s%d, s%d, 18' % (s.sOst, s.sA), 's_add_u32 s%d, s%d, s%d' % (s.sOst, s.sOst, s.bOst),
              's_lshl_b32 s%d, s%d, 18' % (s.sOld, s.sO), 's_add_u32 s%d, s%d, s%d' % (s.sOld, s.sOld, s.bOld),
              's_lshl_b32 s%d, s%d, 11' % (s.sCP, s.sF), 's_add_u32 s%d, s%d, s%d' % (s.sCP, s.sCP, s.bCP),
              'v_mov_b32 v%d, 0' % (s.vP + 5)]
        return ['\n'.join(x) if isinstance(x, list) else x for x in o]
    def bases(s):
        a = s.a
        a('s_lshl_b32 s%d, s%d, 12' % (sT0, sMem))
        a('s_add_u32 s%d, s%d, 0x%x' % (s.bKm, sT0, WS_KVM))
        a('s_and_b32 s%d, s%d, 1' % (sT1, sW))
        a('s_lshl_b32 s%d, s%d, 17' % (sT1, sT1))
        a('s_add_u32 s%d, s%d, 0x%x' % (sT1, sT1, WS_O))
        a('s_lshr_b32 s%d, s%d, 1' % (sT2, sW))
        a('s_add_u32 s%d, s%d, s%d' % (s.bOst, sT1, sT0))
        a('s_lshl_b32 s%d, s%d, 11' % (sT0, sT2))
        a('s_add_u32 s%d, s%d, s%d' % (s.bOst, s.bOst, sT0))
        a('s_lshl_b32 s%d, s%d, 15' % (sT0, s.sKq))
        a('s_add_u32 s%d, s%d, s%d' % (s.bOld, sT1, sT0))
        a('s_lshl_b32 s%d, s%d, 14' % (sT0, sT2))
        a('s_add_u32 s%d, s%d, s%d' % (s.bOld, s.bOld, sT0))
        a('s_lshl_b32 s%d, s%d, 7' % (sT0, s.sKq))
        a('s_add_u32 s%d, s%d, 0x%x' % (s.bCO, sT0, WS_CTR))
        a('s_lshl_b32 s%d, s%d, 7' % (sT0, s.sCb))
        a('s_add_u32 s%d, s%d, 0x%x' % (s.bCP, sT0, WS_CTR + 512))
    def km_ld(s): return 'buffer_load_dwordx4 %s, v%d, s[%d:%d], s%d offen sc1' % (vr(s.vP, 4), s.vKmw, S_WS, S_WS + 3, s.sKm)
    def ld_km(s): s.a('buffer_load_dwordx4 %s, v%d, s[%d:%d], s%d offen sc1' % (vr(s.vP, 4), s.vKmw, S_WS, S_WS + 3, s.sKm))
    def ld_ctr(s, k): return 'buffer_load_dword v%d, off, s[%d:%d], s%d sc1' % (s.vP + 4 + k, S_WS, S_WS + 3, (s.sCO, s.sCP)[k])
    def spin(s, ld, chk, sleep):
        a = s.a
        l, ok = a.newlabel('Lsp'), a.newlabel('Lsp')
        a.label(l)
        chk(ok)
        a('s_sleep %d' % sleep)
        ld()
        a('s_waitcnt vmcnt(0)')
        a('s_sub_u32 s%d, s%d, 1' % (sTmo, sTmo))
        a('s_cbranch_scc0 %s' % l)
        a('s_branch L_side_fail')
        a.label(ok)
    def wait_km(s):
        a = s.a; vP = s.vP
        def chk(ok):
            a('v_max3_u32 v%d, v%d, v%d, v%d' % (s.vT, vP, vP + 1, vP + 2))
            a('v_max_u32 v%d, v%d, v%d' % (s.vT, s.vT, vP + 3))
            a('v_cmp_eq_u32 vcc, -1, v%d' % s.vT)
            a('s_cbranch_vccz %s' % ok)
        s.spin(s.ld_km, chk, 4)
    def wait_ctr(s, k):
        a = s.a
        def chk(ok):
            a('v_readfirstlane_b32 s%d, v%d' % (sT0, s.vP + 4 + k))
            a('s_cmp_eq_u32 s%d, %d' % (sT0, (8, 4)[k]))
            a('s_cbranch_scc1 %s' % ok)
        s.spin(lambda: a(s.ld_ctr(k)), chk, 2)
    def signals(s):
        a = s.a
        l = a.newlabel('Lsig')
        a('s_cmp_eq_u32 s%d, 0' % sW)
        a('s_cbranch_scc0 %s' % l)
        a('v_mov_b32 v%d, 1' % (s.vT + 2))
        a('s_mov_b64 exec, 1')
        for bit, r, b in ((0, s.sA, s.bCO), (3, s.sS, s.bCP)):
            a('s_lshl_b32 s%d, s%d, 11' % (sT0, r))
            a('s_add_u32 s%d, s%d, s%d' % (sT0, sT0, b))
            a('s_bitcmp1_b32 s%d, %d' % (s.sDo, bit))
            a('s_cselect_b32 s%d, s%d, 0x%x' % (sT0, sT0, WS_DUMP))
            a('buffer_atomic_add v%d, off, s[%d:%d], s%d sc1' % (s.vT + 2, S_WS, S_WS + 3, sT0))
        a('s_mov_b64 exec, -1')
        a.label(l)
    def cond(s, bit, label):
        s.a('s_bitcmp1_b32 s%d, %d' % (s.sDo, bit))
        s.a('s_cbranch_scc0 %s' % label)
    def attn(s):
        A = s.a; vT = s.vT; vQ, vK, vKm, vS, vA, vD = s.vQ, s.vK, s.vKm, s.vS, s.vA, s.vD
        fill = s.odma_list() + s.prefetch_list() + [[s.ld_ctr(1)]]
        st = {'n': 0}
        def a(x):
            A(x)
            st['n'] += 1
            if st['n'] % s.DENS == 0 and fill:
                for y in fill.pop(0): A(y)
        for i in range(4): a('v_mov_b32 v%d, 0' % (vS + 8 + i))
        for t in range(4): a('ds_read_b128 %s, v%d offset:%d' % (vr(vQ + 4 * t, 4), s.vQr, t * 1024))
        for i in range(8): a('ds_read_b128 %s, v%d offset:%d' % (vr(vK + 4 * i, 4), s.vKr, i * 1024))
        for T in range(2): a('ds_read_b128 %s, v%d offset:%d' % (vr(vKm + 4 * T, 4), s.vL16, s.L_KM + T * 1024))
        a('s_waitcnt lgkmcnt(0)')
        for et in range(4):
            for tau in range(2):
                a('ds_read_b64_tr_b16 %s, v%d offset:%d' % (vr(vA + 6 * et + 2 * tau, 2), s.vVr, tau * 4096 + (et // 2) * 1024 + (et % 2) * 8))
        for t in range(4):
            for tau in range(2):
                a('v_mfma_f32_16x16x32_bf16 %s, %s, %s, %s' % (vr(vS + 4 * tau, 4), vr(vK + 16 * tau + 4 * t, 4), vr(vQ + 4 * t, 4), '0' if t == 0 else vr(vS + 4 * tau, 4)))
        for T in range(2):
            a('v_smfmac_f32_16x16x64_bf16 %s, %s, %s, v%d' % (vr(vS + 8, 4), vr(vKm + 4 * T, 4), vr(vQ + 8 * T, 8), s.vIdx))
        a('s_waitcnt lgkmcnt(0)')
        for et in range(4):
            a('ds_read_u16 v%d, v%d offset:%d' % (vA + 6 * et + 4, s.vMr, (et // 2) * 512 + (et % 2) * 4))
            a('ds_read_u16 v%d, v%d offset:%d' % (vT + 8 + et, s.vMr, (et // 2) * 512 + (et % 2) * 4 + 16))
        for k in range(8): a('v_cndmask_b32 v%d, v%d, v%d, s[%d:%d]' % (vS + k, s.vNeg, vS + k, s.sMask + 2 * k, s.sMask + 2 * k + 1))
        a('v_pk_add_f32 %s, %s, %s' % (vr(vS + 8, 2), vr(vS + 8, 2), vr(vS + 10, 2)))
        m, m2 = vT, vT + 1
        def xred(op):
            for sw in ('v_permlane16_swap_b32', 'v_permlane32_swap_b32'):
                a('v_mov_b32 v%d, v%d' % (m2, m))
                a('%s v%d, v%d' % (sw, m, m2))
                a('%s v%d, v%d, v%d' % (op, m, m, m2))
        a('v_max3_f32 v%d, v%d, v%d, v%d' % (m, vS, vS + 1, vS + 2))
        for k in range(3, 9, 2): a('v_max3_f32 v%d, v%d, v%d, v%d' % (m, m, vS + k, vS + k + 1))
        a('v_max_f32 v%d, v%d, v%d' % (m, m, vS + 9))
        xred('v_max_f32')
        a('v_mul_f32 v%d, s%d, v%d' % (m, s.sScale, m))
        for k in range(10): a('v_fma_f32 v%d, v%d, s%d, -v%d' % (vS + k, vS + k, s.sScale, m))
        for k in range(10): a('v_exp_f32 v%d, v%d' % (vS + k, vS + k))
        a('v_pk_add_f32 %s, %s, %s' % (vr(m, 2), vr(vS, 2), vr(vS + 2, 2)))
        for k in (4, 6, 8): a('v_pk_add_f32 %s, %s, %s' % (vr(m, 2), vr(m, 2), vr(vS + k, 2)))
        a('v_add_f32 v%d, v%d, v%d' % (m, m, m2))
        xred('v_add_f32')
        a('v_rcp_f32 v%d, v%d' % (m, m))
        for k in range(10): a('v_mul_f32 v%d, v%d, v%d' % (vS + k, vS + k, m))
        p = vT + 2
        for k in range(5): a('v_cvt_pk_bf16_f32 v%d, v%d, v%d' % (p + k, vS + 2 * k, vS + 2 * k + 1))
        a('v_mov_b32 v%d, 0' % (p + 5))
        a('s_waitcnt lgkmcnt(0)')
        for et in range(4): a('v_lshl_or_b32 v%d, v%d, 16, v%d' % (vA + 6 * et + 4, vT + 8 + et, vA + 6 * et + 4))
        for et in range(4): a('v_mfma_f32_16x16x32_bf16 %s, %s, %s, 0' % (vr(vD + 4 * et, 4), vr(vA + 6 * et, 4), vr(p, 4)))
        for et in range(4): a('v_mfma_f32_16x16x16_bf16 %s, %s, %s, %s' % (vr(vD + 4 * et, 4), vr(vA + 6 * et + 4, 2), vr(p + 4, 2), vr(vD + 4 * et, 4)))
        for pr in range(2):
            r = vD + 8 * pr
            for i in range(4): a('v_cvt_pk_bf16_f32 v%d, v%d, v%d' % (r + i, r + 2 * i, r + 2 * i + 1))
            a('buffer_store_dwordx4 %s, v%d, s[%d:%d], s%d offen offset:%d sc1' % (vr(r, 4), s.vL16, S_WS, S_WS + 3, s.sOst, pr * 1024))
        assert not fill
        a = A
        for r in (s.vQr, s.vKr, s.vVr): a('v_xor_b32 v%d, 0x%x, v%d' % (r, s.BUF1, r))
    def readback(s):
        if not s.RB: return
        a = s.a
        a('s_bitcmp1_b32 s%d, 0' % s.sDo)
        a('s_cselect_b32 s%d, s%d, 0x%x' % (sT0, s.sOst, WS_DUMP))
        a('s_mov_b64 exec, 0xffff')
        a('buffer_load_dword v%d, v11, s[%d:%d], s%d offen sc1' % (s.vT + 3, S_WS, S_WS + 3, sT0))
        a('s_mov_b64 exec, -1')
    def fload(s):
        a = s.a
        l = a.newlabel('Lf')
        s.cond(2, l)
        s.wait_ctr(1)
        a('s_lshl_b32 s%d, s%d, 19' % (sT0, s.sF))
        a('s_add_u32 s%d, s%d, s%d' % (sT0, sT0, s.sPld))
        for i in range(4): a('buffer_load_dwordx4 %s, v%d, s[%d:%d], s%d offen offset:%d sc1' % (vr(s.vF + 4 * i, 4), s.vL16, S_WS, S_WS + 3, sT0, i * 1024))
        a.label(l)
        a('s_lshl_b32 s%d, s%d, 17' % (s.sFo, s.sF))
        a('s_bitcmp1_b32 s%d, 2' % s.sDo)
        a('s_cselect_b32 s%d, s%d, 0x%x' % (s.sFo, s.sFo, WS_DUMP))
    def oproj(s):
        a = s.a; vD = s.vD; vB = s.vB
        seq = [(rt, k) for k in range(32) for rt in range(2)]
        NB, AH = 12, 10
        def rd(i):
            rt, k = seq[i]
            a('ds_read_b128 %s, v%d offset:%d' % (vr(vB + 4 * (i % NB), 4), s.vOr, rt * 32768 + k * 1024))
        for i in range(AH): rd(i)
        a('s_lshl_b32 s%d, s%d, 19' % (s.sPo, s.sO))
        a('s_add_u32 s%d, s%d, s%d' % (s.sPo, s.sPo, s.sPst))
        nl = s.next_list()
        for i, (rt, k) in enumerate(seq):
            if i + AH < 64: rd(i + AH)
            a('s_waitcnt lgkmcnt(%d)' % min(AH, 63 - i))
            for nt in range(2):
                d = vr(vD + 4 * (2 * rt + nt), 4)
                a('v_mfma_f32_16x16x32_bf16 %s, %s, %s, %s' % (d, ar((k * 2 + nt) * 4, 4), vr(vB + 4 * (i % NB), 4), '0' if k == 0 else d))
                if i >= 38 and nl: a(nl.pop(0))
            if i == 16:
                a('s_waitcnt vmcnt(0)')
                a('s_barrier')
                s.signals()
                s.readback()
                s.fload()
        assert not nl
        a('s_waitcnt vmcnt(2)')
        for t in range(4):
            a('buffer_store_dwordx4 %s, v%d, s[%d:%d], s%d offen sc1' % (vr(vD + 4 * t, 4), s.vL16, S_WS, S_WS + 3, s.sPo))
            a('s_add_u32 s%d, s%d, 4096' % (s.sPo, s.sPo))
    def run(s, wait_g1):
        a = s.a; vT = s.vT; vF = s.vF
        s.setup()
        s.bases()
        wait_g1()
        a('s_barrier')
        for k in range(4): a('s_mov_b32 s%d, 0x%x' % (s.sSch + k, s.sched(18)[k]))
        a('s_cmp_eq_u32 s%d, 3' % sTeam)
        for k in range(4): a('s_cselect_b32 s%d, 0x%x, s%d' % (s.sSch + k, s.sched(10)[k], s.sSch + k))
        a('s_cselect_b32 s%d, 15, 23' % s.sNit)
        for r in (s.sA, s.sO, s.sF, s.sS, s.sPf): a('s_cselect_b32 s%d, 27, s%d' % (r, sTeam))
        a('s_mov_b32 s%d, 0' % s.sBuf)
        a('s_mov_b32 s%d, -1' % s.sI)
        a('s_mov_b32 s%d, 0' % s.sDo)
        s.flat(s.prefetch_list())
        for x in s.next_list(): a(x)
        a('s_waitcnt vmcnt(0)')
        a.label('L_ao_loop')
        s.mark(10); s.mark(9)
        a('s_mov_b32 s%d, s%d' % (s.sDo, s.sDn))
        a('s_bitcmp1_b32 s%d, 1' % s.sDo)
        a('s_cselect_b32 s%d, s%d, 0x%x' % (s.sOld, s.sOld, WS_DUMP))
        a('s_cbranch_scc0 L_ao_2')
        s.wait_ctr(0)
        a.label('L_ao_2')
        s.cond(0, 'L_ao_noA')
        s.wait_km()
        a('ds_write_b128 v%d, %s offset:%d' % (s.vKmw, vr(s.vP, 4), s.L_KM))
        a('s_cmp_lt_u32 s%d, 24' % s.sA)
        a('s_cselect_b32 s%d, 3, 4' % s.sPf)
        a('s_add_u32 s%d, s%d, s%d' % (s.sPf, s.sPf, s.sA))
        ll = a.newlabel('Lao')
        a('s_lshr_b32 s%d, s%d, 2' % (sT0, s.sPf))
        a('s_cmp_eq_u32 s%d, 12' % sT0)
        a('s_cbranch_scc0 %s' % ll)
        s.wait_late()
        a.label(ll)
        a('s_cmp_lt_u32 s%d, 64' % s.sPf)
        a('s_cselect_b32 s%d, s%d, 1024' % (s.sPf, s.sPf))
        a('s_xor_b32 s%d, s%d, 0x%x' % (s.sBuf, s.sBuf, s.BUF1))
        a('s_waitcnt lgkmcnt(0)')
        a('s_barrier')
        s.mark(11)
        s.attn()
        s.cond(1, 'L_ao_noO')
        a('s_waitcnt vmcnt(9)')
        a('s_branch L_ao_3')
        a.label('L_ao_noA')
        s.cond(1, 'L_ao_noO')
        a('s_barrier')
        s.flat(s.odma_list())
        a('s_waitcnt vmcnt(0)')
        a.label('L_ao_3')
        a('s_barrier')
        s.mark(12)
        s.oproj()
        a('s_branch L_ao_6')
        a.label('L_ao_noO')
        a('s_waitcnt vmcnt(0)')
        a('s_barrier')
        s.signals()
        s.fload()
        for x in s.next_list(): a(x)
        a('s_waitcnt vmcnt(0)')
        a.label('L_ao_6')
        for h in range(2):
            a('v_pk_add_f32 %s, %s, %s' % (vr(vF + 2 * h, 2), vr(vF + 2 * h, 2), vr(vF + 4 + 2 * h, 2)))
            a('v_pk_add_f32 %s, %s, %s' % (vr(vF + 8 + 2 * h, 2), vr(vF + 8 + 2 * h, 2), vr(vF + 12 + 2 * h, 2)))
            a('v_pk_add_f32 %s, %s, %s' % (vr(vF + 2 * h, 2), vr(vF + 2 * h, 2), vr(vF + 8 + 2 * h, 2)))
            a('v_cvt_pk_bf16_f32 v%d, v%d, v%d' % (vT + h, vF + 2 * h, vF + 2 * h + 1))
        a('buffer_store_dwordx2 %s, v%d, s[%d:%d], s%d offen' % (vr(vT, 2), s.vOst, S_OUT, S_OUT + 3, s.sFo))
        a('s_waitcnt vmcnt(5)')
        a('s_cmp_lt_u32 s%d, s%d' % (s.sI, s.sNit))
        a('s_cbranch_scc1 L_ao_loop')

class Conv:
    def mark(s, i): pass
    CH = 7600
    L_H = 8 * 7600
    HC = 4160
    L_W = 8 * 7600 + 16 * 4160
    def __init__(s, a): s.a = a
    def warm(s, NX=4):
        a = s.a
        a('s_and_b32 s%d, s%d, %d' % (sT0, sMem, 31 if NX == 4 else 15))
        a('s_lshl_b32 s%d, s%d, 2' % (sT0, sT0))
        a('s_add_u32 s%d, s%d, s%d' % (sT0, sT0, sW))
        a('s_lshl_b32 s%d, s%d, %d' % (sT0, sT0, 15 if NX == 4 else 16))
        a('s_lshl_b32 s%d, s%d, 9' % (sT1, sTeam))
        a('s_add_u32 s%d, s%d, s%d' % (sT0, sT0, sT1))
        if NX == 4: bits(a, 28, [(2, 4, 11), (0, 2, 7)])
        else:
            a('s_lshr_b32 s%d, s%d, 4' % (sT1, sMem))
            a('s_lshl_b32 s%d, s%d, 8' % (sT1, sT1))
            a('s_add_u32 s%d, s%d, s%d' % (sT0, sT0, sT1))
            bits(a, 28, [(1, 5, 11), (0, 1, 7)])
        for i, srd in enumerate((S_AK, S_AV, S_AQ)): a('buffer_load_dword v%d, v28, s[%d:%d], s%d offen' % (20 + i, srd, srd + 3, sT0))
        a('s_lshl_b32 s%d, s%d, 5' % (sT0, sTeam))
        a('s_add_u32 s%d, s%d, s%d' % (sT0, sT0, sMem))
        a('s_lshl_b32 s%d, s%d, 2' % (sT0, sT0))
        a('s_add_u32 s%d, s%d, s%d' % (sT0, sT0, sW))
        a('s_lshl_b32 s%d, s%d, 13' % (sT0, sT0))
        a('v_lshlrev_b32 v28, 7, v0')
        a('buffer_load_dword v23, v28, s[%d:%d], s%d offen' % (S_AH, S_AH + 3, sT0))
    def run(s, sKq=None, sCb=None):
        a = s.a
        WO = sKq is not None
        CH, L_H, HC = s.CH, s.L_H, s.HC
        sD0, sWs, sWl, sRaw = 45, 46, 47, 56
        vRow, vW, vG, vBp, vY, vHl, vHw, vWs, vWr, vT = 1, 2, 3, 4, 5, 6, 7, 8, 9, 10
        vKV = 32; vC = 64; vK = 104; vV = 148; vE = 180; hw = 232
        vm = []
        def issue(tag, x): a(x); vm.append(tag)
        def wait(tag):
            k = max(i for i, t in enumerate(vm) if t == tag)
            a('s_waitcnt vmcnt(%d)' % (len(vm) - 1 - k))
        a('s_barrier')
        a('s_lshl_b32 s%d, s%d, 5' % (sD0, sTeam))
        a('s_add_u32 s%d, s%d, s%d' % (sD0, sD0, sMem))
        a('s_load_dwordx2 s[72:73], s[0:1], %d' % KA['A_shift'])
        a('s_load_dwordx2 s[74:75], s[0:1], %d' % KA['A_ssmD'])
        a('s_lshl_b32 s%d, s%d, 6' % (sT0, sD0))
        a('s_lshl_b32 s%d, s%d, 4' % (sT1, sD0))
        a('s_waitcnt lgkmcnt(0)')
        a('s_load_dwordx16 s[56:71], s[72:73], s%d' % sT0)
        a('s_load_dwordx4 s[48:51], s[74:75], s%d' % sT1)
        a('s_lshl_b32 s%d, s%d, 20' % (sT0, sW))
        a('s_add_u32 s%d, s%d, s%d' % (sT0, sT0, sT1))
        bits(a, vRow, [(0, 6, 14)], 's%d' % sT0)
        for r in range(-3, 8):
            a('v_add_u32 v%d, 0x%x, v%d' % (vT, (r * 2048) & 0xffffffff, vRow))
            issue('kv', 'buffer_load_dwordx4 %s, v%d, s[%d:%d], 0 offen' % (vr(vK + 4 * (r + 3), 4), vT, S_AK, S_AK + 3))
            if r >= 0: issue('kv', 'buffer_load_dwordx4 %s, v%d, s[%d:%d], 0 offen' % (vr(vV + 4 * r, 4), vT, S_AV, S_AV + 3))
        a('s_lshl_b32 s%d, s%d, 15' % (sT0, sD0))
        a('s_lshl_b32 s%d, s%d, 13' % (sT1, sW))
        a('s_add_u32 s%d, s%d, s%d' % (sT0, sT0, sT1))
        bits(a, vHl, [(0, 6, 4)], 's%d' % sT0)
        def hload(ch):
            if ch: a('v_add_u32 v%d, 4096, v%d' % (vHl, vHl))
            a('v_subrev_u32 v%d, 8, v%d' % (vT + 1, vHl))
            for i in range(4):
                issue('h%d' % ch, 'buffer_load_dwordx2 %s, v%d, s[%d:%d], 0 offen offset:%d' % (vr(hw + 6 * i, 2), vT + 1 if i == 0 else vHl, S_AH, S_AH + 3, 0 if i == 0 else i * 1024 - 8))
                issue('h%d' % ch, 'buffer_load_dwordx4 %s, v%d, s[%d:%d], 0 offen offset:%d' % (vr(hw + 6 * i + 2, 4), vHl, S_AH, S_AH + 3, i * 1024))
        hload(0)
        if WO:
            a('s_lshl_b32 s%d, s%d, 21' % (sWs, sKq))
            a('s_lshl_b32 s%d, s%d, 8' % (sT0, sCb))
            a('s_add_u32 s%d, s%d, s%d' % (sWs, sWs, sT0))
            a('s_lshl_b32 s%d, s%d, 6' % (sT0, sW))
            a('s_add_u32 s%d, s%d, s%d' % (sWs, sWs, sT0))
            bits(a, vWs, [(2, 4, 11), (0, 2, 4)])
            a('s_lshl_b32 s%d, s%d, 13' % (sWl, sW))
            a('s_add_u32 s%d, s%d, %d' % (sWl, sWl, s.L_W))
            bits(a, vWr, [(2, 4, 6), (0, 2, 3)], 's%d' % sWl)
        def wdma(j):
            a('s_add_u32 m0, s%d, %d' % (sWl, (j % 8) * 1024))
            issue('w%d' % j, 'buffer_load_dwordx4 v%d, s[%d:%d], s%d offen lds' % (vWs, S_WO, S_WO + 3, sWs))
            a('s_add_u32 s%d, s%d, 0x8000' % (sWs, sWs))
        def wtr(j):
            wait('w%d' % j)
            for nt in range(2):
                a('ds_read_b64_tr_b16 %s, v%d offset:%d' % (ar(((j // 2) * 2 + nt) * 4 + 2 * (j % 2), 2), vWr, (j % 8) * 1024 + nt * 32))
        for j in range(7 if WO else 0): wdma(j)
        for i in range(4): a('v_mov_b32 v%d, 0' % (vT + 4 + i))
        a('s_lshl_b32 s%d, s%d, 10' % (sT0, sW))
        bits(a, vT, [(0, 6, 4)], 's%d' % sT0)
        a('v_cmp_gt_u32 vcc, 2480, v%d' % vT)
        a('s_and_saveexec_b64 s[72:73], vcc')
        for ch in range(8): a('ds_write_b128 v%d, %s offset:%d' % (vT, vr(vT + 4, 4), ch * CH))
        a('s_mov_b64 exec, 0xffff')
        a('s_mul_i32 s%d, s%d, %d' % (sT2, sW, 4 * HC))
        a('s_add_u32 s%d, s%d, %d' % (sT2, sT2, L_H))
        a('s_add_u32 s%d, s%d, 4096' % (sT0, sT2))
        bits(a, vT, [(2, 2, 12), (2, 2, 6), (0, 2, 4)], 's%d' % sT0)
        a('ds_write_b128 v%d, %s' % (vT, vr(vT + 4, 4)))
        a('s_mov_b64 exec, -1')
        a('s_mul_i32 s%d, s%d, %d' % (sT0, sW, 16 * 80))
        a('s_add_u32 s%d, s%d, %d' % (sT0, sT0, 31 * 80))
        bits(a, vW, [(2, 4, 6), (2, 4, 4), (0, 2, 4)], 's%d' % sT0)
        a('v_and_b32 v%d, 31, v0' % vT)
        a('v_sub_u32 v%d, 31, v%d' % (vT, vT))
        a('v_and_b32 v%d, 3, v%d' % (vT + 1, vT))
        a('v_and_b32 v%d, 28, v%d' % (vT, vT))
        a('v_mul_u32_u24 v%d, %d, v%d' % (vT + 1, HC, vT + 1))
        a('v_lshl_add_u32 v%d, v%d, 1, v%d' % (vT, vT, vT + 1))
        bits(a, vG, [(5, 1, 4)], 's%d' % sT2)
        a('v_add_u32 v%d, v%d, v%d' % (vG, vG, vT))
        a('v_sub_u32 v%d, 63, v0' % vT)
        a('v_lshlrev_b32 v%d, 4, v%d' % (vT, vT))
        a('v_add_u32 v%d, s%d, v%d' % (vHw, sT2, vT))
        a('s_mul_i32 s%d, s%d, %d' % (sT1, sW, 2 * CH))
        bits(a, vBp, [(0, 5, 6), (0, 5, 4), (5, 1, 4)], 's%d' % sT1)
        a('s_add_u32 s%d, s%d, %d' % (sT1, sT1, 31 * 80))
        bits(a, vY, [(0, 5, 6), (0, 5, 4), (5, 1, 3)], 's%d' % sT1)
        a('s_waitcnt lgkmcnt(0)')
        for ch in range(8):
            for j in range(4):
                src = sRaw + 2 * ch + j // 2
                if j % 2 == 0: a('v_lshlrev_b32 v%d, 16, s%d' % (vC + 8 * j + ch, src))
                else:
                    a('s_and_b32 s%d, s%d, 0xffff0000' % (sT0, src))
                    a('v_mov_b32 v%d, s%d' % (vC + 8 * j + ch, sT0))
            if ch % 2 == 0: a('v_lshlrev_b32 v%d, 16, s%d' % (vC + 32 + ch, 48 + ch // 2))
            else:
                a('s_and_b32 s%d, s%d, 0xffff0000' % (sT0, 48 + ch // 2))
                a('v_mov_b32 v%d, s%d' % (vC + 32 + ch, sT0))
        a('s_mov_b32 s72, 0xffff')
        wait('kv')
        s.mark(6)
        def unpack(dst, src):
            a('v_lshlrev_b32 v%d, 16, v%d' % (dst, src))
            a('v_and_b32 v%d, 0xffff0000, v%d' % (dst + 1, src))
        for cp in range(4):
            kf = vE; ac = vE + 22; vf = vE + 38
            for r in range(11): unpack(kf + 2 * r, vK + 4 * r + cp)
            for r in range(8):
                a('v_pk_mul_f32 %s, %s, %s' % (vr(ac + 2 * r, 2), vr(kf + 2 * r, 2), vr(vC + 24 + 2 * cp, 2)))
            for j in (2, 1, 0):
                for r in range(8):
                    a('v_pk_fma_f32 %s, %s, %s, %s' % (vr(ac + 2 * r, 2), vr(kf + 2 * (r + 3 - j), 2), vr(vC + 8 * j + 2 * cp, 2), vr(ac + 2 * r, 2)))
            for r in range(8):
                unpack(vf + 2 * (r % 4), vV + 4 * r + cp)
                a('v_pk_mul_f32 %s, %s, %s' % (vr(ac + 2 * r, 2), vr(ac + 2 * r, 2), vr(vf + 2 * (r % 4), 2)))
            for e in range(2):
                ch = 2 * cp + e
                for k in range(4): a('v_cvt_pk_bf16_f32 v%d, v%d, v%d' % (vKV + 4 * ch + k, ac + 4 * k + e, ac + 4 * k + 2 + e))
                a('ds_write_b128 v%d, %s offset:%d' % (vW, vr(vKV + 4 * ch, 4), ch * CH))
        wj = {'tr': 0}
        for chn in range(2):
            a('v_cmp_ne_u32 vcc, 0, v0')
            wait('h%d' % chn)
            for k in range(2): a('v_cndmask_b32 v%d, 0, v%d, vcc' % (hw + k, hw + k))
            for i in range(4):
                wv = lambda idx: hw + 6 * i + 2 + idx
                for r in range(4):
                    o = vE + 16 * (i % 2) + 4 * r
                    for k in range(4):
                        if r % 2 == 0:
                            x = wv((6 - r - 2 * k) // 2)
                            a('v_alignbit_b32 v%d, v%d, v%d, 16' % (o + k, x, x))
                        else:
                            e0 = (7 - r - 2 * k) // 2
                            a('v_bfi_b32 v%d, s72, v%d, v%d' % (o + k, wv(e0), wv(e0 - 1)))
                    a('ds_write_b128 v%d, %s offset:%d' % (vHw, vr(o, 4), r * HC + (3 - i) * 1024))
                a('s_waitcnt lgkmcnt(4)')
            a('s_waitcnt lgkmcnt(0)')
            if chn == 0:
                a('s_barrier')
                s.mark(7)
                hload(1)
            steps = [(c, kk) for c in range(64) for kk in range(2)]
            NB, AH = 4, 3
            cb = chn * CH
            def rd(i):
                c, kk = steps[i]; m = 2 * c - kk; b = vE + 12 * (i % NB); n = 3
                for h in range(2): a('ds_read_b64 %s, v%d offset:%d' % (vr(b + 2 * h, 2), vG, (126 - m) * 32 + 8 * h))
                a('ds_read_b128 %s, v%d offset:%d' % (vr(b + 4, 4), vBp, cb + (63 - c) * 80 + kk * 32))
                if c < 32:
                    a('ds_read_b128 %s, v%d offset:%d' % (vr(b + 8, 4), vBp, cb + (31 - c) * 80 + kk * 32)); n = 4
                return n
            cnt = [rd(i) for i in range(AH)]
            y0, y1 = vr(vK, 16), vr(vK + 16, 16)
            nm = 0
            for i, (c, kk) in enumerate(steps):
                a('s_waitcnt lgkmcnt(%d)' % sum(cnt[i + 1:]))
                b = vE + 12 * (i % NB)
                a('v_mfma_f32_32x32x16_bf16 %s, %s, %s, %s' % (y1, vr(b, 4), vr(b + 4, 4), '0' if i == 0 else y1))
                n = rd(i + AH) if i + AH < len(steps) else 0
                if c < 32: a('v_mfma_f32_32x32x16_bf16 %s, %s, %s, %s' % (y0, vr(b, 4), vr(b + 8, 4), '0' if i == 0 else y0))
                pm = nm; nm += 2 if c < 32 else 1
                if WO and nm // 6 != pm // 6:
                    j = wj['tr']; wj['tr'] += 1
                    if j >= 1 and j + 6 < 64: wdma(j + 6)
                    wtr(j); n += 2
                if chn == 1 and i % 8 == 4 and i < 64:
                    r = i // 8
                    a('v_add_u32 v%d, 0x%x, v%d' % (vT, r * 2048, vRow))
                    issue('q', 'buffer_load_dwordx4 %s, v%d, s[%d:%d], 0 offen' % (vr(vV + 4 * r, 4), vT, S_AQ, S_AQ + 3))
                cnt.append(n)
            for half in range(2):
                for q in range(4):
                    o = vK + 16 * half + 4 * q
                    for h in range(2): a('v_cvt_pk_bf16_f32 v%d, v%d, v%d' % (o + h, o + 2 * h, o + 1 + 2 * h))
                    a('ds_write_b64 v%d, %s offset:%d' % (vY, vr(o, 2), cb + half * 32 * 80 + q * 16))
        assert not WO or wj['tr'] == 64
        a('s_waitcnt vmcnt(0) lgkmcnt(0)')
        a('s_barrier')
        s.mark(8)
        yb = vK
        for ch in range(8): a('ds_read_b128 %s, v%d offset:%d' % (vr(yb + 4 * ch, 4), vW, ch * CH))
        a('s_lshl_b32 s%d, s%d, 21' % (sT0, sW))
        a('s_lshl_b32 s%d, s%d, 4' % (sT1, sD0))
        a('s_add_u32 s%d, s%d, s%d' % (sT0, sT0, sT1))
        bits(a, vRow, [(0, 6, 15)])
        a('s_waitcnt lgkmcnt(0)')
        for k in range(4):
            for cp in range(4):
                t = vE + 12 * (cp % 2)
                for e in range(2):
                    ch = 2 * cp + e
                    unpack(t + 4 * e, yb + 4 * ch + k)
                    unpack(t + 4 * e + 2, vKV + 4 * ch + k)
                    for h in range(2): a('v_fma_f32 v%d, v%d, v%d, v%d' % (t + 4 * e + h, t + 4 * e + 2 + h, vC + 32 + ch, t + 4 * e + h))
                for h in range(2):
                    q = vV + 4 * (2 * k + h) + cp
                    unpack(t + 8, q)
                    for e in range(2): a('v_mul_f32 v%d, v%d, v%d' % (t + 8 + e, t + 8 + e, t + 4 * e + h))
                    a('v_cvt_pk_bf16_f32 v%d, v%d, v%d' % (q, t + 8, t + 9))
            for h in range(2):
                a('buffer_store_dwordx4 %s, v%d, s[%d:%d], s%d offen' % (vr(vV + 4 * (2 * k + h), 4), vRow, S_OUT, S_OUT + 3, sT0))
                a('s_add_u32 s%d, s%d, 4096' % (sT0, sT0))

class Conv2:
    def mark(s, i): pass
    CH = 7600; L_H = 8 * 7600; HC = 4160
    def __init__(s, a): s.a = a
    def unpack(s, dst, src):
        s.a('v_lshlrev_b32 v%d, 16, v%d' % (dst, src))
        s.a('v_and_b32 v%d, 0xffff0000, v%d' % (dst + 1, src))
    def p1(s, S_SH):
        a = s.a
        vRow, vO, vT = 1, 2, 4
        vC, vR, vK, vV, vE, vP = 32, 64, 80, 124, 156, 204
        a('s_lshl_b32 s%d, s%d, 5' % (sT2, sTeam))
        a('s_add_u32 s%d, s%d, s%d' % (sT2, sT2, sMem))
        a('s_lshr_b32 s%d, s%d, 3' % (sT3, sT2))
        a('s_and_b32 s%d, s%d, 7' % (sT2, sT2))
        a('s_lshl_b32 s%d, s%d, 2' % (sT2, sT2))
        a('s_add_u32 s%d, s%d, s%d' % (sT2, sT2, sW))
        a('s_lshl_b32 s%d, s%d, 17' % (sT0, sT2))
        a('s_lshl_b32 s%d, s%d, 7' % (sT1, sT3))
        a('s_add_u32 s%d, s%d, s%d' % (sT0, sT0, sT1))
        bits(a, vRow, [(3, 3, 14), (0, 3, 4)], 's%d' % sT0)
        a('s_lshl_b32 s%d, s%d, 9' % (sT0, sT3))
        bits(a, vT, [(0, 3, 6)], 's%d' % sT0)
        for i in range(4): a('buffer_load_dwordx4 %s, v%d, s[%d:%d], 0 offen offset:%d' % (vr(vR + 4 * i, 4), vT, S_SH, S_SH + 3, 16 * i))
        for r in range(-3, 8):
            a('v_add_u32 v%d, 0x%x, v%d' % (vT + 1, (r * 2048) & 0xffffffff, vRow))
            a('buffer_load_dwordx4 %s, v%d, s[%d:%d], 0 offen' % (vr(vK + 4 * (r + 3), 4), vT + 1, S_AK, S_AK + 3))
        for r in range(8):
            a('v_add_u32 v%d, 0x%x, v%d' % (vT + 1, r * 2048, vRow))
            a('buffer_load_dwordx4 %s, v%d, s[%d:%d], 0 offen' % (vr(vV + 4 * r, 4), vT + 1, S_AV, S_AV + 3))
        a('s_lshl_b32 s%d, s%d, 18' % (sT0, sT3))
        a('s_lshl_b32 s%d, s%d, 7' % (sT1, sT2))
        a('s_add_u32 s%d, s%d, s%d' % (sT0, sT0, sT1))
        a('s_add_u32 s%d, s%d, 0x%x' % (sT0, sT0, WS_KVT))
        bits(a, vO, [(0, 3, 15), (3, 3, 4)])
        a('s_waitcnt vmcnt(19)')
        for ch in range(8):
            for jp in range(2):
                src = vR + 2 * ch + jp
                a('v_lshlrev_b32 v%d, 16, v%d' % (vC + 8 * (2 * jp) + ch, src))
                a('v_and_b32 v%d, 0xffff0000, v%d' % (vC + 8 * (2 * jp + 1) + ch, src))
        a('s_waitcnt vmcnt(8)')
        for cp in range(4):
            kf = vE; ac = vE + 22; vf = vE + 38
            for r in range(11): s.unpack(kf + 2 * r, vK + 4 * r + cp)
            for r in range(8):
                a('v_pk_mul_f32 %s, %s, %s' % (vr(ac + 2 * r, 2), vr(kf + 2 * r, 2), vr(vC + 24 + 2 * cp, 2)))
            for j in (2, 1, 0):
                for r in range(8):
                    a('v_pk_fma_f32 %s, %s, %s, %s' % (vr(ac + 2 * r, 2), vr(kf + 2 * (r + 3 - j), 2), vr(vC + 8 * j + 2 * cp, 2), vr(ac + 2 * r, 2)))
            if cp == 0: a('s_waitcnt vmcnt(0)')
            for r in range(8):
                s.unpack(vf + 2 * (r % 4), vV + 4 * r + cp)
                a('v_pk_mul_f32 %s, %s, %s' % (vr(ac + 2 * r, 2), vr(ac + 2 * r, 2), vr(vf + 2 * (r % 4), 2)))
            for e in range(2):
                ch = 2 * cp + e
                for k in range(4): a('v_cvt_pk_bf16_f32 v%d, v%d, v%d' % (vP + 4 * ch + k, ac + 4 * k + e, ac + 4 * k + 2 + e))
                a('buffer_store_dwordx4 %s, v%d, s[%d:%d], s%d offen sc1' % (vr(vP + 4 * ch, 4), vO, S_WS, S_WS + 3, sT0))
                a('s_add_u32 s%d, s%d, 4096' % (sT0, sT0))
    def core(s, wait_p1, hi, sIdx):
        a = s.a
        CH, L_H, HC = s.CH, s.L_H, s.HC
        sD0, sCh = 45, 46
        vRow, vW, vG, vBp, vY, vHl, vHw, vR, vT = 1, 2, 3, 4, 5, 6, 7, 8, 10
        vKV = 32; vC = 64; vQ = 72; vK = 104; vE = 136; hw0 = 208
        NI = 4 if hi else 2
        tg = 'h' if hi else 'l'
        a('s_mov_b32 s%d, s%d' % (sD0, sIdx))
        a('s_load_dwordx2 s[74:75], s[0:1], %d' % KA['A_ssmD'])
        a('s_lshl_b32 s%d, s%d, 15' % (sT0, sD0))
        a('s_lshl_b32 s%d, s%d, 13' % (sT1, sW))
        a('s_add_u32 s%d, s%d, s%d' % (sT0, sT0, sT1))
        bits(a, vHl, [(0, 6, 4)], 's%d' % sT0)
        for ch in range(2):
            hw = hw0 + 24 * ch
            if ch: a('v_add_u32 v%d, 4096, v%d' % (vHl, vHl))
            a('v_subrev_u32 v%d, 8, v%d' % (vT + 1, vHl))
            for i in range(NI):
                a('buffer_load_dwordx2 %s, v%d, s[%d:%d], 0 offen offset:%d' % (vr(hw + 6 * i, 2), vT + 1 if i == 0 else vHl, S_AH, S_AH + 3, 0 if i == 0 else i * 1024 - 8))
                a('buffer_load_dwordx4 %s, v%d, s[%d:%d], 0 offen offset:%d' % (vr(hw + 6 * i + 2, 4), vHl, S_AH, S_AH + 3, i * 1024))
        wait_p1()
        a('s_lshl_b32 s%d, s%d, 15' % (sT0, sD0))
        a('s_lshl_b32 s%d, s%d, 10' % (sT1, sW))
        a('s_add_u32 s%d, s%d, s%d' % (sT0, sT0, sT1))
        a('s_add_u32 s%d, s%d, 0x%x' % (sT0, sT0, WS_KVT))
        if not hi:
            a('s_cmp_lt_u32 s%d, 2' % sW)
            a('s_cselect_b32 s%d, s%d, 0x%x' % (sT0, sT0, WS_DUMP))
        a('v_lshlrev_b32 v%d, 4, v0' % vT)
        for ch in range(8):
            a('buffer_load_dwordx4 %s, v%d, s[%d:%d], s%d offen sc1' % (vr(vKV + 4 * ch, 4), vT, S_WS, S_WS + 3, sT0))
            a('s_add_u32 s%d, s%d, 4096' % (sT0, sT0))
        a('s_lshl_b32 s%d, s%d, 4' % (sT1, sD0))
        a('s_waitcnt lgkmcnt(0)')
        a('s_load_dwordx4 s[48:51], s[74:75], s%d' % sT1)
        a('s_lshl_b32 s%d, s%d, 19' % (sT0, sW))
        a('s_add_u32 s%d, s%d, s%d' % (sT0, sT0, sT1))
        if hi: a('s_add_u32 s%d, s%d, 0x200000' % (sT0, sT0))
        bits(a, vRow, [(0, 6, 13)], 's%d' % sT0)
        a('s_barrier')
        for i in range(4): a('v_mov_b32 v%d, 0' % (vT + 4 + i))
        a('s_lshl_b32 s%d, s%d, 10' % (sT0, sW))
        bits(a, vT, [(0, 6, 4)], 's%d' % sT0)
        a('v_cmp_gt_u32 vcc, 2480, v%d' % vT)
        a('s_and_saveexec_b64 s[72:73], vcc')
        for ch in range(8): a('ds_write_b128 v%d, %s offset:%d' % (vT, vr(vT + 4, 4), ch * CH))
        a('s_mov_b64 exec, 0xffff')
        a('s_mul_i32 s%d, s%d, %d' % (sT2, sW, 4 * HC))
        a('s_add_u32 s%d, s%d, %d' % (sT2, sT2, L_H))
        a('s_add_u32 s%d, s%d, 4096' % (sT0, sT2))
        bits(a, vT, [(2, 2, 12), (2, 2, 6), (0, 2, 4)], 's%d' % sT0)
        a('ds_write_b128 v%d, %s' % (vT, vr(vT + 4, 4)))
        a('s_mov_b64 exec, -1')
        a('s_mul_i32 s%d, s%d, %d' % (sT0, sW, 16 * 80))
        a('s_add_u32 s%d, s%d, %d' % (sT0, sT0, 31 * 80))
        bits(a, vW, [(2, 4, 6), (2, 4, 4), (0, 2, 4)], 's%d' % sT0)
        a('s_mul_i32 s%d, s%d, %d' % (sT0, sW, 8 * 80))
        a('s_add_u32 s%d, s%d, %d' % (sT0, sT0, (31 + 32 * hi) * 80))
        bits(a, vR, [(3, 3, 6), (3, 3, 4), (0, 3, 3)], 's%d' % sT0)
        a('v_and_b32 v%d, 31, v0' % vT)
        a('v_sub_u32 v%d, 31, v%d' % (vT, vT))
        a('v_and_b32 v%d, 3, v%d' % (vT + 1, vT))
        a('v_and_b32 v%d, 28, v%d' % (vT, vT))
        a('v_mul_u32_u24 v%d, %d, v%d' % (vT + 1, HC, vT + 1))
        a('v_lshl_add_u32 v%d, v%d, 1, v%d' % (vT, vT, vT + 1))
        bits(a, vG, [(5, 1, 4)], 's%d' % sT2)
        a('v_add_u32 v%d, v%d, v%d' % (vG, vG, vT))
        a('v_sub_u32 v%d, 63, v0' % vT)
        a('v_lshlrev_b32 v%d, 4, v%d' % (vT, vT))
        a('v_add_u32 v%d, s%d, v%d' % (vHw, sT2, vT))
        a('s_mul_i32 s%d, s%d, %d' % (sT1, sW, 2 * CH))
        bits(a, vBp, [(0, 5, 6), (0, 5, 4), (5, 1, 4)], 's%d' % sT1)
        a('s_add_u32 s%d, s%d, %d' % (sT1, sT1, (31 + 32 * hi) * 80))
        bits(a, vY, [(0, 5, 6), (0, 5, 4), (5, 1, 3)], 's%d' % sT1)
        a('s_mov_b32 s72, 0xffff')
        a('s_waitcnt vmcnt(0) lgkmcnt(0)')
        s.mark(6)
        for r in range(4):
            a('buffer_load_dwordx4 %s, v%d, s[%d:%d], 0 offen offset:%d' % (vr(vQ + 4 * r, 4), vRow, S_AQ, S_AQ + 3, (r % 2) * 2048))
            if r == 1: a('v_add_u32 v%d, 4096, v%d' % (vRow, vRow))
        for ch in range(8): a('ds_write_b128 v%d, %s offset:%d' % (vW, vr(vKV + 4 * ch, 4), ch * CH))
        for ch in range(8):
            if ch % 2 == 0: a('v_lshlrev_b32 v%d, 16, s%d' % (vC + ch, 48 + ch // 2))
            else:
                a('s_and_b32 s%d, s%d, 0xffff0000' % (sT0, 48 + ch // 2))
                a('v_mov_b32 v%d, s%d' % (vC + ch, sT0))
        a('s_waitcnt lgkmcnt(0)')
        a('s_barrier')
        for ch in range(8): a('ds_read_b64 %s, v%d offset:%d' % (vr(vKV + 2 * ch, 2), vR, ch * CH))
        a('s_mov_b32 s%d, 0' % sCh)
        a.label('L_cv2' + tg)
        hw = hw0
        a('v_cmp_ne_u32 vcc, 0, v0')
        for k in range(2): a('v_cndmask_b32 v%d, 0, v%d, vcc' % (hw + k, hw + k))
        for i in range(NI):
            wv = lambda idx: hw + 6 * i + 2 + idx
            for r in range(4):
                o = vE + 16 * (i % 2) + 4 * r
                for k in range(4):
                    if r % 2 == 0:
                        x = wv((6 - r - 2 * k) // 2)
                        a('v_alignbit_b32 v%d, v%d, v%d, 16' % (o + k, x, x))
                    else:
                        e0 = (7 - r - 2 * k) // 2
                        a('v_bfi_b32 v%d, s72, v%d, v%d' % (o + k, wv(e0), wv(e0 - 1)))
                a('ds_write_b128 v%d, %s offset:%d' % (vHw, vr(o, 4), r * HC + (3 - i) * 1024))
            a('s_waitcnt lgkmcnt(4)')
        a('s_waitcnt lgkmcnt(0)')
        a('s_barrier')
        steps = [(c, kk) for c in range(64 if hi else 32) for kk in range(2)]
        NB, AH = 6, 4
        n = len(steps)
        def rd(i):
            c, kk = steps[i]; m = 2 * c - kk; b = vE + 8 * (i % NB)
            return (['ds_read_b64 %s, v%d offset:%d' % (vr(b + 2 * h, 2), vG, (126 - m) * 32 + 8 * h) for h in range(2)] +
                    ['ds_read_b128 %s, v%d offset:%d' % (vr(b + 4, 4), vBp, (31 + 32 * hi - c) * 80 + kk * 32)])
        for i in range(AH):
            for x in rd(i): a(x)
        y = vr(vK, 16)
        for i in range(n):
            a('s_waitcnt lgkmcnt(%d)' % (3 * min(AH - 1, n - 1 - i)))
            b = vE + 8 * (i % NB)
            a('v_mfma_f32_32x32x16_bf16 %s, %s, %s, %s' % (y, vr(b, 4), vr(b + 4, 4), '0' if i == 0 else y))
            if i + AH < n:
                for x in rd(i + AH): a(x)
            if i < 6 * NI: a('v_mov_b32 v%d, v%d' % (hw + i, hw + 24 + i))
        for q in range(4):
            o = vK + 4 * q
            for h in range(2): a('v_cvt_pk_bf16_f32 v%d, v%d, v%d' % (o + h, o + 2 * h, o + 1 + 2 * h))
            a('ds_write_b64 v%d, %s offset:%d' % (vY, vr(o, 2), q * 16))
        a('v_add_u32 v%d, %d, v%d' % (vBp, CH, vBp))
        a('v_add_u32 v%d, %d, v%d' % (vY, CH, vY))
        a('s_add_u32 s%d, s%d, 1' % (sCh, sCh))
        a('s_cmp_lt_u32 s%d, 2' % sCh)
        a('s_cbranch_scc1 L_cv2' + tg)
        a('s_waitcnt lgkmcnt(0)')
        a('s_barrier')
        s.mark(8)
        yb = vK
        for ch in range(8): a('ds_read_b64 %s, v%d offset:%d' % (vr(yb + 2 * ch, 2), vR, ch * CH))
        a('s_lshl_b32 s%d, s%d, 20' % (sT0, sW))
        a('s_lshl_b32 s%d, s%d, 4' % (sT1, sD0))
        a('s_add_u32 s%d, s%d, s%d' % (sT0, sT0, sT1))
        if hi: a('s_add_u32 s%d, s%d, 0x400000' % (sT0, sT0))
        bits(a, vRow, [(0, 6, 14)])
        a('s_waitcnt vmcnt(0) lgkmcnt(0)')
        for k in range(2):
            for cp in range(4):
                t = vE + 12 * (cp % 2)
                for e in range(2):
                    ch = 2 * cp + e
                    s.unpack(t + 4 * e, yb + 2 * ch + k)
                    s.unpack(t + 4 * e + 2, vKV + 2 * ch + k)
                    for h in range(2): a('v_fma_f32 v%d, v%d, v%d, v%d' % (t + 4 * e + h, t + 4 * e + 2 + h, vC + ch, t + 4 * e + h))
                for h in range(2):
                    q = vQ + 4 * (2 * k + h) + cp
                    s.unpack(t + 8, q)
                    for e in range(2): a('v_mul_f32 v%d, v%d, v%d' % (t + 8 + e, t + 8 + e, t + 4 * e + h))
                    a('v_cvt_pk_bf16_f32 v%d, v%d, v%d' % (q, t + 8, t + 9))
            for h in range(2):
                a('buffer_store_dwordx4 %s, v%d, s[%d:%d], s%d offen' % (vr(vQ + 4 * (2 * k + h), 4), vRow, S_OUT, S_OUT + 3, sT0))
                a('s_add_u32 s%d, s%d, 4096' % (sT0, sT0))
```

```python
import math, struct
from ag import *
from common import *

def f2u(x): return struct.unpack('<I', struct.pack('<f', x))[0]

L_R, L_P, L_KX, L_VX = 0, 20480, 32768, 65536
R_W, R_T, R_G = 4864, 776, 192
L_END = 131072
QKV_G = 12288
QKV_SLOT = 16 * QKV_G
PART_SLOT = 524288
WS_PART = 160 * MB
MT_SLOT = 131072

S_WS, S_WQ, S_WK, S_WV, S_WO, S_M0, S_DBG = 4, 8, 12, 16, 20, 24, 28
sW, sX, sC, sG, sJ, sStep, sLocal, sTmo = 32, 33, 34, 35, 36, 37, 38, 39
sQKst, sVst, sPARTst, sREDld, sMTst, sMTld, sCld, sKVMst, sKVoff = 40, 41, 42, 43, 44, 45, 46, 47, 48
sT0, sT1, sT2, sT3 = 49, 50, 51, 52
sA, sB, sCc, sD, sE, sF, sH = 53, 54, 55, 56, 57, 58, 59
sHiMask = 60
sTS = 62
sPrev = 64
sLdsC = 65
sScale = 66
sAcc = 68
sWarm = 84
sStMask = 86
sP = 88
sKst = 96
sK2 = 97
vL16, vL4, vRw, vRr, vRr2, vPw, vPw2, vKX, vVX, vIdx, vGate, vRed, vMld, vMst = range(1, 15)
vT = 16
vSent = 28
vD = 32
vU = 64
vWo2 = 128
vM = 192
vF = 224
vSel = 240
vK = 64
vX = 96

def wo(tt, off, n):
    return ar(192 + 32 * tt + off, n) if tt < 2 else vr(vWo2 + 32 * (tt - 2) + off, n)

class Chain:
    def __init__(s, a, prof=False, nsteps=64, opt=None):
        s.a = a; s.prof = prof; s.nsteps = nsteps; s.opt = opt or {}
        s.NX = s.opt.get('NX', 4); s.NP = s.NX // 4
    def stamp(s, i):
        a = s.a
        if s.opt.get('trace'):
            if i in s.opt['trace']:
                a('s_memrealtime s[%d:%d]' % (sTS, sTS + 1))
                a('s_waitcnt lgkmcnt(0)')
                a('s_mov_b32 m0, s%d' % sStep)
                a('s_nop 0')
                a('v_writelane_b32 v%d, s%d, m0' % (244 + i, sTS))
            return
        if not s.prof: return
        if s.opt.get('gprof') is not None:
            if i < 20: return
            i -= 20
        elif i >= 20: return
        a('s_memtime s[%d:%d]' % (sTS, sTS + 1))
        a('s_waitcnt lgkmcnt(0)')
        a('s_sub_u32 s%d, s%d, s%d' % (sTS + 1, sTS, sPrev))
        a('s_add_u32 s%d, s%d, s%d' % (sAcc + i, sAcc + i, sTS + 1))
        a('s_mov_b32 s%d, s%d' % (sPrev, sTS))
    def count(s, i):
        if s.prof: s.a('s_add_u32 s%d, s%d, 1' % (sAcc + i, sAcc + i))
    def st(s, data, voff, soff, off=0, n=1, sc1=True):
        op = {1: 'buffer_store_dword', 2: 'buffer_store_dwordx2', 4: 'buffer_store_dwordx4'}[n]
        s.a('%s %s, v%d, s[%d:%d], s%d offen offset:%d%s' % (op, vr(data, n), voff, S_WS, S_WS + 3, soff, off, ' sc1' if sc1 else ''))
    def lst(s, data, voff, soff, off=0, n=1): s.st(data, voff, soff, off, n, sc1=not s.local)
    def dma(s, soff, off, voff=vL16): s.a('buffer_load_dwordx4 v%d, s[%d:%d], s%d offen offset:%d sc1 lds' % (voff, S_WS, S_WS + 3, soff, off))
    def delay(s, key):
        for i in range(s.opt.get(key, 0)): s.a('s_nop 7')
    def tmo(s, retry):
        a = s.a
        a('s_sub_u32 s%d, s%d, 1' % (sTmo, sTmo))
        a('s_cbranch_scc0 %s' % retry)
        a('s_branch L_chain_fail')
    def maxtree(s, base, n, dst, first=True):
        a = s.a
        i = 0
        if first:
            a('v_max3_u32 v%d, v%d, v%d, v%d' % (dst, base, base + 1, base + 2)); i = 3
        while i + 1 < n:
            a('v_max3_u32 v%d, v%d, v%d, v%d' % (dst, dst, base + i, base + i + 1)); i += 2
        if i < n: a('v_max_u32 v%d, v%d, v%d' % (dst, dst, base + i))
    def halfsum(s, d, dst=None):
        s.a('v_pk_add_f32 %s, %s, %s' % (vr(d if dst is None else dst, 2), vr(d, 2), vr(d + 2, 2)))
    def zero(s, regs):
        regs = list(regs)
        for i in range(0, len(regs), 2):
            assert regs[i] % 2 == 0 and regs[i + 1] == regs[i] + 1
            s.a('v_mov_b64 %s, 0' % vr(regs[i], 2))
    def hopb_s1(s, tag, tail=None):
        if not s.opt.get('tree', True): return s.hopb_seq(tag, tail)
        a = s.a
        def ld(u): a('buffer_load_dwordx4 %s, v%d, s[%d:%d], s%d offen offset:%d sc1' % (vr(vM + 4 * u, 4), vMld, S_WS, S_WS + 3, sH, u * 1024))
        def chk(u, n):
            return ['s_waitcnt vmcnt(%d)' % n,
                    'v_max3_u32 v%d, v%d, v%d, v%d' % (vT, vM + 4 * u, vM + 4 * u + 1, vM + 4 * u + 2),
                    'v_max_u32 v%d, v%d, v%d' % (vT, vT, vM + 4 * u + 3),
                    'v_cmp_eq_u32 vcc, -1, v%d' % vT]
        def mf(u, t6): a('v_smfmac_f32_16x16x64_bf16 %s, %s, %s, v%d' % (vr(vD + 4 * t6, 4), vr(vM + 4 * u, 4), ar((t6 * 4 + u) * 8, 8), vIdx))
        nm = lambda kind, F, R: 'L_b%s_%s_%s_%s' % (kind, ''.join(map(str, F)), ''.join(map(str, R)), tag)
        todo, seen = [], set()
        def want(kind, F, R):
            key = (kind, F, R)
            if key not in seen: seen.add(key); todo.append(key)
            return nm(kind, F, R)
        def chain(F, R):
            while True:
                u, rest = R[0], R[1:]
                a('s_cbranch_vccnz %s' % want('f', F + (u,), rest))
                if rest:
                    c = chk(rest[0], len(rest) - 1)
                    mf(u, 0); mf(u, 1); a(c[0]); a(c[1]); mf(u, 2); a(c[2]); a(c[3]); mf(u, 3); mf(u, 4); mf(u, 5)
                    R = rest
                    continue
                if F:
                    for x in F: ld(x)
                    for t6 in range(6): mf(u, t6)
                    a('s_branch %s' % want('c', (), F))
                else:
                    for t6 in range(6): mf(u, t6)
                    a('s_branch L_loop_%s' % tag)
                return
        for u in range(4): ld(u)
        seen.add(('c', (), (0, 1, 2, 3)))
        a.label(nm('c', (), (0, 1, 2, 3)))
        for x in chk(0, 3): a(x)
        chain((), (0, 1, 2, 3))
        def stubs():
            while todo:
                kind, F, R = todo.pop(0)
                if kind == 'c' and (kind, F, R, 'done') in seen: continue
                a.label(nm(kind, F, R))
                if kind == 'f' and not R:
                    for x in F: ld(x)
                    s.count(11)
                    a('s_sub_u32 s%d, s%d, 1' % (sTmo, sTmo))
                    a('s_cbranch_scc1 L_chain_fail')
                    if ('c', (), F) in emitted:
                        a('s_branch %s' % nm('c', (), F))
                        continue
                    seen.add(('c', (), F)); seen.add(('c', (), F, 'done'))
                    a.label(nm('c', (), F))
                    F, R = (), F
                    kind = 'c'
                if kind == 'c': emitted.add(('c', F, R))
                for x in chk(R[0], len(R) - 1): a(x)
                chain(F, R)
        emitted = {('c', (), (0, 1, 2, 3))}
        return stubs
    def hopb_seq(s, tag, tail=None):
        a = s.a
        def ld(u): a('buffer_load_dwordx4 %s, v%d, s[%d:%d], s%d offen offset:%d sc1' % (vr(vM + 4 * u, 4), vMld, S_WS, S_WS + 3, sH, u * 1024))
        def chk(u):
            return ['s_waitcnt vmcnt(%d)' % (3 - u),
                    'v_max3_u32 v%d, v%d, v%d, v%d' % (vT, vM + 4 * u, vM + 4 * u + 1, vM + 4 * u + 2),
                    'v_max_u32 v%d, v%d, v%d' % (vT, vT, vM + 4 * u + 3),
                    'v_cmp_eq_u32 vcc, -1, v%d' % vT]
        def mf(u, t6): a('v_smfmac_f32_16x16x64_bf16 %s, %s, %s, v%d' % (vr(vD + 4 * t6, 4), vr(vM + 4 * u, 4), ar((t6 * 4 + u) * 8, 8), vIdx))
        for u in range(4): ld(u)
        for x in chk(0): a(x)
        for u in range(4):
            a('s_cbranch_vccnz L_b%d_retry_%s' % (u, tag))
            a.label('L_b%d_ok_%s' % (u, tag))
            if u < 3:
                c = chk(u + 1)
                mf(u, 0); mf(u, 1); a(c[0]); a(c[1]); mf(u, 2); a(c[2]); a(c[3]); mf(u, 3); mf(u, 4); mf(u, 5)
            else:
                for t6 in range(6):
                    mf(u, t6)
                    if tail and t6 < len(tail): tail[t6]()
        a('s_branch L_loop_%s' % tag)
        def stubs():
            for u in range(4):
                a.label('L_b%d_retry_%s' % (u, tag))
                s.count(11)
                a('s_sub_u32 s%d, s%d, 1' % (sTmo, sTmo))
                a('s_cbranch_scc1 L_chain_fail')
                for uu in range(u, 4): ld(uu)
                for x in chk(u): a(x)
                a('s_cbranch_vccnz L_b%d_retry_%s' % (u, tag))
                a('s_branch L_b%d_ok_%s' % (u, tag))
        return stubs
    def s1unit(s, u, base=vM):
        for t6 in range(6):
            s.a('v_smfmac_f32_16x16x64_bf16 %s, %s, %s, v%d' % (vr(vD + 4 * t6, 4), vr(base + 4 * u, 4), ar((t6 * 4 + u) * 8, 8), vIdx))
    def ux(s, hooks=None):
        a = s.a
        hooks = hooks or {}
        seq = [(hl, tau, t) for hl in range(2) for tau in range(2) for t in range(4)]
        def rd(i):
            hl, tau, t = seq[i]
            a('ds_read_b128 %s, v%d offset:%d' % (vr(vM + 4 * (i % 8), 4), vVX, hl * 8192 + tau * 4096 + t * 1024))
        for i in range(6): rd(i)
        def cvt(gi, tt, h):
            hl, tau = gi // 2, gi % 2
            d = vD + 16 * (gi % 2) + 4 * tt
            u = vU + 16 * tt + 8 * hl + 2 * tau
            a('v_cvt_pk_bf16_f32 v%d, v%d, v%d' % (u + h, d + 2 * h, d + 2 * h + 1))
        n = 0
        for i, (hl, tau, t) in enumerate(seq):
            if i + 6 < 16: rd(i + 6)
            a('s_waitcnt lgkmcnt(%d)' % min(6, 15 - i))
            gi = i // 4
            for tt in range(4):
                if n in hooks: hooks[n]()
                n += 1
                d = vD + 16 * (gi % 2) + 4 * tt
                if s.opt.get('noux') and hooks: a('s_nop 3')
                else: a('v_mfma_f32_16x16x32_bf16 %s, %s, %s, %s' % (vr(d, 4), vr(vM + 4 * (i % 8), 4), wo(tt, 16 * hl + 4 * t, 4), '0' if t == 0 else vr(d, 4)))
                if gi > 0 and t >= 2: cvt(gi - 1, tt, t - 2)
        for tt in range(4):
            for h in range(2): cvt(3, tt, h)
        a('v_xor_b32 v%d, 0x4000, v%d' % (vVX, vVX))
    def dma_kv(s, sSeg, wsbase, lds):
        a = s.a
        a('s_lshl_b32 s%d, s%d, 18' % (sT0, sSeg))
        a('s_add_u32 s%d, s%d, s%d' % (sT0, sT0, sKVoff))
        a('s_and_b32 s%d, s%d, 1' % (sT1, sW))
        a('s_lshl_b32 s%d, s%d, 13' % (sT1, sT1))
        a('s_add_u32 s%d, s%d, %s' % (sT1, sT1, lds))
        for tau in range(2):
            a('s_add_u32 s%d, s%d, 0x%x' % (sT0, sT0, wsbase if tau == 0 else 131072))
            a('s_add_u32 m0, s%d, %d' % (sT1, tau * 4096))
            for t in range(4): s.dma(sT0, t * 1024)
    def bits(s, dst, terms, init=None):
        a = s.a
        first = init is None
        if not first: a('v_mov_b32 v%d, %s' % (dst, init))
        for (src, n, sh) in terms:
            a('v_bfe_u32 v%d, v0, %d, %d' % (vT + 11, src, n))
            if first: a('v_lshlrev_b32 v%d, %d, v%d' % (dst, sh, vT + 11)); first = False
            else: a('v_lshl_add_u32 v%d, v%d, %d, v%d' % (dst, vT + 11, sh, dst))
    def init(s):
        a = s.a
        a('s_and_b32 s%d, s2, 7' % sX)
        a('s_lshr_b32 s%d, s2, 3' % sC)
        a('s_and_b32 s%d, s%d, 7' % (sJ, sC))
        a('s_lshr_b32 s%d, s%d, 3' % (sG, sC))
        a('s_mul_i32 s%d, s%d, %d' % (sT0, sX, 16 // s.NX))
        a('s_add_u32 s%d, s%d, s%d' % (sG, sG, sT0))
        s.get_wave()
        vA, vB = vT + 8, vT + 9
        a('s_bitcmp1_b32 s%d, 1' % sJ)
        a('s_cselect_b64 s[%d:%d], s[%d:%d], s[%d:%d]' % (sP, sP + 1, S_WK, S_WK + 1, S_WQ, S_WQ + 1))
        a('s_mov_b32 s%d, 0x%x' % (sP + 2, 8 * MB)); a('s_mov_b32 s%d, 0x20000' % (sP + 3))
        s.bits(vA, [(3, 3, 13), (0, 3, 4)])
        a('s_lshl_b32 s%d, s%d, 9' % (sA, sG))
        a('s_lshl_b32 s%d, s%d, 21' % (sT0, sW))
        a('s_add_u32 s%d, s%d, s%d' % (sA, sA, sT0))
        a('s_lshr_b32 s%d, s%d, 2' % (sT0, sJ))
        a('s_lshl_b32 s%d, s%d, 8' % (sT0, sT0))
        a('s_and_b32 s%d, s%d, 1' % (sT1, sJ))
        a('s_lshl_b32 s%d, s%d, 7' % (sT1, sT1))
        a('s_add_u32 s%d, s%d, s%d' % (sT0, sT0, sT1))
        a('s_add_u32 s%d, s%d, s%d' % (sT0, sT0, sA))
        a('s_lshl_b32 s%d, s%d, 15' % (sT1, sW))
        for i in range(32):
            a('s_add_u32 m0, s%d, %d' % (sT1, i * 1024))
            a('buffer_load_dwordx4 v%d, s[%d:%d], s%d offen lds' % (vA, sP, sP + 3, sT0))
            a('s_add_u32 s%d, s%d, 0x10000' % (sT0, sT0))
        a('s_xor_b32 s%d, s%d, 4' % (sB, sJ))
        a('s_lshl_b32 s%d, s%d, 6' % (sT0, sB))
        a('s_add_u32 s%d, s%d, s%d' % (sT0, sT0, sA))
        s.bits(vA, [(2, 4, 13), (0, 2, 4)])
        for i in range(16):
            a('buffer_load_dwordx4 %s, v%d, s[%d:%d], s%d offen' % (vr(64 + 4 * i, 4), vA, S_WV, S_WV + 3, sT0))
            a('s_add_u32 s%d, s%d, 0x20000' % (sT0, sT0))
        a('s_lshl_b32 s%d, s%d, 8' % (sT0, sJ))
        s.bits(vA, [(4, 2, 11), (0, 4, 4)], 's%d' % sT0)
        a('s_lshl_b32 s%d, s%d, 19' % (sT0, sG))
        a('s_lshl_b32 s%d, s%d, 17' % (sT1, sW))
        a('s_add_u32 s%d, s%d, s%d' % (sT0, sT0, sT1))
        for i in range(14):
            a('buffer_load_dwordx4 %s, v%d, s[%d:%d], s%d offen%s' % (vr(128 + 4 * i, 4), vA, S_WO, S_WO + 3, sT0, s.nt(S_WO)))
            a('s_add_u32 s%d, s%d, 8192' % (sT0, sT0))
        a('s_mov_b32 s%d, s%d' % (sH, sT0))
        a('s_mov_b32 s%d, 0x%x' % (sTmo, 400000))
        for i in range(2): a('s_mov_b32 s%d, 0x%x' % (sScale + i, f2u(math.log2(math.e) / math.sqrt(128))))
        for i in range(2): a('s_mov_b32 s%d, 0xcccccccc' % (sHiMask + i))
        for i in range(2): a('s_mov_b32 s%d, 0x00ff00ff' % (sStMask + i))
        a('v_lshlrev_b32 v%d, 4, v0' % vL16)
        a('v_lshlrev_b32 v%d, 2, v0' % vL4)
        for i in range(4): a('v_mov_b32 v%d, -1' % (vSent + i))
        a('v_mov_b32 v%d, 0x4444' % vT)
        a('v_mov_b32 v%d, 0xeeee' % (vT + 1))
        a('v_cndmask_b32 v%d, v%d, v%d, s[%d:%d]' % (vIdx, vT, vT + 1, sHiMask, sHiMask + 1))
        s.bits(vGate, [(0, 6, 7)])
        s.bits(vRed, [(4, 1, 12), (5, 1, 14), (0, 4, 4)])
        s.bits(vMld, [(2, 2, 8), (4, 2, 6), (0, 2, 4)])
        a('s_mul_i32 s%d, s%d, %d' % (sT0, sW, R_W))
        s.bits(vRw, [(0, 4, 3), (4, 2, 7), (4, 2, 6)], 's%d' % sT0)
        a('s_lshr_b32 s%d, s%d, 1' % (sT0, sW))
        a('s_mul_i32 s%d, s%d, %d' % (sT0, sT0, 2 * R_T))
        a('s_and_b32 s%d, s%d, 1' % (sT1, sW))
        a('s_lshl_b32 s%d, s%d, 6' % (sT1, sT1))
        a('s_add_u32 s%d, s%d, s%d' % (sT0, sT0, sT1))
        s.bits(vRr, [(0, 1, 9), (0, 1, 8), (0, 1, 3), (4, 2, 7), (4, 2, 6), (1, 1, 5), (3, 1, 4), (2, 1, 2)], 's%d' % sT0)
        a('v_add_u32 v%d, 8, v%d' % (vRr2, vRr))
        a('v_bfe_u32 v%d, v0, 2, 1' % vT)
        a('v_lshlrev_b32 v%d, 4, v%d' % (vT, vT))
        a('v_mov_b32 v%d, 0x3f80' % (vT + 1))
        a('v_lshlrev_b32 v%d, v%d, v%d' % (vT, vT, vT + 1))
        a('v_bfe_u32 v%d, v0, 0, 2' % (vT + 1))
        for k in range(4):
            a('v_cmp_eq_u32 vcc, %d, v%d' % (k, vT + 1))
            a('v_cndmask_b32 v%d, 0, v%d, vcc' % (vSel + k, vT))
        a('s_and_b32 s%d, s%d, 1' % (sT3, sW))
        a('s_lshl_b32 s%d, s%d, 10' % (sT0, sT3))
        a('s_add_u32 s%d, s%d, %d' % (sT0, sT0, L_P))
        a('v_add_u32 v%d, s%d, v%d' % (vPw, sT0, vL4))
        s.bits(vPw2, [(2, 4, 4), (0, 1, 3), (1, 1, 2)], 's%d' % sT0)
        lh = a.newlabel('Li')
        a('s_cmp_lt_u32 s%d, 2' % sW)
        a('s_cbranch_scc1 %s' % lh)
        s.bits(vPw, [(5, 1, 9), (3, 1, 8), (0, 2, 6), (4, 1, 5), (2, 1, 3)], str(L_P))
        a('v_add_u32 v%d, %d, v%d' % (vPw2, 2 * R_T, vRr))
        a('v_add_u32 v%d, %d, v%d' % (vRed, 2 * R_T + 8, vRr))
        a.label(lh)
        a('s_lshl_b32 s%d, s%d, 13' % (sT0, sT3))
        a('s_add_u32 s%d, s%d, %d' % (sT0, sT0, L_KX))
        a('s_mov_b32 s%d, s%d' % (sLdsC, sT0))
        s.bits(vKX, [(2, 4, 6), (0, 1, 5), (1, 1, 4)], 's%d' % sT0)
        a('v_add_u32 v%d, %d, v%d' % (vVX, L_VX, vL16))
        a('s_mul_i32 s%d, s%d, %d' % (sCld, sG, QKV_G))
        a('s_add_u32 s%d, s%d, 0x%x' % (sCld, sCld, WS_QKV))
        a('s_lshl_b32 s%d, s%d, 10' % (sT0, sJ))
        a('s_lshl_b32 s%d, s%d, 8' % (sT1, sW))
        a('s_add_u32 s%d, s%d, s%d' % (sT0, sT0, sT1))
        a('s_add_u32 s%d, s%d, s%d' % (sQKst, sCld, sT0))
        a('s_lshl_b32 s%d, s%d, 13' % (sT2, sG))
        a('s_add_u32 s%d, s%d, 0x%x' % (sT2, sT2, WS_KVM))
        a('s_add_u32 s%d, s%d, s%d' % (sKst, sT2, sT0))
        a('s_sub_u32 s%d, s%d, 2048' % (sKst, sKst))
        a('s_bitcmp1_b32 s%d, 1' % sJ)
        a('s_cselect_b32 s%d, s%d, 0x%x' % (sKst, sKst, WS_DUMP))
        a('s_lshl_b32 s%d, s%d, 9' % (sT0, sB))
        a('s_lshl_b32 s%d, s%d, 8' % (sT1, sT3))
        a('s_add_u32 s%d, s%d, s%d' % (sT0, sT0, sT1))
        a('s_add_u32 s%d, s%d, s%d' % (sVst, sCld, sT0))
        a('s_add_u32 s%d, s%d, 8192' % (sVst, sVst))
        a('s_and_b32 s%d, s%d, 2048' % (sT1, sT0))
        a('s_add_u32 s%d, s%d, s%d' % (sT0, sT0, sT1))
        a('s_add_u32 s%d, s%d, s%d' % (sKVMst, sT2, sT0))
        a('s_min_u32 s%d, s%d, 2' % (sT0, sW))
        a('s_lshl_b32 s%d, s%d, 12' % (sT0, sT0))
        a('s_add_u32 s%d, s%d, s%d' % (sCld, sCld, sT0))
        a('s_lshl_b32 s%d, s%d, 1' % (sT0, sJ))
        a('s_add_u32 s%d, s%d, s%d' % (sT0, sT0, sT3))
        a('s_lshl_b32 s%d, s%d, 15' % (sT0, sT0))
        a('s_and_b32 s%d, s%d, 8' % (sT1, sG))
        a('s_add_u32 s%d, s%d, s%d' % (sT1, sT1, sG))
        a('s_lshl_b32 s%d, s%d, 10' % (sT1, sT1))
        a('s_add_u32 s%d, s%d, s%d' % (sPARTst, sT0, sT1))
        a('s_add_u32 s%d, s%d, 0x%x' % (sPARTst, sPARTst, WS_PART))
        a('s_lshl_b32 s%d, s%d, 1' % (sT0, sC))
        a('s_add_u32 s%d, s%d, s%d' % (sT0, sT0, sT3))
        a('s_mul_i32 s%d, s%d, %d' % (sT0, sT0, s.NP))
        if s.NP == 2: a('v_lshlrev_b32 v%d, 3, v0' % vMst)
        a('s_lshr_b32 s%d, s%d, 2' % (sT1, sT0))
        a('s_lshl_b32 s%d, s%d, 15' % (sREDld, sT1))
        a('s_and_b32 s%d, s%d, 3' % (sT1, sT0))
        a('s_lshl_b32 s%d, s%d, 8' % (sT1, sT1))
        a('s_add_u32 s%d, s%d, s%d' % (sREDld, sREDld, sT1))
        a('s_add_u32 s%d, s%d, 0x%x' % (sREDld, sREDld, WS_PART))
        a('s_lshl_b32 s%d, s%d, 14' % (sMTld, sX))
        a('s_add_u32 s%d, s%d, 0x%x' % (sMTld, sMTld, WS_MT))
        a('s_lshl_b32 s%d, s%d, 8' % (sT0, sT0))
        a('s_add_u32 s%d, s%d, s%d' % (sMTst, sMTld, sT0))
        a('s_lshl_b32 s%d, s%d, 12' % (sT0, sW))
        a('s_add_u32 s%d, s%d, s%d' % (sMTld, sMTld, sT0))
        a('s_lshl_b32 s%d, s%d, 1' % (sKVoff, sG))
        a('s_add_u32 s%d, s%d, s%d' % (sKVoff, sKVoff, sT3))
        a('s_lshl_b32 s%d, s%d, 12' % (sKVoff, sKVoff))
        a('s_and_b32 s%d, s%d, 1' % (sT0, sJ))
        a('s_lshl_b32 s%d, s%d, 12' % (sT0, sT0))
        a('s_lshl_b32 s%d, s%d, 13' % (sWarm, sG))
        a('s_add_u32 s%d, s%d, s%d' % (sWarm, sWarm, sT0))
        a('s_bfe_u32 s%d, s%d, 0x10001' % (sT0, sJ))
        a('s_lshl_b32 s%d, s%d, 17' % (sT0, sT0))
        a('s_add_u32 s%d, s%d, s%d' % (sWarm, sWarm, sT0))
        a('s_lshr_b32 s%d, s%d, 2' % (sT0, sJ))
        a('s_mul_i32 s%d, s%d, 0x%x' % (sT0, sT0, WS_VF - WS_KF + 262144))
        a('s_add_u32 s%d, s%d, s%d' % (sWarm, sWarm, sT0))
        a('s_add_u32 s%d, s%d, 0x%x' % (sWarm, sWarm, WS_KF + 2 * 262144))
        a('s_lshl_b32 s%d, s%d, 11' % (sT0, sT3))
        a('s_add_u32 s%d, s%d, s%d' % (sWarm, sWarm, sT0))
        a('s_lshl_b32 s%d, s%d, 15' % (sT0, sW))
        s.bits(vB, [(0, 2, 3), (4, 1, 11), (5, 1, 8), (2, 2, 6)], 's%d' % sT0)
        s.bits(vT + 10, [(0, 2, 3), (4, 1, 12), (5, 1, 9), (2, 2, 7)], 's%d' % sT0)
        a('v_add_u32 v%d, s%d, v%d' % (vT + 7, sT0, vL16))
        def tr_w1(vaddr, t0, nt, rowb, Tls=range(4)):
            for Tl in Tls:
                for tl in range(nt):
                    for v in range(4):
                        a('ds_read_b64_tr_b16 %s, v%d offset:%d' % (ar(((t0 + tl) * 4 + Tl) * 8 + 2 * v, 2), vaddr, (Tl * 64 + 8 * (v // 2) + 16 * (v % 2)) * rowb + tl * 32))
                    a('s_waitcnt lgkmcnt(4)')
            a('s_waitcnt lgkmcnt(0)')
        s.mark(5)
        a('s_waitcnt vmcnt(46)')
        s.mark(6)
        s.verify()
        for i in range(14, 16):
            a('buffer_load_dwordx4 %s, v%d, s[%d:%d], s%d offen%s' % (vr(128 + 4 * i, 4), vA, S_WO, S_WO + 3, sH, s.nt(S_WO)))
            a('s_add_u32 s%d, s%d, 8192' % (sH, sH))
        a('s_and_b32 s%d, s%d, 15' % (sA, sC))
        a('s_lshl_b32 s%d, s%d, 16' % (sA, sA))
        a('s_lshr_b32 s%d, s%d, 4' % (sT1, sC))
        a('s_lshl2_add_u32 s%d, s%d, s%d' % (sT1, sT1, sX))
        a('s_lshl_b32 s%d, s%d, 7' % (sT1, sT1))
        a('s_add_u32 s%d, s%d, s%d' % (sA, sA, sT1))
        a('s_add_u32 s%d, s%d, 0x%x' % (sA, sA, WS_PART + 66 * PART_SLOT))
        a('v_and_b32 v%d, 15, v0' % (vT + 1))
        a('v_lshlrev_b32 v%d, 12, v%d' % (vT + 1, vT + 1))
        a('s_cmp_eq_u32 s%d, 1' % sW)
        a('s_cselect_b32 s%d, s%d, s%d' % (sA, sA, sVst))
        a('s_cselect_b64 vcc, -1, 0')
        a('v_cndmask_b32 v%d, v%d, v%d, vcc' % (vT + 1, vL4, vT + 1))
        for slot in range(4):
            a('s_add_u32 s%d, s%d, 0x%x' % (sT0, sQKst, slot * QKV_SLOT)); s.st(vSent, vL4, sT0)
            if slot == 0: s.st(vSent, vT + 1, sA)
            else:
                a('s_add_u32 s%d, s%d, 0x%x' % (sT0, sVst, slot * QKV_SLOT)); s.st(vSent, vL4, sT0)
            if slot < 2:
                a('s_lshr_b32 s%d, s%d, 1' % (sT0, sW))
                a('s_lshl_b32 s%d, s%d, 13' % (sT0, sT0))
                a('s_add_u32 s%d, s%d, s%d' % (sT0, sT0, sPARTst))
                a('s_add_u32 s%d, s%d, 0x%x' % (sT0, sT0, slot * PART_SLOT)); s.st(vSent, vL16, sT0, n=4)
            a('s_add_u32 s%d, s%d, 0x%x' % (sT0, sMTst, slot * MT_SLOT)); s.st(vSent, vL4 if s.NP == 1 else vMst, sT0, n=s.NP)
        tr_w1(vT + 10, 0, 4, 128, (0, 1))
        a('s_waitcnt vmcnt(46)')
        tr_w1(vT + 10, 0, 4, 128, (2, 3))
        a('s_waitcnt vmcnt(30)')
        for i in range(16):
            a('ds_write_b128 v%d, %s offset:%d' % (vT + 7, vr(64 + 4 * i, 4), i * 1024))
            if i % 8 == 7: a('s_waitcnt lgkmcnt(0)')
        tr_w1(vB, 4, 2, 64)
        a('s_waitcnt vmcnt(14)')
        s.mark(7)
        for i in range(16):
            a('ds_write_b128 v%d, %s offset:%d' % (vT + 7, vr(128 + 4 * i, 4), 16384 + i * 1024))
            if i % 8 == 7: a('s_waitcnt lgkmcnt(0)')
        a('s_waitcnt vmcnt(0)')
        a('s_barrier')
        lskip = a.newlabel('Lann')
        a('s_getreg_b32 s%d, hwreg(HW_REG_XCC_ID)' % sT0)
        a('s_and_b32 s%d, s%d, 15' % (sT0, sT0))
        a('s_mul_i32 s%d, s%d, s%d' % (sT1, sT0, sT0))
        a('s_lshl_b32 s%d, s%d, 18' % (sT1, sT1))
        a('s_lshl_b32 s%d, s%d, 8' % (sT0, sT0))
        a('s_add_u32 s%d, s%d, s%d' % (sT0, sT0, sT1))
        a('s_add_u32 s%d, s%d, 1' % (sLocal, sT0))
        a('s_cmp_eq_u32 s%d, 0' % sW)
        a('s_cbranch_scc0 %s' % lskip)
        a('s_lshl_b32 s%d, s%d, 2' % (sT1, sX))
        a('v_mov_b32 v%d, s%d' % (vT + 6, sLocal))
        a('s_mov_b64 exec, 1')
        a('buffer_atomic_add v%d, off, s[%d:%d], s%d offset:16 sc1' % (vT + 6, S_DBG, S_DBG + 3, sT1))
        s.counted()
        a('s_mov_b64 exec, -1')
        a.label(lskip)
        lm = a.newlabel('Lms')
        a('s_cmp_eq_u32 s%d, 1' % sW)
        a('s_cbranch_scc0 %s' % lm)
        a('s_and_b32 s%d, s%d, 15' % (sT0, sC))
        a('s_lshl_b32 s%d, s%d, 16' % (sT0, sT0))
        a('s_lshr_b32 s%d, s%d, 4' % (sT1, sC))
        a('s_lshl2_add_u32 s%d, s%d, s%d' % (sT1, sT1, sX))
        a('s_lshl_b32 s%d, s%d, 7' % (sT1, sT1))
        a('s_add_u32 s%d, s%d, s%d' % (sT0, sT0, sT1))
        a('s_add_u32 s%d, s%d, 0x%x' % (sT0, sT0, WS_PART + 66 * PART_SLOT))
        a('s_mov_b32 s%d, -1' % sA); a('s_mov_b32 s%d, -1' % sB)
        for k in range(s.opt.get('nprobe', 4)):
            a('s_memtime s[%d:%d]' % (sTS, sTS + 1))
            a('s_waitcnt lgkmcnt(0)')
            a('s_mov_b32 s%d, s%d' % (sT1, sTS))
            a('buffer_load_dword v%d, off, s[%d:%d], s%d sc1' % (vT, S_WS, S_WS + 3, sT0))
            a('s_waitcnt vmcnt(0)')
            a('s_memtime s[%d:%d]' % (sTS, sTS + 1))
            a('s_waitcnt lgkmcnt(0)')
            a('s_sub_u32 s%d, s%d, s%d' % (sT1, sTS, sT1))
            r = sB if k % 2 else sA
            a('s_min_u32 s%d, s%d, s%d' % (r, r, sT1))
            a('s_add_u32 s%d, s%d, %d' % (sT0, sT0, 8192 if k % 2 == 0 else 12288 if k % 4 == 1 else 4096))
        a('s_cmp_le_u32 s%d, s%d' % (sA, sB))
        a('s_cselect_b32 s%d, 1, 0x10001' % sT0)
        a('v_mov_b32 v%d, s%d' % (vT, sT0))
        a('s_mov_b64 exec, 1')
        a('buffer_atomic_add v%d, off, s[%d:%d], 0 offset:32 sc1' % (vT, S_DBG, S_DBG + 3))
        a('s_mov_b64 exec, -1')
        a.label(lm)
        lj = a.newlabel('Li')
        a('s_cmp_lt_u32 s%d, 2' % sW)
        a('s_cbranch_scc1 %s' % lj)
        a('s_lshl_b32 s%d, s%d, 7' % (sT0, sT3))
        a('s_add_u32 s%d, s%d, 16384' % (sT0, sT0))
        s.bits(vB, [(2, 4, 8), (0, 2, 3)], 's%d' % sT0)
        a('v_add_u32 v%d, 0x10000, v%d' % (vB + 1, vB))
        for tt in range(4):
            for hl in range(2):
                for t in range(4):
                    for v2 in range(2):
                        a('ds_read_b64_tr_b16 %s, v%d offset:%d' % (wo(tt, 16 * hl + 4 * t + 2 * v2, 2), vB + hl, (t // 2) * 32768 + (32 * (t % 2) + 16 * v2) * 256 + tt * 32))
                a('s_waitcnt lgkmcnt(0)')
        for i in range(8):
            a('v_mov_b32 v%d, 0' % (vU + 8 * i + 6)); a('v_mov_b32 v%d, 0' % (vU + 8 * i + 7))
        a.label(lj)
        a('s_barrier')
        a('s_lshl_b32 s%d, s%d, 9' % (sT0, sW))
        s.bits(vA, [(2, 2, 12), (0, 1, 11), (4, 2, 3), (1, 1, 2)], 's%d' % sT0)
        for u in range(4):
            for p in range(4):
                a('buffer_load_dword v%d, v%d, s[%d:%d], 0 offen offset:%d' % (vF + 4 * u + p, vA, S_M0, S_M0 + 3, u * 128 + p * 32))
        s.kv_wait_init()
        a('s_mov_b32 s%d, 0' % sStep)
        lh, lj = a.newlabel('Li'), a.newlabel('Li')
        a('s_cmp_ge_u32 s%d, 2' % sW)
        a('s_cbranch_scc1 %s' % lh)
        s.dma_kv(sStep, WS_KF, str(L_KX))
        a('s_mov_b32 s%d, 1' % sT2)
        s.dma_kv(sT2, WS_VF, str(L_VX + 16384))
        a('v_mov_b32 v%d, 0' % (vT + 3))
        a('ds_write_b32 v%d, v%d offset:768' % (vPw, vT + 3))
        a('s_branch %s' % lj)
        a.label(lh)
        s.dma_kv(sStep, WS_VF, str(L_VX))
        a.label(lj)
        lw, lok = a.newlabel('Lw'), a.newlabel('Lw')
        a('v_min_u32 v%d, 16, v%d' % (vT + 1, vL4))
        a.label(lw)
        a('buffer_load_dword v%d, v%d, s[%d:%d], 0 offen offset:16 sc1' % (vT, vT + 1, S_DBG, S_DBG + 3))
        a('s_waitcnt vmcnt(0)')
        a('v_and_b32 v%d, 0xff, v%d' % (vT + 2, vT))
        a('v_cmp_ne_u32 vcc, 32, v%d' % (vT + 2))
        a('v_readlane_b32 s%d, v%d, 4' % (sT1, vT))
        a('s_and_b32 s%d, vcc_lo, 15' % sT0)
        a('s_cselect_b32 s%d, 0, s%d' % (sT1, sT1))
        a('s_bitcmp1_b32 s%d, 7' % sT1)
        a('s_cbranch_scc1 %s' % lok)
        a('s_sleep 8')
        s.tmo(lw)
        a.label(lok)
        a('s_cmp_gt_u32 s%d, 0x400080' % sT1)
        a('s_cselect_b32 s%d, 2, 0' % sT1)
        if 'near' in s.opt: a('s_mov_b32 s%d, %d' % (sT1, 2 * s.opt['near']))
        a('s_lshl_b32 s%d, s%d, 12' % (sT1, sT1))
        a('s_add_u32 s%d, s%d, s%d' % (sPARTst, sPARTst, sT1))
        a('s_add_u32 s%d, s%d, s%d' % (sREDld, sREDld, sT1))
        a('v_readlane_b32 s%d, v%d, s%d' % (sT0, vT, sX))
        a('s_mul_i32 s%d, s%d, %d' % (sLocal, sLocal, 128 // s.NX))
        a('s_cmp_eq_u32 s%d, s%d' % (sT0, sLocal))
        a('s_cselect_b32 s%d, 1, 0' % sLocal)
        if s.opt.get('remote'): a('s_mov_b32 s%d, 0' % sLocal)
        a('s_waitcnt vmcnt(0) lgkmcnt(0)')
        a('s_barrier')
        lj = a.newlabel('Li')
        a('s_cmp_lt_u32 s%d, 2' % sW)
        a('s_cbranch_scc1 %s' % lj)
        s.ux()
        a.label(lj)
        s.prep_stage1()
        for u in range(4): s.s1unit(u, vF)
        s.mark(1)
        if s.opt.get('tot', True):
            a('s_memrealtime s[98:99]')
            a('s_memtime s[82:83]')
            a('s_waitcnt lgkmcnt(0)')
        if s.prof:
            for i in range(16): a('s_mov_b32 s%d, 0' % (sAcc + i))
            a('s_memtime s[%d:%d]' % (sTS, sTS + 1)); a('s_waitcnt lgkmcnt(0)'); a('s_mov_b32 s%d, s%d' % (sPrev, sTS))
    def slot(s, dst, base, mul, rst=False):
        a = s.a
        a('s_and_b32 s%d, s%d, 3' % (dst, sStep))
        if rst: a('s_xor_b32 s%d, s%d, 2' % (dst, dst))
        a('s_mul_i32 s%d, s%d, %d' % (dst, dst, mul))
        a('s_add_u32 s%d, s%d, s%d' % (dst, dst, base))
    def prep_stage1(s):
        a = s.a
        s.slot(sA, sQKst, QKV_SLOT); s.slot(sB, sVst, QKV_SLOT); s.slot(sCc, sCld, QKV_SLOT)
        s.zero(range(vD, vD + 24))
    def s1finish(s, second):
        a = s.a
        s.stamp(9 if s.opt.get('trace') else 12)
        for t6 in range(6):
            s.halfsum(vD + 4 * t6)
            a('ds_write_b64 v%d, %s offset:%d' % (vRw, vr(vD + 4 * t6, 2), L_R + t6 * R_T))
        a('s_waitcnt lgkmcnt(0)')
        s.stamp(6)
        a('s_barrier')
        s.stamp(7)
        tiles = [(vRr, vRr2, vM + 16, vT + 10, sA)] + ([(vPw2, vRed, vM + 24, vT + 11, sB)] if second else [])
        k = R_W // 256
        for a0, a1, r, o, so in tiles:
            for e, ad in enumerate((a0, a1)):
                for h in range(2):
                    a('ds_read2st64_b32 %s, v%d offset0:%d offset1:%d' % (vr(r + 4 * e + 2 * h, 2), ad, 2 * h * k, (2 * h + 1) * k))
        for n, (a0, a1, r, o, so) in enumerate(tiles):
            rem = 4 * (len(tiles) - 1 - n)
            a('s_waitcnt lgkmcnt(%d)' % (rem + 2))
            a('v_pk_add_f32 %s, %s, %s' % (vr(r, 2), vr(r, 2), vr(r + 2, 2)))
            a('v_add_f32 v%d, v%d, v%d' % (r, r, r + 1))
            a('s_waitcnt lgkmcnt(%d)' % rem)
            a('v_pk_add_f32 %s, %s, %s' % (vr(r + 4, 2), vr(r + 4, 2), vr(r + 6, 2)))
            a('v_add_f32 v%d, v%d, v%d' % (r + 4, r + 4, r + 5))
            a('v_cvt_pk_bf16_f32 v%d, v%d, v%d' % (o, r, r + 4))
            a('v_min_u32 v%d, -2, v%d' % (o, o))
            s.lst(o, vL4, so)
        s.stamp(0)
    def hopc(s, tag):
        a = s.a
        a.label('L_hopc_%s' % tag)
        for i in range(4):
            a('buffer_load_dwordx4 %s, v%d, s[%d:%d], s%d offen offset:%d sc1' % (vr(vM + 4 * i, 4), vL16, S_WS, S_WS + 3, sCc, i * 1024))
        a('s_waitcnt vmcnt(2)')
        s.maxtree(vM, 8, vT)
        a('s_waitcnt vmcnt(0)')
        s.maxtree(vM + 8, 8, vT, first=False)
        a('v_cmp_eq_u32 vcc, -1, v%d' % vT)
        a('s_cbranch_vccnz L_cretry_%s' % tag)
    def cretry(s, tag):
        s.a.label('L_cretry_%s' % tag)
        s.count(9)
        s.tmo('L_hopc_%s' % tag)
    def loop_S(s, tag):
        a = s.a
        vS = vD + 24
        vSm = vF + 4
        for i in range(8): a('v_mov_b32 v%d, 0' % (vS + i))
        a.label('L_loop_%s' % tag)
        s.s1finish(False)
        a('s_lshl_b32 s%d, s%d, 17' % (sK2, sStep))
        a('s_add_u32 s%d, s%d, s%d' % (sK2, sK2, sKst))
        a('s_cmp_eq_u32 s%d, %d' % (sStep, s.nsteps - 1))
        a('s_cbranch_scc1 L_lastk')
        A = a; buf = []
        s.a = a = buf.append
        for i in range(8): a('ds_read_b128 %s, v%d offset:%d' % (vr(vK + 4 * i, 4), vKX, i * 1024))
        a('s_min_u32 s%d, s%d, 60' % (sT2, sStep))
        a('s_lshl_b32 s%d, s%d, 18' % (sT2, sT2))
        a('s_add_u32 s%d, s%d, s%d' % (sT2, sT2, sWarm))
        a('s_lshl_b32 s%d, s%d, 19' % (sD, sStep))
        a('s_add_u32 s%d, s%d, s%d' % (sD, sD, sREDld))
        a('s_and_b32 s%d, s%d, 4' % (sT3, sStep))
        a('s_lshl_b32 s%d, s%d, 11' % (sT3, sT3))
        a('s_xor_b32 s%d, s%d, s%d' % (sD, sD, sT3))
        s.slot(sE, sMTst, MT_SLOT); s.slot(sH, sMTld, MT_SLOT)
        s.slot(sB, sQKst, QKV_SLOT, True); s.slot(sF, sMTst, MT_SLOT, True)
        s.zero(range(vD, vD + 24))
        s.a = a = A
        npre = s.opt.get('npre', 20)
        def cld():
            for i in range(4):
                a('buffer_load_dwordx4 %s, v%d, s[%d:%d], s%d offen offset:%d sc1' % (vr(vM + 4 * i, 4), vL16, S_WS, S_WS + 3, sCc, i * 1024))
        for y in buf[:npre]: a(y)
        s.stamp(1)
        cld()
        for y in buf[npre:]: a(y)
        a('s_waitcnt lgkmcnt(0)')
        a.label('L_hopc_%s' % tag)
        mx = lambda k, first: 'v_max3_u32 v%d, v%d, v%d, v%d' % (vT, vM + 2 * k if first else vT, vM + 2 * k, vM + 2 * k + 1)
        for T in range(2):
            a('s_waitcnt vmcnt(%d)' % (3 - T))
            for tau in range(2):
                a('v_smfmac_f32_16x16x64_bf16 %s, %s, %s, v%d' % (vr(vS + 4 * tau, 4), vr(vM + 4 * T, 4), vr(vK + 16 * tau + 8 * T, 8), vIdx))
                a(mx(2 * T + tau, T + tau == 0))
        for T in range(2):
            a('s_waitcnt vmcnt(%d)' % (1 - T))
            a('v_mfma_f32_16x16x32_bf16 %s, %s, %s, %s' % (vr(vSm, 4), vr(vM + 4 * T, 4), vr(vM + 8 + 4 * T, 4), '0' if T == 0 else vr(vSm, 4)))
            for k in range(2): a(mx(4 + 2 * T + k, False))
        a('v_cmp_eq_u32 vcc, -1, v%d' % vT)
        s.halfsum(vS, vT + 2); s.halfsum(vS + 4, vT + 4)
        a('s_cbranch_vccnz L_cretry_%s' % tag)
        s.stamp(2)
        def warm():
            a('s_mov_b64 exec, 0xffff')
            a('buffer_load_dword v%d, v%d, s[%d:%d], s%d offen sc1' % (vT + 11, vGate, S_WS, S_WS + 3, sT2))
            a('s_mov_b64 exec, -1')
        if s.opt.get('warm', 1) == 1: warm()
        x = vT + 2
        m = vT + 8
        for i in range(2): a('v_cndmask_b32 v%d, v%d, v%d, s[%d:%d]' % (x + 4 + i, vSm + i, vSm + 2 + i, sHiMask, sHiMask + 1))
        for i in range(2): a('v_add_f32_dpp v%d, v%d, v%d quad_perm:[2,3,0,1] row_mask:0xf bank_mask:0xf' % (x + 4 + i, x + 4 + i, x + 4 + i))
        def xreduce(op):
            for sh in (8, 4, 2, 1):
                for i in range(2): a('%s_dpp v%d, v%d, v%d row_ror:%d row_mask:0xf bank_mask:0xf' % (op, m + i, m + i, m + i, sh))
        for i in range(2): a('v_max3_f32 v%d, v%d, v%d, v%d' % (m + i, x + i, x + 2 + i, x + 4 + i))
        xreduce('v_max_f32')
        a('v_pk_mul_f32 %s, %s, %s' % (vr(m, 2), vr(m, 2), sr(sScale, 2)))
        for k in range(3): a('v_pk_fma_f32 %s, %s, %s, %s neg_lo:[0,0,1] neg_hi:[0,0,1]' % (vr(x + 2 * k, 2), vr(x + 2 * k, 2), sr(sScale, 2), vr(m, 2)))
        for i in range(6): a('v_exp_f32 v%d, v%d' % (x + i, x + i))
        a('v_pk_add_f32 %s, %s, %s' % (vr(m, 2), vr(x, 2), vr(x + 2, 2)))
        for i in range(2): a('v_fma_f32 v%d, v%d, 0.5, v%d' % (m + i, x + 4 + i, m + i))
        xreduce('v_add_f32')
        for i in range(2): a('v_rcp_f32 v%d, v%d' % (m + i, m + i))
        for k in range(3): a('v_pk_mul_f32 %s, %s, %s' % (vr(x + 2 * k, 2), vr(x + 2 * k, 2), vr(m, 2)))
        for k in range(3): a('v_cvt_pk_bf16_f32 v%d, v%d, v%d' % (x + 2 * k, x + 2 * k, x + 2 * k + 1))
        a('ds_write2_b32 v%d, v%d, v%d offset0:0 offset1:64' % (vPw, x, x + 2))
        a('ds_write_b32 v%d, v%d offset:512' % (vPw2, x + 4))
        a('s_waitcnt lgkmcnt(0)')
        s.stamp(3)
        a('s_barrier')
        s.stamp(4)
        a('s_add_u32 s%d, s%d, 1' % (sStep, sStep))
        s.slot(sA, sQKst, QKV_SLOT); s.slot(sCc, sCld, QKV_SLOT)
        s.zero(range(vS, vS + 8))
        a('v_xor_b32 v%d, 0x4000, v%d' % (vKX, vKX))
        tail = None
        if s.opt.get('warm', 1) == 2: warm()
        s.st(vT + 10, vL4, sK2)
        s.lst(vSent, vL4, sB); s.lst(vSent, vL4 if s.NP == 1 else vMst, sF, n=s.NP)
        a('s_barrier')
        s.delay('adelay')
        s.stamp(8)
        r = vF
        a.label('L_hopa_%s' % tag)
        NP = s.NP
        r = vF + 8
        for i in range(4 * NP):
            a('buffer_load_dwordx4 %s, v%d, s[%d:%d], s%d offen offset:%d sc1' % (vr(vM + 4 * i, 4), vRed, S_WS, S_WS + 3, sD, (i // NP) * 1024 + (i % NP) * 256))
        a('s_mov_b64 exec, -1')
        for i in range(4 * NP):
            a('s_waitcnt vmcnt(%d)' % (4 * NP - 1 - i))
            rr = vr(r + 4 * (i % NP), 4)
            a('v_mfma_f32_16x16x32_bf16 %s, %s, %s, %s' % (rr, vr(vM + 4 * i, 4), vr(vSel, 4), '0' if i < NP else rr))
        a('v_pk_add_f32 %s, %s, %s' % (vr(vT, 2), vr(r, 2), vr(r + 2, 2)))
        if NP == 2:
            a('v_pk_add_f32 %s, %s, %s' % (vr(vT, 2), vr(vT, 2), vr(r + 4, 2)))
            a('v_pk_add_f32 %s, %s, %s' % (vr(vT, 2), vr(vT, 2), vr(r + 6, 2)))
        for k in range(NP):
            for h in range(2): a('v_cvt_pk_bf16_f32 v%d, v%d, v%d' % (r + 4 * k + h, r + 4 * k + 2 * h, r + 4 * k + 2 * h + 1))
        a('v_cmp_u_f32 vcc, v%d, v%d' % (vT, vT + 1))
        for k in range(NP):
            a('v_cndmask_b32 v%d, v%d, v%d, s[%d:%d]' % (r + 4 * k, r + 4 * k + 1, r + 4 * k, sStMask, sStMask + 1))
            a('v_min_u32 v%d, -2, v%d' % (r + 4 * k, r + 4 * k))
        a('s_cbranch_vccnz L_aslow_%s' % tag)
        a.label('L_aok_%s' % tag)
        for k in range(NP): s.lst(r + 4 * k, vL4, sE, 256 * k)
        s.stamp(5)
        if s.opt.get('b4'): a('s_barrier')
        s.delay('b4delay')
        stubs = s.hopb_s1(tag, tail)
        stubs()
        a.label('L_aslow_%s' % tag)
        s.maxtree(vM, 16 * NP, vT + 1)
        a('v_cmp_eq_u32 vcc, -1, v%d' % (vT + 1))
        a('s_cbranch_vccz L_aok_%s' % tag)
        a('s_mov_b64 exec, vcc')
        s.count(10)
        s.tmo('L_hopa_%s' % tag)
        a.label('L_cretry_%s' % tag)
        cld()
        s.zero(range(vS, vS + 8))
        s.count(9)
        s.tmo('L_hopc_%s' % tag)
    def um(s):
        a = s.a
        def cvt(hl, tt):
            d = vD + 16 * hl + 4 * tt
            a('v_cvt_pk_bf16_f32 v%d, v%d, v%d' % (vU + 16 * tt + 8 * hl + 4, d, d + 1))
            a('v_cvt_pk_bf16_f32 v%d, v%d, v%d' % (vU + 16 * tt + 8 * hl + 5, d + 2, d + 3))
        n = 0
        for hl in range(2):
            for T in range(2):
                indma = s.opt.get('dmapos', 'um') == 'um'
                if indma: a('s_mov_b32 m0, s%d' % (sP + 4 + n))
                for tt in range(4):
                    a('v_smfmac_f32_16x16x64_bf16 %s, %s, %s, v%d' % (vr(vD + 16 * hl + 4 * tt, 4), vr(vM + 8 * hl + 4 * T, 4), wo(tt, 16 * hl + 8 * T, 8), vIdx))
                    if indma: s.dma(sP + n, tt * 1024)
                    if hl == 1 and T == 1: cvt(0, tt)
                n += 1
        for tt in range(4): cvt(1, tt)
    def kv_addr(s):
        a = s.a
        a('s_add_u32 s%d, s%d, 1' % (sT0, sStep))
        a('s_lshl_b32 s%d, s%d, 18' % (sP, sT0))
        a('s_add_u32 s%d, s%d, s%d' % (sP, sP, sKVoff))
        if WS_KF: a('s_add_u32 s%d, s%d, 0x%x' % (sP, sP, WS_KF))
        a('s_add_u32 s%d, s%d, 0x20000' % (sP + 1, sP))
        a('s_and_b32 s%d, s%d, 1' % (sT0, sT0))
        a('s_lshl_b32 s%d, s%d, 14' % (sT0, sT0))
        a('s_add_u32 s%d, s%d, s%d' % (sP + 4, sT0, sLdsC))
        a('s_add_u32 s%d, s%d, 4096' % (sP + 5, sP + 4))
        a('s_xor_b32 s%d, s%d, 0x4000' % (sP + 6, sP + 4))
        a('s_add_u32 s%d, s%d, %d' % (sP + 6, sP + 6, L_VX - L_KX))
        a('s_add_u32 s%d, s%d, 4096' % (sP + 7, sP + 6))
        a('s_add_u32 s%d, s%d, 2' % (sT0, sStep))
        a('s_min_u32 s%d, s%d, 63' % (sT0, sT0))
        a('s_lshl_b32 s%d, s%d, 18' % (sP + 2, sT0))
        a('s_add_u32 s%d, s%d, s%d' % (sP + 2, sP + 2, sKVoff))
        a('s_add_u32 s%d, s%d, 0x%x' % (sP + 2, sP + 2, WS_VF))
        a('s_add_u32 s%d, s%d, 0x20000' % (sP + 3, sP + 2))
    def loop_H(s, tag):
        a = s.a
        vO = vT + 2
        zs = [vD + i for i in range(32)] + [vF + i for i in range(16)]
        for z in zs[24:]: a('v_mov_b32 v%d, 0' % z)
        s.kv_addr()
        a.label('L_loop_%s' % tag)
        s.s1finish(True)
        a('s_lshl_b32 s%d, s%d, 17' % (sF, sStep))
        a('s_add_u32 s%d, s%d, s%d' % (sK2, sF, sKst))
        a('s_add_u32 s%d, s%d, s%d' % (sF, sF, sKVMst))
        a('s_cmp_eq_u32 s%d, %d' % (sStep, s.nsteps - 1))
        a('s_cbranch_scc1 L_last_%s' % tag)
        a('s_lshl_b32 s%d, s%d, 19' % (sD, sStep))
        a('s_add_u32 s%d, s%d, s%d' % (sD, sD, sPARTst))
        a('s_and_b32 s%d, s%d, 4' % (sT3, sStep))
        a('s_lshl_b32 s%d, s%d, 11' % (sT3, sT3))
        a('s_xor_b32 s%d, s%d, s%d' % (sD, sD, sT3))
        s.slot(sH, sMTld, MT_SLOT)
        s.zero(zs[:24])
        s.delay('hdelay')
        s.stamp(1)
        s.hopc(tag)
        s.stamp(2)
        s.um()
        s.stamp(3)
        a('s_barrier')
        s.stamp(4)
        for hl in range(2):
            for u in range(2):
                a('ds_read_b64_tr_b16 %s, v%d offset:%d' % (vr(vM + 4 * hl + 2 * u, 2), vPw, hl * 1024 + u * 16))
        for hl in range(2):
            a('s_waitcnt lgkmcnt(%d)' % (2 - 2 * hl))
            for tt in range(4):
                a('v_smfmac_f32_16x16x64_bf16 %s, %s, %s, v%d' % (vr(vF + 4 * tt, 4), vr(vM + 4 * hl, 4), vr(vU + 16 * tt + 8 * hl, 8), vIdx))
        for tt in range(4):
            s.halfsum(vF + 4 * tt)
            a('v_cvt_pk_bf16_f32 v%d, v%d, v%d' % (vO + tt, vF + 4 * tt, vF + 4 * tt + 1))
            a('v_min_u32 v%d, -2, v%d' % (vO + tt, vO + tt))
        s.st(vO, vL16, sD, n=4)
        s.stamp(5)
        def late():
            s.st(vT + 10, vL4, sK2)
            s.st(vT + 11, vL4, sF, 2048)
            s.slot(sT0, sQKst, QKV_SLOT, True); s.lst(vSent, vL4, sT0)
            s.slot(sT0, sVst, QKV_SLOT, True); s.lst(vSent, vL4, sT0)
            a('s_add_u32 s%d, s%d, 0x%x' % (sD, sD, 2 * PART_SLOT))
            a('s_and_b32 s%d, s%d, 2' % (sT3, sStep))
            a('s_lshl_b32 s%d, s%d, 12' % (sT3, sT3))
            a('s_xor_b32 s%d, s%d, s%d' % (sD, sD, sT3))
            s.st(vSent, vL16, sD, n=4)
        def nxt():
            a('s_add_u32 s%d, s%d, 1' % (sStep, sStep))
            s.slot(sA, sQKst, QKV_SLOT); s.slot(sB, sVst, QKV_SLOT); s.slot(sCc, sCld, QKV_SLOT)
            s.kv_addr()
            s.kv_wait_loop()
        tail = None
        if s.opt.get('latetail'):
            def late():
                s.slot(sT2, sQKst, QKV_SLOT, True); s.slot(sT3, sVst, QKV_SLOT, True)
                a('s_add_u32 s%d, s%d, 0x%x' % (sD, sD, 2 * PART_SLOT))
            tail = [lambda: s.st(vSent, vL16, sD, n=4), lambda: s.st(vT + 10, vL4, sF), lambda: s.st(vT + 11, vL4, sF, 2048),
                    lambda: s.lst(vSent, vL4, sT2), lambda: s.lst(vSent, vL4, sT3)]
        hooks = {s.opt.get('latepos', 36): late, 48: nxt, s.opt.get('b3pos', 12): lambda: a('s_barrier')}
        def addhook(pos, f):
            old = hooks.get(pos)
            hooks[pos] = (lambda: (old(), f())) if old else f
        for k in range(8): addhook(52 + k, (lambda k=k: s.zero(range(vF + 2 * k, vF + 2 * k + 2))))
        if s.opt.get('dmapos', 'um') not in ('um', 'none'):
            d0 = s.opt['dmapos']
            def dm(k):
                if k % 4 == 0:
                    a('s_mov_b32 m0, s%d' % (sP + 4 + k // 4))
                s.dma(sP + k // 4, (k % 4) * 1024)
            for k in range(16): addhook(d0 + k, (lambda k=k: dm(k)))
        s.ux(hooks)
        s.zero(range(vD, vD + 32))
        s.stamp(8)
        if s.opt.get('b4'): a('s_barrier')
        s.delay('b4delay')
        stubs = s.hopb_s1(tag, tail)
        stubs()
        s.cretry(tag)
        a.label('L_last_%s' % tag)
        s.st(vT + 11, vL4, sF, 2048)
        a('s_branch L_lastk')
    def emit(s):
        a = s.a
        s.init()
        a('s_cmp_eq_u32 s%d, 1' % sLocal)
        a('s_cbranch_scc0 L_remote')
        for local in (True, False):
            s.local = local
            t = 'l' if local else 'r'
            if not local: a.label('L_remote')
            a('s_cmp_ge_u32 s%d, 2' % sW)
            a('s_cbranch_scc1 L_H%s' % t)
            s.loop_S('S' + t)
            a.label('L_H%s' % t)
            s.loop_H('H' + t)
        a.label('L_lastk')
        s.st(vT + 10, vL4, sK2)
        a('s_branch L_chain_done')
        a.label('L_chain_fail')
        a('s_mov_b64 exec, -1')
        a('v_mov_b32 v%d, 1' % vT)
        a('buffer_atomic_add v%d, off, s[%d:%d], 0 offset:4 sc1' % (vT, S_DBG, S_DBG + 3))
        a.label('L_chain_done')
        if s.opt.get('tot', True):
            a('s_memrealtime s[100:101]')
            a('s_waitcnt lgkmcnt(0)')
            a('s_sub_u32 s100, s100, s98')
            a('v_mov_b32 v%d, s100' % vT)
            a('buffer_store_dword v%d, off, s[%d:%d], 0 offset:8' % (vT, S_DBG, S_DBG + 3))
            a('s_memtime s[100:101]')
            a('s_waitcnt lgkmcnt(0)')
            a('s_sub_u32 s100, s100, s82')
            a('v_mov_b32 v%d, s100' % vT)
            a('s_lshl_b32 s%d, s%d, 2' % (sT0, sX))
            a('buffer_store_dword v%d, off, s[%d:%d], s%d offset:64' % (vT, S_DBG, S_DBG + 3, sT0))
        if s.opt.get('trace'):
            a('s_lshl_b32 s%d, s2, 2' % sT0)
            a('s_add_u32 s%d, s%d, s%d' % (sT0, sT0, sW))
            a('s_lshl_b32 s%d, s%d, 12' % (sT0, sT0))
            a('s_add_u32 s%d, s%d, 0x%x' % (sT0, sT0, WS_PROF))
            for i in range(11): s.st(244 + i, vL4, sT0, 256 * i, sc1=False)
        if s.prof:
            a('s_lshl_b32 s%d, s2, 2' % sT0)
            a('s_add_u32 s%d, s%d, s%d' % (sT0, sT0, sW))
            a('s_lshl_b32 s%d, s%d, 6' % (sT0, sT0))
            a('s_add_u32 s%d, s%d, 0x%x' % (sT0, sT0, WS_PROF))
            a('s_mov_b32 s%d, s%d' % (sAcc + 15, sTmo))
            a('s_mov_b32 s%d, s%d' % (sAcc + 14, sLocal))
            for i in range(16):
                a('v_mov_b32 v%d, s%d' % (vT, sAcc + i))
                a('buffer_store_dword v%d, off, s[%d:%d], s%d offset:%d' % (vT, S_WS, S_WS + 3, sT0, 4 * i))
        a('s_waitcnt vmcnt(0)')
    def nt(s, srd): return ' nt' if srd in s.opt.get('nt', []) else ''
    def get_wave(s):
        a = s.a
        a('v_lshrrev_b32 v%d, 6, v0' % vT)
        a('v_readfirstlane_b32 s%d, v%d' % (sW, vT))
        a('v_and_b32 v0, 63, v0')
    def verify(s): pass
    def counted(s): pass
    def mark(s, i): pass
    def early0(s): pass
    def early1(s): pass
    def kv_wait_init(s): pass
    def kv_wait_loop(s): pass

def chain_kernel(name='chain_kernel', prof=False, opt=None):
    a = Asm()
    NX = (opt or {}).get('NX', 4)
    a('s_and_b32 s3, s2, 7')
    a('s_cmp_ge_u32 s3, %d' % NX)
    a('s_cbranch_scc1 L_chain_exit')
    a('s_cmp_ge_u32 s2, %d' % (1024 // NX))
    a('s_cbranch_scc1 L_chain_exit')
    for sreg, k in [(S_WS, 'ws'), (S_WQ, 'Wq'), (S_WK, 'Wk'), (S_WV, 'Wv'), (S_WO, 'Wo'), (S_M0, 'B_mem0'), (S_DBG, 'dbg')]:
        a('s_load_dwordx2 s[%d:%d], s[0:1], %d' % (sreg, sreg + 1, KA[k]))
    a('s_waitcnt lgkmcnt(0)')
    for sreg, n in [(S_WS, WS_BYTES), (S_WQ, 8 * MB), (S_WK, 8 * MB), (S_WV, 8 * MB), (S_WO, 8 * MB), (S_M0, 16384), (S_DBG, 256)]:
        a('s_mov_b32 s%d, 0x%x' % (sreg + 2, n)); a('s_mov_b32 s%d, 0x20000' % (sreg + 3))
    Chain(a, prof, opt=opt).emit()
    a.label('L_chain_exit')
    a('s_endpgm')
    return kernel_head(name) + a.finalize()

def write(path, prof, opt):
    txt = '; @launch grid=(256,1,1) block=(256,1,1) lds=%d\n.amdgcn_target "amdgcn-amd-amdhsa--gfx950"\n.text\n' % L_END
    txt += chain_kernel(prof=prof, opt=opt)
    txt += '.section .rodata,"a"\n.p2align 6\n' + kernel_desc('chain_kernel')
    open(path, 'w').write(txt)

if __name__ == '__main__':
    import sys, json
    for spec in sys.argv[1:]:
        name, _, o = spec.partition('=')
        opt = json.loads(o) if o else {}
        write(name + '.s', 'prof' in name, opt)
```

```python
import sys, json
from ag import *
from common import *
import gen_chain10 as gc
import gen_g1 as g1
import gen_ao as ao

NAME = 'concat_heads__ssm_conv_h3__memory_aug_recurrent_mem_tr__prompt'
LDS = 163840
WS_KVC = WS_CTR + 262144
sKVC = 85

sWave, sClaim = 100, 101
vClaim = 15
L_FLAG = 163840 - 16

def claim(a, st0, st1):
    a('s_lshr_b32 s%d, s2, 3' % st0)
    a('s_lshl_b32 s%d, 1, s%d' % (st0, st0))
    a('s_and_b32 s%d, s2, 7' % st1)
    a('s_lshl_b32 s%d, s%d, 2' % (st1, st1))
    a('v_mov_b32 v%d, s%d' % (vClaim, st0))
    a('s_mov_b64 exec, 1')
    a('buffer_atomic_or v%d, off, s[28:31], s%d offset:192 sc0 sc1' % (vClaim, st1))
    a('s_mov_b64 exec, -1')

def verify_role(a, st0, st1, vt):
    l0, l1, l2, ok = [a.newlabel('Lvr') for _ in range(4)]
    a('s_cmp_lg_u32 s%d, 0' % sClaim)
    a('s_cbranch_scc1 %s' % ok)
    a('v_mov_b32 v%d, %d' % (vt, L_FLAG))
    a('s_cmp_eq_u32 s%d, 0' % sWave)
    a('s_cbranch_scc0 %s' % l2)
    a('s_mov_b32 s3, s2')
    a.label(l0)
    a('v_readfirstlane_b32 s%d, v%d' % (st1, vClaim))
    a('s_lshr_b32 s%d, s2, 3' % st0)
    a('s_bitcmp1_b32 s%d, s%d' % (st1, st0))
    a('s_cbranch_scc0 %s' % l1)
    a('s_cmp_eq_u32 s%d, -1' % st1)
    a('s_cselect_b32 s%d, 1, 8' % st0)
    a('s_add_u32 s2, s2, s%d' % st0)
    a('s_and_b32 s2, s2, 255')
    claim(a, st0, st1)
    a('s_waitcnt vmcnt(0)')
    a('s_branch %s' % l0)
    a.label(l1)
    a('v_mov_b32 v%d, s2' % (vt + 1))
    a('s_mov_b32 s2, s3')
    a('ds_write_b32 v%d, v%d' % (vt, vt + 1))
    a('s_waitcnt lgkmcnt(0)')
    a.label(l2)
    a('s_barrier')
    a('ds_read_b32 v%d, v%d' % (vt + 1, vt))
    a('s_mov_b32 s%d, 1' % sClaim)
    a('s_waitcnt lgkmcnt(0)')
    a('v_readfirstlane_b32 s%d, v%d' % (st0, vt + 1))
    a('s_cmp_eq_u32 s%d, s2' % st0)
    a('s_cbranch_scc1 %s' % ok)
    a('s_and_b32 s2, s%d, 255' % st0)
    a('s_waitcnt vmcnt(0)')
    a('s_barrier')
    a('s_branch L_restart')
    a.label(ok)

class Chain(gc.Chain):
    def get_wave(s): s.a('s_mov_b32 s%d, s%d' % (gc.sW, sWave))
    def verify(s):
        a = s.a
        verify_role(a, gc.sT0, gc.sT1, gc.vT)
        a('s_lshl_b32 s%d, s%d, 10' % (sKVC, gc.sG))
        a('s_add_u32 s%d, s%d, 0x%x' % (sKVC, sKVC, WS_KVC))
        a('s_or_b32 s%d, s%d, s%d' % (gc.sT2, gc.sJ, gc.sW))
        a('s_cselect_b32 s%d, 0x%x, s%d' % (gc.sT0, WS_DUMP, sKVC))
        a('v_mov_b32 v%d, 0' % (gc.vT + 1))
        a('buffer_store_dword v%d, v%d, s[4:7], s%d offen sc1' % (gc.vT + 1, gc.vL16, gc.sT0))
    def counted(s):
        a = s.a
        a('s_cmp_eq_u32 s%d, 0' % gc.sJ)
        a('s_cselect_b32 s%d, 0, 128' % gc.sT0)
        a('v_mov_b32 v%d, 1' % (gc.vT + 7))
        a('buffer_atomic_add v%d, off, s[28:31], s%d offset:128 sc1' % (gc.vT + 7, gc.sT0))
    def poll_ctr(s, soff):
        a = s.a
        l, ok = a.newlabel('Lkv'), a.newlabel('Lkv')
        a.label(l)
        a('buffer_load_dword v%d, off, s[4:7], s%d sc1' % (gc.vT, soff))
        a('s_waitcnt vmcnt(0)')
        a('v_readfirstlane_b32 s%d, v%d' % (gc.sT1, gc.vT))
        a('s_cmp_eq_u32 s%d, 8' % gc.sT1)
        a('s_cbranch_scc1 %s' % ok)
        a('s_sleep 4')
        s.tmo(l)
        a.label(ok)
    def kv_wait_init(s):
        a = s.a
        s.mark(3)
        l, ok = a.newlabel('Lkv'), a.newlabel('Lkv')
        a.label(l)
        a('buffer_load_dword v%d, off, s[28:31], 0 offset:128 sc1' % gc.vT)
        a('s_waitcnt vmcnt(0)')
        a('v_readfirstlane_b32 s%d, v%d' % (gc.sT1, gc.vT))
        a('s_cmp_eq_u32 s%d, 16' % gc.sT1)
        a('s_cbranch_scc1 %s' % ok)
        a('s_sleep 4')
        s.tmo(l)
        a.label(ok)
        s.poll_ctr(sKVC)
        s.mark(4)
    def kv_wait_loop(s):
        a = s.a
        sk = a.newlabel('Lkv')
        a('s_add_u32 s%d, s%d, 2' % (gc.sT0, gc.sStep))
        a('s_cmp_lt_u32 s%d, 16' % gc.sT0)
        a('s_cselect_b32 s%d, 3, 0x47' % gc.sT1)
        a('s_and_b32 s%d, s%d, s%d' % (gc.sT1, gc.sT1, gc.sT0))
        a('s_cbranch_scc1 %s' % sk)
        a('s_lshl_b32 s%d, s%d, 4' % (gc.sT1, gc.sT0))
        a('s_lshl_b32 s%d, s%d, 3' % (gc.sT0, gc.sT0))
        a('s_add_u32 s%d, s%d, 128' % (gc.sT0, gc.sT0))
        a('s_min_u32 s%d, s%d, s%d' % (gc.sT0, gc.sT0, gc.sT1))
        a('s_add_u32 s%d, s%d, s%d' % (gc.sT0, gc.sT0, sKVC))
        s.poll_ctr(gc.sT0)
        a.label(sk)

def mark(a, i, opt, v=30):
    if not opt.get('marks'): return
    a('s_memrealtime vcc')
    a('s_waitcnt lgkmcnt(0)')
    a('v_mov_b32 v%d, vcc_lo' % v)
    a('s_lshl_b32 vcc_lo, s2, 6')
    a('s_add_u32 vcc_lo, vcc_lo, 0x%x' % (WS_PROF + 8 * MB))
    a('buffer_store_dword v%d, off, s[4:7], vcc_lo offset:%d' % (v, 4 * i))
    if i < 6:
        a('s_memtime vcc')
        a('s_waitcnt lgkmcnt(0)')
        a('v_mov_b32 v%d, vcc_lo' % v)
        a('s_lshl_b32 vcc_lo, s2, 6')
        a('s_add_u32 vcc_lo, vcc_lo, 0x%x' % (WS_PROF + 9 * MB))
        a('buffer_store_dword v%d, off, s[4:7], vcc_lo offset:%d' % (v, 4 * i))

def build(opt):
    a = Asm()
    ptrs = [(4, 'ws', WS_BYTES), (8, 'Wq', 8 * MB), (12, 'Wk', 8 * MB), (16, 'Wv', 8 * MB), (20, 'Wo', 8 * MB), (24, 'B_mem0', 16384), (28, 'dbg', 256)]
    side = [(g1.S_X, 'B_x', 4 * MB), (g1.S_WC, 'Wk', 8 * MB), (ao.S_OUT, 'out', 8 * MB), (ao.S_AQ, 'A_q', 4 * MB), (ao.S_AK, 'A_k', 4 * MB), (ao.S_AV, 'A_v', 4 * MB), (ao.S_AH, 'A_ssmk', 4 * MB)]
    a('s_cmp_ge_u32 s2, 256')
    a('s_cbranch_scc1 L_exit')
    a('v_lshrrev_b32 v1, 6, v0')
    a('v_readfirstlane_b32 s%d, v1' % 100)
    a('v_and_b32 v0, 63, v0')
    a('s_mov_b32 s%d, 0' % 101)
    a('s_getreg_b32 s3, hwreg(HW_REG_XCC_ID)')
    a('s_and_b32 s3, s3, 7')
    a('s_and_b32 s2, s2, 248')
    a('s_or_b32 s2, s2, s3')
    a.label('L_restart')
    for r, k, n in ptrs + side: a('s_load_dwordx2 s[%d:%d], s[0:1], %d' % (r, r + 1, KA[k]))
    for r, k, n in ptrs + side:
        a('s_mov_b32 s%d, 0x%x' % (r + 2, n)); a('s_mov_b32 s%d, 0x20000' % (r + 3))
    a('s_waitcnt lgkmcnt(0)')
    lc = a.newlabel('Lcl')
    a('s_or_b32 s3, s%d, s%d' % (sWave, sClaim))
    a('s_cbranch_scc1 %s' % lc)
    claim(a, 40, 41)
    a.label(lc)
    mark(a, 0, opt)
    NX = opt.get('NX', 4)
    a('s_and_b32 s3, s2, 7')
    if NX == 4: a('s_cmp_ge_u32 s3, 4')
    else: a('s_cmp_ge_u32 s2, 128')
    a('s_cbranch_scc1 L_side')
    copt = dict(b3pos=24, latepos=40, npre=31, hdelay=2, warm=2, tot=False, NX=NX)
    copt.update(opt.get('chain', {}))
    ch = Chain(a, opt=copt)
    ch.mark = lambda i: mark(a, i, opt, 255)
    if opt.get('only'): a('s_endpgm')
    ch.emit()
    mark(a, 2, opt)
    if opt.get('cconv', True):
        cs = [x for x in side if x[0] >= 80]
        for r, k, n in cs: a('s_load_dwordx2 s[%d:%d], s[0:1], %d' % (r, r + 1, KA[k]))
        for r, k, n in cs:
            a('s_mov_b32 s%d, 0x%x' % (r + 2, n)); a('s_mov_b32 s%d, 0x20000' % (r + 3))
        a('s_mov_b32 s%d, s%d' % (g1.sW, sWave))
        a('s_and_b32 s%d, s2, 7' % ao.sTeam)
        a('s_lshr_b32 s%d, s2, 3' % ao.sMem)
        a('s_waitcnt lgkmcnt(0)')
        c2 = ao.Conv2(a); c2.mark = lambda i: mark(a, i + 2, opt)
        def wait_p1():
            l, ok = a.newlabel('Lwp'), a.newlabel('Lwp')
            a('s_mov_b32 s%d, 400000' % ao.sTmo)
            a.label(l)
            a('buffer_load_dword v20, off, s[28:31], s47 offset:72 sc1')
            a('s_waitcnt vmcnt(0)')
            a('v_readfirstlane_b32 s%d, v20' % g1.sT0)
            a('s_cmp_eq_u32 s%d, 32' % g1.sT0)
            a('s_cbranch_scc1 %s' % ok)
            a('s_sleep 16')
            a('s_sub_u32 s%d, s%d, 1' % (ao.sTmo, ao.sTmo))
            a('s_cbranch_scc0 %s' % l)
            a('s_endpgm')
            a.label(ok)
        a('s_lshr_b32 s47, s%d, 3' % ao.sMem)
        a('s_lshl_b32 s47, s47, 2')
        a('s_lshl_b32 s52, s%d, 5' % ao.sTeam)
        a('s_add_u32 s52, s52, s%d' % ao.sMem)
        c2.core(wait_p1, 0, 52)
        mark(a, 11, opt)
    a('s_endpgm')
    a.label('L_side')
    sW, sT0, sT1 = g1.sW, g1.sT0, g1.sT1
    sTeam, sMem, sTmo = ao.sTeam, ao.sMem, ao.sTmo
    if NX == 4:
        a('s_sub_u32 s%d, s3, 4' % sTeam)
        a('s_lshr_b32 s%d, s2, 3' % sMem)
    else:
        a('s_lshr_b32 s%d, s3, 1' % sTeam)
        a('s_bfe_u32 s%d, s2, 0x40003' % sMem)
        a('s_and_b32 s3, s3, 1')
        a('s_lshl_b32 s3, s3, 4')
        a('s_add_u32 s%d, s%d, s3' % (sMem, sMem))
    a('s_mov_b32 s%d, 400000' % sTmo)
    a('s_mov_b32 s%d, s%d' % (sW, sWave))
    def one_lane_add(val, soff, off, srd=28):
        l = a.newlabel('Lone')
        a('s_cmp_eq_u32 s%d, 0' % sW)
        a('s_cbranch_scc0 %s' % l)
        a('v_mov_b32 v20, %s' % val)
        a('s_mov_b64 exec, 1')
        a('buffer_atomic_add v20, off, s[%d:%d], %s offset:%d sc1' % (srd, srd + 3, soff, off))
        a('s_mov_b64 exec, -1')
        a.label(l)
    sCol = 62
    sGrp = 63
    a('s_lshr_b32 s%d, s%d, 1' % (sCol, sMem))
    a('s_lshl_b32 s%d, s%d, 4' % (sT0, sTeam))
    a('s_add_u32 s%d, s%d, s%d' % (sCol, sCol, sT0))
    a('s_bfe_u32 s%d, s%d, 0x40001' % (sGrp, sCol))
    a('s_lshl_b32 s%d, s%d, 10' % (sGrp, sGrp))
    a('s_add_u32 s%d, s%d, 0x%x' % (sGrp, sGrp, WS_KVC))
    def wait_dbg(off, target, w0only):
        l, ok = a.newlabel('Lwg'), a.newlabel('Lwg')
        if w0only:
            a('s_cmp_eq_u32 s%d, 0' % sW)
            a('s_cbranch_scc0 %s' % ok)
        a.label(l)
        a('buffer_load_dword v20, off, s[28:31], 0 offset:%d sc1' % off)
        a('s_waitcnt vmcnt(0)')
        a('v_readfirstlane_b32 s%d, v20' % sT0)
        a('s_cmp_eq_u32 s%d, %d' % (sT0, target))
        a('s_cbranch_scc1 %s' % ok)
        a('s_sleep 16')
        a('s_sub_u32 s%d, s%d, 1' % (sTmo, sTmo))
        a('s_cbranch_scc0 %s' % l)
        a('s_branch L_side_fail')
        a.label(ok)
    def first_extra():
        a('v_mov_b32 v28, 0')
        a('s_and_b32 s%d, s%d, 15' % (sT0, sMem))
        a('s_lshl_b32 s%d, s%d, 2' % (sT0, sT0))
        a('s_add_u32 s%d, s%d, s%d' % (sT0, sT0, sTeam))
        a('s_lshl_b32 s%d, s%d, 11' % (sT0, sT0))
        a('s_add_u32 s%d, s%d, 0x%x' % (sT0, sT0, WS_CTR))
        a('v_lshlrev_b32 v29, 5, v0')
        a('buffer_store_dword v28, v29, s[4:7], s%d offen sc1' % sT0)
        mark(a, 14, opt)
        return 1
    sJob = g1.sJob
    def cmark(i):
        if not opt.get('marks'): return
        l = a.newlabel('Lmk')
        a('s_cmp_eq_u32 s%d, 2' % sJob)
        a('s_cbranch_scc0 %s' % l)
        mark(a, i, opt)
        a.label(l)
    def sig0():
        ok = a.newlabel('Ls0')
        a('v_readfirstlane_b32 s%d, v21' % sT0)
        a('s_cmp_eq_u32 s%d, 16' % sT0)
        a('s_cbranch_scc1 %s' % ok)
        if not opt.get('only'): wait_dbg(128, 16, True)
        a.label(ok)
        a('s_cmp_le_u32 s%d, 3' % sJob)
        a('s_cselect_b32 s%d, 2, 1' % sT1)
        one_lane_add('s%d' % sT1, 's%d' % g1.sSigD, 0, 4)
        cmark(15)
    NA = 3
    ga = g1.G1(a, 4, 'a')
    ga.NS = opt.get('ns0', 3)
    ga.setup()
    a('s_mov_b32 s%d, 0' % sJob)
    def nj0():
        return ['s_lshl_b32 s56, s%d, 1' % sJob, 's_and_b32 s57, s%d, 1' % sMem, 's_add_u32 s56, s56, s57',
                's_add_u32 s57, s%d, 2' % sJob, ['s_cmp_lt_u32 s%d, 2' % sJob, 's_cselect_b32 s57, s56, s57'],
                's_lshl_b32 s%d, s57, 6' % g1.sSigN, 's_add_u32 s%d, s%d, s%d' % (g1.sSigN, g1.sSigN, sGrp)] + ga.job(56, sCol) + \
               [['s_cmp_ge_u32 s%d, %d' % (sJob, NA), 's_cselect_b32 s%d, 0x%x, s%d' % (g1.sNX, 8 * MB, g1.sNX), 's_cselect_b32 s%d, 0x%x, s%d' % (g1.sNW, 8 * MB, g1.sNW)], 's_add_u32 s%d, s%d, 1' % (sJob, sJob)]
    ga.after_wait = lambda: verify_role(a, sT0, sT1, 28)
    ga.run(nj0, lambda: a('s_cmp_le_u32 s%d, %d' % (sJob, NA)), sig0, first_extra, None, True, lambda: (cmark(13), a('buffer_load_dword v21, off, s[28:31], 0 offset:128 sc1')))
    mark(a, 1, opt)
    if opt.get('only'): a('s_endpgm')
    gc2 = g1.G2(a, 'c')
    gc2.setup()
    a('s_and_b32 s56, s%d, 3' % sMem)
    a('s_lshr_b32 s57, s%d, 2' % sMem)
    a('s_lshl_b32 s58, s%d, 6' % sTeam)
    a('s_lshl3_add_u32 s59, s57, s56')
    a('s_add_u32 s59, s59, s58')
    a('s_add_u32 s59, s59, 515')
    a('s_lshl3_add_u32 s60, s56, s57')
    a('s_lshr_b32 s61, s58, 1')
    a('s_add_u32 s60, s60, s61')
    a('s_add_u32 s60, s60, 768')
    a('s_and_b32 s61, s%d, 7' % sMem)
    a('s_lshl3_add_u32 s61, s61, s58')
    a('s_add_u32 s61, s61, 519')
    a('s_lshl_b32 s56, s60, 10')
    a('s_or_b32 s61, s61, s56')
    a('s_cmp_ge_u32 s%d, 24' % sMem)
    a('s_cselect_b32 s60, s61, s60')
    a('s_cselect_b32 s62, 0, 256')
    a('s_lshl_b32 s60, s60, 10')
    a('s_or_b32 s%d, s59, s60' % sJob)
    def nj2():
        return ['s_and_b32 s56, s%d, 7' % sJob, 's_bfe_u32 s57, s%d, 0x60003' % sJob, 's_bfe_u32 s63, s%d, 0x10009' % sJob,
                's_and_b32 s58, s57, 15', 's_lshl_b32 s58, s58, 10', 's_lshl_b32 s%d, s56, 6' % g1.sSigN, 's_add_u32 s%d, s%d, s58' % (g1.sSigN, g1.sSigN),
                's_add_u32 s%d, s%d, 0x%x' % (g1.sSigN, g1.sSigN, WS_KVC + 128),
                ['s_cmp_ge_u32 s57, 32', 's_cselect_b32 s%d, 0x%x, s%d' % (g1.sSigN, WS_DUMP, g1.sSigN)]] + gc2.job(56, 57) + \
               [['s_cmp_eq_u32 s63, 0', 's_cselect_b32 s%d, 0x%x, s%d' % (g1.sNX, 8 * MB, g1.sNX), 's_cselect_b32 s%d, 0x%x, s%d' % (g1.sNW, 8 * MB, g1.sNW)], 's_lshr_b32 s%d, s%d, 10' % (sJob, sJob)]
    def sig2():
        one_lane_add(4, 's%d' % g1.sSigD, 0, 4)
        one_lane_add(1, 's62', 64)
        a('s_mov_b32 s62, 256')
    gc2.run(nj2, lambda: a('s_cmp_eq_u32 s63, 1'), sig2)
    a('s_cmp_ge_u32 s%d, 24' % sMem)
    a('s_cselect_b32 s62, 4, 0')
    one_lane_add(1, 's62', 64)
    mark(a, 2, opt)
    A = ao.AO(a)
    if opt.get('wwarm', False):
        a('s_lshl_b32 s%d, s%d, 5' % (sT0, sTeam))
        a('s_add_u32 s%d, s%d, s%d' % (sT0, sT0, sMem))
        a('s_lshl_b32 s%d, s%d, 2' % (sT0, sT0))
        a('s_add_u32 s%d, s%d, s%d' % (sT0, sT0, sW))
        a('s_lshl_b32 s%d, s%d, 14' % (sT0, sT0))
        a('v_lshlrev_b32 v28, 8, v0')
        a('buffer_load_dword v26, v28, s[20:23], s%d offen' % sT0)
        a('buffer_load_dword v27, v28, s[20:23], s%d offen offset:128' % sT0)
    a('s_load_dwordx2 s[24:25], s[0:1], %d' % KA['A_shift'])
    a('s_mov_b32 s26, 8192')
    a('s_waitcnt lgkmcnt(0)')
    ao.Conv2(a).p1(24)
    mark(a, 6, opt)
    a('s_lshl_b32 s52, s%d, 5' % sTeam)
    a('s_add_u32 s52, s52, s%d' % sMem)
    a('s_lshr_b32 s%d, s%d, 3' % (sT0, sMem))
    a('s_and_b32 s%d, s%d, 7' % (sMem, sMem))
    a('s_lshl3_add_u32 s%d, s%d, s%d' % (sMem, sTeam, sMem))
    a('s_mov_b32 s%d, s%d' % (sTeam, sT0))
    A.ids()
    a('s_lshl_b32 s47, s%d, 2' % sTeam)
    def p1done():
        l = a.newlabel('Lone')
        a('s_cmp_eq_u32 s%d, 0' % sW)
        a('s_cbranch_scc0 %s' % l)
        a('v_mov_b32 v28, 1')
        a('s_mov_b64 exec, 1')
        a('buffer_atomic_add v28, off, s[28:31], s47 offset:72 sc1')
        a('s_mov_b64 exec, -1')
        a.label(l)
    A.load_wo(p1done)
    mark(a, 7, opt)
    ao.Conv2(a).core(wait_p1, 1, 52)
    mark(a, 3, opt)
    def wait_g1():
        wait_dbg(64, 128, True)
        mark(a, 4, opt)
    A.wait_late = lambda: wait_dbg(68, 32, False)
    def amark(i):
        if not opt.get('marks'): return
        l = a.newlabel('Lmk')
        a('s_cmp_eq_u32 s52, %d' % (opt.get('aopass', 15) + (1 if i == 9 else 0)))
        a('s_cbranch_scc0 %s' % l)
        mark(a, i, opt)
        a.label(l)
    A.mark = amark
    A.DENS = opt.get('dens', 3); A.RB = opt.get('rb', False)
    A.run(wait_g1)
    mark(a, 5, opt)
    a.label('L_side_fail')
    a.label('L_exit')
    a('s_endpgm')
    head = open('cdna_kernels/%s.s.ref' % NAME).read().split('; Override launch')[0]
    txt = head + '; @launch grid=(256,1,1) block=(256,1,1) lds=%d\n.amdgcn_target "amdgcn-amd-amdhsa--gfx950"\n.text\n' % LDS
    txt += kernel_head(NAME + '_kernel') + a.finalize()
    txt += '.section .rodata,"a"\n.p2align 6\n' + kernel_desc(NAME + '_kernel')
    return txt

if __name__ == '__main__':
    for spec in sys.argv[1:]:
        name, _, o = spec.partition('=')
        open(name, 'w').write(build(json.loads(o) if o else {}))
```

```python
import sys, json
from ag import *
from common import *
import gen_chain10 as gc
import gen_g1 as g1
import gen_ao as ao

NAME = 'concat_heads__ssm_conv_h3__memory_aug_recurrent_mem_tr__prompt'
LDS = 163840
WS_KVC = WS_CTR + 262144
sKVC = 85

sWave, sClaim = 100, 101
vClaim = 15
L_FLAG = 163840 - 16

def claim(a, st0, st1):
    a('s_lshr_b32 s%d, s2, 3' % st0)
    a('s_lshl_b32 s%d, 1, s%d' % (st0, st0))
    a('s_and_b32 s%d, s2, 7' % st1)
    a('s_lshl_b32 s%d, s%d, 2' % (st1, st1))
    a('v_mov_b32 v%d, s%d' % (vClaim, st0))
    a('s_mov_b64 exec, 1')
    a('buffer_atomic_or v%d, off, s[28:31], s%d offset:192 sc0 sc1' % (vClaim, st1))
    a('s_mov_b64 exec, -1')

def verify_role(a, st0, st1, vt):
    l0, l1, l2, ok = [a.newlabel('Lvr') for _ in range(4)]
    a('s_cmp_lg_u32 s%d, 0' % sClaim)
    a('s_cbranch_scc1 %s' % ok)
    a('v_mov_b32 v%d, %d' % (vt, L_FLAG))
    a('s_cmp_eq_u32 s%d, 0' % sWave)
    a('s_cbranch_scc0 %s' % l2)
    a('s_mov_b32 s3, s2')
    a('s_mov_b32 vcc_hi, 600')
    a.label(l0)
    a('v_readfirstlane_b32 s%d, v%d' % (st1, vClaim))
    a('s_lshr_b32 s%d, s2, 3' % st0)
    a('s_bitcmp1_b32 s%d, s%d' % (st1, st0))
    a('s_cbranch_scc0 %s' % l1)
    a('s_cmp_eq_u32 s%d, -1' % st1)
    a('s_cselect_b32 s%d, 1, 8' % st0)
    a('s_add_u32 s2, s2, s%d' % st0)
    a('s_and_b32 s2, s2, 255')
    claim(a, st0, st1)
    a('s_waitcnt vmcnt(0)')
    a('s_sub_u32 vcc_hi, vcc_hi, 1')
    a('s_cbranch_scc0 %s' % l0)
    a('s_mov_b32 s2, 256')
    a.label(l1)
    a('v_mov_b32 v%d, s2' % (vt + 1))
    a('s_mov_b32 s2, s3')
    a('ds_write_b32 v%d, v%d' % (vt, vt + 1))
    a('s_waitcnt lgkmcnt(0)')
    a.label(l2)
    a('s_barrier')
    a('ds_read_b32 v%d, v%d' % (vt + 1, vt))
    a('s_mov_b32 s%d, 1' % sClaim)
    a('s_waitcnt lgkmcnt(0)')
    a('v_readfirstlane_b32 s%d, v%d' % (st0, vt + 1))
    a('s_cmp_eq_u32 s%d, s2' % st0)
    a('s_cbranch_scc1 %s' % ok)
    a('s_cmp_ge_u32 s%d, 256' % st0)
    a('s_cbranch_scc1 L_exit')
    a('s_and_b32 s2, s%d, 255' % st0)
    a('s_waitcnt vmcnt(0)')
    a('s_barrier')
    a('s_branch L_restart')
    a.label(ok)

class Chain(gc.Chain):
    def get_wave(s): s.a('s_mov_b32 s%d, s%d' % (gc.sW, sWave))
    def verify(s):
        a = s.a
        verify_role(a, gc.sT0, gc.sT1, gc.vT)
        a('s_lshl_b32 s%d, s%d, 10' % (sKVC, gc.sG))
        a('s_add_u32 s%d, s%d, 0x%x' % (sKVC, sKVC, WS_KVC))
        a('s_or_b32 s%d, s%d, s%d' % (gc.sT2, gc.sJ, gc.sW))
        a('s_cselect_b32 s%d, 0x%x, s%d' % (gc.sT0, WS_DUMP, sKVC))
        a('v_mov_b32 v%d, 0' % (gc.vT + 1))
        a('buffer_store_dword v%d, v%d, s[4:7], s%d offen sc1' % (gc.vT + 1, gc.vL16, gc.sT0))
    def counted(s):
        a = s.a
        a('s_cmp_eq_u32 s%d, 0' % gc.sJ)
        a('s_cselect_b32 s%d, 0, 128' % gc.sT0)
        a('v_mov_b32 v%d, 1' % (gc.vT + 7))
        a('buffer_atomic_add v%d, off, s[28:31], s%d offset:128 sc1' % (gc.vT + 7, gc.sT0))
    def poll_ctr(s, soff):
        a = s.a
        l, ok = a.newlabel('Lkv'), a.newlabel('Lkv')
        a.label(l)
        a('buffer_load_dword v%d, off, s[4:7], s%d sc1' % (gc.vT, soff))
        a('s_waitcnt vmcnt(0)')
        a('v_readfirstlane_b32 s%d, v%d' % (gc.sT1, gc.vT))
        a('s_cmp_eq_u32 s%d, 8' % gc.sT1)
        a('s_cbranch_scc1 %s' % ok)
        a('s_sleep 4')
        s.tmo(l)
        a.label(ok)
    def kv_wait_init(s):
        a = s.a
        s.mark(3)
        l, ok = a.newlabel('Lkv'), a.newlabel('Lkv')
        a.label(l)
        a('buffer_load_dword v%d, off, s[28:31], 0 offset:128 sc1' % gc.vT)
        a('s_waitcnt vmcnt(0)')
        a('v_readfirstlane_b32 s%d, v%d' % (gc.sT1, gc.vT))
        a('s_cmp_eq_u32 s%d, 16' % gc.sT1)
        a('s_cbranch_scc1 %s' % ok)
        a('s_sleep 4')
        s.tmo(l)
        a.label(ok)
        s.poll_ctr(sKVC)
        s.mark(4)
    def kv_wait_loop(s):
        a = s.a
        sk = a.newlabel('Lkv')
        a('s_add_u32 s%d, s%d, 2' % (gc.sT0, gc.sStep))
        a('s_cmp_lt_u32 s%d, 16' % gc.sT0)
        a('s_cselect_b32 s%d, 3, 0x47' % gc.sT1)
        a('s_and_b32 s%d, s%d, s%d' % (gc.sT1, gc.sT1, gc.sT0))
        a('s_cbranch_scc1 %s' % sk)
        a('s_lshl_b32 s%d, s%d, 4' % (gc.sT1, gc.sT0))
        a('s_lshl_b32 s%d, s%d, 3' % (gc.sT0, gc.sT0))
        a('s_add_u32 s%d, s%d, 128' % (gc.sT0, gc.sT0))
        a('s_min_u32 s%d, s%d, s%d' % (gc.sT0, gc.sT0, gc.sT1))
        a('s_add_u32 s%d, s%d, s%d' % (gc.sT0, gc.sT0, sKVC))
        s.poll_ctr(gc.sT0)
        a.label(sk)

def mark(a, i, opt, v=30):
    if not opt.get('marks'): return
    a('s_memrealtime vcc')
    a('s_waitcnt lgkmcnt(0)')
    a('v_mov_b32 v%d, vcc_lo' % v)
    a('s_lshl_b32 vcc_lo, s2, 6')
    a('s_add_u32 vcc_lo, vcc_lo, 0x%x' % (WS_PROF + 8 * MB))
    a('buffer_store_dword v%d, off, s[4:7], vcc_lo offset:%d' % (v, 4 * i))
    if i < 6:
        a('s_memtime vcc')
        a('s_waitcnt lgkmcnt(0)')
        a('v_mov_b32 v%d, vcc_lo' % v)
        a('s_lshl_b32 vcc_lo, s2, 6')
        a('s_add_u32 vcc_lo, vcc_lo, 0x%x' % (WS_PROF + 9 * MB))
        a('buffer_store_dword v%d, off, s[4:7], vcc_lo offset:%d' % (v, 4 * i))

def build(opt):
    a = Asm()
    ptrs = [(4, 'ws', WS_BYTES), (8, 'Wq', 8 * MB), (12, 'Wk', 8 * MB), (16, 'Wv', 8 * MB), (20, 'Wo', 8 * MB), (24, 'B_mem0', 16384), (28, 'dbg', 256)]
    side = [(g1.S_X, 'B_x', 4 * MB), (g1.S_WC, 'Wk', 8 * MB), (ao.S_OUT, 'out', 8 * MB), (ao.S_AQ, 'A_q', 4 * MB), (ao.S_AK, 'A_k', 4 * MB), (ao.S_AV, 'A_v', 4 * MB), (ao.S_AH, 'A_ssmk', 4 * MB)]
    a('s_cmp_ge_u32 s2, 256')
    a('s_cbranch_scc1 L_exit')
    a('v_lshrrev_b32 v1, 6, v0')
    a('v_readfirstlane_b32 s%d, v1' % 100)
    a('v_and_b32 v0, 63, v0')
    a('s_mov_b32 s%d, 0' % 101)
    a('s_getreg_b32 s3, hwreg(HW_REG_XCC_ID)')
    a('s_and_b32 s3, s3, 7')
    a('s_and_b32 s2, s2, 248')
    a('s_or_b32 s2, s2, s3')
    a.label('L_restart')
    for r, k, n in ptrs + side: a('s_load_dwordx2 s[%d:%d], s[0:1], %d' % (r, r + 1, KA[k]))
    for r, k, n in ptrs + side:
        a('s_mov_b32 s%d, 0x%x' % (r + 2, n)); a('s_mov_b32 s%d, 0x20000' % (r + 3))
    a('s_waitcnt lgkmcnt(0)')
    lc = a.newlabel('Lcl')
    a('s_or_b32 s3, s%d, s%d' % (sWave, sClaim))
    a('s_cbranch_scc1 %s' % lc)
    claim(a, 40, 41)
    a.label(lc)
    mark(a, 0, opt)
    NX = opt.get('NX', 4)
    a('s_and_b32 s3, s2, 7')
    if NX == 4: a('s_cmp_ge_u32 s3, 4')
    else: a('s_cmp_ge_u32 s2, 128')
    a('s_cbranch_scc1 L_side')
    copt = dict(b3pos=24, latepos=40, npre=31, hdelay=2, warm=2, tot=False, NX=NX)
    copt.update(opt.get('chain', {}))
    ch = Chain(a, opt=copt)
    ch.mark = lambda i: mark(a, i, opt, 255)
    if opt.get('only'): a('s_endpgm')
    ch.emit()
    mark(a, 2, opt)
    if opt.get('cconv', True):
        cs = [x for x in side if x[0] >= 80]
        for r, k, n in cs: a('s_load_dwordx2 s[%d:%d], s[0:1], %d' % (r, r + 1, KA[k]))
        for r, k, n in cs:
            a('s_mov_b32 s%d, 0x%x' % (r + 2, n)); a('s_mov_b32 s%d, 0x20000' % (r + 3))
        a('s_mov_b32 s%d, s%d' % (g1.sW, sWave))
        a('s_and_b32 s%d, s2, 7' % ao.sTeam)
        a('s_lshr_b32 s%d, s2, 3' % ao.sMem)
        a('s_waitcnt lgkmcnt(0)')
        c2 = ao.Conv2(a); c2.mark = lambda i: mark(a, i + 2, opt)
        def wait_p1():
            l, ok = a.newlabel('Lwp'), a.newlabel('Lwp')
            a('s_mov_b32 s%d, 400000' % ao.sTmo)
            a.label(l)
            a('buffer_load_dword v20, off, s[28:31], s47 offset:72 sc1')
            a('s_waitcnt vmcnt(0)')
            a('v_readfirstlane_b32 s%d, v20' % g1.sT0)
            a('s_cmp_eq_u32 s%d, 32' % g1.sT0)
            a('s_cbranch_scc1 %s' % ok)
            a('s_sleep 16')
            a('s_sub_u32 s%d, s%d, 1' % (ao.sTmo, ao.sTmo))
            a('s_cbranch_scc0 %s' % l)
            a('s_endpgm')
            a.label(ok)
        a('s_lshr_b32 s47, s%d, 3' % ao.sMem)
        a('s_lshl_b32 s47, s47, 2')
        a('s_lshl_b32 s52, s%d, 5' % ao.sTeam)
        a('s_add_u32 s52, s52, s%d' % ao.sMem)
        c2.core(wait_p1, 0, 52)
        mark(a, 11, opt)
    a('s_endpgm')
    a.label('L_side')
    sW, sT0, sT1 = g1.sW, g1.sT0, g1.sT1
    sTeam, sMem, sTmo = ao.sTeam, ao.sMem, ao.sTmo
    if NX == 4:
        a('s_sub_u32 s%d, s3, 4' % sTeam)
        a('s_lshr_b32 s%d, s2, 3' % sMem)
    else:
        a('s_lshr_b32 s%d, s3, 1' % sTeam)
        a('s_bfe_u32 s%d, s2, 0x40003' % sMem)
        a('s_and_b32 s3, s3, 1')
        a('s_lshl_b32 s3, s3, 4')
        a('s_add_u32 s%d, s%d, s3' % (sMem, sMem))
    a('s_mov_b32 s%d, 400000' % sTmo)
    a('s_mov_b32 s%d, s%d' % (sW, sWave))
    def one_lane_add(val, soff, off, srd=28):
        l = a.newlabel('Lone')
        a('s_cmp_eq_u32 s%d, 0' % sW)
        a('s_cbranch_scc0 %s' % l)
        a('v_mov_b32 v20, %s' % val)
        a('s_mov_b64 exec, 1')
        a('buffer_atomic_add v20, off, s[%d:%d], %s offset:%d sc1' % (srd, srd + 3, soff, off))
        a('s_mov_b64 exec, -1')
        a.label(l)
    sCol = 62
    sGrp = 63
    a('s_lshr_b32 s%d, s%d, 1' % (sCol, sMem))
    a('s_lshl_b32 s%d, s%d, 4' % (sT0, sTeam))
    a('s_add_u32 s%d, s%d, s%d' % (sCol, sCol, sT0))
    a('s_bfe_u32 s%d, s%d, 0x40001' % (sGrp, sCol))
    a('s_lshl_b32 s%d, s%d, 10' % (sGrp, sGrp))
    a('s_add_u32 s%d, s%d, 0x%x' % (sGrp, sGrp, WS_KVC))
    def wait_dbg(off, target, w0only):
        l, ok = a.newlabel('Lwg'), a.newlabel('Lwg')
        if w0only:
            a('s_cmp_eq_u32 s%d, 0' % sW)
            a('s_cbranch_scc0 %s' % ok)
        a.label(l)
        a('buffer_load_dword v20, off, s[28:31], 0 offset:%d sc1' % off)
        a('s_waitcnt vmcnt(0)')
        a('v_readfirstlane_b32 s%d, v20' % sT0)
        a('s_cmp_eq_u32 s%d, %d' % (sT0, target))
        a('s_cbranch_scc1 %s' % ok)
        a('s_sleep 16')
        a('s_sub_u32 s%d, s%d, 1' % (sTmo, sTmo))
        a('s_cbranch_scc0 %s' % l)
        a('s_branch L_side_fail')
        a.label(ok)
    def first_extra():
        a('v_mov_b32 v28, 0')
        a('s_and_b32 s%d, s%d, 15' % (sT0, sMem))
        a('s_lshl_b32 s%d, s%d, 2' % (sT0, sT0))
        a('s_add_u32 s%d, s%d, s%d' % (sT0, sT0, sTeam))
        a('s_lshl_b32 s%d, s%d, 11' % (sT0, sT0))
        a('s_add_u32 s%d, s%d, 0x%x' % (sT0, sT0, WS_CTR))
        a('v_lshlrev_b32 v29, 5, v0')
        a('buffer_store_dword v28, v29, s[4:7], s%d offen sc1' % sT0)
        mark(a, 14, opt)
        return 1
    sJob = g1.sJob
    def cmark(i):
        if not opt.get('marks'): return
        l = a.newlabel('Lmk')
        a('s_cmp_eq_u32 s%d, 2' % sJob)
        a('s_cbranch_scc0 %s' % l)
        mark(a, i, opt)
        a.label(l)
    def sig0():
        ok = a.newlabel('Ls0')
        a('v_readfirstlane_b32 s%d, v21' % sT0)
        a('s_cmp_eq_u32 s%d, 16' % sT0)
        a('s_cbranch_scc1 %s' % ok)
        if not opt.get('only'): wait_dbg(128, 16, True)
        a.label(ok)
        a('s_cmp_le_u32 s%d, 3' % sJob)
        a('s_cselect_b32 s%d, 2, 1' % sT1)
        one_lane_add('s%d' % sT1, 's%d' % g1.sSigD, 0, 4)
        cmark(15)
    NA = 3
    ga = g1.G1(a, 4, 'a')
    ga.NS = opt.get('ns0', 3)
    ga.setup()
    a('s_mov_b32 s%d, 0' % sJob)
    def nj0():
        return ['s_lshl_b32 s56, s%d, 1' % sJob, 's_and_b32 s57, s%d, 1' % sMem, 's_add_u32 s56, s56, s57',
                's_add_u32 s57, s%d, 2' % sJob, ['s_cmp_lt_u32 s%d, 2' % sJob, 's_cselect_b32 s57, s56, s57'],
                's_lshl_b32 s%d, s57, 6' % g1.sSigN, 's_add_u32 s%d, s%d, s%d' % (g1.sSigN, g1.sSigN, sGrp)] + ga.job(56, sCol) + \
               [['s_cmp_ge_u32 s%d, %d' % (sJob, NA), 's_cselect_b32 s%d, 0x%x, s%d' % (g1.sNX, 8 * MB, g1.sNX), 's_cselect_b32 s%d, 0x%x, s%d' % (g1.sNW, 8 * MB, g1.sNW)], 's_add_u32 s%d, s%d, 1' % (sJob, sJob)]
    ga.after_wait = lambda: verify_role(a, sT0, sT1, 28)
    ga.run(nj0, lambda: a('s_cmp_le_u32 s%d, %d' % (sJob, NA)), sig0, first_extra, None, True, lambda: (cmark(13), a('buffer_load_dword v21, off, s[28:31], 0 offset:128 sc1')))
    mark(a, 1, opt)
    if opt.get('only'): a('s_endpgm')
    gc2 = g1.G2(a, 'c')
    gc2.setup()
    a('s_and_b32 s56, s%d, 3' % sMem)
    a('s_lshr_b32 s57, s%d, 2' % sMem)
    a('s_lshl_b32 s58, s%d, 6' % sTeam)
    a('s_lshl3_add_u32 s59, s57, s56')
    a('s_add_u32 s59, s59, s58')
    a('s_add_u32 s59, s59, 515')
    a('s_lshl3_add_u32 s60, s56, s57')
    a('s_lshr_b32 s61, s58, 1')
    a('s_add_u32 s60, s60, s61')
    a('s_add_u32 s60, s60, 768')
    a('s_and_b32 s61, s%d, 7' % sMem)
    a('s_lshl3_add_u32 s61, s61, s58')
    a('s_add_u32 s61, s61, 519')
    a('s_lshl_b32 s56, s60, 10')
    a('s_or_b32 s61, s61, s56')
    a('s_cmp_ge_u32 s%d, 24' % sMem)
    a('s_cselect_b32 s60, s61, s60')
    a('s_cselect_b32 s62, 0, 256')
    a('s_lshl_b32 s60, s60, 10')
    a('s_or_b32 s%d, s59, s60' % sJob)
    def nj2():
        return ['s_and_b32 s56, s%d, 7' % sJob, 's_bfe_u32 s57, s%d, 0x60003' % sJob, 's_bfe_u32 s63, s%d, 0x10009' % sJob,
                's_and_b32 s58, s57, 15', 's_lshl_b32 s58, s58, 10', 's_lshl_b32 s%d, s56, 6' % g1.sSigN, 's_add_u32 s%d, s%d, s58' % (g1.sSigN, g1.sSigN),
                's_add_u32 s%d, s%d, 0x%x' % (g1.sSigN, g1.sSigN, WS_KVC + 128),
                ['s_cmp_ge_u32 s57, 32', 's_cselect_b32 s%d, 0x%x, s%d' % (g1.sSigN, WS_DUMP, g1.sSigN)]] + gc2.job(56, 57) + \
               [['s_cmp_eq_u32 s63, 0', 's_cselect_b32 s%d, 0x%x, s%d' % (g1.sNX, 8 * MB, g1.sNX), 's_cselect_b32 s%d, 0x%x, s%d' % (g1.sNW, 8 * MB, g1.sNW)], 's_lshr_b32 s%d, s%d, 10' % (sJob, sJob)]
    def sig2():
        one_lane_add(4, 's%d' % g1.sSigD, 0, 4)
        one_lane_add(1, 's62', 64)
        a('s_mov_b32 s62, 256')
    gc2.run(nj2, lambda: a('s_cmp_eq_u32 s63, 1'), sig2)
    a('s_cmp_ge_u32 s%d, 24' % sMem)
    a('s_cselect_b32 s62, 4, 0')
    one_lane_add(1, 's62', 64)
    mark(a, 2, opt)
    A = ao.AO(a)
    if opt.get('wwarm', False):
        a('s_lshl_b32 s%d, s%d, 5' % (sT0, sTeam))
        a('s_add_u32 s%d, s%d, s%d' % (sT0, sT0, sMem))
        a('s_lshl_b32 s%d, s%d, 2' % (sT0, sT0))
        a('s_add_u32 s%d, s%d, s%d' % (sT0, sT0, sW))
        a('s_lshl_b32 s%d, s%d, 14' % (sT0, sT0))
        a('v_lshlrev_b32 v28, 8, v0')
        a('buffer_load_dword v26, v28, s[20:23], s%d offen' % sT0)
        a('buffer_load_dword v27, v28, s[20:23], s%d offen offset:128' % sT0)
    a('s_load_dwordx2 s[24:25], s[0:1], %d' % KA['A_shift'])
    a('s_mov_b32 s26, 8192')
    a('s_waitcnt lgkmcnt(0)')
    ao.Conv2(a).p1(24)
    mark(a, 6, opt)
    a('s_lshl_b32 s52, s%d, 5' % sTeam)
    a('s_add_u32 s52, s52, s%d' % sMem)
    a('s_lshr_b32 s%d, s%d, 3' % (sT0, sMem))
    a('s_and_b32 s%d, s%d, 7' % (sMem, sMem))
    a('s_lshl3_add_u32 s%d, s%d, s%d' % (sMem, sTeam, sMem))
    a('s_mov_b32 s%d, s%d' % (sTeam, sT0))
    A.ids()
    a('s_lshl_b32 s47, s%d, 2' % sTeam)
    def p1done():
        l = a.newlabel('Lone')
        a('s_cmp_eq_u32 s%d, 0' % sW)
        a('s_cbranch_scc0 %s' % l)
        a('v_mov_b32 v28, 1')
        a('s_mov_b64 exec, 1')
        a('buffer_atomic_add v28, off, s[28:31], s47 offset:72 sc1')
        a('s_mov_b64 exec, -1')
        a.label(l)
    A.load_wo(p1done)
    mark(a, 7, opt)
    ao.Conv2(a).core(wait_p1, 1, 52)
    mark(a, 3, opt)
    def wait_g1():
        wait_dbg(64, 128, True)
        mark(a, 4, opt)
    A.wait_late = lambda: wait_dbg(68, 32, False)
    def amark(i):
        if not opt.get('marks'): return
        l = a.newlabel('Lmk')
        a('s_cmp_eq_u32 s52, %d' % (opt.get('aopass', 15) + (1 if i == 9 else 0)))
        a('s_cbranch_scc0 %s' % l)
        mark(a, i, opt)
        a.label(l)
    A.mark = amark
    A.DENS = opt.get('dens', 3); A.RB = opt.get('rb', False)
    A.run(wait_g1)
    mark(a, 5, opt)
    a.label('L_side_fail')
    a.label('L_exit')
    a('s_endpgm')
    head = open('cdna_kernels/%s.s.ref' % NAME).read().split('; Override launch')[0]
    txt = head + '; @launch grid=(256,1,1) block=(256,1,1) lds=%d\n.amdgcn_target "amdgcn-amd-amdhsa--gfx950"\n.text\n' % LDS
    txt += kernel_head(NAME + '_kernel') + a.finalize()
    txt += '.section .rodata,"a"\n.p2align 6\n' + kernel_desc(NAME + '_kernel')
    return txt

if __name__ == '__main__':
    for spec in sys.argv[1:]:
        name, _, o = spec.partition('=')
        open(name, 'w').write(build(json.loads(o) if o else {}))
```

```python
import math, struct
from ag import *
from common import *
from gen_g1 import S_WS, S_WO, S_DBG, sW, sT0, sT1, sT2, sT3
def f2u(x): return struct.unpack('<I', struct.pack('<f', x))[0]

S_OUT = 80; S_AQ = 84; S_AK = 88; S_AV = 92; S_AH = 96
sTeam, sMem = 53, 54
sTmo = 55

def bits(a, dst, terms, init=None, tmp=31):
    first = init is None
    if not first: a('v_mov_b32 v%d, %s' % (dst, init))
    for (src, n, sh) in terms:
        a('v_bfe_u32 v%d, v0, %d, %d' % (tmp, src, n))
        if first: a('v_lshlrev_b32 v%d, %d, v%d' % (dst, sh, tmp)); first = False
        else: a('v_lshl_add_u32 v%d, v%d, %d, v%d' % (dst, tmp, sh, dst))

class AO:
    def mark(s, i): pass
    sA, sPf, sBuf, sScale, sKm, sOst, sOld, sI, sO = 45, 46, 47, 48, 49, 50, 51, 52, 56
    sF = 57
    sMask = 58
    sHi = 74
    sCO, sCP, sKq, sCb = 76, 77, 78, 79
    sS, sPst, sPld, sDo = 32, 33, 34, 35
    sDn, sPo, sFo, bKm = 36, 37, 38, 39
    bOst, bOld, bCO, bCP = 84, 85, 86, 87
    sSch, sNit = 88, 92
    @staticmethod
    def sched(N): return [sum(1 << i for i in L) for L in (list(range(N - 1)), list(range(1, N)), list(range(3, N + 2)), list(range(2, N + 1)))]
    vL16, vQr, vKr, vVr, vMr, vIdx, vNeg, vOr, vOst, vKmw = range(1, 11)
    vT = 12
    vP = 24
    vQ = 32; vK = 48; vKm = 80; vS = 88; vA = 100; vD = 124
    vF = 140
    vB = 156
    L_KM = 24576
    L_O = 32768
    BUF1 = 98304
    DENS = 3
    RB = True
    def __init__(s, a): s.a = a
    def prefetch_list(s):
        o = [['s_lshl_b32 s%d, s%d, 18' % (sT0, s.sPf), 's_lshl_b32 s%d, s%d, 12' % (sT1, sMem), 's_add_u32 s%d, s%d, s%d' % (sT0, sT0, sT1),
              's_lshl_b32 s%d, s%d, 10' % (sT1, sW), 's_add_u32 s%d, s%d, s%d' % (sT0, sT0, sT1), 's_add_u32 s%d, s%d, s%d' % (sT1, sT1, s.sBuf)]]
        for mi, base in enumerate((WS_QF, WS_KF, WS_VF)):
            for tau in range(2):
                o.append(['s_add_u32 m0, s%d, %d' % (sT1, mi * 8192 + tau * 4096), 's_add_u32 s%d, s%d, 0x%x' % (sT2, sT0, base + tau * 131072),
                          'buffer_load_dwordx4 v%d, s[%d:%d], s%d offen sc1 lds' % (s.vL16, S_WS, S_WS + 3, sT2)])
        return o
    def odma_list(s):
        o = []
        for i in range(16):
            g = []
            if i % 4 == 0:
                g += ['s_add_u32 m0, s%d, %d' % (sT3, i * 1024), 's_add_u32 s%d, s%d, %d' % (sT2, s.sOld, i * 1024)]
            g.append('buffer_load_dwordx4 v%d, s[%d:%d], s%d offen offset:%d sc1 lds' % (s.vL16, S_WS, S_WS + 3, sT2, (i % 4) * 1024))
            o.append(g)
        o[0] = ['s_and_b32 s%d, s%d, 1' % (sT3, sW), 's_lshl_b32 s%d, s%d, 15' % (sT3, sT3), 's_lshr_b32 s%d, s%d, 1' % (sT2, sW), 's_lshl_b32 s%d, s%d, 14' % (sT2, sT2),
                's_add_u32 s%d, s%d, s%d' % (sT3, sT3, sT2), 's_add_u32 s%d, s%d, %d' % (sT3, sT3, s.L_O)] + o[0]
        return o
    def flat(s, L):
        for g in L:
            for x in g: s.a(x)
    def ids(s):
        s.a('s_lshr_b32 s%d, s%d, 3' % (s.sKq, sMem))
        s.a('s_and_b32 s%d, s%d, 7' % (s.sCb, sMem))
    def load_wo(s, mid, done, late):
        a = s.a; vT = 8
        a('s_and_b32 s%d, s%d, 1' % (sT0, sW))
        a('s_lshl_b32 s%d, s%d, 2' % (sT0, sT0))
        bits(a, vT + 2, [(4, 2, 0)], 's%d' % sT0)
        a('v_lshlrev_b32 v%d, 1, v%d' % (vT + 3, vT + 2))
        a('v_xor_b32 v%d, v0, v%d' % (vT + 3, vT + 3))
        a('v_and_b32 v%d, 15, v%d' % (vT + 3, vT + 3))
        a('v_lshlrev_b32 v%d, 4, v%d' % (vT + 3, vT + 3))
        a('v_lshl_add_u32 v%d, v%d, 11, v%d' % (vT, vT + 2, vT + 3))
        a('s_lshl_b32 s%d, s%d, 10' % (sT3, sW))
        a('s_lshl_b32 s%d, s%d, 21' % (sT0, s.sKq))
        a('s_lshl_b32 s%d, s%d, 8' % (sT1, s.sCb))
        a('s_add_u32 s%d, s%d, s%d' % (sT0, sT0, sT1))
        a('s_lshr_b32 s%d, s%d, 1' % (sT1, sW))
        a('s_lshl_b32 s%d, s%d, 14' % (sT1, sT1))
        a('s_add_u32 s%d, s%d, s%d' % (sT0, sT0, sT1))
        bits(a, vT + 2, [(2, 3, 0)])
        a('s_lshl_b32 s%d, s%d, 1' % (sT1, sW))
        a('v_xor_b32 v%d, s%d, v%d' % (vT + 2, sT1, vT + 2))
        bits(a, vT + 3, [(2, 4, 8), (0, 2, 3)])
        for nt in range(2):
            a('v_xor_b32 v%d, %d, v%d' % (vT + 4, nt, vT + 2))
            a('v_lshl_add_u32 v%d, v%d, 5, v%d' % (vT + 5 + nt, vT + 4, vT + 3))
            a('v_add_u32 v%d, 0x10000, v%d' % (vT + 7 + nt, vT + 5 + nt))
        def dma(q):
            for i in range(16):
                a('s_add_u32 m0, s%d, %d' % (sT3, (q % 2) * 65536 + i * 4096))
                a('buffer_load_dwordx4 v%d, s[%d:%d], s%d offen lds' % (vT, S_WO, S_WO + 3, sT0))
                a('s_add_u32 s%d, s%d, 0x8000' % (sT0, sT0))
        a('s_barrier')
        dma(0); dma(1)
        mid()
        waits = [24, 16, 32, 16]
        for q in range(4):
            a('s_waitcnt vmcnt(%d)' % waits[q])
            a('s_barrier')
            if q == 1: done()
            for k in range(8):
                for nt in range(2):
                    for v2 in range(2):
                        a('ds_read_b64_tr_b16 %s, v%d offset:%d' % (ar(((q * 8 + k) * 2 + nt) * 4 + 2 * v2, 2), vT + 5 + 2 * (q % 2) + nt, (32 * k + 16 * v2) * 256))
                a('s_waitcnt lgkmcnt(8)')
            a('s_waitcnt lgkmcnt(0)')
            if q < 2:
                a('s_barrier')
                dma(q + 2)
            if q == 1: late()
    def setup(s):
        a = s.a; vT = s.vT
        a('v_lshlrev_b32 v%d, 4, v0' % s.vL16)
        a('v_add_u32 v%d, %d, v%d' % (s.vOr, s.L_O, s.vL16))
        a('v_lshlrev_b32 v11, 7, v0')
        a('s_and_b32 s%d, s%d, 1' % (sT0, sW))
        a('s_lshr_b32 s%d, s%d, 1' % (sT1, sW))
        a('s_lshl_b32 s%d, s%d, 12' % (sT2, sT0))
        a('v_add_u32 v%d, s%d, v%d' % (s.vQr, sT2, s.vL16))
        a('v_add_u32 v%d, 8192, v%d' % (s.vKr, s.vL16))
        a('s_lshl_b32 s%d, s%d, 11' % (sT2, sT1))
        a('s_add_u32 s%d, s%d, 16384' % (sT2, sT2))
        bits(a, s.vVr, [(0, 2, 8), (2, 4, 4)], 's%d' % sT2)
        a('s_lshl_b32 s%d, s%d, 10' % (sT2, sT1))
        a('s_add_u32 s%d, s%d, %d' % (sT2, sT2, s.L_KM + 2048))
        bits(a, s.vMr, [(3, 1, 8), (4, 2, 6), (1, 1, 5), (2, 1, 3), (0, 1, 1)], 's%d' % sT2)
        for i in range(2): a('s_mov_b32 s%d, 0xcccccccc' % (s.sHi + i))
        a('v_mov_b32 v%d, 0x4444' % vT)
        a('v_mov_b32 v%d, 0xeeee' % (vT + 1))
        a('v_cndmask_b32 v%d, v%d, v%d, s[%d:%d]' % (s.vIdx, vT, vT + 1, s.sHi, s.sHi + 1))
        a('v_mov_b32 v%d, 0x%x' % (s.vNeg, f2u(-1e9 * math.sqrt(128))))
        a('s_mov_b32 s%d, 0x%x' % (s.sScale, f2u(math.log2(math.e) / math.sqrt(128))))
        a('s_lshl_b32 s%d, s%d, 4' % (sT2, sT0))
        bits(a, vT, [(0, 4, 0)], 's%d' % sT2)
        bits(a, vT + 1, [(4, 2, 2)])
        a('v_sub_u32 v%d, v%d, v%d' % (vT, vT, vT + 1))
        for k in range(8):
            a('v_cmp_le_i32 s[%d:%d], %d, v%d' % (s.sMask + 2 * k, s.sMask + 2 * k + 1, 16 * (k // 4) + k % 4, vT))
        a('s_lshl_b32 s%d, s%d, 10' % (sT2, sW))
        a('v_add_u32 v%d, s%d, v%d' % (s.vKmw, sT2, s.vL16))
        a('s_lshl_b32 s%d, s%d, 16' % (sT2, sT1))
        a('s_lshl_b32 s%d, s%d, 5' % (sT3, sT0))
        a('s_add_u32 s%d, s%d, s%d' % (sT2, sT2, sT3))
        a('s_lshl_b32 s%d, s%d, 6' % (sT3, s.sKq))
        a('s_add_u32 s%d, s%d, s%d' % (sT2, sT2, sT3))
        a('s_lshl_b32 s%d, s%d, 8' % (sT3, s.sCb))
        a('s_add_u32 s%d, s%d, s%d' % (sT2, sT2, sT3))
        a('s_add_u32 s%d, s%d, 2048' % (sT2, sT2))
        bits(a, s.vOst, [(0, 4, 12), (4, 2, 3)], 's%d' % sT2)
        for et in range(4): a('v_mov_b32 v%d, 0' % (s.vA + 6 * et + 5))
        a('s_lshl_b32 s%d, s%d, 16' % (sT2, s.sCb))
        a('s_add_u32 s%d, s%d, 0x%x' % (sT2, sT2, WS_PO))
        a('s_lshl_b32 s%d, s%d, 14' % (s.sPst, sW))
        a('s_lshl_b32 s%d, s%d, 10' % (sT3, s.sKq))
        a('s_add_u32 s%d, s%d, s%d' % (s.sPst, s.sPst, sT3))
        a('s_add_u32 s%d, s%d, s%d' % (s.sPst, s.sPst, sT2))
        a('s_lshl_b32 s%d, s%d, 14' % (s.sPld, s.sKq))
        a('s_lshl_b32 s%d, s%d, 12' % (sT3, sW))
        a('s_add_u32 s%d, s%d, s%d' % (s.sPld, s.sPld, sT3))
        a('s_add_u32 s%d, s%d, s%d' % (s.sPld, s.sPld, sT2))
    def next_list(s):
        o = []
        for bit, r in ((0, s.sA), (1, s.sO), (2, s.sF), (3, s.sS)):
            o += ['s_bfe_u32 s%d, s%d, 0x%x' % (sT0, s.sDo, 0x10000 | bit), 's_lshl2_add_u32 s%d, s%d, s%d' % (r, sT0, r)]
        o += ['s_add_u32 s%d, s%d, 1' % (s.sI, s.sI)]
        for k in range(4):
            o += ['s_lshr_b32 s%d, s%d, s%d' % (sT0, s.sSch + k, s.sI), 's_and_b32 s%d, s%d, 1' % (sT0 if k else s.sDn, sT0)]
            if k: o += ['s_lshl_b32 s%d, s%d, %d' % (sT0, sT0, k), 's_or_b32 s%d, s%d, s%d' % (s.sDn, s.sDn, sT0)]
        o += ['s_lshl_b32 s%d, s%d, 17' % (s.sKm, s.sA), 's_add_u32 s%d, s%d, s%d' % (s.sKm, s.sKm, s.bKm),
              's_lshl_b32 s%d, s%d, 11' % (s.sCO, s.sO), 's_add_u32 s%d, s%d, s%d' % (s.sCO, s.sCO, s.bCO),
              s.km_ld(), s.ld_ctr(0),
              's_lshl_b32 s%d, s%d, 18' % (s.sOst, s.sA), 's_add_u32 s%d, s%d, s%d' % (s.sOst, s.sOst, s.bOst),
              's_lshl_b32 s%d, s%d, 18' % (s.sOld, s.sO), 's_add_u32 s%d, s%d, s%d' % (s.sOld, s.sOld, s.bOld),
              's_lshl_b32 s%d, s%d, 11' % (s.sCP, s.sF), 's_add_u32 s%d, s%d, s%d' % (s.sCP, s.sCP, s.bCP),
              'v_mov_b32 v%d, 0' % (s.vP + 5)]
        return ['\n'.join(x) if isinstance(x, list) else x for x in o]
    def bases(s):
        a = s.a
        a('s_lshl_b32 s%d, s%d, 12' % (sT0, sMem))
        a('s_add_u32 s%d, s%d, 0x%x' % (s.bKm, sT0, WS_KVM))
        a('s_and_b32 s%d, s%d, 1' % (sT1, sW))
        a('s_lshl_b32 s%d, s%d, 17' % (sT1, sT1))
        a('s_add_u32 s%d, s%d, 0x%x' % (sT1, sT1, WS_O))
        a('s_lshr_b32 s%d, s%d, 1' % (sT2, sW))
        a('s_add_u32 s%d, s%d, s%d' % (s.bOst, sT1, sT0))
        a('s_lshl_b32 s%d, s%d, 11' % (sT0, sT2))
        a('s_add_u32 s%d, s%d, s%d' % (s.bOst, s.bOst, sT0))
        a('s_lshl_b32 s%d, s%d, 15' % (sT0, s.sKq))
        a('s_add_u32 s%d, s%d, s%d' % (s.bOld, sT1, sT0))
        a('s_lshl_b32 s%d, s%d, 14' % (sT0, sT2))
        a('s_add_u32 s%d, s%d, s%d' % (s.bOld, s.bOld, sT0))
        a('s_lshl_b32 s%d, s%d, 7' % (sT0, s.sKq))
        a('s_add_u32 s%d, s%d, 0x%x' % (s.bCO, sT0, WS_CTR))
        a('s_lshl_b32 s%d, s%d, 7' % (sT0, s.sCb))
        a('s_add_u32 s%d, s%d, 0x%x' % (s.bCP, sT0, WS_CTR + 512))
    def km_ld(s): return 'buffer_load_dwordx4 %s, v%d, s[%d:%d], s%d offen sc1' % (vr(s.vP, 4), s.vKmw, S_WS, S_WS + 3, s.sKm)
    def ld_km(s): s.a('buffer_load_dwordx4 %s, v%d, s[%d:%d], s%d offen sc1' % (vr(s.vP, 4), s.vKmw, S_WS, S_WS + 3, s.sKm))
    def ld_ctr(s, k): return 'buffer_load_dword v%d, off, s[%d:%d], s%d sc1' % (s.vP + 4 + k, S_WS, S_WS + 3, (s.sCO, s.sCP)[k])
    def spin(s, ld, chk, sleep):
        a = s.a
        l, ok = a.newlabel('Lsp'), a.newlabel('Lsp')
        a.label(l)
        chk(ok)
        a('s_sleep %d' % sleep)
        ld()
        a('s_waitcnt vmcnt(0)')
        a('s_sub_u32 s%d, s%d, 1' % (sTmo, sTmo))
        a('s_cbranch_scc0 %s' % l)
        a('s_branch L_side_fail')
        a.label(ok)
    def wait_km(s):
        a = s.a; vP = s.vP
        def chk(ok):
            a('v_max3_u32 v%d, v%d, v%d, v%d' % (s.vT, vP, vP + 1, vP + 2))
            a('v_max_u32 v%d, v%d, v%d' % (s.vT, s.vT, vP + 3))
            a('v_cmp_eq_u32 vcc, -1, v%d' % s.vT)
            a('s_cbranch_vccz %s' % ok)
        s.spin(s.ld_km, chk, 4)
    def wait_ctr(s, k):
        a = s.a
        def chk(ok):
            a('v_readfirstlane_b32 s%d, v%d' % (sT0, s.vP + 4 + k))
            a('s_cmp_eq_u32 s%d, %d' % (sT0, (8, 4)[k]))
            a('s_cbranch_scc1 %s' % ok)
        s.spin(lambda: a(s.ld_ctr(k)), chk, 2)
    def signals(s):
        a = s.a
        l = a.newlabel('Lsig')
        a('s_cmp_eq_u32 s%d, 0' % sW)
        a('s_cbranch_scc0 %s' % l)
        a('v_mov_b32 v%d, 1' % (s.vT + 2))
        a('s_mov_b64 exec, 1')
        for bit, r, b in ((0, s.sA, s.bCO), (3, s.sS, s.bCP)):
            a('s_lshl_b32 s%d, s%d, 11' % (sT0, r))
            a('s_add_u32 s%d, s%d, s%d' % (sT0, sT0, b))
            a('s_bitcmp1_b32 s%d, %d' % (s.sDo, bit))
            a('s_cselect_b32 s%d, s%d, 0x%x' % (sT0, sT0, WS_DUMP))
            a('buffer_atomic_add v%d, off, s[%d:%d], s%d sc1' % (s.vT + 2, S_WS, S_WS + 3, sT0))
        a('s_mov_b64 exec, -1')
        a.label(l)
    def cond(s, bit, label):
        s.a('s_bitcmp1_b32 s%d, %d' % (s.sDo, bit))
        s.a('s_cbranch_scc0 %s' % label)
    def attn(s, lean=False):
        A = s.a; vT = s.vT; vQ, vK, vKm, vS, vA, vD = s.vQ, s.vK, s.vKm, s.vS, s.vA, s.vD
        fill = [] if lean else s.odma_list() + s.prefetch_list() + [[s.ld_ctr(1)]]
        st = {'n': 0}
        def a(x):
            A(x)
            st['n'] += 1
            if st['n'] % s.DENS == 0 and fill:
                for y in fill.pop(0): A(y)
        for i in range(4): a('v_mov_b32 v%d, 0' % (vS + 8 + i))
        for t in range(4): a('ds_read_b128 %s, v%d offset:%d' % (vr(vQ + 4 * t, 4), s.vQr, t * 1024))
        for i in range(8): a('ds_read_b128 %s, v%d offset:%d' % (vr(vK + 4 * i, 4), s.vKr, i * 1024))
        for T in range(2): a('ds_read_b128 %s, v%d offset:%d' % (vr(vKm + 4 * T, 4), s.vL16, s.L_KM + T * 1024))
        a('s_waitcnt lgkmcnt(0)')
        for et in range(4):
            for tau in range(2):
                a('ds_read_b64_tr_b16 %s, v%d offset:%d' % (vr(vA + 6 * et + 2 * tau, 2), s.vVr, tau * 4096 + (et // 2) * 1024 + (et % 2) * 8))
        for t in range(4):
            for tau in range(2):
                a('v_mfma_f32_16x16x32_bf16 %s, %s, %s, %s' % (vr(vS + 4 * tau, 4), vr(vK + 16 * tau + 4 * t, 4), vr(vQ + 4 * t, 4), '0' if t == 0 else vr(vS + 4 * tau, 4)))
        for T in range(2):
            a('v_smfmac_f32_16x16x64_bf16 %s, %s, %s, v%d' % (vr(vS + 8, 4), vr(vKm + 4 * T, 4), vr(vQ + 8 * T, 8), s.vIdx))
        a('s_waitcnt lgkmcnt(0)')
        for et in range(4):
            a('ds_read_u16 v%d, v%d offset:%d' % (vA + 6 * et + 4, s.vMr, (et // 2) * 512 + (et % 2) * 4))
            a('ds_read_u16 v%d, v%d offset:%d' % (vT + 8 + et, s.vMr, (et // 2) * 512 + (et % 2) * 4 + 16))
        for k in range(8): a('v_cndmask_b32 v%d, v%d, v%d, s[%d:%d]' % (vS + k, s.vNeg, vS + k, s.sMask + 2 * k, s.sMask + 2 * k + 1))
        a('v_pk_add_f32 %s, %s, %s' % (vr(vS + 8, 2), vr(vS + 8, 2), vr(vS + 10, 2)))
        m, m2 = vT, vT + 1
        def xred(op):
            for sw in ('v_permlane16_swap_b32', 'v_permlane32_swap_b32'):
                a('v_mov_b32 v%d, v%d' % (m2, m))
                a('%s v%d, v%d' % (sw, m, m2))
                a('%s v%d, v%d, v%d' % (op, m, m, m2))
        a('v_max3_f32 v%d, v%d, v%d, v%d' % (m, vS, vS + 1, vS + 2))
        for k in range(3, 9, 2): a('v_max3_f32 v%d, v%d, v%d, v%d' % (m, m, vS + k, vS + k + 1))
        a('v_max_f32 v%d, v%d, v%d' % (m, m, vS + 9))
        xred('v_max_f32')
        a('v_mul_f32 v%d, s%d, v%d' % (m, s.sScale, m))
        for k in range(10): a('v_fma_f32 v%d, v%d, s%d, -v%d' % (vS + k, vS + k, s.sScale, m))
        for k in range(10): a('v_exp_f32 v%d, v%d' % (vS + k, vS + k))
        a('v_pk_add_f32 %s, %s, %s' % (vr(m, 2), vr(vS, 2), vr(vS + 2, 2)))
        for k in (4, 6, 8): a('v_pk_add_f32 %s, %s, %s' % (vr(m, 2), vr(m, 2), vr(vS + k, 2)))
        a('v_add_f32 v%d, v%d, v%d' % (m, m, m2))
        xred('v_add_f32')
        a('v_rcp_f32 v%d, v%d' % (m, m))
        for k in range(10): a('v_mul_f32 v%d, v%d, v%d' % (vS + k, vS + k, m))
        p = vT + 2
        for k in range(5): a('v_cvt_pk_bf16_f32 v%d, v%d, v%d' % (p + k, vS + 2 * k, vS + 2 * k + 1))
        a('v_mov_b32 v%d, 0' % (p + 5))
        a('s_waitcnt lgkmcnt(0)')
        for et in range(4): a('v_lshl_or_b32 v%d, v%d, 16, v%d' % (vA + 6 * et + 4, vT + 8 + et, vA + 6 * et + 4))
        for et in range(4): a('v_mfma_f32_16x16x32_bf16 %s, %s, %s, 0' % (vr(vD + 4 * et, 4), vr(vA + 6 * et, 4), vr(p, 4)))
        for et in range(4): a('v_mfma_f32_16x16x16_bf16 %s, %s, %s, %s' % (vr(vD + 4 * et, 4), vr(vA + 6 * et + 4, 2), vr(p + 4, 2), vr(vD + 4 * et, 4)))
        for pr in range(2):
            r = vD + 8 * pr
            for i in range(4): a('v_cvt_pk_bf16_f32 v%d, v%d, v%d' % (r + i, r + 2 * i, r + 2 * i + 1))
            a('buffer_store_dwordx4 %s, v%d, s[%d:%d], s%d offen offset:%d sc1' % (vr(r, 4), s.vL16, S_WS, S_WS + 3, s.sOst, pr * 1024))
        assert not fill
        a = A
        for r in (s.vQr, s.vKr, s.vVr): a('v_xor_b32 v%d, 0x%x, v%d' % (r, s.BUF1, r))
    def readback(s):
        if not s.RB: return
        a = s.a
        a('s_bitcmp1_b32 s%d, 0' % s.sDo)
        a('s_cselect_b32 s%d, s%d, 0x%x' % (sT0, s.sOst, WS_DUMP))
        a('s_mov_b64 exec, 0xffff')
        a('buffer_load_dword v%d, v11, s[%d:%d], s%d offen sc1' % (s.vT + 3, S_WS, S_WS + 3, sT0))
        a('s_mov_b64 exec, -1')
    def fload(s):
        a = s.a
        l = a.newlabel('Lf')
        s.cond(2, l)
        s.wait_ctr(1)
        a('s_lshl_b32 s%d, s%d, 19' % (sT0, s.sF))
        a('s_add_u32 s%d, s%d, s%d' % (sT0, sT0, s.sPld))
        for i in range(4): a('buffer_load_dwordx4 %s, v%d, s[%d:%d], s%d offen offset:%d sc1' % (vr(s.vF + 4 * i, 4), s.vL16, S_WS, S_WS + 3, sT0, i * 1024))
        a.label(l)
        a('s_lshl_b32 s%d, s%d, 17' % (s.sFo, s.sF))
        a('s_bitcmp1_b32 s%d, 2' % s.sDo)
        a('s_cselect_b32 s%d, s%d, 0x%x' % (s.sFo, s.sFo, WS_DUMP))
    def oproj(s, lean=False):
        a = s.a; vD = s.vD; vB = s.vB
        seq = [(rt, k) for k in range(32) for rt in range(2)]
        NB, AH = 12, 10
        def rd(i):
            rt, k = seq[i]
            a('ds_read_b128 %s, v%d offset:%d' % (vr(vB + 4 * (i % NB), 4), s.vOr, rt * 32768 + k * 1024))
        for i in range(AH): rd(i)
        a('s_lshl_b32 s%d, s%d, 19' % (s.sPo, s.sO))
        a('s_add_u32 s%d, s%d, s%d' % (s.sPo, s.sPo, s.sPst))
        nl = [] if lean else s.next_list()
        for i, (rt, k) in enumerate(seq):
            if i + AH < 64: rd(i + AH)
            a('s_waitcnt lgkmcnt(%d)' % min(AH, 63 - i))
            for nt in range(2):
                d = vr(vD + 4 * (2 * rt + nt), 4)
                a('v_mfma_f32_16x16x32_bf16 %s, %s, %s, %s' % (d, ar((k * 2 + nt) * 4, 4), vr(vB + 4 * (i % NB), 4), '0' if k == 0 else d))
                if i >= 38 and nl: a(nl.pop(0))
            if i == 16 and not lean:
                a('s_waitcnt vmcnt(0)')
                a('s_barrier')
                s.signals()
                s.readback()
                s.fload()
        assert not nl
        if not lean: a('s_waitcnt vmcnt(2)')
        for t in range(4):
            a('buffer_store_dwordx4 %s, v%d, s[%d:%d], s%d offen sc1' % (vr(vD + 4 * t, 4), s.vL16, S_WS, S_WS + 3, s.sPo))
            a('s_add_u32 s%d, s%d, 4096' % (s.sPo, s.sPo))
    def finish(s):
        a = s.a; vT = s.vT; vF = s.vF
        for h in range(2):
            a('v_pk_add_f32 %s, %s, %s' % (vr(vF + 2 * h, 2), vr(vF + 2 * h, 2), vr(vF + 4 + 2 * h, 2)))
            a('v_pk_add_f32 %s, %s, %s' % (vr(vF + 8 + 2 * h, 2), vr(vF + 8 + 2 * h, 2), vr(vF + 12 + 2 * h, 2)))
            a('v_pk_add_f32 %s, %s, %s' % (vr(vF + 2 * h, 2), vr(vF + 2 * h, 2), vr(vF + 8 + 2 * h, 2)))
            a('v_cvt_pk_bf16_f32 v%d, v%d, v%d' % (vT + h, vF + 2 * h, vF + 2 * h + 1))
        a('buffer_store_dwordx2 %s, v%d, s[%d:%d], s%d offen' % (vr(vT, 2), s.vOst, S_OUT, S_OUT + 3, s.sFo))
    def run(s, wait_g1):
        a = s.a; vT = s.vT; vF = s.vF
        s.setup()
        s.bases()
        wait_g1()
        a('s_barrier')
        for k in range(4): a('s_mov_b32 s%d, 0x%x' % (s.sSch + k, s.sched(16)[k]))
        a('s_mov_b32 s%d, 18' % s.sNit)
        for r in (s.sA, s.sO, s.sF, s.sS, s.sPf): a('s_mov_b32 s%d, s%d' % (r, sTeam))
        a('s_mov_b32 s%d, 0' % s.sBuf)
        a('s_mov_b32 s%d, -1' % s.sI)
        a('s_mov_b32 s%d, 0' % s.sDo)
        for i in range(4): a('v_mov_b32 v%d, -1' % (vF + i))
        a('s_add_u32 s%d, s%d, 60' % (sT0, sTeam))
        a('s_lshl_b32 s%d, s%d, 19' % (sT0, sT0))
        a('s_add_u32 s%d, s%d, s%d' % (sT0, sT0, s.sPst))
        for t in range(4):
            a('buffer_store_dwordx4 %s, v%d, s[%d:%d], s%d offen sc1' % (vr(vF, 4), s.vL16, S_WS, S_WS + 3, sT0))
            a('s_add_u32 s%d, s%d, 4096' % (sT0, sT0))
        s.flat(s.prefetch_list())
        for x in s.next_list(): a(x)
        a('s_waitcnt vmcnt(0)')
        a.label('L_ao_loop')
        s.mark(10); s.mark(9)
        a('s_mov_b32 s%d, s%d' % (s.sDo, s.sDn))
        a('s_bitcmp1_b32 s%d, 1' % s.sDo)
        a('s_cselect_b32 s%d, s%d, 0x%x' % (s.sOld, s.sOld, WS_DUMP))
        a('s_cbranch_scc0 L_ao_2')
        s.wait_ctr(0)
        a.label('L_ao_2')
        s.cond(0, 'L_ao_noA')
        s.wait_km()
        a('ds_write_b128 v%d, %s offset:%d' % (s.vKmw, vr(s.vP, 4), s.L_KM))
        a('s_add_u32 s%d, s%d, 4' % (s.sPf, s.sA))
        a('s_cmp_lt_u32 s%d, 64' % s.sPf)
        a('s_cselect_b32 s%d, s%d, 1024' % (s.sPf, s.sPf))
        a('s_xor_b32 s%d, s%d, 0x%x' % (s.sBuf, s.sBuf, s.BUF1))
        a('s_waitcnt lgkmcnt(0)')
        a('s_barrier')
        s.mark(11)
        s.attn()
        s.cond(1, 'L_ao_noO')
        a('s_waitcnt vmcnt(9)')
        a('s_branch L_ao_3')
        a.label('L_ao_noA')
        s.cond(1, 'L_ao_noO')
        a('s_barrier')
        s.flat(s.odma_list())
        a('s_waitcnt vmcnt(0)')
        a.label('L_ao_3')
        a('s_barrier')
        s.mark(12)
        s.oproj()
        a('s_branch L_ao_6')
        a.label('L_ao_noO')
        a('s_waitcnt vmcnt(0)')
        a('s_barrier')
        s.signals()
        s.fload()
        for x in s.next_list(): a(x)
        a('s_waitcnt vmcnt(0)')
        a.label('L_ao_6')
        s.finish()
        a('s_waitcnt vmcnt(5)')
        a('s_cmp_lt_u32 s%d, s%d' % (s.sI, s.sNit))
        a('s_cbranch_scc1 L_ao_loop')
        s.mark(10)
        s.wait_km()
        a('ds_write_b128 v%d, %s offset:%d' % (s.vKmw, vr(s.vP, 4), s.L_KM))
        a('s_mov_b32 s%d, 1' % s.sDo)
        a('s_waitcnt lgkmcnt(0)')
        a('s_barrier')
        s.mark(11)
        s.attn(True)
        a('s_waitcnt vmcnt(0)')
        a('s_barrier')
        s.signals()
        s.mark(12)
        s.wait_ctr(0)
        s.flat(s.odma_list())
        a('s_lshl_b32 s%d, s%d, 19' % (s.sCP, s.sF))
        a('s_add_u32 s%d, s%d, s%d' % (s.sCP, s.sCP, s.sPld))
        a('s_lshl_b32 s%d, s%d, 17' % (s.sFo, s.sF))
        a('s_waitcnt vmcnt(0)')
        a('s_barrier')
        s.mark(13)
        s.oproj(True)
        s.mark(14)
        def ldf():
            for i in range(4): a('buffer_load_dwordx4 %s, v%d, s[%d:%d], s%d offen offset:%d sc1' % (vr(vF + 4 * i, 4), s.vL16, S_WS, S_WS + 3, s.sCP, i * 1024))
        def chk(ok):
            a('v_max3_u32 v%d, v%d, v%d, v%d' % (vT, vF, vF + 1, vF + 2))
            for i in range(3, 15, 2): a('v_max3_u32 v%d, v%d, v%d, v%d' % (vT, vT, vF + i, vF + i + 1))
            a('v_max_u32 v%d, v%d, v%d' % (vT, vT, vF + 15))
            a('v_cmp_eq_u32 vcc, -1, v%d' % vT)
            a('s_cbranch_vccz %s' % ok)
        a('s_waitcnt vmcnt(0)')
        ldf()
        a('s_waitcnt vmcnt(0)')
        s.spin(ldf, chk, 1)
        s.finish()

class Conv:
    def mark(s, i): pass
    CH = 7600
    L_H = 8 * 7600
    HC = 4160
    L_W = 8 * 7600 + 16 * 4160
    def __init__(s, a): s.a = a
    def warm(s, NX=4):
        a = s.a
        a('s_and_b32 s%d, s%d, %d' % (sT0, sMem, 31 if NX == 4 else 15))
        a('s_lshl_b32 s%d, s%d, 2' % (sT0, sT0))
        a('s_add_u32 s%d, s%d, s%d' % (sT0, sT0, sW))
        a('s_lshl_b32 s%d, s%d, %d' % (sT0, sT0, 15 if NX == 4 else 16))
        a('s_lshl_b32 s%d, s%d, 9' % (sT1, sTeam))
        a('s_add_u32 s%d, s%d, s%d' % (sT0, sT0, sT1))
        if NX == 4: bits(a, 28, [(2, 4, 11), (0, 2, 7)])
        else:
            a('s_lshr_b32 s%d, s%d, 4' % (sT1, sMem))
            a('s_lshl_b32 s%d, s%d, 8' % (sT1, sT1))
            a('s_add_u32 s%d, s%d, s%d' % (sT0, sT0, sT1))
            bits(a, 28, [(1, 5, 11), (0, 1, 7)])
        for i, srd in enumerate((S_AK, S_AV, S_AQ)): a('buffer_load_dword v%d, v28, s[%d:%d], s%d offen' % (20 + i, srd, srd + 3, sT0))
        a('s_lshl_b32 s%d, s%d, 5' % (sT0, sTeam))
        a('s_add_u32 s%d, s%d, s%d' % (sT0, sT0, sMem))
        a('s_lshl_b32 s%d, s%d, 2' % (sT0, sT0))
        a('s_add_u32 s%d, s%d, s%d' % (sT0, sT0, sW))
        a('s_lshl_b32 s%d, s%d, 13' % (sT0, sT0))
        a('v_lshlrev_b32 v28, 7, v0')
        a('buffer_load_dword v23, v28, s[%d:%d], s%d offen' % (S_AH, S_AH + 3, sT0))
    def run(s, sKq=None, sCb=None):
        a = s.a
        WO = sKq is not None
        CH, L_H, HC = s.CH, s.L_H, s.HC
        sD0, sWs, sWl, sRaw = 45, 46, 47, 56
        vRow, vW, vG, vBp, vY, vHl, vHw, vWs, vWr, vT = 1, 2, 3, 4, 5, 6, 7, 8, 9, 10
        vKV = 32; vC = 64; vK = 104; vV = 148; vE = 180; hw = 232
        vm = []
        def issue(tag, x): a(x); vm.append(tag)
        def wait(tag):
            k = max(i for i, t in enumerate(vm) if t == tag)
            a('s_waitcnt vmcnt(%d)' % (len(vm) - 1 - k))
        a('s_barrier')
        a('s_lshl_b32 s%d, s%d, 5' % (sD0, sTeam))
        a('s_add_u32 s%d, s%d, s%d' % (sD0, sD0, sMem))
        a('s_load_dwordx2 s[72:73], s[0:1], %d' % KA['A_shift'])
        a('s_load_dwordx2 s[74:75], s[0:1], %d' % KA['A_ssmD'])
        a('s_lshl_b32 s%d, s%d, 6' % (sT0, sD0))
        a('s_lshl_b32 s%d, s%d, 4' % (sT1, sD0))
        a('s_waitcnt lgkmcnt(0)')
        a('s_load_dwordx16 s[56:71], s[72:73], s%d' % sT0)
        a('s_load_dwordx4 s[48:51], s[74:75], s%d' % sT1)
        a('s_lshl_b32 s%d, s%d, 20' % (sT0, sW))
        a('s_add_u32 s%d, s%d, s%d' % (sT0, sT0, sT1))
        bits(a, vRow, [(0, 6, 14)], 's%d' % sT0)
        for r in range(-3, 8):
            a('v_add_u32 v%d, 0x%x, v%d' % (vT, (r * 2048) & 0xffffffff, vRow))
            issue('kv', 'buffer_load_dwordx4 %s, v%d, s[%d:%d], 0 offen' % (vr(vK + 4 * (r + 3), 4), vT, S_AK, S_AK + 3))
            if r >= 0: issue('kv', 'buffer_load_dwordx4 %s, v%d, s[%d:%d], 0 offen' % (vr(vV + 4 * r, 4), vT, S_AV, S_AV + 3))
        a('s_lshl_b32 s%d, s%d, 15' % (sT0, sD0))
        a('s_lshl_b32 s%d, s%d, 13' % (sT1, sW))
        a('s_add_u32 s%d, s%d, s%d' % (sT0, sT0, sT1))
        bits(a, vHl, [(0, 6, 4)], 's%d' % sT0)
        def hload(ch):
            if ch: a('v_add_u32 v%d, 4096, v%d' % (vHl, vHl))
            a('v_subrev_u32 v%d, 8, v%d' % (vT + 1, vHl))
            for i in range(4):
                issue('h%d' % ch, 'buffer_load_dwordx2 %s, v%d, s[%d:%d], 0 offen offset:%d' % (vr(hw + 6 * i, 2), vT + 1 if i == 0 else vHl, S_AH, S_AH + 3, 0 if i == 0 else i * 1024 - 8))
                issue('h%d' % ch, 'buffer_load_dwordx4 %s, v%d, s[%d:%d], 0 offen offset:%d' % (vr(hw + 6 * i + 2, 4), vHl, S_AH, S_AH + 3, i * 1024))
        hload(0)
        if WO:
            a('s_lshl_b32 s%d, s%d, 21' % (sWs, sKq))
            a('s_lshl_b32 s%d, s%d, 8' % (sT0, sCb))
            a('s_add_u32 s%d, s%d, s%d' % (sWs, sWs, sT0))
            a('s_lshl_b32 s%d, s%d, 6' % (sT0, sW))
            a('s_add_u32 s%d, s%d, s%d' % (sWs, sWs, sT0))
            bits(a, vWs, [(2, 4, 11), (0, 2, 4)])
            a('s_lshl_b32 s%d, s%d, 13' % (sWl, sW))
            a('s_add_u32 s%d, s%d, %d' % (sWl, sWl, s.L_W))
            bits(a, vWr, [(2, 4, 6), (0, 2, 3)], 's%d' % sWl)
        def wdma(j):
            a('s_add_u32 m0, s%d, %d' % (sWl, (j % 8) * 1024))
            issue('w%d' % j, 'buffer_load_dwordx4 v%d, s[%d:%d], s%d offen lds' % (vWs, S_WO, S_WO + 3, sWs))
            a('s_add_u32 s%d, s%d, 0x8000' % (sWs, sWs))
        def wtr(j):
            wait('w%d' % j)
            for nt in range(2):
                a('ds_read_b64_tr_b16 %s, v%d offset:%d' % (ar(((j // 2) * 2 + nt) * 4 + 2 * (j % 2), 2), vWr, (j % 8) * 1024 + nt * 32))
        for j in range(7 if WO else 0): wdma(j)
        for i in range(4): a('v_mov_b32 v%d, 0' % (vT + 4 + i))
        a('s_lshl_b32 s%d, s%d, 10' % (sT0, sW))
        bits(a, vT, [(0, 6, 4)], 's%d' % sT0)
        a('v_cmp_gt_u32 vcc, 2480, v%d' % vT)
        a('s_and_saveexec_b64 s[72:73], vcc')
        for ch in range(8): a('ds_write_b128 v%d, %s offset:%d' % (vT, vr(vT + 4, 4), ch * CH))
        a('s_mov_b64 exec, 0xffff')
        a('s_mul_i32 s%d, s%d, %d' % (sT2, sW, 4 * HC))
        a('s_add_u32 s%d, s%d, %d' % (sT2, sT2, L_H))
        a('s_add_u32 s%d, s%d, 4096' % (sT0, sT2))
        bits(a, vT, [(2, 2, 12), (2, 2, 6), (0, 2, 4)], 's%d' % sT0)
        a('ds_write_b128 v%d, %s' % (vT, vr(vT + 4, 4)))
        a('s_mov_b64 exec, -1')
        a('s_mul_i32 s%d, s%d, %d' % (sT0, sW, 16 * 80))
        a('s_add_u32 s%d, s%d, %d' % (sT0, sT0, 31 * 80))
        bits(a, vW, [(2, 4, 6), (2, 4, 4), (0, 2, 4)], 's%d' % sT0)
        a('v_and_b32 v%d, 31, v0' % vT)
        a('v_sub_u32 v%d, 31, v%d' % (vT, vT))
        a('v_and_b32 v%d, 3, v%d' % (vT + 1, vT))
        a('v_and_b32 v%d, 28, v%d' % (vT, vT))
        a('v_mul_u32_u24 v%d, %d, v%d' % (vT + 1, HC, vT + 1))
        a('v_lshl_add_u32 v%d, v%d, 1, v%d' % (vT, vT, vT + 1))
        bits(a, vG, [(5, 1, 4)], 's%d' % sT2)
        a('v_add_u32 v%d, v%d, v%d' % (vG, vG, vT))
        a('v_sub_u32 v%d, 63, v0' % vT)
        a('v_lshlrev_b32 v%d, 4, v%d' % (vT, vT))
        a('v_add_u32 v%d, s%d, v%d' % (vHw, sT2, vT))
        a('s_mul_i32 s%d, s%d, %d' % (sT1, sW, 2 * CH))
        bits(a, vBp, [(0, 5, 6), (0, 5, 4), (5, 1, 4)], 's%d' % sT1)
        a('s_add_u32 s%d, s%d, %d' % (sT1, sT1, 31 * 80))
        bits(a, vY, [(0, 5, 6), (0, 5, 4), (5, 1, 3)], 's%d' % sT1)
        a('s_waitcnt lgkmcnt(0)')
        for ch in range(8):
            for j in range(4):
                src = sRaw + 2 * ch + j // 2
                if j % 2 == 0: a('v_lshlrev_b32 v%d, 16, s%d' % (vC + 8 * j + ch, src))
                else:
                    a('s_and_b32 s%d, s%d, 0xffff0000' % (sT0, src))
                    a('v_mov_b32 v%d, s%d' % (vC + 8 * j + ch, sT0))
            if ch % 2 == 0: a('v_lshlrev_b32 v%d, 16, s%d' % (vC + 32 + ch, 48 + ch // 2))
            else:
                a('s_and_b32 s%d, s%d, 0xffff0000' % (sT0, 48 + ch // 2))
                a('v_mov_b32 v%d, s%d' % (vC + 32 + ch, sT0))
        a('s_mov_b32 s72, 0xffff')
        wait('kv')
        s.mark(6)
        def unpack(dst, src):
            a('v_lshlrev_b32 v%d, 16, v%d' % (dst, src))
            a('v_and_b32 v%d, 0xffff0000, v%d' % (dst + 1, src))
        for cp in range(4):
            kf = vE; ac = vE + 22; vf = vE + 38
            for r in range(11): unpack(kf + 2 * r, vK + 4 * r + cp)
            for r in range(8):
                a('v_pk_mul_f32 %s, %s, %s' % (vr(ac + 2 * r, 2), vr(kf + 2 * r, 2), vr(vC + 24 + 2 * cp, 2)))
            for j in (2, 1, 0):
                for r in range(8):
                    a('v_pk_fma_f32 %s, %s, %s, %s' % (vr(ac + 2 * r, 2), vr(kf + 2 * (r + 3 - j), 2), vr(vC + 8 * j + 2 * cp, 2), vr(ac + 2 * r, 2)))
            for r in range(8):
                unpack(vf + 2 * (r % 4), vV + 4 * r + cp)
                a('v_pk_mul_f32 %s, %s, %s' % (vr(ac + 2 * r, 2), vr(ac + 2 * r, 2), vr(vf + 2 * (r % 4), 2)))
            for e in range(2):
                ch = 2 * cp + e
                for k in range(4): a('v_cvt_pk_bf16_f32 v%d, v%d, v%d' % (vKV + 4 * ch + k, ac + 4 * k + e, ac + 4 * k + 2 + e))
                a('ds_write_b128 v%d, %s offset:%d' % (vW, vr(vKV + 4 * ch, 4), ch * CH))
        wj = {'tr': 0}
        for chn in range(2):
            a('v_cmp_ne_u32 vcc, 0, v0')
            wait('h%d' % chn)
            for k in range(2): a('v_cndmask_b32 v%d, 0, v%d, vcc' % (hw + k, hw + k))
            for i in range(4):
                wv = lambda idx: hw + 6 * i + 2 + idx
                for r in range(4):
                    o = vE + 16 * (i % 2) + 4 * r
                    for k in range(4):
                        if r % 2 == 0:
                            x = wv((6 - r - 2 * k) // 2)
                            a('v_alignbit_b32 v%d, v%d, v%d, 16' % (o + k, x, x))
                        else:
                            e0 = (7 - r - 2 * k) // 2
                            a('v_bfi_b32 v%d, s72, v%d, v%d' % (o + k, wv(e0), wv(e0 - 1)))
                    a('ds_write_b128 v%d, %s offset:%d' % (vHw, vr(o, 4), r * HC + (3 - i) * 1024))
                a('s_waitcnt lgkmcnt(4)')
            a('s_waitcnt lgkmcnt(0)')
            if chn == 0:
                a('s_barrier')
                s.mark(7)
                hload(1)
            steps = [(c, kk) for c in range(64) for kk in range(2)]
            NB, AH = 4, 3
            cb = chn * CH
            def rd(i):
                c, kk = steps[i]; m = 2 * c - kk; b = vE + 12 * (i % NB); n = 3
                for h in range(2): a('ds_read_b64 %s, v%d offset:%d' % (vr(b + 2 * h, 2), vG, (126 - m) * 32 + 8 * h))
                a('ds_read_b128 %s, v%d offset:%d' % (vr(b + 4, 4), vBp, cb + (63 - c) * 80 + kk * 32))
                if c < 32:
                    a('ds_read_b128 %s, v%d offset:%d' % (vr(b + 8, 4), vBp, cb + (31 - c) * 80 + kk * 32)); n = 4
                return n
            cnt = [rd(i) for i in range(AH)]
            y0, y1 = vr(vK, 16), vr(vK + 16, 16)
            nm = 0
            for i, (c, kk) in enumerate(steps):
                a('s_waitcnt lgkmcnt(%d)' % sum(cnt[i + 1:]))
                b = vE + 12 * (i % NB)
                a('v_mfma_f32_32x32x16_bf16 %s, %s, %s, %s' % (y1, vr(b, 4), vr(b + 4, 4), '0' if i == 0 else y1))
                n = rd(i + AH) if i + AH < len(steps) else 0
                if c < 32: a('v_mfma_f32_32x32x16_bf16 %s, %s, %s, %s' % (y0, vr(b, 4), vr(b + 8, 4), '0' if i == 0 else y0))
                pm = nm; nm += 2 if c < 32 else 1
                if WO and nm // 6 != pm // 6:
                    j = wj['tr']; wj['tr'] += 1
                    if j >= 1 and j + 6 < 64: wdma(j + 6)
                    wtr(j); n += 2
                if chn == 1 and i % 8 == 4 and i < 64:
                    r = i // 8
                    a('v_add_u32 v%d, 0x%x, v%d' % (vT, r * 2048, vRow))
                    issue('q', 'buffer_load_dwordx4 %s, v%d, s[%d:%d], 0 offen' % (vr(vV + 4 * r, 4), vT, S_AQ, S_AQ + 3))
                cnt.append(n)
            for half in range(2):
                for q in range(4):
                    o = vK + 16 * half + 4 * q
                    for h in range(2): a('v_cvt_pk_bf16_f32 v%d, v%d, v%d' % (o + h, o + 2 * h, o + 1 + 2 * h))
                    a('ds_write_b64 v%d, %s offset:%d' % (vY, vr(o, 2), cb + half * 32 * 80 + q * 16))
        assert not WO or wj['tr'] == 64
        a('s_waitcnt vmcnt(0) lgkmcnt(0)')
        a('s_barrier')
        s.mark(8)
        yb = vK
        for ch in range(8): a('ds_read_b128 %s, v%d offset:%d' % (vr(yb + 4 * ch, 4), vW, ch * CH))
        a('s_lshl_b32 s%d, s%d, 21' % (sT0, sW))
        a('s_lshl_b32 s%d, s%d, 4' % (sT1, sD0))
        a('s_add_u32 s%d, s%d, s%d' % (sT0, sT0, sT1))
        bits(a, vRow, [(0, 6, 15)])
        a('s_waitcnt lgkmcnt(0)')
        for k in range(4):
            for cp in range(4):
                t = vE + 12 * (cp % 2)
                for e in range(2):
                    ch = 2 * cp + e
                    unpack(t + 4 * e, yb + 4 * ch + k)
                    unpack(t + 4 * e + 2, vKV + 4 * ch + k)
                    for h in range(2): a('v_fma_f32 v%d, v%d, v%d, v%d' % (t + 4 * e + h, t + 4 * e + 2 + h, vC + 32 + ch, t + 4 * e + h))
                for h in range(2):
                    q = vV + 4 * (2 * k + h) + cp
                    unpack(t + 8, q)
                    for e in range(2): a('v_mul_f32 v%d, v%d, v%d' % (t + 8 + e, t + 8 + e, t + 4 * e + h))
                    a('v_cvt_pk_bf16_f32 v%d, v%d, v%d' % (q, t + 8, t + 9))
            for h in range(2):
                a('buffer_store_dwordx4 %s, v%d, s[%d:%d], s%d offen' % (vr(vV + 4 * (2 * k + h), 4), vRow, S_OUT, S_OUT + 3, sT0))
                a('s_add_u32 s%d, s%d, 4096' % (sT0, sT0))

class Conv2:
    def mark(s, i): pass
    CH = 7600; L_H = 8 * 7600; HC = 4160
    def __init__(s, a): s.a = a
    def unpack(s, dst, src):
        s.a('v_lshlrev_b32 v%d, 16, v%d' % (dst, src))
        s.a('v_and_b32 v%d, 0xffff0000, v%d' % (dst + 1, src))
    P1R = (20, 21, 22, 140, 48, 64, 108, 172, 220)
    sP1 = 59
    S_AH = S_AH; S_AQ = S_AQ; sDv = 48
    def p1_load(s, S_SH):
        a = s.a
        vRow, vO, vT, vC, vR, vK, vV, vE, vP = s.P1R
        a('s_lshl_b32 s%d, s%d, 5' % (sT2, sTeam))
        a('s_add_u32 s%d, s%d, s%d' % (sT2, sT2, sMem))
        a('s_lshr_b32 s%d, s%d, 3' % (sT3, sT2))
        a('s_and_b32 s%d, s%d, 7' % (sT2, sT2))
        a('s_lshl_b32 s%d, s%d, 2' % (sT2, sT2))
        a('s_add_u32 s%d, s%d, s%d' % (sT2, sT2, sW))
        a('s_lshl_b32 s%d, s%d, 17' % (sT0, sT2))
        a('s_lshl_b32 s%d, s%d, 7' % (sT1, sT3))
        a('s_add_u32 s%d, s%d, s%d' % (sT0, sT0, sT1))
        bits(a, vRow, [(3, 3, 14), (0, 3, 4)], 's%d' % sT0)
        a('s_lshl_b32 s%d, s%d, 9' % (sT0, sT3))
        bits(a, vT, [(0, 3, 6)], 's%d' % sT0)
        for i in range(4): a('buffer_load_dwordx4 %s, v%d, s[%d:%d], 0 offen offset:%d' % (vr(vR + 4 * i, 4), vT, S_SH, S_SH + 3, 16 * i))
        for r in range(-3, 8):
            a('v_add_u32 v%d, 0x%x, v%d' % (vT + 1, (r * 2048) & 0xffffffff, vRow))
            a('buffer_load_dwordx4 %s, v%d, s[%d:%d], 0 offen' % (vr(vK + 4 * (r + 3), 4), vT + 1, S_AK, S_AK + 3))
        for r in range(8):
            a('v_add_u32 v%d, 0x%x, v%d' % (vT + 1, r * 2048, vRow))
            a('buffer_load_dwordx4 %s, v%d, s[%d:%d], 0 offen' % (vr(vV + 4 * r, 4), vT + 1, S_AV, S_AV + 3))
        a('s_lshl_b32 s%d, s%d, 18' % (sT0, sT3))
        a('s_lshl_b32 s%d, s%d, 7' % (sT1, sT2))
        a('s_add_u32 s%d, s%d, s%d' % (sT0, sT0, sT1))
        a('s_add_u32 s%d, s%d, 0x%x' % (s.sP1, sT0, WS_KVT))
        bits(a, vO, [(0, 3, 15), (3, 3, 4)])
    def p1_compute(s):
        a = s.a
        vRow, vO, vT, vC, vR, vK, vV, vE, vP = s.P1R
        for ch in range(8):
            for jp in range(2):
                src = vR + 2 * ch + jp
                a('v_lshlrev_b32 v%d, 16, v%d' % (vC + 8 * (2 * jp) + ch, src))
                a('v_and_b32 v%d, 0xffff0000, v%d' % (vC + 8 * (2 * jp + 1) + ch, src))
        for cp in range(4):
            kf = vE; ac = vE + 22; vf = vE + 38
            for r in range(11): s.unpack(kf + 2 * r, vK + 4 * r + cp)
            for r in range(8):
                a('v_pk_mul_f32 %s, %s, %s' % (vr(ac + 2 * r, 2), vr(kf + 2 * r, 2), vr(vC + 24 + 2 * cp, 2)))
            for j in (2, 1, 0):
                for r in range(8):
                    a('v_pk_fma_f32 %s, %s, %s, %s' % (vr(ac + 2 * r, 2), vr(kf + 2 * (r + 3 - j), 2), vr(vC + 8 * j + 2 * cp, 2), vr(ac + 2 * r, 2)))
            for r in range(8):
                s.unpack(vf + 2 * (r % 4), vV + 4 * r + cp)
                a('v_pk_mul_f32 %s, %s, %s' % (vr(ac + 2 * r, 2), vr(ac + 2 * r, 2), vr(vf + 2 * (r % 4), 2)))
            for e in range(2):
                ch = 2 * cp + e
                for k in range(4): a('v_cvt_pk_bf16_f32 v%d, v%d, v%d' % (vP + 4 * ch + k, ac + 4 * k + e, ac + 4 * k + 2 + e))
                a('buffer_store_dwordx4 %s, v%d, s[%d:%d], s%d offen sc1' % (vr(vP + 4 * ch, 4), vO, S_WS, S_WS + 3, s.sP1))
                a('s_add_u32 s%d, s%d, 4096' % (s.sP1, s.sP1))
    def hload(s, hi, sIdx):
        a = s.a
        vHl, vX, hw0 = 6, 7, 208
        a('s_lshl_b32 s%d, s%d, 15' % (sT1, sIdx))
        a('s_lshl_b32 s%d, s%d, 13' % (sT2, sW))
        a('s_add_u32 s%d, s%d, s%d' % (sT1, sT1, sT2))
        bits(a, vHl, [(0, 6, 4)], 's%d' % sT1)
        for ch in range(2):
            hw = hw0 + 24 * ch
            if ch: a('v_add_u32 v%d, 4096, v%d' % (vHl, vHl))
            a('v_subrev_u32 v%d, 8, v%d' % (vX, vHl))
            for i in range(4 if hi else 2):
                a('buffer_load_dwordx2 %s, v%d, s[%d:%d], 0 offen offset:%d' % (vr(hw + 6 * i, 2), vX if i == 0 else vHl, s.S_AH, s.S_AH + 3, 0 if i == 0 else i * 1024 - 8))
                a('buffer_load_dwordx4 %s, v%d, s[%d:%d], 0 offen offset:%d' % (vr(hw + 6 * i + 2, 4), vHl, s.S_AH, s.S_AH + 3, i * 1024))
    def core(s, wait_p1, hi, sIdx, pre_h=False):
        a = s.a
        CH, L_H, HC = s.CH, s.L_H, s.HC
        sD0, sCh = 45, 56
        vRow, vW, vG, vBp, vY, vHl, vHw, vR, vT = 1, 2, 3, 4, 5, 6, 7, 8, 10
        vKV = 32; vC = 64; vQ = 72; vK = 104; vE = 136; hw0 = 208
        NI = 4 if hi else 2
        tg = 'h' if hi else 'l'
        a('s_mov_b32 s%d, s%d' % (sD0, sIdx))
        if s.sDv == 48: a('s_load_dwordx2 s[74:75], s[0:1], %d' % KA['A_ssmD'])
        if not pre_h: s.hload(hi, sIdx)
        wait_p1()
        a('s_lshl_b32 s%d, s%d, 15' % (sT0, sD0))
        a('s_lshl_b32 s%d, s%d, 10' % (sT1, sW))
        a('s_add_u32 s%d, s%d, s%d' % (sT0, sT0, sT1))
        a('s_add_u32 s%d, s%d, 0x%x' % (sT0, sT0, WS_KVT))
        if not hi:
            a('s_cmp_lt_u32 s%d, 2' % sW)
            a('s_cselect_b32 s%d, s%d, 0x%x' % (sT0, sT0, WS_DUMP))
        a('v_lshlrev_b32 v%d, 4, v0' % vT)
        for ch in range(8):
            a('buffer_load_dwordx4 %s, v%d, s[%d:%d], s%d offen sc1' % (vr(vKV + 4 * ch, 4), vT, S_WS, S_WS + 3, sT0))
            a('s_add_u32 s%d, s%d, 4096' % (sT0, sT0))
        a('s_lshl_b32 s%d, s%d, 4' % (sT1, sD0))
        if s.sDv == 48:
            a('s_waitcnt lgkmcnt(0)')
            a('s_load_dwordx4 s[48:51], s[74:75], s%d' % sT1)
        a('s_lshl_b32 s%d, s%d, 19' % (sT0, sW))
        a('s_add_u32 s%d, s%d, s%d' % (sT0, sT0, sT1))
        if hi: a('s_add_u32 s%d, s%d, 0x200000' % (sT0, sT0))
        bits(a, vRow, [(0, 6, 13)], 's%d' % sT0)
        a('s_barrier')
        for i in range(4): a('v_mov_b32 v%d, 0' % (vT + 4 + i))
        a('s_lshl_b32 s%d, s%d, 10' % (sT0, sW))
        bits(a, vT, [(0, 6, 4)], 's%d' % sT0)
        a('v_cmp_gt_u32 vcc, 2480, v%d' % vT)
        a('s_and_saveexec_b64 s[72:73], vcc')
        for ch in range(8): a('ds_write_b128 v%d, %s offset:%d' % (vT, vr(vT + 4, 4), ch * CH))
        a('s_mov_b64 exec, 0xffff')
        a('s_mul_i32 s%d, s%d, %d' % (sT2, sW, 4 * HC))
        a('s_add_u32 s%d, s%d, %d' % (sT2, sT2, L_H))
        a('s_add_u32 s%d, s%d, 4096' % (sT0, sT2))
        bits(a, vT, [(2, 2, 12), (2, 2, 6), (0, 2, 4)], 's%d' % sT0)
        a('ds_write_b128 v%d, %s' % (vT, vr(vT + 4, 4)))
        a('s_mov_b64 exec, -1')
        a('s_mul_i32 s%d, s%d, %d' % (sT0, sW, 16 * 80))
        a('s_add_u32 s%d, s%d, %d' % (sT0, sT0, 31 * 80))
        bits(a, vW, [(2, 4, 6), (2, 4, 4), (0, 2, 4)], 's%d' % sT0)
        a('s_mul_i32 s%d, s%d, %d' % (sT0, sW, 8 * 80))
        a('s_add_u32 s%d, s%d, %d' % (sT0, sT0, (31 + 32 * hi) * 80))
        bits(a, vR, [(3, 3, 6), (3, 3, 4), (0, 3, 3)], 's%d' % sT0)
        a('v_and_b32 v%d, 31, v0' % vT)
        a('v_sub_u32 v%d, 31, v%d' % (vT, vT))
        a('v_and_b32 v%d, 3, v%d' % (vT + 1, vT))
        a('v_and_b32 v%d, 28, v%d' % (vT, vT))
        a('v_mul_u32_u24 v%d, %d, v%d' % (vT + 1, HC, vT + 1))
        a('v_lshl_add_u32 v%d, v%d, 1, v%d' % (vT, vT, vT + 1))
        bits(a, vG, [(5, 1, 4)], 's%d' % sT2)
        a('v_add_u32 v%d, v%d, v%d' % (vG, vG, vT))
        a('v_sub_u32 v%d, 63, v0' % vT)
        a('v_lshlrev_b32 v%d, 4, v%d' % (vT, vT))
        a('v_add_u32 v%d, s%d, v%d' % (vHw, sT2, vT))
        a('s_mul_i32 s%d, s%d, %d' % (sT1, sW, 2 * CH))
        bits(a, vBp, [(0, 5, 6), (0, 5, 4), (5, 1, 4)], 's%d' % sT1)
        a('s_add_u32 s%d, s%d, %d' % (sT1, sT1, (31 + 32 * hi) * 80))
        bits(a, vY, [(0, 5, 6), (0, 5, 4), (5, 1, 3)], 's%d' % sT1)
        a('s_mov_b32 s72, 0xffff')
        a('s_waitcnt vmcnt(0) lgkmcnt(0)')
        s.mark(6)
        for r in range(4):
            a('buffer_load_dwordx4 %s, v%d, s[%d:%d], 0 offen offset:%d' % (vr(vQ + 4 * r, 4), vRow, s.S_AQ, s.S_AQ + 3, (r % 2) * 2048))
            if r == 1: a('v_add_u32 v%d, 4096, v%d' % (vRow, vRow))
        for ch in range(8): a('ds_write_b128 v%d, %s offset:%d' % (vW, vr(vKV + 4 * ch, 4), ch * CH))
        for ch in range(8):
            if ch % 2 == 0: a('v_lshlrev_b32 v%d, 16, s%d' % (vC + ch, s.sDv + ch // 2))
            else:
                a('s_and_b32 s%d, s%d, 0xffff0000' % (sT0, s.sDv + ch // 2))
                a('v_mov_b32 v%d, s%d' % (vC + ch, sT0))
        a('s_waitcnt lgkmcnt(0)')
        a('s_barrier')
        for ch in range(8): a('ds_read_b64 %s, v%d offset:%d' % (vr(vKV + 2 * ch, 2), vR, ch * CH))
        a('s_mov_b32 s%d, 0' % sCh)
        a.label('L_cv2' + tg)
        hw = hw0
        a('v_cmp_ne_u32 vcc, 0, v0')
        for k in range(2): a('v_cndmask_b32 v%d, 0, v%d, vcc' % (hw + k, hw + k))
        for i in range(NI):
            wv = lambda idx: hw + 6 * i + 2 + idx
            for r in range(4):
                o = vE + 16 * (i % 2) + 4 * r
                for k in range(4):
                    if r % 2 == 0:
                        x = wv((6 - r - 2 * k) // 2)
                        a('v_alignbit_b32 v%d, v%d, v%d, 16' % (o + k, x, x))
                    else:
                        e0 = (7 - r - 2 * k) // 2
                        a('v_bfi_b32 v%d, s72, v%d, v%d' % (o + k, wv(e0), wv(e0 - 1)))
                a('ds_write_b128 v%d, %s offset:%d' % (vHw, vr(o, 4), r * HC + (3 - i) * 1024))
            a('s_waitcnt lgkmcnt(4)')
        a('s_waitcnt lgkmcnt(0)')
        a('s_barrier')
        steps = [(c, kk) for c in range(64 if hi else 32) for kk in range(2)]
        NB, AH = 6, 4
        n = len(steps)
        def rd(i):
            c, kk = steps[i]; m = 2 * c - kk; b = vE + 8 * (i % NB)
            return (['ds_read_b64 %s, v%d offset:%d' % (vr(b + 2 * h, 2), vG, (126 - m) * 32 + 8 * h) for h in range(2)] +
                    ['ds_read_b128 %s, v%d offset:%d' % (vr(b + 4, 4), vBp, (31 + 32 * hi - c) * 80 + kk * 32)])
        for i in range(AH):
            for x in rd(i): a(x)
        y = vr(vK, 16)
        for i in range(n):
            a('s_waitcnt lgkmcnt(%d)' % (3 * min(AH - 1, n - 1 - i)))
            b = vE + 8 * (i % NB)
            a('v_mfma_f32_32x32x16_bf16 %s, %s, %s, %s' % (y, vr(b, 4), vr(b + 4, 4), '0' if i == 0 else y))
            if i + AH < n:
                for x in rd(i + AH): a(x)
            if i < 6 * NI: a('v_mov_b32 v%d, v%d' % (hw + i, hw + 24 + i))
        for q in range(4):
            o = vK + 4 * q
            for h in range(2): a('v_cvt_pk_bf16_f32 v%d, v%d, v%d' % (o + h, o + 2 * h, o + 1 + 2 * h))
            a('ds_write_b64 v%d, %s offset:%d' % (vY, vr(o, 2), q * 16))
        a('v_add_u32 v%d, %d, v%d' % (vBp, CH, vBp))
        a('v_add_u32 v%d, %d, v%d' % (vY, CH, vY))
        a('s_add_u32 s%d, s%d, 1' % (sCh, sCh))
        a('s_cmp_lt_u32 s%d, 2' % sCh)
        a('s_cbranch_scc1 L_cv2' + tg)
        a('s_waitcnt lgkmcnt(0)')
        a('s_barrier')
        s.mark(8)
        yb = vK
        for ch in range(8): a('ds_read_b64 %s, v%d offset:%d' % (vr(yb + 2 * ch, 2), vR, ch * CH))
        a('s_lshl_b32 s%d, s%d, 20' % (sT0, sW))
        a('s_lshl_b32 s%d, s%d, 4' % (sT1, sD0))
        a('s_add_u32 s%d, s%d, s%d' % (sT0, sT0, sT1))
        if hi: a('s_add_u32 s%d, s%d, 0x400000' % (sT0, sT0))
        bits(a, vRow, [(0, 6, 14)])
        a('s_waitcnt vmcnt(0) lgkmcnt(0)')
        for k in range(2):
            for cp in range(4):
                t = vE + 12 * (cp % 2)
                for e in range(2):
                    ch = 2 * cp + e
                    s.unpack(t + 4 * e, yb + 2 * ch + k)
                    s.unpack(t + 4 * e + 2, vKV + 2 * ch + k)
                    for h in range(2): a('v_fma_f32 v%d, v%d, v%d, v%d' % (t + 4 * e + h, t + 4 * e + 2 + h, vC + ch, t + 4 * e + h))
                for h in range(2):
                    q = vQ + 4 * (2 * k + h) + cp
                    s.unpack(t + 8, q)
                    for e in range(2): a('v_mul_f32 v%d, v%d, v%d' % (t + 8 + e, t + 8 + e, t + 4 * e + h))
                    a('v_cvt_pk_bf16_f32 v%d, v%d, v%d' % (q, t + 8, t + 9))
            for h in range(2):
                a('buffer_store_dwordx4 %s, v%d, s[%d:%d], s%d offen' % (vr(vQ + 4 * (2 * k + h), 4), vRow, S_OUT, S_OUT + 3, sT0))
                a('s_add_u32 s%d, s%d, 4096' % (sT0, sT0))
```

```python
import math, struct
from ag import *
from common import *

def f2u(x): return struct.unpack('<I', struct.pack('<f', x))[0]

L_R, L_P, L_KX, L_VX = 0, 20480, 32768, 65536
R_W, R_T, R_G = 4864, 776, 192
L_END = 131072
QKV_G = 12288
QKV_SLOT = 16 * QKV_G
PART_SLOT = 524288
WS_PART = 160 * MB
MT_SLOT = 131072

S_WS, S_WQ, S_WK, S_WV, S_WO, S_M0, S_DBG = 4, 8, 12, 16, 20, 24, 28
sW, sX, sC, sG, sJ, sStep, sLocal, sTmo = 32, 33, 34, 35, 36, 37, 38, 39
sQKst, sVst, sPARTst, sREDld, sMTst, sMTld, sCld, sKVMst, sKVoff = 40, 41, 42, 43, 44, 45, 46, 47, 48
sT0, sT1, sT2, sT3 = 49, 50, 51, 52
sA, sB, sCc, sD, sE, sF, sH = 53, 54, 55, 56, 57, 58, 59
sHiMask = 60
sTS = 62
sPrev = 64
sLdsC = 65
sScale = 66
sAcc = 68
sWarm = 84
sStMask = 86
sP = 88
sKst = 96
sK2 = 97
vL16, vL4, vRw, vRr, vRr2, vPw, vPw2, vKX, vVX, vIdx, vGate, vRed, vMld, vMst = range(1, 15)
vT = 16
vSent = 28
vD = 32
vU = 64
vWo2 = 128
vM = 192
vF = 224
vSel = 240
vK = 64
vX = 96

def wo(tt, off, n):
    return ar(192 + 32 * tt + off, n) if tt < 2 else vr(vWo2 + 32 * (tt - 2) + off, n)

class Chain:
    def __init__(s, a, prof=False, nsteps=64, opt=None):
        s.a = a; s.prof = prof; s.nsteps = nsteps; s.opt = opt or {}
        s.NX = s.opt.get('NX', 4); s.NP = s.NX // 4
    def stamp(s, i):
        a = s.a
        if s.opt.get('trace'):
            if i in s.opt['trace']:
                a('s_memrealtime s[%d:%d]' % (sTS, sTS + 1))
                a('s_waitcnt lgkmcnt(0)')
                a('s_mov_b32 m0, s%d' % sStep)
                a('s_nop 0')
                a('v_writelane_b32 v%d, s%d, m0' % (244 + i, sTS))
            return
        if not s.prof: return
        if s.opt.get('gprof') is not None:
            if i < 20: return
            i -= 20
        elif i >= 20: return
        a('s_memtime s[%d:%d]' % (sTS, sTS + 1))
        a('s_waitcnt lgkmcnt(0)')
        a('s_sub_u32 s%d, s%d, s%d' % (sTS + 1, sTS, sPrev))
        a('s_add_u32 s%d, s%d, s%d' % (sAcc + i, sAcc + i, sTS + 1))
        a('s_mov_b32 s%d, s%d' % (sPrev, sTS))
    def count(s, i):
        if s.prof: s.a('s_add_u32 s%d, s%d, 1' % (sAcc + i, sAcc + i))
    def st(s, data, voff, soff, off=0, n=1, sc1=True):
        op = {1: 'buffer_store_dword', 2: 'buffer_store_dwordx2', 4: 'buffer_store_dwordx4'}[n]
        s.a('%s %s, v%d, s[%d:%d], s%d offen offset:%d%s' % (op, vr(data, n), voff, S_WS, S_WS + 3, soff, off, ' sc1' if sc1 else ''))
    def lst(s, data, voff, soff, off=0, n=1): s.st(data, voff, soff, off, n, sc1=not s.local)
    def dma(s, soff, off, voff=vL16): s.a('buffer_load_dwordx4 v%d, s[%d:%d], s%d offen offset:%d sc1 lds' % (voff, S_WS, S_WS + 3, soff, off))
    def delay(s, key):
        for i in range(s.opt.get(key, 0)): s.a('s_nop 7')
    def tmo(s, retry):
        a = s.a
        a('s_sub_u32 s%d, s%d, 1' % (sTmo, sTmo))
        a('s_cbranch_scc0 %s' % retry)
        a('s_branch L_chain_fail')
    def maxtree(s, base, n, dst, first=True):
        a = s.a
        i = 0
        if first:
            a('v_max3_u32 v%d, v%d, v%d, v%d' % (dst, base, base + 1, base + 2)); i = 3
        while i + 1 < n:
            a('v_max3_u32 v%d, v%d, v%d, v%d' % (dst, dst, base + i, base + i + 1)); i += 2
        if i < n: a('v_max_u32 v%d, v%d, v%d' % (dst, dst, base + i))
    def halfsum(s, d, dst=None):
        s.a('v_pk_add_f32 %s, %s, %s' % (vr(d if dst is None else dst, 2), vr(d, 2), vr(d + 2, 2)))
    def zero(s, regs):
        regs = list(regs)
        for i in range(0, len(regs), 2):
            assert regs[i] % 2 == 0 and regs[i + 1] == regs[i] + 1
            s.a('v_mov_b64 %s, 0' % vr(regs[i], 2))
    def hopb_s1(s, tag, tail=None, after=()):
        if not s.opt.get('tree', True): return s.hopb_seq(tag, tail)
        a = s.a
        def ld(u): a('buffer_load_dwordx4 %s, v%d, s[%d:%d], s%d offen offset:%d sc1' % (vr(vM + 4 * u, 4), vMld, S_WS, S_WS + 3, sH, u * 1024))
        def chk(u, n):
            return ['s_waitcnt vmcnt(%d)' % n,
                    'v_max3_u32 v%d, v%d, v%d, v%d' % (vT, vM + 4 * u, vM + 4 * u + 1, vM + 4 * u + 2),
                    'v_max_u32 v%d, v%d, v%d' % (vT, vT, vM + 4 * u + 3),
                    'v_cmp_eq_u32 vcc, -1, v%d' % vT]
        def mf(u, t6): a('v_smfmac_f32_16x16x64_bf16 %s, %s, %s, v%d' % (vr(vD + 4 * t6, 4), vr(vM + 4 * u, 4), ar((t6 * 4 + u) * 8, 8), vIdx))
        nm = lambda kind, F, R: 'L_b%s_%s_%s_%s' % (kind, ''.join(map(str, F)), ''.join(map(str, R)), tag)
        todo, seen = [], set()
        def want(kind, F, R):
            key = (kind, F, R)
            if key not in seen: seen.add(key); todo.append(key)
            return nm(kind, F, R)
        def chain(F, R):
            while True:
                u, rest = R[0], R[1:]
                a('s_cbranch_vccnz %s' % want('f', F + (u,), rest))
                if rest:
                    c = chk(rest[0], len(rest) - 1)
                    mf(u, 0); mf(u, 1); a(c[0]); a(c[1]); mf(u, 2); a(c[2]); a(c[3]); mf(u, 3); mf(u, 4); mf(u, 5)
                    R = rest
                    continue
                if F:
                    for x in F: ld(x)
                    for t6 in range(6): mf(u, t6)
                    a('s_branch %s' % want('c', (), F))
                else:
                    for t6 in range(6): mf(u, t6)
                    a('s_branch L_loop_%s' % tag)
                return
        for u in range(4): ld(u)
        for x in after: a(x)
        seen.add(('c', (), (0, 1, 2, 3)))
        a.label(nm('c', (), (0, 1, 2, 3)))
        for x in chk(0, 3): a(x)
        chain((), (0, 1, 2, 3))
        def stubs():
            while todo:
                kind, F, R = todo.pop(0)
                if kind == 'c' and (kind, F, R, 'done') in seen: continue
                a.label(nm(kind, F, R))
                if kind == 'f' and not R:
                    for x in F: ld(x)
                    s.count(11)
                    a('s_sub_u32 s%d, s%d, 1' % (sTmo, sTmo))
                    a('s_cbranch_scc1 L_chain_fail')
                    if ('c', (), F) in emitted:
                        a('s_branch %s' % nm('c', (), F))
                        continue
                    seen.add(('c', (), F)); seen.add(('c', (), F, 'done'))
                    a.label(nm('c', (), F))
                    F, R = (), F
                    kind = 'c'
                if kind == 'c': emitted.add(('c', F, R))
                for x in chk(R[0], len(R) - 1): a(x)
                chain(F, R)
        emitted = {('c', (), (0, 1, 2, 3))}
        return stubs
    def hopb_seq(s, tag, tail=None):
        a = s.a
        def ld(u): a('buffer_load_dwordx4 %s, v%d, s[%d:%d], s%d offen offset:%d sc1' % (vr(vM + 4 * u, 4), vMld, S_WS, S_WS + 3, sH, u * 1024))
        def chk(u):
            return ['s_waitcnt vmcnt(%d)' % (3 - u),
                    'v_max3_u32 v%d, v%d, v%d, v%d' % (vT, vM + 4 * u, vM + 4 * u + 1, vM + 4 * u + 2),
                    'v_max_u32 v%d, v%d, v%d' % (vT, vT, vM + 4 * u + 3),
                    'v_cmp_eq_u32 vcc, -1, v%d' % vT]
        def mf(u, t6): a('v_smfmac_f32_16x16x64_bf16 %s, %s, %s, v%d' % (vr(vD + 4 * t6, 4), vr(vM + 4 * u, 4), ar((t6 * 4 + u) * 8, 8), vIdx))
        for u in range(4): ld(u)
        for x in chk(0): a(x)
        for u in range(4):
            a('s_cbranch_vccnz L_b%d_retry_%s' % (u, tag))
            a.label('L_b%d_ok_%s' % (u, tag))
            if u < 3:
                c = chk(u + 1)
                mf(u, 0); mf(u, 1); a(c[0]); a(c[1]); mf(u, 2); a(c[2]); a(c[3]); mf(u, 3); mf(u, 4); mf(u, 5)
            else:
                for t6 in range(6):
                    mf(u, t6)
                    if tail and t6 < len(tail): tail[t6]()
        a('s_branch L_loop_%s' % tag)
        def stubs():
            for u in range(4):
                a.label('L_b%d_retry_%s' % (u, tag))
                s.count(11)
                a('s_sub_u32 s%d, s%d, 1' % (sTmo, sTmo))
                a('s_cbranch_scc1 L_chain_fail')
                for uu in range(u, 4): ld(uu)
                for x in chk(u): a(x)
                a('s_cbranch_vccnz L_b%d_retry_%s' % (u, tag))
                a('s_branch L_b%d_ok_%s' % (u, tag))
        return stubs
    def s1unit(s, u, base=vM):
        for t6 in range(6):
            s.a('v_smfmac_f32_16x16x64_bf16 %s, %s, %s, v%d' % (vr(vD + 4 * t6, 4), vr(base + 4 * u, 4), ar((t6 * 4 + u) * 8, 8), vIdx))
    def ux(s, hooks=None):
        a = s.a
        hooks = hooks or {}
        seq = [(hl, tau, t) for hl in range(2) for tau in range(2) for t in range(4)]
        def rd(i):
            hl, tau, t = seq[i]
            a('ds_read_b128 %s, v%d offset:%d' % (vr(vM + 4 * (i % 8), 4), vVX, hl * 8192 + tau * 4096 + t * 1024))
        for i in range(6): rd(i)
        def cvt(gi, tt, h):
            hl, tau = gi // 2, gi % 2
            d = vD + 16 * (gi % 2) + 4 * tt
            u = vU + 16 * tt + 8 * hl + 2 * tau
            a('v_cvt_pk_bf16_f32 v%d, v%d, v%d' % (u + h, d + 2 * h, d + 2 * h + 1))
        n = 0
        for i, (hl, tau, t) in enumerate(seq):
            if i + 6 < 16: rd(i + 6)
            a('s_waitcnt lgkmcnt(%d)' % min(6, 15 - i))
            gi = i // 4
            for tt in range(4):
                if n in hooks: hooks[n]()
                n += 1
                d = vD + 16 * (gi % 2) + 4 * tt
                if s.opt.get('noux') and hooks: a('s_nop 3')
                else: a('v_mfma_f32_16x16x32_bf16 %s, %s, %s, %s' % (vr(d, 4), vr(vM + 4 * (i % 8), 4), wo(tt, 16 * hl + 4 * t, 4), '0' if t == 0 else vr(d, 4)))
                if gi > 0 and t >= 2: cvt(gi - 1, tt, t - 2)
        for tt in range(4):
            for h in range(2): cvt(3, tt, h)
        a('v_xor_b32 v%d, 0x4000, v%d' % (vVX, vVX))
    def dma_kv(s, sSeg, wsbase, lds):
        a = s.a
        a('s_lshl_b32 s%d, s%d, 18' % (sT0, sSeg))
        a('s_add_u32 s%d, s%d, s%d' % (sT0, sT0, sKVoff))
        a('s_and_b32 s%d, s%d, 1' % (sT1, sW))
        a('s_lshl_b32 s%d, s%d, 13' % (sT1, sT1))
        a('s_add_u32 s%d, s%d, %s' % (sT1, sT1, lds))
        for tau in range(2):
            a('s_add_u32 s%d, s%d, 0x%x' % (sT0, sT0, wsbase if tau == 0 else 131072))
            a('s_add_u32 m0, s%d, %d' % (sT1, tau * 4096))
            for t in range(4): s.dma(sT0, t * 1024)
    def bits(s, dst, terms, init=None):
        a = s.a
        first = init is None
        if not first: a('v_mov_b32 v%d, %s' % (dst, init))
        for (src, n, sh) in terms:
            a('v_bfe_u32 v%d, v0, %d, %d' % (vT + 11, src, n))
            if first: a('v_lshlrev_b32 v%d, %d, v%d' % (dst, sh, vT + 11)); first = False
            else: a('v_lshl_add_u32 v%d, v%d, %d, v%d' % (dst, vT + 11, sh, dst))
    def init(s):
        a = s.a
        a('s_and_b32 s%d, s2, 7' % sX)
        a('s_lshr_b32 s%d, s2, 3' % sC)
        a('s_and_b32 s%d, s%d, 7' % (sJ, sC))
        a('s_lshr_b32 s%d, s%d, 3' % (sG, sC))
        a('s_mul_i32 s%d, s%d, %d' % (sT0, sX, 16 // s.NX))
        a('s_add_u32 s%d, s%d, s%d' % (sG, sG, sT0))
        s.get_wave()
        vA, vB = vT + 8, vT + 9
        a('s_bitcmp1_b32 s%d, 1' % sJ)
        a('s_cselect_b64 s[%d:%d], s[%d:%d], s[%d:%d]' % (sP, sP + 1, S_WK, S_WK + 1, S_WQ, S_WQ + 1))
        a('s_mov_b32 s%d, 0x%x' % (sP + 2, 8 * MB)); a('s_mov_b32 s%d, 0x20000' % (sP + 3))
        s.bits(vA, [(3, 3, 13), (0, 3, 4)])
        a('s_lshl_b32 s%d, s%d, 9' % (sA, sG))
        a('s_lshl_b32 s%d, s%d, 21' % (sT0, sW))
        a('s_add_u32 s%d, s%d, s%d' % (sA, sA, sT0))
        a('s_lshr_b32 s%d, s%d, 2' % (sT0, sJ))
        a('s_lshl_b32 s%d, s%d, 8' % (sT0, sT0))
        a('s_and_b32 s%d, s%d, 1' % (sT1, sJ))
        a('s_lshl_b32 s%d, s%d, 7' % (sT1, sT1))
        a('s_add_u32 s%d, s%d, s%d' % (sT0, sT0, sT1))
        a('s_add_u32 s%d, s%d, s%d' % (sT0, sT0, sA))
        a('s_lshl_b32 s%d, s%d, 15' % (sT1, sW))
        for i in range(32):
            a('s_add_u32 m0, s%d, %d' % (sT1, i * 1024))
            a('buffer_load_dwordx4 v%d, s[%d:%d], s%d offen%s lds' % (vA, sP, sP + 3, sT0, s.nt(S_WQ)))
            a('s_add_u32 s%d, s%d, 0x10000' % (sT0, sT0))
        a('s_xor_b32 s%d, s%d, 4' % (sB, sJ))
        a('s_lshl_b32 s%d, s%d, 6' % (sT0, sB))
        a('s_add_u32 s%d, s%d, s%d' % (sT0, sT0, sA))
        s.bits(vA, [(2, 4, 13), (0, 2, 4)])
        for i in range(16):
            a('buffer_load_dwordx4 %s, v%d, s[%d:%d], s%d offen%s' % (vr(64 + 4 * i, 4), vA, S_WV, S_WV + 3, sT0, s.nt(S_WV)))
            a('s_add_u32 s%d, s%d, 0x20000' % (sT0, sT0))
        a('s_lshl_b32 s%d, s%d, 8' % (sT0, sJ))
        s.bits(vA, [(4, 2, 11), (0, 4, 4)], 's%d' % sT0)
        a('s_lshl_b32 s%d, s%d, 19' % (sT0, sG))
        a('s_lshl_b32 s%d, s%d, 17' % (sT1, sW))
        a('s_add_u32 s%d, s%d, s%d' % (sT0, sT0, sT1))
        for i in range(14):
            a('buffer_load_dwordx4 %s, v%d, s[%d:%d], s%d offen%s' % (vr(128 + 4 * i, 4), vA, S_WO, S_WO + 3, sT0, s.nt(S_WO)))
            a('s_add_u32 s%d, s%d, 8192' % (sT0, sT0))
        a('s_mov_b32 s%d, s%d' % (sH, sT0))
        a('s_mov_b32 s%d, 0x%x' % (sTmo, 400000))
        for i in range(2): a('s_mov_b32 s%d, 0x%x' % (sScale + i, f2u(math.log2(math.e) / math.sqrt(128))))
        for i in range(2): a('s_mov_b32 s%d, 0xcccccccc' % (sHiMask + i))
        for i in range(2): a('s_mov_b32 s%d, 0x00ff00ff' % (sStMask + i))
        a('v_lshlrev_b32 v%d, 4, v0' % vL16)
        a('v_lshlrev_b32 v%d, 2, v0' % vL4)
        for i in range(4): a('v_mov_b32 v%d, -1' % (vSent + i))
        a('v_mov_b32 v%d, 0x4444' % vT)
        a('v_mov_b32 v%d, 0xeeee' % (vT + 1))
        a('v_cndmask_b32 v%d, v%d, v%d, s[%d:%d]' % (vIdx, vT, vT + 1, sHiMask, sHiMask + 1))
        s.bits(vGate, [(0, 6, 7)])
        s.bits(vRed, [(4, 1, 12), (5, 1, 14), (0, 4, 4)])
        s.bits(vMld, [(2, 2, 8), (4, 2, 6), (0, 2, 4)])
        a('s_mul_i32 s%d, s%d, %d' % (sT0, sW, R_W))
        s.bits(vRw, [(0, 4, 3), (4, 2, 7), (4, 2, 6)], 's%d' % sT0)
        a('s_lshr_b32 s%d, s%d, 1' % (sT0, sW))
        a('s_mul_i32 s%d, s%d, %d' % (sT0, sT0, 2 * R_T))
        a('s_and_b32 s%d, s%d, 1' % (sT1, sW))
        a('s_lshl_b32 s%d, s%d, 6' % (sT1, sT1))
        a('s_add_u32 s%d, s%d, s%d' % (sT0, sT0, sT1))
        s.bits(vRr, [(0, 1, 9), (0, 1, 8), (0, 1, 3), (4, 2, 7), (4, 2, 6), (1, 1, 5), (3, 1, 4), (2, 1, 2)], 's%d' % sT0)
        a('v_add_u32 v%d, 8, v%d' % (vRr2, vRr))
        a('v_bfe_u32 v%d, v0, 2, 1' % vT)
        a('v_lshlrev_b32 v%d, 4, v%d' % (vT, vT))
        a('v_mov_b32 v%d, 0x3f80' % (vT + 1))
        a('v_lshlrev_b32 v%d, v%d, v%d' % (vT, vT, vT + 1))
        a('v_bfe_u32 v%d, v0, 0, 2' % (vT + 1))
        for k in range(4):
            a('v_cmp_eq_u32 vcc, %d, v%d' % (k, vT + 1))
            a('v_cndmask_b32 v%d, 0, v%d, vcc' % (vSel + k, vT))
        a('s_and_b32 s%d, s%d, 1' % (sT3, sW))
        a('s_lshl_b32 s%d, s%d, 10' % (sT0, sT3))
        a('s_add_u32 s%d, s%d, %d' % (sT0, sT0, L_P))
        a('v_add_u32 v%d, s%d, v%d' % (vPw, sT0, vL4))
        s.bits(vPw2, [(2, 4, 4), (0, 1, 3), (1, 1, 2)], 's%d' % sT0)
        lh = a.newlabel('Li')
        a('s_cmp_lt_u32 s%d, 2' % sW)
        a('s_cbranch_scc1 %s' % lh)
        s.bits(vPw, [(5, 1, 9), (3, 1, 8), (0, 2, 6), (4, 1, 5), (2, 1, 3)], str(L_P))
        a('v_add_u32 v%d, %d, v%d' % (vPw2, 2 * R_T, vRr))
        a('v_add_u32 v%d, %d, v%d' % (vRed, 2 * R_T + 8, vRr))
        a.label(lh)
        a('s_lshl_b32 s%d, s%d, 13' % (sT0, sT3))
        a('s_add_u32 s%d, s%d, %d' % (sT0, sT0, L_KX))
        a('s_mov_b32 s%d, s%d' % (sLdsC, sT0))
        s.bits(vKX, [(2, 4, 6), (0, 1, 5), (1, 1, 4)], 's%d' % sT0)
        a('v_add_u32 v%d, %d, v%d' % (vVX, L_VX, vL16))
        a('s_mul_i32 s%d, s%d, %d' % (sCld, sG, QKV_G))
        a('s_add_u32 s%d, s%d, 0x%x' % (sCld, sCld, WS_QKV))
        a('s_lshl_b32 s%d, s%d, 10' % (sT0, sJ))
        a('s_lshl_b32 s%d, s%d, 8' % (sT1, sW))
        a('s_add_u32 s%d, s%d, s%d' % (sT0, sT0, sT1))
        a('s_add_u32 s%d, s%d, s%d' % (sQKst, sCld, sT0))
        a('s_lshl_b32 s%d, s%d, 13' % (sT2, sG))
        a('s_add_u32 s%d, s%d, 0x%x' % (sT2, sT2, WS_KVM))
        a('s_add_u32 s%d, s%d, s%d' % (sKst, sT2, sT0))
        a('s_sub_u32 s%d, s%d, 2048' % (sKst, sKst))
        a('s_bitcmp1_b32 s%d, 1' % sJ)
        a('s_cselect_b32 s%d, s%d, 0x%x' % (sKst, sKst, WS_DUMP))
        a('s_lshl_b32 s%d, s%d, 9' % (sT0, sB))
        a('s_lshl_b32 s%d, s%d, 8' % (sT1, sT3))
        a('s_add_u32 s%d, s%d, s%d' % (sT0, sT0, sT1))
        a('s_add_u32 s%d, s%d, s%d' % (sVst, sCld, sT0))
        a('s_add_u32 s%d, s%d, 8192' % (sVst, sVst))
        a('s_and_b32 s%d, s%d, 2048' % (sT1, sT0))
        a('s_add_u32 s%d, s%d, s%d' % (sT0, sT0, sT1))
        a('s_add_u32 s%d, s%d, s%d' % (sKVMst, sT2, sT0))
        a('s_min_u32 s%d, s%d, 2' % (sT0, sW))
        a('s_lshl_b32 s%d, s%d, 12' % (sT0, sT0))
        a('s_add_u32 s%d, s%d, s%d' % (sCld, sCld, sT0))
        a('s_lshl_b32 s%d, s%d, 1' % (sT0, sJ))
        a('s_add_u32 s%d, s%d, s%d' % (sT0, sT0, sT3))
        a('s_lshl_b32 s%d, s%d, 15' % (sT0, sT0))
        a('s_and_b32 s%d, s%d, 8' % (sT1, sG))
        a('s_add_u32 s%d, s%d, s%d' % (sT1, sT1, sG))
        a('s_lshl_b32 s%d, s%d, 10' % (sT1, sT1))
        a('s_add_u32 s%d, s%d, s%d' % (sPARTst, sT0, sT1))
        a('s_add_u32 s%d, s%d, 0x%x' % (sPARTst, sPARTst, WS_PART))
        a('s_lshl_b32 s%d, s%d, 1' % (sT0, sC))
        a('s_add_u32 s%d, s%d, s%d' % (sT0, sT0, sT3))
        a('s_mul_i32 s%d, s%d, %d' % (sT0, sT0, s.NP))
        GL = s.opt.get('glob')
        if GL:
            a('s_lshr_b32 s%d, s%d, 1' % (sT0, sC))
            a('s_lshl4_add_u32 s%d, s%d, s%d' % (sT0, sX, sT0))
        if s.NP == 2: a('v_lshlrev_b32 v%d, 3, v0' % vMst)
        a('s_lshr_b32 s%d, s%d, 2' % (sT1, sT0))
        a('s_lshl_b32 s%d, s%d, 15' % (sREDld, sT1))
        a('s_and_b32 s%d, s%d, 3' % (sT1, sT0))
        a('s_lshl_b32 s%d, s%d, 8' % (sT1, sT1))
        a('s_add_u32 s%d, s%d, s%d' % (sREDld, sREDld, sT1))
        a('s_add_u32 s%d, s%d, 0x%x' % (sREDld, sREDld, WS_PART))
        a('s_lshl_b32 s%d, s%d, 14' % (sMTld, sX))
        a('s_add_u32 s%d, s%d, 0x%x' % (sMTld, sMTld, WS_MT))
        a('s_lshl_b32 s%d, s%d, 8' % (sT0, sT0))
        a('s_add_u32 s%d, s%d, s%d' % (sMTst, sMTld, sT0))
        if GL:
            a('s_and_b32 s%d, s%d, 8192' % (sT1, sT0))
            a('s_add_u32 s%d, s%d, s%d' % (sT0, sT0, sT1))
            a('s_add_u32 s%d, s%d, 0x%x' % (sMTst, sT0, WS_PART + 36 * MB))
            a('s_lshr_b32 s%d, s%d, 1' % (sT0, sW))
            a('s_lshl_b32 s%d, s%d, 13' % (sT0, sT0))
            a('s_add_u32 s%d, s%d, s%d' % (sMTst, sMTst, sT0))
            a('s_add_u32 s%d, s%d, 0x%x' % (sMTld, sT0, WS_PART + 36 * MB))
        a('s_lshl_b32 s%d, s%d, 12' % (sT0, sW))
        a('s_add_u32 s%d, s%d, s%d' % (sMTld, sMTld, sT0))
        a('s_lshl_b32 s%d, s%d, 1' % (sKVoff, sG))
        a('s_add_u32 s%d, s%d, s%d' % (sKVoff, sKVoff, sT3))
        a('s_lshl_b32 s%d, s%d, 12' % (sKVoff, sKVoff))
        a('s_and_b32 s%d, s%d, 1' % (sT0, sJ))
        a('s_lshl_b32 s%d, s%d, 12' % (sT0, sT0))
        a('s_lshl_b32 s%d, s%d, 13' % (sWarm, sG))
        a('s_add_u32 s%d, s%d, s%d' % (sWarm, sWarm, sT0))
        a('s_bfe_u32 s%d, s%d, 0x10001' % (sT0, sJ))
        a('s_lshl_b32 s%d, s%d, 17' % (sT0, sT0))
        a('s_add_u32 s%d, s%d, s%d' % (sWarm, sWarm, sT0))
        a('s_lshr_b32 s%d, s%d, 2' % (sT0, sJ))
        a('s_mul_i32 s%d, s%d, 0x%x' % (sT0, sT0, WS_VF - WS_KF + 262144))
        a('s_add_u32 s%d, s%d, s%d' % (sWarm, sWarm, sT0))
        a('s_add_u32 s%d, s%d, 0x%x' % (sWarm, sWarm, WS_KF + 2 * 262144))
        a('s_lshl_b32 s%d, s%d, 11' % (sT0, sT3))
        a('s_add_u32 s%d, s%d, s%d' % (sWarm, sWarm, sT0))
        a('s_lshl_b32 s%d, s%d, 15' % (sT0, sW))
        s.bits(vB, [(0, 2, 3), (4, 1, 11), (5, 1, 8), (2, 2, 6)], 's%d' % sT0)
        s.bits(vT + 10, [(0, 2, 3), (4, 1, 12), (5, 1, 9), (2, 2, 7)], 's%d' % sT0)
        a('v_add_u32 v%d, s%d, v%d' % (vT + 7, sT0, vL16))
        def tr_w1(vaddr, t0, nt, rowb, Tls=range(4)):
            for Tl in Tls:
                for tl in range(nt):
                    for v in range(4):
                        a('ds_read_b64_tr_b16 %s, v%d offset:%d' % (ar(((t0 + tl) * 4 + Tl) * 8 + 2 * v, 2), vaddr, (Tl * 64 + 8 * (v // 2) + 16 * (v % 2)) * rowb + tl * 32))
                    a('s_waitcnt lgkmcnt(4)')
            a('s_waitcnt lgkmcnt(0)')
        s.mark(5)
        a('s_waitcnt vmcnt(46)')
        s.mark(6)
        s.verify()
        for i in range(14, 16):
            a('buffer_load_dwordx4 %s, v%d, s[%d:%d], s%d offen%s' % (vr(128 + 4 * i, 4), vA, S_WO, S_WO + 3, sH, s.nt(S_WO)))
            a('s_add_u32 s%d, s%d, 8192' % (sH, sH))
        a('s_and_b32 s%d, s%d, 15' % (sA, sC))
        a('s_lshl_b32 s%d, s%d, 16' % (sA, sA))
        a('s_lshr_b32 s%d, s%d, 4' % (sT1, sC))
        a('s_lshl2_add_u32 s%d, s%d, s%d' % (sT1, sT1, sX))
        a('s_lshl_b32 s%d, s%d, 7' % (sT1, sT1))
        a('s_add_u32 s%d, s%d, s%d' % (sA, sA, sT1))
        a('s_add_u32 s%d, s%d, 0x%x' % (sA, sA, WS_PART + 66 * PART_SLOT))
        a('v_and_b32 v%d, 15, v0' % (vT + 1))
        a('v_lshlrev_b32 v%d, 12, v%d' % (vT + 1, vT + 1))
        a('s_cmp_eq_u32 s%d, 1' % sW)
        a('s_cselect_b32 s%d, s%d, s%d' % (sA, sA, sVst))
        a('s_cselect_b64 vcc, -1, 0')
        a('v_cndmask_b32 v%d, v%d, v%d, vcc' % (vT + 1, vL4, vT + 1))
        for slot in range(4):
            a('s_add_u32 s%d, s%d, 0x%x' % (sT0, sQKst, slot * QKV_SLOT)); s.st(vSent, vL4, sT0)
            if slot == 0: s.st(vSent, vT + 1, sA)
            else:
                a('s_add_u32 s%d, s%d, 0x%x' % (sT0, sVst, slot * QKV_SLOT)); s.st(vSent, vL4, sT0)
            if slot < 2:
                a('s_lshr_b32 s%d, s%d, 1' % (sT0, sW))
                a('s_lshl_b32 s%d, s%d, 13' % (sT0, sT0))
                a('s_add_u32 s%d, s%d, s%d' % (sT0, sT0, sPARTst))
                a('s_add_u32 s%d, s%d, 0x%x' % (sT0, sT0, slot * PART_SLOT)); s.st(vSent, vL16, sT0, n=4)
            a('s_add_u32 s%d, s%d, 0x%x' % (sT0, sMTst, slot * MT_SLOT)); s.st(vSent, vL4 if s.NP == 1 else vMst, sT0, n=s.NP)
        tr_w1(vT + 10, 0, 4, 128, (0, 1))
        a('s_waitcnt vmcnt(46)')
        tr_w1(vT + 10, 0, 4, 128, (2, 3))
        a('s_waitcnt vmcnt(30)')
        a('s_lshl_b32 s%d, s%d, 9' % (sT0, sW))
        s.bits(vA, [(2, 2, 12), (0, 1, 11), (4, 2, 3), (1, 1, 2)], 's%d' % sT0)
        for u in range(4):
            for p in range(4):
                a('buffer_load_dword v%d, v%d, s[%d:%d], 0 offen offset:%d' % (vF + 4 * u + p, vA, S_M0, S_M0 + 3, u * 128 + p * 32))
        for i in range(16):
            a('ds_write_b128 v%d, %s offset:%d' % (vT + 7, vr(64 + 4 * i, 4), i * 1024))
            if i % 8 == 7: a('s_waitcnt lgkmcnt(0)')
        tr_w1(vB, 4, 2, 64)
        a('s_waitcnt vmcnt(30)')
        s.mark(7)
        for i in range(16):
            a('ds_write_b128 v%d, %s offset:%d' % (vT + 7, vr(128 + 4 * i, 4), 16384 + i * 1024))
            if i % 8 == 7: a('s_waitcnt lgkmcnt(0)')
        a('s_waitcnt vmcnt(0)')
        a('s_barrier')
        lskip = a.newlabel('Lann')
        a('s_getreg_b32 s%d, hwreg(HW_REG_XCC_ID)' % sT0)
        a('s_and_b32 s%d, s%d, 15' % (sT0, sT0))
        a('s_mul_i32 s%d, s%d, s%d' % (sT1, sT0, sT0))
        a('s_lshl_b32 s%d, s%d, 18' % (sT1, sT1))
        a('s_lshl_b32 s%d, s%d, 8' % (sT0, sT0))
        a('s_add_u32 s%d, s%d, s%d' % (sT0, sT0, sT1))
        a('s_add_u32 s%d, s%d, 1' % (sLocal, sT0))
        a('s_cmp_eq_u32 s%d, 0' % sW)
        a('s_cbranch_scc0 %s' % lskip)
        a('s_lshl_b32 s%d, s%d, 2' % (sT1, sX))
        a('v_mov_b32 v%d, s%d' % (vT + 6, sLocal))
        a('s_mov_b64 exec, 1')
        a('buffer_atomic_add v%d, off, s[%d:%d], s%d offset:16 sc1' % (vT + 6, S_DBG, S_DBG + 3, sT1))
        s.counted()
        a('s_mov_b64 exec, -1')
        a.label(lskip)
        lm = a.newlabel('Lms')
        a('s_and_b32 s%d, s%d, 3' % (sT0, sJ))
        a('s_lshl2_add_u32 s%d, s%d, s%d' % (sT0, sT0, sW))
        a('s_cmp_eq_u32 s%d, 1' % sT0)
        a('s_cbranch_scc0 %s' % lm)
        a('s_and_b32 s%d, s%d, 15' % (sT0, sC))
        a('s_lshl_b32 s%d, s%d, 16' % (sT0, sT0))
        a('s_lshr_b32 s%d, s%d, 4' % (sT1, sC))
        a('s_lshl2_add_u32 s%d, s%d, s%d' % (sT1, sT1, sX))
        a('s_lshl_b32 s%d, s%d, 7' % (sT1, sT1))
        a('s_add_u32 s%d, s%d, s%d' % (sT0, sT0, sT1))
        a('s_add_u32 s%d, s%d, 0x%x' % (sT0, sT0, WS_PART + 66 * PART_SLOT))
        a('s_mov_b32 s%d, -1' % sA); a('s_mov_b32 s%d, -1' % sB)
        for k in range(s.opt.get('nprobe', 4)):
            a('s_memtime s[%d:%d]' % (sTS, sTS + 1))
            a('s_waitcnt lgkmcnt(0)')
            a('s_mov_b32 s%d, s%d' % (sT1, sTS))
            a('buffer_load_dword v%d, off, s[%d:%d], s%d sc1' % (vT, S_WS, S_WS + 3, sT0))
            a('s_waitcnt vmcnt(0)')
            a('s_memtime s[%d:%d]' % (sTS, sTS + 1))
            a('s_waitcnt lgkmcnt(0)')
            a('s_sub_u32 s%d, s%d, s%d' % (sT1, sTS, sT1))
            r = sB if k % 2 else sA
            a('s_min_u32 s%d, s%d, s%d' % (r, r, sT1))
            a('s_add_u32 s%d, s%d, %d' % (sT0, sT0, 8192 if k % 2 == 0 else 12288 if k % 4 == 1 else 4096))
        a('s_cmp_le_u32 s%d, s%d' % (sA, sB))
        a('s_cselect_b32 s%d, 1, 0x10001' % sT0)
        a('v_mov_b32 v%d, s%d' % (vT, sT0))
        a('s_mov_b64 exec, 1')
        a('buffer_atomic_add v%d, off, s[%d:%d], 0 offset:32 sc1' % (vT, S_DBG, S_DBG + 3))
        a('s_mov_b64 exec, -1')
        a.label(lm)
        lj = a.newlabel('Li')
        a('s_cmp_lt_u32 s%d, 2' % sW)
        a('s_cbranch_scc1 %s' % lj)
        a('s_lshl_b32 s%d, s%d, 7' % (sT0, sT3))
        a('s_add_u32 s%d, s%d, 16384' % (sT0, sT0))
        s.bits(vB, [(2, 4, 8), (0, 2, 3)], 's%d' % sT0)
        a('v_add_u32 v%d, 0x10000, v%d' % (vB + 1, vB))
        for tt in range(4):
            for hl in range(2):
                for t in range(4):
                    for v2 in range(2):
                        a('ds_read_b64_tr_b16 %s, v%d offset:%d' % (wo(tt, 16 * hl + 4 * t + 2 * v2, 2), vB + hl, (t // 2) * 32768 + (32 * (t % 2) + 16 * v2) * 256 + tt * 32))
                a('s_waitcnt lgkmcnt(0)')
        for i in range(8):
            a('v_mov_b32 v%d, 0' % (vU + 8 * i + 6)); a('v_mov_b32 v%d, 0' % (vU + 8 * i + 7))
        a.label(lj)
        a('s_barrier')
        if s.opt.get('touchr', True):
            a('v_bfe_u32 v%d, v0, 1, 2' % (vT + 1))
            a('v_and_b32 v%d, 1, v0' % (vT + 2))
            a('v_lshlrev_b32 v%d, 7, v%d' % (vT + 2, vT + 2))
            a('v_lshl_add_u32 v%d, v%d, 17, v%d' % (vT + 3, vT + 1, vT + 2))
            a('v_mul_u32_u24 v%d, 0x%x, v%d' % (vT + 1, QKV_SLOT, vT + 1))
            a('v_add_u32 v%d, v%d, v%d' % (vT + 1, vT + 1, vT + 2))
            a('s_mov_b64 exec, 0xff')
            for k, (va, so) in enumerate(((vT + 1, sQKst), (vT + 1, sVst), (vT + 3, sMTst))):
                a('buffer_load_dword v%d, v%d, s[%d:%d], s%d offen sc1' % (vT + 4 + k, va, S_WS, S_WS + 3, so))
            a('s_mov_b64 exec, -1')
        s.kv_wait_init()
        a('s_mov_b32 s%d, 0' % sStep)
        lh, lj = a.newlabel('Li'), a.newlabel('Li')
        a('s_cmp_ge_u32 s%d, 2' % sW)
        a('s_cbranch_scc1 %s' % lh)
        s.dma_kv(sStep, WS_KF, str(L_KX))
        a('s_mov_b32 s%d, 1' % sT2)
        s.dma_kv(sT2, WS_VF, str(L_VX + 16384))
        a('v_mov_b32 v%d, 0' % (vT + 3))
        a('ds_write_b32 v%d, v%d offset:768' % (vPw, vT + 3))
        a('s_branch %s' % lj)
        a.label(lh)
        s.dma_kv(sStep, WS_VF, str(L_VX))
        a.label(lj)
        lw, lok = a.newlabel('Lw'), a.newlabel('Lw')
        a('v_min_u32 v%d, 16, v%d' % (vT + 1, vL4))
        a.label(lw)
        a('buffer_load_dword v%d, v%d, s[%d:%d], 0 offen offset:16 sc1' % (vT, vT + 1, S_DBG, S_DBG + 3))
        a('s_waitcnt vmcnt(0)')
        a('v_and_b32 v%d, 0xff, v%d' % (vT + 2, vT))
        a('v_cmp_ne_u32 vcc, 32, v%d' % (vT + 2))
        a('v_readlane_b32 s%d, v%d, 4' % (sT1, vT))
        a('s_and_b32 s%d, vcc_lo, 15' % sT0)
        a('s_cselect_b32 s%d, 0, s%d' % (sT1, sT1))
        a('s_bitcmp1_b32 s%d, 5' % sT1)
        a('s_cbranch_scc1 %s' % lok)
        a('s_sleep 8')
        s.tmo(lw)
        a.label(lok)
        a('s_cmp_gt_u32 s%d, 0x100020' % sT1)
        a('s_cselect_b32 s%d, 2, 0' % sT1)
        if 'near' in s.opt: a('s_mov_b32 s%d, %d' % (sT1, 2 * s.opt['near']))
        a('s_lshl_b32 s%d, s%d, 12' % (sT1, sT1))
        a('s_add_u32 s%d, s%d, s%d' % (sPARTst, sPARTst, sT1))
        a('s_add_u32 s%d, s%d, s%d' % (sREDld, sREDld, sT1))
        if s.opt.get('glob'):
            a('s_add_u32 s%d, s%d, s%d' % (sMTld, sMTld, sT1))
            a('s_add_u32 s%d, s%d, s%d' % (sMTst, sMTst, sT1))
            a('s_and_b32 s%d, s%d, 1' % (sC, sC))
            a('s_or_b32 s%d, s%d, s%d' % (sC, sC, sW))
            a('s_cselect_b32 s%d, 0x%x, s%d' % (sMTst, WS_DUMP, sMTst))
        a('v_readlane_b32 s%d, v%d, s%d' % (sT0, vT, sX))
        a('s_mul_i32 s%d, s%d, %d' % (sLocal, sLocal, 128 // s.NX))
        a('s_cmp_eq_u32 s%d, s%d' % (sT0, sLocal))
        a('s_cselect_b32 s%d, 1, 0' % sLocal)
        if s.opt.get('remote'): a('s_mov_b32 s%d, 0' % sLocal)
        a('s_waitcnt vmcnt(0) lgkmcnt(0)')
        a('s_barrier')
        lj = a.newlabel('Li')
        a('s_cmp_lt_u32 s%d, 2' % sW)
        a('s_cbranch_scc1 %s' % lj)
        s.ux()
        a.label(lj)
        s.pre_loop()
        s.prep_stage1()
        for u in range(4): s.s1unit(u, vF)
        s.mark(1)
        if s.opt.get('tot', True):
            a('s_memrealtime s[98:99]')
            a('s_memtime s[82:83]')
            a('s_waitcnt lgkmcnt(0)')
        if s.prof:
            for i in range(16): a('s_mov_b32 s%d, 0' % (sAcc + i))
            a('s_memtime s[%d:%d]' % (sTS, sTS + 1)); a('s_waitcnt lgkmcnt(0)'); a('s_mov_b32 s%d, s%d' % (sPrev, sTS))
    def slot(s, dst, base, mul, rst=False):
        a = s.a
        a('s_and_b32 s%d, s%d, 3' % (dst, sStep))
        if rst: a('s_xor_b32 s%d, s%d, 2' % (dst, dst))
        a('s_mul_i32 s%d, s%d, %d' % (dst, dst, mul))
        a('s_add_u32 s%d, s%d, s%d' % (dst, dst, base))
    def prep_stage1(s):
        a = s.a
        s.slot(sA, sQKst, QKV_SLOT); s.slot(sB, sVst, QKV_SLOT); s.slot(sCc, sCld, QKV_SLOT)
        s.zero(range(vD, vD + 24))
    def s1finish(s, second):
        a = s.a
        s.stamp(9 if s.opt.get('trace') else 12)
        for t6 in range(6):
            s.halfsum(vD + 4 * t6)
            a('ds_write_b64 v%d, %s offset:%d' % (vRw, vr(vD + 4 * t6, 2), L_R + t6 * R_T))
        a('s_waitcnt lgkmcnt(0)')
        s.stamp(6)
        a('s_barrier')
        s.stamp(7)
        tiles = [(vRr, vRr2, vM + 16, vT + 10, sA)] + ([(vPw2, vRed, vM + 24, vT + 11, sB)] if second else [])
        k = R_W // 256
        for a0, a1, r, o, so in tiles:
            for e, ad in enumerate((a0, a1)):
                for h in range(2):
                    a('ds_read2st64_b32 %s, v%d offset0:%d offset1:%d' % (vr(r + 4 * e + 2 * h, 2), ad, 2 * h * k, (2 * h + 1) * k))
        for n, (a0, a1, r, o, so) in enumerate(tiles):
            rem = 4 * (len(tiles) - 1 - n)
            a('s_waitcnt lgkmcnt(%d)' % (rem + 2))
            a('v_pk_add_f32 %s, %s, %s' % (vr(r, 2), vr(r, 2), vr(r + 2, 2)))
            a('v_add_f32 v%d, v%d, v%d' % (r, r, r + 1))
            a('s_waitcnt lgkmcnt(%d)' % rem)
            a('v_pk_add_f32 %s, %s, %s' % (vr(r + 4, 2), vr(r + 4, 2), vr(r + 6, 2)))
            a('v_add_f32 v%d, v%d, v%d' % (r + 4, r + 4, r + 5))
            a('v_cvt_pk_bf16_f32 v%d, v%d, v%d' % (o, r, r + 4))
            a('v_min_u32 v%d, -2, v%d' % (o, o))
            s.lst(o, vL4, so)
        s.stamp(0)
    def hopc(s, tag):
        a = s.a
        a.label('L_hopc_%s' % tag)
        for i in range(4):
            a('buffer_load_dwordx4 %s, v%d, s[%d:%d], s%d offen offset:%d sc1' % (vr(vM + 4 * i, 4), vL16, S_WS, S_WS + 3, sCc, i * 1024))
        a('s_waitcnt vmcnt(2)')
        s.maxtree(vM, 8, vT)
        a('s_waitcnt vmcnt(0)')
        s.maxtree(vM + 8, 8, vT, first=False)
        a('v_cmp_eq_u32 vcc, -1, v%d' % vT)
        a('s_cbranch_vccnz L_cretry_%s' % tag)
    def cretry(s, tag):
        s.a.label('L_cretry_%s' % tag)
        s.count(9)
        s.tmo('L_hopc_%s' % tag)
    def loop_S(s, tag):
        a = s.a
        vS = vD + 24
        vSm = vF + 4
        for i in range(8): a('v_mov_b32 v%d, 0' % (vS + i))
        a.label('L_loop_%s' % tag)
        s.s1finish(False)
        a('s_lshl_b32 s%d, s%d, 17' % (sK2, sStep))
        a('s_add_u32 s%d, s%d, s%d' % (sK2, sK2, sKst))
        a('s_cmp_eq_u32 s%d, %d' % (sStep, s.nsteps - 1))
        a('s_cbranch_scc1 L_lastk')
        A = a; buf = []
        s.a = a = buf.append
        for i in range(8): a('ds_read_b128 %s, v%d offset:%d' % (vr(vK + 4 * i, 4), vKX, i * 1024))
        a('s_min_u32 s%d, s%d, 60' % (sT2, sStep))
        a('s_lshl_b32 s%d, s%d, 18' % (sT2, sT2))
        a('s_add_u32 s%d, s%d, s%d' % (sT2, sT2, sWarm))
        a('s_lshl_b32 s%d, s%d, 19' % (sD, sStep))
        a('s_add_u32 s%d, s%d, s%d' % (sD, sD, sREDld))
        a('s_and_b32 s%d, s%d, 4' % (sT3, sStep))
        a('s_lshl_b32 s%d, s%d, 11' % (sT3, sT3))
        a('s_xor_b32 s%d, s%d, s%d' % (sD, sD, sT3))
        s.slot(sE, sMTst, MT_SLOT); s.slot(sH, sMTld, MT_SLOT)
        s.slot(sB, sQKst, QKV_SLOT, True); s.slot(sF, sMTst, MT_SLOT, True)
        s.zero(range(vD, vD + 24))
        s.a = a = A
        npre = s.opt.get('npre', 20)
        def cld():
            for i in range(4):
                a('buffer_load_dwordx4 %s, v%d, s[%d:%d], s%d offen offset:%d sc1' % (vr(vM + 4 * i, 4), vL16, S_WS, S_WS + 3, sCc, i * 1024))
        for y in buf[:npre]: a(y)
        s.stamp(1)
        cld()
        for y in buf[npre:]: a(y)
        a('s_waitcnt lgkmcnt(0)')
        a.label('L_hopc_%s' % tag)
        mx = lambda k, first: 'v_max3_u32 v%d, v%d, v%d, v%d' % (vT, vM + 2 * k if first else vT, vM + 2 * k, vM + 2 * k + 1)
        for T in range(2):
            a('s_waitcnt vmcnt(%d)' % (3 - T))
            for tau in range(2):
                a('v_smfmac_f32_16x16x64_bf16 %s, %s, %s, v%d' % (vr(vS + 4 * tau, 4), vr(vM + 4 * T, 4), vr(vK + 16 * tau + 8 * T, 8), vIdx))
                a(mx(2 * T + tau, T + tau == 0))
        for T in range(2):
            a('s_waitcnt vmcnt(%d)' % (1 - T))
            a('v_mfma_f32_16x16x32_bf16 %s, %s, %s, %s' % (vr(vSm, 4), vr(vM + 4 * T, 4), vr(vM + 8 + 4 * T, 4), '0' if T == 0 else vr(vSm, 4)))
            for k in range(2): a(mx(4 + 2 * T + k, False))
        a('v_cmp_eq_u32 vcc, -1, v%d' % vT)
        s.halfsum(vS, vT + 2); s.halfsum(vS + 4, vT + 4)
        a('s_cbranch_vccnz L_cretry_%s' % tag)
        s.stamp(2)
        def warm():
            a('s_mov_b64 exec, 0xffff')
            a('buffer_load_dword v%d, v%d, s[%d:%d], s%d offen sc1' % (vT + 11, vGate, S_WS, S_WS + 3, sT2))
            a('s_mov_b64 exec, -1')
        if s.opt.get('warm', 1) == 1: warm()
        x = vT + 2
        m = vT + 8
        for i in range(2): a('v_cndmask_b32 v%d, v%d, v%d, s[%d:%d]' % (x + 4 + i, vSm + i, vSm + 2 + i, sHiMask, sHiMask + 1))
        for i in range(2): a('v_add_f32_dpp v%d, v%d, v%d quad_perm:[2,3,0,1] row_mask:0xf bank_mask:0xf' % (x + 4 + i, x + 4 + i, x + 4 + i))
        def xreduce(op):
            for sh in (8, 4, 2, 1):
                for i in range(2): a('%s_dpp v%d, v%d, v%d row_ror:%d row_mask:0xf bank_mask:0xf' % (op, m + i, m + i, m + i, sh))
        for i in range(2): a('v_max3_f32 v%d, v%d, v%d, v%d' % (m + i, x + i, x + 2 + i, x + 4 + i))
        xreduce('v_max_f32')
        a('v_pk_mul_f32 %s, %s, %s' % (vr(m, 2), vr(m, 2), sr(sScale, 2)))
        for k in range(3): a('v_pk_fma_f32 %s, %s, %s, %s neg_lo:[0,0,1] neg_hi:[0,0,1]' % (vr(x + 2 * k, 2), vr(x + 2 * k, 2), sr(sScale, 2), vr(m, 2)))
        for i in range(6): a('v_exp_f32 v%d, v%d' % (x + i, x + i))
        a('v_pk_add_f32 %s, %s, %s' % (vr(m, 2), vr(x, 2), vr(x + 2, 2)))
        for i in range(2): a('v_fma_f32 v%d, v%d, 0.5, v%d' % (m + i, x + 4 + i, m + i))
        xreduce('v_add_f32')
        for i in range(2): a('v_rcp_f32 v%d, v%d' % (m + i, m + i))
        for k in range(3): a('v_pk_mul_f32 %s, %s, %s' % (vr(x + 2 * k, 2), vr(x + 2 * k, 2), vr(m, 2)))
        for k in range(3): a('v_cvt_pk_bf16_f32 v%d, v%d, v%d' % (x + 2 * k, x + 2 * k, x + 2 * k + 1))
        a('ds_write2_b32 v%d, v%d, v%d offset0:0 offset1:64' % (vPw, x, x + 2))
        a('ds_write_b32 v%d, v%d offset:512' % (vPw2, x + 4))
        a('s_waitcnt lgkmcnt(0)')
        s.stamp(3)
        a('s_barrier')
        s.stamp(4)
        a('s_add_u32 s%d, s%d, 1' % (sStep, sStep))
        s.slot(sA, sQKst, QKV_SLOT); s.slot(sCc, sCld, QKV_SLOT)
        s.zero(range(vS, vS + 8))
        a('v_xor_b32 v%d, 0x4000, v%d' % (vKX, vKX))
        tail = None
        if s.opt.get('b3a'): a('s_barrier')
        if s.opt.get('warm', 1) == 2: warm()
        s.st(vT + 10, vL4, sK2)
        s.lst(vSent, vL4, sB); (s.st if s.opt.get('glob') else s.lst)(vSent, vL4 if s.NP == 1 else vMst, sF, n=s.NP)
        if not s.opt.get('hst', True):
            s.lst(vSent, vL4, sB, 512)
            a('s_sub_u32 s%d, s%d, s%d' % (sT0, sB, sQKst))
            a('s_add_u32 s%d, s%d, s%d' % (sT0, sT0, sVst))
            s.lst(vSent, vL4, sT0)
            a('s_add_u32 s%d, s%d, 1' % (sT0, sStep))
            a('s_and_b32 s%d, s%d, 4' % (sT1, sT0))
            a('s_lshl_b32 s%d, s%d, 19' % (sT0, sT0))
            a('s_add_u32 s%d, s%d, s%d' % (sT0, sT0, sPARTst))
            a('s_lshl_b32 s%d, s%d, 11' % (sT1, sT1))
            a('s_xor_b32 s%d, s%d, s%d' % (sT3, sT0, sT1))
            if not s.opt.get('initlate'): s.st(vSent, vL16, sT3, n=4)
        a('s_barrier')
        s.delay('adelay')
        s.stamp(8)
        if s.opt.get('glob'):
            a('s_cmp_lg_u32 s%d, 0' % sC)
            a('s_cbranch_scc1 L_askip_%s' % tag)
        a.label('L_hopa_%s' % tag)
        NP = s.NP
        r = vF + 8
        for i in range(4 * NP):
            a('buffer_load_dwordx4 %s, v%d, s[%d:%d], s%d offen offset:%d sc1' % (vr(vM + 4 * i, 4), vRed, S_WS, S_WS + 3, sD, (i // NP) * 1024 + (i % NP) * 256))
        a('s_mov_b64 exec, -1')
        IL = 1 if s.opt.get('initlate') else 0
        if IL: s.st(vSent, vL16, sT3, n=4)
        for i in range(4 * NP):
            a('s_waitcnt vmcnt(%d)' % (4 * NP - 1 - i + IL))
            rr = vr(r + 4 * (i % NP), 4)
            a('v_mfma_f32_16x16x32_bf16 %s, %s, %s, %s' % (rr, vr(vM + 4 * i, 4), vr(vSel, 4), '0' if i < NP else rr))
        a('v_pk_add_f32 %s, %s, %s' % (vr(vT, 2), vr(r, 2), vr(r + 2, 2)))
        if NP == 2:
            a('v_pk_add_f32 %s, %s, %s' % (vr(vT, 2), vr(vT, 2), vr(r + 4, 2)))
            a('v_pk_add_f32 %s, %s, %s' % (vr(vT, 2), vr(vT, 2), vr(r + 6, 2)))
        for k in range(NP):
            for h in range(2): a('v_cvt_pk_bf16_f32 v%d, v%d, v%d' % (r + 4 * k + h, r + 4 * k + 2 * h, r + 4 * k + 2 * h + 1))
        a('v_cmp_u_f32 vcc, v%d, v%d' % (vT, vT + 1))
        for k in range(NP):
            a('v_cndmask_b32 v%d, v%d, v%d, s[%d:%d]' % (r + 4 * k, r + 4 * k + 1, r + 4 * k, sStMask, sStMask + 1))
            a('v_min_u32 v%d, -2, v%d' % (r + 4 * k, r + 4 * k))
        a('s_cbranch_vccnz L_aslow_%s' % tag)
        a.label('L_aok_%s' % tag)
        for k in range(NP): (s.st if s.opt.get('glob') else s.lst)(r + 4 * k, vL4, sE, 256 * k)
        a.label('L_askip_%s' % tag)
        s.stamp(5)
        if s.opt.get('b4'): a('s_barrier')
        s.delay('b4delay')
        stubs = s.hopb_s1(tag, tail)
        stubs()
        a.label('L_aslow_%s' % tag)
        s.maxtree(vM, 16 * NP, vT + 1)
        a('v_cmp_eq_u32 vcc, -1, v%d' % (vT + 1))
        a('s_cbranch_vccz L_aok_%s' % tag)
        a('s_mov_b64 exec, vcc')
        s.count(10)
        s.tmo('L_hopa_%s' % tag)
        a.label('L_cretry_%s' % tag)
        cld()
        s.zero(range(vS, vS + 8))
        s.count(9)
        s.tmo('L_hopc_%s' % tag)
    def um(s):
        a = s.a
        def cvt(hl, tt):
            d = vD + 16 * hl + 4 * tt
            a('v_cvt_pk_bf16_f32 v%d, v%d, v%d' % (vU + 16 * tt + 8 * hl + 4, d, d + 1))
            a('v_cvt_pk_bf16_f32 v%d, v%d, v%d' % (vU + 16 * tt + 8 * hl + 5, d + 2, d + 3))
        n = 0
        for hl in range(2):
            for T in range(2):
                indma = s.opt.get('dmapos', 'um') == 'um'
                if indma: a('s_mov_b32 m0, s%d' % (sP + 4 + n))
                for tt in range(4):
                    a('v_smfmac_f32_16x16x64_bf16 %s, %s, %s, v%d' % (vr(vD + 16 * hl + 4 * tt, 4), vr(vM + 8 * hl + 4 * T, 4), wo(tt, 16 * hl + 8 * T, 8), vIdx))
                    if indma: s.dma(sP + n, tt * 1024)
                    if hl == 1 and T == 1: cvt(0, tt)
                n += 1
        for tt in range(4): cvt(1, tt)
    def kv_addr(s):
        a = s.a
        a('s_add_u32 s%d, s%d, 1' % (sT0, sStep))
        a('s_lshl_b32 s%d, s%d, 18' % (sP, sT0))
        a('s_add_u32 s%d, s%d, s%d' % (sP, sP, sKVoff))
        if WS_KF: a('s_add_u32 s%d, s%d, 0x%x' % (sP, sP, WS_KF))
        a('s_add_u32 s%d, s%d, 0x20000' % (sP + 1, sP))
        a('s_and_b32 s%d, s%d, 1' % (sT0, sT0))
        a('s_lshl_b32 s%d, s%d, 14' % (sT0, sT0))
        a('s_add_u32 s%d, s%d, s%d' % (sP + 4, sT0, sLdsC))
        a('s_add_u32 s%d, s%d, 4096' % (sP + 5, sP + 4))
        a('s_xor_b32 s%d, s%d, 0x4000' % (sP + 6, sP + 4))
        a('s_add_u32 s%d, s%d, %d' % (sP + 6, sP + 6, L_VX - L_KX))
        a('s_add_u32 s%d, s%d, 4096' % (sP + 7, sP + 6))
        a('s_add_u32 s%d, s%d, 2' % (sT0, sStep))
        a('s_min_u32 s%d, s%d, 63' % (sT0, sT0))
        a('s_lshl_b32 s%d, s%d, 18' % (sP + 2, sT0))
        a('s_add_u32 s%d, s%d, s%d' % (sP + 2, sP + 2, sKVoff))
        a('s_add_u32 s%d, s%d, 0x%x' % (sP + 2, sP + 2, WS_VF))
        a('s_add_u32 s%d, s%d, 0x20000' % (sP + 3, sP + 2))
    def loop_H(s, tag):
        a = s.a
        vO = vT + 2
        zs = [vD + i for i in range(32)] + [vF + i for i in range(16)]
        for z in zs[24:]: a('v_mov_b32 v%d, 0' % z)
        s.kv_addr()
        a.label('L_loop_%s' % tag)
        s.s1finish(True)
        a('s_lshl_b32 s%d, s%d, 17' % (sF, sStep))
        a('s_add_u32 s%d, s%d, s%d' % (sK2, sF, sKst))
        a('s_add_u32 s%d, s%d, s%d' % (sF, sF, sKVMst))
        a('s_cmp_eq_u32 s%d, %d' % (sStep, s.nsteps - 1))
        a('s_cbranch_scc1 L_last_%s' % tag)
        for i in range(4): a('ds_read_b128 %s, v%d offset:%d' % (vr(vM + 16 + 4 * i, 4), vVX, i * 1024))
        a('s_lshl_b32 s%d, s%d, 19' % (sD, sStep))
        a('s_add_u32 s%d, s%d, s%d' % (sD, sD, sPARTst))
        a('s_and_b32 s%d, s%d, 4' % (sT3, sStep))
        a('s_lshl_b32 s%d, s%d, 11' % (sT3, sT3))
        a('s_xor_b32 s%d, s%d, s%d' % (sD, sD, sT3))
        s.slot(sH, sMTld, MT_SLOT)
        vG = 240
        acc = {0: vG, 1: vD, 2: vD + 16, 3: vG}
        fr = lambda i: vM + 4 * ((i + 4) % 8) if i < 4 else vM + 4 * (i % 8)
        rd = lambda i: 'ds_read_b128 %s, v%d offset:%d' % (vr(fr(i), 4), vVX, i * 1024)
        def mm(i, tt):
            d = vr(acc[i // 4] + 4 * tt, 4)
            return 'v_mfma_f32_16x16x32_bf16 %s, %s, %s, %s' % (d, vr(fr(i), 4), wo(tt, 16 * (i // 8) + 4 * (i % 4), 4), '0' if i % 4 == 0 else d)
        def cvt(gi): return ['v_cvt_pk_bf16_f32 v%d, v%d, v%d' % (vU + 16 * tt + 8 * (gi // 2) + 2 * (gi % 2) + h, acc[gi] + 4 * tt + 2 * h, acc[gi] + 4 * tt + 2 * h + 1) for tt in range(4) for h in range(2)]
        zz = lambda b, n: ['v_mov_b64 %s, 0' % vr(b + 2 * k, 2) for k in range(n // 2)]
        def cld():
            for i in range(4):
                a('buffer_load_dwordx4 %s, v%d, s[%d:%d], s%d offen offset:%d sc1' % (vr(vM + 4 * i, 4), vL16, S_WS, S_WS + 3, sCc, i * 1024))
        z24 = zz(vD, 24)
        hp = s.opt.get('hpre', 6)
        for k in range(4): a(z24.pop(0))
        for n in range(16):
            if n % 4 == 0: a('s_waitcnt lgkmcnt(%d)' % (3 - n // 4))
            if n == hp:
                s.stamp(1)
                cld()
            a(mm(n // 4, n % 4))
            if z24: a(z24.pop(0))
        a.label('L_hopc_%s' % tag)
        a('s_waitcnt vmcnt(2)')
        s.maxtree(vM, 8, vT)
        a('s_waitcnt vmcnt(0)')
        s.maxtree(vM + 8, 8, vT, first=False)
        a('v_cmp_eq_u32 vcc, -1, v%d' % vT)
        a('s_cbranch_vccnz L_cretry_%s' % tag)
        s.stamp(2)
        for i in range(4, 8): a(rd(i))
        s.um()
        s.stamp(3)
        a('s_barrier')
        s.stamp(4)
        for hl in range(2):
            for u in range(2):
                a('ds_read_b64_tr_b16 %s, v%d offset:%d' % (vr(vM + 4 * hl + 2 * u, 2), vPw, hl * 1024 + u * 16))
        for hl in range(2):
            a('s_waitcnt lgkmcnt(%d)' % (2 - 2 * hl))
            for tt in range(4):
                a('v_smfmac_f32_16x16x64_bf16 %s, %s, %s, v%d' % (vr(vF + 4 * tt, 4), vr(vM + 4 * hl, 4), vr(vU + 16 * tt + 8 * hl, 8), vIdx))
        for tt in range(4):
            s.halfsum(vF + 4 * tt)
            a('v_cvt_pk_bf16_f32 v%d, v%d, v%d' % (vO + tt, vF + 4 * tt, vF + 4 * tt + 1))
            a('v_min_u32 v%d, -2, v%d' % (vO + tt, vO + tt))
        s.st(vO, vL16, sD, n=4)
        s.stamp(5)
        A = a; buf = []
        s.a = a = buf.append
        HS = s.opt.get('hst', True)
        if HS:
            s.slot(sT2, sQKst, QKV_SLOT, True)
            a('s_sub_u32 s%d, s%d, s%d' % (sT1, sT2, sQKst))
            a('s_add_u32 s%d, s%d, s%d' % (sT1, sT1, sVst))
            a('s_add_u32 s%d, s%d, 0x%x' % (sD, sD, 2 * PART_SLOT))
            a('s_and_b32 s%d, s%d, 2' % (sT3, sStep))
            a('s_lshl_b32 s%d, s%d, 12' % (sT3, sT3))
            a('s_xor_b32 s%d, s%d, s%d' % (sD, sD, sT3))
        a('s_add_u32 s%d, s%d, 1' % (sStep, sStep))
        s.kv_probe()
        s.slot(sA, sQKst, QKV_SLOT); s.slot(sB, sVst, QKV_SLOT); s.slot(sCc, sCld, QKV_SLOT)
        s.kv_addr()
        sal = list(buf); del buf[:]
        s.st(vT + 10, vL4, sK2); s.st(vT + 11, vL4, sF, 2048)
        if HS:
            s.st(vSent, vL16, sD, n=4); s.lst(vSent, vL4, sT2); s.lst(vSent, vL4, sT1)
        sts = list(buf)
        s.nlate = len(sts)
        s.a = a = A
        gaps = {n: [] for n in range(48)}
        for k, x in enumerate(cvt(0) + zz(vF, 16)): gaps[k].append(x)
        for k, x in enumerate(cvt(1)): gaps[20 + k].append(x)
        for k, x in enumerate(zz(vD, 16)): gaps[28 + k].append(x)
        for k, x in enumerate(cvt(2)): gaps[36 + k].append(x)
        for k, x in enumerate(sal): gaps[k].append(x)
        lp = s.opt.get('latepos', 34)
        for k, x in enumerate(sts): gaps[lp + 2 * k].append(x)
        for i in range(8, 16): gaps[0 if i < 10 else 4 * (i - 8) - 4 if i < 12 else 4 * (i - 8 - 3) + 0].append(rd(i))
        order = sorted((n, i) for n in gaps for i in range(8, 16) if rd(i) in gaps[n])
        for n in range(48):
            i = 4 + n // 4
            if n % 4 == 0 and i >= 8:
                later = [j for (g, j) in order if g < n]
                a('s_waitcnt lgkmcnt(%d)' % (len(later) - 1 - later.index(i)))
            if n == s.opt.get('b3pos', 24) or (n == 1 and s.opt.get('b3a')): a('s_barrier')
            a(mm(i, n % 4))
            for x in gaps[n]: a(x)
        for x in zz(vD + 16, 16): a(x)
        a('v_xor_b32 v%d, 0x4000, v%d' % (vVX, vVX))
        s.kv_check(tag)
        s.stamp(8)
        if s.opt.get('b4'):
            for x in cvt(3): a(x)
            a('s_barrier')
        s.delay('b4delay')
        stubs = s.hopb_s1(tag, None, () if s.opt.get('b4') else cvt(3))
        stubs()
        a.label('L_cretry_%s' % tag)
        cld()
        s.count(9)
        s.tmo('L_hopc_%s' % tag)
        s.kv_slow(tag)
        a.label('L_last_%s' % tag)
        s.st(vT + 11, vL4, sF, 2048)
        a('s_branch L_lastk')
    def emit(s):
        a = s.a
        s.init()
        a('s_cmp_eq_u32 s%d, 1' % sLocal)
        a('s_cbranch_scc0 L_remote')
        for local in (True, False):
            s.local = local
            t = 'l' if local else 'r'
            if not local: a.label('L_remote')
            a('s_cmp_ge_u32 s%d, 2' % sW)
            a('s_cbranch_scc1 L_H%s' % t)
            s.loop_S('S' + t)
            a.label('L_H%s' % t)
            s.loop_H('H' + t)
        a.label('L_lastk')
        s.st(vT + 10, vL4, sK2)
        a('s_branch L_chain_done')
        a.label('L_chain_fail')
        a('s_mov_b64 exec, -1')
        a('v_mov_b32 v%d, 1' % vT)
        a('buffer_atomic_add v%d, off, s[%d:%d], 0 offset:4 sc1' % (vT, S_DBG, S_DBG + 3))
        a.label('L_chain_done')
        if s.opt.get('tot', True):
            a('s_memrealtime s[100:101]')
            a('s_waitcnt lgkmcnt(0)')
            a('s_sub_u32 s100, s100, s98')
            a('v_mov_b32 v%d, s100' % vT)
            a('buffer_store_dword v%d, off, s[%d:%d], 0 offset:8' % (vT, S_DBG, S_DBG + 3))
            a('s_memtime s[100:101]')
            a('s_waitcnt lgkmcnt(0)')
            a('s_sub_u32 s100, s100, s82')
            a('v_mov_b32 v%d, s100' % vT)
            a('s_lshl_b32 s%d, s%d, 2' % (sT0, sX))
            a('buffer_store_dword v%d, off, s[%d:%d], s%d offset:64' % (vT, S_DBG, S_DBG + 3, sT0))
        if s.opt.get('trace'):
            a('s_lshl_b32 s%d, s2, 2' % sT0)
            a('s_add_u32 s%d, s%d, s%d' % (sT0, sT0, sW))
            a('s_lshl_b32 s%d, s%d, 12' % (sT0, sT0))
            a('s_add_u32 s%d, s%d, 0x%x' % (sT0, sT0, WS_PROF))
            for i in range(11): s.st(244 + i, vL4, sT0, 256 * i, sc1=False)
        if s.prof:
            a('s_lshl_b32 s%d, s2, 2' % sT0)
            a('s_add_u32 s%d, s%d, s%d' % (sT0, sT0, sW))
            a('s_lshl_b32 s%d, s%d, 6' % (sT0, sT0))
            a('s_add_u32 s%d, s%d, 0x%x' % (sT0, sT0, WS_PROF))
            a('s_mov_b32 s%d, s%d' % (sAcc + 15, sTmo))
            a('s_mov_b32 s%d, s%d' % (sAcc + 14, sLocal))
            for i in range(16):
                a('v_mov_b32 v%d, s%d' % (vT, sAcc + i))
                a('buffer_store_dword v%d, off, s[%d:%d], s%d offset:%d' % (vT, S_WS, S_WS + 3, sT0, 4 * i))
        if s.opt.get('endwait', True): a('s_waitcnt vmcnt(0)')
    def nt(s, srd): return ' nt' if srd in s.opt.get('nt', []) else ''
    def get_wave(s):
        a = s.a
        a('v_lshrrev_b32 v%d, 6, v0' % vT)
        a('v_readfirstlane_b32 s%d, v%d' % (sW, vT))
        a('v_and_b32 v0, 63, v0')
    def kv_probe(s): pass
    def kv_check(s, tag): pass
    def kv_slow(s, tag): pass
    def pre_loop(s): pass
    def verify(s): pass
    def counted(s): pass
    def mark(s, i): pass
    def early0(s): pass
    def early1(s): pass
    def kv_wait_init(s): pass
    def kv_wait_loop(s): pass

def chain_kernel(name='chain_kernel', prof=False, opt=None):
    a = Asm()
    NX = (opt or {}).get('NX', 4)
    a('s_and_b32 s3, s2, 7')
    a('s_cmp_ge_u32 s3, %d' % NX)
    a('s_cbranch_scc1 L_chain_exit')
    a('s_cmp_ge_u32 s2, %d' % (1024 // NX))
    a('s_cbranch_scc1 L_chain_exit')
    for sreg, k in [(S_WS, 'ws'), (S_WQ, 'Wq'), (S_WK, 'Wk'), (S_WV, 'Wv'), (S_WO, 'Wo'), (S_M0, 'B_mem0'), (S_DBG, 'dbg')]:
        a('s_load_dwordx2 s[%d:%d], s[0:1], %d' % (sreg, sreg + 1, KA[k]))
    a('s_waitcnt lgkmcnt(0)')
    for sreg, n in [(S_WS, WS_BYTES), (S_WQ, 8 * MB), (S_WK, 8 * MB), (S_WV, 8 * MB), (S_WO, 8 * MB), (S_M0, 16384), (S_DBG, 256)]:
        a('s_mov_b32 s%d, 0x%x' % (sreg + 2, n)); a('s_mov_b32 s%d, 0x20000' % (sreg + 3))
    Chain(a, prof, opt=opt).emit()
    a.label('L_chain_exit')
    a('s_endpgm')
    return kernel_head(name) + a.finalize()

def write(path, prof, opt):
    txt = '; @launch grid=(256,1,1) block=(256,1,1) lds=%d\n.amdgcn_target "amdgcn-amd-amdhsa--gfx950"\n.text\n' % L_END
    txt += chain_kernel(prof=prof, opt=opt)
    txt += '.section .rodata,"a"\n.p2align 6\n' + kernel_desc('chain_kernel')
    open(path, 'w').write(txt)

if __name__ == '__main__':
    import sys, json
    for spec in sys.argv[1:]:
        name, _, o = spec.partition('=')
        opt = json.loads(o) if o else {}
        write(name + '.s', 'prof' in name, opt)
```

```python
from ag import *
from common import *

S_WS, S_WQ, S_WK, S_WV, S_WO, S_M0, S_DBG = 4, 8, 12, 16, 20, 24, 28
S_X = 32
S_WC = 36
sW, sT0, sT1, sT2, sT3 = 40, 41, 42, 43, 44
sXo, sWo, sIt, sOut, sXl, sWl, sCnt = 45, 46, 47, 48, 49, 50, 51
sJob = 52
sSt, sXm, sWm, sRd, sOutN = 64, 65, 66, 67, 68
sSigN, sSigC, sSigD = 69, 70, 71
sNX, sNW, sNP = 74, 75, 76
vXr0, vXr1, vL16 = 1, 2, 3
vWr = 4
vXs = 8
vWs = 16
vT = 20
vFr = 0
vStg = 32
sKv, sKvN, sOutP, sDmp, sKvm = 72, 73, 78, 79, 14
sXp, sWp = 10, 11
vXp, vWp = 96, 97
vAcc = 128

class G1:
    def __init__(s, a, MT, tag):
        s.a = a; s.MT = MT; s.tag = tag
        s.XB = 32 * MT * 128
        s.ST = s.XB + 16384
        s.nxd = s.XB // 4096
        s.NS = 3
    def bits(s, dst, terms, init=None):
        a = s.a
        first = init is None
        if not first: a('v_mov_b32 v%d, %s' % (dst, init))
        for (src, n, sh) in terms:
            a('v_bfe_u32 v%d, v0, %d, %d' % (vT + 1, src, n))
            if first: a('v_lshlrev_b32 v%d, %d, v%d' % (dst, sh, vT + 1)); first = False
            else: a('v_lshl_add_u32 v%d, v%d, %d, v%d' % (dst, vT + 1, sh, dst))
    def setup(s):
        a = s.a; MT = s.MT
        a('v_lshrrev_b32 v%d, 3, v0' % vT)
        a('v_xor_b32 v%d, v0, v%d' % (vXs, vT))
        a('v_and_b32 v%d, 7, v%d' % (vXs, vXs))
        a('v_lshlrev_b32 v%d, 4, v%d' % (vXs, vXs))
        a('v_lshl_add_u32 v%d, v%d, 11, v%d' % (vXs, vT, vXs))
        a('s_mul_i32 s%d, s%d, %d' % (sT0, sW, s.nxd * 8 * 2048))
        a('v_add_u32 v%d, s%d, v%d' % (vXs, sT0, vXs))
        for i in range(1, s.nxd): a('v_add_u32 v%d, 0x%x, v%d' % (vXs + i, i * 8 * 2048, vXs))
        a('s_mul_i32 s%d, s%d, %d' % (sXl, sW, s.nxd * 1024))
        a('v_lshrrev_b32 v%d, 4, v0' % vT)
        a('s_and_b32 s%d, s%d, 1' % (sT0, sW))
        a('s_lshl_b32 s%d, s%d, 2' % (sT1, sT0))
        a('v_or_b32 v%d, s%d, v%d' % (vT + 1, sT1, vT))
        a('v_lshlrev_b32 v%d, 1, v%d' % (vT + 1, vT + 1))
        a('v_xor_b32 v%d, v0, v%d' % (vWs, vT + 1))
        a('v_and_b32 v%d, 15, v%d' % (vWs, vWs))
        a('v_lshlrev_b32 v%d, 4, v%d' % (vWs, vWs))
        a('v_lshl_add_u32 v%d, v%d, 13, v%d' % (vWs, vT, vWs))
        a('s_lshl_b32 s%d, s%d, 3' % (sT0, sT0))
        a('s_lshr_b32 s%d, s%d, 1' % (sT1, sW))
        a('s_lshl_b32 s%d, s%d, 2' % (sT1, sT1))
        a('s_add_u32 s%d, s%d, s%d' % (sT0, sT0, sT1))
        a('s_lshl_b32 s%d, s%d, 13' % (sT1, sT0))
        a('v_add_u32 v%d, s%d, v%d' % (vWs, sT1, vWs))
        for i in range(1, 4): a('v_add_u32 v%d, 0x%x, v%d' % (vWs + i, i * 16 * 8192, vWs))
        a('s_lshl_b32 s%d, s%d, 8' % (sWl, sT0))
        a('s_add_u32 s%d, s%d, %d' % (sWl, sWl, s.XB))
        a('v_lshrrev_b32 v%d, 4, v0' % vT)
        a('v_xor_b32 v%d, v0, v%d' % (vXr0, vT))
        a('v_and_b32 v%d, 7, v%d' % (vXr0, vXr0))
        a('v_lshlrev_b32 v%d, 4, v%d' % (vXr0, vXr0))
        a('v_and_b32 v%d, 15, v0' % vT)
        a('v_lshl_add_u32 v%d, v%d, 7, v%d' % (vXr0, vT, vXr0))
        a('s_and_b32 s%d, s%d, 1' % (sT0, sW))
        a('s_mul_i32 s%d, s%d, %d' % (sT0, sT0, MT * 2048))
        a('v_add_u32 v%d, s%d, v%d' % (vXr0, sT0, vXr0))
        a('v_xor_b32 v%d, 64, v%d' % (vXr1, vXr0))
        s.bits(vT, [(2, 3, 0)])
        a('s_lshr_b32 s%d, s%d, 1' % (sT0, sW))
        a('s_lshl_b32 s%d, s%d, 2' % (sT0, sT0))
        a('v_xor_b32 v%d, s%d, v%d' % (vT, sT0, vT))
        s.bits(vT + 2, [(4, 2, 11), (2, 2, 8), (0, 2, 3)], str(s.XB))
        for nt in range(4):
            a('v_xor_b32 v%d, %d, v%d' % (vT + 3, nt, vT))
            a('v_lshl_add_u32 v%d, v%d, 5, v%d' % (vWr + nt, vT + 3, vT + 2))
        a('v_lshlrev_b32 v%d, 4, v0' % vL16)
        a('s_mov_b32 s%d, 0x%x' % (sDmp, WS_DUMP))
        a('s_mov_b32 s%d, 0x%x' % (sKvm, WS_KVM))
    def dmas(s):
        out = []
        for i in range(s.nxd):
            out.append(('s_add_u32 m0, s%d, %d' % (sXm, i * 1024), 'buffer_load_dwordx4 v%d, s[%d:%d], s%d offen lds' % (vXs + i, S_X, S_X + 3, sXo)))
        for i in range(4):
            out.append(('s_add_u32 m0, s%d, %d' % (sWm, i * 4096), 'buffer_load_dwordx4 v%d, s[%d:%d], s%d offen lds' % (vWs + i, S_WC, S_WC + 3, sWo)))
        return out
    def adv(s, switch=False):
        if switch:
            o = ['s_mov_b32 s%d, s%d' % (sXo, sNX), 's_mov_b32 s%d, s%d' % (sWo, sNW), 's_mov_b64 s[%d:%d], s[%d:%d]' % (S_WC, S_WC + 1, sNP, sNP + 1)]
        else:
            o = ['s_add_u32 s%d, s%d, 128' % (sXo, sXo), 's_add_u32 s%d, s%d, 0x80000' % (sWo, sWo)]
        return o + ['s_add_u32 s%d, s%d, %d' % (sSt, sSt, s.ST),
                    ['s_cmp_eq_u32 s%d, %d' % (sSt, s.NS * s.ST), 's_cselect_b32 s%d, 0, s%d' % (sSt, sSt)],
                    's_add_u32 s%d, s%d, s%d' % (sXm, sXl, sSt), 's_add_u32 s%d, s%d, s%d' % (sWm, sWl, sSt),
                    ['s_cmp_eq_u32 s%d, %d' % (sSt, (s.NS - 1) * s.ST), 's_cselect_b32 s%d, s%d, %d' % (sT3, sRd, s.ST)]]
    def fx(s, st, mt): return vFr + st * (4 * s.MT + 16) + 4 * mt
    def fw(s, st, nt): return vFr + st * (4 * s.MT + 16) + 4 * s.MT + 4 * nt
    def reads(s, st, ks, flip=False):
        out = []
        for nt in range(4):
            for v2 in range(2):
                out.append('ds_read_b64_tr_b16 %s, v%d offset:%d' % (ar(s.fw(st, nt) + 2 * v2, 2), vWr + nt, (32 * ks + 4 * v2) * 256))
        xs = ['ds_read_b128 %s, v%d offset:%d' % (ar(s.fx(st, mt), 4), vXr1 if ks else vXr0, mt * 2048) for mt in range(s.MT)]
        return out[:2] + xs[:1] + out[2:] + xs[1:]
    def flips(s): return ['v_add_u32 v%d, s%d, v%d' % (r, sT3, r) for r in [vXr0, vWr, vWr + 1, vWr + 2, vWr + 3, vXr1]]
    def phase(s, st, slots, first=False):
        a = s.a
        k = 0
        for mt in range(s.MT):
            for nt in range(4):
                d = vr(vAcc + (mt * 4 + nt) * 4, 4)
                a('v_mfma_f32_16x16x32_bf16 %s, %s, %s, %s' % (d, ar(s.fw(st, nt), 4), ar(s.fx(st, mt), 4), '0' if first else d))
                for x in slots.get(k, []): a(x)
                k += 1
    def sched(s, reads, dm, tail, extra=()):
        n = 4 * s.MT
        slots = {}
        def put(k, x):
            slots.setdefault(min(k, n - 1), []).extend([x] if isinstance(x, str) else x)
        nr = len(reads)
        span = int(n * 0.72)
        for i, r in enumerate(reads): put(i * span // nr, r)
        last = 0
        for i, (m, d) in enumerate(dm):
            k = 1 + (i * max(n - 2 - (len(tail) + 1) // 2, 2 * len(dm) - 2)) // len(dm) if n > 8 else 2 * i
            put(k, m); put(k + 1, d); last = k + 1
        t0 = max(last + 1, n - (len(tail) + 1) // 2 - 1)
        for i, x in enumerate(tail):
            k = t0 + i // 2
            if isinstance(x, str) and x.startswith('v_add'): k = max(k, span)
            put(k, x)
        ex = list(extra)
        for i, x in enumerate(ex): put(i * n // max(len(ex), 1), x)
        return slots
    def run(s, next_job, more, signal, after_prologue=None, at_signal=None, immediate=False, pre_epi=None):
        a = s.a; t = s.tag
        nd = s.nxd + 4; h = nd // 2
        dl = s.dmas()
        def flat(L):
            for x in L:
                for y in ([x] if isinstance(x, str) else x): a(y)
        a('s_mov_b32 s%d, %d' % (sSt, (s.NS - 1) * s.ST))
        a('s_mov_b32 s%d, %d' % (sRd, (-(s.NS - 1) * s.ST) & 0xffffffff))
        flat(next_job())
        flat(s.adv(True))
        a('s_barrier')
        for k in range(s.NS):
            flat(dl if k < s.NS - 1 else dl[:h])
            if k < s.NS - 1: flat(s.adv())
        nx = after_prologue() if after_prologue else 0
        if s.touch and not immediate:
            a('s_add_u32 s%d, s%d, %d' % (sXp, sNX, (s.NS + s.touch) * 128))
            a('s_add_u32 s%d, s%d, 0x%x' % (sWp, sNW, (s.NS + s.touch) * 0x80000))
            a('s_mov_b64 s[%d:%d], s[%d:%d]' % (s.S_WP, s.S_WP + 1, sNP, sNP + 1))
            a('s_mov_b32 s%d, 0x%x' % (s.S_WP + 2, 8 * MB)); a('s_mov_b32 s%d, 0x20000' % (s.S_WP + 3))
            a('s_and_b32 s%d, s54, 1' % sT0)
            a('s_lshl_b32 s%d, s%d, 2' % (sT0, sT0))
            a('s_add_u32 s%d, s%d, s%d' % (sT0, sT0, sW))
            a('s_lshl_b32 s%d, s%d, 16' % (sT0, sT0))
            s.bits(vWp, [(1, 3, 13), (0, 1, 7)], 's%d' % sT0)
            a('s_and_b32 s%d, s54, 28' % sT0)
            a('s_add_u32 s%d, s%d, s%d' % (sT0, sT0, sW))
            a('s_lshl_b32 s%d, s%d, 14' % (sT0, sT0))
            s.bits(vXp, [(0, 3, 11)], 's%d' % sT0)
            for i in range(2): a('buffer_load_dword v98, off, s[%d:%d], 0' % (S_X, S_X + 3))
            nx += 2
        a('s_waitcnt vmcnt(%d)' % (nd * (s.NS - 2) + h + nx))
        if s.after_wait: s.after_wait()
        a('s_barrier')
        flat(s.reads(0, 0))
        a('s_mov_b32 s%d, 0' % sCnt)
        w = nd * (s.NS - 2)
        for i in range(4): a('v_mov_b32 v%d, -1' % (vT + 4 + i))
        a('s_mov_b32 s%d, 0x%x' % (sOutP, WS_DUMP))
        def body(first=False, wait=w, post=None, switch=False, extra=(), loop=None, extraB=(), slotsB=None):
            a('s_waitcnt lgkmcnt(0)')
            s.phase(0, s.sched(s.reads(1, 1), dl[h:], s.adv(switch) + s.flips(), extra), first)
            a('s_waitcnt vmcnt(%d) lgkmcnt(0)' % wait)
            a('s_barrier')
            if post: post()
            sl = s.sched(s.reads(0, 0), dl[:h], loop or [], extraB)
            for k, v in (slotsB or {}).items(): sl.setdefault(k, []).extend(v)
            s.phase(1, sl)
        def stores(sreg, mts):
            o = []
            for mt in mts:
                for pr in range(2):
                    o.append('buffer_store_dwordx4 %s, v%d, s[%d:%d], s%d offen offset:%d sc1' % (vr(vStg + 8 * mt + 4 * pr, 4), vL16, S_WS, S_WS + 3, sreg, pr * 1024))
                o.append('s_add_u32 s%d, s%d, 0x20000' % (sreg, sreg))
            return o
        kv = ['buffer_store_dwordx4 %s, v%d, s[%d:%d], s%d offen sc1' % (vr(vT + 4, 4), vL16, S_WS, S_WS + 3, sKv), 's_add_u32 s%d, s%d, 0x40000' % (sKv, sKv)]
        def post():
            l2 = a.newlabel('Lg1')
            a('s_cmp_eq_u32 s%d, 0' % sCnt)
            a('s_cbranch_scc1 %s' % l2)
            signal()
            a.label(l2)
        a.label('L_g1tile_%s' % t)
        a('s_mov_b32 s%d, s%d' % (sOut, sOutN))
        a('s_mov_b32 s%d, s%d' % (sSigC, sSigN))
        a('s_mov_b32 s%d, s%d' % (sKv, sKvN))
        if immediate:
            nk = s.MT // 4
            oob = ['s_mov_b32 s%d, 0x%x' % (sNX, 8 * MB), 's_mov_b32 s%d, 0x%x' % (sNW, 8 * MB)]
            body(first=True, extraB=kv * nk)
            body(wait=w + nk, extra=oob if s.single else next_job(), loop=['s_mov_b32 s%d, 2' % sIt], extraB=kv * nk)
            a.label('L_g1loop_%s' % t)
            body(loop=['s_add_u32 s%d, s%d, 1' % (sIt, sIt), 's_cmp_lt_u32 s%d, %d' % (sIt, 16 - s.NS)])
            a('s_cbranch_scc1 L_g1loop_%s' % t)
            body(switch=True)
            for i in range(s.NS - 2): body()
            last = {}
        else:
            NBs = s.spread
            q = s.MT // NBs
            D = s.touch
            prev = 2 if D else 0
            for i in range(16):
                ex = []; n = 0
                if D:
                    tc = ['s_mov_b64 exec, 0xffff',
                          'buffer_load_dword v%d, v%d, s[%d:%d], s%d offen' % (98, vWp, s.S_WP, s.S_WP + 3, sWp),
                          'buffer_load_dword v%d, v%d, s[%d:%d], s%d offen' % (99, vXp, S_X, S_X + 3, sXp), 's_mov_b64 exec, -1']
                    if i == 16 - s.NS - D - 1:
                        nx = ['s_mov_b32 s%d, s%d' % (sXp, sNX), 's_mov_b32 s%d, s%d' % (sWp, sNW), 's_mov_b64 s[%d:%d], s[%d:%d]' % (s.S_WP, s.S_WP + 1, sNP, sNP + 1)]
                    else:
                        nx = ['s_add_u32 s%d, s%d, 128' % (sXp, sXp), 's_add_u32 s%d, s%d, 0x80000' % (sWp, sWp)]
                    ex += [tc, nx]; n += 2
                if i < NBs:
                    ex += stores(sOutP, range(i * q, (i + 1) * q))
                    nk = [j for j in range(4) if j * NBs // 4 == i]
                    for j in nk: ex = ex + kv
                    n += 2 * q + len(nk)
                kw = dict(first=(i == 0), wait=w + prev, extra=next_job() if i == 1 else (), extraB=ex, post=post if i == NBs + 1 else None, switch=(i == 16 - s.NS))
                prev = n
                if i < 15: body(**kw)
                else: last = kw
        n = 4 * s.MT; LAG = 4
        cv = lambda k: ['v_cvt_pk_bf16_f32 v%d, v%d, v%d' % (vStg + 2 * k + i, vAcc + 4 * k + 2 * i, vAcc + 4 * k + 2 * i + 1) for i in range(2)]
        body(slotsB={k + LAG: cv(k) for k in range(n - LAG)}, **last)
        for k in range(n - LAG, n): flat(cv(k))
        if pre_epi: pre_epi()
        a('s_mov_b32 s%d, 1' % sCnt)
        a('s_mov_b32 s%d, s%d' % (sSigD, sSigC))
        a('s_mov_b32 s%d, s%d' % (sOutP, sOut))
        if not immediate:
            more()
            a('s_cbranch_scc1 L_g1tile_%s' % t)
        flat(stores(sOutP, range(s.MT)))
        if immediate:
            a('s_waitcnt lgkmcnt(0)')
            more()
            a('s_cbranch_scc0 L_g1end_%s' % t)
        a('s_waitcnt vmcnt(0) lgkmcnt(0)')
        a('s_barrier')
        signal()
        if immediate:
            a('s_branch L_g1tile_%s' % t)
            a.label('L_g1end_%s' % t)
            a('s_waitcnt vmcnt(%d)' % (2 * s.MT))
    spread = 8
    single = False
    after_wait = None
    touch = 0
    S_WP = 24
    def job(s, sRow, sCol):
        return ['s_mul_i32 s%d, s%d, %d' % (sNX, sRow, 32 * s.MT * 2048),
                's_and_b32 s%d, s%d, 31' % (sT0, sCol),
                's_lshl_b32 s%d, s%d, 8' % (sNW, sT0),
                's_lshr_b32 s%d, s%d, 5' % (sT1, sCol),
                ['s_cmp_eq_u32 s%d, 1' % sT1, 's_cselect_b64 s[%d:%d], s[%d:%d], s[%d:%d]' % (sNP, sNP + 1, S_WV, S_WV + 1, S_WK, S_WK + 1)],
                ['s_cmp_eq_u32 s%d, 2' % sT1, 's_cselect_b64 s[%d:%d], s[%d:%d], s[%d:%d]' % (sNP, sNP + 1, S_WQ, S_WQ + 1, sNP, sNP + 1)],
                's_lshl_b32 s%d, s%d, 24' % (sOutN, sT1),
                's_lshl_b32 s%d, s%d, 12' % (sT0, sT0),
                's_add_u32 s%d, s%d, s%d' % (sOutN, sOutN, sT0),
                's_lshl_b32 s%d, s%d, 1' % (sT0, sRow),
                's_and_b32 s%d, s%d, 1' % (sT1, sW),
                's_add_u32 s%d, s%d, s%d' % (sT0, sT0, sT1),
                's_mul_i32 s%d, s%d, %d' % (sT0, sT0, s.MT * 131072),
                's_add_u32 s%d, s%d, s%d' % (sOutN, sOutN, sT0),
                's_lshr_b32 s%d, s%d, 1' % (sT1, sW),
                's_lshl_b32 s%d, s%d, 11' % (sT1, sT1),
                's_add_u32 s%d, s%d, s%d' % (sOutN, sOutN, sT1),
                's_mul_i32 s%d, s%d, %d' % (sKvN, sRow, s.MT),
                's_lshr_b32 s%d, s%d, 1' % (sT0, sW),
                's_add_u32 s%d, s%d, s%d' % (sKvN, sKvN, sT0),
                's_lshl_b32 s%d, s%d, 17' % (sKvN, sKvN),
                's_lshl_b32 s%d, s%d, 4' % (sT0, sNW),
                's_add_u32 s%d, s%d, s%d' % (sKvN, sKvN, sT0),
                's_and_b32 s%d, s%d, 1' % (sT0, sW),
                's_lshl_b32 s%d, s%d, 10' % (sT0, sT0),
                's_add_u32 s%d, s%d, s%d' % (sKvN, sKvN, sT0),
                's_lshr_b32 s%d, s%d, 5' % (sT1, sCol),
                's_lshl_b32 s%d, s%d, 11' % (sT0, sT1),
                's_add_u32 s%d, s%d, s%d' % (sKvN, sKvN, sT0),
                ['s_cmp_eq_u32 s%d, 2' % sT1, 's_cselect_b32 s%d, s%d, s%d' % (sT0, sDmp, sKvm)],
                's_add_u32 s%d, s%d, s%d' % (sKvN, sKvN, sT0)]

def test_kernel(MT, RB, spread=8, touch=0):
    a = Asm()
    for sreg, k in [(S_WS, 'ws'), (S_WQ, 'Wq'), (S_WK, 'Wk'), (S_WV, 'Wv'), (S_X, 'B_x'), (S_DBG, 'dbg')]:
        a('s_load_dwordx2 s[%d:%d], s[0:1], %d' % (sreg, sreg + 1, KA[k]))
    a('s_waitcnt lgkmcnt(0)')
    for sreg, n in [(S_WS, WS_BYTES), (S_X, 4 * MB), (S_WC, 8 * MB), (S_DBG, 256)]:
        a('s_mov_b32 s%d, 0x%x' % (sreg + 2, n)); a('s_mov_b32 s%d, 0x20000' % (sreg + 3))
    a('s_mov_b64 s[%d:%d], s[%d:%d]' % (S_WC, S_WC + 1, S_WK, S_WK + 1))
    a('s_cmp_ge_u32 s2, 256'); a('s_cbranch_scc1 L_exit')
    a('s_and_b32 s53, s2, 7')
    a('s_cmp_lt_u32 s53, 4'); a('s_cbranch_scc1 L_exit')
    a('s_sub_u32 s53, s53, 4')
    a('s_lshr_b32 s54, s2, 3')
    a('v_lshrrev_b32 v%d, 6, v0' % vT)
    a('v_readfirstlane_b32 s%d, v%d' % (sW, vT))
    a('v_and_b32 v0, 63, v0')
    a('s_memrealtime s[60:61]')
    a('s_memtime s[80:81]')
    big = MT == 16
    if big: MT = 8
    g = G2(a, 'a') if big else G1(a, MT, 'a')
    NC = 12 if big else 24
    g.spread = spread; g.touch = touch
    g.setup()
    nrows = 2048 // (32 * MT)
    a('s_mov_b32 s%d, 0' % sJob)
    njobs = nrows * NC // 32
    CB = 32 // RB
    def next_job():
        nb_c = NC // CB
        return ['s_min_u32 s55, s%d, %d' % (sJob, njobs - 1),
                's_mul_i32 s56, s55, %d' % (65536 // nb_c + 1),
                's_lshr_b32 s56, s56, 16',
                's_mul_i32 s57, s56, %d' % nb_c,
                's_sub_u32 s57, s55, s57',
                's_mul_i32 s56, s56, %d' % RB,
                's_and_b32 s58, s54, %d' % (RB - 1),
                's_add_u32 s56, s56, s58',
                's_mul_i32 s57, s57, %d' % CB,
                's_lshr_b32 s58, s54, %d' % (RB.bit_length() - 1),
                's_add_u32 s57, s57, s58',
                's_mul_i32 s58, s53, %d' % NC,
                's_add_u32 s57, s57, s58'] + g.job(56, 57) + ['s_add_u32 s%d, s%d, 1' % (sJob, sJob)]
    g.run(next_job, lambda: a('s_cmp_le_u32 s%d, %d' % (sJob, njobs)), lambda: None)
    a('s_waitcnt vmcnt(0)')
    a('s_memrealtime s[62:63]')
    a('s_memtime s[82:83]')
    a('s_waitcnt lgkmcnt(0)')
    a('s_sub_u32 s82, s82, s80')
    a('v_mov_b32 v%d, s82' % vT)
    a('buffer_store_dword v%d, off, s[%d:%d], 0 offset:12' % (vT, S_DBG, S_DBG + 3))
    a('s_sub_u32 s62, s62, s60')
    a('v_mov_b32 v%d, s62' % vT)
    a('buffer_store_dword v%d, off, s[%d:%d], 0 offset:8' % (vT, S_DBG, S_DBG + 3))
    a.label('L_exit')
    a('s_endpgm')
    txt = '; @launch grid=(256,1,1) block=(256,1,1) lds=163840\n.amdgcn_target "amdgcn-amd-amdhsa--gfx950"\n.text\n'
    txt += kernel_head('g1_kernel') + a.finalize(True)
    txt += '.section .rodata,"a"\n.p2align 6\n' + kernel_desc('g1_kernel')
    return txt

class G2(G1):
    vWr8, vWs8, vF2 = 32, 40, 128
    _ = 0
    WB = 98304
    def mark(s, i): pass
    def cmark(s, i):
        l = s.a.newlabel('Lm')
        s.a('s_cmp_eq_u32 s%d, 0' % sCnt)
        s.a('s_cbranch_scc0 %s' % l)
        s.mark(i)
        s.a.label(l)
    def __init__(s, a, tag):
        G1.__init__(s, a, 8, tag)
    def setup(s):
        a = s.a
        G1.setup(s)
        for i in range(4):
            a('v_mov_b32 v%d, v%d' % (s.vWs8 + i, vWs + i))
            a('v_add_u32 v%d, 256, v%d' % (s.vWs8 + 4 + i, vWs + i))
        a('s_add_u32 s%d, s%d, %d' % (sWl, sWl, s.WB - s.XB))
        s.bits(vT, [(2, 3, 0)])
        a('s_lshr_b32 s%d, s%d, 1' % (sT0, sW))
        a('s_lshl_b32 s%d, s%d, 14' % (sT0, sT0))
        a('s_add_u32 s%d, s%d, %d' % (sT0, sT0, s.WB))
        s.bits(vT + 2, [(4, 2, 11), (2, 2, 8), (0, 2, 3)], 's%d' % sT0)
        for nt in range(8):
            a('v_xor_b32 v%d, %d, v%d' % (vT + 3, nt, vT))
            a('v_lshl_add_u32 v%d, v%d, 5, v%d' % (s.vWr8 + nt, vT + 3, vT + 2))
    def xd(s): return [('s_add_u32 m0, s%d, %d' % (sXm, i * 1024), 'buffer_load_dwordx4 v%d, s[%d:%d], s%d offen lds' % (vXs + i, S_X, S_X + 3, sXo)) for i in range(8)]
    def wd(s, par): return [('s_add_u32 m0, s%d, %d' % (sWl, par * 32768 + i * 4096), 'buffer_load_dwordx4 v%d, s[%d:%d], s%d offen lds' % (s.vWs8 + i, S_WC, S_WC + 3, sWo)) for i in range(8)]
    def xadv(s, sw):
        return ['s_mov_b32 s%d, s%d' % (sXo, sNX) if sw else 's_add_u32 s%d, s%d, 128' % (sXo, sXo), 's_add_u32 s%d, s%d, 32768' % (sSt, sSt),
                ['s_cmp_eq_u32 s%d, 98304' % sSt, 's_cselect_b32 s%d, 0, s%d' % (sSt, sSt)], 's_add_u32 s%d, s%d, s%d' % (sXm, sXl, sSt),
                ['s_cmp_eq_u32 s%d, 65536' % sSt, 's_cselect_b32 s%d, s%d, 32768' % (sT3, sRd)]]
    def wadv(s, sw):
        return ['s_mov_b32 s%d, s%d' % (sWo, sNW), 's_mov_b64 s[%d:%d], s[%d:%d]' % (S_WC, S_WC + 1, sNP, sNP + 1)] if sw else ['s_add_u32 s%d, s%d, 0x80000' % (sWo, sWo)]
    def rd2(s, st, ks, par):
        b = s.vF2 + 64 * st
        w = ['ds_read_b64_tr_b16 %s, v%d offset:%d' % (vr(b + 32 + 4 * nt + 2 * v2, 2), s.vWr8 + nt, par * 32768 + (32 * ks + 4 * v2) * 256) for nt in range(8) for v2 in range(2)]
        x = ['ds_read_b128 %s, v%d offset:%d' % (vr(b + 4 * mt, 4), vXr1 if ks else vXr0, mt * 2048) for mt in range(8)]
        return w[:2] + x[:1] + w[2:] + x[1:]
    def ph(s, st, reads, dm, tail, extra=(), first=False):
        a = s.a; n = 64
        slots = {}
        def put(k, x): slots.setdefault(min(k, n - 1), []).extend([x] if isinstance(x, str) else x)
        for i, r in enumerate(reads): put(2 * i, r)
        for i, (m, d) in enumerate(dm): put(1 + 6 * i, m); put(3 + 6 * i, d)
        for i, x in enumerate(tail): put(50 + i, x)
        ex = list(extra)
        for i, x in enumerate(ex): put(1 + (i * 60 // max(len(ex), 1)), x)
        b = s.vF2 + 64 * st
        k = 0
        for mt in range(8):
            for nt in range(8):
                d = ar((mt * 8 + nt) * 4, 4)
                a('v_mfma_f32_16x16x32_bf16 %s, %s, %s, %s' % (d, vr(b + 32 + 4 * nt, 4), vr(b + 4 * mt, 4), '0' if first else d))
                for x in slots.get(k, []): a(x)
                k += 1
    def run(s, next_job, more, signal, pre_epi=None, prev_signal=None):
        a = s.a; t = s.tag
        def flat(L):
            for x in L:
                for y in ([x] if isinstance(x, str) else x): a(y)
        a('s_mov_b32 s%d, 65536' % sSt)
        a('s_mov_b32 s%d, %d' % (sRd, (-65536) & 0xffffffff))
        flat(next_job()); flat(s.xadv(True)); flat(s.wadv(True))
        a('s_barrier')
        for k in range(2):
            flat(s.xd()); flat(s.xadv(False)); flat(s.wd(k)); flat(s.wadv(False))
        for i in range(4): a('v_mov_b32 v%d, -1' % (vT + 4 + i))
        a('s_mov_b32 s%d, 0' % sCnt)
        a('s_waitcnt vmcnt(16)')
        a('s_barrier')
        if prev_signal: prev_signal()
        flat(s.rd2(0, 0, 0)[:12]); a('s_waitcnt lgkmcnt(3)'); flat(s.rd2(0, 0, 0)[12:])
        a('s_waitcnt vmcnt(0)')
        s.mark(10)
        flips = ['v_add_u32 v%d, s%d, v%d' % (r, sT3, r) for r in (vXr0, vXr1)]
        kv = ['buffer_store_dwordx4 %s, v%d, s[%d:%d], s%d offen sc1' % (vr(vT + 4, 4), vL16, S_WS, S_WS + 3, sKv), 's_add_u32 s%d, s%d, 0x20000' % (sKv, sKv)]
        def body(par, first=False, sw=False, post=None, extra=(), tailB=(), nA=0):
            a('s_waitcnt lgkmcnt(0)')
            s.ph(0, s.rd2(1, 1, par), s.xd(), s.xadv(sw) + flips, extra, first)
            a('s_waitcnt vmcnt(%d) lgkmcnt(0)' % (8 + nA))
            a('s_barrier')
            if post: post()
            s.ph(1, s.rd2(0, 0, 1 - par), s.wd(par), s.wadv(sw) + list(tailB))
        def post():
            l2 = a.newlabel('Lg2')
            a('s_cmp_eq_u32 s%d, 0' % sCnt)
            a('s_cbranch_scc1 %s' % l2)
            signal()
            a.label(l2)
        a.label('L_g2tile_%s' % t)
        a('s_mov_b32 s%d, s%d' % (sOut, sOutN))
        a('s_mov_b32 s%d, s%d' % (sSigC, sSigN))
        a('s_mov_b32 s%d, s%d' % (sKv, sKvN))
        body(0, first=True, nA=32)
        body(1, post=post, extra=next_job(), tailB=['s_mov_b32 s%d, 0' % sIt])
        a.label('L_g2loop_%s' % t)
        body(0, extra=kv, nA=1)
        body(1, extra=kv, nA=1, tailB=['s_add_u32 s%d, s%d, 1' % (sIt, sIt), ['s_cmp_eq_u32 s%d, 4' % sIt, 's_cselect_b32 s%d, s%d, s%d' % (sKv, sDmp, sKv)], 's_cmp_lt_u32 s%d, 5' % sIt])
        a('s_cbranch_scc1 L_g2loop_%s' % t)
        body(0); body(1, sw=True); body(0); body(1)
        if pre_epi: pre_epi()
        s.cmark(11)
        e0 = s.vF2 + 64
        for mt in range(8):
            for pr in range(4):
                r = e0 + 12 * ((4 * mt + pr) % 5)
                for i in range(8): a('v_accvgpr_read_b32 v%d, a%d' % (r + 4 + i, (mt * 8 + 2 * pr) * 4 + i))
                for i in range(4): a('v_cvt_pk_bf16_f32 v%d, v%d, v%d' % (r + i, r + 4 + 2 * i, r + 5 + 2 * i))
                a('buffer_store_dwordx4 %s, v%d, s[%d:%d], s%d offen offset:%d sc1' % (vr(r, 4), vL16, S_WS, S_WS + 3, sOut, pr * 1024))
            a('s_add_u32 s%d, s%d, 0x20000' % (sOut, sOut))
        s.cmark(12)
        a('s_mov_b32 s%d, 1' % sCnt)
        a('s_mov_b32 s%d, s%d' % (sSigD, sSigC))
        more()
        a('s_cbranch_scc1 L_g2tile_%s' % t)
        if prev_signal: return
        a('s_waitcnt vmcnt(0) lgkmcnt(0)')
        a('s_barrier')
        signal()
    def job(s, sRow, sCol):
        return ['s_lshl_b32 s%d, s%d, 19' % (sNX, sRow),
                's_and_b32 s%d, s%d, 15' % (sT0, sCol),
                's_lshl_b32 s%d, s%d, 9' % (sNW, sT0),
                's_lshr_b32 s%d, s%d, 4' % (sT1, sCol),
                ['s_cmp_eq_u32 s%d, 1' % sT1, 's_cselect_b64 s[%d:%d], s[%d:%d], s[%d:%d]' % (sNP, sNP + 1, S_WV, S_WV + 1, S_WK, S_WK + 1)],
                ['s_cmp_eq_u32 s%d, 2' % sT1, 's_cselect_b64 s[%d:%d], s[%d:%d], s[%d:%d]' % (sNP, sNP + 1, S_WQ, S_WQ + 1, sNP, sNP + 1), 's_cselect_b32 s%d, s%d, s%d' % (sKvN, sDmp, sKvm)],
                's_lshl_b32 s%d, s%d, 24' % (sOutN, sT1),
                's_lshl_b32 s%d, s%d, 11' % (sT1, sT1),
                's_add_u32 s%d, s%d, s%d' % (sKvN, sKvN, sT1),
                's_lshl_b32 s%d, s%d, 1' % (sT0, sT0),
                's_lshr_b32 s%d, s%d, 1' % (sT1, sW),
                's_add_u32 s%d, s%d, s%d' % (sT0, sT0, sT1),
                's_lshl_b32 s%d, s%d, 12' % (sT0, sT0),
                's_add_u32 s%d, s%d, s%d' % (sOutN, sOutN, sT0),
                's_add_u32 s%d, s%d, s%d' % (sKvN, sKvN, sT0),
                's_lshl_b32 s%d, s%d, 20' % (sT0, sRow),
                's_add_u32 s%d, s%d, s%d' % (sKvN, sKvN, sT0),
                's_and_b32 s%d, s%d, 1' % (sT1, sW),
                's_lshl_b32 s%d, s%d, 10' % (sT0, sT1),
                's_add_u32 s%d, s%d, s%d' % (sKvN, sKvN, sT0),
                's_lshl_b32 s%d, s%d, 1' % (sT0, sRow),
                's_add_u32 s%d, s%d, s%d' % (sT0, sT0, sT1),
                's_lshl_b32 s%d, s%d, 20' % (sT0, sT0),
                's_add_u32 s%d, s%d, s%d' % (sOutN, sOutN, sT0)]

class G3(G1):
    NS = 4
    vF3, vSt3, vAc = 32, 96, 128
    XL = 131072 - 32768
    def __init__(s, a, tag):
        G1.__init__(s, a, 4, tag)
        s.NS = 4
    def mark(s, i): pass
    def setup(s):
        a = s.a
        G1.setup(s)
        a('s_and_b32 s%d, s%d, 1' % (sT0, sW))
        a('s_mul_i32 s%d, s%d, %d' % (sT0, sT0, 4 * 2048))
        for r in (vXr0, vXr1): a('v_subrev_u32 v%d, s%d, v%d' % (r, sT0, r))
        a('s_sub_u32 s%d, s%d, %d' % (sWl, sWl, s.XB))
        s.bits(vT, [(2, 3, 0)])
        a('s_lshl_b32 s%d, s%d, 1' % (sT0, sW))
        a('v_xor_b32 v%d, s%d, v%d' % (vT, sT0, vT))
        s.bits(vT + 2, [(4, 2, 11), (2, 2, 8), (0, 2, 3)])
        for nt in range(2):
            a('v_xor_b32 v%d, %d, v%d' % (vT + 3, nt, vT))
            a('v_lshl_add_u32 v%d, v%d, 5, v%d' % (vWr + nt, vT + 3, vT + 2))
            a('v_add_u32 v%d, 0x10000, v%d' % (vWr + 2 + nt, vWr + nt))
        for r in (vXr0, vXr1): a('v_add_u32 v%d, 0x20000, v%d' % (r, r))
        for i in range(4): a('v_mov_b32 v%d, -1' % (vT + 4 + i))
    def xd(s): return [('s_add_u32 m0, s%d, %d' % (sXm, i * 1024), 'buffer_load_dwordx4 v%d, s[%d:%d], s%d offen lds' % (vXs + i, S_X, S_X + 3, sXo)) for i in range(4)]
    def slot(s, k): return 163840 - s.NS * 16384 + ((k + s.NS - 2) % s.NS) * 16384
    def flat(s, L):
        for x in L:
            for y in ([x] if isinstance(x, str) else x): s.a(y)
    def xstage(s, k, sw=False):
        return ['s_add_u32 s%d, s%d, %d' % (sXm, sXl, s.slot(k))], s.xd(), ['s_mov_b32 s%d, s%d' % (sXo, sNX) if sw else 's_add_u32 s%d, s%d, 128' % (sXo, sXo)]
    def loadw(s, after_issue=None, after_first=None, late=None):
        a = s.a
        def dma(q):
            for i in range(16):
                a('s_add_u32 m0, s%d, %d' % (sWl, (q % 2) * 65536 + i * 4096))
                a('buffer_load_dwordx4 v%d, s[%d:%d], s%d offen lds' % (vWs + i % 4, S_WC, S_WC + 3, sWo))
                if i % 4 == 3: a('s_add_u32 s%d, s%d, 0x80000' % (sWo, sWo))
        a('s_barrier')
        dma(0); dma(1)
        nx = after_issue() if after_issue else 0
        for q in range(4):
            a('s_waitcnt vmcnt(%d)' % (16 + nx if q == 0 else 24 if q == 1 else 24 + nl if q == 2 else nl))
            if q == 0 and after_first: after_first()
            a('s_barrier')
            for k in range(8):
                for nt in range(2):
                    for v2 in range(2):
                        a('ds_read_b64_tr_b16 %s, v%d offset:%d' % (ar(((q * 8 + k) * 2 + nt) * 4 + 2 * v2, 2), vWr + 2 * (q % 2) + nt, (32 * k + 4 * v2) * 256))
                a('s_waitcnt lgkmcnt(8)')
            a('s_waitcnt lgkmcnt(0)')
            a('s_barrier')
            if q < 2: dma(q + 2)
            if q == 1: nl = late() if late else 0
            if q == 0:
                for k in range(2):
                    for p in s.xstage(k): s.flat(p)
        for k in range(2, s.NS - 1):
            for p in s.xstage(k): s.flat(p)
    def rdx(s, st, ks): return ['ds_read_b128 %s, v%d offset:%d' % (vr(s.vF3 + 32 * st + 4 * mt, 4), vXr1 if ks else vXr0, mt * 2048) for mt in range(8)]
    def tiles(s, next_tile, more, signal, first_now, pre_sig=None):
        a = s.a; t = s.tag
        def ph(st, kk, fill, first):
            slots = {}
            for i, x in enumerate(fill): slots.setdefault(i * 15 // max(len(fill), 15), []).extend([x] if isinstance(x, str) else x)
            k = 0
            for mt in range(8):
                for nt in range(2):
                    d = vr(s.vAc + (mt * 2 + nt) * 4, 4)
                    a('v_mfma_f32_16x16x32_bf16 %s, %s, %s, %s' % (d, ar((kk * 2 + nt) * 4, 4), vr(s.vF3 + 32 * st + 4 * mt, 4), '0' if first else d))
                    for x in slots.get(k, []): a(x)
                    k += 1
        def mix(*Ls):
            out = []
            for i in range(max(len(L) for L in Ls)):
                for L in Ls:
                    if i < len(L): out.append(L[i])
            return out
        st1 = lambda mt: ['buffer_store_dwordx4 %s, v%d, s[%d:%d], s%d offen sc1' % (vr(s.vSt3 + 4 * mt, 4), vL16, S_WS, S_WS + 3, sOutP), 's_add_u32 s%d, s%d, 0x20000' % (sOutP, sOutP)]
        kv = ['buffer_store_dwordx4 %s, v%d, s[%d:%d], s%d offen sc1' % (vr(vT + 4, 4), vL16, S_WS, S_WS + 3, sKv), 's_add_u32 s%d, s%d, 0x40000' % (sKv, sKv)]
        cv = lambda k: ['v_cvt_pk_bf16_f32 v%d, v%d, v%d' % (s.vSt3 + 2 * k + i, s.vAc + 4 * k + 2 * i, s.vAc + 4 * k + 2 * i + 1) for i in range(2)]
        s.flat(s.rdx(0, 0))
        a('s_mov_b32 s%d, 0x%x' % (sOutP, WS_DUMP))
        a('s_mov_b32 s%d, 0x%x' % (sSigD, WS_DUMP))
        a.label('L_g3_%s' % t)
        a('s_mov_b32 s%d, s%d' % (sOut, sOutN))
        a('s_mov_b32 s%d, s%d' % (sSigC, sSigN))
        a('s_mov_b32 s%d, s%d' % (sKv, sKvN))
        LA = s.NS - 1
        exn = lambda i: 1 if (i % 16) < 10 else 0
        for i in range(16):
            pre, dm, adv = s.xstage(i + LA, sw=(i == 15 - LA))
            dml = [x for p in dm for x in p]
            d = (s.slot(i + 1) - s.slot(i)) & 0xffffffff
            ex = st1(i) if i < 8 else kv if i < 10 else []
            a('s_waitcnt lgkmcnt(0)')
            ph(0, 2 * i, mix(s.rdx(1, 1), pre + dml) + adv + ex + ['v_add_u32 v%d, 0x%x, v%d' % (r, d, r) for r in (vXr0, vXr1)], i == 0)
            a('s_waitcnt vmcnt(%d) lgkmcnt(0)' % (4 * (LA - 1) + sum(exn(j) for j in range(max(i - LA + 1, 0), i + 1))))
            a('s_barrier')
            if i == 7 + LA: signal()
            fill = s.rdx(0, 0)
            if i == 1: fill = mix(fill, next_tile())
            if i == 15: fill = fill[:4] + [[fill[4 + k]] + cv(k) if k < 4 else cv(k) for k in range(11)]
            ph(1, 2 * i + 1, fill, False)
        for k in range(11, 16): s.flat(cv(k))
        a('s_mov_b32 s%d, s%d' % (sSigD, sSigC))
        a('s_mov_b32 s%d, s%d' % (sOutP, sOut))
        l1 = a.newlabel('Lg3')
        more()
        a('s_cbranch_scc0 L_g3e_%s' % t)
        first_now()
        a('s_cbranch_scc0 L_g3_%s' % t)
        if pre_sig: pre_sig[0]()
        for mt in range(8): s.flat(st1(mt))
        a('s_waitcnt vmcnt(0)')
        a('s_barrier')
        if pre_sig: pre_sig[1]()
        signal()
        a('s_barrier')
        if pre_sig: pre_sig[2]()
        a('s_mov_b32 s%d, 0x%x' % (sOutP, WS_DUMP))
        a('s_mov_b32 s%d, 0x%x' % (sSigD, WS_DUMP))
        a('s_branch L_g3_%s' % t)
        a.label('L_g3e_%s' % t)
        a('s_waitcnt vmcnt(0) lgkmcnt(0)')
    def flush(s):
        for mt in range(8):
            s.a('buffer_store_dwordx4 %s, v%d, s[%d:%d], s%d offen sc1' % (vr(s.vSt3 + 4 * mt, 4), vL16, S_WS, S_WS + 3, sOutP))
            s.a('s_add_u32 s%d, s%d, 0x20000' % (sOutP, sOutP))
```

```python
import sys, json
from ag import *
from common import *
import gen_chain11 as gc
import gen_g1 as g1
import gen_ao as ao

NAME = 'concat_heads__ssm_conv_h3__memory_aug_recurrent_mem_tr__prompt'
LDS = 163840
WS_KVC = WS_CTR + 262144
sKVC = 85

sWave, sClaim = 100, 101
vClaim = 15
L_FLAG = 163840 - 16

def claim(a, st0, st1):
    a('s_lshr_b32 s%d, s2, 3' % st0)
    a('s_lshl_b32 s%d, 1, s%d' % (st0, st0))
    a('s_and_b32 s%d, s2, 7' % st1)
    a('s_lshl_b32 s%d, s%d, 2' % (st1, st1))
    a('v_mov_b32 v%d, s%d' % (vClaim, st0))
    a('s_mov_b64 exec, 1')
    a('buffer_atomic_or v%d, off, s[28:31], s%d offset:192 sc0 sc1' % (vClaim, st1))
    a('s_mov_b64 exec, -1')

def verify_role(a, st0, st1, vt):
    l0, l1, l2, ok = [a.newlabel('Lvr') for _ in range(4)]
    a('s_cmp_lg_u32 s%d, 0' % sClaim)
    a('s_cbranch_scc1 %s' % ok)
    a('v_mov_b32 v%d, %d' % (vt, L_FLAG))
    a('s_cmp_eq_u32 s%d, 0' % sWave)
    a('s_cbranch_scc0 %s' % l2)
    a('s_mov_b32 s3, s2')
    a('s_mov_b32 vcc_hi, 600')
    a.label(l0)
    a('v_readfirstlane_b32 s%d, v%d' % (st1, vClaim))
    a('s_lshr_b32 s%d, s2, 3' % st0)
    a('s_bitcmp1_b32 s%d, s%d' % (st1, st0))
    a('s_cbranch_scc0 %s' % l1)
    a('s_cmp_eq_u32 s%d, -1' % st1)
    a('s_cselect_b32 s%d, 1, 8' % st0)
    a('s_add_u32 s2, s2, s%d' % st0)
    a('s_and_b32 s2, s2, 255')
    claim(a, st0, st1)
    a('s_waitcnt vmcnt(0)')
    a('s_sub_u32 vcc_hi, vcc_hi, 1')
    a('s_cbranch_scc0 %s' % l0)
    a('s_mov_b32 s2, 256')
    a.label(l1)
    a('v_mov_b32 v%d, s2' % (vt + 1))
    a('s_mov_b32 s2, s3')
    a('ds_write_b32 v%d, v%d' % (vt, vt + 1))
    a('s_waitcnt lgkmcnt(0)')
    a.label(l2)
    a('s_barrier')
    a('ds_read_b32 v%d, v%d' % (vt + 1, vt))
    a('s_mov_b32 s%d, 1' % sClaim)
    a('s_waitcnt lgkmcnt(0)')
    a('v_readfirstlane_b32 s%d, v%d' % (st0, vt + 1))
    a('s_cmp_eq_u32 s%d, s2' % st0)
    a('s_cbranch_scc1 %s' % ok)
    a('s_cmp_ge_u32 s%d, 256' % st0)
    a('s_cbranch_scc1 L_exit')
    a('s_and_b32 s2, s%d, 255' % st0)
    a('s_waitcnt vmcnt(0)')
    a('s_barrier')
    a('s_branch L_restart')
    a.label(ok)

class Chain(gc.Chain):
    def get_wave(s): s.a('s_mov_b32 s%d, s%d' % (gc.sW, sWave))
    def verify(s):
        a = s.a
        verify_role(a, gc.sT0, gc.sT1, gc.vT)
        a('s_lshl_b32 s%d, s%d, 10' % (sKVC, gc.sG))
        a('s_add_u32 s%d, s%d, 0x%x' % (sKVC, sKVC, WS_KVC))
        a('s_or_b32 s%d, s%d, s%d' % (gc.sT2, gc.sJ, gc.sW))
        a('s_cselect_b32 s%d, 0x%x, s%d' % (gc.sT0, WS_DUMP, sKVC))
        a('v_mov_b32 v%d, 0' % (gc.vT + 1))
        a('buffer_store_dword v%d, v%d, s[4:7], s%d offen sc1' % (gc.vT + 1, gc.vL16, gc.sT0))
    def counted(s):
        a = s.a
        a('s_cmp_eq_u32 s%d, 0' % gc.sJ)
        a('s_cselect_b32 s%d, 0, 128' % gc.sT0)
        a('v_mov_b32 v%d, 1' % (gc.vT + 7))
        a('buffer_atomic_add v%d, off, s[28:31], s%d offset:128 sc1' % (gc.vT + 7, gc.sT0))
    def poll_ctr(s, soff):
        a = s.a
        l, ok = a.newlabel('Lkv'), a.newlabel('Lkv')
        a.label(l)
        a('buffer_load_dword v%d, off, s[4:7], s%d sc1' % (gc.vT, soff))
        a('s_waitcnt vmcnt(0)')
        a('v_readfirstlane_b32 s%d, v%d' % (gc.sT1, gc.vT))
        a('s_cmp_eq_u32 s%d, 8' % gc.sT1)
        a('s_cbranch_scc1 %s' % ok)
        a('s_sleep 4')
        s.tmo(l)
        a.label(ok)
    def kv_wait_init(s):
        a = s.a
        s.mark(3)
        l, ok = a.newlabel('Lkv'), a.newlabel('Lkv')
        a.label(l)
        a('buffer_load_dword v%d, off, s[28:31], 0 offset:128 sc1' % gc.vT)
        a('s_waitcnt vmcnt(0)')
        a('v_readfirstlane_b32 s%d, v%d' % (gc.sT1, gc.vT))
        a('s_cmp_eq_u32 s%d, 16' % gc.sT1)
        a('s_cbranch_scc1 %s' % ok)
        a('s_sleep 4')
        s.tmo(l)
        a.label(ok)
        s.poll_ctr(sKVC)
        s.mark(4)
    def kv_probe(s):
        a = s.a
        a('s_add_u32 s%d, s%d, 2' % (gc.sE, gc.sStep))
        a('s_and_b32 s%d, s%d, 124' % (gc.sE, gc.sE))
        a('s_cmp_lt_u32 s%d, 64\ns_cselect_b32 s%d, s%d, 2' % (gc.sE, gc.sE, gc.sE))
        a('s_lshl4_add_u32 s%d, s%d, s%d' % (gc.sE, gc.sE, sKVC))
        a('buffer_load_dword v%d, off, s[4:7], s%d sc1' % (gc.vT + 1, gc.sE))
    def pre_loop(s):
        a = s.a
        a('s_load_dwordx2 s[8:9], s[0:1], %d' % KA['A_q'])
        a('s_load_dwordx2 s[12:13], s[0:1], %d' % KA['A_ssmk'])
        a('s_load_dwordx2 s[16:17], s[0:1], %d' % KA['A_ssmD'])
        a('s_mov_b32 s10, 0x%x' % (4 * MB)); a('s_mov_b32 s14, 0x%x' % (4 * MB))
        a('s_lshl_b32 s20, s%d, 5' % gc.sX)
        a('s_add_u32 s20, s20, s%d' % gc.sC)
        a('s_lshl_b32 s21, s20, 4')
        a('s_waitcnt lgkmcnt(0)')
        a('s_load_dwordx4 s[68:71], s[16:17], s21')
        a('s_waitcnt lgkmcnt(0)')
    def kv_check(s, tag):
        a = s.a
        a('s_waitcnt vmcnt(%d)' % s.nlate)
        a('v_cmp_ne_u32 vcc, 8, v%d' % (gc.vT + 1))
        a('s_cbranch_vccnz L_kvs_%s' % tag)
        a.label('L_kvo_%s' % tag)
    def kv_slow(s, tag):
        s.a.label('L_kvs_%s' % tag)
        s.poll_ctr(gc.sE)
        s.a('s_branch L_kvo_%s' % tag)

def mark(a, i, opt, v=30):
    if not opt.get('marks'): return
    a('s_memrealtime vcc')
    a('s_waitcnt lgkmcnt(0)')
    a('v_mov_b32 v%d, vcc_lo' % v)
    a('s_lshl_b32 vcc_lo, s2, 6')
    a('s_add_u32 vcc_lo, vcc_lo, 0x%x' % (WS_PROF + 8 * MB))
    a('buffer_store_dword v%d, off, s[4:7], vcc_lo offset:%d' % (v, 4 * i))
    if i < 6:
        a('s_memtime vcc')
        a('s_waitcnt lgkmcnt(0)')
        a('v_mov_b32 v%d, vcc_lo' % v)
        a('s_lshl_b32 vcc_lo, s2, 6')
        a('s_add_u32 vcc_lo, vcc_lo, 0x%x' % (WS_PROF + 9 * MB))
        a('buffer_store_dword v%d, off, s[4:7], vcc_lo offset:%d' % (v, 4 * i))

def build(opt):
    a = Asm()
    ptrs = [(4, 'ws', WS_BYTES), (8, 'Wq', 8 * MB), (12, 'Wk', 8 * MB), (16, 'Wv', 8 * MB), (20, 'Wo', 8 * MB), (24, 'B_mem0', 16384), (28, 'dbg', 256)]
    side = [(g1.S_X, 'B_x', 4 * MB), (g1.S_WC, 'Wk', 8 * MB), (ao.S_OUT, 'out', 8 * MB), (ao.S_AQ, 'A_q', 4 * MB), (ao.S_AK, 'A_k', 4 * MB), (ao.S_AV, 'A_v', 4 * MB), (ao.S_AH, 'A_ssmk', 4 * MB)]
    a('s_cmp_ge_u32 s2, 256')
    a('s_cbranch_scc1 L_exit')
    a('v_lshrrev_b32 v1, 6, v0')
    a('v_readfirstlane_b32 s%d, v1' % 100)
    a('v_and_b32 v0, 63, v0')
    a('s_mov_b32 s%d, 0' % 101)
    a('s_getreg_b32 s3, hwreg(HW_REG_XCC_ID)')
    a('s_and_b32 s3, s3, 7')
    a('s_and_b32 s2, s2, 248')
    a('s_or_b32 s2, s2, s3')
    a.label('L_restart')
    for r, k, n in ptrs + side: a('s_load_dwordx2 s[%d:%d], s[0:1], %d' % (r, r + 1, KA[k]))
    for r, k, n in ptrs + side:
        a('s_mov_b32 s%d, 0x%x' % (r + 2, n)); a('s_mov_b32 s%d, 0x20000' % (r + 3))
    a('s_waitcnt lgkmcnt(0)')
    lc = a.newlabel('Lcl')
    a('s_or_b32 s3, s%d, s%d' % (sWave, sClaim))
    a('s_cbranch_scc1 %s' % lc)
    claim(a, 40, 41)
    a.label(lc)
    if opt.get('touchc', True):
        lt = a.newlabel('Ltc')
        a('s_cmp_eq_u32 s%d, 3' % sWave)
        a('s_cbranch_scc0 %s' % lt)
        a('s_getpc_b64 s[40:41]')
        a.label('L_pc')
        a('s_lshr_b32 s42, s2, 3')
        a('s_lshl_b32 s42, s42, 12')
        a('v_lshlrev_b32 v1, 6, v0')
        a('v_add_u32 v1, s42, v1')
        a('v_min_u32 v1, L_code_end-L_pc-4, v1')
        a('global_load_dword v%d, v1, s[40:41]' % vClaim)
        a.label(lt)
    mark(a, 0, opt)
    NX = opt.get('NX', 4)
    a('s_and_b32 s3, s2, 7')
    if NX == 4: a('s_cmp_ge_u32 s3, 4')
    else: a('s_cmp_ge_u32 s2, 128')
    a('s_cbranch_scc1 L_side')
    copt = dict(b3pos=21, b4=1, hpre=8, npre=34, warm=2, endwait=False, tot=False, NX=NX)
    copt.update(opt.get('chain', {}))
    ch = Chain(a, opt=copt)
    ch.mark = lambda i: mark(a, i, opt, 255)
    if opt.get('only'): a('s_endpgm')
    ch.emit()
    mark(a, 2, opt)
    if True:
        a('s_mov_b32 s%d, s%d' % (g1.sW, sWave))
        c2 = ao.Conv2(a); c2.mark = lambda i: mark(a, i + 2, opt)
        c2.S_AQ = 8; c2.S_AH = 12; c2.sDv = 68
        c2.core(lambda: None, 0, 20)
        def wait_p1():
            l, ok = a.newlabel('Lwp'), a.newlabel('Lwp')
            a.label(l)
            a('buffer_load_dword v20, off, s[4:7], s47 sc1')
            a('s_waitcnt vmcnt(0)')
            a('v_readfirstlane_b32 s%d, v20' % g1.sT0)
            a('s_cmp_eq_u32 s%d, 8' % g1.sT0)
            a('s_cbranch_scc1 %s' % ok)
            a('s_sleep 8')
            a('s_sub_u32 s%d, s%d, 1' % (ao.sTmo, ao.sTmo))
            a('s_cbranch_scc0 %s' % l)
            a('s_endpgm')
            a.label(ok)
        mark(a, 11, opt)
    a('s_endpgm')
    a.label('L_side')
    sW, sT0, sT1 = g1.sW, g1.sT0, g1.sT1
    sTeam, sMem, sTmo = ao.sTeam, ao.sMem, ao.sTmo
    if NX == 4:
        a('s_sub_u32 s%d, s3, 4' % sTeam)
        a('s_lshr_b32 s%d, s2, 3' % sMem)
    else:
        a('s_lshr_b32 s%d, s3, 1' % sTeam)
        a('s_bfe_u32 s%d, s2, 0x40003' % sMem)
        a('s_and_b32 s3, s3, 1')
        a('s_lshl_b32 s3, s3, 4')
        a('s_add_u32 s%d, s%d, s3' % (sMem, sMem))
    a('s_mov_b32 s%d, 400000' % sTmo)
    a('s_mov_b32 s%d, s%d' % (sW, sWave))
    def one_lane_add(val, soff, off, srd=28):
        l = a.newlabel('Lone')
        a('s_cmp_eq_u32 s%d, 0' % sW)
        a('s_cbranch_scc0 %s' % l)
        a('v_mov_b32 v20, %s' % val)
        a('s_mov_b64 exec, 1')
        a('buffer_atomic_add v20, off, s[%d:%d], %s offset:%d sc1' % (srd, srd + 3, soff, off))
        a('s_mov_b64 exec, -1')
        a.label(l)
    sCol = 62
    sGrp = 63
    a('s_lshr_b32 s%d, s%d, 1' % (sCol, sMem))
    a('s_lshl_b32 s%d, s%d, 4' % (sT0, sTeam))
    a('s_add_u32 s%d, s%d, s%d' % (sCol, sCol, sT0))
    a('s_bfe_u32 s%d, s%d, 0x40001' % (sGrp, sCol))
    a('s_lshl_b32 s%d, s%d, 10' % (sGrp, sGrp))
    a('s_add_u32 s%d, s%d, 0x%x' % (sGrp, sGrp, WS_KVC))
    def wait_dbg(off, target, w0only):
        l, ok = a.newlabel('Lwg'), a.newlabel('Lwg')
        if w0only:
            a('s_cmp_eq_u32 s%d, 0' % sW)
            a('s_cbranch_scc0 %s' % ok)
        a.label(l)
        a('buffer_load_dword v20, off, s[28:31], 0 offset:%d sc1' % off)
        a('s_waitcnt vmcnt(0)')
        a('v_readfirstlane_b32 s%d, v20' % sT0)
        a('s_cmp_eq_u32 s%d, %d' % (sT0, target))
        a('s_cbranch_scc1 %s' % ok)
        a('s_sleep 16')
        a('s_sub_u32 s%d, s%d, 1' % (sTmo, sTmo))
        a('s_cbranch_scc0 %s' % l)
        a('s_branch L_side_fail')
        a.label(ok)
    sJob = g1.sJob
    g3 = g1.G3(a, 'a')
    g3.NS = opt.get('ns3', 4)
    g3.setup()
    sPh, sRow, sStep_, sBaseO, sBaseK, sLeft = 56, 57, 58, 60, 61, sJob
    def describe():
        return ['s_lshl_b32 s%d, s%d, 18' % (g1.sNX, sRow), 's_lshl_b32 s%d, s%d, 20' % (g1.sOutN, sRow), 's_add_u32 s%d, s%d, s%d' % (g1.sOutN, g1.sOutN, sBaseO),
                's_lshl_b32 s%d, s%d, 19' % (g1.sKvN, sRow), 's_add_u32 s%d, s%d, s%d' % (g1.sKvN, g1.sKvN, sBaseK),
                's_lshl_b32 s%d, s%d, 6' % (g1.sSigN, sRow), 's_add_u32 s%d, s%d, s%d' % (g1.sSigN, g1.sSigN, sGrp), 's_add_u32 s%d, s%d, s%d' % (sRow, sRow, sStep_)]
    def bases():
        a('s_and_b32 s%d, s%d, 31' % (sT0, sCol))
        a('s_lshl_b32 s%d, s%d, 8' % (g1.sWo, sT0))
        a('s_lshl_b32 s%d, s%d, 12' % (sT0, sT0))
        a('s_lshr_b32 s%d, s%d, 5' % (sT1, sCol))
        a('s_lshl_b32 s%d, s%d, 24' % (sBaseO, sT1))
        a('s_add_u32 s%d, s%d, s%d' % (sBaseO, sBaseO, sT0))
        a('s_lshl_b32 s%d, s%d, 11' % (sT1, sT1))
        a('s_add_u32 s%d, s%d, s%d' % (sBaseK, sT0, sT1))
        a('s_lshl_b32 s%d, s%d, 10' % (sT0, sW))
        a('s_add_u32 s%d, s%d, s%d' % (sBaseO, sBaseO, sT0))
        a('s_and_b32 s%d, s%d, 1024' % (sT0, sT0))
        a('s_add_u32 s%d, s%d, s%d' % (sBaseK, sBaseK, sT0))
        a('s_lshr_b32 s%d, s%d, 1' % (sT0, sW))
        a('s_lshl_b32 s%d, s%d, 17' % (sT0, sT0))
        a('s_add_u32 s%d, s%d, s%d' % (sBaseK, sBaseK, sT0))
    a('s_cmp_ge_u32 s%d, 32' % sCol)
    a('s_cselect_b64 s[36:37], s[16:17], s[12:13]')
    bases()
    a('s_add_u32 s%d, s%d, 0x%x' % (sBaseK, sBaseK, WS_KVM))
    a('s_and_b32 s%d, s%d, 1' % (sRow, sMem))
    a('s_mov_b32 s%d, 2' % sStep_)
    a('s_mov_b32 s%d, 0' % sPh)
    a('s_mov_b32 s%d, 0x%x' % (g1.sSigD, WS_DUMP))
    a.label('L_phase')
    for x in describe(): a(x)
    a('s_mov_b32 s%d, s%d' % (g1.sXo, g1.sNX))
    sig = lambda: one_lane_add(2, 's%d' % g1.sSigD, 0, 4)
    def zero_ctr():
        a('v_mov_b32 v28, 0')
        a('s_and_b32 s%d, s%d, 15' % (sT0, sMem))
        a('s_lshl_b32 s%d, s%d, 2' % (sT0, sT0))
        a('s_add_u32 s%d, s%d, s%d' % (sT0, sT0, sTeam))
        a('s_lshl_b32 s%d, s%d, 11' % (sT0, sT0))
        a('s_add_u32 s%d, s%d, 0x%x' % (sT0, sT0, WS_CTR))
        a('v_lshlrev_b32 v29, 5, v0')
        a('buffer_store_dword v28, v29, s[4:7], s%d offen sc1' % sT0)
        a('s_lshl2_add_u32 s%d, s%d, s%d' % (sT0, sMem, sW))
        a('s_lshl_b32 s%d, s%d, 12' % (sT0, sT0))
        a('s_lshl_b32 s%d, s%d, 22' % (sT1, sPh))
        a('s_add_u32 s%d, s%d, s%d' % (sT0, sT0, sT1))
        a('v_lshlrev_b32 v29, 6, v0')
        a('buffer_load_dword v23, v29, s[32:35], s%d offen' % sT0)
        return 2
    def touch_x():
        if not opt.get('touchx', True): return 0
        a('s_lshl_b32 s%d, s%d, 5' % (sT0, sTeam))
        a('s_add_u32 s%d, s%d, s%d' % (sT0, sT0, sMem))
        a('s_lshl2_add_u32 s%d, s%d, s%d' % (sT0, sT0, sW))
        a('s_lshl_b32 s%d, s%d, 13' % (sT0, sT0))
        a('s_lshl_b32 s%d, s%d, 22' % (sT1, sPh))
        a('s_add_u32 s%d, s%d, s%d' % (sT0, sT0, sT1))
        a('v_lshlrev_b32 v29, 7, v0')
        a('buffer_load_dword v22, v29, s[32:35], s%d offen' % sT0)
        return 1
    g3.loadw(zero_ctr, lambda: verify_role(a, sT0, sT1, 28), None)
    sig()
    def pmark(i, ph):
        if not opt.get('marks'): return
        l = a.newlabel('Lmk')
        a('s_cmp_eq_u32 s%d, %d' % (sPh, ph))
        a('s_cbranch_scc0 %s' % l)
        mark(a, i, opt)
        a.label(l)
    pmark(14, 0); pmark(10, 1)
    def chk0():
        ok = a.newlabel('Ls0')
        a('v_readfirstlane_b32 s%d, v21' % sT0)
        a('s_cmp_eq_u32 s%d, 16' % sT0)
        a('s_cbranch_scc1 %s' % ok)
        wait_dbg(128, 16, True)
        a.label(ok)
        mark(a, 15, opt)
    g3.tiles(describe, lambda: a('s_cmp_lt_u32 s%d, 0x%x' % (g1.sNX, 4 * MB)), sig, lambda: a('s_cmp_lt_u32 s%d, 6' % sRow),
             (lambda: (mark(a, 13, opt), a('buffer_load_dword v21, off, s[28:31], 0 offset:128 sc1')), chk0, touch_x))
    a('s_cmp_eq_u32 s%d, 1' % sPh)
    a('s_cbranch_scc1 L_phase_end')
    mark(a, 1, opt)
    g3.flush()
    a('s_mov_b64 s[36:37], s[8:9]')
    a('s_lshr_b32 s%d, s%d, 2' % (sCol, sMem))
    a('s_lshl3_add_u32 s%d, s%d, s%d' % (sCol, sTeam, sCol))
    a('s_add_u32 s%d, s%d, 64' % (sCol, sCol))
    bases()
    a('s_mov_b32 s%d, 0x%x' % (sBaseK, WS_DUMP))
    a('s_mov_b32 s%d, 0x%x' % (sGrp, WS_DUMP))
    a('s_and_b32 s%d, s%d, 3' % (sRow, sMem))
    a('s_mov_b32 s%d, 4' % sStep_)
    a('s_mov_b32 s%d, 1' % sPh)
    a('s_branch L_phase')
    a.label('L_phase_end')
    g3.flush()
    cvp = ao.Conv2(a)
    a('s_load_dwordx2 s[24:25], s[0:1], %d' % KA['A_shift'])
    a('s_mov_b32 s26, 8192')
    a('s_waitcnt lgkmcnt(0)')
    cvp.p1_load(24)
    mark(a, 2, opt)
    A = ao.AO(a)
    a('s_lshl_b32 s52, s%d, 5' % sTeam)
    a('s_add_u32 s52, s52, s%d' % sMem)
    a('s_lshr_b32 s%d, s%d, 3' % (sT0, sMem))
    a('s_and_b32 s%d, s%d, 7' % (sMem, sMem))
    a('s_lshl3_add_u32 s%d, s%d, s%d' % (sMem, sTeam, sMem))
    a('s_mov_b32 s%d, s%d' % (sTeam, sT0))
    A.ids()
    a('s_lshr_b32 s47, s52, 3')
    a('s_lshl_b32 s47, s47, 10')
    a('s_add_u32 s47, s47, 0x%x' % (WS_KVC + 32))
    def done():
        one_lane_add(1, '0', 64)
        one_lane_add(1, 's47', 0, 4)
    A.load_wo(lambda: (a('s_waitcnt vmcnt(32)'), cvp.p1_compute(), mark(a, 6, opt)), done, lambda: cvp.hload(1, 52))
    mark(a, 7, opt)
    cvp.mark = lambda i: mark(a, {6: 8, 8: 9}[i], opt)
    cvp.core(wait_p1, 1, 52, True)
    mark(a, 3, opt)
    def wait_g1():
        wait_dbg(64, 128, True)
        mark(a, 4, opt)
    def amark(i):
        if not opt.get('marks'): return
        l = a.newlabel('Lmk')
        a('s_cmp_eq_u32 s52, %d' % (opt.get('aopass', 15) + (1 if i == 9 else 0)))
        a('s_cbranch_scc0 %s' % l)
        mark(a, i, opt)
        a.label(l)
    A.mark = amark
    A.DENS = opt.get('dens', 3); A.RB = opt.get('rb', False)
    A.run(wait_g1)
    mark(a, 5, opt)
    a.label('L_side_fail')
    a.label('L_exit')
    a('s_endpgm')
    a.label('L_code_end')
    head = open('cdna_kernels/%s.s.ref' % NAME).read().split('; Override launch')[0]
    txt = head + '; @launch grid=(256,1,1) block=(256,1,1) lds=%d\n.amdgcn_target "amdgcn-amd-amdhsa--gfx950"\n.text\n' % LDS
    txt += kernel_head(NAME + '_kernel') + a.finalize()
    txt += '.section .rodata,"a"\n.p2align 6\n' + kernel_desc(NAME + '_kernel')
    return txt

if __name__ == '__main__':
    for spec in sys.argv[1:]:
        name, _, o = spec.partition('=')
        open(name, 'w').write(build(json.loads(o) if o else {}))
```

```python
import math, struct
from ag import *
from common import *
from gen_g1 import S_WS, S_WO, S_DBG, sW, sT0, sT1, sT2, sT3
def f2u(x): return struct.unpack('<I', struct.pack('<f', x))[0]

S_OUT = 80; S_AQ = 84; S_AK = 88; S_AV = 92; S_AH = 96
sTeam, sMem = 53, 54
sTmo = 55

def bits(a, dst, terms, init=None, tmp=31):
    first = init is None
    if not first: a('v_mov_b32 v%d, %s' % (dst, init))
    for (src, n, sh) in terms:
        a('v_bfe_u32 v%d, v0, %d, %d' % (tmp, src, n))
        if first: a('v_lshlrev_b32 v%d, %d, v%d' % (dst, sh, tmp)); first = False
        else: a('v_lshl_add_u32 v%d, v%d, %d, v%d' % (dst, tmp, sh, dst))

class AO:
    def mark(s, i): pass
    sA, sPf, sBuf, sScale, sKm, sOst, sOld, sI, sO = 45, 46, 47, 48, 49, 50, 51, 52, 56
    sF = 57
    sMask = 58
    sHi = 74
    sCO, sCP, sKq, sCb = 76, 77, 78, 79
    sS, sPst, sPld, sDo = 32, 33, 34, 35
    sDn, sPo, sFo, bKm = 36, 37, 38, 39
    bOst, bOld, bCO, bCP = 84, 85, 86, 87
    sSch, sNit = 88, 92
    @staticmethod
    def sched(N): return [sum(1 << i for i in L) for L in (list(range(N - 1)), list(range(1, N)), list(range(3, N + 2)), list(range(2, N + 1)))]
    vL16, vQr, vKr, vVr, vMr, vIdx, vNeg, vOr, vOst, vKmw = range(1, 11)
    vT = 12
    vP = 24
    vQ = 32; vK = 48; vKm = 80; vS = 88; vA = 100; vD = 124
    vF = 140
    vB = 156
    L_KM = 24576
    L_O = 32768
    BUF1 = 98304
    DENS = 3
    MID = 16
    NL0 = 38
    RB = True
    def __init__(s, a): s.a = a
    def prefetch_list(s):
        o = [['s_lshl_b32 s%d, s%d, 18' % (sT0, s.sPf), 's_lshl_b32 s%d, s%d, 12' % (sT1, sMem), 's_add_u32 s%d, s%d, s%d' % (sT0, sT0, sT1),
              's_lshl_b32 s%d, s%d, 10' % (sT1, sW), 's_add_u32 s%d, s%d, s%d' % (sT0, sT0, sT1), 's_add_u32 s%d, s%d, s%d' % (sT1, sT1, s.sBuf)]]
        for mi, base in enumerate((WS_QF, WS_KF, WS_VF)):
            for tau in range(2):
                o.append(['s_add_u32 m0, s%d, %d' % (sT1, mi * 8192 + tau * 4096), 's_add_u32 s%d, s%d, 0x%x' % (sT2, sT0, base + tau * 131072),
                          'buffer_load_dwordx4 v%d, s[%d:%d], s%d offen sc1 lds' % (s.vL16, S_WS, S_WS + 3, sT2)])
        return o
    def odma_list(s):
        o = []
        for i in range(16):
            g = []
            if i % 4 == 0:
                g += ['s_add_u32 m0, s%d, %d' % (sT3, i * 1024), 's_add_u32 s%d, s%d, %d' % (sT2, s.sOld, i * 1024)]
            g.append('buffer_load_dwordx4 v%d, s[%d:%d], s%d offen offset:%d sc1 lds' % (s.vL16, S_WS, S_WS + 3, sT2, (i % 4) * 1024))
            o.append(g)
        o[0] = ['s_and_b32 s%d, s%d, 1' % (sT3, sW), 's_lshl_b32 s%d, s%d, 15' % (sT3, sT3), 's_lshr_b32 s%d, s%d, 1' % (sT2, sW), 's_lshl_b32 s%d, s%d, 14' % (sT2, sT2),
                's_add_u32 s%d, s%d, s%d' % (sT3, sT3, sT2), 's_add_u32 s%d, s%d, %d' % (sT3, sT3, s.L_O)] + o[0]
        return o
    def flat(s, L):
        for g in L:
            for x in g: s.a(x)
    def ids(s):
        s.a('s_lshr_b32 s%d, s%d, 3' % (s.sKq, sMem))
        s.a('s_and_b32 s%d, s%d, 7' % (s.sCb, sMem))
    def load_wo(s, mid, done, late):
        a = s.a; vT = 8
        a('s_and_b32 s%d, s%d, 1' % (sT0, sW))
        a('s_lshl_b32 s%d, s%d, 2' % (sT0, sT0))
        bits(a, vT + 2, [(4, 2, 0)], 's%d' % sT0)
        a('v_lshlrev_b32 v%d, 1, v%d' % (vT + 3, vT + 2))
        a('v_xor_b32 v%d, v0, v%d' % (vT + 3, vT + 3))
        a('v_and_b32 v%d, 15, v%d' % (vT + 3, vT + 3))
        a('v_lshlrev_b32 v%d, 4, v%d' % (vT + 3, vT + 3))
        a('v_lshl_add_u32 v%d, v%d, 11, v%d' % (vT, vT + 2, vT + 3))
        a('s_lshl_b32 s%d, s%d, 10' % (sT3, sW))
        a('s_lshl_b32 s%d, s%d, 21' % (sT0, s.sKq))
        a('s_lshl_b32 s%d, s%d, 8' % (sT1, s.sCb))
        a('s_add_u32 s%d, s%d, s%d' % (sT0, sT0, sT1))
        a('s_lshr_b32 s%d, s%d, 1' % (sT1, sW))
        a('s_lshl_b32 s%d, s%d, 14' % (sT1, sT1))
        a('s_add_u32 s%d, s%d, s%d' % (sT0, sT0, sT1))
        bits(a, vT + 2, [(2, 3, 0)])
        a('s_lshl_b32 s%d, s%d, 1' % (sT1, sW))
        a('v_xor_b32 v%d, s%d, v%d' % (vT + 2, sT1, vT + 2))
        bits(a, vT + 3, [(2, 4, 8), (0, 2, 3)])
        for nt in range(2):
            a('v_xor_b32 v%d, %d, v%d' % (vT + 4, nt, vT + 2))
            a('v_lshl_add_u32 v%d, v%d, 5, v%d' % (vT + 5 + nt, vT + 4, vT + 3))
            a('v_add_u32 v%d, 0x10000, v%d' % (vT + 7 + nt, vT + 5 + nt))
        def dma(q):
            for i in range(16):
                a('s_add_u32 m0, s%d, %d' % (sT3, (q % 2) * 65536 + i * 4096))
                a('buffer_load_dwordx4 v%d, s[%d:%d], s%d offen lds' % (vT, S_WO, S_WO + 3, sT0))
                a('s_add_u32 s%d, s%d, 0x8000' % (sT0, sT0))
        a('s_barrier')
        dma(0); dma(1)
        mid()
        waits = [24, 16, 32, 16]
        for q in range(4):
            a('s_waitcnt vmcnt(%d)' % waits[q])
            a('s_barrier')
            if q == 1: done()
            for k in range(8):
                for nt in range(2):
                    for v2 in range(2):
                        a('ds_read_b64_tr_b16 %s, v%d offset:%d' % (ar(((q * 8 + k) * 2 + nt) * 4 + 2 * v2, 2), vT + 5 + 2 * (q % 2) + nt, (32 * k + 16 * v2) * 256))
                a('s_waitcnt lgkmcnt(8)')
            a('s_waitcnt lgkmcnt(0)')
            if q < 2:
                a('s_barrier')
                dma(q + 2)
            if q == 1: late()
    def setup(s):
        a = s.a; vT = s.vT
        a('v_lshlrev_b32 v%d, 4, v0' % s.vL16)
        a('v_add_u32 v%d, %d, v%d' % (s.vOr, s.L_O, s.vL16))
        a('v_lshlrev_b32 v11, 7, v0')
        a('s_and_b32 s%d, s%d, 1' % (sT0, sW))
        a('s_lshr_b32 s%d, s%d, 1' % (sT1, sW))
        a('s_lshl_b32 s%d, s%d, 12' % (sT2, sT0))
        a('v_add_u32 v%d, s%d, v%d' % (s.vQr, sT2, s.vL16))
        a('v_add_u32 v%d, 8192, v%d' % (s.vKr, s.vL16))
        a('s_lshl_b32 s%d, s%d, 11' % (sT2, sT1))
        a('s_add_u32 s%d, s%d, 16384' % (sT2, sT2))
        bits(a, s.vVr, [(0, 2, 8), (2, 4, 4)], 's%d' % sT2)
        a('s_lshl_b32 s%d, s%d, 10' % (sT2, sT1))
        a('s_add_u32 s%d, s%d, %d' % (sT2, sT2, s.L_KM + 2048))
        bits(a, s.vMr, [(3, 1, 8), (4, 2, 6), (1, 1, 5), (2, 1, 3), (0, 1, 1)], 's%d' % sT2)
        for i in range(2): a('s_mov_b32 s%d, 0xcccccccc' % (s.sHi + i))
        a('v_mov_b32 v%d, 0x4444' % vT)
        a('v_mov_b32 v%d, 0xeeee' % (vT + 1))
        a('v_cndmask_b32 v%d, v%d, v%d, s[%d:%d]' % (s.vIdx, vT, vT + 1, s.sHi, s.sHi + 1))
        a('v_mov_b32 v%d, 0x%x' % (s.vNeg, f2u(-1e9 * math.sqrt(128))))
        a('s_mov_b32 s%d, 0x%x' % (s.sScale, f2u(math.log2(math.e) / math.sqrt(128))))
        a('s_lshl_b32 s%d, s%d, 4' % (sT2, sT0))
        bits(a, vT, [(0, 4, 0)], 's%d' % sT2)
        bits(a, vT + 1, [(4, 2, 2)])
        a('v_sub_u32 v%d, v%d, v%d' % (vT, vT, vT + 1))
        for k in range(8):
            a('v_cmp_le_i32 s[%d:%d], %d, v%d' % (s.sMask + 2 * k, s.sMask + 2 * k + 1, 16 * (k // 4) + k % 4, vT))
        a('s_lshl_b32 s%d, s%d, 10' % (sT2, sW))
        a('v_add_u32 v%d, s%d, v%d' % (s.vKmw, sT2, s.vL16))
        a('s_lshl_b32 s%d, s%d, 16' % (sT2, sT1))
        a('s_lshl_b32 s%d, s%d, 5' % (sT3, sT0))
        a('s_add_u32 s%d, s%d, s%d' % (sT2, sT2, sT3))
        a('s_lshl_b32 s%d, s%d, 6' % (sT3, s.sKq))
        a('s_add_u32 s%d, s%d, s%d' % (sT2, sT2, sT3))
        a('s_lshl_b32 s%d, s%d, 8' % (sT3, s.sCb))
        a('s_add_u32 s%d, s%d, s%d' % (sT2, sT2, sT3))
        a('s_add_u32 s%d, s%d, 2048' % (sT2, sT2))
        bits(a, s.vOst, [(0, 4, 12), (4, 2, 3)], 's%d' % sT2)
        for et in range(4): a('v_mov_b32 v%d, 0' % (s.vA + 6 * et + 5))
        a('s_lshl_b32 s%d, s%d, 16' % (sT2, s.sCb))
        a('s_add_u32 s%d, s%d, 0x%x' % (sT2, sT2, WS_PO))
        a('s_lshl_b32 s%d, s%d, 14' % (s.sPst, sW))
        a('s_lshl_b32 s%d, s%d, 10' % (sT3, s.sKq))
        a('s_add_u32 s%d, s%d, s%d' % (s.sPst, s.sPst, sT3))
        a('s_add_u32 s%d, s%d, s%d' % (s.sPst, s.sPst, sT2))
        a('s_lshl_b32 s%d, s%d, 14' % (s.sPld, s.sKq))
        a('s_lshl_b32 s%d, s%d, 12' % (sT3, sW))
        a('s_add_u32 s%d, s%d, s%d' % (s.sPld, s.sPld, sT3))
        a('s_add_u32 s%d, s%d, s%d' % (s.sPld, s.sPld, sT2))
    def next_list(s):
        o = []
        for bit, r in ((0, s.sA), (1, s.sO), (2, s.sF), (3, s.sS)):
            o += ['s_bfe_u32 s%d, s%d, 0x%x' % (sT0, s.sDo, 0x10000 | bit), 's_lshl2_add_u32 s%d, s%d, s%d' % (r, sT0, r)]
        o += ['s_add_u32 s%d, s%d, 1' % (s.sI, s.sI)]
        for k in range(4):
            o += ['s_lshr_b32 s%d, s%d, s%d' % (sT0, s.sSch + k, s.sI), 's_and_b32 s%d, s%d, 1' % (sT0 if k else s.sDn, sT0)]
            if k: o += ['s_lshl_b32 s%d, s%d, %d' % (sT0, sT0, k), 's_or_b32 s%d, s%d, s%d' % (s.sDn, s.sDn, sT0)]
        o += ['s_lshl_b32 s%d, s%d, 17' % (s.sKm, s.sA), 's_add_u32 s%d, s%d, s%d' % (s.sKm, s.sKm, s.bKm),
              's_lshl_b32 s%d, s%d, 11' % (s.sCO, s.sO), 's_add_u32 s%d, s%d, s%d' % (s.sCO, s.sCO, s.bCO),
              s.km_ld(), s.ld_ctr(0),
              's_lshl_b32 s%d, s%d, 18' % (s.sOst, s.sA), 's_add_u32 s%d, s%d, s%d' % (s.sOst, s.sOst, s.bOst),
              's_lshl_b32 s%d, s%d, 18' % (s.sOld, s.sO), 's_add_u32 s%d, s%d, s%d' % (s.sOld, s.sOld, s.bOld),
              's_lshl_b32 s%d, s%d, 11' % (s.sCP, s.sF), 's_add_u32 s%d, s%d, s%d' % (s.sCP, s.sCP, s.bCP),
              'v_mov_b32 v%d, 0' % (s.vP + 5)]
        return ['\n'.join(x) if isinstance(x, list) else x for x in o]
    def bases(s):
        a = s.a
        a('s_lshl_b32 s%d, s%d, 12' % (sT0, sMem))
        a('s_add_u32 s%d, s%d, 0x%x' % (s.bKm, sT0, WS_KVM))
        a('s_and_b32 s%d, s%d, 1' % (sT1, sW))
        a('s_lshl_b32 s%d, s%d, 17' % (sT1, sT1))
        a('s_add_u32 s%d, s%d, 0x%x' % (sT1, sT1, WS_O))
        a('s_lshr_b32 s%d, s%d, 1' % (sT2, sW))
        a('s_add_u32 s%d, s%d, s%d' % (s.bOst, sT1, sT0))
        a('s_lshl_b32 s%d, s%d, 11' % (sT0, sT2))
        a('s_add_u32 s%d, s%d, s%d' % (s.bOst, s.bOst, sT0))
        a('s_lshl_b32 s%d, s%d, 15' % (sT0, s.sKq))
        a('s_add_u32 s%d, s%d, s%d' % (s.bOld, sT1, sT0))
        a('s_lshl_b32 s%d, s%d, 14' % (sT0, sT2))
        a('s_add_u32 s%d, s%d, s%d' % (s.bOld, s.bOld, sT0))
        a('s_lshl_b32 s%d, s%d, 7' % (sT0, s.sKq))
        a('s_add_u32 s%d, s%d, 0x%x' % (s.bCO, sT0, WS_CTR))
        a('s_lshl_b32 s%d, s%d, 7' % (sT0, s.sCb))
        a('s_add_u32 s%d, s%d, 0x%x' % (s.bCP, sT0, WS_CTR + 512))
    def km_ld(s): return 'buffer_load_dwordx4 %s, v%d, s[%d:%d], s%d offen sc1' % (vr(s.vP, 4), s.vKmw, S_WS, S_WS + 3, s.sKm)
    def ld_km(s): s.a('buffer_load_dwordx4 %s, v%d, s[%d:%d], s%d offen sc1' % (vr(s.vP, 4), s.vKmw, S_WS, S_WS + 3, s.sKm))
    def ld_ctr(s, k): return 'buffer_load_dword v%d, off, s[%d:%d], s%d sc1' % (s.vP + 4 + k, S_WS, S_WS + 3, (s.sCO, s.sCP)[k])
    def spin(s, ld, chk, sleep):
        a = s.a
        l, ok = a.newlabel('Lsp'), a.newlabel('Lsp')
        a.label(l)
        chk(ok)
        a('s_sleep %d' % sleep)
        ld()
        a('s_waitcnt vmcnt(0)')
        a('s_sub_u32 s%d, s%d, 1' % (sTmo, sTmo))
        a('s_cbranch_scc0 %s' % l)
        a('s_branch L_side_fail')
        a.label(ok)
    def wait_km(s):
        a = s.a; vP = s.vP
        def chk(ok):
            a('v_max3_u32 v%d, v%d, v%d, v%d' % (s.vT, vP, vP + 1, vP + 2))
            a('v_max_u32 v%d, v%d, v%d' % (s.vT, s.vT, vP + 3))
            a('v_cmp_eq_u32 vcc, -1, v%d' % s.vT)
            a('s_cbranch_vccz %s' % ok)
        s.spin(s.ld_km, chk, 4)
    def wait_ctr(s, k):
        a = s.a
        def chk(ok):
            a('v_readfirstlane_b32 s%d, v%d' % (sT0, s.vP + 4 + k))
            a('s_cmp_eq_u32 s%d, %d' % (sT0, (8, 4)[k]))
            a('s_cbranch_scc1 %s' % ok)
        s.spin(lambda: a(s.ld_ctr(k)), chk, 2)
    def signals(s):
        a = s.a
        l = a.newlabel('Lsig')
        a('s_cmp_eq_u32 s%d, 0' % sW)
        a('s_cbranch_scc0 %s' % l)
        a('v_mov_b32 v%d, 1' % (s.vT + 2))
        a('s_mov_b64 exec, 1')
        for bit, r, b in ((0, s.sA, s.bCO), (3, s.sS, s.bCP)):
            a('s_lshl_b32 s%d, s%d, 11' % (sT0, r))
            a('s_add_u32 s%d, s%d, s%d' % (sT0, sT0, b))
            a('s_bitcmp1_b32 s%d, %d' % (s.sDo, bit))
            a('s_cselect_b32 s%d, s%d, 0x%x' % (sT0, sT0, WS_DUMP))
            a('buffer_atomic_add v%d, off, s[%d:%d], s%d sc1' % (s.vT + 2, S_WS, S_WS + 3, sT0))
        a('s_mov_b64 exec, -1')
        a.label(l)
    def cond(s, bit, label):
        s.a('s_bitcmp1_b32 s%d, %d' % (s.sDo, bit))
        s.a('s_cbranch_scc0 %s' % label)
    def attn(s, lean=False):
        A = s.a; vT = s.vT; vQ, vK, vKm, vS, vA, vD = s.vQ, s.vK, s.vKm, s.vS, s.vA, s.vD
        fill = [] if lean else s.odma_list() + s.prefetch_list() + [[s.ld_ctr(1)]]
        st = {'n': 0}
        def a(x):
            A(x)
            st['n'] += 1
            if st['n'] % s.DENS == 0 and fill:
                for y in fill.pop(0): A(y)
        for i in range(4): a('v_mov_b32 v%d, 0' % (vS + 8 + i))
        for t in range(4): a('ds_read_b128 %s, v%d offset:%d' % (vr(vQ + 4 * t, 4), s.vQr, t * 1024))
        for i in range(8): a('ds_read_b128 %s, v%d offset:%d' % (vr(vK + 4 * i, 4), s.vKr, i * 1024))
        for T in range(2): a('ds_read_b128 %s, v%d offset:%d' % (vr(vKm + 4 * T, 4), s.vL16, s.L_KM + T * 1024))
        a('s_waitcnt lgkmcnt(0)')
        for et in range(4):
            for tau in range(2):
                a('ds_read_b64_tr_b16 %s, v%d offset:%d' % (vr(vA + 6 * et + 2 * tau, 2), s.vVr, tau * 4096 + (et // 2) * 1024 + (et % 2) * 8))
        for t in range(4):
            for tau in range(2):
                a('v_mfma_f32_16x16x32_bf16 %s, %s, %s, %s' % (vr(vS + 4 * tau, 4), vr(vK + 16 * tau + 4 * t, 4), vr(vQ + 4 * t, 4), '0' if t == 0 else vr(vS + 4 * tau, 4)))
        for T in range(2):
            a('v_smfmac_f32_16x16x64_bf16 %s, %s, %s, v%d' % (vr(vS + 8, 4), vr(vKm + 4 * T, 4), vr(vQ + 8 * T, 8), s.vIdx))
        a('s_waitcnt lgkmcnt(0)')
        for et in range(4):
            a('ds_read_u16 v%d, v%d offset:%d' % (vA + 6 * et + 4, s.vMr, (et // 2) * 512 + (et % 2) * 4))
            a('ds_read_u16 v%d, v%d offset:%d' % (vT + 8 + et, s.vMr, (et // 2) * 512 + (et % 2) * 4 + 16))
        for k in range(8): a('v_cndmask_b32 v%d, v%d, v%d, s[%d:%d]' % (vS + k, s.vNeg, vS + k, s.sMask + 2 * k, s.sMask + 2 * k + 1))
        a('v_pk_add_f32 %s, %s, %s' % (vr(vS + 8, 2), vr(vS + 8, 2), vr(vS + 10, 2)))
        m, m2 = vT, vT + 1
        def xred(op):
            for sw in ('v_permlane16_swap_b32', 'v_permlane32_swap_b32'):
                a('v_mov_b32 v%d, v%d' % (m2, m))
                a('%s v%d, v%d' % (sw, m, m2))
                a('%s v%d, v%d, v%d' % (op, m, m, m2))
        a('v_max3_f32 v%d, v%d, v%d, v%d' % (m, vS, vS + 1, vS + 2))
        for k in range(3, 9, 2): a('v_max3_f32 v%d, v%d, v%d, v%d' % (m, m, vS + k, vS + k + 1))
        a('v_max_f32 v%d, v%d, v%d' % (m, m, vS + 9))
        xred('v_max_f32')
        a('v_mul_f32 v%d, s%d, v%d' % (m, s.sScale, m))
        for k in range(10): a('v_fma_f32 v%d, v%d, s%d, -v%d' % (vS + k, vS + k, s.sScale, m))
        for k in range(10): a('v_exp_f32 v%d, v%d' % (vS + k, vS + k))
        a('v_pk_add_f32 %s, %s, %s' % (vr(m, 2), vr(vS, 2), vr(vS + 2, 2)))
        for k in (4, 6, 8): a('v_pk_add_f32 %s, %s, %s' % (vr(m, 2), vr(m, 2), vr(vS + k, 2)))
        a('v_add_f32 v%d, v%d, v%d' % (m, m, m2))
        xred('v_add_f32')
        a('v_rcp_f32 v%d, v%d' % (m, m))
        for k in range(10): a('v_mul_f32 v%d, v%d, v%d' % (vS + k, vS + k, m))
        p = vT + 2
        for k in range(5): a('v_cvt_pk_bf16_f32 v%d, v%d, v%d' % (p + k, vS + 2 * k, vS + 2 * k + 1))
        a('v_mov_b32 v%d, 0' % (p + 5))
        a('s_waitcnt lgkmcnt(0)')
        for et in range(4): a('v_lshl_or_b32 v%d, v%d, 16, v%d' % (vA + 6 * et + 4, vT + 8 + et, vA + 6 * et + 4))
        for et in range(4): a('v_mfma_f32_16x16x32_bf16 %s, %s, %s, 0' % (vr(vD + 4 * et, 4), vr(vA + 6 * et, 4), vr(p, 4)))
        for et in range(4): a('v_mfma_f32_16x16x16_bf16 %s, %s, %s, %s' % (vr(vD + 4 * et, 4), vr(vA + 6 * et + 4, 2), vr(p + 4, 2), vr(vD + 4 * et, 4)))
        for pr in range(2):
            r = vD + 8 * pr
            for i in range(4): a('v_cvt_pk_bf16_f32 v%d, v%d, v%d' % (r + i, r + 2 * i, r + 2 * i + 1))
            a('buffer_store_dwordx4 %s, v%d, s[%d:%d], s%d offen offset:%d sc1' % (vr(r, 4), s.vL16, S_WS, S_WS + 3, s.sOst, pr * 1024))
        assert not fill
        a = A
        for r in (s.vQr, s.vKr, s.vVr): a('v_xor_b32 v%d, 0x%x, v%d' % (r, s.BUF1, r))
    def readback(s):
        if not s.RB: return
        a = s.a
        a('s_bitcmp1_b32 s%d, 0' % s.sDo)
        a('s_cselect_b32 s%d, s%d, 0x%x' % (sT0, s.sOst, WS_DUMP))
        a('s_mov_b64 exec, 0xffff')
        a('buffer_load_dword v%d, v11, s[%d:%d], s%d offen sc1' % (s.vT + 3, S_WS, S_WS + 3, sT0))
        a('s_mov_b64 exec, -1')
    def fload(s):
        a = s.a
        l = a.newlabel('Lf')
        s.cond(2, l)
        s.wait_ctr(1)
        a('s_lshl_b32 s%d, s%d, 19' % (sT0, s.sF))
        a('s_add_u32 s%d, s%d, s%d' % (sT0, sT0, s.sPld))
        for i in range(4): a('buffer_load_dwordx4 %s, v%d, s[%d:%d], s%d offen offset:%d sc1' % (vr(s.vF + 4 * i, 4), s.vL16, S_WS, S_WS + 3, sT0, i * 1024))
        a.label(l)
        a('s_lshl_b32 s%d, s%d, 17' % (s.sFo, s.sF))
        a('s_bitcmp1_b32 s%d, 2' % s.sDo)
        a('s_cselect_b32 s%d, s%d, 0x%x' % (s.sFo, s.sFo, WS_DUMP))
    def oproj(s, lean=False):
        a = s.a; vD = s.vD; vB = s.vB
        seq = [(rt, k) for k in range(32) for rt in range(2)]
        NB, AH = 12, 10
        def rd(i):
            rt, k = seq[i]
            a('ds_read_b128 %s, v%d offset:%d' % (vr(vB + 4 * (i % NB), 4), s.vOr, rt * 32768 + k * 1024))
        for i in range(AH): rd(i)
        a('s_lshl_b32 s%d, s%d, 19' % (s.sPo, s.sO))
        a('s_add_u32 s%d, s%d, s%d' % (s.sPo, s.sPo, s.sPst))
        nl = [] if lean else s.next_list()
        for i, (rt, k) in enumerate(seq):
            if i + AH < 64: rd(i + AH)
            a('s_waitcnt lgkmcnt(%d)' % min(AH, 63 - i))
            for nt in range(2):
                d = vr(vD + 4 * (2 * rt + nt), 4)
                a('v_mfma_f32_16x16x32_bf16 %s, %s, %s, %s' % (d, ar((k * 2 + nt) * 4, 4), vr(vB + 4 * (i % NB), 4), '0' if k == 0 else d))
                if i >= s.NL0 and nl: a(nl.pop(0))
            if i == s.MID and not lean:
                a('s_waitcnt vmcnt(0)')
                a('s_barrier')
                s.signals()
                s.readback()
                s.fload()
        assert not nl
        if not lean: a('s_waitcnt vmcnt(2)')
        for t in range(4):
            a('buffer_store_dwordx4 %s, v%d, s[%d:%d], s%d offen sc1' % (vr(vD + 4 * t, 4), s.vL16, S_WS, S_WS + 3, s.sPo))
            a('s_add_u32 s%d, s%d, 4096' % (s.sPo, s.sPo))
    def finish(s):
        a = s.a; vT = s.vT; vF = s.vF
        for h in range(2):
            a('v_pk_add_f32 %s, %s, %s' % (vr(vF + 2 * h, 2), vr(vF + 2 * h, 2), vr(vF + 4 + 2 * h, 2)))
            a('v_pk_add_f32 %s, %s, %s' % (vr(vF + 8 + 2 * h, 2), vr(vF + 8 + 2 * h, 2), vr(vF + 12 + 2 * h, 2)))
            a('v_pk_add_f32 %s, %s, %s' % (vr(vF + 2 * h, 2), vr(vF + 2 * h, 2), vr(vF + 8 + 2 * h, 2)))
            a('v_cvt_pk_bf16_f32 v%d, v%d, v%d' % (vT + h, vF + 2 * h, vF + 2 * h + 1))
        a('buffer_store_dwordx2 %s, v%d, s[%d:%d], s%d offen' % (vr(vT, 2), s.vOst, S_OUT, S_OUT + 3, s.sFo))
    def run(s, wait_g1):
        a = s.a; vT = s.vT; vF = s.vF
        s.setup()
        s.bases()
        wait_g1()
        a('s_barrier')
        for k in range(4): a('s_mov_b32 s%d, 0x%x' % (s.sSch + k, s.sched(16)[k]))
        a('s_mov_b32 s%d, 18' % s.sNit)
        for r in (s.sA, s.sO, s.sF, s.sS, s.sPf): a('s_mov_b32 s%d, s%d' % (r, sTeam))
        a('s_mov_b32 s%d, 0' % s.sBuf)
        a('s_mov_b32 s%d, -1' % s.sI)
        a('s_mov_b32 s%d, 0' % s.sDo)
        for i in range(4): a('v_mov_b32 v%d, -1' % (vF + i))
        a('s_add_u32 s%d, s%d, 60' % (sT0, sTeam))
        a('s_lshl_b32 s%d, s%d, 19' % (sT0, sT0))
        a('s_add_u32 s%d, s%d, s%d' % (sT0, sT0, s.sPst))
        for t in range(4):
            a('buffer_store_dwordx4 %s, v%d, s[%d:%d], s%d offen sc1' % (vr(vF, 4), s.vL16, S_WS, S_WS + 3, sT0))
            a('s_add_u32 s%d, s%d, 4096' % (sT0, sT0))
        s.flat(s.prefetch_list())
        for x in s.next_list(): a(x)
        a('s_waitcnt vmcnt(0)')
        a.label('L_ao_loop')
        s.mark(10); s.mark(9)
        a('s_mov_b32 s%d, s%d' % (s.sDo, s.sDn))
        a('s_bitcmp1_b32 s%d, 1' % s.sDo)
        a('s_cselect_b32 s%d, s%d, 0x%x' % (s.sOld, s.sOld, WS_DUMP))
        a('s_cbranch_scc0 L_ao_2')
        s.wait_ctr(0)
        a.label('L_ao_2')
        s.cond(0, 'L_ao_noA')
        s.wait_km()
        a('ds_write_b128 v%d, %s offset:%d' % (s.vKmw, vr(s.vP, 4), s.L_KM))
        a('s_add_u32 s%d, s%d, 4' % (s.sPf, s.sA))
        a('s_cmp_lt_u32 s%d, 64' % s.sPf)
        a('s_cselect_b32 s%d, s%d, 1024' % (s.sPf, s.sPf))
        a('s_xor_b32 s%d, s%d, 0x%x' % (s.sBuf, s.sBuf, s.BUF1))
        a('s_waitcnt lgkmcnt(0)')
        a('s_barrier')
        s.mark(11)
        s.attn()
        s.cond(1, 'L_ao_noO')
        a('s_waitcnt vmcnt(9)')
        a('s_branch L_ao_3')
        a.label('L_ao_noA')
        s.cond(1, 'L_ao_noO')
        a('s_barrier')
        s.flat(s.odma_list())
        a('s_waitcnt vmcnt(0)')
        a.label('L_ao_3')
        a('s_barrier')
        s.mark(12)
        s.oproj()
        a('s_branch L_ao_6')
        a.label('L_ao_noO')
        a('s_waitcnt vmcnt(0)')
        a('s_barrier')
        s.signals()
        s.fload()
        for x in s.next_list(): a(x)
        a('s_waitcnt vmcnt(0)')
        a.label('L_ao_6')
        s.finish()
        a('s_waitcnt vmcnt(5)')
        a('s_cmp_lt_u32 s%d, s%d' % (s.sI, s.sNit))
        a('s_cbranch_scc1 L_ao_loop')
        s.mark(10)
        s.wait_km()
        a('ds_write_b128 v%d, %s offset:%d' % (s.vKmw, vr(s.vP, 4), s.L_KM))
        a('s_mov_b32 s%d, 1' % s.sDo)
        a('s_waitcnt lgkmcnt(0)')
        a('s_barrier')
        s.mark(11)
        s.attn(True)
        a('s_waitcnt vmcnt(0)')
        a('s_barrier')
        s.signals()
        s.mark(12)
        s.wait_ctr(0)
        s.flat(s.odma_list())
        a('s_lshl_b32 s%d, s%d, 19' % (s.sCP, s.sF))
        a('s_add_u32 s%d, s%d, s%d' % (s.sCP, s.sCP, s.sPld))
        a('s_lshl_b32 s%d, s%d, 17' % (s.sFo, s.sF))
        a('s_waitcnt vmcnt(0)')
        a('s_barrier')
        s.mark(13)
        s.oproj(True)
        s.mark(14)
        def ldf():
            for i in range(4): a('buffer_load_dwordx4 %s, v%d, s[%d:%d], s%d offen offset:%d sc1' % (vr(vF + 4 * i, 4), s.vL16, S_WS, S_WS + 3, s.sCP, i * 1024))
        def chk(ok):
            a('v_max3_u32 v%d, v%d, v%d, v%d' % (vT, vF, vF + 1, vF + 2))
            for i in range(3, 15, 2): a('v_max3_u32 v%d, v%d, v%d, v%d' % (vT, vT, vF + i, vF + i + 1))
            a('v_max_u32 v%d, v%d, v%d' % (vT, vT, vF + 15))
            a('v_cmp_eq_u32 vcc, -1, v%d' % vT)
            a('s_cbranch_vccz %s' % ok)
        a('s_waitcnt vmcnt(0)')
        ldf()
        a('s_waitcnt vmcnt(0)')
        s.spin(ldf, chk, 1)
        s.finish()

class Conv:
    def mark(s, i): pass
    CH = 7600
    L_H = 8 * 7600
    HC = 4160
    L_W = 8 * 7600 + 16 * 4160
    def __init__(s, a): s.a = a
    def warm(s, NX=4):
        a = s.a
        a('s_and_b32 s%d, s%d, %d' % (sT0, sMem, 31 if NX == 4 else 15))
        a('s_lshl_b32 s%d, s%d, 2' % (sT0, sT0))
        a('s_add_u32 s%d, s%d, s%d' % (sT0, sT0, sW))
        a('s_lshl_b32 s%d, s%d, %d' % (sT0, sT0, 15 if NX == 4 else 16))
        a('s_lshl_b32 s%d, s%d, 9' % (sT1, sTeam))
        a('s_add_u32 s%d, s%d, s%d' % (sT0, sT0, sT1))
        if NX == 4: bits(a, 28, [(2, 4, 11), (0, 2, 7)])
        else:
            a('s_lshr_b32 s%d, s%d, 4' % (sT1, sMem))
            a('s_lshl_b32 s%d, s%d, 8' % (sT1, sT1))
            a('s_add_u32 s%d, s%d, s%d' % (sT0, sT0, sT1))
            bits(a, 28, [(1, 5, 11), (0, 1, 7)])
        for i, srd in enumerate((S_AK, S_AV, S_AQ)): a('buffer_load_dword v%d, v28, s[%d:%d], s%d offen' % (20 + i, srd, srd + 3, sT0))
        a('s_lshl_b32 s%d, s%d, 5' % (sT0, sTeam))
        a('s_add_u32 s%d, s%d, s%d' % (sT0, sT0, sMem))
        a('s_lshl_b32 s%d, s%d, 2' % (sT0, sT0))
        a('s_add_u32 s%d, s%d, s%d' % (sT0, sT0, sW))
        a('s_lshl_b32 s%d, s%d, 13' % (sT0, sT0))
        a('v_lshlrev_b32 v28, 7, v0')
        a('buffer_load_dword v23, v28, s[%d:%d], s%d offen' % (S_AH, S_AH + 3, sT0))
    def run(s, sKq=None, sCb=None):
        a = s.a
        WO = sKq is not None
        CH, L_H, HC = s.CH, s.L_H, s.HC
        sD0, sWs, sWl, sRaw = 45, 46, 47, 56
        vRow, vW, vG, vBp, vY, vHl, vHw, vWs, vWr, vT = 1, 2, 3, 4, 5, 6, 7, 8, 9, 10
        vKV = 32; vC = 64; vK = 104; vV = 148; vE = 180; hw = 232
        vm = []
        def issue(tag, x): a(x); vm.append(tag)
        def wait(tag):
            k = max(i for i, t in enumerate(vm) if t == tag)
            a('s_waitcnt vmcnt(%d)' % (len(vm) - 1 - k))
        a('s_barrier')
        a('s_lshl_b32 s%d, s%d, 5' % (sD0, sTeam))
        a('s_add_u32 s%d, s%d, s%d' % (sD0, sD0, sMem))
        a('s_load_dwordx2 s[72:73], s[0:1], %d' % KA['A_shift'])
        a('s_load_dwordx2 s[74:75], s[0:1], %d' % KA['A_ssmD'])
        a('s_lshl_b32 s%d, s%d, 6' % (sT0, sD0))
        a('s_lshl_b32 s%d, s%d, 4' % (sT1, sD0))
        a('s_waitcnt lgkmcnt(0)')
        a('s_load_dwordx16 s[56:71], s[72:73], s%d' % sT0)
        a('s_load_dwordx4 s[48:51], s[74:75], s%d' % sT1)
        a('s_lshl_b32 s%d, s%d, 20' % (sT0, sW))
        a('s_add_u32 s%d, s%d, s%d' % (sT0, sT0, sT1))
        bits(a, vRow, [(0, 6, 14)], 's%d' % sT0)
        for r in range(-3, 8):
            a('v_add_u32 v%d, 0x%x, v%d' % (vT, (r * 2048) & 0xffffffff, vRow))
            issue('kv', 'buffer_load_dwordx4 %s, v%d, s[%d:%d], 0 offen' % (vr(vK + 4 * (r + 3), 4), vT, S_AK, S_AK + 3))
            if r >= 0: issue('kv', 'buffer_load_dwordx4 %s, v%d, s[%d:%d], 0 offen' % (vr(vV + 4 * r, 4), vT, S_AV, S_AV + 3))
        a('s_lshl_b32 s%d, s%d, 15' % (sT0, sD0))
        a('s_lshl_b32 s%d, s%d, 13' % (sT1, sW))
        a('s_add_u32 s%d, s%d, s%d' % (sT0, sT0, sT1))
        bits(a, vHl, [(0, 6, 4)], 's%d' % sT0)
        def hload(ch):
            if ch: a('v_add_u32 v%d, 4096, v%d' % (vHl, vHl))
            a('v_subrev_u32 v%d, 8, v%d' % (vT + 1, vHl))
            for i in range(4):
                issue('h%d' % ch, 'buffer_load_dwordx2 %s, v%d, s[%d:%d], 0 offen offset:%d' % (vr(hw + 6 * i, 2), vT + 1 if i == 0 else vHl, S_AH, S_AH + 3, 0 if i == 0 else i * 1024 - 8))
                issue('h%d' % ch, 'buffer_load_dwordx4 %s, v%d, s[%d:%d], 0 offen offset:%d' % (vr(hw + 6 * i + 2, 4), vHl, S_AH, S_AH + 3, i * 1024))
        hload(0)
        if WO:
            a('s_lshl_b32 s%d, s%d, 21' % (sWs, sKq))
            a('s_lshl_b32 s%d, s%d, 8' % (sT0, sCb))
            a('s_add_u32 s%d, s%d, s%d' % (sWs, sWs, sT0))
            a('s_lshl_b32 s%d, s%d, 6' % (sT0, sW))
            a('s_add_u32 s%d, s%d, s%d' % (sWs, sWs, sT0))
            bits(a, vWs, [(2, 4, 11), (0, 2, 4)])
            a('s_lshl_b32 s%d, s%d, 13' % (sWl, sW))
            a('s_add_u32 s%d, s%d, %d' % (sWl, sWl, s.L_W))
            bits(a, vWr, [(2, 4, 6), (0, 2, 3)], 's%d' % sWl)
        def wdma(j):
            a('s_add_u32 m0, s%d, %d' % (sWl, (j % 8) * 1024))
            issue('w%d' % j, 'buffer_load_dwordx4 v%d, s[%d:%d], s%d offen lds' % (vWs, S_WO, S_WO + 3, sWs))
            a('s_add_u32 s%d, s%d, 0x8000' % (sWs, sWs))
        def wtr(j):
            wait('w%d' % j)
            for nt in range(2):
                a('ds_read_b64_tr_b16 %s, v%d offset:%d' % (ar(((j // 2) * 2 + nt) * 4 + 2 * (j % 2), 2), vWr, (j % 8) * 1024 + nt * 32))
        for j in range(7 if WO else 0): wdma(j)
        for i in range(4): a('v_mov_b32 v%d, 0' % (vT + 4 + i))
        a('s_lshl_b32 s%d, s%d, 10' % (sT0, sW))
        bits(a, vT, [(0, 6, 4)], 's%d' % sT0)
        a('v_cmp_gt_u32 vcc, 2480, v%d' % vT)
        a('s_and_saveexec_b64 s[72:73], vcc')
        for ch in range(8): a('ds_write_b128 v%d, %s offset:%d' % (vT, vr(vT + 4, 4), ch * CH))
        a('s_mov_b64 exec, 0xffff')
        a('s_mul_i32 s%d, s%d, %d' % (sT2, sW, 4 * HC))
        a('s_add_u32 s%d, s%d, %d' % (sT2, sT2, L_H))
        a('s_add_u32 s%d, s%d, 4096' % (sT0, sT2))
        bits(a, vT, [(2, 2, 12), (2, 2, 6), (0, 2, 4)], 's%d' % sT0)
        a('ds_write_b128 v%d, %s' % (vT, vr(vT + 4, 4)))
        a('s_mov_b64 exec, -1')
        a('s_mul_i32 s%d, s%d, %d' % (sT0, sW, 16 * 80))
        a('s_add_u32 s%d, s%d, %d' % (sT0, sT0, 31 * 80))
        bits(a, vW, [(2, 4, 6), (2, 4, 4), (0, 2, 4)], 's%d' % sT0)
        a('v_and_b32 v%d, 31, v0' % vT)
        a('v_sub_u32 v%d, 31, v%d' % (vT, vT))
        a('v_and_b32 v%d, 3, v%d' % (vT + 1, vT))
        a('v_and_b32 v%d, 28, v%d' % (vT, vT))
        a('v_mul_u32_u24 v%d, %d, v%d' % (vT + 1, HC, vT + 1))
        a('v_lshl_add_u32 v%d, v%d, 1, v%d' % (vT, vT, vT + 1))
        bits(a, vG, [(5, 1, 4)], 's%d' % sT2)
        a('v_add_u32 v%d, v%d, v%d' % (vG, vG, vT))
        a('v_sub_u32 v%d, 63, v0' % vT)
        a('v_lshlrev_b32 v%d, 4, v%d' % (vT, vT))
        a('v_add_u32 v%d, s%d, v%d' % (vHw, sT2, vT))
        a('s_mul_i32 s%d, s%d, %d' % (sT1, sW, 2 * CH))
        bits(a, vBp, [(0, 5, 6), (0, 5, 4), (5, 1, 4)], 's%d' % sT1)
        a('s_add_u32 s%d, s%d, %d' % (sT1, sT1, 31 * 80))
        bits(a, vY, [(0, 5, 6), (0, 5, 4), (5, 1, 3)], 's%d' % sT1)
        a('s_waitcnt lgkmcnt(0)')
        for ch in range(8):
            for j in range(4):
                src = sRaw + 2 * ch + j // 2
                if j % 2 == 0: a('v_lshlrev_b32 v%d, 16, s%d' % (vC + 8 * j + ch, src))
                else:
                    a('s_and_b32 s%d, s%d, 0xffff0000' % (sT0, src))
                    a('v_mov_b32 v%d, s%d' % (vC + 8 * j + ch, sT0))
            if ch % 2 == 0: a('v_lshlrev_b32 v%d, 16, s%d' % (vC + 32 + ch, 48 + ch // 2))
            else:
                a('s_and_b32 s%d, s%d, 0xffff0000' % (sT0, 48 + ch // 2))
                a('v_mov_b32 v%d, s%d' % (vC + 32 + ch, sT0))
        a('s_mov_b32 s72, 0xffff')
        wait('kv')
        s.mark(6)
        def unpack(dst, src):
            a('v_lshlrev_b32 v%d, 16, v%d' % (dst, src))
            a('v_and_b32 v%d, 0xffff0000, v%d' % (dst + 1, src))
        for cp in range(4):
            kf = vE; ac = vE + 22; vf = vE + 38
            for r in range(11): unpack(kf + 2 * r, vK + 4 * r + cp)
            for r in range(8):
                a('v_pk_mul_f32 %s, %s, %s' % (vr(ac + 2 * r, 2), vr(kf + 2 * r, 2), vr(vC + 24 + 2 * cp, 2)))
            for j in (2, 1, 0):
                for r in range(8):
                    a('v_pk_fma_f32 %s, %s, %s, %s' % (vr(ac + 2 * r, 2), vr(kf + 2 * (r + 3 - j), 2), vr(vC + 8 * j + 2 * cp, 2), vr(ac + 2 * r, 2)))
            for r in range(8):
                unpack(vf + 2 * (r % 4), vV + 4 * r + cp)
                a('v_pk_mul_f32 %s, %s, %s' % (vr(ac + 2 * r, 2), vr(ac + 2 * r, 2), vr(vf + 2 * (r % 4), 2)))
            for e in range(2):
                ch = 2 * cp + e
                for k in range(4): a('v_cvt_pk_bf16_f32 v%d, v%d, v%d' % (vKV + 4 * ch + k, ac + 4 * k + e, ac + 4 * k + 2 + e))
                a('ds_write_b128 v%d, %s offset:%d' % (vW, vr(vKV + 4 * ch, 4), ch * CH))
        wj = {'tr': 0}
        for chn in range(2):
            a('v_cmp_ne_u32 vcc, 0, v0')
            wait('h%d' % chn)
            for k in range(2): a('v_cndmask_b32 v%d, 0, v%d, vcc' % (hw + k, hw + k))
            for i in range(4):
                wv = lambda idx: hw + 6 * i + 2 + idx
                for r in range(4):
                    o = vE + 16 * (i % 2) + 4 * r
                    for k in range(4):
                        if r % 2 == 0:
                            x = wv((6 - r - 2 * k) // 2)
                            a('v_alignbit_b32 v%d, v%d, v%d, 16' % (o + k, x, x))
                        else:
                            e0 = (7 - r - 2 * k) // 2
                            a('v_bfi_b32 v%d, s72, v%d, v%d' % (o + k, wv(e0), wv(e0 - 1)))
                    a('ds_write_b128 v%d, %s offset:%d' % (vHw, vr(o, 4), r * HC + (3 - i) * 1024))
                a('s_waitcnt lgkmcnt(4)')
            a('s_waitcnt lgkmcnt(0)')
            if chn == 0:
                a('s_barrier')
                s.mark(7)
                hload(1)
            steps = [(c, kk) for c in range(64) for kk in range(2)]
            NB, AH = 4, 3
            cb = chn * CH
            def rd(i):
                c, kk = steps[i]; m = 2 * c - kk; b = vE + 12 * (i % NB); n = 3
                for h in range(2): a('ds_read_b64 %s, v%d offset:%d' % (vr(b + 2 * h, 2), vG, (126 - m) * 32 + 8 * h))
                a('ds_read_b128 %s, v%d offset:%d' % (vr(b + 4, 4), vBp, cb + (63 - c) * 80 + kk * 32))
                if c < 32:
                    a('ds_read_b128 %s, v%d offset:%d' % (vr(b + 8, 4), vBp, cb + (31 - c) * 80 + kk * 32)); n = 4
                return n
            cnt = [rd(i) for i in range(AH)]
            y0, y1 = vr(vK, 16), vr(vK + 16, 16)
            nm = 0
            for i, (c, kk) in enumerate(steps):
                a('s_waitcnt lgkmcnt(%d)' % sum(cnt[i + 1:]))
                b = vE + 12 * (i % NB)
                a('v_mfma_f32_32x32x16_bf16 %s, %s, %s, %s' % (y1, vr(b, 4), vr(b + 4, 4), '0' if i == 0 else y1))
                n = rd(i + AH) if i + AH < len(steps) else 0
                if c < 32: a('v_mfma_f32_32x32x16_bf16 %s, %s, %s, %s' % (y0, vr(b, 4), vr(b + 8, 4), '0' if i == 0 else y0))
                pm = nm; nm += 2 if c < 32 else 1
                if WO and nm // 6 != pm // 6:
                    j = wj['tr']; wj['tr'] += 1
                    if j >= 1 and j + 6 < 64: wdma(j + 6)
                    wtr(j); n += 2
                if chn == 1 and i % 8 == 4 and i < 64:
                    r = i // 8
                    a('v_add_u32 v%d, 0x%x, v%d' % (vT, r * 2048, vRow))
                    issue('q', 'buffer_load_dwordx4 %s, v%d, s[%d:%d], 0 offen' % (vr(vV + 4 * r, 4), vT, S_AQ, S_AQ + 3))
                cnt.append(n)
            for half in range(2):
                for q in range(4):
                    o = vK + 16 * half + 4 * q
                    for h in range(2): a('v_cvt_pk_bf16_f32 v%d, v%d, v%d' % (o + h, o + 2 * h, o + 1 + 2 * h))
                    a('ds_write_b64 v%d, %s offset:%d' % (vY, vr(o, 2), cb + half * 32 * 80 + q * 16))
        assert not WO or wj['tr'] == 64
        a('s_waitcnt vmcnt(0) lgkmcnt(0)')
        a('s_barrier')
        s.mark(8)
        yb = vK
        for ch in range(8): a('ds_read_b128 %s, v%d offset:%d' % (vr(yb + 4 * ch, 4), vW, ch * CH))
        a('s_lshl_b32 s%d, s%d, 21' % (sT0, sW))
        a('s_lshl_b32 s%d, s%d, 4' % (sT1, sD0))
        a('s_add_u32 s%d, s%d, s%d' % (sT0, sT0, sT1))
        bits(a, vRow, [(0, 6, 15)])
        a('s_waitcnt lgkmcnt(0)')
        for k in range(4):
            for cp in range(4):
                t = vE + 12 * (cp % 2)
                for e in range(2):
                    ch = 2 * cp + e
                    unpack(t + 4 * e, yb + 4 * ch + k)
                    unpack(t + 4 * e + 2, vKV + 4 * ch + k)
                    for h in range(2): a('v_fma_f32 v%d, v%d, v%d, v%d' % (t + 4 * e + h, t + 4 * e + 2 + h, vC + 32 + ch, t + 4 * e + h))
                for h in range(2):
                    q = vV + 4 * (2 * k + h) + cp
                    unpack(t + 8, q)
                    for e in range(2): a('v_mul_f32 v%d, v%d, v%d' % (t + 8 + e, t + 8 + e, t + 4 * e + h))
                    a('v_cvt_pk_bf16_f32 v%d, v%d, v%d' % (q, t + 8, t + 9))
            for h in range(2):
                a('buffer_store_dwordx4 %s, v%d, s[%d:%d], s%d offen' % (vr(vV + 4 * (2 * k + h), 4), vRow, S_OUT, S_OUT + 3, sT0))
                a('s_add_u32 s%d, s%d, 4096' % (sT0, sT0))

class Conv2:
    def mark(s, i): pass
    CH = 7600; L_H = 8 * 7600; HC = 4160
    def __init__(s, a): s.a = a
    def unpack(s, dst, src):
        s.a('v_lshlrev_b32 v%d, 16, v%d' % (dst, src))
        s.a('v_and_b32 v%d, 0xffff0000, v%d' % (dst + 1, src))
    P1R = (20, 21, 22, 140, 48, 64, 108, 172, 220)
    sP1 = 59
    S_AH = S_AH; S_AQ = S_AQ; sDv = 48
    def p1_load(s, S_SH):
        a = s.a
        vRow, vO, vT, vC, vR, vK, vV, vE, vP = s.P1R
        a('s_lshl_b32 s%d, s%d, 5' % (sT2, sTeam))
        a('s_add_u32 s%d, s%d, s%d' % (sT2, sT2, sMem))
        a('s_lshr_b32 s%d, s%d, 3' % (sT3, sT2))
        a('s_and_b32 s%d, s%d, 7' % (sT2, sT2))
        a('s_lshl_b32 s%d, s%d, 2' % (sT2, sT2))
        a('s_add_u32 s%d, s%d, s%d' % (sT2, sT2, sW))
        a('s_lshl_b32 s%d, s%d, 17' % (sT0, sT2))
        a('s_lshl_b32 s%d, s%d, 7' % (sT1, sT3))
        a('s_add_u32 s%d, s%d, s%d' % (sT0, sT0, sT1))
        bits(a, vRow, [(3, 3, 14), (0, 3, 4)], 's%d' % sT0)
        a('s_lshl_b32 s%d, s%d, 9' % (sT0, sT3))
        bits(a, vT, [(0, 3, 6)], 's%d' % sT0)
        for i in range(4): a('buffer_load_dwordx4 %s, v%d, s[%d:%d], 0 offen offset:%d' % (vr(vR + 4 * i, 4), vT, S_SH, S_SH + 3, 16 * i))
        for r in range(-3, 8):
            a('v_add_u32 v%d, 0x%x, v%d' % (vT + 1, (r * 2048) & 0xffffffff, vRow))
            a('buffer_load_dwordx4 %s, v%d, s[%d:%d], 0 offen' % (vr(vK + 4 * (r + 3), 4), vT + 1, S_AK, S_AK + 3))
        for r in range(8):
            a('v_add_u32 v%d, 0x%x, v%d' % (vT + 1, r * 2048, vRow))
            a('buffer_load_dwordx4 %s, v%d, s[%d:%d], 0 offen' % (vr(vV + 4 * r, 4), vT + 1, S_AV, S_AV + 3))
        a('s_lshl_b32 s%d, s%d, 18' % (sT0, sT3))
        a('s_lshl_b32 s%d, s%d, 7' % (sT1, sT2))
        a('s_add_u32 s%d, s%d, s%d' % (sT0, sT0, sT1))
        a('s_add_u32 s%d, s%d, 0x%x' % (s.sP1, sT0, WS_KVT))
        bits(a, vO, [(0, 3, 15), (3, 3, 4)])
    def p1_compute(s):
        a = s.a
        vRow, vO, vT, vC, vR, vK, vV, vE, vP = s.P1R
        for ch in range(8):
            for jp in range(2):
                src = vR + 2 * ch + jp
                a('v_lshlrev_b32 v%d, 16, v%d' % (vC + 8 * (2 * jp) + ch, src))
                a('v_and_b32 v%d, 0xffff0000, v%d' % (vC + 8 * (2 * jp + 1) + ch, src))
        for cp in range(4):
            kf = vE; ac = vE + 22; vf = vE + 38
            for r in range(11): s.unpack(kf + 2 * r, vK + 4 * r + cp)
            for r in range(8):
                a('v_pk_mul_f32 %s, %s, %s' % (vr(ac + 2 * r, 2), vr(kf + 2 * r, 2), vr(vC + 24 + 2 * cp, 2)))
            for j in (2, 1, 0):
                for r in range(8):
                    a('v_pk_fma_f32 %s, %s, %s, %s' % (vr(ac + 2 * r, 2), vr(kf + 2 * (r + 3 - j), 2), vr(vC + 8 * j + 2 * cp, 2), vr(ac + 2 * r, 2)))
            for r in range(8):
                s.unpack(vf + 2 * (r % 4), vV + 4 * r + cp)
                a('v_pk_mul_f32 %s, %s, %s' % (vr(ac + 2 * r, 2), vr(ac + 2 * r, 2), vr(vf + 2 * (r % 4), 2)))
            for e in range(2):
                ch = 2 * cp + e
                for k in range(4): a('v_cvt_pk_bf16_f32 v%d, v%d, v%d' % (vP + 4 * ch + k, ac + 4 * k + e, ac + 4 * k + 2 + e))
                a('buffer_store_dwordx4 %s, v%d, s[%d:%d], s%d offen sc1' % (vr(vP + 4 * ch, 4), vO, S_WS, S_WS + 3, s.sP1))
                a('s_add_u32 s%d, s%d, 4096' % (s.sP1, s.sP1))
    def hload(s, hi, sIdx):
        a = s.a
        vHl, vX, hw0 = 6, 7, 208
        a('s_lshl_b32 s%d, s%d, 15' % (sT1, sIdx))
        a('s_lshl_b32 s%d, s%d, 13' % (sT2, sW))
        a('s_add_u32 s%d, s%d, s%d' % (sT1, sT1, sT2))
        bits(a, vHl, [(0, 6, 4)], 's%d' % sT1)
        for ch in range(2):
            hw = hw0 + 24 * ch
            if ch: a('v_add_u32 v%d, 4096, v%d' % (vHl, vHl))
            a('v_subrev_u32 v%d, 8, v%d' % (vX, vHl))
            for i in range(4 if hi else 2):
                a('buffer_load_dwordx2 %s, v%d, s[%d:%d], 0 offen offset:%d' % (vr(hw + 6 * i, 2), vX if i == 0 else vHl, s.S_AH, s.S_AH + 3, 0 if i == 0 else i * 1024 - 8))
                a('buffer_load_dwordx4 %s, v%d, s[%d:%d], 0 offen offset:%d' % (vr(hw + 6 * i + 2, 4), vHl, s.S_AH, s.S_AH + 3, i * 1024))
    def core(s, wait_p1, hi, sIdx, pre_h=False):
        a = s.a
        CH, L_H, HC = s.CH, s.L_H, s.HC
        sD0, sCh = 45, 56
        vRow, vW, vG, vBp, vY, vHl, vHw, vR, vT = 1, 2, 3, 4, 5, 6, 7, 8, 10
        vKV = 32; vC = 64; vQ = 72; vK = 104; vE = 136; hw0 = 208
        NI = 4 if hi else 2
        tg = 'h' if hi else 'l'
        a('s_mov_b32 s%d, s%d' % (sD0, sIdx))
        if s.sDv == 48: a('s_load_dwordx2 s[74:75], s[0:1], %d' % KA['A_ssmD'])
        if not pre_h: s.hload(hi, sIdx)
        wait_p1()
        a('s_lshl_b32 s%d, s%d, 15' % (sT0, sD0))
        a('s_lshl_b32 s%d, s%d, 10' % (sT1, sW))
        a('s_add_u32 s%d, s%d, s%d' % (sT0, sT0, sT1))
        a('s_add_u32 s%d, s%d, 0x%x' % (sT0, sT0, WS_KVT))
        if not hi:
            a('s_cmp_lt_u32 s%d, 2' % sW)
            a('s_cselect_b32 s%d, s%d, 0x%x' % (sT0, sT0, WS_DUMP))
        a('v_lshlrev_b32 v%d, 4, v0' % vT)
        for ch in range(8):
            a('buffer_load_dwordx4 %s, v%d, s[%d:%d], s%d offen sc1' % (vr(vKV + 4 * ch, 4), vT, S_WS, S_WS + 3, sT0))
            a('s_add_u32 s%d, s%d, 4096' % (sT0, sT0))
        a('s_lshl_b32 s%d, s%d, 4' % (sT1, sD0))
        if s.sDv == 48:
            a('s_waitcnt lgkmcnt(0)')
            a('s_load_dwordx4 s[48:51], s[74:75], s%d' % sT1)
        a('s_lshl_b32 s%d, s%d, 19' % (sT0, sW))
        a('s_add_u32 s%d, s%d, s%d' % (sT0, sT0, sT1))
        if hi: a('s_add_u32 s%d, s%d, 0x200000' % (sT0, sT0))
        bits(a, vRow, [(0, 6, 13)], 's%d' % sT0)
        a('s_barrier')
        for i in range(4): a('v_mov_b32 v%d, 0' % (vT + 4 + i))
        a('s_lshl_b32 s%d, s%d, 10' % (sT0, sW))
        bits(a, vT, [(0, 6, 4)], 's%d' % sT0)
        a('v_cmp_gt_u32 vcc, 2480, v%d' % vT)
        a('s_and_saveexec_b64 s[72:73], vcc')
        for ch in range(8): a('ds_write_b128 v%d, %s offset:%d' % (vT, vr(vT + 4, 4), ch * CH))
        a('s_mov_b64 exec, 0xffff')
        a('s_mul_i32 s%d, s%d, %d' % (sT2, sW, 4 * HC))
        a('s_add_u32 s%d, s%d, %d' % (sT2, sT2, L_H))
        a('s_add_u32 s%d, s%d, 4096' % (sT0, sT2))
        bits(a, vT, [(2, 2, 12), (2, 2, 6), (0, 2, 4)], 's%d' % sT0)
        a('ds_write_b128 v%d, %s' % (vT, vr(vT + 4, 4)))
        a('s_mov_b64 exec, -1')
        a('s_mul_i32 s%d, s%d, %d' % (sT0, sW, 16 * 80))
        a('s_add_u32 s%d, s%d, %d' % (sT0, sT0, 31 * 80))
        bits(a, vW, [(2, 4, 6), (2, 4, 4), (0, 2, 4)], 's%d' % sT0)
        a('s_mul_i32 s%d, s%d, %d' % (sT0, sW, 8 * 80))
        a('s_add_u32 s%d, s%d, %d' % (sT0, sT0, (31 + 32 * hi) * 80))
        bits(a, vR, [(3, 3, 6), (3, 3, 4), (0, 3, 3)], 's%d' % sT0)
        a('v_and_b32 v%d, 31, v0' % vT)
        a('v_sub_u32 v%d, 31, v%d' % (vT, vT))
        a('v_and_b32 v%d, 3, v%d' % (vT + 1, vT))
        a('v_and_b32 v%d, 28, v%d' % (vT, vT))
        a('v_mul_u32_u24 v%d, %d, v%d' % (vT + 1, HC, vT + 1))
        a('v_lshl_add_u32 v%d, v%d, 1, v%d' % (vT, vT, vT + 1))
        bits(a, vG, [(5, 1, 4)], 's%d' % sT2)
        a('v_add_u32 v%d, v%d, v%d' % (vG, vG, vT))
        a('v_sub_u32 v%d, 63, v0' % vT)
        a('v_lshlrev_b32 v%d, 4, v%d' % (vT, vT))
        a('v_add_u32 v%d, s%d, v%d' % (vHw, sT2, vT))
        a('s_mul_i32 s%d, s%d, %d' % (sT1, sW, 2 * CH))
        bits(a, vBp, [(0, 5, 6), (0, 5, 4), (5, 1, 4)], 's%d' % sT1)
        a('s_add_u32 s%d, s%d, %d' % (sT1, sT1, (31 + 32 * hi) * 80))
        bits(a, vY, [(0, 5, 6), (0, 5, 4), (5, 1, 3)], 's%d' % sT1)
        a('s_mov_b32 s72, 0xffff')
        a('s_waitcnt vmcnt(0) lgkmcnt(0)')
        s.mark(6)
        for r in range(4):
            a('buffer_load_dwordx4 %s, v%d, s[%d:%d], 0 offen offset:%d' % (vr(vQ + 4 * r, 4), vRow, s.S_AQ, s.S_AQ + 3, (r % 2) * 2048))
            if r == 1: a('v_add_u32 v%d, 4096, v%d' % (vRow, vRow))
        for ch in range(8): a('ds_write_b128 v%d, %s offset:%d' % (vW, vr(vKV + 4 * ch, 4), ch * CH))
        for ch in range(8):
            if ch % 2 == 0: a('v_lshlrev_b32 v%d, 16, s%d' % (vC + ch, s.sDv + ch // 2))
            else:
                a('s_and_b32 s%d, s%d, 0xffff0000' % (sT0, s.sDv + ch // 2))
                a('v_mov_b32 v%d, s%d' % (vC + ch, sT0))
        a('s_waitcnt lgkmcnt(0)')
        a('s_barrier')
        for ch in range(8): a('ds_read_b64 %s, v%d offset:%d' % (vr(vKV + 2 * ch, 2), vR, ch * CH))
        a('s_mov_b32 s%d, 0' % sCh)
        a.label('L_cv2' + tg)
        hw = hw0
        a('v_cmp_ne_u32 vcc, 0, v0')
        for k in range(2): a('v_cndmask_b32 v%d, 0, v%d, vcc' % (hw + k, hw + k))
        for i in range(NI):
            wv = lambda idx: hw + 6 * i + 2 + idx
            for r in range(4):
                o = vE + 16 * (i % 2) + 4 * r
                for k in range(4):
                    if r % 2 == 0:
                        x = wv((6 - r - 2 * k) // 2)
                        a('v_alignbit_b32 v%d, v%d, v%d, 16' % (o + k, x, x))
                    else:
                        e0 = (7 - r - 2 * k) // 2
                        a('v_bfi_b32 v%d, s72, v%d, v%d' % (o + k, wv(e0), wv(e0 - 1)))
                a('ds_write_b128 v%d, %s offset:%d' % (vHw, vr(o, 4), r * HC + (3 - i) * 1024))
            a('s_waitcnt lgkmcnt(4)')
        a('s_waitcnt lgkmcnt(0)')
        a('s_barrier')
        steps = [(c, kk) for c in range(64 if hi else 32) for kk in range(2)]
        NB, AH = 6, 4
        n = len(steps)
        def rd(i):
            c, kk = steps[i]; m = 2 * c - kk; b = vE + 8 * (i % NB)
            return (['ds_read_b64 %s, v%d offset:%d' % (vr(b + 2 * h, 2), vG, (126 - m) * 32 + 8 * h) for h in range(2)] +
                    ['ds_read_b128 %s, v%d offset:%d' % (vr(b + 4, 4), vBp, (31 + 32 * hi - c) * 80 + kk * 32)])
        for i in range(AH):
            for x in rd(i): a(x)
        y = vr(vK, 16)
        for i in range(n):
            a('s_waitcnt lgkmcnt(%d)' % (3 * min(AH - 1, n - 1 - i)))
            b = vE + 8 * (i % NB)
            a('v_mfma_f32_32x32x16_bf16 %s, %s, %s, %s' % (y, vr(b, 4), vr(b + 4, 4), '0' if i == 0 else y))
            if i + AH < n:
                for x in rd(i + AH): a(x)
            if i < 6 * NI: a('v_mov_b32 v%d, v%d' % (hw + i, hw + 24 + i))
        for q in range(4):
            o = vK + 4 * q
            for h in range(2): a('v_cvt_pk_bf16_f32 v%d, v%d, v%d' % (o + h, o + 2 * h, o + 1 + 2 * h))
            a('ds_write_b64 v%d, %s offset:%d' % (vY, vr(o, 2), q * 16))
        a('v_add_u32 v%d, %d, v%d' % (vBp, CH, vBp))
        a('v_add_u32 v%d, %d, v%d' % (vY, CH, vY))
        a('s_add_u32 s%d, s%d, 1' % (sCh, sCh))
        a('s_cmp_lt_u32 s%d, 2' % sCh)
        a('s_cbranch_scc1 L_cv2' + tg)
        a('s_waitcnt lgkmcnt(0)')
        a('s_barrier')
        s.mark(8)
        yb = vK
        for ch in range(8): a('ds_read_b64 %s, v%d offset:%d' % (vr(yb + 2 * ch, 2), vR, ch * CH))
        a('s_lshl_b32 s%d, s%d, 20' % (sT0, sW))
        a('s_lshl_b32 s%d, s%d, 4' % (sT1, sD0))
        a('s_add_u32 s%d, s%d, s%d' % (sT0, sT0, sT1))
        if hi: a('s_add_u32 s%d, s%d, 0x400000' % (sT0, sT0))
        bits(a, vRow, [(0, 6, 14)])
        a('s_waitcnt vmcnt(0) lgkmcnt(0)')
        for k in range(2):
            for cp in range(4):
                t = vE + 12 * (cp % 2)
                for e in range(2):
                    ch = 2 * cp + e
                    s.unpack(t + 4 * e, yb + 2 * ch + k)
                    s.unpack(t + 4 * e + 2, vKV + 2 * ch + k)
                    for h in range(2): a('v_fma_f32 v%d, v%d, v%d, v%d' % (t + 4 * e + h, t + 4 * e + 2 + h, vC + ch, t + 4 * e + h))
                for h in range(2):
                    q = vQ + 4 * (2 * k + h) + cp
                    s.unpack(t + 8, q)
                    for e in range(2): a('v_mul_f32 v%d, v%d, v%d' % (t + 8 + e, t + 8 + e, t + 4 * e + h))
                    a('v_cvt_pk_bf16_f32 v%d, v%d, v%d' % (q, t + 8, t + 9))
            for h in range(2):
                a('buffer_store_dwordx4 %s, v%d, s[%d:%d], s%d offen' % (vr(vQ + 4 * (2 * k + h), 4), vRow, S_OUT, S_OUT + 3, sT0))
                a('s_add_u32 s%d, s%d, 4096' % (sT0, sT0))
```

```python
import math, struct
from ag import *
from common import *

def f2u(x): return struct.unpack('<I', struct.pack('<f', x))[0]

L_R, L_P, L_KX, L_VX = 0, 20480, 32768, 65536
R_W, R_T, R_G = 4864, 776, 192
L_END = 131072
QKV_G = 12288
QKV_SLOT = 16 * QKV_G
PART_SLOT = 524288
WS_PART = 160 * MB
MT_SLOT = 131072

S_WS, S_WQ, S_WK, S_WV, S_WO, S_M0, S_DBG = 4, 8, 12, 16, 20, 24, 28
sW, sX, sC, sG, sJ, sStep, sLocal, sTmo = 32, 33, 34, 35, 36, 37, 38, 39
sQKst, sVst, sPARTst, sREDld, sMTst, sMTld, sCld, sKVMst, sKVoff = 40, 41, 42, 43, 44, 45, 46, 47, 48
sT0, sT1, sT2, sT3 = 49, 50, 51, 52
sA, sB, sCc, sD, sE, sF, sH = 53, 54, 55, 56, 57, 58, 59
sHiMask = 60
sTS = 62
sPrev = 64
sLdsC = 65
sScale = 66
sAcc = 68
sWarm = 84
sStMask = 86
sP = 88
sKst = 96
sK2 = 97
vL16, vL4, vRw, vRr, vRr2, vPw, vPw2, vKX, vVX, vIdx, vGate, vRed, vMld, vMst = range(1, 15)
vT = 16
vSent = 28
vD = 32
vU = 64
vWo2 = 128
vM = 192
vF = 224
vSel = 240
vK = 64
vX = 96

def wo(tt, off, n):
    return ar(192 + 32 * tt + off, n) if tt < 2 else vr(vWo2 + 32 * (tt - 2) + off, n)

class Chain:
    def __init__(s, a, prof=False, nsteps=64, opt=None):
        s.a = a; s.prof = prof; s.nsteps = nsteps; s.opt = opt or {}
        s.NX = s.opt.get('NX', 4); s.NP = s.NX // 4
    def stamp(s, i):
        a = s.a
        if s.opt.get('trace'):
            if i in s.opt['trace']:
                a('s_memrealtime s[%d:%d]' % (sTS, sTS + 1))
                a('s_waitcnt lgkmcnt(0)')
                a('s_mov_b32 m0, s%d' % sStep)
                a('s_nop 0')
                a('v_writelane_b32 v%d, s%d, m0' % (244 + i, sTS))
            return
        if not s.prof: return
        if s.opt.get('gprof') is not None:
            if i < 20: return
            i -= 20
        elif i >= 20: return
        a('s_memtime s[%d:%d]' % (sTS, sTS + 1))
        a('s_waitcnt lgkmcnt(0)')
        a('s_sub_u32 s%d, s%d, s%d' % (sTS + 1, sTS, sPrev))
        a('s_add_u32 s%d, s%d, s%d' % (sAcc + i, sAcc + i, sTS + 1))
        a('s_mov_b32 s%d, s%d' % (sPrev, sTS))
    def count(s, i):
        if s.prof: s.a('s_add_u32 s%d, s%d, 1' % (sAcc + i, sAcc + i))
    def st(s, data, voff, soff, off=0, n=1, sc1=True):
        op = {1: 'buffer_store_dword', 2: 'buffer_store_dwordx2', 4: 'buffer_store_dwordx4'}[n]
        s.a('%s %s, v%d, s[%d:%d], s%d offen offset:%d%s' % (op, vr(data, n), voff, S_WS, S_WS + 3, soff, off, ' sc1' if sc1 else ''))
    def lst(s, data, voff, soff, off=0, n=1): s.st(data, voff, soff, off, n, sc1=not s.local)
    def dma(s, soff, off, voff=vL16): s.a('buffer_load_dwordx4 v%d, s[%d:%d], s%d offen offset:%d sc1 lds' % (voff, S_WS, S_WS + 3, soff, off))
    def delay(s, key):
        for i in range(s.opt.get(key, 0)): s.a('s_nop 7')
    def tmo(s, retry):
        a = s.a
        a('s_sub_u32 s%d, s%d, 1' % (sTmo, sTmo))
        a('s_cbranch_scc0 %s' % retry)
        a('s_branch L_chain_fail')
    def maxtree(s, base, n, dst, first=True):
        a = s.a
        i = 0
        if first:
            a('v_max3_u32 v%d, v%d, v%d, v%d' % (dst, base, base + 1, base + 2)); i = 3
        while i + 1 < n:
            a('v_max3_u32 v%d, v%d, v%d, v%d' % (dst, dst, base + i, base + i + 1)); i += 2
        if i < n: a('v_max_u32 v%d, v%d, v%d' % (dst, dst, base + i))
    def halfsum(s, d, dst=None):
        s.a('v_pk_add_f32 %s, %s, %s' % (vr(d if dst is None else dst, 2), vr(d, 2), vr(d + 2, 2)))
    def zero(s, regs):
        regs = list(regs)
        for i in range(0, len(regs), 2):
            assert regs[i] % 2 == 0 and regs[i + 1] == regs[i] + 1
            s.a('v_mov_b64 %s, 0' % vr(regs[i], 2))
    def hopb_s1(s, tag, tail=None, after=()):
        if not s.opt.get('tree', True): return s.hopb_seq(tag, tail)
        if s.opt.get('queue'): return s.hopb_q(tag, after)
        a = s.a
        def ld(u): a('buffer_load_dwordx4 %s, v%d, s[%d:%d], s%d offen offset:%d sc1' % (vr(vM + 4 * u, 4), vMld, S_WS, S_WS + 3, sH, u * 1024))
        def chk(u, n):
            return ['s_waitcnt vmcnt(%d)' % n,
                    'v_max3_u32 v%d, v%d, v%d, v%d' % (vT, vM + 4 * u, vM + 4 * u + 1, vM + 4 * u + 2),
                    'v_max_u32 v%d, v%d, v%d' % (vT, vT, vM + 4 * u + 3),
                    'v_cmp_eq_u32 vcc, -1, v%d' % vT]
        def mf(u, t6): a('v_smfmac_f32_16x16x64_bf16 %s, %s, %s, v%d' % (vr(vD + 4 * t6, 4), vr(vM + 4 * u, 4), ar((t6 * 4 + u) * 8, 8), vIdx))
        nm = lambda kind, F, R: 'L_b%s_%s_%s_%s' % (kind, ''.join(map(str, F)), ''.join(map(str, R)), tag)
        todo, seen = [], set()
        def want(kind, F, R):
            key = (kind, F, R)
            if key not in seen: seen.add(key); todo.append(key)
            return nm(kind, F, R)
        def chain(F, R):
            while True:
                u, rest = R[0], R[1:]
                a('s_cbranch_vccnz %s' % want('f', F + (u,), rest))
                if rest:
                    c = chk(rest[0], len(rest) - 1)
                    mf(u, 0); mf(u, 1); a(c[0]); a(c[1]); mf(u, 2); a(c[2]); a(c[3]); mf(u, 3); mf(u, 4); mf(u, 5)
                    R = rest
                    continue
                if F:
                    for x in F: ld(x)
                    for t6 in range(6): mf(u, t6)
                    a('s_branch %s' % want('c', (), F))
                else:
                    for t6 in range(6): mf(u, t6)
                    a('s_branch L_loop_%s' % tag)
                return
        for u in range(4): ld(u)
        for x in after: a(x)
        seen.add(('c', (), (0, 1, 2, 3)))
        a.label(nm('c', (), (0, 1, 2, 3)))
        for x in chk(0, 3): a(x)
        chain((), (0, 1, 2, 3))
        def stubs():
            while todo:
                kind, F, R = todo.pop(0)
                if kind == 'c' and (kind, F, R, 'done') in seen: continue
                a.label(nm(kind, F, R))
                if kind == 'f' and not R:
                    for x in F: ld(x)
                    s.count(11)
                    a('s_sub_u32 s%d, s%d, 1' % (sTmo, sTmo))
                    a('s_cbranch_scc1 L_chain_fail')
                    if ('c', (), F) in emitted:
                        a('s_branch %s' % nm('c', (), F))
                        continue
                    seen.add(('c', (), F)); seen.add(('c', (), F, 'done'))
                    a.label(nm('c', (), F))
                    F, R = (), F
                    kind = 'c'
                if kind == 'c': emitted.add(('c', F, R))
                for x in chk(R[0], len(R) - 1): a(x)
                chain(F, R)
        emitted = {('c', (), (0, 1, 2, 3))}
        return stubs
    def hopb_q(s, tag, after):
        a = s.a
        def ld(u): a('buffer_load_dwordx4 %s, v%d, s[%d:%d], s%d offen offset:%d sc1' % (vr(vM + 4 * u, 4), vMld, S_WS, S_WS + 3, sH, u * 1024))
        def chk(u, n):
            return ['s_waitcnt vmcnt(%d)' % n,
                    'v_max3_u32 v%d, v%d, v%d, v%d' % (vT, vM + 4 * u, vM + 4 * u + 1, vM + 4 * u + 2),
                    'v_max_u32 v%d, v%d, v%d' % (vT, vT, vM + 4 * u + 3),
                    'v_cmp_eq_u32 vcc, -1, v%d' % vT]
        def mf(u, t6): a('v_smfmac_f32_16x16x64_bf16 %s, %s, %s, v%d' % (vr(vD + 4 * t6, 4), vr(vM + 4 * u, 4), ar((t6 * 4 + u) * 8, 8), vIdx))
        nm = lambda k, Q: 'L_q%s%s_%s' % (k, ''.join(map(str, Q)), tag)
        todo, want, done = [], set(), set()
        pos = s.opt.get('qpos', 4)
        def chain(Q, early):
            while True:
                if Q in done:
                    a('s_branch %s' % nm('t', Q)); return
                if not early:
                    done.add(Q); a.label(nm('t', Q))
                if Q not in want: want.add(Q); todo.append(Q)
                a('s_cbranch_vccnz %s' % nm('f', Q))
                u, rest = Q[0], Q[1:]
                if not rest:
                    for t6 in range(6): mf(u, t6)
                    a('s_branch L_loop_%s' % tag); return
                c = chk(rest[0], len(rest) - 1)
                p = 2 if early else pos
                for t6 in range(6):
                    if t6 == p: a(c[0]); a(c[1])
                    if t6 == p + 1: a(c[2]); a(c[3])
                    mf(u, t6)
                if p >= 6: a(c[0]); a(c[1])
                if p + 1 >= 6: a(c[2]); a(c[3])
                Q = rest
        for u in range(4): ld(u)
        for x in after: a(x)
        for x in chk(0, 3): a(x)
        chain((0, 1, 2, 3), True)
        def stubs():
            while todo:
                Q = todo.pop(0)
                a.label(nm('f', Q))
                ld(Q[0])
                R = Q[1:] + Q[:1]
                if Q[0] == max(Q):
                    s.count(11)
                    a('s_sub_u32 s%d, s%d, 1' % (sTmo, sTmo))
                    a('s_cbranch_scc1 L_chain_fail')
                for x in chk(R[0], len(R) - 1): a(x)
                if R in done:
                    a('s_cbranch_vccnz %s' % nm('f', R))
                chain(R, False)
        return stubs
    def hopb_seq(s, tag, tail=None):
        a = s.a
        def ld(u): a('buffer_load_dwordx4 %s, v%d, s[%d:%d], s%d offen offset:%d sc1' % (vr(vM + 4 * u, 4), vMld, S_WS, S_WS + 3, sH, u * 1024))
        def chk(u):
            return ['s_waitcnt vmcnt(%d)' % (3 - u),
                    'v_max3_u32 v%d, v%d, v%d, v%d' % (vT, vM + 4 * u, vM + 4 * u + 1, vM + 4 * u + 2),
                    'v_max_u32 v%d, v%d, v%d' % (vT, vT, vM + 4 * u + 3),
                    'v_cmp_eq_u32 vcc, -1, v%d' % vT]
        def mf(u, t6): a('v_smfmac_f32_16x16x64_bf16 %s, %s, %s, v%d' % (vr(vD + 4 * t6, 4), vr(vM + 4 * u, 4), ar((t6 * 4 + u) * 8, 8), vIdx))
        for u in range(4): ld(u)
        for x in chk(0): a(x)
        for u in range(4):
            a('s_cbranch_vccnz L_b%d_retry_%s' % (u, tag))
            a.label('L_b%d_ok_%s' % (u, tag))
            if u < 3:
                c = chk(u + 1)
                mf(u, 0); mf(u, 1); a(c[0]); a(c[1]); mf(u, 2); a(c[2]); a(c[3]); mf(u, 3); mf(u, 4); mf(u, 5)
            else:
                for t6 in range(6):
                    mf(u, t6)
                    if tail and t6 < len(tail): tail[t6]()
        a('s_branch L_loop_%s' % tag)
        def stubs():
            for u in range(4):
                a.label('L_b%d_retry_%s' % (u, tag))
                s.count(11)
                a('s_sub_u32 s%d, s%d, 1' % (sTmo, sTmo))
                a('s_cbranch_scc1 L_chain_fail')
                for uu in range(u, 4): ld(uu)
                for x in chk(u): a(x)
                a('s_cbranch_vccnz L_b%d_retry_%s' % (u, tag))
                a('s_branch L_b%d_ok_%s' % (u, tag))
        return stubs
    def s1unit(s, u, base=vM):
        for t6 in range(6):
            s.a('v_smfmac_f32_16x16x64_bf16 %s, %s, %s, v%d' % (vr(vD + 4 * t6, 4), vr(base + 4 * u, 4), ar((t6 * 4 + u) * 8, 8), vIdx))
    def ux(s, hooks=None):
        a = s.a
        hooks = hooks or {}
        seq = [(hl, tau, t) for hl in range(2) for tau in range(2) for t in range(4)]
        def rd(i):
            hl, tau, t = seq[i]
            a('ds_read_b128 %s, v%d offset:%d' % (vr(vM + 4 * (i % 8), 4), vVX, hl * 8192 + tau * 4096 + t * 1024))
        for i in range(6): rd(i)
        def cvt(gi, tt, h):
            hl, tau = gi // 2, gi % 2
            d = vD + 16 * (gi % 2) + 4 * tt
            u = vU + 16 * tt + 8 * hl + 2 * tau
            a('v_cvt_pk_bf16_f32 v%d, v%d, v%d' % (u + h, d + 2 * h, d + 2 * h + 1))
        n = 0
        for i, (hl, tau, t) in enumerate(seq):
            if i + 6 < 16: rd(i + 6)
            a('s_waitcnt lgkmcnt(%d)' % min(6, 15 - i))
            gi = i // 4
            for tt in range(4):
                if n in hooks: hooks[n]()
                n += 1
                d = vD + 16 * (gi % 2) + 4 * tt
                if s.opt.get('noux') and hooks: a('s_nop 3')
                else: a('v_mfma_f32_16x16x32_bf16 %s, %s, %s, %s' % (vr(d, 4), vr(vM + 4 * (i % 8), 4), wo(tt, 16 * hl + 4 * t, 4), '0' if t == 0 else vr(d, 4)))
                if gi > 0 and t >= 2: cvt(gi - 1, tt, t - 2)
        for tt in range(4):
            for h in range(2): cvt(3, tt, h)
        a('v_xor_b32 v%d, 0x4000, v%d' % (vVX, vVX))
    def dma_kv(s, sSeg, wsbase, lds):
        a = s.a
        a('s_lshl_b32 s%d, s%d, 18' % (sT0, sSeg))
        a('s_add_u32 s%d, s%d, s%d' % (sT0, sT0, sKVoff))
        a('s_and_b32 s%d, s%d, 1' % (sT1, sW))
        a('s_lshl_b32 s%d, s%d, 13' % (sT1, sT1))
        a('s_add_u32 s%d, s%d, %s' % (sT1, sT1, lds))
        for tau in range(2):
            a('s_add_u32 s%d, s%d, 0x%x' % (sT0, sT0, wsbase if tau == 0 else 131072))
            a('s_add_u32 m0, s%d, %d' % (sT1, tau * 4096))
            for t in range(4): s.dma(sT0, t * 1024)
    def bits(s, dst, terms, init=None):
        a = s.a
        first = init is None
        if not first: a('v_mov_b32 v%d, %s' % (dst, init))
        for (src, n, sh) in terms:
            a('v_bfe_u32 v%d, v0, %d, %d' % (vT + 11, src, n))
            if first: a('v_lshlrev_b32 v%d, %d, v%d' % (dst, sh, vT + 11)); first = False
            else: a('v_lshl_add_u32 v%d, v%d, %d, v%d' % (dst, vT + 11, sh, dst))
    def init(s):
        a = s.a
        a('s_and_b32 s%d, s2, 7' % sX)
        a('s_lshr_b32 s%d, s2, 3' % sC)
        a('s_and_b32 s%d, s%d, 7' % (sJ, sC))
        a('s_lshr_b32 s%d, s%d, 3' % (sG, sC))
        a('s_mul_i32 s%d, s%d, %d' % (sT0, sX, 16 // s.NX))
        a('s_add_u32 s%d, s%d, s%d' % (sG, sG, sT0))
        s.get_wave()
        vA, vB = vT + 8, vT + 9
        a('s_bitcmp1_b32 s%d, 1' % sJ)
        a('s_cselect_b64 s[%d:%d], s[%d:%d], s[%d:%d]' % (sP, sP + 1, S_WK, S_WK + 1, S_WQ, S_WQ + 1))
        a('s_mov_b32 s%d, 0x%x' % (sP + 2, 8 * MB)); a('s_mov_b32 s%d, 0x20000' % (sP + 3))
        s.bits(vA, [(3, 3, 13), (0, 3, 4)])
        a('s_lshl_b32 s%d, s%d, 9' % (sA, sG))
        a('s_lshl_b32 s%d, s%d, 21' % (sT0, sW))
        a('s_add_u32 s%d, s%d, s%d' % (sA, sA, sT0))
        a('s_lshr_b32 s%d, s%d, 2' % (sT0, sJ))
        a('s_lshl_b32 s%d, s%d, 8' % (sT0, sT0))
        a('s_and_b32 s%d, s%d, 1' % (sT1, sJ))
        a('s_lshl_b32 s%d, s%d, 7' % (sT1, sT1))
        a('s_add_u32 s%d, s%d, s%d' % (sT0, sT0, sT1))
        a('s_add_u32 s%d, s%d, s%d' % (sT0, sT0, sA))
        a('s_lshl_b32 s%d, s%d, 15' % (sT1, sW))
        for i in range(32):
            a('s_add_u32 m0, s%d, %d' % (sT1, i * 1024))
            a('buffer_load_dwordx4 v%d, s[%d:%d], s%d offen%s lds' % (vA, sP, sP + 3, sT0, s.nt(S_WQ)))
            a('s_add_u32 s%d, s%d, 0x10000' % (sT0, sT0))
        s.claim()
        a('s_xor_b32 s%d, s%d, 4' % (sB, sJ))
        a('s_lshl_b32 s%d, s%d, 6' % (sT0, sB))
        a('s_add_u32 s%d, s%d, s%d' % (sT0, sT0, sA))
        a('s_mov_b32 s%d, s%d' % (sE, sT0))
        s.bits(vA, [(2, 4, 13), (0, 2, 4)])
        a('s_lshl_b32 s%d, s%d, 8' % (sT0, sJ))
        s.bits(vT + 6, [(4, 2, 11), (0, 4, 4)], 's%d' % sT0)
        a('s_lshl_b32 s%d, s%d, 19' % (sH, sG))
        a('s_lshl_b32 s%d, s%d, 17' % (sT1, sW))
        a('s_add_u32 s%d, s%d, s%d' % (sH, sH, sT1))
        def ldv(i):
            a('buffer_load_dwordx4 %s, v%d, s[%d:%d], s%d offen' % (vr(64 + 4 * i, 4), vA, S_WV, S_WV + 3, sE))
            a('s_add_u32 s%d, s%d, 0x20000' % (sE, sE))
        def ldo(i):
            a('buffer_load_dwordx4 %s, v%d, s[%d:%d], s%d offen' % (vr(128 + 4 * i, 4), vT + 6, S_WO, S_WO + 3, sH))
            a('s_add_u32 s%d, s%d, 8192' % (sH, sH))
        for i in range(4): ldv(i)
        a('s_mov_b32 s%d, 0x%x' % (sTmo, 400000))
        for i in range(2): a('s_mov_b32 s%d, 0x%x' % (sScale + i, f2u(math.log2(math.e) / math.sqrt(128))))
        for i in range(2): a('s_mov_b32 s%d, 0xcccccccc' % (sHiMask + i))
        for i in range(2): a('s_mov_b32 s%d, 0x00ff00ff' % (sStMask + i))
        a('v_lshlrev_b32 v%d, 4, v0' % vL16)
        a('v_lshlrev_b32 v%d, 2, v0' % vL4)
        for i in range(4): a('v_mov_b32 v%d, -1' % (vSent + i))
        a('v_mov_b32 v%d, 0x4444' % vT)
        a('v_mov_b32 v%d, 0xeeee' % (vT + 1))
        a('v_cndmask_b32 v%d, v%d, v%d, s[%d:%d]' % (vIdx, vT, vT + 1, sHiMask, sHiMask + 1))
        s.bits(vGate, [(0, 6, 7)])
        s.bits(vRed, [(4, 1, 12), (5, 1, 14), (0, 4, 4)])
        LIN = s.opt.get('lin')
        if LIN:
            s.bits(vMld, [(0, 6, 4)])
            s.bits(vMst, [(4, 2, 8), (0, 4, 2)])
        else:
            s.bits(vMld, [(2, 2, 8), (4, 2, 6), (0, 2, 4)])
            s.bits(vMst, [(0, 6, 2)])
        a('s_mul_i32 s%d, s%d, %d' % (sT0, sW, R_W))
        s.bits(vRw, [(0, 4, 3), (4, 2, 7), (4, 2, 6)], 's%d' % sT0)
        a('s_lshr_b32 s%d, s%d, 1' % (sT0, sW))
        a('s_mul_i32 s%d, s%d, %d' % (sT0, sT0, 2 * R_T))
        a('s_and_b32 s%d, s%d, 1' % (sT1, sW))
        a('s_lshl_b32 s%d, s%d, 6' % (sT1, sT1))
        a('s_add_u32 s%d, s%d, s%d' % (sT0, sT0, sT1))
        s.bits(vRr, [(0, 1, 9), (0, 1, 8), (0, 1, 3), (4, 2, 7), (4, 2, 6), (1, 1, 5), (3, 1, 4), (2, 1, 2)], 's%d' % sT0)
        a('v_add_u32 v%d, 8, v%d' % (vRr2, vRr))
        a('v_bfe_u32 v%d, v0, 2, 1' % vT)
        a('v_lshlrev_b32 v%d, 4, v%d' % (vT, vT))
        a('v_mov_b32 v%d, 0x3f80' % (vT + 1))
        a('v_lshlrev_b32 v%d, v%d, v%d' % (vT, vT, vT + 1))
        a('v_bfe_u32 v%d, v0, 0, 2' % (vT + 1))
        for k in range(4):
            a('v_cmp_eq_u32 vcc, %d, v%d' % (k, vT + 1))
            a('v_cndmask_b32 v%d, 0, v%d, vcc' % (vSel + k, vT))
        a('s_and_b32 s%d, s%d, 1' % (sT3, sW))
        a('s_lshl_b32 s%d, s%d, 10' % (sT0, sT3))
        a('s_add_u32 s%d, s%d, %d' % (sT0, sT0, L_P))
        a('v_add_u32 v%d, s%d, v%d' % (vPw, sT0, vL4))
        s.bits(vPw2, [(2, 4, 4), (0, 1, 3), (1, 1, 2)], 's%d' % sT0)
        lh = a.newlabel('Li')
        a('s_cmp_lt_u32 s%d, 2' % sW)
        a('s_cbranch_scc1 %s' % lh)
        s.bits(vPw, [(5, 1, 9), (3, 1, 8), (0, 2, 6), (4, 1, 5), (2, 1, 3)], str(L_P))
        a('v_add_u32 v%d, %d, v%d' % (vPw2, 2 * R_T, vRr))
        a('v_add_u32 v%d, %d, v%d' % (vRed, 2 * R_T + 8, vRr))
        a.label(lh)
        a('s_lshl_b32 s%d, s%d, 13' % (sT0, sT3))
        a('s_add_u32 s%d, s%d, %d' % (sT0, sT0, L_KX))
        a('s_mov_b32 s%d, s%d' % (sLdsC, sT0))
        s.bits(vKX, [(2, 4, 6), (0, 1, 5), (1, 1, 4)], 's%d' % sT0)
        a('v_add_u32 v%d, %d, v%d' % (vVX, L_VX, vL16))
        a('s_mul_i32 s%d, s%d, %d' % (sCld, sG, QKV_G))
        a('s_add_u32 s%d, s%d, 0x%x' % (sCld, sCld, WS_QKV))
        a('s_lshl_b32 s%d, s%d, 10' % (sT0, sJ))
        a('s_lshl_b32 s%d, s%d, 8' % (sT1, sW))
        a('s_add_u32 s%d, s%d, s%d' % (sT0, sT0, sT1))
        a('s_add_u32 s%d, s%d, s%d' % (sQKst, sCld, sT0))
        a('s_lshl_b32 s%d, s%d, 13' % (sT2, sG))
        a('s_add_u32 s%d, s%d, 0x%x' % (sT2, sT2, WS_KVM))
        a('s_add_u32 s%d, s%d, s%d' % (sKst, sT2, sT0))
        a('s_sub_u32 s%d, s%d, 2048' % (sKst, sKst))
        a('s_bitcmp1_b32 s%d, 1' % sJ)
        a('s_cselect_b32 s%d, s%d, 0x%x' % (sKst, sKst, WS_DUMP))
        a('s_lshl_b32 s%d, s%d, 9' % (sT0, sB))
        a('s_lshl_b32 s%d, s%d, 8' % (sT1, sT3))
        a('s_add_u32 s%d, s%d, s%d' % (sT0, sT0, sT1))
        a('s_add_u32 s%d, s%d, s%d' % (sVst, sCld, sT0))
        a('s_add_u32 s%d, s%d, 8192' % (sVst, sVst))
        a('s_and_b32 s%d, s%d, 2048' % (sT1, sT0))
        a('s_add_u32 s%d, s%d, s%d' % (sT0, sT0, sT1))
        a('s_add_u32 s%d, s%d, s%d' % (sKVMst, sT2, sT0))
        a('s_min_u32 s%d, s%d, 2' % (sT0, sW))
        a('s_lshl_b32 s%d, s%d, 12' % (sT0, sT0))
        a('s_add_u32 s%d, s%d, s%d' % (sCld, sCld, sT0))
        a('s_lshl_b32 s%d, s%d, 1' % (sT0, sJ))
        a('s_add_u32 s%d, s%d, s%d' % (sT0, sT0, sT3))
        a('s_lshl_b32 s%d, s%d, 15' % (sT0, sT0))
        a('s_and_b32 s%d, s%d, 8' % (sT1, sG))
        a('s_add_u32 s%d, s%d, s%d' % (sT1, sT1, sG))
        a('s_lshl_b32 s%d, s%d, 10' % (sT1, sT1))
        a('s_add_u32 s%d, s%d, s%d' % (sPARTst, sT0, sT1))
        a('s_add_u32 s%d, s%d, 0x%x' % (sPARTst, sPARTst, WS_PART))
        a('s_lshl_b32 s%d, s%d, 1' % (sT0, sC))
        a('s_add_u32 s%d, s%d, s%d' % (sT0, sT0, sT3))
        a('s_mul_i32 s%d, s%d, %d' % (sT0, sT0, s.NP))
        GL = s.opt.get('glob')
        if GL:
            a('s_lshr_b32 s%d, s%d, 1' % (sT0, sC))
            a('s_lshl4_add_u32 s%d, s%d, s%d' % (sT0, sX, sT0))
        if s.NP == 2: a('v_lshlrev_b32 v%d, 3, v0' % vMst)
        a('s_lshr_b32 s%d, s%d, 2' % (sT1, sT0))
        a('s_lshl_b32 s%d, s%d, 15' % (sREDld, sT1))
        a('s_and_b32 s%d, s%d, 3' % (sT1, sT0))
        a('s_lshl_b32 s%d, s%d, 8' % (sT1, sT1))
        a('s_add_u32 s%d, s%d, s%d' % (sREDld, sREDld, sT1))
        a('s_add_u32 s%d, s%d, 0x%x' % (sREDld, sREDld, WS_PART))
        a('s_lshl_b32 s%d, s%d, 14' % (sMTld, sX))
        a('s_add_u32 s%d, s%d, 0x%x' % (sMTld, sMTld, WS_MT))
        a('s_lshl_b32 s%d, s%d, 8' % (sT0, sT0))
        if LIN:
            a('s_sub_u32 s%d, s%d, s%d' % (sT0, sT0, sT1))
            a('s_lshr_b32 s%d, s%d, 2' % (sT1, sT1))
            a('s_add_u32 s%d, s%d, s%d' % (sT0, sT0, sT1))
        a('s_add_u32 s%d, s%d, s%d' % (sMTst, sMTld, sT0))
        if GL:
            a('s_and_b32 s%d, s%d, 8192' % (sT1, sT0))
            a('s_add_u32 s%d, s%d, s%d' % (sT0, sT0, sT1))
            a('s_add_u32 s%d, s%d, 0x%x' % (sMTst, sT0, WS_PART + 36 * MB))
            a('s_lshr_b32 s%d, s%d, 1' % (sT0, sW))
            a('s_lshl_b32 s%d, s%d, 13' % (sT0, sT0))
            a('s_add_u32 s%d, s%d, s%d' % (sMTst, sMTst, sT0))
            a('s_add_u32 s%d, s%d, 0x%x' % (sMTld, sT0, WS_PART + 36 * MB))
        a('s_lshl_b32 s%d, s%d, 12' % (sT0, sW))
        a('s_add_u32 s%d, s%d, s%d' % (sMTld, sMTld, sT0))
        a('s_lshl_b32 s%d, s%d, 1' % (sKVoff, sG))
        a('s_add_u32 s%d, s%d, s%d' % (sKVoff, sKVoff, sT3))
        a('s_lshl_b32 s%d, s%d, 12' % (sKVoff, sKVoff))
        a('s_and_b32 s%d, s%d, 1' % (sT0, sJ))
        a('s_lshl_b32 s%d, s%d, 12' % (sT0, sT0))
        a('s_lshl_b32 s%d, s%d, 13' % (sWarm, sG))
        a('s_add_u32 s%d, s%d, s%d' % (sWarm, sWarm, sT0))
        a('s_bfe_u32 s%d, s%d, 0x10001' % (sT0, sJ))
        a('s_lshl_b32 s%d, s%d, 17' % (sT0, sT0))
        a('s_add_u32 s%d, s%d, s%d' % (sWarm, sWarm, sT0))
        a('s_lshr_b32 s%d, s%d, 2' % (sT0, sJ))
        a('s_mul_i32 s%d, s%d, 0x%x' % (sT0, sT0, WS_VF - WS_KF + 262144))
        a('s_add_u32 s%d, s%d, s%d' % (sWarm, sWarm, sT0))
        a('s_add_u32 s%d, s%d, 0x%x' % (sWarm, sWarm, WS_KF + 2 * 262144))
        a('s_lshl_b32 s%d, s%d, 11' % (sT0, sT3))
        a('s_add_u32 s%d, s%d, s%d' % (sWarm, sWarm, sT0))
        a('s_lshl_b32 s%d, s%d, 15' % (sT0, sW))
        s.bits(vB, [(0, 2, 3), (4, 1, 11), (5, 1, 8), (2, 2, 6)], 's%d' % sT0)
        s.bits(vT + 10, [(0, 2, 3), (4, 1, 12), (5, 1, 9), (2, 2, 7)], 's%d' % sT0)
        a('v_add_u32 v%d, s%d, v%d' % (vT + 7, sT0, vL16))
        def tr_w1(vaddr, t0, nt, rowb, Tls=range(4)):
            for Tl in Tls:
                for tl in range(nt):
                    for v in range(4):
                        a('ds_read_b64_tr_b16 %s, v%d offset:%d' % (ar(((t0 + tl) * 4 + Tl) * 8 + 2 * v, 2), vaddr, (Tl * 64 + 8 * (v // 2) + 16 * (v % 2)) * rowb + tl * 32))
                    a('s_waitcnt lgkmcnt(4)')
            a('s_waitcnt lgkmcnt(0)')
        s.mark(5)
        for q in range(4):
            for i in range(4): (ldv if q < 3 else ldo)(4 * q + 4 + i if q < 3 else i)
            a('s_waitcnt vmcnt(%d)' % (8 * (3 - q) + 4 * (q + 2)))
            tr_w1(vT + 10, 0, 4, 128, (q,))
        s.mark(6)
        s.verify()
        for i in range(4, 10): ldo(i)
        a('s_and_b32 s%d, s%d, 15' % (sA, sC))
        a('s_lshl_b32 s%d, s%d, 16' % (sA, sA))
        a('s_lshr_b32 s%d, s%d, 4' % (sT1, sC))
        a('s_lshl2_add_u32 s%d, s%d, s%d' % (sT1, sT1, sX))
        a('s_lshl_b32 s%d, s%d, 8' % (sT1, sT1))
        a('s_add_u32 s%d, s%d, s%d' % (sA, sA, sT1))
        a('s_add_u32 s%d, s%d, 0x%x' % (sA, sA, WS_PART + 66 * PART_SLOT))
        for slot in range(4):
            a('s_add_u32 s%d, s%d, 0x%x' % (sT0, sQKst, slot * QKV_SLOT)); s.st(vSent, vL4, sT0)
            a('s_add_u32 s%d, s%d, 0x%x' % (sT0, sVst, slot * QKV_SLOT))
            a('s_add_u32 s%d, s%d, %d' % (sT1, sA, (0, 2, 5, 7)[slot] * 4096))
            a('s_cmp_eq_u32 s%d, 1' % sW)
            a('s_cselect_b32 s%d, s%d, s%d' % (sT0, sT1, sT0))
            s.st(vSent, vL4, sT0)
            if slot < 2:
                a('s_lshr_b32 s%d, s%d, 1' % (sT0, sW))
                a('s_lshl_b32 s%d, s%d, 13' % (sT0, sT0))
                a('s_add_u32 s%d, s%d, s%d' % (sT0, sT0, sPARTst))
                a('s_add_u32 s%d, s%d, 0x%x' % (sT0, sT0, slot * PART_SLOT)); s.st(vSent, vL16, sT0, n=4)
            a('s_add_u32 s%d, s%d, 0x%x' % (sT0, sMTst, slot * MT_SLOT)); s.st(vSent, vMst, sT0, n=s.NP)
        for i in range(10, 16): ldo(i)
        a('s_waitcnt vmcnt(30)')
        a('s_lshl_b32 s%d, s%d, 9' % (sT0, sW))
        s.bits(vA, [(2, 2, 12), (0, 1, 11), (4, 2, 3), (1, 1, 2)], 's%d' % sT0)
        for u in range(4):
            for p in range(4):
                a('buffer_load_dword v%d, v%d, s[%d:%d], 0 offen offset:%d' % (vF + 4 * u + p, vA, S_M0, S_M0 + 3, u * 128 + p * 32))
        for i in range(16):
            a('ds_write_b128 v%d, %s offset:%d' % (vT + 7, vr(64 + 4 * i, 4), i * 1024))
            if i % 8 == 7: a('s_waitcnt lgkmcnt(0)')
        tr_w1(vB, 4, 2, 64)
        a('s_waitcnt vmcnt(16)')
        s.counted()
        s.mark(7)
        for i in range(16):
            a('ds_write_b128 v%d, %s offset:%d' % (vT + 7, vr(128 + 4 * i, 4), 16384 + i * 1024))
            if i % 8 == 7: a('s_waitcnt lgkmcnt(0)')
        a('s_waitcnt vmcnt(0)')
        a('s_barrier')
        lm = a.newlabel('Lms')
        a('s_and_b32 s%d, s%d, 3' % (sT0, sJ))
        a('s_lshl2_add_u32 s%d, s%d, s%d' % (sT0, sT0, sW))
        a('s_cmp_eq_u32 s%d, 0' % sT0)
        a('s_cbranch_scc0 %s' % lm)
        a('s_and_b32 s%d, s%d, 15' % (sT0, sC))
        a('s_lshl_b32 s%d, s%d, 16' % (sT0, sT0))
        a('s_lshr_b32 s%d, s%d, 4' % (sT1, sC))
        a('s_lshl2_add_u32 s%d, s%d, s%d' % (sT1, sT1, sX))
        a('s_lshl_b32 s%d, s%d, 8' % (sT1, sT1))
        a('s_add_u32 s%d, s%d, s%d' % (sT0, sT0, sT1))
        a('s_add_u32 s%d, s%d, 0x%x' % (sT0, sT0, WS_PART + 66 * PART_SLOT))
        a('s_mov_b32 s%d, -1' % sA); a('s_mov_b32 s%d, -1' % sB)
        for k in range(s.opt.get('nprobe', 4)):
            a('s_memtime s[%d:%d]' % (sTS, sTS + 1))
            a('s_waitcnt lgkmcnt(0)')
            a('s_mov_b32 s%d, s%d' % (sT1, sTS))
            a('buffer_load_dword v%d, off, s[%d:%d], s%d sc1' % (vT, S_WS, S_WS + 3, sT0))
            a('s_waitcnt vmcnt(0)')
            a('s_memtime s[%d:%d]' % (sTS, sTS + 1))
            a('s_waitcnt lgkmcnt(0)')
            a('s_sub_u32 s%d, s%d, s%d' % (sT1, sTS, sT1))
            r = sB if k % 2 else sA
            a('s_min_u32 s%d, s%d, s%d' % (r, r, sT1))
            a('s_add_u32 s%d, s%d, %d' % (sT0, sT0, 8192 if k % 2 == 0 else 12288 if k % 4 == 1 else 4096))
        a('s_cmp_le_u32 s%d, s%d' % (sA, sB))
        a('s_cselect_b32 s%d, 1, 0x10001' % sT0)
        a('v_mov_b32 v%d, s%d' % (vT, sT0))
        a('s_mov_b64 exec, 1')
        a('buffer_atomic_add v%d, off, s[%d:%d], 0 offset:32 sc1' % (vT, S_DBG, S_DBG + 3))
        a('s_mov_b64 exec, -1')
        a.label(lm)
        lskip = a.newlabel('Lann')
        a('s_getreg_b32 s%d, hwreg(HW_REG_XCC_ID)' % sT0)
        a('s_and_b32 s%d, s%d, 15' % (sT0, sT0))
        a('s_mul_i32 s%d, s%d, s%d' % (sT1, sT0, sT0))
        a('s_lshl_b32 s%d, s%d, 18' % (sT1, sT1))
        a('s_lshl_b32 s%d, s%d, 8' % (sT0, sT0))
        a('s_add_u32 s%d, s%d, s%d' % (sT0, sT0, sT1))
        a('s_add_u32 s%d, s%d, 1' % (sLocal, sT0))
        a('s_cmp_eq_u32 s%d, 0' % sW)
        a('s_cbranch_scc0 %s' % lskip)
        a('s_lshl_b32 s%d, s%d, 2' % (sT1, sX))
        a('v_mov_b32 v%d, s%d' % (vT + 6, sLocal))
        a('s_mov_b64 exec, 1')
        a('buffer_atomic_add v%d, off, s[%d:%d], s%d offset:16 sc1' % (vT + 6, S_DBG, S_DBG + 3, sT1))
        a('s_mov_b64 exec, -1')
        a.label(lskip)
        lj = a.newlabel('Li')
        a('s_cmp_lt_u32 s%d, 2' % sW)
        a('s_cbranch_scc1 %s' % lj)
        a('s_lshl_b32 s%d, s%d, 7' % (sT0, sT3))
        a('s_add_u32 s%d, s%d, 16384' % (sT0, sT0))
        s.bits(vB, [(2, 4, 8), (0, 2, 3)], 's%d' % sT0)
        a('v_add_u32 v%d, 0x10000, v%d' % (vB + 1, vB))
        for tt in range(4):
            for hl in range(2):
                for t in range(4):
                    for v2 in range(2):
                        a('ds_read_b64_tr_b16 %s, v%d offset:%d' % (wo(tt, 16 * hl + 4 * t + 2 * v2, 2), vB + hl, (t // 2) * 32768 + (32 * (t % 2) + 16 * v2) * 256 + tt * 32))
                a('s_waitcnt lgkmcnt(0)')
        for i in range(8):
            a('v_mov_b32 v%d, 0' % (vU + 8 * i + 6)); a('v_mov_b32 v%d, 0' % (vU + 8 * i + 7))
        a.label(lj)
        a('s_barrier')
        if s.opt.get('touchr', True):
            a('v_bfe_u32 v%d, v0, 1, 2' % (vT + 1))
            a('v_and_b32 v%d, 1, v0' % (vT + 2))
            a('v_lshlrev_b32 v%d, 7, v%d' % (vT + 2, vT + 2))
            a('v_lshl_add_u32 v%d, v%d, 17, v%d' % (vT + 3, vT + 1, vT + 2))
            if s.opt.get('lin'):
                s.bits(vT + 3, [(1, 2, 17), (0, 1, 8)])
                a('s_and_b32 s%d, s%d, 1' % (sT0, sW))
                a('s_lshl_b32 s%d, s%d, 9' % (sT0, sT0))
                a('v_add_u32 v%d, s%d, v%d' % (vT + 3, sT0, vT + 3))
            a('v_mul_u32_u24 v%d, 0x%x, v%d' % (vT + 1, QKV_SLOT, vT + 1))
            a('v_add_u32 v%d, v%d, v%d' % (vT + 1, vT + 1, vT + 2))
            a('s_mov_b64 exec, 0xff')
            for k, (va, so) in enumerate(((vT + 1, sQKst), (vT + 1, sVst), (vT + 3, sMTst))):
                a('buffer_load_dword v%d, v%d, s[%d:%d], s%d offen sc1' % (vT + 4 + k, va, S_WS, S_WS + 3, so))
            a('s_mov_b64 exec, -1')
        s.kv_wait_init()
        a('s_mov_b32 s%d, 0' % sStep)
        lh, lj = a.newlabel('Li'), a.newlabel('Li')
        a('s_cmp_ge_u32 s%d, 2' % sW)
        a('s_cbranch_scc1 %s' % lh)
        s.dma_kv(sStep, WS_KF, str(L_KX))
        a('s_mov_b32 s%d, 1' % sT2)
        s.dma_kv(sT2, WS_VF, str(L_VX + 16384))
        a('v_mov_b32 v%d, 0' % (vT + 3))
        a('ds_write_b32 v%d, v%d offset:768' % (vPw, vT + 3))
        a('s_branch %s' % lj)
        a.label(lh)
        s.dma_kv(sStep, WS_VF, str(L_VX))
        a.label(lj)
        lw, lok = a.newlabel('Lw'), a.newlabel('Lw')
        a('v_min_u32 v%d, 16, v%d' % (vT + 1, vL4))
        a.label(lw)
        a('buffer_load_dword v%d, v%d, s[%d:%d], 0 offen offset:16 sc1' % (vT, vT + 1, S_DBG, S_DBG + 3))
        a('s_waitcnt vmcnt(0)')
        a('v_and_b32 v%d, 0xff, v%d' % (vT + 2, vT))
        a('v_cmp_ne_u32 vcc, 32, v%d' % (vT + 2))
        a('v_readlane_b32 s%d, v%d, 4' % (sT1, vT))
        a('s_and_b32 s%d, vcc_lo, 15' % sT0)
        a('s_cselect_b32 s%d, 0, s%d' % (sT1, sT1))
        a('s_bitcmp1_b32 s%d, 5' % sT1)
        a('s_cbranch_scc1 %s' % lok)
        a('s_sleep 8')
        s.tmo(lw)
        a.label(lok)
        a('s_cmp_gt_u32 s%d, 0x100020' % sT1)
        a('s_cselect_b32 s%d, 2, 0' % sT1)
        if 'near' in s.opt: a('s_mov_b32 s%d, %d' % (sT1, 2 * s.opt['near']))
        a('s_lshl_b32 s%d, s%d, 12' % (sT1, sT1))
        a('s_add_u32 s%d, s%d, s%d' % (sPARTst, sPARTst, sT1))
        a('s_add_u32 s%d, s%d, s%d' % (sREDld, sREDld, sT1))
        if s.opt.get('glob'):
            a('s_add_u32 s%d, s%d, s%d' % (sMTld, sMTld, sT1))
            a('s_add_u32 s%d, s%d, s%d' % (sMTst, sMTst, sT1))
            a('s_and_b32 s%d, s%d, 1' % (sC, sC))
            a('s_or_b32 s%d, s%d, s%d' % (sC, sC, sW))
            a('s_cselect_b32 s%d, 0x%x, s%d' % (sMTst, WS_DUMP, sMTst))
        a('v_readlane_b32 s%d, v%d, s%d' % (sT0, vT, sX))
        a('s_mul_i32 s%d, s%d, %d' % (sLocal, sLocal, 128 // s.NX))
        a('s_cmp_eq_u32 s%d, s%d' % (sT0, sLocal))
        a('s_cselect_b32 s%d, 1, 0' % sLocal)
        if s.opt.get('remote'): a('s_mov_b32 s%d, 0' % sLocal)
        a('s_waitcnt vmcnt(0) lgkmcnt(0)')
        a('s_barrier')
        lj = a.newlabel('Li')
        a('s_cmp_lt_u32 s%d, 2' % sW)
        a('s_cbranch_scc1 %s' % lj)
        s.ux()
        a.label(lj)
        s.pre_loop()
        s.prep_stage1()
        for u in range(4): s.s1unit(u, vF)
        s.mark(1)
        if s.opt.get('tot', True):
            a('s_memrealtime s[98:99]')
            a('s_memtime s[82:83]')
            a('s_waitcnt lgkmcnt(0)')
        if s.prof:
            for i in range(16): a('s_mov_b32 s%d, 0' % (sAcc + i))
            a('s_memtime s[%d:%d]' % (sTS, sTS + 1)); a('s_waitcnt lgkmcnt(0)'); a('s_mov_b32 s%d, s%d' % (sPrev, sTS))
    def slot(s, dst, base, mul, rst=False):
        a = s.a
        a('s_and_b32 s%d, s%d, 3' % (dst, sStep))
        if rst: a('s_xor_b32 s%d, s%d, 2' % (dst, dst))
        a('s_mul_i32 s%d, s%d, %d' % (dst, dst, mul))
        a('s_add_u32 s%d, s%d, s%d' % (dst, dst, base))
    def prep_stage1(s):
        a = s.a
        s.slot(sA, sQKst, QKV_SLOT); s.slot(sB, sVst, QKV_SLOT); s.slot(sCc, sCld, QKV_SLOT)
        s.zero(range(vD, vD + 24))
    def s1finish(s, second):
        a = s.a
        s.stamp(9 if s.opt.get('trace') else 12)
        for t6 in range(6):
            s.halfsum(vD + 4 * t6)
            a('ds_write_b64 v%d, %s offset:%d' % (vRw, vr(vD + 4 * t6, 2), L_R + t6 * R_T))
        a('s_waitcnt lgkmcnt(0)')
        s.stamp(6)
        a('s_barrier')
        s.stamp(7)
        tiles = [(vRr, vRr2, vM + 16, vT + 10, sA)] + ([(vPw2, vRed, vM + 24, vT + 11, sB)] if second else [])
        k = R_W // 256
        for a0, a1, r, o, so in tiles:
            for e, ad in enumerate((a0, a1)):
                for h in range(2):
                    a('ds_read2st64_b32 %s, v%d offset0:%d offset1:%d' % (vr(r + 4 * e + 2 * h, 2), ad, 2 * h * k, (2 * h + 1) * k))
        for n, (a0, a1, r, o, so) in enumerate(tiles):
            rem = 4 * (len(tiles) - 1 - n)
            a('s_waitcnt lgkmcnt(%d)' % (rem + 2))
            a('v_pk_add_f32 %s, %s, %s' % (vr(r, 2), vr(r, 2), vr(r + 2, 2)))
            a('v_add_f32 v%d, v%d, v%d' % (r, r, r + 1))
            a('s_waitcnt lgkmcnt(%d)' % rem)
            a('v_pk_add_f32 %s, %s, %s' % (vr(r + 4, 2), vr(r + 4, 2), vr(r + 6, 2)))
            a('v_add_f32 v%d, v%d, v%d' % (r + 4, r + 4, r + 5))
            a('v_cvt_pk_bf16_f32 v%d, v%d, v%d' % (o, r, r + 4))
            s.lst(o, vL4, so)
        s.stamp(0)
    def hopc(s, tag):
        a = s.a
        a.label('L_hopc_%s' % tag)
        for i in range(4):
            a('buffer_load_dwordx4 %s, v%d, s[%d:%d], s%d offen offset:%d sc1' % (vr(vM + 4 * i, 4), vL16, S_WS, S_WS + 3, sCc, i * 1024))
        a('s_waitcnt vmcnt(2)')
        s.maxtree(vM, 8, vT)
        a('s_waitcnt vmcnt(0)')
        s.maxtree(vM + 8, 8, vT, first=False)
        a('v_cmp_eq_u32 vcc, -1, v%d' % vT)
        a('s_cbranch_vccnz L_cretry_%s' % tag)
    def cretry(s, tag):
        s.a.label('L_cretry_%s' % tag)
        s.count(9)
        s.tmo('L_hopc_%s' % tag)
    def loop_S(s, tag):
        a = s.a
        vS = vD + 24
        vSm = vF + 4
        for i in range(8): a('v_mov_b32 v%d, 0' % (vS + i))
        a.label('L_loop_%s' % tag)
        s.s1finish(False)
        a('s_lshl_b32 s%d, s%d, 17' % (sK2, sStep))
        a('s_add_u32 s%d, s%d, s%d' % (sK2, sK2, sKst))
        a('s_cmp_eq_u32 s%d, %d' % (sStep, s.nsteps - 1))
        a('s_cbranch_scc1 L_lastk')
        A = a; buf = []
        s.a = a = buf.append
        for i in range(8): a('ds_read_b128 %s, v%d offset:%d' % (vr(vK + 4 * i, 4), vKX, i * 1024))
        a('s_min_u32 s%d, s%d, 60' % (sT2, sStep))
        a('s_lshl_b32 s%d, s%d, 18' % (sT2, sT2))
        a('s_add_u32 s%d, s%d, s%d' % (sT2, sT2, sWarm))
        a('s_lshl_b32 s%d, s%d, 19' % (sD, sStep))
        a('s_add_u32 s%d, s%d, s%d' % (sD, sD, sREDld))
        a('s_and_b32 s%d, s%d, 4' % (sT3, sStep))
        a('s_lshl_b32 s%d, s%d, 11' % (sT3, sT3))
        a('s_xor_b32 s%d, s%d, s%d' % (sD, sD, sT3))
        s.slot(sE, sMTst, MT_SLOT); s.slot(sH, sMTld, MT_SLOT)
        s.slot(sB, sQKst, QKV_SLOT, True); s.slot(sF, sMTst, MT_SLOT, True)
        s.zero(range(vD, vD + 24))
        s.a = a = A
        npre = s.opt.get('npre', 20)
        def cld():
            for i in range(4):
                a('buffer_load_dwordx4 %s, v%d, s[%d:%d], s%d offen offset:%d sc1' % (vr(vM + 4 * i, 4), vL16, S_WS, S_WS + 3, sCc, i * 1024))
        for y in buf[:npre]: a(y)
        s.stamp(1)
        cld()
        for y in buf[npre:]: a(y)
        a('s_waitcnt lgkmcnt(0)')
        a.label('L_hopc_%s' % tag)
        mx = lambda k, first: 'v_max3_u32 v%d, v%d, v%d, v%d' % (vT, vM + 2 * k if first else vT, vM + 2 * k, vM + 2 * k + 1)
        for T in range(2):
            a('s_waitcnt vmcnt(%d)' % (3 - T))
            for tau in range(2):
                a('v_smfmac_f32_16x16x64_bf16 %s, %s, %s, v%d' % (vr(vS + 4 * tau, 4), vr(vM + 4 * T, 4), vr(vK + 16 * tau + 8 * T, 8), vIdx))
                a(mx(2 * T + tau, T + tau == 0))
        for T in range(2):
            a('s_waitcnt vmcnt(%d)' % (1 - T))
            a('v_mfma_f32_16x16x32_bf16 %s, %s, %s, %s' % (vr(vSm, 4), vr(vM + 4 * T, 4), vr(vM + 8 + 4 * T, 4), '0' if T == 0 else vr(vSm, 4)))
            for k in range(2): a(mx(4 + 2 * T + k, False))
        a('v_cmp_eq_u32 vcc, -1, v%d' % vT)
        s.halfsum(vS, vT + 2); s.halfsum(vS + 4, vT + 4)
        a('s_cbranch_vccnz L_cretry_%s' % tag)
        s.stamp(2)
        def warm():
            a('s_mov_b64 exec, 0xffff')
            a('buffer_load_dword v%d, v%d, s[%d:%d], s%d offen sc1' % (vT + 11, vGate, S_WS, S_WS + 3, sT2))
            a('s_mov_b64 exec, -1')
        if s.opt.get('warm', 1) == 1: warm()
        x = vT + 2
        m = vT + 8
        for i in range(2): a('v_cndmask_b32 v%d, v%d, v%d, s[%d:%d]' % (x + 4 + i, vSm + i, vSm + 2 + i, sHiMask, sHiMask + 1))
        for i in range(2): a('v_add_f32_dpp v%d, v%d, v%d quad_perm:[2,3,0,1] row_mask:0xf bank_mask:0xf' % (x + 4 + i, x + 4 + i, x + 4 + i))
        def xreduce(op):
            for sh in (8, 4, 2, 1):
                for i in range(2): s.a('%s_dpp v%d, v%d, v%d row_ror:%d row_mask:0xf bank_mask:0xf' % (op, m + i, m + i, m + i, sh))
        for i in range(2): a('v_max3_f32 v%d, v%d, v%d, v%d' % (m + i, x + i, x + 2 + i, x + 4 + i))
        xreduce('v_max_f32')
        a('v_pk_mul_f32 %s, %s, %s' % (vr(m, 2), vr(m, 2), sr(sScale, 2)))
        for k in range(3): a('v_pk_fma_f32 %s, %s, %s, %s neg_lo:[0,0,1] neg_hi:[0,0,1]' % (vr(x + 2 * k, 2), vr(x + 2 * k, 2), sr(sScale, 2), vr(m, 2)))
        for i in range(6): a('v_exp_f32 v%d, v%d' % (x + i, x + i))
        DN = s.opt.get('dn', True)
        def rowsum():
            s.a('v_pk_add_f32 %s, %s, %s' % (vr(m, 2), vr(x, 2), vr(x + 2, 2)))
            for i in range(2): s.a('v_fma_f32 v%d, v%d, 0.5, v%d' % (m + i, x + 4 + i, m + i))
            xreduce('v_add_f32')
            for i in range(2): s.a('v_rcp_f32 v%d, v%d' % (m + i, m + i))
        if not DN:
            rowsum()
            for k in range(3): a('v_pk_mul_f32 %s, %s, %s' % (vr(x + 2 * k, 2), vr(x + 2 * k, 2), vr(m, 2)))
        for k in range(3): a('v_cvt_pk_bf16_f32 v%d, v%d, v%d' % (vSm + k, x + 2 * k, x + 2 * k + 1))
        a('ds_write2_b32 v%d, v%d, v%d offset0:0 offset1:64' % (vPw, vSm, vSm + 1))
        a('ds_write_b32 v%d, v%d offset:512' % (vPw2, vSm + 2))
        if DN:
            A2 = a; b2 = []
            s.a = a = b2.append
            rowsum()
            s.a = a = A2
            for y in b2[:7]: a(y)
        a('s_waitcnt lgkmcnt(0)')
        s.stamp(3)
        a('s_barrier')
        if DN:
            for y in b2[7:]: a(y)
            a('ds_write2st64_b32 v%d, v%d, v%d offset0:8 offset1:9' % (vPw, m, m + 1))
            a('s_waitcnt lgkmcnt(0)')
            a('s_barrier')
        s.stamp(4)
        a('s_add_u32 s%d, s%d, 1' % (sStep, sStep))
        s.slot(sA, sQKst, QKV_SLOT); s.slot(sCc, sCld, QKV_SLOT)
        s.zero(range(vS, vS + 8))
        a('v_xor_b32 v%d, 0x4000, v%d' % (vKX, vKX))
        tail = None
        if s.opt.get('b3a'): a('s_barrier')
        if s.opt.get('warm', 1) == 2: warm()
        s.st(vT + 10, vL4, sK2)
        s.lst(vSent, vL4, sB); (s.st if s.opt.get('glob') else s.lst)(vSent, vMst, sF, n=s.NP)
        if not s.opt.get('hst', True):
            s.lst(vSent, vL4, sB, 512)
            a('s_sub_u32 s%d, s%d, s%d' % (sT0, sB, sQKst))
            a('s_add_u32 s%d, s%d, s%d' % (sT0, sT0, sVst))
            s.lst(vSent, vL4, sT0)
            a('s_add_u32 s%d, s%d, 1' % (sT0, sStep))
            a('s_and_b32 s%d, s%d, 4' % (sT1, sT0))
            a('s_lshl_b32 s%d, s%d, 19' % (sT0, sT0))
            a('s_add_u32 s%d, s%d, s%d' % (sT0, sT0, sPARTst))
            a('s_lshl_b32 s%d, s%d, 11' % (sT1, sT1))
            a('s_xor_b32 s%d, s%d, s%d' % (sT3, sT0, sT1))
            if not s.opt.get('initlate'): s.st(vSent, vL16, sT3, n=4)
        a('s_barrier')
        s.delay('adelay')
        s.stamp(8)
        if s.opt.get('glob'):
            a('s_cmp_lg_u32 s%d, 0' % sC)
            a('s_cbranch_scc1 L_askip_%s' % tag)
        a.label('L_hopa_%s' % tag)
        NP = s.NP
        r = vF + 8
        for i in range(4 * NP):
            a('buffer_load_dwordx4 %s, v%d, s[%d:%d], s%d offen offset:%d sc1' % (vr(vM + 4 * i, 4), vRed, S_WS, S_WS + 3, sD, (i // NP) * 1024 + (i % NP) * 256))
        a('s_mov_b64 exec, -1')
        IL = 1 if s.opt.get('initlate') else 0
        if IL: s.st(vSent, vL16, sT3, n=4)
        for i in range(4 * NP):
            a('s_waitcnt vmcnt(%d)' % (4 * NP - 1 - i + IL))
            rr = vr(r + 4 * (i % NP), 4)
            a('v_mfma_f32_16x16x32_bf16 %s, %s, %s, %s' % (rr, vr(vM + 4 * i, 4), vr(vSel, 4), '0' if i < NP else rr))
        a('v_pk_add_f32 %s, %s, %s' % (vr(vT, 2), vr(r, 2), vr(r + 2, 2)))
        if NP == 2:
            a('v_pk_add_f32 %s, %s, %s' % (vr(vT, 2), vr(vT, 2), vr(r + 4, 2)))
            a('v_pk_add_f32 %s, %s, %s' % (vr(vT, 2), vr(vT, 2), vr(r + 6, 2)))
        for k in range(NP):
            for h in range(2): a('v_cvt_pk_bf16_f32 v%d, v%d, v%d' % (r + 4 * k + h, r + 4 * k + 2 * h, r + 4 * k + 2 * h + 1))
        a('v_cmp_u_f32 vcc, v%d, v%d' % (vT, vT + 1))
        for k in range(NP):
            a('v_cndmask_b32 v%d, v%d, v%d, s[%d:%d]' % (r + 4 * k, r + 4 * k + 1, r + 4 * k, sStMask, sStMask + 1))
        a('s_cbranch_vccnz L_aslow_%s' % tag)
        a.label('L_aok_%s' % tag)
        for k in range(NP): (s.st if s.opt.get('glob') else s.lst)(r + 4 * k, vMst, sE, 256 * k)
        a.label('L_askip_%s' % tag)
        s.stamp(5)
        if s.opt.get('b4'): a('s_barrier')
        s.delay('b4delay')
        stubs = s.hopb_s1(tag, tail)
        stubs()
        a.label('L_aslow_%s' % tag)
        s.maxtree(vM, 16 * NP, vT + 1)
        a('v_cmp_eq_u32 vcc, -1, v%d' % (vT + 1))
        a('s_cbranch_vccz L_aok_%s' % tag)
        a('s_mov_b64 exec, vcc')
        s.count(10)
        s.tmo('L_hopa_%s' % tag)
        a.label('L_cretry_%s' % tag)
        cld()
        s.zero(range(vS, vS + 8))
        s.count(9)
        s.tmo('L_hopc_%s' % tag)
    def um(s):
        a = s.a
        def cvt(hl, tt):
            d = vD + 16 * hl + 4 * tt
            a('v_cvt_pk_bf16_f32 v%d, v%d, v%d' % (vU + 16 * tt + 8 * hl + 4, d, d + 1))
            a('v_cvt_pk_bf16_f32 v%d, v%d, v%d' % (vU + 16 * tt + 8 * hl + 5, d + 2, d + 3))
        n = 0
        for hl in range(2):
            for T in range(2):
                indma = s.opt.get('dmapos', 'um') == 'um' and n < 4 - s.opt.get('split', 0)
                if indma: a('s_mov_b32 m0, s%d' % (sP + 4 + n))
                for tt in range(4):
                    a('v_smfmac_f32_16x16x64_bf16 %s, %s, %s, v%d' % (vr(vD + 16 * hl + 4 * tt, 4), vr(vM + 8 * hl + 4 * T, 4), wo(tt, 16 * hl + 8 * T, 8), vIdx))
                    if indma: s.dma(sP + n, tt * 1024)
                    if hl == 1 and T == 1: cvt(0, tt)
                n += 1
        for tt in range(4): cvt(1, tt)
    def kv_addr(s):
        a = s.a
        a('s_add_u32 s%d, s%d, 1' % (sT0, sStep))
        a('s_lshl_b32 s%d, s%d, 18' % (sP, sT0))
        a('s_add_u32 s%d, s%d, s%d' % (sP, sP, sKVoff))
        if WS_KF: a('s_add_u32 s%d, s%d, 0x%x' % (sP, sP, WS_KF))
        a('s_add_u32 s%d, s%d, 0x20000' % (sP + 1, sP))
        a('s_and_b32 s%d, s%d, 1' % (sT0, sT0))
        a('s_lshl_b32 s%d, s%d, 14' % (sT0, sT0))
        a('s_add_u32 s%d, s%d, s%d' % (sP + 4, sT0, sLdsC))
        a('s_add_u32 s%d, s%d, 4096' % (sP + 5, sP + 4))
        a('s_xor_b32 s%d, s%d, 0x4000' % (sP + 6, sP + 4))
        a('s_add_u32 s%d, s%d, %d' % (sP + 6, sP + 6, L_VX - L_KX))
        a('s_add_u32 s%d, s%d, 4096' % (sP + 7, sP + 6))
        a('s_add_u32 s%d, s%d, 2' % (sT0, sStep))
        a('s_min_u32 s%d, s%d, 63' % (sT0, sT0))
        a('s_lshl_b32 s%d, s%d, 18' % (sP + 2, sT0))
        a('s_add_u32 s%d, s%d, s%d' % (sP + 2, sP + 2, sKVoff))
        a('s_add_u32 s%d, s%d, 0x%x' % (sP + 2, sP + 2, WS_VF))
        a('s_add_u32 s%d, s%d, 0x20000' % (sP + 3, sP + 2))
    def loop_H(s, tag):
        a = s.a
        vO = vT + 2
        zs = [vD + i for i in range(32)] + [vF + i for i in range(16)]
        for z in zs[24:]: a('v_mov_b32 v%d, 0' % z)
        s.kv_addr()
        a.label('L_loop_%s' % tag)
        s.s1finish(True)
        a('s_lshl_b32 s%d, s%d, 17' % (sF, sStep))
        a('s_add_u32 s%d, s%d, s%d' % (sK2, sF, sKst))
        a('s_add_u32 s%d, s%d, s%d' % (sF, sF, sKVMst))
        a('s_cmp_eq_u32 s%d, %d' % (sStep, s.nsteps - 1))
        a('s_cbranch_scc1 L_last_%s' % tag)
        for i in range(4): a('ds_read_b128 %s, v%d offset:%d' % (vr(vM + 16 + 4 * i, 4), vVX, i * 1024))
        a('s_lshl_b32 s%d, s%d, 19' % (sD, sStep))
        a('s_add_u32 s%d, s%d, s%d' % (sD, sD, sPARTst))
        a('s_and_b32 s%d, s%d, 4' % (sT3, sStep))
        a('s_lshl_b32 s%d, s%d, 11' % (sT3, sT3))
        a('s_xor_b32 s%d, s%d, s%d' % (sD, sD, sT3))
        s.slot(sH, sMTld, MT_SLOT)
        vG = 240
        acc = {0: vG, 1: vD, 2: vD + 16, 3: vG}
        fr = lambda i: vM + 4 * ((i + 4) % 8) if i < 4 else vM + 4 * (i % 8)
        rd = lambda i: 'ds_read_b128 %s, v%d offset:%d' % (vr(fr(i), 4), vVX, i * 1024)
        def mm(i, tt):
            d = vr(acc[i // 4] + 4 * tt, 4)
            return 'v_mfma_f32_16x16x32_bf16 %s, %s, %s, %s' % (d, vr(fr(i), 4), wo(tt, 16 * (i // 8) + 4 * (i % 4), 4), '0' if i % 4 == 0 else d)
        def cvt(gi): return ['v_cvt_pk_bf16_f32 v%d, v%d, v%d' % (vU + 16 * tt + 8 * (gi // 2) + 2 * (gi % 2) + h, acc[gi] + 4 * tt + 2 * h, acc[gi] + 4 * tt + 2 * h + 1) for tt in range(4) for h in range(2)]
        zz = lambda b, n: ['v_mov_b64 %s, 0' % vr(b + 2 * k, 2) for k in range(n // 2)]
        def cld():
            for i in range(4):
                a('buffer_load_dwordx4 %s, v%d, s[%d:%d], s%d offen offset:%d sc1' % (vr(vM + 4 * i, 4), vL16, S_WS, S_WS + 3, sCc, i * 1024))
        z24 = zz(vD, 24)
        hp = s.opt.get('hpre', 6)
        for k in range(4): a(z24.pop(0))
        for n in range(16):
            if n % 4 == 0: a('s_waitcnt lgkmcnt(%d)' % (3 - n // 4))
            if n == hp:
                s.stamp(1)
                cld()
            a(mm(n // 4, n % 4))
            if z24: a(z24.pop(0))
        a.label('L_hopc_%s' % tag)
        a('s_waitcnt vmcnt(2)')
        s.maxtree(vM, 8, vT)
        a('s_waitcnt vmcnt(0)')
        s.maxtree(vM + 8, 8, vT, first=False)
        a('v_cmp_eq_u32 vcc, -1, v%d' % vT)
        a('s_cbranch_vccnz L_cretry_%s' % tag)
        s.stamp(2)
        for i in range(4, 8): a(rd(i))
        s.um()
        DN = s.opt.get('dn', True)
        if DN:
            for x in zz(vD, 16): a(x)
        s.stamp(3)
        a('s_barrier')
        s.stamp(4)
        for hl in range(2):
            for u in range(2):
                a('ds_read_b64_tr_b16 %s, v%d offset:%d' % (vr(vM + 4 * hl + 2 * u, 2), vPw, hl * 1024 + u * 16))
        fa = lambda hl, tt: (vD if DN and hl else vF) + 4 * tt
        for hl in range(2):
            a('s_waitcnt lgkmcnt(%d)' % (2 - 2 * hl))
            for tt in range(4):
                if DN and hl == 1 and tt == s.opt.get('dnpos', 0):
                    a('s_barrier')
                    for h in range(2): a('ds_read2st64_b32 %s, v%d offset0:%d offset1:%d' % (vr(vM + 8 + 2 * h, 2), vL4, L_P // 256 + 8 + 4 * h, L_P // 256 + 9 + 4 * h))
                a('v_smfmac_f32_16x16x64_bf16 %s, %s, %s, v%d' % (vr(fa(hl, tt), 4), vr(vM + 4 * hl, 4), vr(vU + 16 * tt + 8 * hl, 8), vIdx))
        if DN:
            for tt in range(4): s.halfsum(vF + 4 * tt)
            a('s_waitcnt lgkmcnt(0)')
            for tt in range(4): a('v_pk_mul_f32 %s, %s, %s' % (vr(vF + 4 * tt, 2), vr(vF + 4 * tt, 2), vr(vM + 8, 2)))
        for tt in range(4):
            s.halfsum(fa(1, tt))
            if DN: a('v_pk_fma_f32 %s, %s, %s, %s' % (vr(vF + 4 * tt, 2), vr(vD + 4 * tt, 2), vr(vM + 10, 2), vr(vF + 4 * tt, 2)))
            a('v_cvt_pk_bf16_f32 v%d, v%d, v%d' % (vO + tt, vF + 4 * tt, vF + 4 * tt + 1))
        s.st(vO, vL16, sD, n=4)
        s.stamp(5)
        A = a; buf = []
        s.a = a = buf.append
        HS = s.opt.get('hst', True)
        if HS:
            s.slot(sT2, sQKst, QKV_SLOT, True)
            a('s_sub_u32 s%d, s%d, s%d' % (sT1, sT2, sQKst))
            a('s_add_u32 s%d, s%d, s%d' % (sT1, sT1, sVst))
            a('s_add_u32 s%d, s%d, 0x%x' % (sD, sD, 2 * PART_SLOT))
            a('s_and_b32 s%d, s%d, 2' % (sT3, sStep))
            a('s_lshl_b32 s%d, s%d, 12' % (sT3, sT3))
            a('s_xor_b32 s%d, s%d, s%d' % (sD, sD, sT3))
        a('s_add_u32 s%d, s%d, 1' % (sStep, sStep))
        s.kv_probe()
        s.slot(sA, sQKst, QKV_SLOT); s.slot(sB, sVst, QKV_SLOT); s.slot(sCc, sCld, QKV_SLOT)
        s.kv_addr()
        sal = list(buf); del buf[:]
        s.st(vT + 10, vL4, sK2); s.st(vT + 11, vL4, sF, 2048)
        if HS:
            s.st(vSent, vL16, sD, n=4); s.lst(vSent, vL4, sT2); s.lst(vSent, vL4, sT1)
        sts = list(buf)
        s.nlate = len(sts)
        s.a = a = A
        gaps = {n: [] for n in range(48)}
        for k, x in enumerate(cvt(0) + zz(vF, 16)): gaps[k].append(x)
        for k, x in enumerate(cvt(1)): gaps[20 + k].append(x)
        for k, x in enumerate(zz(vD, 16)): gaps[28 + k].append(x)
        for k, x in enumerate(cvt(2)): gaps[36 + k].append(x)
        SP = s.opt.get('split', 0)
        for k in range(4 * SP):
            n = 4 - SP + k // 4
            if k % 4 == 0: gaps[k].append('s_mov_b32 m0, s%d' % (sP + 4 + n))
            gaps[k + 1].insert(0, 'buffer_load_dwordx4 v%d, s[%d:%d], s%d offen offset:%d sc1 lds' % (vL16, S_WS, S_WS + 3, sP + n, (k % 4) * 1024))
        for k, x in enumerate(sal): gaps[k].append(x)
        lp = s.opt.get('latepos', 34)
        for k, x in enumerate(sts): gaps[lp + 2 * k].append(x)
        for i in range(8, 16): gaps[0 if i < 10 else 4 * (i - 8) - 4 if i < 12 else 4 * (i - 8 - 3) + 0].append(rd(i))
        order = sorted((n, i) for n in gaps for i in range(8, 16) if rd(i) in gaps[n])
        for n in range(48):
            i = 4 + n // 4
            if n % 4 == 0 and i >= 8:
                later = [j for (g, j) in order if g < n]
                a('s_waitcnt lgkmcnt(%d)' % (len(later) - 1 - later.index(i)))
            if n == s.opt.get('b3pos', 24) or (n == 1 and s.opt.get('b3a')): a('s_barrier')
            a(mm(i, n % 4))
            for x in gaps[n]: a(x)
        for x in zz(vD + 16, 16): a(x)
        a('v_xor_b32 v%d, 0x4000, v%d' % (vVX, vVX))
        s.kv_check(tag)
        s.stamp(8)
        if s.opt.get('b4'):
            for x in cvt(3): a(x)
            a('s_barrier')
        s.delay('b4delay')
        stubs = s.hopb_s1(tag, None, () if s.opt.get('b4') else cvt(3))
        stubs()
        a.label('L_cretry_%s' % tag)
        cld()
        s.count(9)
        s.tmo('L_hopc_%s' % tag)
        s.kv_slow(tag)
        a.label('L_last_%s' % tag)
        s.st(vT + 11, vL4, sF, 2048)
        a('s_branch L_lastk')
    def emit(s):
        a = s.a
        s.init()
        a('s_cmp_eq_u32 s%d, 1' % sLocal)
        a('s_cbranch_scc0 L_remote')
        for local in (True, False):
            s.local = local
            t = 'l' if local else 'r'
            if not local: a.label('L_remote')
            a('s_cmp_ge_u32 s%d, 2' % sW)
            a('s_cbranch_scc1 L_H%s' % t)
            s.loop_S('S' + t)
            a.label('L_H%s' % t)
            s.loop_H('H' + t)
        a.label('L_lastk')
        s.st(vT + 10, vL4, sK2)
        a('s_branch L_chain_done')
        a.label('L_chain_fail')
        a('s_mov_b64 exec, -1')
        a('v_mov_b32 v%d, 1' % vT)
        a('buffer_atomic_add v%d, off, s[%d:%d], 0 offset:4 sc1' % (vT, S_DBG, S_DBG + 3))
        a.label('L_chain_done')
        if s.opt.get('tot', True):
            a('s_memrealtime s[100:101]')
            a('s_waitcnt lgkmcnt(0)')
            a('s_sub_u32 s100, s100, s98')
            a('v_mov_b32 v%d, s100' % vT)
            a('buffer_store_dword v%d, off, s[%d:%d], 0 offset:8' % (vT, S_DBG, S_DBG + 3))
            a('s_memtime s[100:101]')
            a('s_waitcnt lgkmcnt(0)')
            a('s_sub_u32 s100, s100, s82')
            a('v_mov_b32 v%d, s100' % vT)
            a('s_lshl_b32 s%d, s%d, 2' % (sT0, sX))
            a('buffer_store_dword v%d, off, s[%d:%d], s%d offset:64' % (vT, S_DBG, S_DBG + 3, sT0))
        if s.opt.get('trace'):
            a('s_lshl_b32 s%d, s2, 2' % sT0)
            a('s_add_u32 s%d, s%d, s%d' % (sT0, sT0, sW))
            a('s_lshl_b32 s%d, s%d, 12' % (sT0, sT0))
            a('s_add_u32 s%d, s%d, 0x%x' % (sT0, sT0, WS_PROF))
            for i in range(11): s.st(244 + i, vL4, sT0, 256 * i, sc1=False)
        if s.prof:
            a('s_lshl_b32 s%d, s2, 2' % sT0)
            a('s_add_u32 s%d, s%d, s%d' % (sT0, sT0, sW))
            a('s_lshl_b32 s%d, s%d, 6' % (sT0, sT0))
            a('s_add_u32 s%d, s%d, 0x%x' % (sT0, sT0, WS_PROF))
            a('s_mov_b32 s%d, s%d' % (sAcc + 15, sTmo))
            a('s_mov_b32 s%d, s%d' % (sAcc + 14, sLocal))
            for i in range(16):
                a('v_mov_b32 v%d, s%d' % (vT, sAcc + i))
                a('buffer_store_dword v%d, off, s[%d:%d], s%d offset:%d' % (vT, S_WS, S_WS + 3, sT0, 4 * i))
        if s.opt.get('endwait', True): a('s_waitcnt vmcnt(0)')
    def nt(s, srd): return ' nt' if srd in s.opt.get('nt', []) else ''
    def get_wave(s):
        a = s.a
        a('v_lshrrev_b32 v%d, 6, v0' % vT)
        a('v_readfirstlane_b32 s%d, v%d' % (sW, vT))
        a('v_and_b32 v0, 63, v0')
    def kv_probe(s): pass
    def kv_check(s, tag): pass
    def kv_slow(s, tag): pass
    def pre_loop(s): pass
    def claim(s): pass
    def verify(s): pass
    def counted(s): pass
    def mark(s, i): pass
    def early0(s): pass
    def early1(s): pass
    def kv_wait_init(s): pass
    def kv_wait_loop(s): pass

def chain_kernel(name='chain_kernel', prof=False, opt=None):
    a = Asm()
    NX = (opt or {}).get('NX', 4)
    a('s_and_b32 s3, s2, 7')
    a('s_cmp_ge_u32 s3, %d' % NX)
    a('s_cbranch_scc1 L_chain_exit')
    a('s_cmp_ge_u32 s2, %d' % (1024 // NX))
    a('s_cbranch_scc1 L_chain_exit')
    for sreg, k in [(S_WS, 'ws'), (S_WQ, 'Wq'), (S_WK, 'Wk'), (S_WV, 'Wv'), (S_WO, 'Wo'), (S_M0, 'B_mem0'), (S_DBG, 'dbg')]:
        a('s_load_dwordx2 s[%d:%d], s[0:1], %d' % (sreg, sreg + 1, KA[k]))
    a('s_waitcnt lgkmcnt(0)')
    for sreg, n in [(S_WS, WS_BYTES), (S_WQ, 8 * MB), (S_WK, 8 * MB), (S_WV, 8 * MB), (S_WO, 8 * MB), (S_M0, 16384), (S_DBG, 256)]:
        a('s_mov_b32 s%d, 0x%x' % (sreg + 2, n)); a('s_mov_b32 s%d, 0x20000' % (sreg + 3))
    Chain(a, prof, opt=opt).emit()
    a.label('L_chain_exit')
    a('s_endpgm')
    return kernel_head(name) + a.finalize()

def write(path, prof, opt):
    txt = '; @launch grid=(256,1,1) block=(256,1,1) lds=%d\n.amdgcn_target "amdgcn-amd-amdhsa--gfx950"\n.text\n' % L_END
    txt += chain_kernel(prof=prof, opt=opt)
    txt += '.section .rodata,"a"\n.p2align 6\n' + kernel_desc('chain_kernel')
    open(path, 'w').write(txt)

if __name__ == '__main__':
    import sys, json
    for spec in sys.argv[1:]:
        name, _, o = spec.partition('=')
        opt = json.loads(o) if o else {}
        write(name + '.s', 'prof' in name, opt)
```

```python
from ag import *
from common import *

S_WS, S_WQ, S_WK, S_WV, S_WO, S_M0, S_DBG = 4, 8, 12, 16, 20, 24, 28
S_X = 32
S_WC = 36
sW, sT0, sT1, sT2, sT3 = 40, 41, 42, 43, 44
sXo, sWo, sIt, sOut, sXl, sWl, sCnt = 45, 46, 47, 48, 49, 50, 51
sJob = 52
sSt, sXm, sWm, sRd, sOutN = 64, 65, 66, 67, 68
sSigN, sSigC, sSigD = 69, 70, 71
sNX, sNW, sNP = 74, 75, 76
vXr0, vXr1, vL16 = 1, 2, 3
vWr = 4
vXs = 8
vWs = 16
vT = 20
vFr = 0
vStg = 32
sKv, sKvN, sOutP, sDmp, sKvm = 72, 73, 78, 79, 14
sXp, sWp = 10, 11
vXp, vWp = 96, 97
vAcc = 128

class G1:
    def __init__(s, a, MT, tag):
        s.a = a; s.MT = MT; s.tag = tag
        s.XB = 32 * MT * 128
        s.ST = s.XB + 16384
        s.nxd = s.XB // 4096
        s.NS = 3
    def bits(s, dst, terms, init=None):
        a = s.a
        first = init is None
        if not first: a('v_mov_b32 v%d, %s' % (dst, init))
        for (src, n, sh) in terms:
            a('v_bfe_u32 v%d, v0, %d, %d' % (vT + 1, src, n))
            if first: a('v_lshlrev_b32 v%d, %d, v%d' % (dst, sh, vT + 1)); first = False
            else: a('v_lshl_add_u32 v%d, v%d, %d, v%d' % (dst, vT + 1, sh, dst))
    def setup(s):
        a = s.a; MT = s.MT
        a('v_lshrrev_b32 v%d, 3, v0' % vT)
        a('v_xor_b32 v%d, v0, v%d' % (vXs, vT))
        a('v_and_b32 v%d, 7, v%d' % (vXs, vXs))
        a('v_lshlrev_b32 v%d, 4, v%d' % (vXs, vXs))
        a('v_lshl_add_u32 v%d, v%d, 11, v%d' % (vXs, vT, vXs))
        a('s_mul_i32 s%d, s%d, %d' % (sT0, sW, s.nxd * 8 * 2048))
        a('v_add_u32 v%d, s%d, v%d' % (vXs, sT0, vXs))
        for i in range(1, s.nxd): a('v_add_u32 v%d, 0x%x, v%d' % (vXs + i, i * 8 * 2048, vXs))
        a('s_mul_i32 s%d, s%d, %d' % (sXl, sW, s.nxd * 1024))
        a('v_lshrrev_b32 v%d, 4, v0' % vT)
        a('s_and_b32 s%d, s%d, 1' % (sT0, sW))
        a('s_lshl_b32 s%d, s%d, 2' % (sT1, sT0))
        a('v_or_b32 v%d, s%d, v%d' % (vT + 1, sT1, vT))
        a('v_lshlrev_b32 v%d, 1, v%d' % (vT + 1, vT + 1))
        a('v_xor_b32 v%d, v0, v%d' % (vWs, vT + 1))
        a('v_and_b32 v%d, 15, v%d' % (vWs, vWs))
        a('v_lshlrev_b32 v%d, 4, v%d' % (vWs, vWs))
        a('v_lshl_add_u32 v%d, v%d, 13, v%d' % (vWs, vT, vWs))
        a('s_lshl_b32 s%d, s%d, 3' % (sT0, sT0))
        a('s_lshr_b32 s%d, s%d, 1' % (sT1, sW))
        a('s_lshl_b32 s%d, s%d, 2' % (sT1, sT1))
        a('s_add_u32 s%d, s%d, s%d' % (sT0, sT0, sT1))
        a('s_lshl_b32 s%d, s%d, 13' % (sT1, sT0))
        a('v_add_u32 v%d, s%d, v%d' % (vWs, sT1, vWs))
        for i in range(1, 4): a('v_add_u32 v%d, 0x%x, v%d' % (vWs + i, i * 16 * 8192, vWs))
        a('s_lshl_b32 s%d, s%d, 8' % (sWl, sT0))
        a('s_add_u32 s%d, s%d, %d' % (sWl, sWl, s.XB))
        a('v_lshrrev_b32 v%d, 4, v0' % vT)
        a('v_xor_b32 v%d, v0, v%d' % (vXr0, vT))
        a('v_and_b32 v%d, 7, v%d' % (vXr0, vXr0))
        a('v_lshlrev_b32 v%d, 4, v%d' % (vXr0, vXr0))
        a('v_and_b32 v%d, 15, v0' % vT)
        a('v_lshl_add_u32 v%d, v%d, 7, v%d' % (vXr0, vT, vXr0))
        a('s_and_b32 s%d, s%d, 1' % (sT0, sW))
        a('s_mul_i32 s%d, s%d, %d' % (sT0, sT0, MT * 2048))
        a('v_add_u32 v%d, s%d, v%d' % (vXr0, sT0, vXr0))
        a('v_xor_b32 v%d, 64, v%d' % (vXr1, vXr0))
        s.bits(vT, [(2, 3, 0)])
        a('s_lshr_b32 s%d, s%d, 1' % (sT0, sW))
        a('s_lshl_b32 s%d, s%d, 2' % (sT0, sT0))
        a('v_xor_b32 v%d, s%d, v%d' % (vT, sT0, vT))
        s.bits(vT + 2, [(4, 2, 11), (2, 2, 8), (0, 2, 3)], str(s.XB))
        for nt in range(4):
            a('v_xor_b32 v%d, %d, v%d' % (vT + 3, nt, vT))
            a('v_lshl_add_u32 v%d, v%d, 5, v%d' % (vWr + nt, vT + 3, vT + 2))
        a('v_lshlrev_b32 v%d, 4, v0' % vL16)
        a('s_mov_b32 s%d, 0x%x' % (sDmp, WS_DUMP))
        a('s_mov_b32 s%d, 0x%x' % (sKvm, WS_KVM))
    def dmas(s):
        out = []
        for i in range(s.nxd):
            out.append(('s_add_u32 m0, s%d, %d' % (sXm, i * 1024), 'buffer_load_dwordx4 v%d, s[%d:%d], s%d offen lds' % (vXs + i, S_X, S_X + 3, sXo)))
        for i in range(4):
            out.append(('s_add_u32 m0, s%d, %d' % (sWm, i * 4096), 'buffer_load_dwordx4 v%d, s[%d:%d], s%d offen lds' % (vWs + i, S_WC, S_WC + 3, sWo)))
        return out
    def adv(s, switch=False):
        if switch:
            o = ['s_mov_b32 s%d, s%d' % (sXo, sNX), 's_mov_b32 s%d, s%d' % (sWo, sNW), 's_mov_b64 s[%d:%d], s[%d:%d]' % (S_WC, S_WC + 1, sNP, sNP + 1)]
        else:
            o = ['s_add_u32 s%d, s%d, 128' % (sXo, sXo), 's_add_u32 s%d, s%d, 0x80000' % (sWo, sWo)]
        return o + ['s_add_u32 s%d, s%d, %d' % (sSt, sSt, s.ST),
                    ['s_cmp_eq_u32 s%d, %d' % (sSt, s.NS * s.ST), 's_cselect_b32 s%d, 0, s%d' % (sSt, sSt)],
                    's_add_u32 s%d, s%d, s%d' % (sXm, sXl, sSt), 's_add_u32 s%d, s%d, s%d' % (sWm, sWl, sSt),
                    ['s_cmp_eq_u32 s%d, %d' % (sSt, (s.NS - 1) * s.ST), 's_cselect_b32 s%d, s%d, %d' % (sT3, sRd, s.ST)]]
    def fx(s, st, mt): return vFr + st * (4 * s.MT + 16) + 4 * mt
    def fw(s, st, nt): return vFr + st * (4 * s.MT + 16) + 4 * s.MT + 4 * nt
    def reads(s, st, ks, flip=False):
        out = []
        for nt in range(4):
            for v2 in range(2):
                out.append('ds_read_b64_tr_b16 %s, v%d offset:%d' % (ar(s.fw(st, nt) + 2 * v2, 2), vWr + nt, (32 * ks + 4 * v2) * 256))
        xs = ['ds_read_b128 %s, v%d offset:%d' % (ar(s.fx(st, mt), 4), vXr1 if ks else vXr0, mt * 2048) for mt in range(s.MT)]
        return out[:2] + xs[:1] + out[2:] + xs[1:]
    def flips(s): return ['v_add_u32 v%d, s%d, v%d' % (r, sT3, r) for r in [vXr0, vWr, vWr + 1, vWr + 2, vWr + 3, vXr1]]
    def phase(s, st, slots, first=False):
        a = s.a
        k = 0
        for mt in range(s.MT):
            for nt in range(4):
                d = vr(vAcc + (mt * 4 + nt) * 4, 4)
                a('v_mfma_f32_16x16x32_bf16 %s, %s, %s, %s' % (d, ar(s.fw(st, nt), 4), ar(s.fx(st, mt), 4), '0' if first else d))
                for x in slots.get(k, []): a(x)
                k += 1
    def sched(s, reads, dm, tail, extra=()):
        n = 4 * s.MT
        slots = {}
        def put(k, x):
            slots.setdefault(min(k, n - 1), []).extend([x] if isinstance(x, str) else x)
        nr = len(reads)
        span = int(n * 0.72)
        for i, r in enumerate(reads): put(i * span // nr, r)
        last = 0
        for i, (m, d) in enumerate(dm):
            k = 1 + (i * max(n - 2 - (len(tail) + 1) // 2, 2 * len(dm) - 2)) // len(dm) if n > 8 else 2 * i
            put(k, m); put(k + 1, d); last = k + 1
        t0 = max(last + 1, n - (len(tail) + 1) // 2 - 1)
        for i, x in enumerate(tail):
            k = t0 + i // 2
            if isinstance(x, str) and x.startswith('v_add'): k = max(k, span)
            put(k, x)
        ex = list(extra)
        for i, x in enumerate(ex): put(i * n // max(len(ex), 1), x)
        return slots
    def run(s, next_job, more, signal, after_prologue=None, at_signal=None, immediate=False, pre_epi=None):
        a = s.a; t = s.tag
        nd = s.nxd + 4; h = nd // 2
        dl = s.dmas()
        def flat(L):
            for x in L:
                for y in ([x] if isinstance(x, str) else x): a(y)
        a('s_mov_b32 s%d, %d' % (sSt, (s.NS - 1) * s.ST))
        a('s_mov_b32 s%d, %d' % (sRd, (-(s.NS - 1) * s.ST) & 0xffffffff))
        flat(next_job())
        flat(s.adv(True))
        a('s_barrier')
        for k in range(s.NS):
            flat(dl if k < s.NS - 1 else dl[:h])
            if k < s.NS - 1: flat(s.adv())
        nx = after_prologue() if after_prologue else 0
        if s.touch and not immediate:
            a('s_add_u32 s%d, s%d, %d' % (sXp, sNX, (s.NS + s.touch) * 128))
            a('s_add_u32 s%d, s%d, 0x%x' % (sWp, sNW, (s.NS + s.touch) * 0x80000))
            a('s_mov_b64 s[%d:%d], s[%d:%d]' % (s.S_WP, s.S_WP + 1, sNP, sNP + 1))
            a('s_mov_b32 s%d, 0x%x' % (s.S_WP + 2, 8 * MB)); a('s_mov_b32 s%d, 0x20000' % (s.S_WP + 3))
            a('s_and_b32 s%d, s54, 1' % sT0)
            a('s_lshl_b32 s%d, s%d, 2' % (sT0, sT0))
            a('s_add_u32 s%d, s%d, s%d' % (sT0, sT0, sW))
            a('s_lshl_b32 s%d, s%d, 16' % (sT0, sT0))
            s.bits(vWp, [(1, 3, 13), (0, 1, 7)], 's%d' % sT0)
            a('s_and_b32 s%d, s54, 28' % sT0)
            a('s_add_u32 s%d, s%d, s%d' % (sT0, sT0, sW))
            a('s_lshl_b32 s%d, s%d, 14' % (sT0, sT0))
            s.bits(vXp, [(0, 3, 11)], 's%d' % sT0)
            for i in range(2): a('buffer_load_dword v98, off, s[%d:%d], 0' % (S_X, S_X + 3))
            nx += 2
        a('s_waitcnt vmcnt(%d)' % (nd * (s.NS - 2) + h + nx))
        if s.after_wait: s.after_wait()
        a('s_barrier')
        flat(s.reads(0, 0))
        a('s_mov_b32 s%d, 0' % sCnt)
        w = nd * (s.NS - 2)
        for i in range(4): a('v_mov_b32 v%d, -1' % (vT + 4 + i))
        a('s_mov_b32 s%d, 0x%x' % (sOutP, WS_DUMP))
        def body(first=False, wait=w, post=None, switch=False, extra=(), loop=None, extraB=(), slotsB=None):
            a('s_waitcnt lgkmcnt(0)')
            s.phase(0, s.sched(s.reads(1, 1), dl[h:], s.adv(switch) + s.flips(), extra), first)
            a('s_waitcnt vmcnt(%d) lgkmcnt(0)' % wait)
            a('s_barrier')
            if post: post()
            sl = s.sched(s.reads(0, 0), dl[:h], loop or [], extraB)
            for k, v in (slotsB or {}).items(): sl.setdefault(k, []).extend(v)
            s.phase(1, sl)
        def stores(sreg, mts):
            o = []
            for mt in mts:
                for pr in range(2):
                    o.append('buffer_store_dwordx4 %s, v%d, s[%d:%d], s%d offen offset:%d sc1' % (vr(vStg + 8 * mt + 4 * pr, 4), vL16, S_WS, S_WS + 3, sreg, pr * 1024))
                o.append('s_add_u32 s%d, s%d, 0x20000' % (sreg, sreg))
            return o
        kv = ['buffer_store_dwordx4 %s, v%d, s[%d:%d], s%d offen sc1' % (vr(vT + 4, 4), vL16, S_WS, S_WS + 3, sKv), 's_add_u32 s%d, s%d, 0x40000' % (sKv, sKv)]
        def post():
            l2 = a.newlabel('Lg1')
            a('s_cmp_eq_u32 s%d, 0' % sCnt)
            a('s_cbranch_scc1 %s' % l2)
            signal()
            a.label(l2)
        a.label('L_g1tile_%s' % t)
        a('s_mov_b32 s%d, s%d' % (sOut, sOutN))
        a('s_mov_b32 s%d, s%d' % (sSigC, sSigN))
        a('s_mov_b32 s%d, s%d' % (sKv, sKvN))
        if immediate:
            nk = s.MT // 4
            oob = ['s_mov_b32 s%d, 0x%x' % (sNX, 8 * MB), 's_mov_b32 s%d, 0x%x' % (sNW, 8 * MB)]
            body(first=True, extraB=kv * nk)
            body(wait=w + nk, extra=oob if s.single else next_job(), loop=['s_mov_b32 s%d, 2' % sIt], extraB=kv * nk)
            a.label('L_g1loop_%s' % t)
            body(loop=['s_add_u32 s%d, s%d, 1' % (sIt, sIt), 's_cmp_lt_u32 s%d, %d' % (sIt, 16 - s.NS)])
            a('s_cbranch_scc1 L_g1loop_%s' % t)
            body(switch=True)
            for i in range(s.NS - 2): body()
            last = {}
        else:
            NBs = s.spread
            q = s.MT // NBs
            D = s.touch
            prev = 2 if D else 0
            for i in range(16):
                ex = []; n = 0
                if D:
                    tc = ['s_mov_b64 exec, 0xffff',
                          'buffer_load_dword v%d, v%d, s[%d:%d], s%d offen' % (98, vWp, s.S_WP, s.S_WP + 3, sWp),
                          'buffer_load_dword v%d, v%d, s[%d:%d], s%d offen' % (99, vXp, S_X, S_X + 3, sXp), 's_mov_b64 exec, -1']
                    if i == 16 - s.NS - D - 1:
                        nx = ['s_mov_b32 s%d, s%d' % (sXp, sNX), 's_mov_b32 s%d, s%d' % (sWp, sNW), 's_mov_b64 s[%d:%d], s[%d:%d]' % (s.S_WP, s.S_WP + 1, sNP, sNP + 1)]
                    else:
                        nx = ['s_add_u32 s%d, s%d, 128' % (sXp, sXp), 's_add_u32 s%d, s%d, 0x80000' % (sWp, sWp)]
                    ex += [tc, nx]; n += 2
                if i < NBs:
                    ex += stores(sOutP, range(i * q, (i + 1) * q))
                    nk = [j for j in range(4) if j * NBs // 4 == i]
                    for j in nk: ex = ex + kv
                    n += 2 * q + len(nk)
                kw = dict(first=(i == 0), wait=w + prev, extra=next_job() if i == 1 else (), extraB=ex, post=post if i == NBs + 1 else None, switch=(i == 16 - s.NS))
                prev = n
                if i < 15: body(**kw)
                else: last = kw
        n = 4 * s.MT; LAG = 4
        cv = lambda k: ['v_cvt_pk_bf16_f32 v%d, v%d, v%d' % (vStg + 2 * k + i, vAcc + 4 * k + 2 * i, vAcc + 4 * k + 2 * i + 1) for i in range(2)]
        body(slotsB={k + LAG: cv(k) for k in range(n - LAG)}, **last)
        for k in range(n - LAG, n): flat(cv(k))
        if pre_epi: pre_epi()
        a('s_mov_b32 s%d, 1' % sCnt)
        a('s_mov_b32 s%d, s%d' % (sSigD, sSigC))
        a('s_mov_b32 s%d, s%d' % (sOutP, sOut))
        if not immediate:
            more()
            a('s_cbranch_scc1 L_g1tile_%s' % t)
        flat(stores(sOutP, range(s.MT)))
        if immediate:
            a('s_waitcnt lgkmcnt(0)')
            more()
            a('s_cbranch_scc0 L_g1end_%s' % t)
        a('s_waitcnt vmcnt(0) lgkmcnt(0)')
        a('s_barrier')
        signal()
        if immediate:
            a('s_branch L_g1tile_%s' % t)
            a.label('L_g1end_%s' % t)
            a('s_waitcnt vmcnt(%d)' % (2 * s.MT))
    spread = 8
    single = False
    after_wait = None
    touch = 0
    S_WP = 24
    def job(s, sRow, sCol):
        return ['s_mul_i32 s%d, s%d, %d' % (sNX, sRow, 32 * s.MT * 2048),
                's_and_b32 s%d, s%d, 31' % (sT0, sCol),
                's_lshl_b32 s%d, s%d, 8' % (sNW, sT0),
                's_lshr_b32 s%d, s%d, 5' % (sT1, sCol),
                ['s_cmp_eq_u32 s%d, 1' % sT1, 's_cselect_b64 s[%d:%d], s[%d:%d], s[%d:%d]' % (sNP, sNP + 1, S_WV, S_WV + 1, S_WK, S_WK + 1)],
                ['s_cmp_eq_u32 s%d, 2' % sT1, 's_cselect_b64 s[%d:%d], s[%d:%d], s[%d:%d]' % (sNP, sNP + 1, S_WQ, S_WQ + 1, sNP, sNP + 1)],
                's_lshl_b32 s%d, s%d, 24' % (sOutN, sT1),
                's_lshl_b32 s%d, s%d, 12' % (sT0, sT0),
                's_add_u32 s%d, s%d, s%d' % (sOutN, sOutN, sT0),
                's_lshl_b32 s%d, s%d, 1' % (sT0, sRow),
                's_and_b32 s%d, s%d, 1' % (sT1, sW),
                's_add_u32 s%d, s%d, s%d' % (sT0, sT0, sT1),
                's_mul_i32 s%d, s%d, %d' % (sT0, sT0, s.MT * 131072),
                's_add_u32 s%d, s%d, s%d' % (sOutN, sOutN, sT0),
                's_lshr_b32 s%d, s%d, 1' % (sT1, sW),
                's_lshl_b32 s%d, s%d, 11' % (sT1, sT1),
                's_add_u32 s%d, s%d, s%d' % (sOutN, sOutN, sT1),
                's_mul_i32 s%d, s%d, %d' % (sKvN, sRow, s.MT),
                's_lshr_b32 s%d, s%d, 1' % (sT0, sW),
                's_add_u32 s%d, s%d, s%d' % (sKvN, sKvN, sT0),
                's_lshl_b32 s%d, s%d, 17' % (sKvN, sKvN),
                's_lshl_b32 s%d, s%d, 4' % (sT0, sNW),
                's_add_u32 s%d, s%d, s%d' % (sKvN, sKvN, sT0),
                's_and_b32 s%d, s%d, 1' % (sT0, sW),
                's_lshl_b32 s%d, s%d, 10' % (sT0, sT0),
                's_add_u32 s%d, s%d, s%d' % (sKvN, sKvN, sT0),
                's_lshr_b32 s%d, s%d, 5' % (sT1, sCol),
                's_lshl_b32 s%d, s%d, 11' % (sT0, sT1),
                's_add_u32 s%d, s%d, s%d' % (sKvN, sKvN, sT0),
                ['s_cmp_eq_u32 s%d, 2' % sT1, 's_cselect_b32 s%d, s%d, s%d' % (sT0, sDmp, sKvm)],
                's_add_u32 s%d, s%d, s%d' % (sKvN, sKvN, sT0)]

def test_kernel(MT, RB, spread=8, touch=0):
    a = Asm()
    for sreg, k in [(S_WS, 'ws'), (S_WQ, 'Wq'), (S_WK, 'Wk'), (S_WV, 'Wv'), (S_X, 'B_x'), (S_DBG, 'dbg')]:
        a('s_load_dwordx2 s[%d:%d], s[0:1], %d' % (sreg, sreg + 1, KA[k]))
    a('s_waitcnt lgkmcnt(0)')
    for sreg, n in [(S_WS, WS_BYTES), (S_X, 4 * MB), (S_WC, 8 * MB), (S_DBG, 256)]:
        a('s_mov_b32 s%d, 0x%x' % (sreg + 2, n)); a('s_mov_b32 s%d, 0x20000' % (sreg + 3))
    a('s_mov_b64 s[%d:%d], s[%d:%d]' % (S_WC, S_WC + 1, S_WK, S_WK + 1))
    a('s_cmp_ge_u32 s2, 256'); a('s_cbranch_scc1 L_exit')
    a('s_and_b32 s53, s2, 7')
    a('s_cmp_lt_u32 s53, 4'); a('s_cbranch_scc1 L_exit')
    a('s_sub_u32 s53, s53, 4')
    a('s_lshr_b32 s54, s2, 3')
    a('v_lshrrev_b32 v%d, 6, v0' % vT)
    a('v_readfirstlane_b32 s%d, v%d' % (sW, vT))
    a('v_and_b32 v0, 63, v0')
    a('s_memrealtime s[60:61]')
    a('s_memtime s[80:81]')
    big = MT == 16
    if big: MT = 8
    g = G2(a, 'a') if big else G1(a, MT, 'a')
    NC = 12 if big else 24
    g.spread = spread; g.touch = touch
    g.setup()
    nrows = 2048 // (32 * MT)
    a('s_mov_b32 s%d, 0' % sJob)
    njobs = nrows * NC // 32
    CB = 32 // RB
    def next_job():
        nb_c = NC // CB
        return ['s_min_u32 s55, s%d, %d' % (sJob, njobs - 1),
                's_mul_i32 s56, s55, %d' % (65536 // nb_c + 1),
                's_lshr_b32 s56, s56, 16',
                's_mul_i32 s57, s56, %d' % nb_c,
                's_sub_u32 s57, s55, s57',
                's_mul_i32 s56, s56, %d' % RB,
                's_and_b32 s58, s54, %d' % (RB - 1),
                's_add_u32 s56, s56, s58',
                's_mul_i32 s57, s57, %d' % CB,
                's_lshr_b32 s58, s54, %d' % (RB.bit_length() - 1),
                's_add_u32 s57, s57, s58',
                's_mul_i32 s58, s53, %d' % NC,
                's_add_u32 s57, s57, s58'] + g.job(56, 57) + ['s_add_u32 s%d, s%d, 1' % (sJob, sJob)]
    g.run(next_job, lambda: a('s_cmp_le_u32 s%d, %d' % (sJob, njobs)), lambda: None)
    a('s_waitcnt vmcnt(0)')
    a('s_memrealtime s[62:63]')
    a('s_memtime s[82:83]')
    a('s_waitcnt lgkmcnt(0)')
    a('s_sub_u32 s82, s82, s80')
    a('v_mov_b32 v%d, s82' % vT)
    a('buffer_store_dword v%d, off, s[%d:%d], 0 offset:12' % (vT, S_DBG, S_DBG + 3))
    a('s_sub_u32 s62, s62, s60')
    a('v_mov_b32 v%d, s62' % vT)
    a('buffer_store_dword v%d, off, s[%d:%d], 0 offset:8' % (vT, S_DBG, S_DBG + 3))
    a.label('L_exit')
    a('s_endpgm')
    txt = '; @launch grid=(256,1,1) block=(256,1,1) lds=163840\n.amdgcn_target "amdgcn-amd-amdhsa--gfx950"\n.text\n'
    txt += kernel_head('g1_kernel') + a.finalize(True)
    txt += '.section .rodata,"a"\n.p2align 6\n' + kernel_desc('g1_kernel')
    return txt

class G2(G1):
    vWr8, vWs8, vF2 = 32, 40, 128
    _ = 0
    WB = 98304
    def mark(s, i): pass
    def cmark(s, i):
        l = s.a.newlabel('Lm')
        s.a('s_cmp_eq_u32 s%d, 0' % sCnt)
        s.a('s_cbranch_scc0 %s' % l)
        s.mark(i)
        s.a.label(l)
    def __init__(s, a, tag):
        G1.__init__(s, a, 8, tag)
    def setup(s):
        a = s.a
        G1.setup(s)
        for i in range(4):
            a('v_mov_b32 v%d, v%d' % (s.vWs8 + i, vWs + i))
            a('v_add_u32 v%d, 256, v%d' % (s.vWs8 + 4 + i, vWs + i))
        a('s_add_u32 s%d, s%d, %d' % (sWl, sWl, s.WB - s.XB))
        s.bits(vT, [(2, 3, 0)])
        a('s_lshr_b32 s%d, s%d, 1' % (sT0, sW))
        a('s_lshl_b32 s%d, s%d, 14' % (sT0, sT0))
        a('s_add_u32 s%d, s%d, %d' % (sT0, sT0, s.WB))
        s.bits(vT + 2, [(4, 2, 11), (2, 2, 8), (0, 2, 3)], 's%d' % sT0)
        for nt in range(8):
            a('v_xor_b32 v%d, %d, v%d' % (vT + 3, nt, vT))
            a('v_lshl_add_u32 v%d, v%d, 5, v%d' % (s.vWr8 + nt, vT + 3, vT + 2))
    def xd(s): return [('s_add_u32 m0, s%d, %d' % (sXm, i * 1024), 'buffer_load_dwordx4 v%d, s[%d:%d], s%d offen lds' % (vXs + i, S_X, S_X + 3, sXo)) for i in range(8)]
    def wd(s, par): return [('s_add_u32 m0, s%d, %d' % (sWl, par * 32768 + i * 4096), 'buffer_load_dwordx4 v%d, s[%d:%d], s%d offen lds' % (s.vWs8 + i, S_WC, S_WC + 3, sWo)) for i in range(8)]
    def xadv(s, sw):
        return ['s_mov_b32 s%d, s%d' % (sXo, sNX) if sw else 's_add_u32 s%d, s%d, 128' % (sXo, sXo), 's_add_u32 s%d, s%d, 32768' % (sSt, sSt),
                ['s_cmp_eq_u32 s%d, 98304' % sSt, 's_cselect_b32 s%d, 0, s%d' % (sSt, sSt)], 's_add_u32 s%d, s%d, s%d' % (sXm, sXl, sSt),
                ['s_cmp_eq_u32 s%d, 65536' % sSt, 's_cselect_b32 s%d, s%d, 32768' % (sT3, sRd)]]
    def wadv(s, sw):
        return ['s_mov_b32 s%d, s%d' % (sWo, sNW), 's_mov_b64 s[%d:%d], s[%d:%d]' % (S_WC, S_WC + 1, sNP, sNP + 1)] if sw else ['s_add_u32 s%d, s%d, 0x80000' % (sWo, sWo)]
    def rd2(s, st, ks, par):
        b = s.vF2 + 64 * st
        w = ['ds_read_b64_tr_b16 %s, v%d offset:%d' % (vr(b + 32 + 4 * nt + 2 * v2, 2), s.vWr8 + nt, par * 32768 + (32 * ks + 4 * v2) * 256) for nt in range(8) for v2 in range(2)]
        x = ['ds_read_b128 %s, v%d offset:%d' % (vr(b + 4 * mt, 4), vXr1 if ks else vXr0, mt * 2048) for mt in range(8)]
        return w[:2] + x[:1] + w[2:] + x[1:]
    def ph(s, st, reads, dm, tail, extra=(), first=False):
        a = s.a; n = 64
        slots = {}
        def put(k, x): slots.setdefault(min(k, n - 1), []).extend([x] if isinstance(x, str) else x)
        for i, r in enumerate(reads): put(2 * i, r)
        for i, (m, d) in enumerate(dm): put(1 + 6 * i, m); put(3 + 6 * i, d)
        for i, x in enumerate(tail): put(50 + i, x)
        ex = list(extra)
        for i, x in enumerate(ex): put(1 + (i * 60 // max(len(ex), 1)), x)
        b = s.vF2 + 64 * st
        k = 0
        for mt in range(8):
            for nt in range(8):
                d = ar((mt * 8 + nt) * 4, 4)
                a('v_mfma_f32_16x16x32_bf16 %s, %s, %s, %s' % (d, vr(b + 32 + 4 * nt, 4), vr(b + 4 * mt, 4), '0' if first else d))
                for x in slots.get(k, []): a(x)
                k += 1
    def run(s, next_job, more, signal, pre_epi=None, prev_signal=None):
        a = s.a; t = s.tag
        def flat(L):
            for x in L:
                for y in ([x] if isinstance(x, str) else x): a(y)
        a('s_mov_b32 s%d, 65536' % sSt)
        a('s_mov_b32 s%d, %d' % (sRd, (-65536) & 0xffffffff))
        flat(next_job()); flat(s.xadv(True)); flat(s.wadv(True))
        a('s_barrier')
        for k in range(2):
            flat(s.xd()); flat(s.xadv(False)); flat(s.wd(k)); flat(s.wadv(False))
        for i in range(4): a('v_mov_b32 v%d, -1' % (vT + 4 + i))
        a('s_mov_b32 s%d, 0' % sCnt)
        a('s_waitcnt vmcnt(16)')
        a('s_barrier')
        if prev_signal: prev_signal()
        flat(s.rd2(0, 0, 0)[:12]); a('s_waitcnt lgkmcnt(3)'); flat(s.rd2(0, 0, 0)[12:])
        a('s_waitcnt vmcnt(0)')
        s.mark(10)
        flips = ['v_add_u32 v%d, s%d, v%d' % (r, sT3, r) for r in (vXr0, vXr1)]
        kv = ['buffer_store_dwordx4 %s, v%d, s[%d:%d], s%d offen sc1' % (vr(vT + 4, 4), vL16, S_WS, S_WS + 3, sKv), 's_add_u32 s%d, s%d, 0x20000' % (sKv, sKv)]
        def body(par, first=False, sw=False, post=None, extra=(), tailB=(), nA=0):
            a('s_waitcnt lgkmcnt(0)')
            s.ph(0, s.rd2(1, 1, par), s.xd(), s.xadv(sw) + flips, extra, first)
            a('s_waitcnt vmcnt(%d) lgkmcnt(0)' % (8 + nA))
            a('s_barrier')
            if post: post()
            s.ph(1, s.rd2(0, 0, 1 - par), s.wd(par), s.wadv(sw) + list(tailB))
        def post():
            l2 = a.newlabel('Lg2')
            a('s_cmp_eq_u32 s%d, 0' % sCnt)
            a('s_cbranch_scc1 %s' % l2)
            signal()
            a.label(l2)
        a.label('L_g2tile_%s' % t)
        a('s_mov_b32 s%d, s%d' % (sOut, sOutN))
        a('s_mov_b32 s%d, s%d' % (sSigC, sSigN))
        a('s_mov_b32 s%d, s%d' % (sKv, sKvN))
        body(0, first=True, nA=32)
        body(1, post=post, extra=next_job(), tailB=['s_mov_b32 s%d, 0' % sIt])
        a.label('L_g2loop_%s' % t)
        body(0, extra=kv, nA=1)
        body(1, extra=kv, nA=1, tailB=['s_add_u32 s%d, s%d, 1' % (sIt, sIt), ['s_cmp_eq_u32 s%d, 4' % sIt, 's_cselect_b32 s%d, s%d, s%d' % (sKv, sDmp, sKv)], 's_cmp_lt_u32 s%d, 5' % sIt])
        a('s_cbranch_scc1 L_g2loop_%s' % t)
        body(0); body(1, sw=True); body(0); body(1)
        if pre_epi: pre_epi()
        s.cmark(11)
        e0 = s.vF2 + 64
        for mt in range(8):
            for pr in range(4):
                r = e0 + 12 * ((4 * mt + pr) % 5)
                for i in range(8): a('v_accvgpr_read_b32 v%d, a%d' % (r + 4 + i, (mt * 8 + 2 * pr) * 4 + i))
                for i in range(4): a('v_cvt_pk_bf16_f32 v%d, v%d, v%d' % (r + i, r + 4 + 2 * i, r + 5 + 2 * i))
                a('buffer_store_dwordx4 %s, v%d, s[%d:%d], s%d offen offset:%d sc1' % (vr(r, 4), vL16, S_WS, S_WS + 3, sOut, pr * 1024))
            a('s_add_u32 s%d, s%d, 0x20000' % (sOut, sOut))
        s.cmark(12)
        a('s_mov_b32 s%d, 1' % sCnt)
        a('s_mov_b32 s%d, s%d' % (sSigD, sSigC))
        more()
        a('s_cbranch_scc1 L_g2tile_%s' % t)
        if prev_signal: return
        a('s_waitcnt vmcnt(0) lgkmcnt(0)')
        a('s_barrier')
        signal()
    def job(s, sRow, sCol):
        return ['s_lshl_b32 s%d, s%d, 19' % (sNX, sRow),
                's_and_b32 s%d, s%d, 15' % (sT0, sCol),
                's_lshl_b32 s%d, s%d, 9' % (sNW, sT0),
                's_lshr_b32 s%d, s%d, 4' % (sT1, sCol),
                ['s_cmp_eq_u32 s%d, 1' % sT1, 's_cselect_b64 s[%d:%d], s[%d:%d], s[%d:%d]' % (sNP, sNP + 1, S_WV, S_WV + 1, S_WK, S_WK + 1)],
                ['s_cmp_eq_u32 s%d, 2' % sT1, 's_cselect_b64 s[%d:%d], s[%d:%d], s[%d:%d]' % (sNP, sNP + 1, S_WQ, S_WQ + 1, sNP, sNP + 1), 's_cselect_b32 s%d, s%d, s%d' % (sKvN, sDmp, sKvm)],
                's_lshl_b32 s%d, s%d, 24' % (sOutN, sT1),
                's_lshl_b32 s%d, s%d, 11' % (sT1, sT1),
                's_add_u32 s%d, s%d, s%d' % (sKvN, sKvN, sT1),
                's_lshl_b32 s%d, s%d, 1' % (sT0, sT0),
                's_lshr_b32 s%d, s%d, 1' % (sT1, sW),
                's_add_u32 s%d, s%d, s%d' % (sT0, sT0, sT1),
                's_lshl_b32 s%d, s%d, 12' % (sT0, sT0),
                's_add_u32 s%d, s%d, s%d' % (sOutN, sOutN, sT0),
                's_add_u32 s%d, s%d, s%d' % (sKvN, sKvN, sT0),
                's_lshl_b32 s%d, s%d, 20' % (sT0, sRow),
                's_add_u32 s%d, s%d, s%d' % (sKvN, sKvN, sT0),
                's_and_b32 s%d, s%d, 1' % (sT1, sW),
                's_lshl_b32 s%d, s%d, 10' % (sT0, sT1),
                's_add_u32 s%d, s%d, s%d' % (sKvN, sKvN, sT0),
                's_lshl_b32 s%d, s%d, 1' % (sT0, sRow),
                's_add_u32 s%d, s%d, s%d' % (sT0, sT0, sT1),
                's_lshl_b32 s%d, s%d, 20' % (sT0, sT0),
                's_add_u32 s%d, s%d, s%d' % (sOutN, sOutN, sT0)]

class G3(G1):
    NS = 4
    vF3, vSt3, vAc = 32, 96, 128
    XL = 131072 - 32768
    def __init__(s, a, tag):
        G1.__init__(s, a, 4, tag)
        s.NS = 4
    def mark(s, i): pass
    def setup(s):
        a = s.a
        G1.setup(s)
        a('s_and_b32 s%d, s%d, 1' % (sT0, sW))
        a('s_mul_i32 s%d, s%d, %d' % (sT0, sT0, 4 * 2048))
        for r in (vXr0, vXr1): a('v_subrev_u32 v%d, s%d, v%d' % (r, sT0, r))
        a('s_sub_u32 s%d, s%d, %d' % (sWl, sWl, s.XB))
        s.bits(vT, [(2, 3, 0)])
        a('s_lshl_b32 s%d, s%d, 1' % (sT0, sW))
        a('v_xor_b32 v%d, s%d, v%d' % (vT, sT0, vT))
        s.bits(vT + 2, [(4, 2, 11), (2, 2, 8), (0, 2, 3)])
        for nt in range(2):
            a('v_xor_b32 v%d, %d, v%d' % (vT + 3, nt, vT))
            a('v_lshl_add_u32 v%d, v%d, 5, v%d' % (vWr + nt, vT + 3, vT + 2))
            a('v_add_u32 v%d, 0x10000, v%d' % (vWr + 2 + nt, vWr + nt))
        for r in (vXr0, vXr1): a('v_add_u32 v%d, 0x20000, v%d' % (r, r))
        for i in range(4): a('v_mov_b32 v%d, -1' % (vT + 4 + i))
    def xd(s): return [('s_add_u32 m0, s%d, %d' % (sXm, i * 1024), 'buffer_load_dwordx4 v%d, s[%d:%d], s%d offen lds' % (vXs + i, S_X, S_X + 3, sXo)) for i in range(4)]
    @property
    def LA(s): return 6 if s.NS == 8 else s.NS - 1
    def slot(s, k): return 163840 - s.NS * 16384 + ((k + s.NS - 2) % s.NS) * 16384
    def flat(s, L):
        for x in L:
            for y in ([x] if isinstance(x, str) else x): s.a(y)
    def xstage(s, k, sw=False):
        return ['s_add_u32 s%d, s%d, %d' % (sXm, sXl, s.slot(k))], s.xd(), ['s_mov_b32 s%d, s%d' % (sXo, sNX) if sw else 's_add_u32 s%d, s%d, 128' % (sXo, sXo)]
    def loadw(s, after_issue=None, after_first=None, late=None):
        a = s.a
        def dma(q):
            for i in range(16):
                a('s_add_u32 m0, s%d, %d' % (sWl, (q % 2) * 65536 + i * 4096))
                a('buffer_load_dwordx4 v%d, s[%d:%d], s%d offen lds' % (vWs + i % 4, S_WC, S_WC + 3, sWo))
                if i % 4 == 3: a('s_add_u32 s%d, s%d, 0x80000' % (sWo, sWo))
        a('s_barrier')
        dma(0); s.mid_issue(); dma(1)
        nx = after_issue() if after_issue else 0
        for q in range(4):
            a('s_waitcnt vmcnt(%d)' % (16 + nx if q == 0 else 24 if q == 1 else 24 + nl if q == 2 else nl))
            if q == 0 and after_first: after_first()
            a('s_barrier')
            for k in range(8):
                for nt in range(2):
                    for v2 in range(2):
                        a('ds_read_b64_tr_b16 %s, v%d offset:%d' % (ar(((q * 8 + k) * 2 + nt) * 4 + 2 * v2, 2), vWr + 2 * (q % 2) + nt, (32 * k + 4 * v2) * 256))
                a('s_waitcnt lgkmcnt(8)')
            a('s_waitcnt lgkmcnt(0)')
            a('s_barrier')
            if q < 2: dma(q + 2)
            if q == 1: nl = late() if late else 0
            if q == 0:
                for k in range(2):
                    for p in s.xstage(k): s.flat(p)
        for k in range(2, s.LA):
            for p in s.xstage(k): s.flat(p)
    def rdx(s, st, ks): return ['ds_read_b128 %s, v%d offset:%d' % (vr(s.vF3 + 32 * st + 4 * mt, 4), vXr1 if ks else vXr0, mt * 2048) for mt in range(8)]
    def tiles(s, next_tile, more, signal, first_now, pre_sig=None):
        a = s.a; t = s.tag
        def ph(st, kk, fill, first):
            slots = {}
            for i, x in enumerate(fill): slots.setdefault(i * 15 // max(len(fill), 15), []).extend([x] if isinstance(x, str) else x)
            k = 0
            for mt in range(8):
                for nt in range(2):
                    d = vr(s.vAc + (mt * 2 + nt) * 4, 4)
                    a('v_mfma_f32_16x16x32_bf16 %s, %s, %s, %s' % (d, ar((kk * 2 + nt) * 4, 4), vr(s.vF3 + 32 * st + 4 * mt, 4), '0' if first else d))
                    for x in slots.get(k, []): a(x)
                    k += 1
        def mix(*Ls):
            out = []
            for i in range(max(len(L) for L in Ls)):
                for L in Ls:
                    if i < len(L): out.append(L[i])
            return out
        st1 = lambda mt: ['buffer_store_dwordx4 %s, v%d, s[%d:%d], s%d offen sc1' % (vr(s.vSt3 + 4 * mt, 4), vL16, S_WS, S_WS + 3, sOutP), 's_add_u32 s%d, s%d, 0x20000' % (sOutP, sOutP)]
        kv = ['buffer_store_dwordx4 %s, v%d, s[%d:%d], s%d offen sc1' % (vr(vT + 4, 4), vL16, S_WS, S_WS + 3, sKv), 's_add_u32 s%d, s%d, 0x40000' % (sKv, sKv)]
        cv = lambda k: ['v_cvt_pk_bf16_f32 v%d, v%d, v%d' % (s.vSt3 + 2 * k + i, s.vAc + 4 * k + 2 * i, s.vAc + 4 * k + 2 * i + 1) for i in range(2)]
        s.flat(s.rdx(0, 0))
        a('s_mov_b32 s%d, 0x%x' % (sOutP, WS_DUMP))
        a('s_mov_b32 s%d, 0x%x' % (sSigD, WS_DUMP))
        a.label('L_g3_%s' % t)
        a('s_mov_b32 s%d, s%d' % (sOut, sOutN))
        a('s_mov_b32 s%d, s%d' % (sSigC, sSigN))
        a('s_mov_b32 s%d, s%d' % (sKv, sKvN))
        LA = s.LA
        B2 = s.NS == 8
        def log(i):
            ex = ['e'] if 0 <= i < 10 else []
            return ([('x', i + LA)] * 2 + ex, [('x', i + LA)] * 2) if B2 else ([('x', i + LA)] * 4 + ex, [])
        for i in range(16):
            pre, dm, adv = s.xstage(i + LA, sw=(i == 15 - LA))
            dml = [x for p in dm for x in p]
            d = (s.slot(i + 1) - s.slot(i)) & 0xffffffff
            ex = st1(i) if i < 8 else kv if i < 10 else []
            fl = ['v_add_u32 v%d, 0x%x, v%d' % (r, d, r) for r in (vXr0, vXr1)]
            a('s_waitcnt lgkmcnt(0)')
            if B2: ph(0, 2 * i, mix(s.rdx(1, 1), pre + dml[:2] + [[]] * 2 + dml[2:4]) + ex + fl, i == 0)
            else: ph(0, 2 * i, mix(s.rdx(1, 1), pre + dml) + adv + ex + fl, i == 0)
            if B2 and i % 2 == 0: a('s_waitcnt lgkmcnt(0)')
            else:
                seq = sum((log(j)[0] + log(j)[1] for j in range(i - 8, i)), []) + log(i)[0]
                need = ('x', i + 2 if B2 else i + 1)
                a('s_waitcnt vmcnt(%d) lgkmcnt(0)' % (len(seq) - 1 - max(k for k, t_ in enumerate(seq) if t_ == need)))
                a('s_barrier')
            if i == (13 if B2 else 7 + LA): signal()
            fill = s.rdx(0, 0)
            if i == 15: fill = fill[:4] + [[fill[4 + k]] + cv(k) if k < 4 else cv(k) for k in range(11)]
            if B2:
                fill = [[x] if isinstance(x, str) else list(x) for x in fill] + [[] for _ in range(15 - len(fill))]
                for k, g in zip((2, 3, 8, 9, 11), dml[4:] + adv): fill[k].append(g)
            if i == 1: fill = mix(fill, next_tile())
            ph(1, 2 * i + 1, fill, False)
        for k in range(11, 16): s.flat(cv(k))
        a('s_mov_b32 s%d, s%d' % (sSigD, sSigC))
        a('s_mov_b32 s%d, s%d' % (sOutP, sOut))
        l1 = a.newlabel('Lg3')
        more()
        a('s_cbranch_scc0 L_g3e_%s' % t)
        first_now()
        a('s_cbranch_scc0 L_g3_%s' % t)
        if pre_sig: pre_sig[0]()
        for mt in range(8): s.flat(st1(mt))
        a('s_waitcnt vmcnt(0)')
        a('s_barrier')
        if pre_sig: pre_sig[1]()
        signal()
        a('s_barrier')
        if pre_sig: pre_sig[2]()
        a('s_mov_b32 s%d, 0x%x' % (sOutP, WS_DUMP))
        a('s_mov_b32 s%d, 0x%x' % (sSigD, WS_DUMP))
        a('s_branch L_g3_%s' % t)
        a.label('L_g3e_%s' % t)
        a('s_waitcnt vmcnt(0) lgkmcnt(0)')
    def flush(s):
        for mt in range(8):
            s.a('buffer_store_dwordx4 %s, v%d, s[%d:%d], s%d offen sc1' % (vr(s.vSt3 + 4 * mt, 4), vL16, S_WS, S_WS + 3, sOutP))
            s.a('s_add_u32 s%d, s%d, 0x20000' % (sOutP, sOutP))
```

```python
import sys, json
from ag import *
from common import *
import gen_chain12 as gc
import gen_g1 as g1
import gen_ao as ao

NAME = 'concat_heads__ssm_conv_h3__memory_aug_recurrent_mem_tr__prompt'
LDS = 163840
WS_KVC = WS_CTR + 262144
sKVC = 85

sWave, sClaim = 100, 101
vClaim = 15
L_FLAG = 163840 - 16

def claim(a, st0, st1):
    a('s_lshr_b32 s%d, s2, 3' % st0)
    a('s_lshl_b32 s%d, 1, s%d' % (st0, st0))
    a('s_and_b32 s%d, s2, 7' % st1)
    a('s_lshl_b32 s%d, s%d, 2' % (st1, st1))
    a('v_mov_b32 v%d, s%d' % (vClaim, st0))
    a('s_mov_b64 exec, 1')
    a('buffer_atomic_or v%d, off, s[28:31], s%d offset:192 sc0 sc1' % (vClaim, st1))
    a('s_mov_b64 exec, -1')

def first_claim(a, st0, st1):
    lc = a.newlabel('Lcl')
    a('s_or_b32 s3, s%d, s%d' % (sWave, sClaim))
    a('s_cbranch_scc1 %s' % lc)
    claim(a, st0, st1)
    a.label(lc)

def verify_role(a, st0, st1, vt):
    l0, l1, l2, ok = [a.newlabel('Lvr') for _ in range(4)]
    a('s_cmp_lg_u32 s%d, 0' % sClaim)
    a('s_cbranch_scc1 %s' % ok)
    a('v_mov_b32 v%d, %d' % (vt, L_FLAG))
    a('s_cmp_eq_u32 s%d, 0' % sWave)
    a('s_cbranch_scc0 %s' % l2)
    a('s_mov_b32 s3, s2')
    a('s_mov_b32 vcc_hi, 600')
    a.label(l0)
    a('v_readfirstlane_b32 s%d, v%d' % (st1, vClaim))
    a('s_lshr_b32 s%d, s2, 3' % st0)
    a('s_bitcmp1_b32 s%d, s%d' % (st1, st0))
    a('s_cbranch_scc0 %s' % l1)
    a('s_cmp_eq_u32 s%d, -1' % st1)
    a('s_cselect_b32 s%d, 1, 8' % st0)
    a('s_add_u32 s2, s2, s%d' % st0)
    a('s_and_b32 s2, s2, 255')
    claim(a, st0, st1)
    a('s_waitcnt vmcnt(0)')
    a('s_sub_u32 vcc_hi, vcc_hi, 1')
    a('s_cbranch_scc0 %s' % l0)
    a('s_mov_b32 s2, 256')
    a.label(l1)
    a('v_mov_b32 v%d, s2' % (vt + 1))
    a('s_mov_b32 s2, s3')
    a('ds_write_b32 v%d, v%d' % (vt, vt + 1))
    a('s_waitcnt lgkmcnt(0)')
    a.label(l2)
    a('s_barrier')
    a('ds_read_b32 v%d, v%d' % (vt + 1, vt))
    a('s_mov_b32 s%d, 1' % sClaim)
    a('s_waitcnt lgkmcnt(0)')
    a('v_readfirstlane_b32 s%d, v%d' % (st0, vt + 1))
    a('s_cmp_eq_u32 s%d, s2' % st0)
    a('s_cbranch_scc1 %s' % ok)
    a('s_cmp_ge_u32 s%d, 256' % st0)
    a('s_cbranch_scc1 L_exit')
    a('s_and_b32 s2, s%d, 255' % st0)
    a('s_waitcnt vmcnt(0)')
    a('s_barrier')
    a('s_branch L_restart')
    a.label(ok)

class Chain(gc.Chain):
    def claim(s): first_claim(s.a, gc.sT0, gc.sT1)
    def get_wave(s): s.a('s_mov_b32 s%d, s%d' % (gc.sW, sWave))
    def verify(s):
        a = s.a
        verify_role(a, gc.sT0, gc.sT1, gc.vT)
        a('s_lshl_b32 s%d, s%d, 10' % (sKVC, gc.sG))
        a('s_add_u32 s%d, s%d, 0x%x' % (sKVC, sKVC, WS_KVC))
        a('s_or_b32 s%d, s%d, s%d' % (gc.sT2, gc.sJ, gc.sW))
        a('s_cselect_b32 s%d, 0x%x, s%d' % (gc.sT0, WS_DUMP, sKVC))
        a('v_mov_b32 v%d, 0' % (gc.vT + 1))
        a('buffer_store_dword v%d, v%d, s[4:7], s%d offen sc1' % (gc.vT + 1, gc.vL16, gc.sT0))
    def counted(s):
        a = s.a
        l = a.newlabel('Lct')
        a('s_or_b32 s%d, s%d, s%d' % (gc.sT0, gc.sJ, gc.sW))
        a('s_cbranch_scc1 %s' % l)
        a('v_mov_b32 v%d, 1' % (gc.vT + 5))
        a('s_mov_b64 exec, 1')
        a('buffer_atomic_add v%d, off, s[28:31], 0 offset:128 sc1' % (gc.vT + 5))
        a('s_mov_b64 exec, -1')
        a.label(l)
    def poll_ctr(s, soff):
        a = s.a
        l, ok = a.newlabel('Lkv'), a.newlabel('Lkv')
        a.label(l)
        a('buffer_load_dword v%d, off, s[4:7], s%d sc1' % (gc.vT, soff))
        a('s_waitcnt vmcnt(0)')
        a('v_readfirstlane_b32 s%d, v%d' % (gc.sT1, gc.vT))
        a('s_cmp_eq_u32 s%d, 8' % gc.sT1)
        a('s_cbranch_scc1 %s' % ok)
        a('s_sleep 4')
        s.tmo(l)
        a.label(ok)
    def kv_wait_init(s):
        a = s.a
        s.mark(3)
        l, ok = a.newlabel('Lkv'), a.newlabel('Lkv')
        a.label(l)
        a('buffer_load_dword v%d, off, s[28:31], 0 offset:128 sc1' % gc.vT)
        a('s_waitcnt vmcnt(0)')
        a('v_readfirstlane_b32 s%d, v%d' % (gc.sT1, gc.vT))
        a('s_cmp_eq_u32 s%d, 16' % gc.sT1)
        a('s_cbranch_scc1 %s' % ok)
        a('s_sleep 4')
        s.tmo(l)
        a.label(ok)
        s.poll_ctr(sKVC)
        s.mark(4)
    def kv_probe(s):
        a = s.a
        a('s_add_u32 s%d, s%d, 2' % (gc.sE, gc.sStep))
        a('s_and_b32 s%d, s%d, 124' % (gc.sE, gc.sE))
        a('s_cmp_lt_u32 s%d, 64\ns_cselect_b32 s%d, s%d, 2' % (gc.sE, gc.sE, gc.sE))
        a('s_lshl4_add_u32 s%d, s%d, s%d' % (gc.sE, gc.sE, sKVC))
        a('buffer_load_dword v%d, off, s[4:7], s%d sc1' % (gc.vT + 1, gc.sE))
    def pre_loop(s):
        a = s.a
        a('s_load_dwordx2 s[8:9], s[0:1], %d' % KA['A_q'])
        a('s_load_dwordx2 s[12:13], s[0:1], %d' % KA['A_ssmk'])
        a('s_load_dwordx2 s[16:17], s[0:1], %d' % KA['A_ssmD'])
        a('s_mov_b32 s10, 0x%x' % (4 * MB)); a('s_mov_b32 s14, 0x%x' % (4 * MB))
        a('s_lshl_b32 s20, s%d, 5' % gc.sX)
        a('s_add_u32 s20, s20, s%d' % gc.sC)
        a('s_lshl_b32 s21, s20, 4')
        a('s_waitcnt lgkmcnt(0)')
        a('s_load_dwordx4 s[68:71], s[16:17], s21')
        a('s_waitcnt lgkmcnt(0)')
    def kv_check(s, tag):
        a = s.a
        a('s_waitcnt vmcnt(%d)' % s.nlate)
        a('v_cmp_ne_u32 vcc, 8, v%d' % (gc.vT + 1))
        a('s_cbranch_vccnz L_kvs_%s' % tag)
        a.label('L_kvo_%s' % tag)
    def kv_slow(s, tag):
        s.a.label('L_kvs_%s' % tag)
        s.poll_ctr(gc.sE)
        s.a('s_branch L_kvo_%s' % tag)

def mark(a, i, opt, v=30):
    if not opt.get('marks'): return
    a('s_memrealtime vcc')
    a('s_waitcnt lgkmcnt(0)')
    a('v_mov_b32 v%d, vcc_lo' % v)
    a('s_lshl_b32 vcc_lo, s2, 6')
    a('s_add_u32 vcc_lo, vcc_lo, 0x%x' % (WS_PROF + 8 * MB))
    a('buffer_store_dword v%d, off, s[4:7], vcc_lo offset:%d' % (v, 4 * i))
    if i < 6:
        a('s_memtime vcc')
        a('s_waitcnt lgkmcnt(0)')
        a('v_mov_b32 v%d, vcc_lo' % v)
        a('s_lshl_b32 vcc_lo, s2, 6')
        a('s_add_u32 vcc_lo, vcc_lo, 0x%x' % (WS_PROF + 9 * MB))
        a('buffer_store_dword v%d, off, s[4:7], vcc_lo offset:%d' % (v, 4 * i))

def build(opt):
    a = Asm()
    ptrs = [(4, 'ws', WS_BYTES), (8, 'Wq', 8 * MB), (12, 'Wk', 8 * MB), (16, 'Wv', 8 * MB), (20, 'Wo', 8 * MB), (24, 'B_mem0', 16384), (28, 'dbg', 256)]
    side = [(g1.S_X, 'B_x', 4 * MB), (g1.S_WC, 'Wk', 8 * MB), (ao.S_OUT, 'out', 8 * MB), (ao.S_AQ, 'A_q', 4 * MB), (ao.S_AK, 'A_k', 4 * MB), (ao.S_AV, 'A_v', 4 * MB), (ao.S_AH, 'A_ssmk', 4 * MB)]
    a('s_cmp_ge_u32 s2, 256')
    a('s_cbranch_scc1 L_exit')
    a('v_lshrrev_b32 v1, 6, v0')
    a('v_readfirstlane_b32 s%d, v1' % 100)
    a('v_and_b32 v0, 63, v0')
    a('s_mov_b32 s%d, 0' % 101)
    a('s_getreg_b32 s3, hwreg(HW_REG_XCC_ID)')
    a('s_and_b32 s3, s3, %d' % opt.get('fakex', 7))
    if opt.get('fakeo'): a('s_or_b32 s3, s3, %d' % opt['fakeo'])
    a('s_and_b32 s2, s2, 248')
    a('s_or_b32 s2, s2, s3')
    a.label('L_restart')
    for r, k, n in ptrs + side: a('s_load_dwordx2 s[%d:%d], s[0:1], %d' % (r, r + 1, KA[k]))
    for r, k, n in ptrs + side:
        a('s_mov_b32 s%d, 0x%x' % (r + 2, n)); a('s_mov_b32 s%d, 0x20000' % (r + 3))
    a('s_waitcnt lgkmcnt(0)')
    if opt.get('touchc', True):
        lt = a.newlabel('Ltc')
        a('s_cmp_eq_u32 s%d, 3' % sWave)
        a('s_cbranch_scc0 %s' % lt)
        a('s_getpc_b64 s[40:41]')
        a.label('L_pc')
        a('s_lshr_b32 s42, s2, 3')
        a('s_lshl_b32 s42, s42, 12')
        a('v_lshlrev_b32 v1, 6, v0')
        a('v_add_u32 v1, s42, v1')
        a('v_min_u32 v1, L_code_end-L_pc-4, v1')
        a('global_load_dword v%d, v1, s[40:41]' % vClaim)
        a.label(lt)
    mark(a, 0, opt)
    if opt.get('empty'): a('s_endpgm')
    NX = opt.get('NX', 4)
    a('s_and_b32 s3, s2, 7')
    if NX == 4: a('s_cmp_ge_u32 s3, 4')
    else: a('s_cmp_ge_u32 s2, 128')
    a('s_cbranch_scc1 L_side')
    copt = dict(b3pos=21, b4=1, hpre=8, npre=34, warm=2, endwait=False, dn=False, queue=1, tot=False, NX=NX)
    copt.update(opt.get('chain', {}))
    ch = Chain(a, opt=copt)
    ch.mark = lambda i: mark(a, i, opt, 255)
    if opt.get('only'): a('s_endpgm')
    ch.emit()
    mark(a, 2, opt)
    if True:
        a('s_mov_b32 s%d, s%d' % (g1.sW, sWave))
        c2 = ao.Conv2(a); c2.mark = lambda i: mark(a, i + 2, opt)
        c2.S_AQ = 8; c2.S_AH = 12; c2.sDv = 68
        c2.core(lambda: None, 0, 20)
        def wait_p1():
            l, ok = a.newlabel('Lwp'), a.newlabel('Lwp')
            a.label(l)
            a('buffer_load_dword v20, off, s[4:7], s47 sc1')
            a('s_waitcnt vmcnt(0)')
            a('v_readfirstlane_b32 s%d, v20' % g1.sT0)
            a('s_cmp_eq_u32 s%d, 8' % g1.sT0)
            a('s_cbranch_scc1 %s' % ok)
            a('s_sleep 8')
            a('s_sub_u32 s%d, s%d, 1' % (ao.sTmo, ao.sTmo))
            a('s_cbranch_scc0 %s' % l)
            a('s_endpgm')
            a.label(ok)
        mark(a, 9, opt)
        if opt.get('marks'): a('s_waitcnt vmcnt(0)')
        mark(a, 11, opt)
    a('s_endpgm')
    a.label('L_side')
    sW, sT0, sT1 = g1.sW, g1.sT0, g1.sT1
    sTeam, sMem, sTmo = ao.sTeam, ao.sMem, ao.sTmo
    if NX == 4:
        a('s_sub_u32 s%d, s3, 4' % sTeam)
        a('s_lshr_b32 s%d, s2, 3' % sMem)
    else:
        a('s_lshr_b32 s%d, s3, 1' % sTeam)
        a('s_bfe_u32 s%d, s2, 0x40003' % sMem)
        a('s_and_b32 s3, s3, 1')
        a('s_lshl_b32 s3, s3, 4')
        a('s_add_u32 s%d, s%d, s3' % (sMem, sMem))
    a('s_mov_b32 s%d, 400000' % sTmo)
    a('s_mov_b32 s%d, s%d' % (sW, sWave))
    def one_lane_add(val, soff, off, srd=28):
        l = a.newlabel('Lone')
        a('s_cmp_eq_u32 s%d, 0' % sW)
        a('s_cbranch_scc0 %s' % l)
        a('v_mov_b32 v20, %s' % val)
        a('s_mov_b64 exec, 1')
        a('buffer_atomic_add v20, off, s[%d:%d], %s offset:%d sc1' % (srd, srd + 3, soff, off))
        a('s_mov_b64 exec, -1')
        a.label(l)
    sCol = 62
    sGrp = 63
    a('s_lshr_b32 s%d, s%d, 1' % (sCol, sMem))
    a('s_lshl_b32 s%d, s%d, 4' % (sT0, sTeam))
    a('s_add_u32 s%d, s%d, s%d' % (sCol, sCol, sT0))
    a('s_bfe_u32 s%d, s%d, 0x40001' % (sGrp, sCol))
    a('s_lshl_b32 s%d, s%d, 10' % (sGrp, sGrp))
    a('s_add_u32 s%d, s%d, 0x%x' % (sGrp, sGrp, WS_KVC))
    def wait_dbg(off, target, w0only):
        l, ok = a.newlabel('Lwg'), a.newlabel('Lwg')
        if w0only:
            a('s_cmp_eq_u32 s%d, 0' % sW)
            a('s_cbranch_scc0 %s' % ok)
        a.label(l)
        a('buffer_load_dword v20, off, s[28:31], 0 offset:%d sc1' % off)
        a('s_waitcnt vmcnt(0)')
        a('v_readfirstlane_b32 s%d, v20' % sT0)
        a('s_cmp_eq_u32 s%d, %d' % (sT0, target))
        a('s_cbranch_scc1 %s' % ok)
        a('s_sleep 16')
        a('s_sub_u32 s%d, s%d, 1' % (sTmo, sTmo))
        a('s_cbranch_scc0 %s' % l)
        a('s_branch L_side_fail')
        a.label(ok)
    sJob = g1.sJob
    g3 = g1.G3(a, 'a')
    g3.NS = opt.get('ns3', 4)
    g3.setup()
    sPh, sRow, sStep_, sBaseO, sBaseK, sLeft = 56, 57, 58, 60, 61, sJob
    def describe():
        return ['s_lshl_b32 s%d, s%d, 18' % (g1.sNX, sRow), 's_lshl_b32 s%d, s%d, 20' % (g1.sOutN, sRow), 's_add_u32 s%d, s%d, s%d' % (g1.sOutN, g1.sOutN, sBaseO),
                's_lshl_b32 s%d, s%d, 19' % (g1.sKvN, sRow), 's_add_u32 s%d, s%d, s%d' % (g1.sKvN, g1.sKvN, sBaseK),
                's_lshl_b32 s%d, s%d, 6' % (g1.sSigN, sRow), 's_add_u32 s%d, s%d, s%d' % (g1.sSigN, g1.sSigN, sGrp), 's_add_u32 s%d, s%d, s%d' % (sRow, sRow, sStep_)]
    def bases():
        a('s_and_b32 s%d, s%d, 31' % (sT0, sCol))
        a('s_lshl_b32 s%d, s%d, 8' % (g1.sWo, sT0))
        a('s_lshl_b32 s%d, s%d, 12' % (sT0, sT0))
        a('s_lshr_b32 s%d, s%d, 5' % (sT1, sCol))
        a('s_lshl_b32 s%d, s%d, 24' % (sBaseO, sT1))
        a('s_add_u32 s%d, s%d, s%d' % (sBaseO, sBaseO, sT0))
        a('s_lshl_b32 s%d, s%d, 11' % (sT1, sT1))
        a('s_add_u32 s%d, s%d, s%d' % (sBaseK, sT0, sT1))
        a('s_lshl_b32 s%d, s%d, 10' % (sT0, sW))
        a('s_add_u32 s%d, s%d, s%d' % (sBaseO, sBaseO, sT0))
        a('s_and_b32 s%d, s%d, 1024' % (sT0, sT0))
        a('s_add_u32 s%d, s%d, s%d' % (sBaseK, sBaseK, sT0))
        a('s_lshr_b32 s%d, s%d, 1' % (sT0, sW))
        a('s_lshl_b32 s%d, s%d, 17' % (sT0, sT0))
        a('s_add_u32 s%d, s%d, s%d' % (sBaseK, sBaseK, sT0))
    a('s_cmp_ge_u32 s%d, 32' % sCol)
    a('s_cselect_b64 s[36:37], s[16:17], s[12:13]')
    bases()
    a('s_add_u32 s%d, s%d, 0x%x' % (sBaseK, sBaseK, WS_KVM))
    a('s_and_b32 s%d, s%d, 1' % (sRow, sMem))
    a('s_mov_b32 s%d, 2' % sStep_)
    a('s_mov_b32 s%d, 0' % sPh)
    a('s_mov_b32 s%d, 0x%x' % (g1.sSigD, WS_DUMP))
    a.label('L_phase')
    for x in describe(): a(x)
    a('s_mov_b32 s%d, s%d' % (g1.sXo, g1.sNX))
    sig = lambda: one_lane_add(2, 's%d' % g1.sSigD, 0, 4)
    def zero_ctr():
        a('v_mov_b32 v28, 0')
        a('s_and_b32 s%d, s%d, 15' % (sT0, sMem))
        a('s_lshl_b32 s%d, s%d, 2' % (sT0, sT0))
        a('s_add_u32 s%d, s%d, s%d' % (sT0, sT0, sTeam))
        a('s_lshl_b32 s%d, s%d, 11' % (sT0, sT0))
        a('s_add_u32 s%d, s%d, 0x%x' % (sT0, sT0, WS_CTR))
        a('v_lshlrev_b32 v29, 5, v0')
        a('buffer_store_dword v28, v29, s[4:7], s%d offen sc1' % sT0)
        a('s_lshl2_add_u32 s%d, s%d, s%d' % (sT0, sMem, sW))
        a('s_lshl_b32 s%d, s%d, 12' % (sT0, sT0))
        a('s_lshl_b32 s%d, s%d, 22' % (sT1, sPh))
        a('s_add_u32 s%d, s%d, s%d' % (sT0, sT0, sT1))
        a('v_lshlrev_b32 v29, 6, v0')
        a('buffer_load_dword v23, v29, s[32:35], s%d offen' % sT0)
        return 2
    def touch_x():
        if not opt.get('touchx', True): return 0
        a('s_lshl_b32 s%d, s%d, 5' % (sT0, sTeam))
        a('s_add_u32 s%d, s%d, s%d' % (sT0, sT0, sMem))
        a('s_lshl2_add_u32 s%d, s%d, s%d' % (sT0, sT0, sW))
        a('s_lshl_b32 s%d, s%d, 13' % (sT0, sT0))
        a('s_lshl_b32 s%d, s%d, 22' % (sT1, sPh))
        a('s_add_u32 s%d, s%d, s%d' % (sT0, sT0, sT1))
        a('v_lshlrev_b32 v29, 7, v0')
        a('buffer_load_dword v22, v29, s[32:35], s%d offen' % sT0)
        return 1
    g3.mid_issue = lambda: first_claim(a, sT0, sT1)
    g3.loadw(zero_ctr, lambda: verify_role(a, sT0, sT1, 28), None)
    sig()
    def pmark(i, ph):
        if not opt.get('marks'): return
        l = a.newlabel('Lmk')
        a('s_cmp_eq_u32 s%d, %d' % (sPh, ph))
        a('s_cbranch_scc0 %s' % l)
        mark(a, i, opt)
        a.label(l)
    pmark(14, 0); pmark(10, 1)
    def chk0():
        ok = a.newlabel('Ls0')
        a('v_readfirstlane_b32 s%d, v21' % sT0)
        a('s_cmp_eq_u32 s%d, 16' % sT0)
        a('s_cbranch_scc1 %s' % ok)
        wait_dbg(128, 16, True)
        a.label(ok)
        mark(a, 15, opt)
    g3.tiles(describe, lambda: a('s_cmp_lt_u32 s%d, 0x%x' % (g1.sNX, 4 * MB)), sig, lambda: a('s_cmp_lt_u32 s%d, 6' % sRow),
             (lambda: (mark(a, 13, opt), a('buffer_load_dword v21, off, s[28:31], 0 offset:128 sc1')), chk0, touch_x))
    a('s_cmp_eq_u32 s%d, 1' % sPh)
    a('s_cbranch_scc1 L_phase_end')
    mark(a, 1, opt)
    g3.flush()
    a('s_mov_b64 s[36:37], s[8:9]')
    a('s_lshr_b32 s%d, s%d, 2' % (sCol, sMem))
    a('s_lshl3_add_u32 s%d, s%d, s%d' % (sCol, sTeam, sCol))
    a('s_add_u32 s%d, s%d, 64' % (sCol, sCol))
    bases()
    a('s_mov_b32 s%d, 0x%x' % (sBaseK, WS_DUMP))
    a('s_mov_b32 s%d, 0x%x' % (sGrp, WS_DUMP))
    a('s_and_b32 s%d, s%d, 3' % (sRow, sMem))
    a('s_mov_b32 s%d, 4' % sStep_)
    a('s_mov_b32 s%d, 1' % sPh)
    a('s_branch L_phase')
    a.label('L_phase_end')
    g3.flush()
    cvp = ao.Conv2(a)
    a('s_load_dwordx2 s[24:25], s[0:1], %d' % KA['A_shift'])
    a('s_mov_b32 s26, 8192')
    a('s_waitcnt lgkmcnt(0)')
    cvp.p1_load(24)
    mark(a, 2, opt)
    A = ao.AO(a)
    a('s_lshl_b32 s52, s%d, 5' % sTeam)
    a('s_add_u32 s52, s52, s%d' % sMem)
    a('s_lshr_b32 s%d, s%d, 3' % (sT0, sMem))
    a('s_and_b32 s%d, s%d, 7' % (sMem, sMem))
    a('s_lshl3_add_u32 s%d, s%d, s%d' % (sMem, sTeam, sMem))
    a('s_mov_b32 s%d, s%d' % (sTeam, sT0))
    A.ids()
    a('s_lshr_b32 s47, s52, 3')
    a('s_lshl_b32 s47, s47, 10')
    a('s_add_u32 s47, s47, 0x%x' % (WS_KVC + 32))
    def done():
        one_lane_add(1, '0', 64)
        one_lane_add(1, 's47', 0, 4)
    A.load_wo(lambda: (a('s_waitcnt vmcnt(32)'), cvp.p1_compute(), mark(a, 6, opt)), done, lambda: cvp.hload(1, 52))
    mark(a, 7, opt)
    cvp.mark = lambda i: mark(a, {6: 8, 8: 9}[i], opt)
    cvp.core(wait_p1, 1, 52, True)
    mark(a, 3, opt)
    def wait_g1():
        wait_dbg(64, 128, True)
        mark(a, 4, opt)
    def amark(i):
        if not opt.get('marks'): return
        l = a.newlabel('Lmk')
        a('s_cmp_eq_u32 s52, %d' % (opt.get('aopass', 15) + (1 if i == 9 else 0)))
        a('s_cbranch_scc0 %s' % l)
        mark(a, i, opt)
        a.label(l)
    A.mark = amark
    A.MID = opt.get('mid2', 16); A.NL0 = opt.get('nl0', 38)
    A.DENS = opt.get('dens', 3); A.RB = opt.get('rb', False)
    A.run(wait_g1)
    if opt.get('marks'): a('s_waitcnt vmcnt(0)')
    mark(a, 5, opt)
    a.label('L_side_fail')
    a.label('L_exit')
    a('s_endpgm')
    a.label('L_code_end')
    head = open('cdna_kernels/%s.s.ref' % NAME).read().split('; Override launch')[0]
    txt = head + '; @launch grid=(256,1,1) block=(256,1,1) lds=%d\n.amdgcn_target "amdgcn-amd-amdhsa--gfx950"\n.text\n' % LDS
    txt += kernel_head(NAME + '_kernel') + a.finalize()
    txt += '.section .rodata,"a"\n.p2align 6\n' + kernel_desc(NAME + '_kernel')
    return txt

if __name__ == '__main__':
    for spec in sys.argv[1:]:
        name, _, o = spec.partition('=')
        open(name, 'w').write(build(json.loads(o) if o else {}))
```

```python
import math, struct
from ag import *
from common import *
from gen_g1 import S_WS, S_WO, S_DBG, sW, sT0, sT1, sT2, sT3
def f2u(x): return struct.unpack('<I', struct.pack('<f', x))[0]

S_OUT = 80; S_AQ = 84; S_AK = 88; S_AV = 92; S_AH = 96
sTeam, sMem = 53, 54
sTmo = 55

def bits(a, dst, terms, init=None, tmp=31):
    first = init is None
    if not first: a('v_mov_b32 v%d, %s' % (dst, init))
    for (src, n, sh) in terms:
        a('v_bfe_u32 v%d, v0, %d, %d' % (tmp, src, n))
        if first: a('v_lshlrev_b32 v%d, %d, v%d' % (dst, sh, tmp)); first = False
        else: a('v_lshl_add_u32 v%d, v%d, %d, v%d' % (dst, tmp, sh, dst))

class AO:
    def mark(s, i): pass
    sA, sPf, sBuf, sScale, sKm, sOst, sOld, sI, sO = 45, 46, 47, 48, 49, 50, 51, 52, 56
    sF = 57
    sMask = 58
    sHi = 74
    sCO, sCP, sKq, sCb = 76, 77, 78, 79
    sS, sPst, sPld, sDo = 32, 33, 34, 35
    sDn, sPo, sFo, bKm = 36, 37, 38, 39
    bOst, bOld, bCO, bCP = 84, 85, 86, 87
    sSch, sNit = 88, 92
    @staticmethod
    def sched(N): return [sum(1 << i for i in L) for L in (list(range(N - 1)), list(range(1, N)), list(range(3, N + 2)), list(range(2, N + 1)))]
    vL16, vQr, vKr, vVr, vMr, vIdx, vNeg, vOr, vOst, vKmw = range(1, 11)
    vT = 12
    vP = 24
    vQ = 32; vK = 48; vKm = 80; vS = 88; vA = 100; vD = 124
    vF = 140
    vB = 156
    L_KM = 24576
    L_O = 32768
    BUF1 = 98304
    DENS = 3
    MID = 16
    OS = True
    NL0 = 38
    RB = True
    def __init__(s, a): s.a = a
    def prefetch_list(s):
        o = [['s_lshl_b32 s%d, s%d, 18' % (sT0, s.sPf), 's_lshl_b32 s%d, s%d, 12' % (sT1, sMem), 's_add_u32 s%d, s%d, s%d' % (sT0, sT0, sT1),
              's_lshl_b32 s%d, s%d, 10' % (sT1, sW), 's_add_u32 s%d, s%d, s%d' % (sT0, sT0, sT1), 's_add_u32 s%d, s%d, s%d' % (sT1, sT1, s.sBuf)]]
        for mi, base in enumerate((WS_QF, WS_KF, WS_VF)):
            for tau in range(2):
                o.append(['s_add_u32 m0, s%d, %d' % (sT1, mi * 8192 + tau * 4096), 's_add_u32 s%d, s%d, 0x%x' % (sT2, sT0, base + tau * 131072),
                          'buffer_load_dwordx4 v%d, s[%d:%d], s%d offen sc1 lds' % (s.vL16, S_WS, S_WS + 3, sT2)])
        return o
    def odma_list(s):
        o = []
        for i in range(16):
            g = []
            if i % 4 == 0:
                g += ['s_add_u32 m0, s%d, %d' % (sT3, i * 1024), 's_add_u32 s%d, s%d, %d' % (sT2, s.sOld, i * 1024)]
            g.append('buffer_load_dwordx4 v%d, s[%d:%d], s%d offen offset:%d sc1 lds' % (s.vL16, S_WS, S_WS + 3, sT2, (i % 4) * 1024))
            o.append(g)
        o[0] = ['s_and_b32 s%d, s%d, 1' % (sT3, sW), 's_lshl_b32 s%d, s%d, 15' % (sT3, sT3), 's_lshr_b32 s%d, s%d, 1' % (sT2, sW), 's_lshl_b32 s%d, s%d, 14' % (sT2, sT2),
                's_add_u32 s%d, s%d, s%d' % (sT3, sT3, sT2), 's_add_u32 s%d, s%d, %d' % (sT3, sT3, s.L_O)] + o[0]
        return o
    def flat(s, L):
        for g in L:
            for x in g: s.a(x)
    def ids(s):
        s.a('s_lshr_b32 s%d, s%d, 3' % (s.sKq, sMem))
        s.a('s_and_b32 s%d, s%d, 7' % (s.sCb, sMem))
    def load_wo(s, mid, done, late):
        a = s.a; vT = 8
        a('s_and_b32 s%d, s%d, 1' % (sT0, sW))
        a('s_lshl_b32 s%d, s%d, 2' % (sT0, sT0))
        bits(a, vT + 2, [(4, 2, 0)], 's%d' % sT0)
        a('v_lshlrev_b32 v%d, 1, v%d' % (vT + 3, vT + 2))
        a('v_xor_b32 v%d, v0, v%d' % (vT + 3, vT + 3))
        a('v_and_b32 v%d, 15, v%d' % (vT + 3, vT + 3))
        a('v_lshlrev_b32 v%d, 4, v%d' % (vT + 3, vT + 3))
        a('v_lshl_add_u32 v%d, v%d, 11, v%d' % (vT, vT + 2, vT + 3))
        a('s_lshl_b32 s%d, s%d, 10' % (sT3, sW))
        a('s_lshl_b32 s%d, s%d, 21' % (sT0, s.sKq))
        a('s_lshl_b32 s%d, s%d, 8' % (sT1, s.sCb))
        a('s_add_u32 s%d, s%d, s%d' % (sT0, sT0, sT1))
        a('s_lshr_b32 s%d, s%d, 1' % (sT1, sW))
        a('s_lshl_b32 s%d, s%d, 14' % (sT1, sT1))
        a('s_add_u32 s%d, s%d, s%d' % (sT0, sT0, sT1))
        bits(a, vT + 2, [(2, 3, 0)])
        a('s_lshl_b32 s%d, s%d, 1' % (sT1, sW))
        a('v_xor_b32 v%d, s%d, v%d' % (vT + 2, sT1, vT + 2))
        bits(a, vT + 3, [(2, 4, 8), (0, 2, 3)])
        for nt in range(2):
            a('v_xor_b32 v%d, %d, v%d' % (vT + 4, nt, vT + 2))
            a('v_lshl_add_u32 v%d, v%d, 5, v%d' % (vT + 5 + nt, vT + 4, vT + 3))
            a('v_add_u32 v%d, 0x10000, v%d' % (vT + 7 + nt, vT + 5 + nt))
        def dma(q):
            for i in range(16):
                a('s_add_u32 m0, s%d, %d' % (sT3, (q % 2) * 65536 + i * 4096))
                a('buffer_load_dwordx4 v%d, s[%d:%d], s%d offen lds' % (vT, S_WO, S_WO + 3, sT0))
                a('s_add_u32 s%d, s%d, 0x8000' % (sT0, sT0))
        a('s_barrier')
        dma(0); dma(1)
        mid()
        waits = [17, 16, 40, 24]
        for q in range(4):
            a('s_waitcnt vmcnt(%d)' % waits[q])
            a('s_barrier')
            if q == 1: done()
            for k in range(8):
                for nt in range(2):
                    for v2 in range(2):
                        a('ds_read_b64_tr_b16 %s, v%d offset:%d' % (ar(((q * 8 + k) * 2 + nt) * 4 + 2 * v2, 2), vT + 5 + 2 * (q % 2) + nt, (32 * k + 16 * v2) * 256))
                a('s_waitcnt lgkmcnt(8)')
            a('s_waitcnt lgkmcnt(0)')
            if q < 2:
                a('s_barrier')
                dma(q + 2)
            if q == 1: late()
    def setup(s):
        a = s.a; vT = s.vT
        a('v_lshlrev_b32 v%d, 4, v0' % s.vL16)
        a('v_add_u32 v%d, %d, v%d' % (s.vOr, s.L_O, s.vL16))
        a('v_lshlrev_b32 v11, 7, v0')
        a('s_and_b32 s%d, s%d, 1' % (sT0, sW))
        a('s_lshr_b32 s%d, s%d, 1' % (sT1, sW))
        a('s_lshl_b32 s%d, s%d, 12' % (sT2, sT0))
        a('v_add_u32 v%d, s%d, v%d' % (s.vQr, sT2, s.vL16))
        a('v_add_u32 v%d, 8192, v%d' % (s.vKr, s.vL16))
        a('s_lshl_b32 s%d, s%d, 11' % (sT2, sT1))
        a('s_add_u32 s%d, s%d, 16384' % (sT2, sT2))
        bits(a, s.vVr, [(0, 2, 8), (2, 4, 4)], 's%d' % sT2)
        a('s_lshl_b32 s%d, s%d, 10' % (sT2, sT1))
        a('s_add_u32 s%d, s%d, %d' % (sT2, sT2, s.L_KM + 2048))
        bits(a, s.vMr, [(3, 1, 8), (4, 2, 6), (1, 1, 5), (2, 1, 3), (0, 1, 1)], 's%d' % sT2)
        for i in range(2): a('s_mov_b32 s%d, 0xcccccccc' % (s.sHi + i))
        a('v_mov_b32 v%d, 0x4444' % vT)
        a('v_mov_b32 v%d, 0xeeee' % (vT + 1))
        a('v_cndmask_b32 v%d, v%d, v%d, s[%d:%d]' % (s.vIdx, vT, vT + 1, s.sHi, s.sHi + 1))
        a('v_mov_b32 v%d, 0x%x' % (s.vNeg, f2u(-1e9 * math.sqrt(128))))
        a('s_mov_b32 s%d, 0x%x' % (s.sScale, f2u(math.log2(math.e) / math.sqrt(128))))
        a('s_lshl_b32 s%d, s%d, 4' % (sT2, sT0))
        bits(a, vT, [(0, 4, 0)], 's%d' % sT2)
        bits(a, vT + 1, [(4, 2, 2)])
        a('v_sub_u32 v%d, v%d, v%d' % (vT, vT, vT + 1))
        for k in range(8):
            a('v_cmp_le_i32 s[%d:%d], %d, v%d' % (s.sMask + 2 * k, s.sMask + 2 * k + 1, 16 * (k // 4) + k % 4, vT))
        a('s_lshl_b32 s%d, s%d, 10' % (sT2, sW))
        a('v_add_u32 v%d, s%d, v%d' % (s.vKmw, sT2, s.vL16))
        a('s_lshl_b32 s%d, s%d, 16' % (sT2, sT1))
        a('s_lshl_b32 s%d, s%d, 5' % (sT3, sT0))
        a('s_add_u32 s%d, s%d, s%d' % (sT2, sT2, sT3))
        a('s_lshl_b32 s%d, s%d, 6' % (sT3, s.sKq))
        a('s_add_u32 s%d, s%d, s%d' % (sT2, sT2, sT3))
        a('s_lshl_b32 s%d, s%d, 8' % (sT3, s.sCb))
        a('s_add_u32 s%d, s%d, s%d' % (sT2, sT2, sT3))
        a('s_add_u32 s%d, s%d, 2048' % (sT2, sT2))
        bits(a, s.vOst, [(0, 4, 12), (4, 2, 3)], 's%d' % sT2)
        for et in range(4): a('v_mov_b32 v%d, 0' % (s.vA + 6 * et + 5))
        a('s_lshl_b32 s%d, s%d, 16' % (sT2, s.sCb))
        a('s_add_u32 s%d, s%d, 0x%x' % (sT2, sT2, WS_PO))
        a('s_lshl_b32 s%d, s%d, 14' % (s.sPst, sW))
        a('s_lshl_b32 s%d, s%d, 10' % (sT3, s.sKq))
        a('s_add_u32 s%d, s%d, s%d' % (s.sPst, s.sPst, sT3))
        a('s_add_u32 s%d, s%d, s%d' % (s.sPst, s.sPst, sT2))
        a('s_lshl_b32 s%d, s%d, 14' % (s.sPld, s.sKq))
        a('s_lshl_b32 s%d, s%d, 12' % (sT3, sW))
        a('s_add_u32 s%d, s%d, s%d' % (s.sPld, s.sPld, sT3))
        a('s_add_u32 s%d, s%d, s%d' % (s.sPld, s.sPld, sT2))
    def next_list(s):
        o = []
        for bit, r in ((0, s.sA), (1, s.sO), (2, s.sF), (3, s.sS)):
            o += ['s_bfe_u32 s%d, s%d, 0x%x' % (sT0, s.sDo, 0x10000 | bit), 's_lshl2_add_u32 s%d, s%d, s%d' % (r, sT0, r)]
        o += ['s_add_u32 s%d, s%d, 1' % (s.sI, s.sI)]
        for k in range(4):
            o += ['s_lshr_b32 s%d, s%d, s%d' % (sT0, s.sSch + k, s.sI), 's_and_b32 s%d, s%d, 1' % (sT0 if k else s.sDn, sT0)]
            if k: o += ['s_lshl_b32 s%d, s%d, %d' % (sT0, sT0, k), 's_or_b32 s%d, s%d, s%d' % (s.sDn, s.sDn, sT0)]
        o += ['s_lshl_b32 s%d, s%d, 17' % (s.sKm, s.sA), 's_add_u32 s%d, s%d, s%d' % (s.sKm, s.sKm, s.bKm),
              's_lshl_b32 s%d, s%d, 11' % (s.sCO, s.sO), 's_add_u32 s%d, s%d, s%d' % (s.sCO, s.sCO, s.bCO),
              s.km_ld(), s.ld_ctr(0),
              's_lshl_b32 s%d, s%d, 18' % (s.sOst, s.sA), 's_add_u32 s%d, s%d, s%d' % (s.sOst, s.sOst, s.bOst),
              's_lshl_b32 s%d, s%d, 18' % (s.sOld, s.sO), 's_add_u32 s%d, s%d, s%d' % (s.sOld, s.sOld, s.bOld),
              's_lshl_b32 s%d, s%d, 11' % (s.sCP, s.sF), 's_add_u32 s%d, s%d, s%d' % (s.sCP, s.sCP, s.bCP),
              'v_mov_b32 v%d, 0' % (s.vP + 5)]
        return ['\n'.join(x) if isinstance(x, list) else x for x in o]
    def bases(s):
        a = s.a
        a('s_lshl_b32 s%d, s%d, 12' % (sT0, sMem))
        a('s_add_u32 s%d, s%d, 0x%x' % (s.bKm, sT0, WS_KVM))
        a('s_and_b32 s%d, s%d, 1' % (sT1, sW))
        a('s_lshl_b32 s%d, s%d, 17' % (sT1, sT1))
        a('s_add_u32 s%d, s%d, 0x%x' % (sT1, sT1, WS_O))
        a('s_lshr_b32 s%d, s%d, 1' % (sT2, sW))
        a('s_add_u32 s%d, s%d, s%d' % (s.bOst, sT1, sT0))
        a('s_lshl_b32 s%d, s%d, 11' % (sT0, sT2))
        a('s_add_u32 s%d, s%d, s%d' % (s.bOst, s.bOst, sT0))
        a('s_lshl_b32 s%d, s%d, 15' % (sT0, s.sKq))
        a('s_add_u32 s%d, s%d, s%d' % (s.bOld, sT1, sT0))
        a('s_lshl_b32 s%d, s%d, 14' % (sT0, sT2))
        a('s_add_u32 s%d, s%d, s%d' % (s.bOld, s.bOld, sT0))
        a('s_lshl_b32 s%d, s%d, 7' % (sT0, s.sKq))
        a('s_add_u32 s%d, s%d, 0x%x' % (s.bCO, sT0, WS_CTR))
        a('s_lshl_b32 s%d, s%d, 7' % (sT0, s.sCb))
        a('s_add_u32 s%d, s%d, 0x%x' % (s.bCP, sT0, WS_CTR + 512))
    def km_ld(s): return 'buffer_load_dwordx4 %s, v%d, s[%d:%d], s%d offen sc1' % (vr(s.vP, 4), s.vKmw, S_WS, S_WS + 3, s.sKm)
    def ld_km(s): s.a('buffer_load_dwordx4 %s, v%d, s[%d:%d], s%d offen sc1' % (vr(s.vP, 4), s.vKmw, S_WS, S_WS + 3, s.sKm))
    def ld_ctr(s, k): return 'buffer_load_dword v%d, off, s[%d:%d], s%d sc1' % (s.vP + 4 + k, S_WS, S_WS + 3, (s.sCO, s.sCP)[k])
    def spin(s, ld, chk, sleep):
        a = s.a
        l, ok = a.newlabel('Lsp'), a.newlabel('Lsp')
        a.label(l)
        chk(ok)
        if sleep: a('s_sleep %d' % sleep)
        ld()
        a('s_waitcnt vmcnt(0)')
        a('s_sub_u32 s%d, s%d, 1' % (sTmo, sTmo))
        a('s_cbranch_scc0 %s' % l)
        a('s_branch L_side_fail')
        a.label(ok)
    def wait_km(s):
        a = s.a; vP = s.vP
        def chk(ok):
            a('v_max3_u32 v%d, v%d, v%d, v%d' % (s.vT, vP, vP + 1, vP + 2))
            a('v_max_u32 v%d, v%d, v%d' % (s.vT, s.vT, vP + 3))
            a('v_cmp_eq_u32 vcc, -1, v%d' % s.vT)
            a('s_cbranch_vccz %s' % ok)
        s.spin(s.ld_km, chk, 2)
    def wait_ctr(s, k):
        a = s.a
        def chk(ok):
            a('v_readfirstlane_b32 s%d, v%d' % (sT0, s.vP + 4 + k))
            a('s_cmp_eq_u32 s%d, %d' % (sT0, (8, 4)[k]))
            a('s_cbranch_scc1 %s' % ok)
        s.spin(lambda: a(s.ld_ctr(k)), chk, 2)
    def signals(s):
        a = s.a
        l = a.newlabel('Lsig')
        a('s_cmp_eq_u32 s%d, 0' % sW)
        a('s_cbranch_scc0 %s' % l)
        a('v_mov_b32 v%d, 1' % (s.vT + 2))
        a('s_mov_b64 exec, 1')
        for bit, r, b in ((0, s.sA, s.bCO), (3, s.sS, s.bCP)):
            a('s_lshl_b32 s%d, s%d, 11' % (sT0, r))
            a('s_add_u32 s%d, s%d, s%d' % (sT0, sT0, b))
            a('s_bitcmp1_b32 s%d, %d' % (s.sDo, bit))
            a('s_cselect_b32 s%d, s%d, 0x%x' % (sT0, sT0, WS_DUMP))
            a('buffer_atomic_add v%d, off, s[%d:%d], s%d sc1' % (s.vT + 2, S_WS, S_WS + 3, sT0))
        a('s_mov_b64 exec, -1')
        a.label(l)
    def cond(s, bit, label):
        s.a('s_bitcmp1_b32 s%d, %d' % (s.sDo, bit))
        s.a('s_cbranch_scc0 %s' % label)
    def attn(s, lean=False, merged=False):
        A = s.a; vT = s.vT; vQ, vK, vKm, vS, vA, vD = s.vQ, s.vK, s.vKm, s.vS, s.vA, s.vD
        fill = [] if lean or merged else s.odma_list() + s.prefetch_list() + [[s.ld_ctr(1)]]
        st = {'n': 0}
        def a(x):
            A(x)
            st['n'] += 1
            if st['n'] % s.DENS == 0 and fill:
                for y in fill.pop(0): A(y)
        for i in range(4): a('v_mov_b32 v%d, 0' % (vS + 8 + i))
        kmr = lambda: [a('ds_read_b128 %s, v%d offset:%d' % (vr(vKm + 4 * T, 4), s.vL16, s.L_KM + T * 1024)) for T in range(2)]
        msk = lambda: [a('v_cndmask_b32 v%d, v%d, v%d, s[%d:%d]' % (vS + k, s.vNeg, vS + k, s.sMask + 2 * k, s.sMask + 2 * k + 1)) for k in range(8)]
        for t in range(4): a('ds_read_b128 %s, v%d offset:%d' % (vr(vQ + 4 * t, 4), s.vQr, t * 1024))
        for i in range(8): a('ds_read_b128 %s, v%d offset:%d' % (vr(vK + 4 * i, 4), s.vKr, i * 1024))
        if not lean: kmr()
        a('s_waitcnt lgkmcnt(0)')
        for et in range(4):
            for tau in range(2):
                a('ds_read_b64_tr_b16 %s, v%d offset:%d' % (vr(vA + 6 * et + 2 * tau, 2), s.vVr, tau * 4096 + (et // 2) * 1024 + (et % 2) * 8))
        for t in range(4):
            for tau in range(2):
                a('v_mfma_f32_16x16x32_bf16 %s, %s, %s, %s' % (vr(vS + 4 * tau, 4), vr(vK + 16 * tau + 4 * t, 4), vr(vQ + 4 * t, 4), '0' if t == 0 else vr(vS + 4 * tau, 4)))
        if lean:
            msk()
            lean()
            kmr()
        def vmr():
            for et in range(4):
                a('ds_read_u16 v%d, v%d offset:%d' % (vA + 6 * et + 4, s.vMr, (et // 2) * 512 + (et % 2) * 4))
                a('ds_read_u16 v%d, v%d offset:%d' % (vT + 8 + et, s.vMr, (et // 2) * 512 + (et % 2) * 4 + 16))
        if lean:
            vmr()
            a('s_waitcnt lgkmcnt(8)')
        for T in range(2):
            a('v_smfmac_f32_16x16x64_bf16 %s, %s, %s, v%d' % (vr(vS + 8, 4), vr(vKm + 4 * T, 4), vr(vQ + 8 * T, 8), s.vIdx))
        if merged:
            vmr()
            msk()
            a('s_waitcnt lgkmcnt(0)')
            a('s_barrier')
        elif not lean:
            a('s_waitcnt lgkmcnt(0)')
            vmr()
            msk()
        a('v_pk_add_f32 %s, %s, %s' % (vr(vS + 8, 2), vr(vS + 8, 2), vr(vS + 10, 2)))
        m, m2 = vT, vT + 1
        def xred(op):
            for sw in ('v_permlane16_swap_b32', 'v_permlane32_swap_b32'):
                a('v_mov_b32 v%d, v%d' % (m2, m))
                a('%s v%d, v%d' % (sw, m, m2))
                a('%s v%d, v%d, v%d' % (op, m, m, m2))
        a('v_max3_f32 v%d, v%d, v%d, v%d' % (m, vS, vS + 1, vS + 2))
        for k in range(3, 9, 2): a('v_max3_f32 v%d, v%d, v%d, v%d' % (m, m, vS + k, vS + k + 1))
        a('v_max_f32 v%d, v%d, v%d' % (m, m, vS + 9))
        xred('v_max_f32')
        a('v_mul_f32 v%d, s%d, v%d' % (m, s.sScale, m))
        for k in range(10): a('v_fma_f32 v%d, v%d, s%d, -v%d' % (vS + k, vS + k, s.sScale, m))
        for k in range(10): a('v_exp_f32 v%d, v%d' % (vS + k, vS + k))
        a('v_pk_add_f32 %s, %s, %s' % (vr(m, 2), vr(vS, 2), vr(vS + 2, 2)))
        for k in (4, 6, 8): a('v_pk_add_f32 %s, %s, %s' % (vr(m, 2), vr(m, 2), vr(vS + k, 2)))
        a('v_add_f32 v%d, v%d, v%d' % (m, m, m2))
        xred('v_add_f32')
        a('v_rcp_f32 v%d, v%d' % (m, m))
        for k in range(10): a('v_mul_f32 v%d, v%d, v%d' % (vS + k, vS + k, m))
        p = vT + 2
        for k in range(5): a('v_cvt_pk_bf16_f32 v%d, v%d, v%d' % (p + k, vS + 2 * k, vS + 2 * k + 1))
        a('v_mov_b32 v%d, 0' % (p + 5))
        a('s_waitcnt lgkmcnt(0)')
        for et in range(4): a('v_lshl_or_b32 v%d, v%d, 16, v%d' % (vA + 6 * et + 4, vT + 8 + et, vA + 6 * et + 4))
        for et in range(4): a('v_mfma_f32_16x16x32_bf16 %s, %s, %s, 0' % (vr(vD + 4 * et, 4), vr(vA + 6 * et, 4), vr(p, 4)))
        for et in range(4): a('v_mfma_f32_16x16x16_bf16 %s, %s, %s, %s' % (vr(vD + 4 * et, 4), vr(vA + 6 * et + 4, 2), vr(p + 4, 2), vr(vD + 4 * et, 4)))
        for pr in range(2):
            r = vD + 8 * pr
            for i in range(4): a('v_cvt_pk_bf16_f32 v%d, v%d, v%d' % (r + i, r + 2 * i, r + 2 * i + 1))
            a('buffer_store_dwordx4 %s, v%d, s[%d:%d], s%d offen offset:%d sc1' % (vr(r, 4), s.vL16, S_WS, S_WS + 3, s.sOst, pr * 1024))
        assert not fill
        a = A
        if not (merged or lean):
            for r in (s.vQr, s.vKr, s.vVr): a('v_xor_b32 v%d, 0x%x, v%d' % (r, s.BUF1, r))
    def readback(s):
        if not s.RB: return
        a = s.a
        a('s_bitcmp1_b32 s%d, 0' % s.sDo)
        a('s_cselect_b32 s%d, s%d, 0x%x' % (sT0, s.sOst, WS_DUMP))
        a('s_mov_b64 exec, 0xffff')
        a('buffer_load_dword v%d, v11, s[%d:%d], s%d offen sc1' % (s.vT + 3, S_WS, S_WS + 3, sT0))
        a('s_mov_b64 exec, -1')
    def fload(s):
        a = s.a
        l = a.newlabel('Lf')
        s.cond(2, l)
        s.wait_ctr(1)
        a('s_lshl_b32 s%d, s%d, 19' % (sT0, s.sF))
        a('s_add_u32 s%d, s%d, s%d' % (sT0, sT0, s.sPld))
        for i in range(4): a('buffer_load_dwordx4 %s, v%d, s[%d:%d], s%d offen offset:%d sc1' % (vr(s.vF + 4 * i, 4), s.vL16, S_WS, S_WS + 3, sT0, i * 1024))
        a.label(l)
        a('s_lshl_b32 s%d, s%d, 17' % (s.sFo, s.sF))
        a('s_bitcmp1_b32 s%d, 2' % s.sDo)
        a('s_cselect_b32 s%d, s%d, 0x%x' % (s.sFo, s.sFo, WS_DUMP))
    def oproj(s, lean=False, havepo=False):
        a = s.a; vD = s.vD; vB = s.vB
        seq = [(rt, k) for k in range(32) for rt in range(2)]
        NB, AH = 12, 10
        def rd(i):
            rt, k = seq[i]
            a('ds_read_b128 %s, v%d offset:%d' % (vr(vB + 4 * (i % NB), 4), s.vOr, rt * 32768 + k * 1024))
        for i in range(AH): rd(i)
        if not havepo:
            a('s_lshl_b32 s%d, s%d, 19' % (s.sPo, s.sO))
            a('s_add_u32 s%d, s%d, s%d' % (s.sPo, s.sPo, s.sPst))
        nl = [] if lean else s.next_list()
        for i, (rt, k) in enumerate(seq):
            if i + AH < 64: rd(i + AH)
            a('s_waitcnt lgkmcnt(%d)' % min(AH, 63 - i))
            for nt in range(2):
                d = vr(vD + 4 * (2 * rt + nt), 4)
                a('v_mfma_f32_16x16x32_bf16 %s, %s, %s, %s' % (d, ar((k * 2 + nt) * 4, 4), vr(vB + 4 * (i % NB), 4), '0' if k == 0 else d))
                if i >= s.NL0 and nl: a(nl.pop(0))
            if i == s.MID and not lean:
                s.mark(13)
                a('s_waitcnt vmcnt(0)')
                a('s_barrier')
                s.mark(14)
                s.signals()
                s.readback()
                s.fload()
                s.mark(15)
        assert not nl
        if not lean: s.mark(108)
        if not lean: a('s_waitcnt vmcnt(2)')
        for t in range(4):
            a('buffer_store_dwordx4 %s, v%d, s[%d:%d], s%d offen sc1' % (vr(vD + 4 * t, 4), s.vL16, S_WS, S_WS + 3, s.sPo))
            a('s_add_u32 s%d, s%d, 4096' % (s.sPo, s.sPo))
    def finish(s, vF=None, vT=None):
        a = s.a; vT = vT or s.vT; vF = vF or s.vF
        for h in range(2):
            a('v_pk_add_f32 %s, %s, %s' % (vr(vF + 2 * h, 2), vr(vF + 2 * h, 2), vr(vF + 4 + 2 * h, 2)))
            a('v_pk_add_f32 %s, %s, %s' % (vr(vF + 8 + 2 * h, 2), vr(vF + 8 + 2 * h, 2), vr(vF + 12 + 2 * h, 2)))
            a('v_pk_add_f32 %s, %s, %s' % (vr(vF + 2 * h, 2), vr(vF + 2 * h, 2), vr(vF + 8 + 2 * h, 2)))
            a('v_cvt_pk_bf16_f32 v%d, v%d, v%d' % (vT + h, vF + 2 * h, vF + 2 * h + 1))
        a('buffer_store_dwordx2 %s, v%d, s[%d:%d], s%d offen' % (vr(vT, 2), s.vOst, S_OUT, S_OUT + 3, s.sFo))
    def run(s, wait_g1):
        a = s.a; vT = s.vT; vF = s.vF
        s.setup()
        s.bases()
        wait_g1()
        a('s_barrier')
        for k in range(4): a('s_mov_b32 s%d, 0x%x' % (s.sSch + k, s.sched(16)[k]))
        a('s_mov_b32 s%d, 16' % s.sNit)
        for r in (s.sA, s.sO, s.sF, s.sS, s.sPf): a('s_mov_b32 s%d, s%d' % (r, sTeam))
        a('s_mov_b32 s%d, 0' % s.sBuf)
        a('s_mov_b32 s%d, -1' % s.sI)
        a('s_mov_b32 s%d, 0' % s.sDo)
        for i in range(4): a('v_mov_b32 v%d, -1' % (vF + i))
        a('s_add_u32 s%d, s%d, 60' % (sT0, sTeam))
        a('s_lshl_b32 s%d, s%d, 19' % (sT0, sT0))
        a('s_add_u32 s%d, s%d, s%d' % (sT0, sT0, s.sPst))
        for t in range(4):
            a('buffer_store_dwordx4 %s, v%d, s[%d:%d], s%d offen sc1' % (vr(vF, 4), s.vL16, S_WS, S_WS + 3, sT0))
            a('s_add_u32 s%d, s%d, 4096' % (sT0, sT0))
        a('s_add_u32 s%d, s%d, 60' % (sT0, sTeam))
        a('s_lshl_b32 s%d, s%d, 18' % (sT0, sT0))
        a('s_add_u32 s%d, s%d, s%d' % (sT0, sT0, s.bOst))
        for t in range(2): a('buffer_store_dwordx4 %s, v%d, s[%d:%d], s%d offen offset:%d sc1' % (vr(vF, 4), s.vL16, S_WS, S_WS + 3, sT0, t * 1024))
        s.flat(s.prefetch_list())
        for x in s.next_list(): a(x)
        a('s_waitcnt vmcnt(0)')
        a.label('L_ao_loop')
        s.mark(10); s.mark(9)
        a('s_mov_b32 s%d, s%d' % (s.sDo, s.sDn))
        a('s_bitcmp1_b32 s%d, 1' % s.sDo)
        a('s_cselect_b32 s%d, s%d, 0x%x' % (s.sOld, s.sOld, WS_DUMP))
        a('s_cbranch_scc0 L_ao_2')
        s.wait_ctr(0)
        a.label('L_ao_2')
        s.cond(0, 'L_ao_noA')
        s.wait_km()
        a('ds_write_b128 v%d, %s offset:%d' % (s.vKmw, vr(s.vP, 4), s.L_KM))
        a('s_add_u32 s%d, s%d, 4' % (s.sPf, s.sA))
        a('s_cmp_lt_u32 s%d, 64' % s.sPf)
        a('s_cselect_b32 s%d, s%d, 1024' % (s.sPf, s.sPf))
        a('s_xor_b32 s%d, s%d, 0x%x' % (s.sBuf, s.sBuf, s.BUF1))
        a('s_waitcnt lgkmcnt(0)')
        a('s_barrier')
        s.mark(11)
        s.attn()
        s.cond(1, 'L_ao_noO')
        s.mark(7)
        a('s_waitcnt vmcnt(9)')
        a('s_branch L_ao_3')
        a.label('L_ao_noA')
        s.cond(1, 'L_ao_noO')
        a('s_barrier')
        s.flat(s.odma_list())
        a('s_waitcnt vmcnt(0)')
        a.label('L_ao_3')
        a('s_barrier')
        s.mark(12)
        s.oproj()
        a('s_branch L_ao_6')
        a.label('L_ao_noO')
        a('s_waitcnt vmcnt(0)')
        a('s_barrier')
        s.signals()
        s.fload()
        for x in s.next_list(): a(x)
        a('s_waitcnt vmcnt(0)')
        a.label('L_ao_6')
        s.finish()
        a('s_waitcnt vmcnt(5)')
        a('s_cmp_lt_u32 s%d, s%d' % (s.sI, s.sNit))
        a('s_cbranch_scc1 L_ao_loop')
        s.mark(10)
        a('s_waitcnt vmcnt(0)')
        a('s_barrier')
        a('s_mov_b32 s%d, 8' % s.sDo)
        s.signals()
        def km_arrives():
            s.wait_km()
            a('ds_write_b128 v%d, %s offset:%d' % (s.vKmw, vr(s.vP, 4), s.L_KM))
            a('s_waitcnt lgkmcnt(0)')
            a('s_barrier')
            s.mark(11)
        a('s_mov_b32 s%d, 1' % s.sDo)
        s.attn(km_arrives)
        a('buffer_load_dword v%d, off, s[%d:%d], s%d sc1' % (s.vP + 3, S_WS, S_WS + 3, s.sCP))
        a('s_add_u32 s%d, s%d, 8192' % (s.sCP, s.sCP))
        a(s.ld_ctr(1))
        a('s_waitcnt vmcnt(0)')
        if not s.OS:
            a('s_barrier')
            s.signals()
        s.mark(12)
        if not s.OS: s.wait_ctr(0)
        s.flat(s.odma_list())
        s.wait_ctr(1)
        a('s_sub_u32 s%d, s%d, 8192' % (s.sCP, s.sCP))
        a('v_mov_b32 v%d, v%d' % (s.vP + 5, s.vP + 3))
        s.wait_ctr(1)
        a('s_lshl_b32 s%d, s%d, 19' % (s.sCP, s.sF))
        a('s_add_u32 s%d, s%d, s%d' % (s.sCP, s.sCP, s.sPld))
        for k in range(2):
            for i in range(4): a('buffer_load_dwordx4 %s, v%d, s[%d:%d], s%d offen offset:%d sc1' % (vr(s.vQ + 16 * k + 4 * i, 4), s.vL16, S_WS, S_WS + 3, s.sCP, i * 1024))
            a('s_add_u32 s%d, s%d, 0x200000' % (s.sCP, s.sCP))
        a('s_lshl_b32 s%d, s%d, 17' % (s.sFo, s.sF))
        a('s_waitcnt vmcnt(8)')
        if s.OS:
            a('v_add_u32 v%d, s%d, v%d' % (vT + 1, sT3, s.vL16))
            def chko(ok):
                for c in range(2):
                    for i in range(8): a('ds_read_b128 %s, v%d offset:%d' % (vr(s.vB + 4 * i, 4), vT + 1, (8 * c + i) * 1024))
                    for i in range(8):
                        a('s_waitcnt lgkmcnt(%d)' % (7 - i))
                        for h in range(2): a('v_max3_u32 v%d, v%d, v%d, v%d' % (vT, vT if c + i + h else s.vB, s.vB + 4 * i + 2 * h, s.vB + 4 * i + 2 * h + 1))
                a('v_cmp_eq_u32 vcc, -1, v%d' % vT)
                a('s_cbranch_vccz %s' % ok)
            s.spin(lambda: s.flat(s.odma_list()), chko, 0)
        a('s_barrier')
        s.mark(13)
        s.oproj(True)
        s.mark(14)
        a('s_waitcnt vmcnt(4)')
        for k in range(2):
            s.finish(s.vQ + 16 * k, vT + 2 + 2 * k)
            a('s_add_u32 s%d, s%d, 0x80000' % (s.sFo, s.sFo))
        def ldf():
            for i in range(4): a('buffer_load_dwordx4 %s, v%d, s[%d:%d], s%d offen offset:%d sc1' % (vr(vF + 4 * i, 4), s.vL16, S_WS, S_WS + 3, s.sCP, i * 1024))
        def chk(ok):
            a('v_max3_u32 v%d, v%d, v%d, v%d' % (vT, vF, vF + 1, vF + 2))
            for i in range(3, 15, 2): a('v_max3_u32 v%d, v%d, v%d, v%d' % (vT, vT, vF + i, vF + i + 1))
            a('v_max_u32 v%d, v%d, v%d' % (vT, vT, vF + 15))
            a('v_cmp_eq_u32 vcc, -1, v%d' % vT)
            a('s_cbranch_vccz %s' % ok)
        a('s_waitcnt vmcnt(2)')
        ldf()
        a('s_waitcnt vmcnt(0)')
        s.spin(ldf, chk, 1)
        s.finish()

class AO2(AO):
    L_O = 28672
    vO = 204
    sC0, sSg, sFl, sOb, sDl = 88, 89, 90, 91, 92
    def off(s, dst, lag, sh, base, hi=14):
        return ['s_sub_u32 s%d, s%d, %d' % (sT0, s.sI, lag) if lag >= 0 else 's_add_u32 s%d, s%d, %d' % (sT0, s.sI, -lag),
] + (['s_min_u32 s%d, s%d, 15' % (sT0, sT0)] if lag == -1 else []) + [
                's_lshl2_add_u32 s%d, s%d, s%d' % (dst, sT0, sTeam), 's_lshl_b32 s%d, s%d, %d' % (dst, dst, sh)] + \
               (['s_add_u32 s%d, s%d, s%d' % (dst, dst, base)] if base else []) + \
               ['s_cmp_le_u32 s%d, %d\ns_cselect_b32 s%d, s%d, 0x%x' % (sT0, hi, dst, dst, WS_DUMP)]
    def odma2(s):
        o = []
        for i in range(16):
            g = ['s_add_u32 m0, s%d, %d' % (s.sOb, i * 1024), 's_add_u32 s%d, s%d, %d' % (sT3, s.sOld, i * 1024)] if i % 4 == 0 else []
            o.append('\n'.join(g + ['buffer_load_dwordx4 v%d, s[%d:%d], s%d offen offset:%d sc1 lds' % (s.vL16, S_WS, S_WS + 3, sT3, (i % 4) * 1024)]))
        return o
    def pf2(s):
        return ['s_add_u32 m0, s%d, %d\ns_add_u32 s%d, s%d, 0x%x\nbuffer_load_dwordx4 v%d, s[%d:%d], s%d offen sc1 lds' %
                (s.sBuf, mi * 8192 + tau * 4096, sT2, s.sPf, base + tau * 131072, s.vL16, S_WS, S_WS + 3, sT2)
                for mi, base in enumerate((WS_QF, WS_KF, WS_VF)) for tau in range(2)]
    def sig2(s, regs, v=None):
        a = s.a
        v = v or s.vT + 2
        l = a.newlabel('Lsig')
        a('s_cmp_eq_u32 s%d, 0' % sW)
        a('s_cbranch_scc0 %s' % l)
        a('v_mov_b32 v%d, 1' % v)
        a('s_mov_b64 exec, 1')
        for r in regs: a('buffer_atomic_add v%d, off, s[%d:%d], s%d sc1' % (v, S_WS, S_WS + 3, r))
        a('s_mov_b64 exec, -1')
        a.label(l)
    def capture(s, f):
        A = s.a; L = []
        s.a = L.append
        f()
        s.a = A
        return L
    def nxt(s):
        return (['s_add_u32 s%d, s%d, 1' % (s.sI, s.sI)] + s.off(s.sCO, 2, 11, s.bCO) + s.off(s.sCP, 5, 11, s.bCP) +
                s.off(s.sC0, 1, 11, s.bCO) + s.off(s.sSg, 4, 11, s.bCP) + s.off(s.sOld, 2, 18, s.bOld) + s.off(s.sFl, 5, 19, s.sPld) +
                ['s_add_u32 s%d, s%d, s%d' % (s.sOb, s.sOb, s.sDl), 's_sub_u32 s%d, 0, s%d' % (s.sDl, s.sDl)])
    def run(s, wait_g1):
        a = s.a; vT = s.vT; vF = s.vF; vB = s.vB
        s.setup(); s.bases()
        sPb = s.sS
        a('s_lshl_b32 s%d, s%d, 12' % (sPb, sMem))
        a('s_lshl_b32 s%d, s%d, 10' % (s.sBuf, sW))
        a('s_add_u32 s%d, s%d, s%d' % (sPb, sPb, s.sBuf))
        a('s_and_b32 s%d, s%d, 1' % (s.sOb, sW))
        a('s_lshl_b32 s%d, s%d, 15' % (s.sOb, s.sOb))
        a('s_lshr_b32 s%d, s%d, 1' % (sT2, sW))
        a('s_lshl_b32 s%d, s%d, 14' % (sT2, sT2))
        a('s_add_u32 s%d, s%d, s%d' % (s.sOb, s.sOb, sT2))
        a('s_add_u32 s%d, s%d, %d' % (s.sOb, s.sOb, s.L_O))
        a('s_mov_b32 s%d, 65536' % s.sDl)
        wait_g1()
        a('s_barrier')
        a('s_mov_b32 s%d, -1' % s.sI)
        for i in range(4): a('v_mov_b32 v%d, -1' % (vF + i))
        for x in s.off(s.sPo, -16, 19, s.sPst, 15) + s.off(s.sOst, -16, 18, s.bOst, 15): a(x)
        for t in range(4):
            a('buffer_store_dwordx4 %s, v%d, s[%d:%d], s%d offen sc1' % (vr(vF, 4), s.vL16, S_WS, S_WS + 3, s.sPo))
            a('s_add_u32 s%d, s%d, 4096' % (s.sPo, s.sPo))
        for t in range(2): a('buffer_store_dwordx4 %s, v%d, s[%d:%d], s%d offen offset:%d sc1' % (vr(vF, 4), s.vL16, S_WS, S_WS + 3, s.sOst, t * 1024))
        for x in s.off(s.sPf, -1, 18, sPb, 15) + s.pf2() + s.off(s.sKm, -1, 17, s.bKm) + [s.km_ld()] + s.nxt(): a(x)
        a('s_waitcnt vmcnt(0)')
        a.label('L_ao_loop')
        s.mark(10); s.mark(9)
        a(s.ld_ctr(0)); a(s.ld_ctr(1))
        s.wait_km()
        a('ds_write_b128 v%d, %s offset:%d' % (s.vKmw, vr(s.vP, 4), s.L_KM))
        a('s_waitcnt lgkmcnt(0)')
        a('s_barrier')
        s.mark(11)
        att = s.capture(lambda: s.attn(merged=True))
        fin = s.capture(lambda: s.finish(vF, 220))
        pre = s.off(s.sPf, -1, 18, sPb, 15) + s.off(s.sKm, -1, 17, s.bKm) + s.off(s.sOst, 0, 18, s.bOst) + s.off(s.sPo, 3, 19, s.sPst) + s.off(s.sFo, 5, 17, None)
        mem = ['buffer_load_dwordx4 %s, v%d, s[%d:%d], s%d offen offset:%d sc1' % (vr(vF + 4 * i, 4), s.vL16, S_WS, S_WS + 3, s.sFl, i * 1024) for i in range(4)] + s.pf2() + s.odma2() + [s.km_ld()]
        late = ['FWAIT'] + fin + s.nxt()
        lds, vm = [], []
        def emit(x, tag):
            if x == 's_waitcnt lgkmcnt(0)':
                k = max(i for i, t in enumerate(lds) if t == 'a')
                a('s_waitcnt lgkmcnt(%d)' % min(14, len(lds) - 1 - k)); return
            if x == 'FWAIT':
                a('s_waitcnt vmcnt(%d)' % (len(vm) - 4)); return
            if x == 's_barrier':
                s.mark(12)
                a('s_waitcnt vmcnt(0)')
                a(x)
                s.sig2((s.sC0, s.sSg), 222)
                for reg, k in ((s.sCO, 0), (s.sCP, 1)):
                    l = a.newlabel('Lao')
                    a('s_cmp_eq_u32 s%d, 0x%x' % (reg, WS_DUMP))
                    a('s_cbranch_scc1 %s' % l)
                    s.wait_ctr(k)
                    a.label(l)
                s.mark(13)
                return
            assert not ('buffer_store' in x and mem)
            a(x)
            if x.startswith('ds_'): lds.append(tag)
            if 'buffer_' in x: vm.append(tag)
        seq = [(rt, k) for k in range(32) for rt in range(2)]
        NB, AH = 12, 6
        rd = lambda i: emit('ds_read_b128 %s, v%d offset:%d' % (vr(vB + 4 * (i % NB), 4), s.vOr, seq[i][0] * 32768 + seq[i][1] * 1024), i)
        for i in range(AH): rd(i)
        passed = False
        g = 0
        for i, (rt, k) in enumerate(seq):
            if i + AH < 64: rd(i + AH)
            a('s_waitcnt lgkmcnt(%d)' % min(14, len(lds) - 1 - lds.index(i)))
            for nt in range(2):
                d = vr(s.vO + 4 * (2 * rt + nt), 4)
                a('v_mfma_f32_16x16x32_bf16 %s, %s, %s, %s' % (d, ar((k * 2 + nt) * 4, 4), vr(vB + 4 * (i % NB), 4), '0' if k == 0 else d))
                g += 1
                dm_now = passed and mem and nt == 0
                for _ in range(1 if dm_now else 2):
                    if att and not (att[0] == 's_barrier' and pre) and not ('buffer_store' in att[0] and mem):
                        x = att.pop(0); emit(x, 'a'); passed |= x == 's_barrier'
                if pre: emit(pre.pop(0), 'e')
                elif dm_now: emit(mem.pop(0), 'p')
                elif not att:
                    for _ in range(2):
                        if late: emit(late.pop(0), 'l')
        assert not (att or pre or mem), (len(att), len(late))
        for x in late: emit(x, 'l')
        s.mark(108)
        a('v_add_u32 v%d, s%d, v%d' % (s.vOr, s.sDl, s.vOr))
        a('s_waitcnt vmcnt(3)')
        for t in range(4):
            a('buffer_store_dwordx4 %s, v%d, s[%d:%d], s%d offen sc1' % (vr(s.vO + 4 * t, 4), s.vL16, S_WS, S_WS + 3, s.sPo))
            a('s_add_u32 s%d, s%d, 4096' % (s.sPo, s.sPo))
        a('s_cmp_lt_u32 s%d, 18' % s.sI)
        a('s_cbranch_scc1 L_ao_loop')
        s.mark(10)
        for x in s.off(s.sKm, 3, 17, s.bKm, 15) + s.off(s.sOst, 3, 18, s.bOst, 15) + s.off(s.sOld, 3, 18, s.bOld, 15) + s.off(s.sPo, 3, 19, s.sPst, 15) + s.off(s.sFo, 5, 17, None): a(x)
        a('s_add_u32 s%d, s%d, s%d' % (s.sOb, s.sOb, s.sDl))
        s.ld_km()
        a('s_waitcnt vmcnt(0)')
        a('s_barrier')
        s.sig2((s.sSg,))
        def km_arrives():
            s.wait_km()
            a('ds_write_b128 v%d, %s offset:%d' % (s.vKmw, vr(s.vP, 4), s.L_KM))
            a('s_waitcnt lgkmcnt(0)')
            a('s_barrier')
            s.mark(11)
        s.attn(km_arrives)
        a(s.ld_ctr(1))
        a('buffer_load_dword v%d, off, s[%d:%d], s%d sc1' % (s.vP + 2, S_WS, S_WS + 3, s.sSg))
        a('s_waitcnt vmcnt(0)')
        s.mark(12)
        dm = lambda: [a(x) for x in s.odma2()]
        dm()
        for k in range(2):
            if k:
                a('s_add_u32 s%d, s%d, 8192' % (s.sCP, s.sCP))
                a('v_mov_b32 v%d, v%d' % (s.vP + 5, s.vP + 1 + k))
            s.wait_ctr(1)
        for k in range(2):
            for i in range(4): a('buffer_load_dwordx4 %s, v%d, s[%d:%d], s%d offen offset:%d sc1' % (vr(s.vQ + 16 * k + 4 * i, 4), s.vL16, S_WS, S_WS + 3, s.sFl, i * 1024))
            a('s_add_u32 s%d, s%d, 0x200000' % (s.sFl, s.sFl))
        a('v_add_u32 v%d, s%d, v%d' % (vT + 1, s.sOb, s.vL16))
        a('s_waitcnt vmcnt(8)')
        def chko(ok):
            for c in range(2):
                for i in range(8): a('ds_read_b128 %s, v%d offset:%d' % (vr(vB + 4 * i, 4), vT + 1, (8 * c + i) * 1024))
                for i in range(8):
                    a('s_waitcnt lgkmcnt(%d)' % (7 - i))
                    for h in range(2): a('v_max3_u32 v%d, v%d, v%d, v%d' % (vT, vT if c + i + h else vB, vB + 4 * i + 2 * h, vB + 4 * i + 2 * h + 1))
            a('v_cmp_eq_u32 vcc, -1, v%d' % vT)
            a('s_cbranch_vccz %s' % ok)
        s.spin(dm, chko, 0)
        a('s_barrier')
        s.mark(13)
        s.oproj(True, True)
        s.mark(14)
        a('s_waitcnt vmcnt(4)')
        for k in range(2):
            s.finish(s.vQ + 16 * k, vT + 2 + 2 * k)
            a('s_add_u32 s%d, s%d, 0x80000' % (s.sFo, s.sFo))
        def ldf():
            for i in range(4): a('buffer_load_dwordx4 %s, v%d, s[%d:%d], s%d offen offset:%d sc1' % (vr(vF + 4 * i, 4), s.vL16, S_WS, S_WS + 3, s.sFl, i * 1024))
        def chk(ok):
            a('v_max3_u32 v%d, v%d, v%d, v%d' % (vT, vF, vF + 1, vF + 2))
            for i in range(3, 15, 2): a('v_max3_u32 v%d, v%d, v%d, v%d' % (vT, vT, vF + i, vF + i + 1))
            a('v_max_u32 v%d, v%d, v%d' % (vT, vT, vF + 15))
            a('v_cmp_eq_u32 vcc, -1, v%d' % vT)
            a('s_cbranch_vccz %s' % ok)
        a('s_waitcnt vmcnt(2)')
        ldf()
        a('s_waitcnt vmcnt(0)')
        s.spin(ldf, chk, 1)
        s.finish()

class Conv:
    def mark(s, i): pass
    CH = 7600
    L_H = 8 * 7600
    HC = 4160
    L_W = 8 * 7600 + 16 * 4160
    def __init__(s, a): s.a = a
    def warm(s, NX=4):
        a = s.a
        a('s_and_b32 s%d, s%d, %d' % (sT0, sMem, 31 if NX == 4 else 15))
        a('s_lshl_b32 s%d, s%d, 2' % (sT0, sT0))
        a('s_add_u32 s%d, s%d, s%d' % (sT0, sT0, sW))
        a('s_lshl_b32 s%d, s%d, %d' % (sT0, sT0, 15 if NX == 4 else 16))
        a('s_lshl_b32 s%d, s%d, 9' % (sT1, sTeam))
        a('s_add_u32 s%d, s%d, s%d' % (sT0, sT0, sT1))
        if NX == 4: bits(a, 28, [(2, 4, 11), (0, 2, 7)])
        else:
            a('s_lshr_b32 s%d, s%d, 4' % (sT1, sMem))
            a('s_lshl_b32 s%d, s%d, 8' % (sT1, sT1))
            a('s_add_u32 s%d, s%d, s%d' % (sT0, sT0, sT1))
            bits(a, 28, [(1, 5, 11), (0, 1, 7)])
        for i, srd in enumerate((S_AK, S_AV, S_AQ)): a('buffer_load_dword v%d, v28, s[%d:%d], s%d offen' % (20 + i, srd, srd + 3, sT0))
        a('s_lshl_b32 s%d, s%d, 5' % (sT0, sTeam))
        a('s_add_u32 s%d, s%d, s%d' % (sT0, sT0, sMem))
        a('s_lshl_b32 s%d, s%d, 2' % (sT0, sT0))
        a('s_add_u32 s%d, s%d, s%d' % (sT0, sT0, sW))
        a('s_lshl_b32 s%d, s%d, 13' % (sT0, sT0))
        a('v_lshlrev_b32 v28, 7, v0')
        a('buffer_load_dword v23, v28, s[%d:%d], s%d offen' % (S_AH, S_AH + 3, sT0))
    def run(s, sKq=None, sCb=None):
        a = s.a
        WO = sKq is not None
        CH, L_H, HC = s.CH, s.L_H, s.HC
        sD0, sWs, sWl, sRaw = 45, 46, 47, 56
        vRow, vW, vG, vBp, vY, vHl, vHw, vWs, vWr, vT = 1, 2, 3, 4, 5, 6, 7, 8, 9, 10
        vKV = 32; vC = 64; vK = 104; vV = 148; vE = 180; hw = 232
        vm = []
        def issue(tag, x): a(x); vm.append(tag)
        def wait(tag):
            k = max(i for i, t in enumerate(vm) if t == tag)
            a('s_waitcnt vmcnt(%d)' % (len(vm) - 1 - k))
        a('s_barrier')
        a('s_lshl_b32 s%d, s%d, 5' % (sD0, sTeam))
        a('s_add_u32 s%d, s%d, s%d' % (sD0, sD0, sMem))
        a('s_load_dwordx2 s[72:73], s[0:1], %d' % KA['A_shift'])
        a('s_load_dwordx2 s[74:75], s[0:1], %d' % KA['A_ssmD'])
        a('s_lshl_b32 s%d, s%d, 6' % (sT0, sD0))
        a('s_lshl_b32 s%d, s%d, 4' % (sT1, sD0))
        a('s_waitcnt lgkmcnt(0)')
        a('s_load_dwordx16 s[56:71], s[72:73], s%d' % sT0)
        a('s_load_dwordx4 s[48:51], s[74:75], s%d' % sT1)
        a('s_lshl_b32 s%d, s%d, 20' % (sT0, sW))
        a('s_add_u32 s%d, s%d, s%d' % (sT0, sT0, sT1))
        bits(a, vRow, [(0, 6, 14)], 's%d' % sT0)
        for r in range(-3, 8):
            a('v_add_u32 v%d, 0x%x, v%d' % (vT, (r * 2048) & 0xffffffff, vRow))
            issue('kv', 'buffer_load_dwordx4 %s, v%d, s[%d:%d], 0 offen' % (vr(vK + 4 * (r + 3), 4), vT, S_AK, S_AK + 3))
            if r >= 0: issue('kv', 'buffer_load_dwordx4 %s, v%d, s[%d:%d], 0 offen' % (vr(vV + 4 * r, 4), vT, S_AV, S_AV + 3))
        a('s_lshl_b32 s%d, s%d, 15' % (sT0, sD0))
        a('s_lshl_b32 s%d, s%d, 13' % (sT1, sW))
        a('s_add_u32 s%d, s%d, s%d' % (sT0, sT0, sT1))
        bits(a, vHl, [(0, 6, 4)], 's%d' % sT0)
        def hload(ch):
            if ch: a('v_add_u32 v%d, 4096, v%d' % (vHl, vHl))
            a('v_subrev_u32 v%d, 8, v%d' % (vT + 1, vHl))
            for i in range(4):
                issue('h%d' % ch, 'buffer_load_dwordx2 %s, v%d, s[%d:%d], 0 offen offset:%d' % (vr(hw + 6 * i, 2), vT + 1 if i == 0 else vHl, S_AH, S_AH + 3, 0 if i == 0 else i * 1024 - 8))
                issue('h%d' % ch, 'buffer_load_dwordx4 %s, v%d, s[%d:%d], 0 offen offset:%d' % (vr(hw + 6 * i + 2, 4), vHl, S_AH, S_AH + 3, i * 1024))
        hload(0)
        if WO:
            a('s_lshl_b32 s%d, s%d, 21' % (sWs, sKq))
            a('s_lshl_b32 s%d, s%d, 8' % (sT0, sCb))
            a('s_add_u32 s%d, s%d, s%d' % (sWs, sWs, sT0))
            a('s_lshl_b32 s%d, s%d, 6' % (sT0, sW))
            a('s_add_u32 s%d, s%d, s%d' % (sWs, sWs, sT0))
            bits(a, vWs, [(2, 4, 11), (0, 2, 4)])
            a('s_lshl_b32 s%d, s%d, 13' % (sWl, sW))
            a('s_add_u32 s%d, s%d, %d' % (sWl, sWl, s.L_W))
            bits(a, vWr, [(2, 4, 6), (0, 2, 3)], 's%d' % sWl)
        def wdma(j):
            a('s_add_u32 m0, s%d, %d' % (sWl, (j % 8) * 1024))
            issue('w%d' % j, 'buffer_load_dwordx4 v%d, s[%d:%d], s%d offen lds' % (vWs, S_WO, S_WO + 3, sWs))
            a('s_add_u32 s%d, s%d, 0x8000' % (sWs, sWs))
        def wtr(j):
            wait('w%d' % j)
            for nt in range(2):
                a('ds_read_b64_tr_b16 %s, v%d offset:%d' % (ar(((j // 2) * 2 + nt) * 4 + 2 * (j % 2), 2), vWr, (j % 8) * 1024 + nt * 32))
        for j in range(7 if WO else 0): wdma(j)
        for i in range(4): a('v_mov_b32 v%d, 0' % (vT + 4 + i))
        a('s_lshl_b32 s%d, s%d, 10' % (sT0, sW))
        bits(a, vT, [(0, 6, 4)], 's%d' % sT0)
        a('v_cmp_gt_u32 vcc, 2480, v%d' % vT)
        a('s_and_saveexec_b64 s[72:73], vcc')
        for ch in range(8): a('ds_write_b128 v%d, %s offset:%d' % (vT, vr(vT + 4, 4), ch * CH))
        a('s_mov_b64 exec, 0xffff')
        a('s_mul_i32 s%d, s%d, %d' % (sT2, sW, 4 * HC))
        a('s_add_u32 s%d, s%d, %d' % (sT2, sT2, L_H))
        a('s_add_u32 s%d, s%d, 4096' % (sT0, sT2))
        bits(a, vT, [(2, 2, 12), (2, 2, 6), (0, 2, 4)], 's%d' % sT0)
        a('ds_write_b128 v%d, %s' % (vT, vr(vT + 4, 4)))
        a('s_mov_b64 exec, -1')
        a('s_mul_i32 s%d, s%d, %d' % (sT0, sW, 16 * 80))
        a('s_add_u32 s%d, s%d, %d' % (sT0, sT0, 31 * 80))
        bits(a, vW, [(2, 4, 6), (2, 4, 4), (0, 2, 4)], 's%d' % sT0)
        a('v_and_b32 v%d, 31, v0' % vT)
        a('v_sub_u32 v%d, 31, v%d' % (vT, vT))
        a('v_and_b32 v%d, 3, v%d' % (vT + 1, vT))
        a('v_and_b32 v%d, 28, v%d' % (vT, vT))
        a('v_mul_u32_u24 v%d, %d, v%d' % (vT + 1, HC, vT + 1))
        a('v_lshl_add_u32 v%d, v%d, 1, v%d' % (vT, vT, vT + 1))
        bits(a, vG, [(5, 1, 4)], 's%d' % sT2)
        a('v_add_u32 v%d, v%d, v%d' % (vG, vG, vT))
        a('v_sub_u32 v%d, 63, v0' % vT)
        a('v_lshlrev_b32 v%d, 4, v%d' % (vT, vT))
        a('v_add_u32 v%d, s%d, v%d' % (vHw, sT2, vT))
        a('s_mul_i32 s%d, s%d, %d' % (sT1, sW, 2 * CH))
        bits(a, vBp, [(0, 5, 6), (0, 5, 4), (5, 1, 4)], 's%d' % sT1)
        a('s_add_u32 s%d, s%d, %d' % (sT1, sT1, 31 * 80))
        bits(a, vY, [(0, 5, 6), (0, 5, 4), (5, 1, 3)], 's%d' % sT1)
        a('s_waitcnt lgkmcnt(0)')
        for ch in range(8):
            for j in range(4):
                src = sRaw + 2 * ch + j // 2
                if j % 2 == 0: a('v_lshlrev_b32 v%d, 16, s%d' % (vC + 8 * j + ch, src))
                else:
                    a('s_and_b32 s%d, s%d, 0xffff0000' % (sT0, src))
                    a('v_mov_b32 v%d, s%d' % (vC + 8 * j + ch, sT0))
            if ch % 2 == 0: a('v_lshlrev_b32 v%d, 16, s%d' % (vC + 32 + ch, 48 + ch // 2))
            else:
                a('s_and_b32 s%d, s%d, 0xffff0000' % (sT0, 48 + ch // 2))
                a('v_mov_b32 v%d, s%d' % (vC + 32 + ch, sT0))
        a('s_mov_b32 s72, 0xffff')
        wait('kv')
        s.mark(6)
        def unpack(dst, src):
            a('v_lshlrev_b32 v%d, 16, v%d' % (dst, src))
            a('v_and_b32 v%d, 0xffff0000, v%d' % (dst + 1, src))
        for cp in range(4):
            kf = vE; ac = vE + 22; vf = vE + 38
            for r in range(11): unpack(kf + 2 * r, vK + 4 * r + cp)
            for r in range(8):
                a('v_pk_mul_f32 %s, %s, %s' % (vr(ac + 2 * r, 2), vr(kf + 2 * r, 2), vr(vC + 24 + 2 * cp, 2)))
            for j in (2, 1, 0):
                for r in range(8):
                    a('v_pk_fma_f32 %s, %s, %s, %s' % (vr(ac + 2 * r, 2), vr(kf + 2 * (r + 3 - j), 2), vr(vC + 8 * j + 2 * cp, 2), vr(ac + 2 * r, 2)))
            for r in range(8):
                unpack(vf + 2 * (r % 4), vV + 4 * r + cp)
                a('v_pk_mul_f32 %s, %s, %s' % (vr(ac + 2 * r, 2), vr(ac + 2 * r, 2), vr(vf + 2 * (r % 4), 2)))
            for e in range(2):
                ch = 2 * cp + e
                for k in range(4): a('v_cvt_pk_bf16_f32 v%d, v%d, v%d' % (vKV + 4 * ch + k, ac + 4 * k + e, ac + 4 * k + 2 + e))
                a('ds_write_b128 v%d, %s offset:%d' % (vW, vr(vKV + 4 * ch, 4), ch * CH))
        wj = {'tr': 0}
        for chn in range(2):
            a('v_cmp_ne_u32 vcc, 0, v0')
            wait('h%d' % chn)
            for k in range(2): a('v_cndmask_b32 v%d, 0, v%d, vcc' % (hw + k, hw + k))
            for i in range(4):
                wv = lambda idx: hw + 6 * i + 2 + idx
                for r in range(4):
                    o = vE + 16 * (i % 2) + 4 * r
                    for k in range(4):
                        if r % 2 == 0:
                            x = wv((6 - r - 2 * k) // 2)
                            a('v_alignbit_b32 v%d, v%d, v%d, 16' % (o + k, x, x))
                        else:
                            e0 = (7 - r - 2 * k) // 2
                            a('v_bfi_b32 v%d, s72, v%d, v%d' % (o + k, wv(e0), wv(e0 - 1)))
                    a('ds_write_b128 v%d, %s offset:%d' % (vHw, vr(o, 4), r * HC + (3 - i) * 1024))
                a('s_waitcnt lgkmcnt(4)')
            a('s_waitcnt lgkmcnt(0)')
            if chn == 0:
                a('s_barrier')
                s.mark(7)
                hload(1)
            steps = [(c, kk) for c in range(64) for kk in range(2)]
            NB, AH = 4, 3
            cb = chn * CH
            def rd(i):
                c, kk = steps[i]; m = 2 * c - kk; b = vE + 12 * (i % NB); n = 3
                for h in range(2): a('ds_read_b64 %s, v%d offset:%d' % (vr(b + 2 * h, 2), vG, (126 - m) * 32 + 8 * h))
                a('ds_read_b128 %s, v%d offset:%d' % (vr(b + 4, 4), vBp, cb + (63 - c) * 80 + kk * 32))
                if c < 32:
                    a('ds_read_b128 %s, v%d offset:%d' % (vr(b + 8, 4), vBp, cb + (31 - c) * 80 + kk * 32)); n = 4
                return n
            cnt = [rd(i) for i in range(AH)]
            y0, y1 = vr(vK, 16), vr(vK + 16, 16)
            nm = 0
            for i, (c, kk) in enumerate(steps):
                a('s_waitcnt lgkmcnt(%d)' % sum(cnt[i + 1:]))
                b = vE + 12 * (i % NB)
                a('v_mfma_f32_32x32x16_bf16 %s, %s, %s, %s' % (y1, vr(b, 4), vr(b + 4, 4), '0' if i == 0 else y1))
                n = rd(i + AH) if i + AH < len(steps) else 0
                if c < 32: a('v_mfma_f32_32x32x16_bf16 %s, %s, %s, %s' % (y0, vr(b, 4), vr(b + 8, 4), '0' if i == 0 else y0))
                pm = nm; nm += 2 if c < 32 else 1
                if WO and nm // 6 != pm // 6:
                    j = wj['tr']; wj['tr'] += 1
                    if j >= 1 and j + 6 < 64: wdma(j + 6)
                    wtr(j); n += 2
                if chn == 1 and i % 8 == 4 and i < 64:
                    r = i // 8
                    a('v_add_u32 v%d, 0x%x, v%d' % (vT, r * 2048, vRow))
                    issue('q', 'buffer_load_dwordx4 %s, v%d, s[%d:%d], 0 offen' % (vr(vV + 4 * r, 4), vT, S_AQ, S_AQ + 3))
                cnt.append(n)
            for half in range(2):
                for q in range(4):
                    o = vK + 16 * half + 4 * q
                    for h in range(2): a('v_cvt_pk_bf16_f32 v%d, v%d, v%d' % (o + h, o + 2 * h, o + 1 + 2 * h))
                    a('ds_write_b64 v%d, %s offset:%d' % (vY, vr(o, 2), cb + half * 32 * 80 + q * 16))
        assert not WO or wj['tr'] == 64
        a('s_waitcnt vmcnt(0) lgkmcnt(0)')
        a('s_barrier')
        s.mark(8)
        yb = vK
        for ch in range(8): a('ds_read_b128 %s, v%d offset:%d' % (vr(yb + 4 * ch, 4), vW, ch * CH))
        a('s_lshl_b32 s%d, s%d, 21' % (sT0, sW))
        a('s_lshl_b32 s%d, s%d, 4' % (sT1, sD0))
        a('s_add_u32 s%d, s%d, s%d' % (sT0, sT0, sT1))
        bits(a, vRow, [(0, 6, 15)])
        a('s_waitcnt lgkmcnt(0)')
        for k in range(4):
            for cp in range(4):
                t = vE + 12 * (cp % 2)
                for e in range(2):
                    ch = 2 * cp + e
                    unpack(t + 4 * e, yb + 4 * ch + k)
                    unpack(t + 4 * e + 2, vKV + 4 * ch + k)
                    for h in range(2): a('v_fma_f32 v%d, v%d, v%d, v%d' % (t + 4 * e + h, t + 4 * e + 2 + h, vC + 32 + ch, t + 4 * e + h))
                for h in range(2):
                    q = vV + 4 * (2 * k + h) + cp
                    unpack(t + 8, q)
                    for e in range(2): a('v_mul_f32 v%d, v%d, v%d' % (t + 8 + e, t + 8 + e, t + 4 * e + h))
                    a('v_cvt_pk_bf16_f32 v%d, v%d, v%d' % (q, t + 8, t + 9))
            for h in range(2):
                a('buffer_store_dwordx4 %s, v%d, s[%d:%d], s%d offen' % (vr(vV + 4 * (2 * k + h), 4), vRow, S_OUT, S_OUT + 3, sT0))
                a('s_add_u32 s%d, s%d, 4096' % (sT0, sT0))

class Conv2:
    def mark(s, i): pass
    CH = 7600; L_H = 8 * 7600; HC = 4160
    def __init__(s, a): s.a = a
    def unpack(s, dst, src):
        s.a('v_lshlrev_b32 v%d, 16, v%d' % (dst, src))
        s.a('v_and_b32 v%d, 0xffff0000, v%d' % (dst + 1, src))
    P1R = (20, 21, 22, 140, 48, 64, 108, 172, 220)
    sP1 = 59
    S_AH = S_AH; S_AQ = S_AQ; sDv = 48
    RM = dict(vKV=32, vC=64, vQ=72, vK=104, vE=136, hw0=208)
    ld = dict(sW=sW, s1=sT1, s2=sT2, va=6, vb=7, tmp=31)
    def p1_load(s, S_SH):
        a = s.a
        vRow, vO, vT, vC, vR, vK, vV, vE, vP = s.P1R
        a('s_lshl_b32 s%d, s%d, 5' % (sT2, sTeam))
        a('s_add_u32 s%d, s%d, s%d' % (sT2, sT2, sMem))
        a('s_lshr_b32 s%d, s%d, 3' % (sT3, sT2))
        a('s_and_b32 s%d, s%d, 7' % (sT2, sT2))
        a('s_lshl_b32 s%d, s%d, 2' % (sT2, sT2))
        a('s_add_u32 s%d, s%d, s%d' % (sT2, sT2, sW))
        a('s_lshl_b32 s%d, s%d, 17' % (sT0, sT2))
        a('s_lshl_b32 s%d, s%d, 7' % (sT1, sT3))
        a('s_add_u32 s%d, s%d, s%d' % (sT0, sT0, sT1))
        bits(a, vRow, [(3, 3, 14), (0, 3, 4)], 's%d' % sT0)
        a('s_lshl_b32 s%d, s%d, 9' % (sT0, sT3))
        bits(a, vT, [(0, 3, 6)], 's%d' % sT0)
        for i in range(4): a('buffer_load_dwordx4 %s, v%d, s[%d:%d], 0 offen offset:%d' % (vr(vR + 4 * i, 4), vT, S_SH, S_SH + 3, 16 * i))
        for r in range(-3, 8):
            a('v_add_u32 v%d, 0x%x, v%d' % (vT + 1, (r * 2048) & 0xffffffff, vRow))
            a('buffer_load_dwordx4 %s, v%d, s[%d:%d], 0 offen' % (vr(vK + 4 * (r + 3), 4), vT + 1, S_AK, S_AK + 3))
        for r in range(8):
            a('v_add_u32 v%d, 0x%x, v%d' % (vT + 1, r * 2048, vRow))
            a('buffer_load_dwordx4 %s, v%d, s[%d:%d], 0 offen' % (vr(vV + 4 * r, 4), vT + 1, S_AV, S_AV + 3))
        a('s_lshl_b32 s%d, s%d, 18' % (sT0, sT3))
        a('s_lshl_b32 s%d, s%d, 7' % (sT1, sT2))
        a('s_add_u32 s%d, s%d, s%d' % (sT0, sT0, sT1))
        a('s_add_u32 s%d, s%d, 0x%x' % (s.sP1, sT0, WS_KVT))
        bits(a, vO, [(0, 3, 15), (3, 3, 4)])
    def p1_compute(s):
        a = s.a
        vRow, vO, vT, vC, vR, vK, vV, vE, vP = s.P1R
        for ch in range(8):
            for jp in range(2):
                src = vR + 2 * ch + jp
                a('v_lshlrev_b32 v%d, 16, v%d' % (vC + 8 * (2 * jp) + ch, src))
                a('v_and_b32 v%d, 0xffff0000, v%d' % (vC + 8 * (2 * jp + 1) + ch, src))
        for cp in range(4):
            kf = vE; ac = vE + 22; vf = vE + 38
            for r in range(11): s.unpack(kf + 2 * r, vK + 4 * r + cp)
            for r in range(8):
                a('v_pk_mul_f32 %s, %s, %s' % (vr(ac + 2 * r, 2), vr(kf + 2 * r, 2), vr(vC + 24 + 2 * cp, 2)))
            for j in (2, 1, 0):
                for r in range(8):
                    a('v_pk_fma_f32 %s, %s, %s, %s' % (vr(ac + 2 * r, 2), vr(kf + 2 * (r + 3 - j), 2), vr(vC + 8 * j + 2 * cp, 2), vr(ac + 2 * r, 2)))
            for r in range(8):
                s.unpack(vf + 2 * (r % 4), vV + 4 * r + cp)
                a('v_pk_mul_f32 %s, %s, %s' % (vr(ac + 2 * r, 2), vr(ac + 2 * r, 2), vr(vf + 2 * (r % 4), 2)))
            for e in range(2):
                ch = 2 * cp + e
                for k in range(4): a('v_cvt_pk_bf16_f32 v%d, v%d, v%d' % (vP + 4 * ch + k, ac + 4 * k + e, ac + 4 * k + 2 + e))
                a('buffer_store_dwordx4 %s, v%d, s[%d:%d], s%d offen sc1' % (vr(vP + 4 * ch, 4), vO, S_WS, S_WS + 3, s.sP1))
                a('s_add_u32 s%d, s%d, 4096' % (s.sP1, s.sP1))
    def hload(s, hi, sIdx):
        a = s.a
        vHl, vX, hw0 = s.ld['va'], s.ld['vb'], s.RM['hw0']
        sW, sT1, sT2 = s.ld['sW'], s.ld['s1'], s.ld['s2']
        a('s_lshl_b32 s%d, s%d, 15' % (sT1, sIdx))
        a('s_lshl_b32 s%d, s%d, 13' % (sT2, sW))
        a('s_add_u32 s%d, s%d, s%d' % (sT1, sT1, sT2))
        bits(a, vHl, [(0, 6, 4)], 's%d' % sT1, s.ld['tmp'])
        for ch in range(2):
            hw = hw0 + 24 * ch
            if ch: a('v_add_u32 v%d, 4096, v%d' % (vHl, vHl))
            a('v_subrev_u32 v%d, 8, v%d' % (vX, vHl))
            for i in range(4 if hi else 2):
                a('buffer_load_dwordx2 %s, v%d, s[%d:%d], 0 offen offset:%d' % (vr(hw + 6 * i, 2), vX if i == 0 else vHl, s.S_AH, s.S_AH + 3, 0 if i == 0 else i * 1024 - 8))
                a('buffer_load_dwordx4 %s, v%d, s[%d:%d], 0 offen offset:%d' % (vr(hw + 6 * i + 2, 4), vHl, s.S_AH, s.S_AH + 3, i * 1024))
    def kvload(s, hi, sIdx):
        a = s.a
        sW, sT1, sT2, vb = s.ld['sW'], s.ld['s1'], s.ld['s2'], s.ld['vb']
        a('s_lshl_b32 s%d, s%d, 15' % (sT2, sIdx))
        a('s_lshl_b32 s%d, s%d, 10' % (sT1, sW))
        a('s_add_u32 s%d, s%d, s%d' % (sT2, sT2, sT1))
        a('s_add_u32 s%d, s%d, 0x%x' % (sT2, sT2, WS_KVT))
        if not hi:
            a('s_cmp_lt_u32 s%d, 2' % sW)
            a('s_cselect_b32 s%d, s%d, 0x%x' % (sT2, sT2, WS_DUMP))
        a('v_lshlrev_b32 v%d, 4, v0' % vb)
        for ch in range(8):
            a('buffer_load_dwordx4 %s, v%d, s[%d:%d], s%d offen sc1' % (vr(s.RM['vKV'] + 4 * ch, 4), vb, S_WS, S_WS + 3, sT2))
            a('s_add_u32 s%d, s%d, 4096' % (sT2, sT2))
    def core(s, wait_p1, hi, sIdx, pre_h=False):
        a = s.a
        CH, L_H, HC = s.CH, s.L_H, s.HC
        sD0, sCh = 45, 56
        vRow, vW, vG, vBp, vY, vHl, vHw, vR, vT = 1, 2, 3, 4, 5, 6, 7, 8, 10
        vKV, vC, vQ, vK, vE, hw0 = [s.RM[k] for k in ('vKV', 'vC', 'vQ', 'vK', 'vE', 'hw0')]
        NI = 4 if hi else 2
        tg = 'h' if hi else 'l'
        FULL = hi == 2
        if FULL: hi = 0
        RW = 4 if FULL else 2
        a('s_mov_b32 s%d, s%d' % (sD0, sIdx))
        if s.sDv == 48: a('s_load_dwordx2 s[74:75], s[0:1], %d' % KA['A_ssmD'])
        if not pre_h: s.hload(hi, sIdx)
        if not pre_h: s.kvload(hi, sIdx)
        a('s_lshl_b32 s%d, s%d, 4' % (sT1, sD0))
        if s.sDv == 48:
            a('s_waitcnt lgkmcnt(0)')
            a('s_load_dwordx4 s[48:51], s[74:75], s%d' % sT1)
        a('s_lshl_b32 s%d, s%d, %d' % (sT0, sW, 19 + FULL))
        a('s_add_u32 s%d, s%d, s%d' % (sT0, sT0, sT1))
        if hi: a('s_add_u32 s%d, s%d, 0x200000' % (sT0, sT0))
        bits(a, vRow, [(0, 6, 13 + FULL)], 's%d' % sT0)
        def qld():
            for r in range(0 if FULL else 4):
                a('buffer_load_dwordx4 %s, v%d, s[%d:%d], 0 offen offset:%d' % (vr(vQ + 4 * r, 4), vRow, s.S_AQ, s.S_AQ + 3, (r % 2) * 2048))
                if r == 1: a('v_add_u32 v%d, 4096, v%d' % (vRow, vRow))
        qld()
        a('s_barrier')
        for i in range(4): a('v_mov_b32 v%d, 0' % (vT + 4 + i))
        a('s_lshl_b32 s%d, s%d, 10' % (sT0, sW))
        bits(a, vT, [(0, 6, 4)], 's%d' % sT0)
        a('v_cmp_gt_u32 vcc, 2480, v%d' % vT)
        a('s_and_saveexec_b64 s[72:73], vcc')
        for ch in range(8): a('ds_write_b128 v%d, %s offset:%d' % (vT, vr(vT + 4, 4), ch * CH))
        a('s_mov_b64 exec, 0xffff')
        a('s_mul_i32 s%d, s%d, %d' % (sT2, sW, 4 * HC))
        a('s_add_u32 s%d, s%d, %d' % (sT2, sT2, L_H))
        a('s_add_u32 s%d, s%d, 4096' % (sT0, sT2))
        bits(a, vT, [(2, 2, 12), (2, 2, 6), (0, 2, 4)], 's%d' % sT0)
        a('ds_write_b128 v%d, %s' % (vT, vr(vT + 4, 4)))
        a('s_mov_b64 exec, -1')
        a('s_mul_i32 s%d, s%d, %d' % (sT0, sW, 16 * 80))
        a('s_add_u32 s%d, s%d, %d' % (sT0, sT0, 31 * 80))
        bits(a, vW, [(2, 4, 6), (2, 4, 4), (0, 2, 4)], 's%d' % sT0)
        a('s_mul_i32 s%d, s%d, %d' % (sT0, sW, 8 * 80))
        a('s_add_u32 s%d, s%d, %d' % (sT0, sT0, (31 + 32 * hi) * 80))
        bits(a, vR, [(3, 3, 6), (3, 3, 4), (0, 3, 3)], 's%d' % sT0)
        a('v_and_b32 v%d, 31, v0' % vT)
        a('v_sub_u32 v%d, 31, v%d' % (vT, vT))
        a('v_and_b32 v%d, 3, v%d' % (vT + 1, vT))
        a('v_and_b32 v%d, 28, v%d' % (vT, vT))
        a('v_mul_u32_u24 v%d, %d, v%d' % (vT + 1, HC, vT + 1))
        a('v_lshl_add_u32 v%d, v%d, 1, v%d' % (vT, vT, vT + 1))
        bits(a, vG, [(5, 1, 4)], 's%d' % sT2)
        a('v_add_u32 v%d, v%d, v%d' % (vG, vG, vT))
        a('v_sub_u32 v%d, 63, v0' % vT)
        a('v_lshlrev_b32 v%d, 4, v%d' % (vT, vT))
        a('v_add_u32 v%d, s%d, v%d' % (vHw, sT2, vT))
        a('s_mul_i32 s%d, s%d, %d' % (sT1, sW, 2 * CH))
        bits(a, vBp, [(0, 5, 6), (0, 5, 4), (5, 1, 4)], 's%d' % sT1)
        a('s_add_u32 s%d, s%d, %d' % (sT1, sT1, (31 + 32 * hi) * 80))
        bits(a, vY, [(0, 5, 6), (0, 5, 4), (5, 1, 3)], 's%d' % sT1)
        a('s_mov_b32 s72, 0xffff')
        a('s_waitcnt vmcnt(%d) lgkmcnt(0)' % (0 if FULL else 4))
        s.mark(6)
        for ch in range(8): a('ds_write_b128 v%d, %s offset:%d' % (vW, vr(vKV + 4 * ch, 4), ch * CH))
        for ch in range(8):
            if ch % 2 == 0: a('v_lshlrev_b32 v%d, 16, s%d' % (vC + ch, s.sDv + ch // 2))
            else:
                a('s_and_b32 s%d, s%d, 0xffff0000' % (sT0, s.sDv + ch // 2))
                a('v_mov_b32 v%d, s%d' % (vC + ch, sT0))
        if not FULL:
            a('s_waitcnt lgkmcnt(0)')
            a('s_barrier')
            for ch in range(8): a('ds_read_b64 %s, v%d offset:%d' % (vr(vKV + 2 * ch, 2), vR, ch * CH))
        a('s_mov_b32 s%d, 0' % sCh)
        a.label('L_cv2' + tg)
        hw = hw0
        a('v_cmp_ne_u32 vcc, 0, v0')
        for k in range(2): a('v_cndmask_b32 v%d, 0, v%d, vcc' % (hw + k, hw + k))
        for i in range(NI):
            wv = lambda idx: hw + 6 * i + 2 + idx
            for r in range(4):
                o = vE + 16 * (i % 2) + 4 * r
                for k in range(4):
                    if r % 2 == 0:
                        x = wv((6 - r - 2 * k) // 2)
                        a('v_alignbit_b32 v%d, v%d, v%d, 16' % (o + k, x, x))
                    else:
                        e0 = (7 - r - 2 * k) // 2
                        a('v_bfi_b32 v%d, s72, v%d, v%d' % (o + k, wv(e0), wv(e0 - 1)))
                a('ds_write_b128 v%d, %s offset:%d' % (vHw, vr(o, 4), r * HC + (3 - i) * 1024))
            a('s_waitcnt lgkmcnt(4)')
        a('s_waitcnt lgkmcnt(0)')
        a('s_barrier')
        if FULL:
            steps = [(c, kk) for c in range(32) for kk in range(2)]
            NB, AH = 4, 2
            def rd(i):
                c, kk = steps[i]; m = 2 * c - kk; b = vE + 16 * (i % NB)
                return (['ds_read_b64 %s, v%d offset:%d' % (vr(b + 2 * h, 2), vG, (126 - m) * 32 + 8 * h) for h in range(2)] +
                        ['ds_read_b128 %s, v%d offset:%d' % (vr(b + 4, 4), vBp, (63 - c) * 80 + kk * 32),
                         'ds_read_b128 %s, v%d offset:%d' % (vr(b + 8, 4), vBp, (31 - c) * 80 + kk * 32)] +
                        ['ds_read_b64 %s, v%d offset:%d' % (vr(b + 12 + 2 * h, 2), vG, (62 - m) * 32 + 8 * h) for h in range(2)])
            for i in range(AH):
                for x in rd(i): a(x)
            y0, y1 = vr(vK, 16), vr(vK + 16, 16)
            for i in range(64):
                a('s_waitcnt lgkmcnt(%d)' % (6 if i < 63 else 0))
                b = vE + 16 * (i % NB)
                nx = rd(i + AH) if i + AH < 64 else []
                a('v_mfma_f32_32x32x16_bf16 %s, %s, %s, %s' % (y1, vr(b, 4), vr(b + 4, 4), '0' if i == 0 else y1))
                for x in nx[:2]: a(x)
                a('v_mfma_f32_32x32x16_bf16 %s, %s, %s, %s' % (y0, vr(b, 4), vr(b + 8, 4), '0' if i == 0 else y0))
                for x in nx[2:4]: a(x)
                a('v_mfma_f32_32x32x16_bf16 %s, %s, %s, %s' % (y1, vr(b + 12, 4), vr(b + 8, 4), y1))
                for x in nx[4:]: a(x)
                if i < 24: a('v_mov_b32 v%d, v%d' % (hw + i, hw + 24 + i))
                if i == 0: a('s_waitcnt vmcnt(0)')
                if i < 16: a('v_mov_b32 v%d, v%d' % (vQ + i, vQ + 16 + i))
                if i >= 16 and i % 8 == 4 and i < 48:
                    a('buffer_load_dwordx4 %s, v%d, s[%d:%d], 0 offen' % (vr(vQ + 16 + 4 * (i // 8 - 2), 4), vRow, s.S_AQ, s.S_AQ + 3))
                    a('v_add_u32 v%d, 2048, v%d' % (vRow, vRow))
            for half in range(2):
                for q in range(4):
                    o = vK + 16 * half + 4 * q
                    for h in range(2): a('v_cvt_pk_bf16_f32 v%d, v%d, v%d' % (o + h, o + 2 * h, o + 1 + 2 * h))
                    a('ds_write_b64 v%d, %s offset:%d' % (vY, vr(o, 2), half * 32 * 80 + q * 16))
        else:
            steps = [(c, kk) for c in range(64 if hi else 32) for kk in range(2)]
            NB, AH = 6, 4
            n = len(steps)
            def rd(i):
                c, kk = steps[i]; m = 2 * c - kk; b = vE + 8 * (i % NB)
                return (['ds_read_b64 %s, v%d offset:%d' % (vr(b + 2 * h, 2), vG, (126 - m) * 32 + 8 * h) for h in range(2)] +
                        ['ds_read_b128 %s, v%d offset:%d' % (vr(b + 4, 4), vBp, (31 + 32 * hi - c) * 80 + kk * 32)])
            for i in range(AH):
                for x in rd(i): a(x)
            y = vr(vK, 16)
            for i in range(n):
                a('s_waitcnt lgkmcnt(%d)' % (3 * min(AH - 1, n - 1 - i)))
                b = vE + 8 * (i % NB)
                a('v_mfma_f32_32x32x16_bf16 %s, %s, %s, %s' % (y, vr(b, 4), vr(b + 4, 4), '0' if i == 0 else y))
                if i + AH < n:
                    for x in rd(i + AH): a(x)
                if i < 6 * NI: a('v_mov_b32 v%d, v%d' % (hw + i, hw + 24 + i))
            for q in range(4):
                o = vK + 4 * q
                for h in range(2): a('v_cvt_pk_bf16_f32 v%d, v%d, v%d' % (o + h, o + 2 * h, o + 1 + 2 * h))
                a('ds_write_b64 v%d, %s offset:%d' % (vY, vr(o, 2), q * 16))
        a('v_add_u32 v%d, %d, v%d' % (vBp, CH, vBp))
        a('v_add_u32 v%d, %d, v%d' % (vY, CH, vY))
        a('s_add_u32 s%d, s%d, 1' % (sCh, sCh))
        a('s_cmp_lt_u32 s%d, 2' % sCh)
        a('s_cbranch_scc1 L_cv2' + tg)
        a('s_waitcnt lgkmcnt(0)')
        a('s_barrier')
        s.mark(8)
        yb = vK
        for ch in range(8): a('ds_read_b%d %s, v%d offset:%d' % (32 * RW, vr(yb + RW * ch, RW), vW if FULL else vR, ch * CH))
        a('s_lshl_b32 s%d, s%d, %d' % (sT0, sW, 20 + FULL))
        a('s_lshl_b32 s%d, s%d, 4' % (sT1, sD0))
        a('s_add_u32 s%d, s%d, s%d' % (sT0, sT0, sT1))
        if hi: a('s_add_u32 s%d, s%d, 0x400000' % (sT0, sT0))
        bits(a, vRow, [(0, 6, 14 + FULL)])
        a('s_waitcnt vmcnt(0) lgkmcnt(0)')
        for k in range(RW):
            for cp in range(4):
                t = vE + 12 * (cp % 2)
                for e in range(2):
                    ch = 2 * cp + e
                    s.unpack(t + 4 * e, yb + RW * ch + k)
                    s.unpack(t + 4 * e + 2, vKV + RW * ch + k)
                    for h in range(2): a('v_fma_f32 v%d, v%d, v%d, v%d' % (t + 4 * e + h, t + 4 * e + 2 + h, vC + ch, t + 4 * e + h))
                for h in range(2):
                    q = vQ + 4 * (2 * k + h) + cp
                    s.unpack(t + 8, q)
                    for e in range(2): a('v_mul_f32 v%d, v%d, v%d' % (t + 8 + e, t + 8 + e, t + 4 * e + h))
                    a('v_cvt_pk_bf16_f32 v%d, v%d, v%d' % (q, t + 8, t + 9))
            for h in range(2):
                a('buffer_store_dwordx4 %s, v%d, s[%d:%d], s%d offen' % (vr(vQ + 4 * (2 * k + h), 4), vRow, S_OUT, S_OUT + 3, sT0))
                a('s_add_u32 s%d, s%d, 4096' % (sT0, sT0))
```

```python
import math, struct
from ag import *
from common import *

def f2u(x): return struct.unpack('<I', struct.pack('<f', x))[0]

L_R, L_P, L_KX, L_VX = 0, 20480, 32768, 65536
R_W, R_T, R_G = 4864, 776, 192
L_END = 131072
QKV_G = 12288
QKV_SLOT = 16 * QKV_G
PART_SLOT = 524288
WS_PART = 160 * MB
MT_SLOT = 131072

S_WS, S_WQ, S_WK, S_WV, S_WO, S_M0, S_DBG = 4, 8, 12, 16, 20, 24, 28
sW, sX, sC, sG, sJ, sStep, sLocal, sTmo = 32, 33, 34, 35, 36, 37, 38, 39
sQKst, sVst, sPARTst, sREDld, sMTst, sMTld, sCld, sKVMst, sKVoff = 40, 41, 42, 43, 44, 45, 46, 47, 48
sT0, sT1, sT2, sT3 = 49, 50, 51, 52
sA, sB, sCc, sD, sE, sF, sH = 53, 54, 55, 56, 57, 58, 59
sHiMask = 60
sTS = 62
sPrev = 64
sLdsC = 65
sScale = 66
sAcc = 68
sWarm = 84
sStMask = 86
sP = 88
sKst = 96
sK2 = 97
vL16, vL4, vRw, vRr, vRr2, vPw, vPw2, vKX, vVX, vIdx, vGate, vRed, vMld, vMst = range(1, 15)
vT = 16
vSent = 28
vD = 32
vU = 64
vWo2 = 128
vM = 192
vF = 224
vSel = 240
vK = 64
vX = 96

def wo(tt, off, n):
    return ar(192 + 32 * tt + off, n) if tt < 2 else vr(vWo2 + 32 * (tt - 2) + off, n)

class Chain:
    def __init__(s, a, prof=False, nsteps=64, opt=None):
        s.a = a; s.prof = prof; s.nsteps = nsteps; s.opt = opt or {}
        s.NX = s.opt.get('NX', 4); s.NP = s.NX // 4
    def stamp(s, i):
        a = s.a
        if s.opt.get('trace'):
            if i in s.opt['trace']:
                a('s_memrealtime s[%d:%d]' % (sTS, sTS + 1))
                a('s_waitcnt lgkmcnt(0)')
                a('s_mov_b32 m0, s%d' % sStep)
                a('s_nop 0')
                a('v_writelane_b32 v%d, s%d, m0' % (244 + i, sTS))
            return
        if not s.prof: return
        if s.opt.get('gprof') is not None:
            if i < 20: return
            i -= 20
        elif i >= 20: return
        a('s_memtime s[%d:%d]' % (sTS, sTS + 1))
        a('s_waitcnt lgkmcnt(0)')
        a('s_sub_u32 s%d, s%d, s%d' % (sTS + 1, sTS, sPrev))
        a('s_add_u32 s%d, s%d, s%d' % (sAcc + i, sAcc + i, sTS + 1))
        a('s_mov_b32 s%d, s%d' % (sPrev, sTS))
    def count(s, i):
        if s.prof: s.a('s_add_u32 s%d, s%d, 1' % (sAcc + i, sAcc + i))
    def st(s, data, voff, soff, off=0, n=1, sc1=True):
        op = {1: 'buffer_store_dword', 2: 'buffer_store_dwordx2', 4: 'buffer_store_dwordx4'}[n]
        s.a('%s %s, v%d, s[%d:%d], s%d offen offset:%d%s' % (op, vr(data, n), voff, S_WS, S_WS + 3, soff, off, ' sc1' if sc1 else ''))
    def lst(s, data, voff, soff, off=0, n=1): s.st(data, voff, soff, off, n, sc1=not s.local)
    def dma(s, soff, off, voff=vL16): s.a('buffer_load_dwordx4 v%d, s[%d:%d], s%d offen offset:%d sc1 lds' % (voff, S_WS, S_WS + 3, soff, off))
    def delay(s, key):
        for i in range(s.opt.get(key, 0)): s.a('s_nop 7')
    def tmo(s, retry):
        a = s.a
        a('s_sub_u32 s%d, s%d, 1' % (sTmo, sTmo))
        a('s_cbranch_scc0 %s' % retry)
        a('s_branch L_chain_fail')
    def maxtree(s, base, n, dst, first=True):
        a = s.a
        i = 0
        if first:
            a('v_max3_u32 v%d, v%d, v%d, v%d' % (dst, base, base + 1, base + 2)); i = 3
        while i + 1 < n:
            a('v_max3_u32 v%d, v%d, v%d, v%d' % (dst, dst, base + i, base + i + 1)); i += 2
        if i < n: a('v_max_u32 v%d, v%d, v%d' % (dst, dst, base + i))
    def halfsum(s, d, dst=None):
        s.a('v_pk_add_f32 %s, %s, %s' % (vr(d if dst is None else dst, 2), vr(d, 2), vr(d + 2, 2)))
    def zero(s, regs):
        regs = list(regs)
        for i in range(0, len(regs), 2):
            assert regs[i] % 2 == 0 and regs[i + 1] == regs[i] + 1
            s.a('v_mov_b64 %s, 0' % vr(regs[i], 2))
    def hopb_s1(s, tag, tail=None, after=()):
        if not s.opt.get('tree', True): return s.hopb_seq(tag, tail)
        if s.opt.get('queue'): return s.hopb_q(tag, after)
        a = s.a
        def ld(u): a('buffer_load_dwordx4 %s, v%d, s[%d:%d], s%d offen offset:%d sc1' % (vr(vM + 4 * u, 4), vMld, S_WS, S_WS + 3, sH, u * 1024))
        def chk(u, n):
            return ['s_waitcnt vmcnt(%d)' % n,
                    'v_max3_u32 v%d, v%d, v%d, v%d' % (vT, vM + 4 * u, vM + 4 * u + 1, vM + 4 * u + 2),
                    'v_max_u32 v%d, v%d, v%d' % (vT, vT, vM + 4 * u + 3),
                    'v_cmp_eq_u32 vcc, -1, v%d' % vT]
        def mf(u, t6): a('v_smfmac_f32_16x16x64_bf16 %s, %s, %s, v%d' % (vr(vD + 4 * t6, 4), vr(vM + 4 * u, 4), ar((t6 * 4 + u) * 8, 8), vIdx))
        nm = lambda kind, F, R: 'L_b%s_%s_%s_%s' % (kind, ''.join(map(str, F)), ''.join(map(str, R)), tag)
        todo, seen = [], set()
        def want(kind, F, R):
            key = (kind, F, R)
            if key not in seen: seen.add(key); todo.append(key)
            return nm(kind, F, R)
        def chain(F, R):
            while True:
                u, rest = R[0], R[1:]
                a('s_cbranch_vccnz %s' % want('f', F + (u,), rest))
                if rest:
                    c = chk(rest[0], len(rest) - 1)
                    mf(u, 0); mf(u, 1); a(c[0]); a(c[1]); mf(u, 2); a(c[2]); a(c[3]); mf(u, 3); mf(u, 4); mf(u, 5)
                    R = rest
                    continue
                if F:
                    for x in F: ld(x)
                    for t6 in range(6): mf(u, t6)
                    a('s_branch %s' % want('c', (), F))
                else:
                    for t6 in range(6): mf(u, t6)
                    a('s_branch L_loop_%s' % tag)
                return
        for u in range(4): ld(u)
        for x in after: a(x)
        seen.add(('c', (), (0, 1, 2, 3)))
        a.label(nm('c', (), (0, 1, 2, 3)))
        for x in chk(0, 3): a(x)
        chain((), (0, 1, 2, 3))
        def stubs():
            while todo:
                kind, F, R = todo.pop(0)
                if kind == 'c' and (kind, F, R, 'done') in seen: continue
                a.label(nm(kind, F, R))
                if kind == 'f' and not R:
                    for x in F: ld(x)
                    s.count(11)
                    a('s_sub_u32 s%d, s%d, 1' % (sTmo, sTmo))
                    a('s_cbranch_scc1 L_chain_fail')
                    if ('c', (), F) in emitted:
                        a('s_branch %s' % nm('c', (), F))
                        continue
                    seen.add(('c', (), F)); seen.add(('c', (), F, 'done'))
                    a.label(nm('c', (), F))
                    F, R = (), F
                    kind = 'c'
                if kind == 'c': emitted.add(('c', F, R))
                for x in chk(R[0], len(R) - 1): a(x)
                chain(F, R)
        emitted = {('c', (), (0, 1, 2, 3))}
        return stubs
    def hopb_q(s, tag, after):
        a = s.a
        def ld(u): a('buffer_load_dwordx4 %s, v%d, s[%d:%d], s%d offen offset:%d sc1' % (vr(vM + 4 * u, 4), vMld, S_WS, S_WS + 3, sH, u * 1024))
        def chk(u, n):
            return ['s_waitcnt vmcnt(%d)' % n,
                    'v_max3_u32 v%d, v%d, v%d, v%d' % (vT, vM + 4 * u, vM + 4 * u + 1, vM + 4 * u + 2),
                    'v_max_u32 v%d, v%d, v%d' % (vT, vT, vM + 4 * u + 3),
                    'v_cmp_eq_u32 vcc, -1, v%d' % vT]
        def mf(u, t6): a('v_smfmac_f32_16x16x64_bf16 %s, %s, %s, v%d' % (vr(vD + 4 * t6, 4), vr(vM + 4 * u, 4), ar((t6 * 4 + u) * 8, 8), vIdx))
        nm = lambda k, Q: 'L_q%s%s_%s' % (k, ''.join(map(str, Q)), tag)
        todo, want, done = [], set(), set()
        pos = s.opt.get('qpos', 4)
        def chain(Q, early):
            while True:
                if Q in done:
                    a('s_branch %s' % nm('t', Q)); return
                if not early:
                    done.add(Q); a.label(nm('t', Q))
                if Q not in want: want.add(Q); todo.append(Q)
                a('s_cbranch_vccnz %s' % nm('f', Q))
                u, rest = Q[0], Q[1:]
                if not rest:
                    for t6 in range(6): mf(u, t6)
                    a('s_branch L_loop_%s' % tag); return
                c = chk(rest[0], len(rest) - 1)
                p = 2 if early else pos
                for t6 in range(6):
                    if t6 == p: a(c[0]); a(c[1])
                    if t6 == p + 1: a(c[2]); a(c[3])
                    mf(u, t6)
                if p >= 6: a(c[0]); a(c[1])
                if p + 1 >= 6: a(c[2]); a(c[3])
                Q = rest
        for u in range(4): ld(u)
        for x in after: a(x)
        for x in chk(0, 3): a(x)
        chain((0, 1, 2, 3), True)
        def stubs():
            while todo:
                Q = todo.pop(0)
                a.label(nm('f', Q))
                ld(Q[0])
                R = Q[1:] + Q[:1]
                if Q[0] == max(Q):
                    s.count(11)
                    a('s_sub_u32 s%d, s%d, 1' % (sTmo, sTmo))
                    a('s_cbranch_scc1 L_chain_fail')
                for x in chk(R[0], len(R) - 1): a(x)
                if R in done:
                    a('s_cbranch_vccnz %s' % nm('f', R))
                chain(R, False)
        return stubs
    def hopb_seq(s, tag, tail=None):
        a = s.a
        def ld(u): a('buffer_load_dwordx4 %s, v%d, s[%d:%d], s%d offen offset:%d sc1' % (vr(vM + 4 * u, 4), vMld, S_WS, S_WS + 3, sH, u * 1024))
        def chk(u):
            return ['s_waitcnt vmcnt(%d)' % (3 - u),
                    'v_max3_u32 v%d, v%d, v%d, v%d' % (vT, vM + 4 * u, vM + 4 * u + 1, vM + 4 * u + 2),
                    'v_max_u32 v%d, v%d, v%d' % (vT, vT, vM + 4 * u + 3),
                    'v_cmp_eq_u32 vcc, -1, v%d' % vT]
        def mf(u, t6): a('v_smfmac_f32_16x16x64_bf16 %s, %s, %s, v%d' % (vr(vD + 4 * t6, 4), vr(vM + 4 * u, 4), ar((t6 * 4 + u) * 8, 8), vIdx))
        for u in range(4): ld(u)
        for x in chk(0): a(x)
        for u in range(4):
            a('s_cbranch_vccnz L_b%d_retry_%s' % (u, tag))
            a.label('L_b%d_ok_%s' % (u, tag))
            if u < 3:
                c = chk(u + 1)
                mf(u, 0); mf(u, 1); a(c[0]); a(c[1]); mf(u, 2); a(c[2]); a(c[3]); mf(u, 3); mf(u, 4); mf(u, 5)
            else:
                for t6 in range(6):
                    mf(u, t6)
                    if tail and t6 < len(tail): tail[t6]()
        a('s_branch L_loop_%s' % tag)
        def stubs():
            for u in range(4):
                a.label('L_b%d_retry_%s' % (u, tag))
                s.count(11)
                a('s_sub_u32 s%d, s%d, 1' % (sTmo, sTmo))
                a('s_cbranch_scc1 L_chain_fail')
                for uu in range(u, 4): ld(uu)
                for x in chk(u): a(x)
                a('s_cbranch_vccnz L_b%d_retry_%s' % (u, tag))
                a('s_branch L_b%d_ok_%s' % (u, tag))
        return stubs
    def s1unit(s, u, base=vM):
        for t6 in range(6):
            s.a('v_smfmac_f32_16x16x64_bf16 %s, %s, %s, v%d' % (vr(vD + 4 * t6, 4), vr(base + 4 * u, 4), ar((t6 * 4 + u) * 8, 8), vIdx))
    def ux(s, hooks=None):
        a = s.a
        hooks = hooks or {}
        seq = [(hl, tau, t) for hl in range(2) for tau in range(2) for t in range(4)]
        def rd(i):
            hl, tau, t = seq[i]
            a('ds_read_b128 %s, v%d offset:%d' % (vr(vM + 4 * (i % 8), 4), vVX, hl * 8192 + tau * 4096 + t * 1024))
        for i in range(6): rd(i)
        def cvt(gi, tt, h):
            hl, tau = gi // 2, gi % 2
            d = vD + 16 * (gi % 2) + 4 * tt
            u = vU + 16 * tt + 8 * hl + 2 * tau
            a('v_cvt_pk_bf16_f32 v%d, v%d, v%d' % (u + h, d + 2 * h, d + 2 * h + 1))
        n = 0
        for i, (hl, tau, t) in enumerate(seq):
            if i + 6 < 16: rd(i + 6)
            a('s_waitcnt lgkmcnt(%d)' % min(6, 15 - i))
            gi = i // 4
            for tt in range(4):
                if n in hooks: hooks[n]()
                n += 1
                d = vD + 16 * (gi % 2) + 4 * tt
                if s.opt.get('noux') and hooks: a('s_nop 3')
                else: a('v_mfma_f32_16x16x32_bf16 %s, %s, %s, %s' % (vr(d, 4), vr(vM + 4 * (i % 8), 4), wo(tt, 16 * hl + 4 * t, 4), '0' if t == 0 else vr(d, 4)))
                if gi > 0 and t >= 2: cvt(gi - 1, tt, t - 2)
        for tt in range(4):
            for h in range(2): cvt(3, tt, h)
        a('v_xor_b32 v%d, 0x4000, v%d' % (vVX, vVX))
    def dma_kv(s, sSeg, wsbase, lds):
        a = s.a
        a('s_lshl_b32 s%d, s%d, 18' % (sT0, sSeg))
        a('s_add_u32 s%d, s%d, s%d' % (sT0, sT0, sKVoff))
        a('s_and_b32 s%d, s%d, 1' % (sT1, sW))
        a('s_lshl_b32 s%d, s%d, 13' % (sT1, sT1))
        a('s_add_u32 s%d, s%d, %s' % (sT1, sT1, lds))
        for tau in range(2):
            a('s_add_u32 s%d, s%d, 0x%x' % (sT0, sT0, wsbase if tau == 0 else 131072))
            a('s_add_u32 m0, s%d, %d' % (sT1, tau * 4096))
            for t in range(4): s.dma(sT0, t * 1024)
    def bits(s, dst, terms, init=None):
        a = s.a
        first = init is None
        if not first: a('v_mov_b32 v%d, %s' % (dst, init))
        for (src, n, sh) in terms:
            a('v_bfe_u32 v%d, v0, %d, %d' % (vT + 11, src, n))
            if first: a('v_lshlrev_b32 v%d, %d, v%d' % (dst, sh, vT + 11)); first = False
            else: a('v_lshl_add_u32 v%d, v%d, %d, v%d' % (dst, vT + 11, sh, dst))
    def init(s):
        a = s.a
        a('s_and_b32 s%d, s2, 7' % sX)
        a('s_lshr_b32 s%d, s2, 3' % sC)
        a('s_and_b32 s%d, s%d, 7' % (sJ, sC))
        a('s_lshr_b32 s%d, s%d, 3' % (sG, sC))
        a('s_mul_i32 s%d, s%d, %d' % (sT0, sX, 16 // s.NX))
        a('s_add_u32 s%d, s%d, s%d' % (sG, sG, sT0))
        s.get_wave()
        vA, vB = vT + 8, vT + 9
        a('s_bitcmp1_b32 s%d, 1' % sJ)
        a('s_cselect_b64 s[%d:%d], s[%d:%d], s[%d:%d]' % (sP, sP + 1, S_WK, S_WK + 1, S_WQ, S_WQ + 1))
        a('s_mov_b32 s%d, 0x%x' % (sP + 2, 8 * MB)); a('s_mov_b32 s%d, 0x20000' % (sP + 3))
        s.bits(vA, [(3, 3, 13), (0, 3, 4)])
        a('s_lshl_b32 s%d, s%d, 9' % (sA, sG))
        a('s_lshl_b32 s%d, s%d, 21' % (sT0, sW))
        a('s_add_u32 s%d, s%d, s%d' % (sA, sA, sT0))
        a('s_lshr_b32 s%d, s%d, 2' % (sT0, sJ))
        a('s_lshl_b32 s%d, s%d, 8' % (sT0, sT0))
        a('s_and_b32 s%d, s%d, 1' % (sT1, sJ))
        a('s_lshl_b32 s%d, s%d, 7' % (sT1, sT1))
        a('s_add_u32 s%d, s%d, s%d' % (sT0, sT0, sT1))
        a('s_add_u32 s%d, s%d, s%d' % (sT0, sT0, sA))
        a('s_lshl_b32 s%d, s%d, 15' % (sT1, sW))
        for i in range(32):
            a('s_add_u32 m0, s%d, %d' % (sT1, i * 1024))
            a('buffer_load_dwordx4 v%d, s[%d:%d], s%d offen%s lds' % (vA, sP, sP + 3, sT0, s.nt(S_WQ)))
            a('s_add_u32 s%d, s%d, 0x10000' % (sT0, sT0))
        s.claim()
        a('s_xor_b32 s%d, s%d, 4' % (sB, sJ))
        a('s_lshl_b32 s%d, s%d, 6' % (sT0, sB))
        a('s_add_u32 s%d, s%d, s%d' % (sT0, sT0, sA))
        a('s_mov_b32 s%d, s%d' % (sE, sT0))
        s.bits(vA, [(2, 4, 13), (0, 2, 4)])
        a('s_lshl_b32 s%d, s%d, 8' % (sT0, sJ))
        s.bits(vT + 6, [(4, 2, 11), (0, 4, 4)], 's%d' % sT0)
        a('s_lshl_b32 s%d, s%d, 19' % (sH, sG))
        a('s_lshl_b32 s%d, s%d, 17' % (sT1, sW))
        a('s_add_u32 s%d, s%d, s%d' % (sH, sH, sT1))
        def ldv(i):
            a('buffer_load_dwordx4 %s, v%d, s[%d:%d], s%d offen' % (vr(64 + 4 * i, 4), vA, S_WV, S_WV + 3, sE))
            a('s_add_u32 s%d, s%d, 0x20000' % (sE, sE))
        def ldo(i):
            a('buffer_load_dwordx4 %s, v%d, s[%d:%d], s%d offen' % (vr(128 + 4 * i, 4), vT + 6, S_WO, S_WO + 3, sH))
            a('s_add_u32 s%d, s%d, 8192' % (sH, sH))
        for i in range(4): ldv(i)
        a('s_mov_b32 s%d, 0x%x' % (sTmo, 400000))
        for i in range(2): a('s_mov_b32 s%d, 0x%x' % (sScale + i, f2u(math.log2(math.e) / math.sqrt(128))))
        for i in range(2): a('s_mov_b32 s%d, 0xcccccccc' % (sHiMask + i))
        for i in range(2): a('s_mov_b32 s%d, 0x00ff00ff' % (sStMask + i))
        a('v_lshlrev_b32 v%d, 4, v0' % vL16)
        a('v_lshlrev_b32 v%d, 2, v0' % vL4)
        for i in range(4): a('v_mov_b32 v%d, -1' % (vSent + i))
        a('v_mov_b32 v%d, 0x4444' % vT)
        a('v_mov_b32 v%d, 0xeeee' % (vT + 1))
        a('v_cndmask_b32 v%d, v%d, v%d, s[%d:%d]' % (vIdx, vT, vT + 1, sHiMask, sHiMask + 1))
        s.bits(vGate, [(0, 6, 7)])
        s.bits(vRed, [(4, 1, 12), (5, 1, 14), (0, 4, 4)])
        LIN = s.opt.get('lin')
        if LIN:
            s.bits(vMld, [(0, 6, 4)])
            s.bits(vMst, [(4, 2, 8), (0, 4, 2)])
        else:
            s.bits(vMld, [(2, 2, 8), (4, 2, 6), (0, 2, 4)])
            s.bits(vMst, [(0, 6, 2)])
        a('s_mul_i32 s%d, s%d, %d' % (sT0, sW, R_W))
        s.bits(vRw, [(0, 4, 3), (4, 2, 7), (4, 2, 6)], 's%d' % sT0)
        a('s_lshr_b32 s%d, s%d, 1' % (sT0, sW))
        a('s_mul_i32 s%d, s%d, %d' % (sT0, sT0, 2 * R_T))
        a('s_and_b32 s%d, s%d, 1' % (sT1, sW))
        a('s_lshl_b32 s%d, s%d, 6' % (sT1, sT1))
        a('s_add_u32 s%d, s%d, s%d' % (sT0, sT0, sT1))
        s.bits(vRr, [(0, 1, 9), (0, 1, 8), (0, 1, 3), (4, 2, 7), (4, 2, 6), (1, 1, 5), (3, 1, 4), (2, 1, 2)], 's%d' % sT0)
        a('v_add_u32 v%d, 8, v%d' % (vRr2, vRr))
        a('v_bfe_u32 v%d, v0, 2, 1' % vT)
        a('v_lshlrev_b32 v%d, 4, v%d' % (vT, vT))
        a('v_mov_b32 v%d, 0x3f80' % (vT + 1))
        a('v_lshlrev_b32 v%d, v%d, v%d' % (vT, vT, vT + 1))
        a('v_bfe_u32 v%d, v0, 0, 2' % (vT + 1))
        for k in range(4):
            a('v_cmp_eq_u32 vcc, %d, v%d' % (k, vT + 1))
            a('v_cndmask_b32 v%d, 0, v%d, vcc' % (vSel + k, vT))
        a('s_and_b32 s%d, s%d, 1' % (sT3, sW))
        a('s_lshl_b32 s%d, s%d, 10' % (sT0, sT3))
        a('s_add_u32 s%d, s%d, %d' % (sT0, sT0, L_P))
        a('v_add_u32 v%d, s%d, v%d' % (vPw, sT0, vL4))
        s.bits(vPw2, [(2, 4, 4), (0, 1, 3), (1, 1, 2)], 's%d' % sT0)
        lh = a.newlabel('Li')
        a('s_cmp_lt_u32 s%d, 2' % sW)
        a('s_cbranch_scc1 %s' % lh)
        s.bits(vPw, [(5, 1, 9), (3, 1, 8), (0, 2, 6), (4, 1, 5), (2, 1, 3)], str(L_P))
        a('v_add_u32 v%d, %d, v%d' % (vPw2, 2 * R_T, vRr))
        a('v_add_u32 v%d, %d, v%d' % (vRed, 2 * R_T + 8, vRr))
        a.label(lh)
        a('s_lshl_b32 s%d, s%d, 13' % (sT0, sT3))
        a('s_add_u32 s%d, s%d, %d' % (sT0, sT0, L_KX))
        a('s_mov_b32 s%d, s%d' % (sLdsC, sT0))
        s.bits(vKX, [(2, 4, 6), (0, 1, 5), (1, 1, 4)], 's%d' % sT0)
        a('v_add_u32 v%d, %d, v%d' % (vVX, L_VX, vL16))
        a('s_mul_i32 s%d, s%d, %d' % (sCld, sG, QKV_G))
        a('s_add_u32 s%d, s%d, 0x%x' % (sCld, sCld, WS_QKV))
        a('s_lshl_b32 s%d, s%d, 10' % (sT0, sJ))
        a('s_lshl_b32 s%d, s%d, 8' % (sT1, sW))
        a('s_add_u32 s%d, s%d, s%d' % (sT0, sT0, sT1))
        a('s_add_u32 s%d, s%d, s%d' % (sQKst, sCld, sT0))
        a('s_lshl_b32 s%d, s%d, 13' % (sT2, sG))
        a('s_add_u32 s%d, s%d, 0x%x' % (sT2, sT2, WS_KVM))
        a('s_add_u32 s%d, s%d, s%d' % (sKst, sT2, sT0))
        a('s_sub_u32 s%d, s%d, 2048' % (sKst, sKst))
        a('s_bitcmp1_b32 s%d, 1' % sJ)
        a('s_cselect_b32 s%d, s%d, 0x%x' % (sKst, sKst, WS_DUMP))
        a('s_lshl_b32 s%d, s%d, 9' % (sT0, sB))
        a('s_lshl_b32 s%d, s%d, 8' % (sT1, sT3))
        a('s_add_u32 s%d, s%d, s%d' % (sT0, sT0, sT1))
        a('s_add_u32 s%d, s%d, s%d' % (sVst, sCld, sT0))
        a('s_add_u32 s%d, s%d, 8192' % (sVst, sVst))
        a('s_and_b32 s%d, s%d, 2048' % (sT1, sT0))
        a('s_add_u32 s%d, s%d, s%d' % (sT0, sT0, sT1))
        a('s_add_u32 s%d, s%d, s%d' % (sKVMst, sT2, sT0))
        a('s_min_u32 s%d, s%d, 2' % (sT0, sW))
        a('s_lshl_b32 s%d, s%d, 12' % (sT0, sT0))
        a('s_add_u32 s%d, s%d, s%d' % (sCld, sCld, sT0))
        a('s_lshl_b32 s%d, s%d, 1' % (sT0, sJ))
        a('s_add_u32 s%d, s%d, s%d' % (sT0, sT0, sT3))
        a('s_lshl_b32 s%d, s%d, 15' % (sT0, sT0))
        a('s_and_b32 s%d, s%d, 8' % (sT1, sG))
        a('s_add_u32 s%d, s%d, s%d' % (sT1, sT1, sG))
        a('s_lshl_b32 s%d, s%d, 10' % (sT1, sT1))
        a('s_add_u32 s%d, s%d, s%d' % (sPARTst, sT0, sT1))
        a('s_add_u32 s%d, s%d, 0x%x' % (sPARTst, sPARTst, WS_PART))
        a('s_lshl_b32 s%d, s%d, 1' % (sT0, sC))
        a('s_add_u32 s%d, s%d, s%d' % (sT0, sT0, sT3))
        a('s_mul_i32 s%d, s%d, %d' % (sT0, sT0, s.NP))
        GL = s.opt.get('glob')
        if GL:
            a('s_lshr_b32 s%d, s%d, 1' % (sT0, sC))
            a('s_lshl4_add_u32 s%d, s%d, s%d' % (sT0, sX, sT0))
        if s.NP == 2: a('v_lshlrev_b32 v%d, 3, v0' % vMst)
        a('s_lshr_b32 s%d, s%d, 2' % (sT1, sT0))
        a('s_lshl_b32 s%d, s%d, 15' % (sREDld, sT1))
        a('s_and_b32 s%d, s%d, 3' % (sT1, sT0))
        a('s_lshl_b32 s%d, s%d, 8' % (sT1, sT1))
        a('s_add_u32 s%d, s%d, s%d' % (sREDld, sREDld, sT1))
        a('s_add_u32 s%d, s%d, 0x%x' % (sREDld, sREDld, WS_PART))
        a('s_lshl_b32 s%d, s%d, 14' % (sMTld, sX))
        a('s_add_u32 s%d, s%d, 0x%x' % (sMTld, sMTld, WS_MT))
        a('s_lshl_b32 s%d, s%d, 8' % (sT0, sT0))
        if LIN:
            a('s_sub_u32 s%d, s%d, s%d' % (sT0, sT0, sT1))
            a('s_lshr_b32 s%d, s%d, 2' % (sT1, sT1))
            a('s_add_u32 s%d, s%d, s%d' % (sT0, sT0, sT1))
        a('s_add_u32 s%d, s%d, s%d' % (sMTst, sMTld, sT0))
        if GL:
            a('s_and_b32 s%d, s%d, 8192' % (sT1, sT0))
            a('s_add_u32 s%d, s%d, s%d' % (sT0, sT0, sT1))
            a('s_add_u32 s%d, s%d, 0x%x' % (sMTst, sT0, WS_PART + 36 * MB))
            a('s_lshr_b32 s%d, s%d, 1' % (sT0, sW))
            a('s_lshl_b32 s%d, s%d, 13' % (sT0, sT0))
            a('s_add_u32 s%d, s%d, s%d' % (sMTst, sMTst, sT0))
            a('s_add_u32 s%d, s%d, 0x%x' % (sMTld, sT0, WS_PART + 36 * MB))
        a('s_lshl_b32 s%d, s%d, 12' % (sT0, sW))
        a('s_add_u32 s%d, s%d, s%d' % (sMTld, sMTld, sT0))
        a('s_lshl_b32 s%d, s%d, 1' % (sKVoff, sG))
        a('s_add_u32 s%d, s%d, s%d' % (sKVoff, sKVoff, sT3))
        a('s_lshl_b32 s%d, s%d, 12' % (sKVoff, sKVoff))
        a('s_and_b32 s%d, s%d, 1' % (sT0, sJ))
        a('s_lshl_b32 s%d, s%d, 12' % (sT0, sT0))
        a('s_lshl_b32 s%d, s%d, 13' % (sWarm, sG))
        a('s_add_u32 s%d, s%d, s%d' % (sWarm, sWarm, sT0))
        a('s_bfe_u32 s%d, s%d, 0x10001' % (sT0, sJ))
        a('s_lshl_b32 s%d, s%d, 17' % (sT0, sT0))
        a('s_add_u32 s%d, s%d, s%d' % (sWarm, sWarm, sT0))
        a('s_lshr_b32 s%d, s%d, 2' % (sT0, sJ))
        a('s_mul_i32 s%d, s%d, 0x%x' % (sT0, sT0, WS_VF - WS_KF + 262144))
        a('s_add_u32 s%d, s%d, s%d' % (sWarm, sWarm, sT0))
        a('s_add_u32 s%d, s%d, 0x%x' % (sWarm, sWarm, WS_KF + 2 * 262144))
        a('s_lshl_b32 s%d, s%d, 11' % (sT0, sT3))
        a('s_add_u32 s%d, s%d, s%d' % (sWarm, sWarm, sT0))
        a('s_lshl_b32 s%d, s%d, 15' % (sT0, sW))
        s.bits(vB, [(0, 2, 3), (4, 1, 11), (5, 1, 8), (2, 2, 6)], 's%d' % sT0)
        s.bits(vT + 10, [(0, 2, 3), (4, 1, 12), (5, 1, 9), (2, 2, 7)], 's%d' % sT0)
        a('v_add_u32 v%d, s%d, v%d' % (vT + 7, sT0, vL16))
        def tr_w1(vaddr, t0, nt, rowb, Tls=range(4)):
            for Tl in Tls:
                for tl in range(nt):
                    for v in range(4):
                        a('ds_read_b64_tr_b16 %s, v%d offset:%d' % (ar(((t0 + tl) * 4 + Tl) * 8 + 2 * v, 2), vaddr, (Tl * 64 + 8 * (v // 2) + 16 * (v % 2)) * rowb + tl * 32))
                    a('s_waitcnt lgkmcnt(4)')
            a('s_waitcnt lgkmcnt(0)')
        s.mark(5)
        for q in range(4):
            for i in range(4): (ldv if q < 3 else ldo)(4 * q + 4 + i if q < 3 else i)
            a('s_waitcnt vmcnt(%d)' % (8 * (3 - q) + 4 * (q + 2)))
            tr_w1(vT + 10, 0, 4, 128, (q,))
        s.mark(6)
        s.verify()
        for i in range(4, 10): ldo(i)
        a('s_and_b32 s%d, s%d, 15' % (sA, sC))
        a('s_lshl_b32 s%d, s%d, 16' % (sA, sA))
        a('s_lshr_b32 s%d, s%d, 4' % (sT1, sC))
        a('s_lshl2_add_u32 s%d, s%d, s%d' % (sT1, sT1, sX))
        a('s_lshl_b32 s%d, s%d, 8' % (sT1, sT1))
        a('s_add_u32 s%d, s%d, s%d' % (sA, sA, sT1))
        a('s_add_u32 s%d, s%d, 0x%x' % (sA, sA, WS_PART + 66 * PART_SLOT))
        for slot in range(4):
            a('s_add_u32 s%d, s%d, 0x%x' % (sT0, sQKst, slot * QKV_SLOT)); s.st(vSent, vL4, sT0)
            a('s_add_u32 s%d, s%d, 0x%x' % (sT0, sVst, slot * QKV_SLOT))
            a('s_add_u32 s%d, s%d, %d' % (sT1, sA, (0, 2, 5, 7)[slot] * 4096))
            a('s_cmp_eq_u32 s%d, 1' % sW)
            a('s_cselect_b32 s%d, s%d, s%d' % (sT0, sT1, sT0))
            s.st(vSent, vL4, sT0)
            if slot < 2:
                a('s_lshr_b32 s%d, s%d, 1' % (sT0, sW))
                a('s_lshl_b32 s%d, s%d, 13' % (sT0, sT0))
                a('s_add_u32 s%d, s%d, s%d' % (sT0, sT0, sPARTst))
                a('s_add_u32 s%d, s%d, 0x%x' % (sT0, sT0, slot * PART_SLOT)); s.st(vSent, vL16, sT0, n=4)
            a('s_add_u32 s%d, s%d, 0x%x' % (sT0, sMTst, slot * MT_SLOT)); s.st(vSent, vMst, sT0, n=s.NP)
        for i in range(10, 16): ldo(i)
        a('s_waitcnt vmcnt(30)')
        a('s_lshl_b32 s%d, s%d, 9' % (sT0, sW))
        s.bits(vA, [(2, 2, 12), (0, 1, 11), (4, 2, 3), (1, 1, 2)], 's%d' % sT0)
        for u in range(4):
            for p in range(4):
                a('buffer_load_dword v%d, v%d, s[%d:%d], 0 offen offset:%d' % (vF + 4 * u + p, vA, S_M0, S_M0 + 3, u * 128 + p * 32))
        for i in range(16):
            a('ds_write_b128 v%d, %s offset:%d' % (vT + 7, vr(64 + 4 * i, 4), i * 1024))
            if i % 8 == 7: a('s_waitcnt lgkmcnt(0)')
        tr_w1(vB, 4, 2, 64)
        a('s_waitcnt vmcnt(16)')
        s.counted()
        s.mark(7)
        for i in range(16):
            a('ds_write_b128 v%d, %s offset:%d' % (vT + 7, vr(128 + 4 * i, 4), 16384 + i * 1024))
            if i % 8 == 7: a('s_waitcnt lgkmcnt(0)')
        a('s_waitcnt vmcnt(0)')
        a('s_barrier')
        lm = a.newlabel('Lms')
        a('s_and_b32 s%d, s%d, 3' % (sT0, sJ))
        a('s_lshl2_add_u32 s%d, s%d, s%d' % (sT0, sT0, sW))
        a('s_cmp_eq_u32 s%d, 0' % sT0)
        a('s_cbranch_scc0 %s' % lm)
        a('s_and_b32 s%d, s%d, 15' % (sT0, sC))
        a('s_lshl_b32 s%d, s%d, 16' % (sT0, sT0))
        a('s_lshr_b32 s%d, s%d, 4' % (sT1, sC))
        a('s_lshl2_add_u32 s%d, s%d, s%d' % (sT1, sT1, sX))
        a('s_lshl_b32 s%d, s%d, 8' % (sT1, sT1))
        a('s_add_u32 s%d, s%d, s%d' % (sT0, sT0, sT1))
        a('s_add_u32 s%d, s%d, 0x%x' % (sT0, sT0, WS_PART + 66 * PART_SLOT))
        a('s_mov_b32 s%d, -1' % sA); a('s_mov_b32 s%d, -1' % sB)
        for k in range(s.opt.get('nprobe', 4)):
            a('s_memtime s[%d:%d]' % (sTS, sTS + 1))
            a('s_waitcnt lgkmcnt(0)')
            a('s_mov_b32 s%d, s%d' % (sT1, sTS))
            a('buffer_load_dword v%d, off, s[%d:%d], s%d sc1' % (vT, S_WS, S_WS + 3, sT0))
            a('s_waitcnt vmcnt(0)')
            a('s_memtime s[%d:%d]' % (sTS, sTS + 1))
            a('s_waitcnt lgkmcnt(0)')
            a('s_sub_u32 s%d, s%d, s%d' % (sT1, sTS, sT1))
            r = sB if k % 2 else sA
            a('s_min_u32 s%d, s%d, s%d' % (r, r, sT1))
            a('s_add_u32 s%d, s%d, %d' % (sT0, sT0, 8192 if k % 2 == 0 else 12288 if k % 4 == 1 else 4096))
        a('s_cmp_le_u32 s%d, s%d' % (sA, sB))
        a('s_cselect_b32 s%d, 1, 0x10001' % sT0)
        a('v_mov_b32 v%d, s%d' % (vT, sT0))
        a('s_mov_b64 exec, 1')
        a('buffer_atomic_add v%d, off, s[%d:%d], 0 offset:32 sc1' % (vT, S_DBG, S_DBG + 3))
        a('s_mov_b64 exec, -1')
        a.label(lm)
        lskip = a.newlabel('Lann')
        a('s_getreg_b32 s%d, hwreg(HW_REG_XCC_ID)' % sT0)
        a('s_and_b32 s%d, s%d, 15' % (sT0, sT0))
        a('s_mul_i32 s%d, s%d, s%d' % (sT1, sT0, sT0))
        a('s_lshl_b32 s%d, s%d, 18' % (sT1, sT1))
        a('s_lshl_b32 s%d, s%d, 8' % (sT0, sT0))
        a('s_add_u32 s%d, s%d, s%d' % (sT0, sT0, sT1))
        a('s_add_u32 s%d, s%d, 1' % (sLocal, sT0))
        a('s_cmp_eq_u32 s%d, 0' % sW)
        a('s_cbranch_scc0 %s' % lskip)
        a('s_lshl_b32 s%d, s%d, 2' % (sT1, sX))
        a('v_mov_b32 v%d, s%d' % (vT + 6, sLocal))
        a('s_mov_b64 exec, 1')
        a('buffer_atomic_add v%d, off, s[%d:%d], s%d offset:16 sc1' % (vT + 6, S_DBG, S_DBG + 3, sT1))
        a('s_mov_b64 exec, -1')
        a.label(lskip)
        lj = a.newlabel('Li')
        a('s_cmp_lt_u32 s%d, 2' % sW)
        a('s_cbranch_scc1 %s' % lj)
        a('s_lshl_b32 s%d, s%d, 7' % (sT0, sT3))
        a('s_add_u32 s%d, s%d, 16384' % (sT0, sT0))
        s.bits(vB, [(2, 4, 8), (0, 2, 3)], 's%d' % sT0)
        a('v_add_u32 v%d, 0x10000, v%d' % (vB + 1, vB))
        for tt in range(4):
            for hl in range(2):
                for t in range(4):
                    for v2 in range(2):
                        a('ds_read_b64_tr_b16 %s, v%d offset:%d' % (wo(tt, 16 * hl + 4 * t + 2 * v2, 2), vB + hl, (t // 2) * 32768 + (32 * (t % 2) + 16 * v2) * 256 + tt * 32))
                a('s_waitcnt lgkmcnt(0)')
        for i in range(8):
            a('v_mov_b32 v%d, 0' % (vU + 8 * i + 6)); a('v_mov_b32 v%d, 0' % (vU + 8 * i + 7))
        a.label(lj)
        a('s_barrier')
        if s.opt.get('touchr', True):
            a('v_bfe_u32 v%d, v0, 1, 2' % (vT + 1))
            a('v_and_b32 v%d, 1, v0' % (vT + 2))
            a('v_lshlrev_b32 v%d, 7, v%d' % (vT + 2, vT + 2))
            a('v_lshl_add_u32 v%d, v%d, 17, v%d' % (vT + 3, vT + 1, vT + 2))
            if s.opt.get('lin'):
                s.bits(vT + 3, [(1, 2, 17), (0, 1, 8)])
                a('s_and_b32 s%d, s%d, 1' % (sT0, sW))
                a('s_lshl_b32 s%d, s%d, 9' % (sT0, sT0))
                a('v_add_u32 v%d, s%d, v%d' % (vT + 3, sT0, vT + 3))
            a('v_mul_u32_u24 v%d, 0x%x, v%d' % (vT + 1, QKV_SLOT, vT + 1))
            a('v_add_u32 v%d, v%d, v%d' % (vT + 1, vT + 1, vT + 2))
            a('s_mov_b64 exec, 0xff')
            for k, (va, so) in enumerate(((vT + 1, sQKst), (vT + 1, sVst), (vT + 3, sMTst))):
                a('buffer_load_dword v%d, v%d, s[%d:%d], s%d offen sc1' % (vT + 4 + k, va, S_WS, S_WS + 3, so))
            a('s_mov_b64 exec, -1')
        s.kv_wait_init()
        a('s_mov_b32 s%d, 0' % sStep)
        lh, lj = a.newlabel('Li'), a.newlabel('Li')
        a('s_cmp_ge_u32 s%d, 2' % sW)
        a('s_cbranch_scc1 %s' % lh)
        s.dma_kv(sStep, WS_KF, str(L_KX))
        a('s_mov_b32 s%d, 1' % sT2)
        s.dma_kv(sT2, WS_VF, str(L_VX + 16384))
        a('v_mov_b32 v%d, 0' % (vT + 3))
        a('ds_write_b32 v%d, v%d offset:768' % (vPw, vT + 3))
        a('s_branch %s' % lj)
        a.label(lh)
        s.dma_kv(sStep, WS_VF, str(L_VX))
        a.label(lj)
        lw, lok = a.newlabel('Lw'), a.newlabel('Lw')
        a('v_min_u32 v%d, 16, v%d' % (vT + 1, vL4))
        a.label(lw)
        a('buffer_load_dword v%d, v%d, s[%d:%d], 0 offen offset:16 sc1' % (vT, vT + 1, S_DBG, S_DBG + 3))
        a('s_waitcnt vmcnt(0)')
        a('v_and_b32 v%d, 0xff, v%d' % (vT + 2, vT))
        a('v_cmp_ne_u32 vcc, 32, v%d' % (vT + 2))
        a('v_readlane_b32 s%d, v%d, 4' % (sT1, vT))
        a('s_and_b32 s%d, vcc_lo, 15' % sT0)
        a('s_cselect_b32 s%d, 0, s%d' % (sT1, sT1))
        a('s_bitcmp1_b32 s%d, 5' % sT1)
        a('s_cbranch_scc1 %s' % lok)
        a('s_sleep 8')
        s.tmo(lw)
        a.label(lok)
        a('s_cmp_gt_u32 s%d, 0x100020' % sT1)
        a('s_cselect_b32 s%d, 2, 0' % sT1)
        if 'near' in s.opt: a('s_mov_b32 s%d, %d' % (sT1, 2 * s.opt['near']))
        a('s_lshl_b32 s%d, s%d, 12' % (sT1, sT1))
        a('s_add_u32 s%d, s%d, s%d' % (sPARTst, sPARTst, sT1))
        a('s_add_u32 s%d, s%d, s%d' % (sREDld, sREDld, sT1))
        if s.opt.get('glob'):
            a('s_add_u32 s%d, s%d, s%d' % (sMTld, sMTld, sT1))
            a('s_add_u32 s%d, s%d, s%d' % (sMTst, sMTst, sT1))
            a('s_and_b32 s%d, s%d, 1' % (sC, sC))
            a('s_or_b32 s%d, s%d, s%d' % (sC, sC, sW))
            a('s_cselect_b32 s%d, 0x%x, s%d' % (sMTst, WS_DUMP, sMTst))
        a('v_readlane_b32 s%d, v%d, s%d' % (sT0, vT, sX))
        a('s_mul_i32 s%d, s%d, %d' % (sLocal, sLocal, 128 // s.NX))
        a('s_cmp_eq_u32 s%d, s%d' % (sT0, sLocal))
        a('s_cselect_b32 s%d, 1, 0' % sLocal)
        if s.opt.get('remote'): a('s_mov_b32 s%d, 0' % sLocal)
        a('s_waitcnt vmcnt(0) lgkmcnt(0)')
        a('s_barrier')
        lj = a.newlabel('Li')
        a('s_cmp_lt_u32 s%d, 2' % sW)
        a('s_cbranch_scc1 %s' % lj)
        s.ux()
        a.label(lj)
        s.pre_loop()
        s.prep_stage1()
        for u in range(4): s.s1unit(u, vF)
        s.mark(1)
        if s.opt.get('tot', True):
            a('s_memrealtime s[98:99]')
            a('s_memtime s[82:83]')
            a('s_waitcnt lgkmcnt(0)')
        if s.prof:
            for i in range(16): a('s_mov_b32 s%d, 0' % (sAcc + i))
            a('s_memtime s[%d:%d]' % (sTS, sTS + 1)); a('s_waitcnt lgkmcnt(0)'); a('s_mov_b32 s%d, s%d' % (sPrev, sTS))
    def slot(s, dst, base, mul, rst=False):
        a = s.a
        a('s_and_b32 s%d, s%d, 3' % (dst, sStep))
        if rst: a('s_xor_b32 s%d, s%d, 2' % (dst, dst))
        a('s_mul_i32 s%d, s%d, %d' % (dst, dst, mul))
        a('s_add_u32 s%d, s%d, s%d' % (dst, dst, base))
    def prep_stage1(s):
        a = s.a
        s.slot(sA, sQKst, QKV_SLOT); s.slot(sB, sVst, QKV_SLOT); s.slot(sCc, sCld, QKV_SLOT)
        s.zero(range(vD, vD + 24))
    def s1finish(s, second):
        a = s.a
        s.stamp(9 if s.opt.get('trace') else 12)
        for t6 in range(6):
            s.halfsum(vD + 4 * t6)
            a('ds_write_b64 v%d, %s offset:%d' % (vRw, vr(vD + 4 * t6, 2), L_R + t6 * R_T))
        a('s_waitcnt lgkmcnt(0)')
        s.stamp(6)
        a('s_barrier')
        s.stamp(7)
        tiles = [(vRr, vRr2, vM + 16, vT + 10, sA)] + ([(vPw2, vRed, vM + 24, vT + 11, sB)] if second else [])
        k = R_W // 256
        for a0, a1, r, o, so in tiles:
            for e, ad in enumerate((a0, a1)):
                for h in range(2):
                    a('ds_read2st64_b32 %s, v%d offset0:%d offset1:%d' % (vr(r + 4 * e + 2 * h, 2), ad, 2 * h * k, (2 * h + 1) * k))
        for n, (a0, a1, r, o, so) in enumerate(tiles):
            rem = 4 * (len(tiles) - 1 - n)
            a('s_waitcnt lgkmcnt(%d)' % (rem + 2))
            a('v_pk_add_f32 %s, %s, %s' % (vr(r, 2), vr(r, 2), vr(r + 2, 2)))
            a('v_add_f32 v%d, v%d, v%d' % (r, r, r + 1))
            a('s_waitcnt lgkmcnt(%d)' % rem)
            a('v_pk_add_f32 %s, %s, %s' % (vr(r + 4, 2), vr(r + 4, 2), vr(r + 6, 2)))
            a('v_add_f32 v%d, v%d, v%d' % (r + 4, r + 4, r + 5))
            a('v_cvt_pk_bf16_f32 v%d, v%d, v%d' % (o, r, r + 4))
            s.lst(o, vL4, so)
        s.stamp(0)
    def hopc(s, tag):
        a = s.a
        a.label('L_hopc_%s' % tag)
        for i in range(4):
            a('buffer_load_dwordx4 %s, v%d, s[%d:%d], s%d offen offset:%d sc1' % (vr(vM + 4 * i, 4), vL16, S_WS, S_WS + 3, sCc, i * 1024))
        a('s_waitcnt vmcnt(2)')
        s.maxtree(vM, 8, vT)
        a('s_waitcnt vmcnt(0)')
        s.maxtree(vM + 8, 8, vT, first=False)
        a('v_cmp_eq_u32 vcc, -1, v%d' % vT)
        a('s_cbranch_vccnz L_cretry_%s' % tag)
    def cretry(s, tag):
        s.a.label('L_cretry_%s' % tag)
        s.count(9)
        s.tmo('L_hopc_%s' % tag)
    def loop_S(s, tag):
        a = s.a
        vS = vD + 24
        vSm = vF + 4
        for i in range(8): a('v_mov_b32 v%d, 0' % (vS + i))
        a.label('L_loop_%s' % tag)
        s.s1finish(False)
        a('s_lshl_b32 s%d, s%d, 17' % (sK2, sStep))
        a('s_add_u32 s%d, s%d, s%d' % (sK2, sK2, sKst))
        a('s_cmp_eq_u32 s%d, %d' % (sStep, s.nsteps - 1))
        a('s_cbranch_scc1 L_lastk')
        A = a; buf = []
        s.a = a = buf.append
        for i in range(8): a('ds_read_b128 %s, v%d offset:%d' % (vr(vK + 4 * i, 4), vKX, i * 1024))
        a('s_min_u32 s%d, s%d, 60' % (sT2, sStep))
        a('s_lshl_b32 s%d, s%d, 18' % (sT2, sT2))
        a('s_add_u32 s%d, s%d, s%d' % (sT2, sT2, sWarm))
        a('s_lshl_b32 s%d, s%d, 19' % (sD, sStep))
        a('s_add_u32 s%d, s%d, s%d' % (sD, sD, sREDld))
        a('s_and_b32 s%d, s%d, 4' % (sT3, sStep))
        a('s_lshl_b32 s%d, s%d, 11' % (sT3, sT3))
        a('s_xor_b32 s%d, s%d, s%d' % (sD, sD, sT3))
        s.slot(sE, sMTst, MT_SLOT); s.slot(sH, sMTld, MT_SLOT)
        s.slot(sB, sQKst, QKV_SLOT, True); s.slot(sF, sMTst, MT_SLOT, True)
        s.zero(range(vD, vD + 24))
        s.a = a = A
        npre = s.opt.get('npre', 20)
        def cld():
            for i in range(4):
                a('buffer_load_dwordx4 %s, v%d, s[%d:%d], s%d offen offset:%d sc1' % (vr(vM + 4 * i, 4), vL16, S_WS, S_WS + 3, sCc, i * 1024))
        for y in buf[:npre]: a(y)
        s.stamp(1)
        cld()
        for y in buf[npre:]: a(y)
        a('s_waitcnt lgkmcnt(0)')
        a.label('L_hopc_%s' % tag)
        mx = lambda k, first: 'v_max3_u32 v%d, v%d, v%d, v%d' % (vT, vM + 2 * k if first else vT, vM + 2 * k, vM + 2 * k + 1)
        for T in range(2):
            a('s_waitcnt vmcnt(%d)' % (3 - T))
            for tau in range(2):
                a('v_smfmac_f32_16x16x64_bf16 %s, %s, %s, v%d' % (vr(vS + 4 * tau, 4), vr(vM + 4 * T, 4), vr(vK + 16 * tau + 8 * T, 8), vIdx))
                a(mx(2 * T + tau, T + tau == 0))
        for T in range(2):
            a('s_waitcnt vmcnt(%d)' % (1 - T))
            a('v_mfma_f32_16x16x32_bf16 %s, %s, %s, %s' % (vr(vSm, 4), vr(vM + 4 * T, 4), vr(vM + 8 + 4 * T, 4), '0' if T == 0 else vr(vSm, 4)))
            for k in range(2): a(mx(4 + 2 * T + k, False))
        a('v_cmp_eq_u32 vcc, -1, v%d' % vT)
        s.halfsum(vS, vT + 2); s.halfsum(vS + 4, vT + 4)
        a('s_cbranch_vccnz L_cretry_%s' % tag)
        s.stamp(2)
        def warm():
            a('s_mov_b64 exec, 0xffff')
            a('buffer_load_dword v%d, v%d, s[%d:%d], s%d offen sc1' % (vT + 11, vGate, S_WS, S_WS + 3, sT2))
            a('s_mov_b64 exec, -1')
        if s.opt.get('warm', 1) == 1: warm()
        x = vT + 2
        m = vT + 8
        for i in range(2): a('v_cndmask_b32 v%d, v%d, v%d, s[%d:%d]' % (x + 4 + i, vSm + i, vSm + 2 + i, sHiMask, sHiMask + 1))
        for i in range(2): a('v_add_f32_dpp v%d, v%d, v%d quad_perm:[2,3,0,1] row_mask:0xf bank_mask:0xf' % (x + 4 + i, x + 4 + i, x + 4 + i))
        def xreduce(op):
            for sh in (8, 4, 2, 1):
                for i in range(2): s.a('%s_dpp v%d, v%d, v%d row_ror:%d row_mask:0xf bank_mask:0xf' % (op, m + i, m + i, m + i, sh))
        for i in range(2): a('v_max3_f32 v%d, v%d, v%d, v%d' % (m + i, x + i, x + 2 + i, x + 4 + i))
        xreduce('v_max_f32')
        a('v_pk_mul_f32 %s, %s, %s' % (vr(m, 2), vr(m, 2), sr(sScale, 2)))
        for k in range(3): a('v_pk_fma_f32 %s, %s, %s, %s neg_lo:[0,0,1] neg_hi:[0,0,1]' % (vr(x + 2 * k, 2), vr(x + 2 * k, 2), sr(sScale, 2), vr(m, 2)))
        for i in range(6): a('v_exp_f32 v%d, v%d' % (x + i, x + i))
        DN = s.opt.get('dn', True)
        def rowsum():
            s.a('v_pk_add_f32 %s, %s, %s' % (vr(m, 2), vr(x, 2), vr(x + 2, 2)))
            for i in range(2): s.a('v_fma_f32 v%d, v%d, 0.5, v%d' % (m + i, x + 4 + i, m + i))
            xreduce('v_add_f32')
            for i in range(2): s.a('v_rcp_f32 v%d, v%d' % (m + i, m + i))
        if not DN:
            rowsum()
            for k in range(3): a('v_pk_mul_f32 %s, %s, %s' % (vr(x + 2 * k, 2), vr(x + 2 * k, 2), vr(m, 2)))
        for k in range(3): a('v_cvt_pk_bf16_f32 v%d, v%d, v%d' % (vSm + k, x + 2 * k, x + 2 * k + 1))
        a('ds_write2_b32 v%d, v%d, v%d offset0:0 offset1:64' % (vPw, vSm, vSm + 1))
        a('ds_write_b32 v%d, v%d offset:512' % (vPw2, vSm + 2))
        if DN:
            A2 = a; b2 = []
            s.a = a = b2.append
            rowsum()
            s.a = a = A2
            for y in b2[:7]: a(y)
        a('s_waitcnt lgkmcnt(0)')
        s.stamp(3)
        a('s_barrier')
        if DN:
            for y in b2[7:]: a(y)
            a('ds_write2st64_b32 v%d, v%d, v%d offset0:8 offset1:9' % (vPw, m, m + 1))
            a('s_waitcnt lgkmcnt(0)')
            a('s_barrier')
        s.stamp(4)
        a('s_add_u32 s%d, s%d, 1' % (sStep, sStep))
        s.slot(sA, sQKst, QKV_SLOT); s.slot(sCc, sCld, QKV_SLOT)
        s.zero(range(vS, vS + 8))
        a('v_xor_b32 v%d, 0x4000, v%d' % (vKX, vKX))
        tail = None
        s.last_S(tag)
        if s.opt.get('b3a'): a('s_barrier')
        if s.opt.get('warm', 1) == 2: warm()
        s.st(vT + 10, vL4, sK2)
        s.lst(vSent, vL4, sB); (s.st if s.opt.get('glob') else s.lst)(vSent, vMst, sF, n=s.NP)
        if not s.opt.get('hst', True):
            s.lst(vSent, vL4, sB, 512)
            a('s_sub_u32 s%d, s%d, s%d' % (sT0, sB, sQKst))
            a('s_add_u32 s%d, s%d, s%d' % (sT0, sT0, sVst))
            s.lst(vSent, vL4, sT0)
            a('s_add_u32 s%d, s%d, 1' % (sT0, sStep))
            a('s_and_b32 s%d, s%d, 4' % (sT1, sT0))
            a('s_lshl_b32 s%d, s%d, 19' % (sT0, sT0))
            a('s_add_u32 s%d, s%d, s%d' % (sT0, sT0, sPARTst))
            a('s_lshl_b32 s%d, s%d, 11' % (sT1, sT1))
            a('s_xor_b32 s%d, s%d, s%d' % (sT3, sT0, sT1))
            if not s.opt.get('initlate'): s.st(vSent, vL16, sT3, n=4)
        a('s_barrier')
        s.delay('adelay')
        s.stamp(8)
        if s.opt.get('glob'):
            a('s_cmp_lg_u32 s%d, 0' % sC)
            a('s_cbranch_scc1 L_askip_%s' % tag)
        a.label('L_hopa_%s' % tag)
        NP = s.NP
        r = vF + 8
        for i in range(4 * NP):
            a('buffer_load_dwordx4 %s, v%d, s[%d:%d], s%d offen offset:%d sc1' % (vr(vM + 4 * i, 4), vRed, S_WS, S_WS + 3, sD, (i // NP) * 1024 + (i % NP) * 256))
        a('s_mov_b64 exec, -1')
        IL = 1 if s.opt.get('initlate') else 0
        if IL: s.st(vSent, vL16, sT3, n=4)
        for i in range(4 * NP):
            a('s_waitcnt vmcnt(%d)' % (4 * NP - 1 - i + IL))
            rr = vr(r + 4 * (i % NP), 4)
            a('v_mfma_f32_16x16x32_bf16 %s, %s, %s, %s' % (rr, vr(vM + 4 * i, 4), vr(vSel, 4), '0' if i < NP else rr))
        a('v_pk_add_f32 %s, %s, %s' % (vr(vT, 2), vr(r, 2), vr(r + 2, 2)))
        if NP == 2:
            a('v_pk_add_f32 %s, %s, %s' % (vr(vT, 2), vr(vT, 2), vr(r + 4, 2)))
            a('v_pk_add_f32 %s, %s, %s' % (vr(vT, 2), vr(vT, 2), vr(r + 6, 2)))
        for k in range(NP):
            for h in range(2): a('v_cvt_pk_bf16_f32 v%d, v%d, v%d' % (r + 4 * k + h, r + 4 * k + 2 * h, r + 4 * k + 2 * h + 1))
        a('v_cmp_u_f32 vcc, v%d, v%d' % (vT, vT + 1))
        for k in range(NP):
            a('v_cndmask_b32 v%d, v%d, v%d, s[%d:%d]' % (r + 4 * k, r + 4 * k + 1, r + 4 * k, sStMask, sStMask + 1))
        a('s_cbranch_vccnz L_aslow_%s' % tag)
        a.label('L_aok_%s' % tag)
        for k in range(NP): (s.st if s.opt.get('glob') else s.lst)(r + 4 * k, vMst, sE, 256 * k)
        a.label('L_askip_%s' % tag)
        s.stamp(5)
        if s.opt.get('b4'): a('s_barrier')
        s.delay('b4delay')
        stubs = s.hopb_s1(tag, tail)
        stubs()
        a.label('L_aslow_%s' % tag)
        s.maxtree(vM, 16 * NP, vT + 1)
        a('v_cmp_eq_u32 vcc, -1, v%d' % (vT + 1))
        a('s_cbranch_vccz L_aok_%s' % tag)
        a('s_mov_b64 exec, vcc')
        s.count(10)
        s.tmo('L_hopa_%s' % tag)
        a.label('L_cretry_%s' % tag)
        cld()
        s.zero(range(vS, vS + 8))
        s.count(9)
        s.tmo('L_hopc_%s' % tag)
    def um(s):
        a = s.a
        def cvt(hl, tt):
            d = vD + 16 * hl + 4 * tt
            a('v_cvt_pk_bf16_f32 v%d, v%d, v%d' % (vU + 16 * tt + 8 * hl + 4, d, d + 1))
            a('v_cvt_pk_bf16_f32 v%d, v%d, v%d' % (vU + 16 * tt + 8 * hl + 5, d + 2, d + 3))
        n = 0
        for hl in range(2):
            for T in range(2):
                indma = s.opt.get('dmapos', 'um') == 'um' and n < 4 - s.opt.get('split', 0)
                if indma: a('s_mov_b32 m0, s%d' % (sP + 4 + n))
                for tt in range(4):
                    a('v_smfmac_f32_16x16x64_bf16 %s, %s, %s, v%d' % (vr(vD + 16 * hl + 4 * tt, 4), vr(vM + 8 * hl + 4 * T, 4), wo(tt, 16 * hl + 8 * T, 8), vIdx))
                    if indma: s.dma(sP + n, tt * 1024)
                    if hl == 1 and T == 1: cvt(0, tt)
                n += 1
        for tt in range(4): cvt(1, tt)
    def kv_addr(s):
        a = s.a
        a('s_add_u32 s%d, s%d, 1' % (sT0, sStep))
        a('s_lshl_b32 s%d, s%d, 18' % (sP, sT0))
        a('s_add_u32 s%d, s%d, s%d' % (sP, sP, sKVoff))
        if WS_KF: a('s_add_u32 s%d, s%d, 0x%x' % (sP, sP, WS_KF))
        a('s_add_u32 s%d, s%d, 0x20000' % (sP + 1, sP))
        a('s_and_b32 s%d, s%d, 1' % (sT0, sT0))
        a('s_lshl_b32 s%d, s%d, 14' % (sT0, sT0))
        a('s_add_u32 s%d, s%d, s%d' % (sP + 4, sT0, sLdsC))
        a('s_add_u32 s%d, s%d, 4096' % (sP + 5, sP + 4))
        a('s_xor_b32 s%d, s%d, 0x4000' % (sP + 6, sP + 4))
        a('s_add_u32 s%d, s%d, %d' % (sP + 6, sP + 6, L_VX - L_KX))
        a('s_add_u32 s%d, s%d, 4096' % (sP + 7, sP + 6))
        a('s_add_u32 s%d, s%d, 2' % (sT0, sStep))
        a('s_min_u32 s%d, s%d, 63' % (sT0, sT0))
        a('s_lshl_b32 s%d, s%d, 18' % (sP + 2, sT0))
        a('s_add_u32 s%d, s%d, s%d' % (sP + 2, sP + 2, sKVoff))
        a('s_add_u32 s%d, s%d, 0x%x' % (sP + 2, sP + 2, WS_VF))
        a('s_add_u32 s%d, s%d, 0x20000' % (sP + 3, sP + 2))
    def loop_H(s, tag):
        a = s.a
        vO = vT + 2
        zs = [vD + i for i in range(32)] + [vF + i for i in range(16)]
        for z in zs[24:]: a('v_mov_b32 v%d, 0' % z)
        s.kv_addr()
        a.label('L_loop_%s' % tag)
        s.s1finish(True)
        a('s_lshl_b32 s%d, s%d, 17' % (sF, sStep))
        a('s_add_u32 s%d, s%d, s%d' % (sK2, sF, sKst))
        a('s_add_u32 s%d, s%d, s%d' % (sF, sF, sKVMst))
        a('s_cmp_eq_u32 s%d, %d' % (sStep, s.nsteps - 1))
        a('s_cbranch_scc1 L_last_%s' % tag)
        for i in range(4): a('ds_read_b128 %s, v%d offset:%d' % (vr(vM + 16 + 4 * i, 4), vVX, i * 1024))
        a('s_lshl_b32 s%d, s%d, 19' % (sD, sStep))
        a('s_add_u32 s%d, s%d, s%d' % (sD, sD, sPARTst))
        a('s_and_b32 s%d, s%d, 4' % (sT3, sStep))
        a('s_lshl_b32 s%d, s%d, 11' % (sT3, sT3))
        a('s_xor_b32 s%d, s%d, s%d' % (sD, sD, sT3))
        s.slot(sH, sMTld, MT_SLOT)
        vG = 240
        acc = {0: vG, 1: vD, 2: vD + 16, 3: vG}
        fr = lambda i: vM + 4 * ((i + 4) % 8) if i < 4 else vM + 4 * (i % 8)
        rd = lambda i: 'ds_read_b128 %s, v%d offset:%d' % (vr(fr(i), 4), vVX, i * 1024)
        def mm(i, tt):
            d = vr(acc[i // 4] + 4 * tt, 4)
            return 'v_mfma_f32_16x16x32_bf16 %s, %s, %s, %s' % (d, vr(fr(i), 4), wo(tt, 16 * (i // 8) + 4 * (i % 4), 4), '0' if i % 4 == 0 else d)
        def cvt(gi): return ['v_cvt_pk_bf16_f32 v%d, v%d, v%d' % (vU + 16 * tt + 8 * (gi // 2) + 2 * (gi % 2) + h, acc[gi] + 4 * tt + 2 * h, acc[gi] + 4 * tt + 2 * h + 1) for tt in range(4) for h in range(2)]
        zz = lambda b, n: ['v_mov_b64 %s, 0' % vr(b + 2 * k, 2) for k in range(n // 2)]
        def cld():
            for i in range(4):
                a('buffer_load_dwordx4 %s, v%d, s[%d:%d], s%d offen offset:%d sc1' % (vr(vM + 4 * i, 4), vL16, S_WS, S_WS + 3, sCc, i * 1024))
        z24 = zz(vD, 24)
        hp = s.opt.get('hpre', 6)
        for k in range(4): a(z24.pop(0))
        for n in range(16):
            if n % 4 == 0: a('s_waitcnt lgkmcnt(%d)' % (3 - n // 4))
            if n == hp:
                s.stamp(1)
                cld()
            a(mm(n // 4, n % 4))
            if z24: a(z24.pop(0))
        a.label('L_hopc_%s' % tag)
        a('s_waitcnt vmcnt(2)')
        s.maxtree(vM, 8, vT)
        a('s_waitcnt vmcnt(0)')
        s.maxtree(vM + 8, 8, vT, first=False)
        a('v_cmp_eq_u32 vcc, -1, v%d' % vT)
        a('s_cbranch_vccnz L_cretry_%s' % tag)
        s.stamp(2)
        for i in range(4, 8): a(rd(i))
        s.um()
        DN = s.opt.get('dn', True)
        if DN:
            for x in zz(vD, 16): a(x)
        s.stamp(3)
        a('s_barrier')
        s.stamp(4)
        for hl in range(2):
            for u in range(2):
                a('ds_read_b64_tr_b16 %s, v%d offset:%d' % (vr(vM + 4 * hl + 2 * u, 2), vPw, hl * 1024 + u * 16))
        fa = lambda hl, tt: (vD if DN and hl else vF) + 4 * tt
        for hl in range(2):
            a('s_waitcnt lgkmcnt(%d)' % (2 - 2 * hl))
            for tt in range(4):
                if DN and hl == 1 and tt == s.opt.get('dnpos', 0):
                    a('s_barrier')
                    for h in range(2): a('ds_read2st64_b32 %s, v%d offset0:%d offset1:%d' % (vr(vM + 8 + 2 * h, 2), vL4, L_P // 256 + 8 + 4 * h, L_P // 256 + 9 + 4 * h))
                a('v_smfmac_f32_16x16x64_bf16 %s, %s, %s, v%d' % (vr(fa(hl, tt), 4), vr(vM + 4 * hl, 4), vr(vU + 16 * tt + 8 * hl, 8), vIdx))
        if DN:
            for tt in range(4): s.halfsum(vF + 4 * tt)
            a('s_waitcnt lgkmcnt(0)')
            for tt in range(4): a('v_pk_mul_f32 %s, %s, %s' % (vr(vF + 4 * tt, 2), vr(vF + 4 * tt, 2), vr(vM + 8, 2)))
        for tt in range(4):
            s.halfsum(fa(1, tt))
            if DN: a('v_pk_fma_f32 %s, %s, %s, %s' % (vr(vF + 4 * tt, 2), vr(vD + 4 * tt, 2), vr(vM + 10, 2), vr(vF + 4 * tt, 2)))
            a('v_cvt_pk_bf16_f32 v%d, v%d, v%d' % (vO + tt, vF + 4 * tt, vF + 4 * tt + 1))
        s.st(vO, vL16, sD, n=4)
        s.stamp(5)
        A = a; buf = []
        s.a = a = buf.append
        HS = s.opt.get('hst', True)
        if HS:
            s.slot(sT2, sQKst, QKV_SLOT, True)
            a('s_sub_u32 s%d, s%d, s%d' % (sT1, sT2, sQKst))
            a('s_add_u32 s%d, s%d, s%d' % (sT1, sT1, sVst))
            a('s_add_u32 s%d, s%d, 0x%x' % (sD, sD, 2 * PART_SLOT))
            a('s_and_b32 s%d, s%d, 2' % (sT3, sStep))
            a('s_lshl_b32 s%d, s%d, 12' % (sT3, sT3))
            a('s_xor_b32 s%d, s%d, s%d' % (sD, sD, sT3))
        a('s_add_u32 s%d, s%d, 1' % (sStep, sStep))
        s.kv_probe()
        s.slot(sA, sQKst, QKV_SLOT); s.slot(sB, sVst, QKV_SLOT); s.slot(sCc, sCld, QKV_SLOT)
        s.kv_addr()
        sal = list(buf); del buf[:]
        s.st(vT + 10, vL4, sK2); s.st(vT + 11, vL4, sF, 2048)
        if HS:
            s.st(vSent, vL16, sD, n=4); s.lst(vSent, vL4, sT2); s.lst(vSent, vL4, sT1)
        sts = list(buf)
        s.nlate = len(sts)
        s.a = a = A
        gaps = {n: [] for n in range(48)}
        for k, x in enumerate(cvt(0) + zz(vF, 16)): gaps[k].append(x)
        for k, x in enumerate(cvt(1)): gaps[20 + k].append(x)
        for k, x in enumerate(zz(vD, 16)): gaps[28 + k].append(x)
        for k, x in enumerate(cvt(2)): gaps[36 + k].append(x)
        SP = s.opt.get('split', 0)
        for k in range(4 * SP):
            n = 4 - SP + k // 4
            if k % 4 == 0: gaps[k].append('s_mov_b32 m0, s%d' % (sP + 4 + n))
            gaps[k + 1].insert(0, 'buffer_load_dwordx4 v%d, s[%d:%d], s%d offen offset:%d sc1 lds' % (vL16, S_WS, S_WS + 3, sP + n, (k % 4) * 1024))
        for k, x in enumerate(sal): gaps[k].append(x)
        lp = s.opt.get('latepos', 34)
        for k, x in enumerate(sts): gaps[lp + 2 * k].append(x)
        for i in range(8, 16): gaps[0 if i < 10 else 4 * (i - 8) - 4 if i < 12 else 4 * (i - 8 - 3) + 0].append(rd(i))
        order = sorted((n, i) for n in gaps for i in range(8, 16) if rd(i) in gaps[n])
        for n in range(48):
            i = 4 + n // 4
            if n % 4 == 0 and i >= 8:
                later = [j for (g, j) in order if g < n]
                a('s_waitcnt lgkmcnt(%d)' % (len(later) - 1 - later.index(i)))
            if n == s.opt.get('b3pos', 24) or (n == 1 and s.opt.get('b3a')): a('s_barrier')
            a(mm(i, n % 4))
            for x in gaps[n]: a(x)
        for x in zz(vD + 16, 16): a(x)
        a('v_xor_b32 v%d, 0x4000, v%d' % (vVX, vVX))
        s.kv_check(tag)
        s.stamp(8)
        if s.opt.get('b4'):
            for x in cvt(3): a(x)
            s.last_H(tag)
            a('s_barrier')
        s.delay('b4delay')
        stubs = s.hopb_s1(tag, None, () if s.opt.get('b4') else cvt(3))
        stubs()
        a.label('L_cretry_%s' % tag)
        cld()
        s.count(9)
        s.tmo('L_hopc_%s' % tag)
        s.kv_slow(tag)
        a.label('L_last_%s' % tag)
        s.st(vT + 11, vL4, sF, 2048)
        a('s_branch L_lastk')
    def emit(s):
        a = s.a
        s.init()
        a('s_cmp_eq_u32 s%d, 1' % sLocal)
        a('s_cbranch_scc0 L_remote')
        for local in (True, False):
            s.local = local
            t = 'l' if local else 'r'
            if not local: a.label('L_remote')
            a('s_cmp_ge_u32 s%d, 2' % sW)
            a('s_cbranch_scc1 L_H%s' % t)
            s.loop_S('S' + t)
            a.label('L_H%s' % t)
            s.loop_H('H' + t)
        a.label('L_lastk')
        s.st(vT + 10, vL4, sK2)
        a('s_branch L_chain_done')
        a.label('L_chain_fail')
        a('s_mov_b64 exec, -1')
        a('v_mov_b32 v%d, 1' % vT)
        a('buffer_atomic_add v%d, off, s[%d:%d], 0 offset:4 sc1' % (vT, S_DBG, S_DBG + 3))
        a.label('L_chain_done')
        if s.opt.get('tot', True):
            a('s_memrealtime s[100:101]')
            a('s_waitcnt lgkmcnt(0)')
            a('s_sub_u32 s100, s100, s98')
            a('v_mov_b32 v%d, s100' % vT)
            a('buffer_store_dword v%d, off, s[%d:%d], 0 offset:8' % (vT, S_DBG, S_DBG + 3))
            a('s_memtime s[100:101]')
            a('s_waitcnt lgkmcnt(0)')
            a('s_sub_u32 s100, s100, s82')
            a('v_mov_b32 v%d, s100' % vT)
            a('s_lshl_b32 s%d, s%d, 2' % (sT0, sX))
            a('buffer_store_dword v%d, off, s[%d:%d], s%d offset:64' % (vT, S_DBG, S_DBG + 3, sT0))
        if s.opt.get('trace'):
            a('s_lshl_b32 s%d, s2, 2' % sT0)
            a('s_add_u32 s%d, s%d, s%d' % (sT0, sT0, sW))
            a('s_lshl_b32 s%d, s%d, 12' % (sT0, sT0))
            a('s_add_u32 s%d, s%d, 0x%x' % (sT0, sT0, WS_PROF))
            for i in range(11): s.st(244 + i, vL4, sT0, 256 * i, sc1=False)
        if s.prof:
            a('s_lshl_b32 s%d, s2, 2' % sT0)
            a('s_add_u32 s%d, s%d, s%d' % (sT0, sT0, sW))
            a('s_lshl_b32 s%d, s%d, 6' % (sT0, sT0))
            a('s_add_u32 s%d, s%d, 0x%x' % (sT0, sT0, WS_PROF))
            a('s_mov_b32 s%d, s%d' % (sAcc + 15, sTmo))
            a('s_mov_b32 s%d, s%d' % (sAcc + 14, sLocal))
            for i in range(16):
                a('v_mov_b32 v%d, s%d' % (vT, sAcc + i))
                a('buffer_store_dword v%d, off, s[%d:%d], s%d offset:%d' % (vT, S_WS, S_WS + 3, sT0, 4 * i))
        if s.opt.get('endwait', True): a('s_waitcnt vmcnt(0)')
    def nt(s, srd): return ' nt' if srd in s.opt.get('nt', []) else ''
    def get_wave(s):
        a = s.a
        a('v_lshrrev_b32 v%d, 6, v0' % vT)
        a('v_readfirstlane_b32 s%d, v%d' % (sW, vT))
        a('v_and_b32 v0, 63, v0')
    def kv_probe(s): pass
    def kv_check(s, tag): pass
    def kv_slow(s, tag): pass
    def pre_loop(s): pass
    def claim(s): pass
    def last_S(s, tag): pass
    def last_H(s, tag): pass
    def verify(s): pass
    def counted(s): pass
    def mark(s, i): pass
    def early0(s): pass
    def early1(s): pass
    def kv_wait_init(s): pass
    def kv_wait_loop(s): pass

def chain_kernel(name='chain_kernel', prof=False, opt=None):
    a = Asm()
    NX = (opt or {}).get('NX', 4)
    a('s_and_b32 s3, s2, 7')
    a('s_cmp_ge_u32 s3, %d' % NX)
    a('s_cbranch_scc1 L_chain_exit')
    a('s_cmp_ge_u32 s2, %d' % (1024 // NX))
    a('s_cbranch_scc1 L_chain_exit')
    for sreg, k in [(S_WS, 'ws'), (S_WQ, 'Wq'), (S_WK, 'Wk'), (S_WV, 'Wv'), (S_WO, 'Wo'), (S_M0, 'B_mem0'), (S_DBG, 'dbg')]:
        a('s_load_dwordx2 s[%d:%d], s[0:1], %d' % (sreg, sreg + 1, KA[k]))
    a('s_waitcnt lgkmcnt(0)')
    for sreg, n in [(S_WS, WS_BYTES), (S_WQ, 8 * MB), (S_WK, 8 * MB), (S_WV, 8 * MB), (S_WO, 8 * MB), (S_M0, 16384), (S_DBG, 256)]:
        a('s_mov_b32 s%d, 0x%x' % (sreg + 2, n)); a('s_mov_b32 s%d, 0x20000' % (sreg + 3))
    Chain(a, prof, opt=opt).emit()
    a.label('L_chain_exit')
    a('s_endpgm')
    return kernel_head(name) + a.finalize()

def write(path, prof, opt):
    txt = '; @launch grid=(256,1,1) block=(256,1,1) lds=%d\n.amdgcn_target "amdgcn-amd-amdhsa--gfx950"\n.text\n' % L_END
    txt += chain_kernel(prof=prof, opt=opt)
    txt += '.section .rodata,"a"\n.p2align 6\n' + kernel_desc('chain_kernel')
    open(path, 'w').write(txt)

if __name__ == '__main__':
    import sys, json
    for spec in sys.argv[1:]:
        name, _, o = spec.partition('=')
        opt = json.loads(o) if o else {}
        write(name + '.s', 'prof' in name, opt)
```

```python
import sys, json
from ag import *
from common import *
import gen_chain12 as gc
import gen_g1 as g1
import gen_ao as ao

NAME = 'concat_heads__ssm_conv_h3__memory_aug_recurrent_mem_tr__prompt'
LDS = 163840
WS_KVC = WS_CTR + 262144
sKVC = 85

sWave, sClaim = 100, 101
vClaim = 15
L_FLAG = 163840 - 16

def claim(a, st0, st1):
    a('s_lshr_b32 s%d, s2, 3' % st0)
    a('s_lshl_b32 s%d, 1, s%d' % (st0, st0))
    a('s_and_b32 s%d, s2, 7' % st1)
    a('s_lshl_b32 s%d, s%d, 2' % (st1, st1))
    a('v_mov_b32 v%d, s%d' % (vClaim, st0))
    a('s_mov_b64 exec, 1')
    a('buffer_atomic_or v%d, off, s[28:31], s%d offset:192 sc0 sc1' % (vClaim, st1))
    a('s_mov_b64 exec, -1')

def first_claim(a, st0, st1):
    lc = a.newlabel('Lcl')
    a('s_or_b32 s3, s%d, s%d' % (sWave, sClaim))
    a('s_cbranch_scc1 %s' % lc)
    claim(a, st0, st1)
    a.label(lc)

def verify_role(a, st0, st1, vt):
    l0, l1, l2, ok = [a.newlabel('Lvr') for _ in range(4)]
    a('s_cmp_lg_u32 s%d, 0' % sClaim)
    a('s_cbranch_scc1 %s' % ok)
    a('v_mov_b32 v%d, %d' % (vt, L_FLAG))
    a('s_cmp_eq_u32 s%d, 0' % sWave)
    a('s_cbranch_scc0 %s' % l2)
    a('s_mov_b32 s3, s2')
    a('s_mov_b32 vcc_hi, 600')
    a.label(l0)
    a('v_readfirstlane_b32 s%d, v%d' % (st1, vClaim))
    a('s_lshr_b32 s%d, s2, 3' % st0)
    a('s_bitcmp1_b32 s%d, s%d' % (st1, st0))
    a('s_cbranch_scc0 %s' % l1)
    a('s_cmp_eq_u32 s%d, -1' % st1)
    a('s_cselect_b32 s%d, 1, 8' % st0)
    a('s_add_u32 s2, s2, s%d' % st0)
    a('s_and_b32 s2, s2, 255')
    claim(a, st0, st1)
    a('s_waitcnt vmcnt(0)')
    a('s_sub_u32 vcc_hi, vcc_hi, 1')
    a('s_cbranch_scc0 %s' % l0)
    a('s_mov_b32 s2, 256')
    a.label(l1)
    a('v_mov_b32 v%d, s2' % (vt + 1))
    a('s_mov_b32 s2, s3')
    a('ds_write_b32 v%d, v%d' % (vt, vt + 1))
    a('s_waitcnt lgkmcnt(0)')
    a.label(l2)
    a('s_barrier')
    a('ds_read_b32 v%d, v%d' % (vt + 1, vt))
    a('s_mov_b32 s%d, 1' % sClaim)
    a('s_waitcnt lgkmcnt(0)')
    a('v_readfirstlane_b32 s%d, v%d' % (st0, vt + 1))
    a('s_cmp_eq_u32 s%d, s2' % st0)
    a('s_cbranch_scc1 %s' % ok)
    a('s_cmp_ge_u32 s%d, 256' % st0)
    a('s_cbranch_scc1 L_exit')
    a('s_and_b32 s2, s%d, 255' % st0)
    a('s_waitcnt vmcnt(0)')
    a('s_barrier')
    a('s_branch L_restart')
    a.label(ok)

class Chain(gc.Chain):
    def claim(s): first_claim(s.a, gc.sT0, gc.sT1)
    def get_wave(s): s.a('s_mov_b32 s%d, s%d' % (gc.sW, sWave))
    def verify(s):
        a = s.a
        verify_role(a, gc.sT0, gc.sT1, gc.vT)
        a('s_lshl_b32 s%d, s%d, 10' % (sKVC, gc.sG))
        a('s_add_u32 s%d, s%d, 0x%x' % (sKVC, sKVC, WS_KVC))
        a('s_or_b32 s%d, s%d, s%d' % (gc.sT2, gc.sJ, gc.sW))
        a('s_cselect_b32 s%d, 0x%x, s%d' % (gc.sT0, WS_DUMP, sKVC))
        a('v_mov_b32 v%d, 0' % (gc.vT + 1))
        a('buffer_store_dword v%d, v%d, s[4:7], s%d offen sc1' % (gc.vT + 1, gc.vL16, gc.sT0))
    def counted(s):
        a = s.a
        l = a.newlabel('Lct')
        a('s_or_b32 s%d, s%d, s%d' % (gc.sT0, gc.sJ, gc.sW))
        a('s_cbranch_scc1 %s' % l)
        a('v_mov_b32 v%d, 1' % (gc.vT + 5))
        a('s_mov_b64 exec, 1')
        a('buffer_atomic_add v%d, off, s[28:31], 0 offset:128 sc1' % (gc.vT + 5))
        a('s_mov_b64 exec, -1')
        a.label(l)
    def poll_ctr(s, soff):
        a = s.a
        l, ok = a.newlabel('Lkv'), a.newlabel('Lkv')
        a.label(l)
        a('buffer_load_dword v%d, off, s[4:7], s%d sc1' % (gc.vT, soff))
        a('s_waitcnt vmcnt(0)')
        a('v_readfirstlane_b32 s%d, v%d' % (gc.sT1, gc.vT))
        a('s_cmp_eq_u32 s%d, 8' % gc.sT1)
        a('s_cbranch_scc1 %s' % ok)
        a('s_sleep 4')
        s.tmo(l)
        a.label(ok)
    def kv_wait_init(s):
        a = s.a
        s.mark(3)
        l, ok = a.newlabel('Lkv'), a.newlabel('Lkv')
        a.label(l)
        a('buffer_load_dword v%d, off, s[28:31], 0 offset:128 sc1' % gc.vT)
        a('s_waitcnt vmcnt(0)')
        a('v_readfirstlane_b32 s%d, v%d' % (gc.sT1, gc.vT))
        a('s_cmp_eq_u32 s%d, 16' % gc.sT1)
        a('s_cbranch_scc1 %s' % ok)
        a('s_sleep 4')
        s.tmo(l)
        a.label(ok)
        s.poll_ctr(sKVC)
        s.mark(4)
    def kv_probe(s):
        a = s.a
        a('s_add_u32 s%d, s%d, 2' % (gc.sE, gc.sStep))
        a('s_and_b32 s%d, s%d, 124' % (gc.sE, gc.sE))
        a('s_cmp_lt_u32 s%d, 64\ns_cselect_b32 s%d, s%d, %d' % (gc.sE, gc.sE, gc.sE, 60 if s.opt.get('cfull') else 2))
        a('s_lshl4_add_u32 s%d, s%d, s%d' % (gc.sE, gc.sE, sKVC))
        a('buffer_load_dword v%d, off, s[4:7], s%d sc1' % (gc.vT + 1, gc.sE))
    def last_S(s, tag):
        if s.opt.get('cfull'): return
        a = s.a
        l = a.newlabel('Lls')
        a('s_cmp_eq_u32 s%d, 63' % gc.sStep)
        a('s_cbranch_scc0 %s' % l)
        s.cv.hload(0, 20); s.cv.kvload(0, 20)
        a.label(l)
    last_H = last_S
    def pre_loop(s):
        a = s.a
        if s.opt.get('cfull'): return
        a('s_load_dwordx2 s[8:9], s[0:1], %d' % KA['A_q'])
        a('s_load_dwordx2 s[12:13], s[0:1], %d' % KA['A_ssmk'])
        a('s_load_dwordx2 s[16:17], s[0:1], %d' % KA['A_ssmD'])
        a('s_mov_b32 s10, 0x%x' % (4 * MB)); a('s_mov_b32 s14, 0x%x' % (4 * MB))
        a('s_lshl_b32 s20, s%d, 5' % gc.sX)
        a('s_add_u32 s20, s20, s%d' % gc.sC)
        a('s_lshl_b32 s21, s20, 4')
        a('s_waitcnt lgkmcnt(0)')
        a('s_load_dwordx4 s[68:71], s[16:17], s21')
        a('s_waitcnt lgkmcnt(0)')
    def kv_check(s, tag):
        a = s.a
        a('s_waitcnt vmcnt(%d)' % s.nlate)
        a('v_cmp_ne_u32 vcc, 8, v%d' % (gc.vT + 1))
        a('s_cbranch_vccnz L_kvs_%s' % tag)
        a.label('L_kvo_%s' % tag)
    def kv_slow(s, tag):
        s.a.label('L_kvs_%s' % tag)
        s.poll_ctr(gc.sE)
        s.a('s_branch L_kvo_%s' % tag)

def mark(a, i, opt, v=30):
    if not opt.get('marks'): return
    a('s_memrealtime vcc')
    a('s_waitcnt lgkmcnt(0)')
    a('v_mov_b32 v%d, vcc_lo' % v)
    a('s_lshl_b32 vcc_lo, s2, 6')
    a('s_add_u32 vcc_lo, vcc_lo, 0x%x' % (WS_PROF + 8 * MB))
    a('buffer_store_dword v%d, off, s[4:7], vcc_lo offset:%d' % (v, 4 * i))
    if i < 6:
        a('s_memtime vcc')
        a('s_waitcnt lgkmcnt(0)')
        a('v_mov_b32 v%d, vcc_lo' % v)
        a('s_lshl_b32 vcc_lo, s2, 6')
        a('s_add_u32 vcc_lo, vcc_lo, 0x%x' % (WS_PROF + 9 * MB))
        a('buffer_store_dword v%d, off, s[4:7], vcc_lo offset:%d' % (v, 4 * i))

def build(opt):
    a = Asm()
    ptrs = [(4, 'ws', WS_BYTES), (8, 'Wq', 8 * MB), (12, 'Wk', 8 * MB), (16, 'Wv', 8 * MB), (20, 'Wo', 8 * MB), (24, 'B_mem0', 16384), (28, 'dbg', 256)]
    side = [(g1.S_X, 'B_x', 4 * MB), (g1.S_WC, 'Wk', 8 * MB), (ao.S_OUT, 'out', 8 * MB), (ao.S_AQ, 'A_q', 4 * MB), (ao.S_AK, 'A_k', 4 * MB), (ao.S_AV, 'A_v', 4 * MB), (ao.S_AH, 'A_ssmk', 4 * MB)]
    a('s_cmp_ge_u32 s2, 256')
    a('s_cbranch_scc1 L_exit')
    a('v_lshrrev_b32 v1, 6, v0')
    a('v_readfirstlane_b32 s%d, v1' % 100)
    a('v_and_b32 v0, 63, v0')
    a('s_mov_b32 s%d, 0' % 101)
    a('s_getreg_b32 s3, hwreg(HW_REG_XCC_ID)')
    a('s_and_b32 s3, s3, %d' % opt.get('fakex', 7))
    if opt.get('fakeo'): a('s_or_b32 s3, s3, %d' % opt['fakeo'])
    a('s_and_b32 s2, s2, 248')
    a('s_or_b32 s2, s2, s3')
    a.label('L_restart')
    for r, k, n in ptrs + side: a('s_load_dwordx2 s[%d:%d], s[0:1], %d' % (r, r + 1, KA[k]))
    for r, k, n in ptrs + side:
        a('s_mov_b32 s%d, 0x%x' % (r + 2, n)); a('s_mov_b32 s%d, 0x20000' % (r + 3))
    a('s_waitcnt lgkmcnt(0)')
    if opt.get('touchc', True):
        lt = a.newlabel('Ltc')
        a('s_cmp_eq_u32 s%d, 3' % sWave)
        a('s_cbranch_scc0 %s' % lt)
        a('s_getpc_b64 s[40:41]')
        a.label('L_pc')
        a('s_lshr_b32 s42, s2, 3')
        a('s_lshl_b32 s42, s42, 12')
        a('v_lshlrev_b32 v1, 6, v0')
        a('v_add_u32 v1, s42, v1')
        a('v_min_u32 v1, L_code_end-L_pc-4, v1')
        a('global_load_dword v%d, v1, s[40:41]' % vClaim)
        a.label(lt)
    mark(a, 0, opt)
    if opt.get('empty'): a('s_endpgm')
    NX = opt.get('NX', 4)
    a('s_and_b32 s3, s2, 7')
    if NX == 4: a('s_cmp_ge_u32 s3, 4')
    else: a('s_cmp_ge_u32 s2, 128')
    a('s_cbranch_scc1 L_side')
    copt = dict(b3pos=21, b4=1, hpre=8, npre=34, warm=2, endwait=False, dn=False, queue=1, cfull=opt.get('cfull', True), tot=False, NX=NX)
    copt.update(opt.get('chain', {}))
    ch = Chain(a, opt=copt)
    ch.mark = lambda i: mark(a, i, opt, 255)
    c2 = ao.Conv2(a); c2.mark = lambda i: mark(a, i + 2, opt)
    c2.S_AQ = 8; c2.S_AH = 12; c2.sDv = 68
    c2.RM = dict(vKV=64, hw0=96, vC=32, vQ=40, vK=144, vE=176)
    c2.ld = dict(sW=gc.sW, s1=22, s2=23, va=188, vb=189, tmp=190)
    ch.cv = c2
    if opt.get('only'): a('s_endpgm')
    ch.emit()
    mark(a, 2, opt)
    if True:
        a('s_mov_b32 s%d, s%d' % (g1.sW, sWave))
        if not opt.get('cfull', True): c2.core(None, 0, 20, True)
        def wait_p1(sampled):
            l, ok = a.newlabel('Lwp'), a.newlabel('Lwp')
            a.label(l)
            a('v_readfirstlane_b32 s%d, v20' % g1.sT1)
            a('s_cmp_eq_u32 s%d, 8' % g1.sT1)
            a('s_cbranch_scc1 %s' % ok)
            a('s_sleep 8')
            a('buffer_load_dword v20, off, s[4:7], s47 sc1')
            a('s_waitcnt vmcnt(0)')
            a('s_sub_u32 s%d, s%d, 1' % (ao.sTmo, ao.sTmo))
            a('s_cbranch_scc0 %s' % l)
            a('s_endpgm')
            a.label(ok)
        mark(a, 9, opt)
        if opt.get('marks'): a('s_waitcnt vmcnt(0)')
        mark(a, 11, opt)
    a('s_endpgm')
    a.label('L_side')
    sW, sT0, sT1 = g1.sW, g1.sT0, g1.sT1
    sTeam, sMem, sTmo = ao.sTeam, ao.sMem, ao.sTmo
    if NX == 4:
        a('s_sub_u32 s%d, s3, 4' % sTeam)
        a('s_lshr_b32 s%d, s2, 3' % sMem)
    else:
        a('s_lshr_b32 s%d, s3, 1' % sTeam)
        a('s_bfe_u32 s%d, s2, 0x40003' % sMem)
        a('s_and_b32 s3, s3, 1')
        a('s_lshl_b32 s3, s3, 4')
        a('s_add_u32 s%d, s%d, s3' % (sMem, sMem))
    a('s_mov_b32 s%d, 400000' % sTmo)
    a('s_mov_b32 s%d, s%d' % (sW, sWave))
    def one_lane_add(val, soff, off, srd=28):
        l = a.newlabel('Lone')
        a('s_cmp_eq_u32 s%d, 0' % sW)
        a('s_cbranch_scc0 %s' % l)
        a('v_mov_b32 v20, %s' % val)
        a('s_mov_b64 exec, 1')
        a('buffer_atomic_add v20, off, s[%d:%d], %s offset:%d sc1' % (srd, srd + 3, soff, off))
        a('s_mov_b64 exec, -1')
        a.label(l)
    sCol = 62
    sGrp = 63
    a('s_lshr_b32 s%d, s%d, 1' % (sCol, sMem))
    a('s_lshl_b32 s%d, s%d, 4' % (sT0, sTeam))
    a('s_add_u32 s%d, s%d, s%d' % (sCol, sCol, sT0))
    a('s_bfe_u32 s%d, s%d, 0x40001' % (sGrp, sCol))
    a('s_lshl_b32 s%d, s%d, 10' % (sGrp, sGrp))
    a('s_add_u32 s%d, s%d, 0x%x' % (sGrp, sGrp, WS_KVC))
    def wait_dbg(off, target, w0only):
        l, ok = a.newlabel('Lwg'), a.newlabel('Lwg')
        if w0only:
            a('s_cmp_eq_u32 s%d, 0' % sW)
            a('s_cbranch_scc0 %s' % ok)
        a.label(l)
        a('buffer_load_dword v20, off, s[28:31], 0 offset:%d sc1' % off)
        a('s_waitcnt vmcnt(0)')
        a('v_readfirstlane_b32 s%d, v20' % sT0)
        a('s_cmp_eq_u32 s%d, %d' % (sT0, target))
        a('s_cbranch_scc1 %s' % ok)
        a('s_sleep 16')
        a('s_sub_u32 s%d, s%d, 1' % (sTmo, sTmo))
        a('s_cbranch_scc0 %s' % l)
        a('s_branch L_side_fail')
        a.label(ok)
    sJob = g1.sJob
    g3 = g1.G3(a, 'a')
    cvp = ao.Conv2(a)
    g3.NS = opt.get('ns3', 4)
    g3.setup()
    sPh, sRow, sStep_, sBaseO, sBaseK, sLeft = 56, 57, 58, 60, 61, sJob
    def describe():
        return ['s_lshl_b32 s%d, s%d, 18' % (g1.sNX, sRow), 's_lshl_b32 s%d, s%d, 20' % (g1.sOutN, sRow), 's_add_u32 s%d, s%d, s%d' % (g1.sOutN, g1.sOutN, sBaseO),
                's_lshl_b32 s%d, s%d, 19' % (g1.sKvN, sRow), 's_add_u32 s%d, s%d, s%d' % (g1.sKvN, g1.sKvN, sBaseK),
                's_lshl_b32 s%d, s%d, 6' % (g1.sSigN, sRow), 's_add_u32 s%d, s%d, s%d' % (g1.sSigN, g1.sSigN, sGrp), 's_add_u32 s%d, s%d, s%d' % (sRow, sRow, sStep_)]
    def bases():
        a('s_and_b32 s%d, s%d, 31' % (sT0, sCol))
        a('s_lshl_b32 s%d, s%d, 8' % (g1.sWo, sT0))
        a('s_lshl_b32 s%d, s%d, 12' % (sT0, sT0))
        a('s_lshr_b32 s%d, s%d, 5' % (sT1, sCol))
        a('s_lshl_b32 s%d, s%d, 24' % (sBaseO, sT1))
        a('s_add_u32 s%d, s%d, s%d' % (sBaseO, sBaseO, sT0))
        a('s_lshl_b32 s%d, s%d, 11' % (sT1, sT1))
        a('s_add_u32 s%d, s%d, s%d' % (sBaseK, sT0, sT1))
        a('s_lshl_b32 s%d, s%d, 10' % (sT0, sW))
        a('s_add_u32 s%d, s%d, s%d' % (sBaseO, sBaseO, sT0))
        a('s_and_b32 s%d, s%d, 1024' % (sT0, sT0))
        a('s_add_u32 s%d, s%d, s%d' % (sBaseK, sBaseK, sT0))
        a('s_lshr_b32 s%d, s%d, 1' % (sT0, sW))
        a('s_lshl_b32 s%d, s%d, 17' % (sT0, sT0))
        a('s_add_u32 s%d, s%d, s%d' % (sBaseK, sBaseK, sT0))
    a('s_cmp_ge_u32 s%d, 32' % sCol)
    a('s_cselect_b64 s[36:37], s[16:17], s[12:13]')
    bases()
    a('s_add_u32 s%d, s%d, 0x%x' % (sBaseK, sBaseK, WS_KVM))
    a('s_and_b32 s%d, s%d, 1' % (sRow, sMem))
    a('s_mov_b32 s%d, 2' % sStep_)
    a('s_mov_b32 s%d, 0' % sPh)
    a('s_mov_b32 s%d, 0x%x' % (g1.sSigD, WS_DUMP))
    a.label('L_phase')
    for x in describe(): a(x)
    a('s_mov_b32 s%d, s%d' % (g1.sXo, g1.sNX))
    sig = lambda: one_lane_add(2, 's%d' % g1.sSigD, 0, 4)
    def zero_ctr():
        a('v_mov_b32 v28, 0')
        a('s_and_b32 s%d, s%d, 15' % (sT0, sMem))
        a('s_lshl_b32 s%d, s%d, 2' % (sT0, sT0))
        a('s_add_u32 s%d, s%d, s%d' % (sT0, sT0, sTeam))
        a('s_lshl_b32 s%d, s%d, 11' % (sT0, sT0))
        a('s_add_u32 s%d, s%d, 0x%x' % (sT0, sT0, WS_CTR))
        a('v_lshlrev_b32 v29, 5, v0')
        a('buffer_store_dword v28, v29, s[4:7], s%d offen sc1' % sT0)
        a('s_lshl2_add_u32 s%d, s%d, s%d' % (sT0, sMem, sW))
        a('s_lshl_b32 s%d, s%d, 12' % (sT0, sT0))
        a('s_lshl_b32 s%d, s%d, 22' % (sT1, sPh))
        a('s_add_u32 s%d, s%d, s%d' % (sT0, sT0, sT1))
        a('v_lshlrev_b32 v29, 6, v0')
        a('buffer_load_dword v23, v29, s[32:35], s%d offen' % sT0)
        l = a.newlabel('Lp1')
        a('s_cmp_eq_u32 s%d, 0' % sPh)
        a('s_cbranch_scc1 %s' % l)
        a('s_waitcnt vmcnt(34)')
        cvp.p1_compute()
        mark(a, 6, opt)
        a.label(l)
        return 2
    def touch_x():
        if not opt.get('touchx', True): return 0
        a('s_lshl_b32 s%d, s%d, 5' % (sT0, sTeam))
        a('s_add_u32 s%d, s%d, s%d' % (sT0, sT0, sMem))
        a('s_lshl2_add_u32 s%d, s%d, s%d' % (sT0, sT0, sW))
        a('s_lshl_b32 s%d, s%d, 13' % (sT0, sT0))
        a('s_lshl_b32 s%d, s%d, 22' % (sT1, sPh))
        a('s_add_u32 s%d, s%d, s%d' % (sT0, sT0, sT1))
        a('v_lshlrev_b32 v29, 7, v0')
        a('buffer_load_dword v22, v29, s[32:35], s%d offen' % sT0)
        return 1
    g3.mid_issue = lambda: first_claim(a, sT0, sT1)
    g3.loadw(zero_ctr, lambda: verify_role(a, sT0, sT1, 28), None)
    sig()
    a('s_lshl_b32 s%d, s%d, 2' % (sT1, sTeam))
    a('s_lshr_b32 s%d, s%d, 3' % (sT0, sMem))
    a('s_add_u32 s%d, s%d, s%d' % (sT1, sT1, sT0))
    a('s_lshl_b32 s%d, s%d, 10' % (sT1, sT1))
    a('s_add_u32 s%d, s%d, 0x%x' % (sT1, sT1, WS_KVC + 32))
    a('s_cmp_eq_u32 s%d, 0' % sPh)
    a('s_cselect_b32 s%d, 0x%x, s%d' % (sT1, WS_DUMP, sT1))
    one_lane_add(1, 's%d' % sT1, 0, 4)
    def pmark(i, ph):
        if not opt.get('marks'): return
        l = a.newlabel('Lmk')
        a('s_cmp_eq_u32 s%d, %d' % (sPh, ph))
        a('s_cbranch_scc0 %s' % l)
        mark(a, i, opt)
        a.label(l)
    pmark(14, 0); pmark(10, 1)
    def chk0():
        ok = a.newlabel('Ls0')
        a('v_readfirstlane_b32 s%d, v21' % sT0)
        a('s_cmp_eq_u32 s%d, 16' % sT0)
        a('s_cbranch_scc1 %s' % ok)
        wait_dbg(128, 16, True)
        a.label(ok)
        mark(a, 15, opt)
    g3.tiles(describe, lambda: a('s_cmp_lt_u32 s%d, 0x%x' % (g1.sNX, 4 * MB)), sig, lambda: a('s_cmp_lt_u32 s%d, 6' % sRow),
             (lambda: (mark(a, 13, opt), a('buffer_load_dword v21, off, s[28:31], 0 offset:128 sc1')), chk0, touch_x))
    a('s_cmp_eq_u32 s%d, 1' % sPh)
    a('s_cbranch_scc1 L_phase_end')
    mark(a, 1, opt)
    g3.flush()
    a('s_load_dwordx2 s[24:25], s[0:1], %d' % KA['A_shift'])
    a('s_mov_b32 s26, 8192')
    a('s_waitcnt lgkmcnt(0)')
    cvp.p1_load(24)
    a('s_waitcnt vmcnt(28)')
    a('s_mov_b64 s[36:37], s[8:9]')
    a('s_lshr_b32 s%d, s%d, 2' % (sCol, sMem))
    a('s_lshl3_add_u32 s%d, s%d, s%d' % (sCol, sTeam, sCol))
    a('s_add_u32 s%d, s%d, 64' % (sCol, sCol))
    bases()
    a('s_mov_b32 s%d, 0x%x' % (sBaseK, WS_DUMP))
    a('s_mov_b32 s%d, 0x%x' % (sGrp, WS_DUMP))
    a('s_and_b32 s%d, s%d, 3' % (sRow, sMem))
    a('s_mov_b32 s%d, 4' % sStep_)
    a('s_mov_b32 s%d, 1' % sPh)
    a('s_branch L_phase')
    a.label('L_phase_end')
    g3.flush()
    mark(a, 2, opt)
    A = ao.AO2(a) if opt.get('ao2', False) else ao.AO(a)
    a('s_lshl_b32 s52, s%d, 5' % sTeam)
    a('s_add_u32 s52, s52, s%d' % sMem)
    a('s_lshr_b32 s%d, s%d, 3' % (sT0, sMem))
    a('s_and_b32 s%d, s%d, 7' % (sMem, sMem))
    a('s_lshl3_add_u32 s%d, s%d, s%d' % (sMem, sTeam, sMem))
    a('s_mov_b32 s%d, s%d' % (sTeam, sT0))
    A.ids()
    a('s_lshr_b32 s47, s52, 3')
    a('s_lshl_b32 s47, s47, 10')
    a('s_add_u32 s47, s47, 0x%x' % (WS_KVC + 32))
    def done():
        wait_p1(True)
        one_lane_add(1, '0', 64)
    A.load_wo(lambda: a('buffer_load_dword v20, off, s[4:7], s47 sc1'), done, lambda: (cvp.hload(1, 52), cvp.kvload(1, 52)))
    mark(a, 7, opt)
    cvp.mark = lambda i: mark(a, {6: 8, 8: 9}[i], opt)
    cvp.core(None, 2 if opt.get('cfull', True) else 1, 52, True)
    mark(a, 3, opt)
    def wait_g1():
        wait_dbg(64, 128, True)
        mark(a, 4, opt)
    def amark(i):
        if not opt.get('marks'): return
        l = a.newlabel('Lmk')
        a('s_cmp_eq_u32 s52, %d' % (opt.get('aopass', 15) + (1 if i in (9, 108) else 0)))
        i %= 100
        a('s_cbranch_scc0 %s' % l)
        mark(a, i, opt)
        a.label(l)
    A.mark = amark
    A.OS = opt.get('osent', True)
    A.MID = opt.get('mid2', 16); A.NL0 = opt.get('nl0', 38)
    A.DENS = opt.get('dens', 3); A.RB = opt.get('rb', False)
    A.run(wait_g1)
    if opt.get('marks'): a('s_waitcnt vmcnt(0)')
    mark(a, 5, opt)
    a.label('L_side_fail')
    a.label('L_exit')
    a('s_endpgm')
    a.label('L_code_end')
    head = open('cdna_kernels/%s.s.ref' % NAME).read().split('; Override launch')[0]
    txt = head + '; @launch grid=(256,1,1) block=(256,1,1) lds=%d\n.amdgcn_target "amdgcn-amd-amdhsa--gfx950"\n.text\n' % LDS
    txt += kernel_head(NAME + '_kernel') + a.finalize()
    txt += '.section .rodata,"a"\n.p2align 6\n' + kernel_desc(NAME + '_kernel')
    return txt

if __name__ == '__main__':
    for spec in sys.argv[1:]:
        name, _, o = spec.partition('=')
        open(name, 'w').write(build(json.loads(o) if o else {}))
```

```python
import math, struct
from ag import *
from common import *
from gen_g1 import S_WS, S_WO, S_DBG, sW, sT0, sT1, sT2, sT3
def f2u(x): return struct.unpack('<I', struct.pack('<f', x))[0]

S_OUT = 80; S_AQ = 84; S_AK = 88; S_AV = 92; S_AH = 96
sTeam, sMem = 53, 54
sTmo = 55

def bits(a, dst, terms, init=None, tmp=31):
    first = init is None
    if not first: a('v_mov_b32 v%d, %s' % (dst, init))
    for (src, n, sh) in terms:
        a('v_bfe_u32 v%d, v0, %d, %d' % (tmp, src, n))
        if first: a('v_lshlrev_b32 v%d, %d, v%d' % (dst, sh, tmp)); first = False
        else: a('v_lshl_add_u32 v%d, v%d, %d, v%d' % (dst, tmp, sh, dst))

class AO:
    def mark(s, i): pass
    sA, sPf, sBuf, sScale, sKm, sOst, sOld, sI, sO = 45, 46, 47, 48, 49, 50, 51, 52, 56
    sF = 57
    sMask = 58
    sHi = 74
    sCO, sCP, sKq, sCb = 76, 77, 78, 79
    sS, sPst, sPld, sDo = 32, 33, 34, 35
    sDn, sPo, sFo, bKm = 36, 37, 38, 39
    bOst, bOld, bCO, bCP = 84, 85, 86, 87
    sSch, sNit = 88, 92
    @staticmethod
    def sched(N): return [sum(1 << i for i in L) for L in (list(range(N - 1)), list(range(1, N)), list(range(3, N + 2)), list(range(2, N + 1)))]
    vL16, vQr, vKr, vVr, vMr, vIdx, vNeg, vOr, vOst, vKmw = range(1, 11)
    vT = 12
    vP = 24
    vQ = 32; vK = 48; vKm = 80; vS = 88; vA = 100; vD = 124
    vF = 140
    vB = 156
    L_KM = 24576
    L_O = 32768
    BUF1 = 131072
    early = False
    tail_touch = None
    RING = 0
    NTO = ''
    def rs(s, dst, src, sh):
        if not s.RING: return ['s_lshl_b32 s%d, s%d, %d' % (dst, src, sh)]
        return ['s_and_b32 s%d, s%d, %d' % (dst, src, s.RING - 1), 's_cmp_lt_u32 s%d, 52\ns_cselect_b32 s%d, s%d, s%d' % (src, dst, dst, src), 's_lshl_b32 s%d, s%d, %d' % (dst, dst, sh)]
    DENS = 3
    MID = 16
    OS = True
    NT = ''
    NL0 = 38
    RB = True
    def __init__(s, a): s.a = a
    def prefetch_list(s):
        o = [['s_lshl_b32 s%d, s%d, 18' % (sT0, s.sPf), 's_lshl_b32 s%d, s%d, 12' % (sT1, sMem), 's_add_u32 s%d, s%d, s%d' % (sT0, sT0, sT1),
              's_lshl_b32 s%d, s%d, 10' % (sT1, sW), 's_add_u32 s%d, s%d, s%d' % (sT0, sT0, sT1), 's_add_u32 s%d, s%d, s%d' % (sT1, sT1, s.sBuf)]]
        for mi, base in enumerate((WS_QF, WS_KF, WS_VF)):
            for tau in range(2):
                o.append(['s_add_u32 m0, s%d, %d' % (sT1, mi * 8192 + tau * 4096), 's_add_u32 s%d, s%d, 0x%x' % (sT2, sT0, base + tau * 131072),
                          'buffer_load_dwordx4 v%d, s[%d:%d], s%d offen sc1 lds' % (s.vL16, S_WS, S_WS + 3, sT2)])
        return o
    def odma_list(s):
        o = []
        for i in range(16):
            g = []
            if i % 4 == 0:
                g += ['s_add_u32 m0, s%d, %d' % (sT3, i * 1024), 's_add_u32 s%d, s%d, %d' % (sT2, s.sOld, i * 1024)]
            g.append('buffer_load_dwordx4 v%d, s[%d:%d], s%d offen offset:%d sc1 lds' % (s.vL16, S_WS, S_WS + 3, sT2, (i % 4) * 1024))
            o.append(g)
        o[0] = ['s_and_b32 s%d, s%d, 1' % (sT3, sW), 's_lshl_b32 s%d, s%d, 15' % (sT3, sT3), 's_lshr_b32 s%d, s%d, 1' % (sT2, sW), 's_lshl_b32 s%d, s%d, 14' % (sT2, sT2),
                's_add_u32 s%d, s%d, s%d' % (sT3, sT3, sT2), 's_add_u32 s%d, s%d, %d' % (sT3, sT3, s.L_O)] + o[0]
        return o
    def flat(s, L):
        for g in L:
            for x in g: s.a(x)
    def ids(s):
        s.a('s_lshr_b32 s%d, s%d, 3' % (s.sKq, sMem))
        s.a('s_and_b32 s%d, s%d, 7' % (s.sCb, sMem))
    def load_wo(s, mid, done, late):
        a = s.a; vT = 8
        a('s_and_b32 s%d, s%d, 1' % (sT0, sW))
        a('s_lshl_b32 s%d, s%d, 2' % (sT0, sT0))
        bits(a, vT + 2, [(4, 2, 0)], 's%d' % sT0)
        a('v_lshlrev_b32 v%d, 1, v%d' % (vT + 3, vT + 2))
        a('v_xor_b32 v%d, v0, v%d' % (vT + 3, vT + 3))
        a('v_and_b32 v%d, 15, v%d' % (vT + 3, vT + 3))
        a('v_lshlrev_b32 v%d, 4, v%d' % (vT + 3, vT + 3))
        a('v_lshl_add_u32 v%d, v%d, 11, v%d' % (vT, vT + 2, vT + 3))
        a('s_lshl_b32 s%d, s%d, 10' % (sT3, sW))
        a('s_lshl_b32 s%d, s%d, 21' % (sT0, s.sKq))
        a('s_lshl_b32 s%d, s%d, 8' % (sT1, s.sCb))
        a('s_add_u32 s%d, s%d, s%d' % (sT0, sT0, sT1))
        a('s_lshr_b32 s%d, s%d, 1' % (sT1, sW))
        a('s_lshl_b32 s%d, s%d, 14' % (sT1, sT1))
        a('s_add_u32 s%d, s%d, s%d' % (sT0, sT0, sT1))
        bits(a, vT + 2, [(2, 3, 0)])
        a('s_lshl_b32 s%d, s%d, 1' % (sT1, sW))
        a('v_xor_b32 v%d, s%d, v%d' % (vT + 2, sT1, vT + 2))
        bits(a, vT + 3, [(2, 4, 8), (0, 2, 3)])
        for nt in range(2):
            a('v_xor_b32 v%d, %d, v%d' % (vT + 4, nt, vT + 2))
            a('v_lshl_add_u32 v%d, v%d, 5, v%d' % (vT + 5 + nt, vT + 4, vT + 3))
            a('v_add_u32 v%d, 0x10000, v%d' % (vT + 7 + nt, vT + 5 + nt))
        def dma(q):
            for i in range(16):
                a('s_add_u32 m0, s%d, %d' % (sT3, (q % 2) * 65536 + i * 4096))
                a('buffer_load_dwordx4 v%d, s[%d:%d], s%d offen%s lds' % (vT, S_WO, S_WO + 3, sT0, s.NT))
                a('s_add_u32 s%d, s%d, 0x8000' % (sT0, sT0))
        a('s_barrier')
        dma(0); dma(1)
        mid()
        waits = [17, 16, 40, 24]
        for q in range(4):
            a('s_waitcnt vmcnt(%d)' % waits[q])
            a('s_barrier')
            if q == 1: done()
            for k in range(8):
                for nt in range(2):
                    for v2 in range(2):
                        a('ds_read_b64_tr_b16 %s, v%d offset:%d' % (ar(((q * 8 + k) * 2 + nt) * 4 + 2 * v2, 2), vT + 5 + 2 * (q % 2) + nt, (32 * k + 16 * v2) * 256))
                a('s_waitcnt lgkmcnt(8)')
            a('s_waitcnt lgkmcnt(0)')
            if q < 2:
                a('s_barrier')
                dma(q + 2)
            if q == 1: late()
    def setup(s):
        a = s.a; vT = s.vT
        a('v_lshlrev_b32 v%d, 4, v0' % s.vL16)
        a('v_add_u32 v%d, %d, v%d' % (s.vOr, s.L_O, s.vL16))
        a('v_lshlrev_b32 v11, 7, v0')
        a('s_and_b32 s%d, s%d, 1' % (sT0, sW))
        a('s_lshr_b32 s%d, s%d, 1' % (sT1, sW))
        a('s_lshl_b32 s%d, s%d, 12' % (sT2, sT0))
        a('v_add_u32 v%d, s%d, v%d' % (s.vQr, sT2, s.vL16))
        a('v_add_u32 v%d, 8192, v%d' % (s.vKr, s.vL16))
        a('s_lshl_b32 s%d, s%d, 11' % (sT2, sT1))
        a('s_add_u32 s%d, s%d, 16384' % (sT2, sT2))
        bits(a, s.vVr, [(0, 2, 8), (2, 4, 4)], 's%d' % sT2)
        a('s_lshl_b32 s%d, s%d, 10' % (sT2, sT1))
        a('s_add_u32 s%d, s%d, %d' % (sT2, sT2, s.L_KM + 2048))
        bits(a, s.vMr, [(3, 1, 8), (4, 2, 6), (1, 1, 5), (2, 1, 3), (0, 1, 1)], 's%d' % sT2)
        for i in range(2): a('s_mov_b32 s%d, 0xcccccccc' % (s.sHi + i))
        a('v_mov_b32 v%d, 0x4444' % vT)
        a('v_mov_b32 v%d, 0xeeee' % (vT + 1))
        a('v_cndmask_b32 v%d, v%d, v%d, s[%d:%d]' % (s.vIdx, vT, vT + 1, s.sHi, s.sHi + 1))
        a('v_mov_b32 v%d, 0x%x' % (s.vNeg, f2u(-1e9 * math.sqrt(128))))
        a('s_mov_b32 s%d, 0x%x' % (s.sScale, f2u(math.log2(math.e) / math.sqrt(128))))
        a('s_lshl_b32 s%d, s%d, 4' % (sT2, sT0))
        bits(a, vT, [(0, 4, 0)], 's%d' % sT2)
        bits(a, vT + 1, [(4, 2, 2)])
        a('v_sub_u32 v%d, v%d, v%d' % (vT, vT, vT + 1))
        for k in range(8):
            a('v_cmp_le_i32 s[%d:%d], %d, v%d' % (s.sMask + 2 * k, s.sMask + 2 * k + 1, 16 * (k // 4) + k % 4, vT))
        a('s_lshl_b32 s%d, s%d, 10' % (sT2, sW))
        a('v_add_u32 v%d, s%d, v%d' % (s.vKmw, sT2, s.vL16))
        a('s_lshl_b32 s%d, s%d, 16' % (sT2, sT1))
        a('s_lshl_b32 s%d, s%d, 5' % (sT3, sT0))
        a('s_add_u32 s%d, s%d, s%d' % (sT2, sT2, sT3))
        a('s_lshl_b32 s%d, s%d, 6' % (sT3, s.sKq))
        a('s_add_u32 s%d, s%d, s%d' % (sT2, sT2, sT3))
        a('s_lshl_b32 s%d, s%d, 8' % (sT3, s.sCb))
        a('s_add_u32 s%d, s%d, s%d' % (sT2, sT2, sT3))
        a('s_add_u32 s%d, s%d, 2048' % (sT2, sT2))
        bits(a, s.vOst, [(0, 4, 12), (4, 2, 3)], 's%d' % sT2)
        for et in range(4): a('v_mov_b32 v%d, 0' % (s.vA + 6 * et + 5))
        a('s_lshl_b32 s%d, s%d, 16' % (sT2, s.sCb))
        a('s_add_u32 s%d, s%d, 0x%x' % (sT2, sT2, WS_PO))
        a('s_lshl_b32 s%d, s%d, 14' % (s.sPst, sW))
        a('s_lshl_b32 s%d, s%d, 10' % (sT3, s.sKq))
        a('s_add_u32 s%d, s%d, s%d' % (s.sPst, s.sPst, sT3))
        a('s_add_u32 s%d, s%d, s%d' % (s.sPst, s.sPst, sT2))
        a('s_lshl_b32 s%d, s%d, 14' % (s.sPld, s.sKq))
        a('s_lshl_b32 s%d, s%d, 12' % (sT3, sW))
        a('s_add_u32 s%d, s%d, s%d' % (s.sPld, s.sPld, sT3))
        a('s_add_u32 s%d, s%d, s%d' % (s.sPld, s.sPld, sT2))
    def next_list(s):
        o = []
        for bit, r in ((0, s.sA), (1, s.sO), (2, s.sF), (3, s.sS)):
            o += ['s_bfe_u32 s%d, s%d, 0x%x' % (sT0, s.sDo, 0x10000 | bit), 's_lshl2_add_u32 s%d, s%d, s%d' % (r, sT0, r)]
        o += ['s_add_u32 s%d, s%d, 1' % (s.sI, s.sI)]
        for k in range(4):
            o += ['s_lshr_b32 s%d, s%d, s%d' % (sT0, s.sSch + k, s.sI), 's_and_b32 s%d, s%d, 1' % (sT0 if k else s.sDn, sT0)]
            if k: o += ['s_lshl_b32 s%d, s%d, %d' % (sT0, sT0, k), 's_or_b32 s%d, s%d, s%d' % (s.sDn, s.sDn, sT0)]
        o += ['s_lshl_b32 s%d, s%d, 17' % (s.sKm, s.sA), 's_add_u32 s%d, s%d, s%d' % (s.sKm, s.sKm, s.bKm),
              's_lshl_b32 s%d, s%d, 11' % (s.sCO, s.sO), 's_add_u32 s%d, s%d, s%d' % (s.sCO, s.sCO, s.bCO),
              s.km_ld(), s.ld_ctr(0),
              ] + s.rs(s.sOst, s.sA, 18) + ['s_add_u32 s%d, s%d, s%d' % (s.sOst, s.sOst, s.bOst)] + s.rs(s.sOld, s.sO, 18) + [
              's_add_u32 s%d, s%d, s%d' % (s.sOld, s.sOld, s.bOld),
              's_lshl_b32 s%d, s%d, 11' % (s.sCP, s.sF), 's_add_u32 s%d, s%d, s%d' % (s.sCP, s.sCP, s.bCP),
              'v_mov_b32 v%d, 0' % (s.vP + 5)]
        return ['\n'.join(x) if isinstance(x, list) else x for x in o]
    def bases(s):
        a = s.a
        a('s_lshl_b32 s%d, s%d, 12' % (sT0, sMem))
        a('s_add_u32 s%d, s%d, 0x%x' % (s.bKm, sT0, WS_KVM))
        a('s_and_b32 s%d, s%d, 1' % (sT1, sW))
        a('s_lshl_b32 s%d, s%d, 17' % (sT1, sT1))
        a('s_add_u32 s%d, s%d, 0x%x' % (sT1, sT1, WS_O))
        a('s_lshr_b32 s%d, s%d, 1' % (sT2, sW))
        a('s_add_u32 s%d, s%d, s%d' % (s.bOst, sT1, sT0))
        a('s_lshl_b32 s%d, s%d, 11' % (sT0, sT2))
        a('s_add_u32 s%d, s%d, s%d' % (s.bOst, s.bOst, sT0))
        a('s_lshl_b32 s%d, s%d, 15' % (sT0, s.sKq))
        a('s_add_u32 s%d, s%d, s%d' % (s.bOld, sT1, sT0))
        a('s_lshl_b32 s%d, s%d, 14' % (sT0, sT2))
        a('s_add_u32 s%d, s%d, s%d' % (s.bOld, s.bOld, sT0))
        a('s_lshl_b32 s%d, s%d, 7' % (sT0, s.sKq))
        a('s_add_u32 s%d, s%d, 0x%x' % (s.bCO, sT0, WS_CTR))
        a('s_lshl_b32 s%d, s%d, 7' % (sT0, s.sCb))
        a('s_add_u32 s%d, s%d, 0x%x' % (s.bCP, sT0, WS_CTR + 512))
    def km_ld(s): return 'buffer_load_dwordx4 %s, v%d, s[%d:%d], s%d offen sc1' % (vr(s.vP, 4), s.vKmw, S_WS, S_WS + 3, s.sKm)
    def ld_km(s): s.a('buffer_load_dwordx4 %s, v%d, s[%d:%d], s%d offen sc1' % (vr(s.vP, 4), s.vKmw, S_WS, S_WS + 3, s.sKm))
    def ld_ctr(s, k): return 'buffer_load_dword v%d, off, s[%d:%d], s%d sc1' % (s.vP + 4 + k, S_WS, S_WS + 3, (s.sCO, s.sCP)[k])
    def spin(s, ld, chk, sleep):
        a = s.a
        l, ok = a.newlabel('Lsp'), a.newlabel('Lsp')
        a.label(l)
        chk(ok)
        if sleep: a('s_sleep %d' % sleep)
        ld()
        a('s_waitcnt vmcnt(0)')
        a('s_sub_u32 s%d, s%d, 1' % (sTmo, sTmo))
        a('s_cbranch_scc0 %s' % l)
        a('s_branch L_side_fail')
        a.label(ok)
    def wait_km(s):
        a = s.a; vP = s.vP
        def chk(ok):
            a('v_max3_u32 v%d, v%d, v%d, v%d' % (s.vT, vP, vP + 1, vP + 2))
            a('v_max_u32 v%d, v%d, v%d' % (s.vT, s.vT, vP + 3))
            a('v_cmp_eq_u32 vcc, -1, v%d' % s.vT)
            a('s_cbranch_vccz %s' % ok)
        s.spin(s.ld_km, chk, 2)
    def wait_ctr(s, k):
        a = s.a
        def chk(ok):
            a('v_readfirstlane_b32 s%d, v%d' % (sT0, s.vP + 4 + k))
            a('s_cmp_eq_u32 s%d, %d' % (sT0, (8, 4)[k]))
            a('s_cbranch_scc1 %s' % ok)
        s.spin(lambda: a(s.ld_ctr(k)), chk, 2)
    def signals(s):
        a = s.a
        l = a.newlabel('Lsig')
        a('s_cmp_eq_u32 s%d, 0' % sW)
        a('s_cbranch_scc0 %s' % l)
        a('v_mov_b32 v%d, 1' % (s.vT + 2))
        a('s_mov_b64 exec, 1')
        for bit, r, b in ((0, s.sA, s.bCO), (3, s.sS, s.bCP)):
            a('s_lshl_b32 s%d, s%d, 11' % (sT0, r))
            a('s_add_u32 s%d, s%d, s%d' % (sT0, sT0, b))
            a('s_bitcmp1_b32 s%d, %d' % (s.sDo, bit))
            a('s_cselect_b32 s%d, s%d, 0x%x' % (sT0, sT0, WS_DUMP))
            a('buffer_atomic_add v%d, off, s[%d:%d], s%d sc1' % (s.vT + 2, S_WS, S_WS + 3, sT0))
        a('s_mov_b64 exec, -1')
        a.label(l)
    def cond(s, bit, label):
        s.a('s_bitcmp1_b32 s%d, %d' % (s.sDo, bit))
        s.a('s_cbranch_scc0 %s' % label)
    def attn(s, lean=False, merged=False):
        A = s.a; vT = s.vT; vQ, vK, vKm, vS, vA, vD = s.vQ, s.vK, s.vKm, s.vS, s.vA, s.vD
        fill = [] if lean or merged else s.odma_list() + s.prefetch_list() + [[s.ld_ctr(1)]]
        st = {'n': 0}
        def a(x):
            A(x)
            st['n'] += 1
            if st['n'] % s.DENS == 0 and fill:
                for y in fill.pop(0): A(y)
        for i in range(4): a('v_mov_b32 v%d, 0' % (vS + 8 + i))
        kmr = lambda: [a('ds_read_b128 %s, v%d offset:%d' % (vr(vKm + 4 * T, 4), s.vL16, s.L_KM + T * 1024)) for T in range(2)]
        msk = lambda: [a('v_cndmask_b32 v%d, v%d, v%d, s[%d:%d]' % (vS + k, s.vNeg, vS + k, s.sMask + 2 * k, s.sMask + 2 * k + 1)) for k in range(8)]
        for t in range(4): a('ds_read_b128 %s, v%d offset:%d' % (vr(vQ + 4 * t, 4), s.vQr, t * 1024))
        for i in range(8): a('ds_read_b128 %s, v%d offset:%d' % (vr(vK + 4 * i, 4), s.vKr, i * 1024))
        if not lean: kmr()
        a('s_waitcnt lgkmcnt(0)')
        for et in range(4):
            for tau in range(2):
                a('ds_read_b64_tr_b16 %s, v%d offset:%d' % (vr(vA + 6 * et + 2 * tau, 2), s.vVr, tau * 4096 + (et // 2) * 1024 + (et % 2) * 8))
        for t in range(4):
            for tau in range(2):
                a('v_mfma_f32_16x16x32_bf16 %s, %s, %s, %s' % (vr(vS + 4 * tau, 4), vr(vK + 16 * tau + 4 * t, 4), vr(vQ + 4 * t, 4), '0' if t == 0 else vr(vS + 4 * tau, 4)))
        if lean:
            msk()
            lean()
            kmr()
        def vmr():
            for et in range(4):
                a('ds_read_u16 v%d, v%d offset:%d' % (vA + 6 * et + 4, s.vMr, (et // 2) * 512 + (et % 2) * 4))
                a('ds_read_u16 v%d, v%d offset:%d' % (vT + 8 + et, s.vMr, (et // 2) * 512 + (et % 2) * 4 + 16))
        if lean:
            vmr()
            a('s_waitcnt lgkmcnt(8)')
        for T in range(2):
            a('v_smfmac_f32_16x16x64_bf16 %s, %s, %s, v%d' % (vr(vS + 8, 4), vr(vKm + 4 * T, 4), vr(vQ + 8 * T, 8), s.vIdx))
        if merged:
            vmr()
            msk()
            a('s_waitcnt lgkmcnt(0)')
            a('s_barrier')
        elif not lean:
            a('s_waitcnt lgkmcnt(0)')
            vmr()
            msk()
        a('v_pk_add_f32 %s, %s, %s' % (vr(vS + 8, 2), vr(vS + 8, 2), vr(vS + 10, 2)))
        m, m2 = vT, vT + 1
        def xred(op):
            for sw in ('v_permlane16_swap_b32', 'v_permlane32_swap_b32'):
                a('v_mov_b32 v%d, v%d' % (m2, m))
                a('%s v%d, v%d' % (sw, m, m2))
                a('%s v%d, v%d, v%d' % (op, m, m, m2))
        a('v_max3_f32 v%d, v%d, v%d, v%d' % (m, vS, vS + 1, vS + 2))
        for k in range(3, 9, 2): a('v_max3_f32 v%d, v%d, v%d, v%d' % (m, m, vS + k, vS + k + 1))
        a('v_max_f32 v%d, v%d, v%d' % (m, m, vS + 9))
        xred('v_max_f32')
        a('v_mul_f32 v%d, s%d, v%d' % (m, s.sScale, m))
        for k in range(10): a('v_fma_f32 v%d, v%d, s%d, -v%d' % (vS + k, vS + k, s.sScale, m))
        for k in range(10): a('v_exp_f32 v%d, v%d' % (vS + k, vS + k))
        a('v_pk_add_f32 %s, %s, %s' % (vr(m, 2), vr(vS, 2), vr(vS + 2, 2)))
        for k in (4, 6, 8): a('v_pk_add_f32 %s, %s, %s' % (vr(m, 2), vr(m, 2), vr(vS + k, 2)))
        a('v_add_f32 v%d, v%d, v%d' % (m, m, m2))
        xred('v_add_f32')
        a('v_rcp_f32 v%d, v%d' % (m, m))
        for k in range(10): a('v_mul_f32 v%d, v%d, v%d' % (vS + k, vS + k, m))
        p = vT + 2
        for k in range(5): a('v_cvt_pk_bf16_f32 v%d, v%d, v%d' % (p + k, vS + 2 * k, vS + 2 * k + 1))
        a('v_mov_b32 v%d, 0' % (p + 5))
        a('s_waitcnt lgkmcnt(0)')
        for et in range(4): a('v_lshl_or_b32 v%d, v%d, 16, v%d' % (vA + 6 * et + 4, vT + 8 + et, vA + 6 * et + 4))
        for et in range(4): a('v_mfma_f32_16x16x32_bf16 %s, %s, %s, 0' % (vr(vD + 4 * et, 4), vr(vA + 6 * et, 4), vr(p, 4)))
        for et in range(4): a('v_mfma_f32_16x16x16_bf16 %s, %s, %s, %s' % (vr(vD + 4 * et, 4), vr(vA + 6 * et + 4, 2), vr(p + 4, 2), vr(vD + 4 * et, 4)))
        for pr in range(2):
            r = vD + 8 * pr
            for i in range(4): a('v_cvt_pk_bf16_f32 v%d, v%d, v%d' % (r + i, r + 2 * i, r + 2 * i + 1))
            a('buffer_store_dwordx4 %s, v%d, s[%d:%d], s%d offen offset:%d sc1' % (vr(r, 4), s.vL16, S_WS, S_WS + 3, s.sOst, pr * 1024))
        assert not fill
        a = A
        if not (merged or lean):
            for r in (s.vQr, s.vKr, s.vVr): a('v_xor_b32 v%d, 0x%x, v%d' % (r, s.BUF1, r))
    def readback(s):
        if not s.RB: return
        a = s.a
        a('s_bitcmp1_b32 s%d, 0' % s.sDo)
        a('s_cselect_b32 s%d, s%d, 0x%x' % (sT0, s.sOst, WS_DUMP))
        a('s_mov_b64 exec, 0xffff')
        a('buffer_load_dword v%d, v11, s[%d:%d], s%d offen sc1' % (s.vT + 3, S_WS, S_WS + 3, sT0))
        a('s_mov_b64 exec, -1')
    def fload(s):
        a = s.a
        l = a.newlabel('Lf')
        s.cond(2, l)
        s.wait_ctr(1)
        for x in s.rs(sT0, s.sF, 19): a(x)
        a('s_add_u32 s%d, s%d, s%d' % (sT0, sT0, s.sPld))
        for i in range(4): a('buffer_load_dwordx4 %s, v%d, s[%d:%d], s%d offen offset:%d sc1' % (vr(s.vF + 4 * i, 4), s.vL16, S_WS, S_WS + 3, sT0, i * 1024))
        a.label(l)
        a('s_lshl_b32 s%d, s%d, 17' % (s.sFo, s.sF))
        a('s_bitcmp1_b32 s%d, 2' % s.sDo)
        a('s_cselect_b32 s%d, s%d, 0x%x' % (s.sFo, s.sFo, WS_DUMP))
    def oproj(s, lean=False, havepo=False):
        a = s.a; vD = s.vD; vB = s.vB
        seq = [(rt, k) for k in range(32) for rt in range(2)]
        NB, AH = 12, 10
        def rd(i):
            rt, k = seq[i]
            a('ds_read_b128 %s, v%d offset:%d' % (vr(vB + 4 * (i % NB), 4), s.vOr, rt * 32768 + k * 1024))
        for i in range(AH): rd(i)
        if not havepo:
            for x in s.rs(s.sPo, s.sO, 19): a(x)
            a('s_add_u32 s%d, s%d, s%d' % (s.sPo, s.sPo, s.sPst))
        nl = [] if lean else s.next_list()
        for i, (rt, k) in enumerate(seq):
            if i + AH < 64: rd(i + AH)
            if i % 2 == 0: a('s_waitcnt lgkmcnt(%d)' % min(AH - 1, 62 - i))
            for nt in range(2):
                d = vr(vD + 4 * (2 * rt + nt), 4)
                a('v_mfma_f32_16x16x32_bf16 %s, %s, %s, %s' % (d, ar((k * 2 + nt) * 4, 4), vr(vB + 4 * (i % NB), 4), '0' if k == 0 else d))
                if i >= s.NL0 and nl: a(nl.pop(0))
            if i == s.MID and not lean:
                s.mark(13)
                a('s_waitcnt vmcnt(0)')
                a('s_barrier')
                s.mark(14)
                s.signals()
                s.readback()
                s.fload()
                s.mark(15)
        assert not nl
        if not lean: s.mark(108)
        if not lean: a('s_waitcnt vmcnt(2)')
        for t in range(4):
            a('buffer_store_dwordx4 %s, v%d, s[%d:%d], s%d offen sc1' % (vr(vD + 4 * t, 4), s.vL16, S_WS, S_WS + 3, s.sPo))
            a('s_add_u32 s%d, s%d, 4096' % (s.sPo, s.sPo))
    def start_early(s):
        a = s.a
        s.early = True
        a('s_mov_b32 s%d, s%d' % (s.sPf, sTeam))
        a('s_mov_b32 s%d, %d' % (s.sBuf, s.BUF1))
        a('v_lshlrev_b32 v%d, 4, v0' % s.vL16)
        s.flat(s.prefetch_list())
        a('s_lshl_b32 s%d, s%d, 10' % (sT2, sW))
        a('v_add_u32 v%d, s%d, v%d' % (s.vKmw, sT2, s.vL16))
        a('s_lshl_b32 s%d, s%d, 17' % (sT0, sTeam))
        a('s_lshl_b32 s%d, s%d, 12' % (sT1, sMem))
        a('s_add_u32 s%d, s%d, s%d' % (sT0, sT0, sT1))
        a('s_add_u32 s%d, s%d, 0x%x' % (sT0, sT0, WS_KVM))
        a('buffer_load_dwordx4 %s, v%d, s[%d:%d], s%d offen sc1' % (vr(s.vP, 4), s.vKmw, S_WS, S_WS + 3, sT0))
    def finish(s, vF=None, vT=None):
        a = s.a; vT = vT or s.vT; vF = vF or s.vF
        for h in range(2):
            a('v_pk_add_f32 %s, %s, %s' % (vr(vF + 2 * h, 2), vr(vF + 2 * h, 2), vr(vF + 4 + 2 * h, 2)))
            a('v_pk_add_f32 %s, %s, %s' % (vr(vF + 8 + 2 * h, 2), vr(vF + 8 + 2 * h, 2), vr(vF + 12 + 2 * h, 2)))
            a('v_pk_add_f32 %s, %s, %s' % (vr(vF + 2 * h, 2), vr(vF + 2 * h, 2), vr(vF + 8 + 2 * h, 2)))
            a('v_cvt_pk_bf16_f32 v%d, v%d, v%d' % (vT + h, vF + 2 * h, vF + 2 * h + 1))
        a('buffer_store_dwordx2 %s, v%d, s[%d:%d], s%d offen%s' % (vr(vT, 2), s.vOst, S_OUT, S_OUT + 3, s.sFo, s.NTO))
    def run(s, wait_g1):
        a = s.a; vT = s.vT; vF = s.vF
        s.setup()
        s.bases()
        if s.early:
            for r in (s.vQr, s.vKr, s.vVr): a('v_xor_b32 v%d, 0x%x, v%d' % (r, s.BUF1, r))
        else: wait_g1()
        a('s_barrier')
        for k in range(4): a('s_mov_b32 s%d, 0x%x' % (s.sSch + k, s.sched(16)[k]))
        a('s_mov_b32 s%d, 16' % s.sNit)
        for r in (s.sA, s.sO, s.sF, s.sS, s.sPf): a('s_mov_b32 s%d, s%d' % (r, sTeam))
        if not s.early: a('s_mov_b32 s%d, 0' % s.sBuf)
        a('s_mov_b32 s%d, -1' % s.sI)
        a('s_mov_b32 s%d, 0' % s.sDo)
        for i in range(4): a('v_mov_b32 v%d, -1' % (vF + i))
        a('s_add_u32 s%d, s%d, 60' % (sT0, sTeam))
        a('s_lshl_b32 s%d, s%d, 19' % (sT0, sT0))
        a('s_add_u32 s%d, s%d, s%d' % (sT0, sT0, s.sPst))
        for t in range(4):
            a('buffer_store_dwordx4 %s, v%d, s[%d:%d], s%d offen sc1' % (vr(vF, 4), s.vL16, S_WS, S_WS + 3, sT0))
            a('s_add_u32 s%d, s%d, 4096' % (sT0, sT0))
        a('s_add_u32 s%d, s%d, 60' % (sT0, sTeam))
        a('s_lshl_b32 s%d, s%d, 18' % (sT0, sT0))
        a('s_add_u32 s%d, s%d, s%d' % (sT0, sT0, s.bOst))
        for t in range(2): a('buffer_store_dwordx4 %s, v%d, s[%d:%d], s%d offen offset:%d sc1' % (vr(vF, 4), s.vL16, S_WS, S_WS + 3, sT0, t * 1024))
        if not s.early: s.flat(s.prefetch_list())
        for x in s.next_list():
            if not (s.early and 'buffer_load' in x): a(x)
        a('s_waitcnt vmcnt(%d)' % (10 if s.early else 0))
        a.label('L_ao_loop')
        s.mark(10); s.mark(9)
        a('s_mov_b32 s%d, s%d' % (s.sDo, s.sDn))
        a('s_bitcmp1_b32 s%d, 1' % s.sDo)
        a('s_cselect_b32 s%d, s%d, 0x%x' % (s.sOld, s.sOld, WS_DUMP))
        a('s_cbranch_scc0 L_ao_2')
        s.wait_ctr(0)
        a.label('L_ao_2')
        s.cond(0, 'L_ao_noA')
        s.wait_km()
        a('ds_write_b128 v%d, %s offset:%d' % (s.vKmw, vr(s.vP, 4), s.L_KM))
        a('s_add_u32 s%d, s%d, 4' % (s.sPf, s.sA))
        a('s_cmp_lt_u32 s%d, 64' % s.sPf)
        a('s_cselect_b32 s%d, s%d, 1024' % (s.sPf, s.sPf))
        a('s_xor_b32 s%d, s%d, 0x%x' % (s.sBuf, s.sBuf, s.BUF1))
        a('s_waitcnt lgkmcnt(0)')
        a('s_barrier')
        s.mark(11)
        s.attn()
        s.cond(1, 'L_ao_noO')
        s.mark(7)
        a('s_waitcnt vmcnt(9)')
        a('s_branch L_ao_3')
        a.label('L_ao_noA')
        s.cond(1, 'L_ao_noO')
        a('s_barrier')
        s.flat(s.odma_list())
        if s.tail_touch: s.tail_touch()
        a('s_waitcnt vmcnt(0)')
        a.label('L_ao_3')
        a('s_barrier')
        s.mark(12)
        s.oproj()
        a('s_branch L_ao_6')
        a.label('L_ao_noO')
        a('s_waitcnt vmcnt(0)')
        a('s_barrier')
        s.signals()
        s.fload()
        for x in s.next_list(): a(x)
        a('s_waitcnt vmcnt(0)')
        a.label('L_ao_6')
        s.finish()
        a('s_waitcnt vmcnt(5)')
        a('s_cmp_lt_u32 s%d, s%d' % (s.sI, s.sNit))
        a('s_cbranch_scc1 L_ao_loop')
        s.mark(10)
        a.label('L_ao_tail')
        a('s_waitcnt vmcnt(0)')
        a('s_barrier')
        a('s_mov_b32 s%d, 8' % s.sDo)
        s.signals()
        def km_arrives():
            s.wait_km()
            a('ds_write_b128 v%d, %s offset:%d' % (s.vKmw, vr(s.vP, 4), s.L_KM))
            a('s_waitcnt lgkmcnt(0)')
            a('s_barrier')
            s.mark(11)
        a('s_mov_b32 s%d, 1' % s.sDo)
        s.attn(km_arrives)
        a('buffer_load_dword v%d, off, s[%d:%d], s%d sc1' % (s.vP + 3, S_WS, S_WS + 3, s.sCP))
        a('s_add_u32 s%d, s%d, 8192' % (s.sCP, s.sCP))
        a(s.ld_ctr(1))
        a('s_waitcnt vmcnt(0)')
        if not s.OS:
            a('s_barrier')
            s.signals()
        s.mark(12)
        if not s.OS: s.wait_ctr(0)
        s.flat(s.odma_list())
        s.wait_ctr(1)
        a('s_sub_u32 s%d, s%d, 8192' % (s.sCP, s.sCP))
        a('v_mov_b32 v%d, v%d' % (s.vP + 5, s.vP + 3))
        s.wait_ctr(1)
        a('s_lshl_b32 s%d, s%d, 19' % (s.sCP, s.sF))
        a('s_add_u32 s%d, s%d, s%d' % (s.sCP, s.sCP, s.sPld))
        for k in range(2):
            for i in range(4): a('buffer_load_dwordx4 %s, v%d, s[%d:%d], s%d offen offset:%d sc1' % (vr(s.vQ + 16 * k + 4 * i, 4), s.vL16, S_WS, S_WS + 3, s.sCP, i * 1024))
            a('s_add_u32 s%d, s%d, 0x200000' % (s.sCP, s.sCP))
        a('s_lshl_b32 s%d, s%d, 17' % (s.sFo, s.sF))
        a('s_waitcnt vmcnt(8)')
        if s.OS:
            a('v_add_u32 v%d, s%d, v%d' % (vT + 1, sT3, s.vL16))
            def chko(ok):
                for c in range(2):
                    for i in range(8): a('ds_read_b128 %s, v%d offset:%d' % (vr(s.vB + 4 * i, 4), vT + 1, (8 * c + i) * 1024))
                    for i in range(8):
                        a('s_waitcnt lgkmcnt(%d)' % (7 - i))
                        for h in range(2): a('v_max3_u32 v%d, v%d, v%d, v%d' % (vT, vT if c + i + h else s.vB, s.vB + 4 * i + 2 * h, s.vB + 4 * i + 2 * h + 1))
                a('v_cmp_eq_u32 vcc, -1, v%d' % vT)
                a('s_cbranch_vccz %s' % ok)
            s.spin(lambda: s.flat(s.odma_list()), chko, 0)
        a('s_barrier')
        s.mark(13)
        s.oproj(True)
        s.mark(14)
        a('s_waitcnt vmcnt(4)')
        for k in range(2):
            s.finish(s.vQ + 16 * k, vT + 2 + 2 * k)
            a('s_add_u32 s%d, s%d, 0x80000' % (s.sFo, s.sFo))
        def ldf():
            for i in range(4): a('buffer_load_dwordx4 %s, v%d, s[%d:%d], s%d offen offset:%d sc1' % (vr(vF + 4 * i, 4), s.vL16, S_WS, S_WS + 3, s.sCP, i * 1024))
        def chk(ok):
            a('v_max3_u32 v%d, v%d, v%d, v%d' % (vT, vF, vF + 1, vF + 2))
            for i in range(3, 15, 2): a('v_max3_u32 v%d, v%d, v%d, v%d' % (vT, vT, vF + i, vF + i + 1))
            a('v_max_u32 v%d, v%d, v%d' % (vT, vT, vF + 15))
            a('v_cmp_eq_u32 vcc, -1, v%d' % vT)
            a('s_cbranch_vccz %s' % ok)
        a('s_waitcnt vmcnt(2)')
        ldf()
        a('s_waitcnt vmcnt(0)')
        s.spin(ldf, chk, 1)
        s.finish()

class AO2(AO):
    L_O = 28672
    vO = 204
    sC0, sSg, sFl, sOb, sDl = 88, 89, 90, 91, 92
    def off(s, dst, lag, sh, base, hi=14):
        return ['s_sub_u32 s%d, s%d, %d' % (sT0, s.sI, lag) if lag >= 0 else 's_add_u32 s%d, s%d, %d' % (sT0, s.sI, -lag),
] + (['s_min_u32 s%d, s%d, 15' % (sT0, sT0)] if lag == -1 else []) + [
                's_lshl2_add_u32 s%d, s%d, s%d' % (dst, sT0, sTeam), 's_lshl_b32 s%d, s%d, %d' % (dst, dst, sh)] + \
               (['s_add_u32 s%d, s%d, s%d' % (dst, dst, base)] if base else []) + \
               ['s_cmp_le_u32 s%d, %d\ns_cselect_b32 s%d, s%d, 0x%x' % (sT0, hi, dst, dst, WS_DUMP)]
    def odma2(s):
        o = []
        for i in range(16):
            g = ['s_add_u32 m0, s%d, %d' % (s.sOb, i * 1024), 's_add_u32 s%d, s%d, %d' % (sT3, s.sOld, i * 1024)] if i % 4 == 0 else []
            o.append('\n'.join(g + ['buffer_load_dwordx4 v%d, s[%d:%d], s%d offen offset:%d sc1 lds' % (s.vL16, S_WS, S_WS + 3, sT3, (i % 4) * 1024)]))
        return o
    def pf2(s):
        return ['s_add_u32 m0, s%d, %d\ns_add_u32 s%d, s%d, 0x%x\nbuffer_load_dwordx4 v%d, s[%d:%d], s%d offen sc1 lds' %
                (s.sBuf, mi * 8192 + tau * 4096, sT2, s.sPf, base + tau * 131072, s.vL16, S_WS, S_WS + 3, sT2)
                for mi, base in enumerate((WS_QF, WS_KF, WS_VF)) for tau in range(2)]
    def sig2(s, regs, v=None):
        a = s.a
        v = v or s.vT + 2
        l = a.newlabel('Lsig')
        a('s_cmp_eq_u32 s%d, 0' % sW)
        a('s_cbranch_scc0 %s' % l)
        a('v_mov_b32 v%d, 1' % v)
        a('s_mov_b64 exec, 1')
        for r in regs: a('buffer_atomic_add v%d, off, s[%d:%d], s%d sc1' % (v, S_WS, S_WS + 3, r))
        a('s_mov_b64 exec, -1')
        a.label(l)
    def capture(s, f):
        A = s.a; L = []
        s.a = L.append
        f()
        s.a = A
        return L
    def nxt(s):
        return (['s_add_u32 s%d, s%d, 1' % (s.sI, s.sI)] + s.off(s.sCO, 2, 11, s.bCO) + s.off(s.sCP, 5, 11, s.bCP) +
                s.off(s.sC0, 1, 11, s.bCO) + s.off(s.sSg, 4, 11, s.bCP) + s.off(s.sOld, 2, 18, s.bOld) + s.off(s.sFl, 5, 19, s.sPld) +
                ['s_add_u32 s%d, s%d, s%d' % (s.sOb, s.sOb, s.sDl), 's_sub_u32 s%d, 0, s%d' % (s.sDl, s.sDl)])
    def run(s, wait_g1):
        a = s.a; vT = s.vT; vF = s.vF; vB = s.vB
        s.setup(); s.bases()
        sPb = s.sS
        a('s_lshl_b32 s%d, s%d, 12' % (sPb, sMem))
        a('s_lshl_b32 s%d, s%d, 10' % (s.sBuf, sW))
        a('s_add_u32 s%d, s%d, s%d' % (sPb, sPb, s.sBuf))
        a('s_and_b32 s%d, s%d, 1' % (s.sOb, sW))
        a('s_lshl_b32 s%d, s%d, 15' % (s.sOb, s.sOb))
        a('s_lshr_b32 s%d, s%d, 1' % (sT2, sW))
        a('s_lshl_b32 s%d, s%d, 14' % (sT2, sT2))
        a('s_add_u32 s%d, s%d, s%d' % (s.sOb, s.sOb, sT2))
        a('s_add_u32 s%d, s%d, %d' % (s.sOb, s.sOb, s.L_O))
        a('s_mov_b32 s%d, 65536' % s.sDl)
        wait_g1()
        a('s_barrier')
        a('s_mov_b32 s%d, -1' % s.sI)
        for i in range(4): a('v_mov_b32 v%d, -1' % (vF + i))
        for x in s.off(s.sPo, -16, 19, s.sPst, 15) + s.off(s.sOst, -16, 18, s.bOst, 15): a(x)
        for t in range(4):
            a('buffer_store_dwordx4 %s, v%d, s[%d:%d], s%d offen sc1' % (vr(vF, 4), s.vL16, S_WS, S_WS + 3, s.sPo))
            a('s_add_u32 s%d, s%d, 4096' % (s.sPo, s.sPo))
        for t in range(2): a('buffer_store_dwordx4 %s, v%d, s[%d:%d], s%d offen offset:%d sc1' % (vr(vF, 4), s.vL16, S_WS, S_WS + 3, s.sOst, t * 1024))
        for x in s.off(s.sPf, -1, 18, sPb, 15) + s.pf2() + s.off(s.sKm, -1, 17, s.bKm) + [s.km_ld()] + s.nxt(): a(x)
        a('s_waitcnt vmcnt(0)')
        a.label('L_ao_loop')
        s.mark(10); s.mark(9)
        a(s.ld_ctr(0)); a(s.ld_ctr(1))
        s.wait_km()
        a('ds_write_b128 v%d, %s offset:%d' % (s.vKmw, vr(s.vP, 4), s.L_KM))
        a('s_waitcnt lgkmcnt(0)')
        a('s_barrier')
        s.mark(11)
        att = s.capture(lambda: s.attn(merged=True))
        fin = s.capture(lambda: s.finish(vF, 220))
        pre = s.off(s.sPf, -1, 18, sPb, 15) + s.off(s.sKm, -1, 17, s.bKm) + s.off(s.sOst, 0, 18, s.bOst) + s.off(s.sPo, 3, 19, s.sPst) + s.off(s.sFo, 5, 17, None)
        mem = ['buffer_load_dwordx4 %s, v%d, s[%d:%d], s%d offen offset:%d sc1' % (vr(vF + 4 * i, 4), s.vL16, S_WS, S_WS + 3, s.sFl, i * 1024) for i in range(4)] + s.pf2() + s.odma2() + [s.km_ld()]
        late = ['FWAIT'] + fin + s.nxt()
        lds, vm = [], []
        def emit(x, tag):
            if x == 's_waitcnt lgkmcnt(0)':
                k = max(i for i, t in enumerate(lds) if t == 'a')
                a('s_waitcnt lgkmcnt(%d)' % min(14, len(lds) - 1 - k)); return
            if x == 'FWAIT':
                a('s_waitcnt vmcnt(%d)' % (len(vm) - 4)); return
            if x == 's_barrier':
                s.mark(12)
                a('s_waitcnt vmcnt(0)')
                a(x)
                s.sig2((s.sC0, s.sSg), 222)
                for reg, k in ((s.sCO, 0), (s.sCP, 1)):
                    l = a.newlabel('Lao')
                    a('s_cmp_eq_u32 s%d, 0x%x' % (reg, WS_DUMP))
                    a('s_cbranch_scc1 %s' % l)
                    s.wait_ctr(k)
                    a.label(l)
                s.mark(13)
                return
            assert not ('buffer_store' in x and mem)
            a(x)
            if x.startswith('ds_'): lds.append(tag)
            if 'buffer_' in x: vm.append(tag)
        seq = [(rt, k) for k in range(32) for rt in range(2)]
        NB, AH = 12, 6
        rd = lambda i: emit('ds_read_b128 %s, v%d offset:%d' % (vr(vB + 4 * (i % NB), 4), s.vOr, seq[i][0] * 32768 + seq[i][1] * 1024), i)
        for i in range(AH): rd(i)
        passed = False
        g = 0
        for i, (rt, k) in enumerate(seq):
            if i + AH < 64: rd(i + AH)
            a('s_waitcnt lgkmcnt(%d)' % min(14, len(lds) - 1 - lds.index(i)))
            for nt in range(2):
                d = vr(s.vO + 4 * (2 * rt + nt), 4)
                a('v_mfma_f32_16x16x32_bf16 %s, %s, %s, %s' % (d, ar((k * 2 + nt) * 4, 4), vr(vB + 4 * (i % NB), 4), '0' if k == 0 else d))
                g += 1
                dm_now = passed and mem and nt == 0
                for _ in range(1 if dm_now else 2):
                    if att and not (att[0] == 's_barrier' and pre) and not ('buffer_store' in att[0] and mem):
                        x = att.pop(0); emit(x, 'a'); passed |= x == 's_barrier'
                if pre: emit(pre.pop(0), 'e')
                elif dm_now: emit(mem.pop(0), 'p')
                elif not att:
                    for _ in range(2):
                        if late: emit(late.pop(0), 'l')
        assert not (att or pre or mem), (len(att), len(late))
        for x in late: emit(x, 'l')
        s.mark(108)
        a('v_add_u32 v%d, s%d, v%d' % (s.vOr, s.sDl, s.vOr))
        a('s_waitcnt vmcnt(3)')
        for t in range(4):
            a('buffer_store_dwordx4 %s, v%d, s[%d:%d], s%d offen sc1' % (vr(s.vO + 4 * t, 4), s.vL16, S_WS, S_WS + 3, s.sPo))
            a('s_add_u32 s%d, s%d, 4096' % (s.sPo, s.sPo))
        a('s_cmp_lt_u32 s%d, 18' % s.sI)
        a('s_cbranch_scc1 L_ao_loop')
        s.mark(10)
        for x in s.off(s.sKm, 3, 17, s.bKm, 15) + s.off(s.sOst, 3, 18, s.bOst, 15) + s.off(s.sOld, 3, 18, s.bOld, 15) + s.off(s.sPo, 3, 19, s.sPst, 15) + s.off(s.sFo, 5, 17, None): a(x)
        a('s_add_u32 s%d, s%d, s%d' % (s.sOb, s.sOb, s.sDl))
        s.ld_km()
        a('s_waitcnt vmcnt(0)')
        a('s_barrier')
        s.sig2((s.sSg,))
        def km_arrives():
            s.wait_km()
            a('ds_write_b128 v%d, %s offset:%d' % (s.vKmw, vr(s.vP, 4), s.L_KM))
            a('s_waitcnt lgkmcnt(0)')
            a('s_barrier')
            s.mark(11)
        s.attn(km_arrives)
        a(s.ld_ctr(1))
        a('buffer_load_dword v%d, off, s[%d:%d], s%d sc1' % (s.vP + 2, S_WS, S_WS + 3, s.sSg))
        a('s_waitcnt vmcnt(0)')
        s.mark(12)
        dm = lambda: [a(x) for x in s.odma2()]
        dm()
        for k in range(2):
            if k:
                a('s_add_u32 s%d, s%d, 8192' % (s.sCP, s.sCP))
                a('v_mov_b32 v%d, v%d' % (s.vP + 5, s.vP + 1 + k))
            s.wait_ctr(1)
        for k in range(2):
            for i in range(4): a('buffer_load_dwordx4 %s, v%d, s[%d:%d], s%d offen offset:%d sc1' % (vr(s.vQ + 16 * k + 4 * i, 4), s.vL16, S_WS, S_WS + 3, s.sFl, i * 1024))
            a('s_add_u32 s%d, s%d, 0x200000' % (s.sFl, s.sFl))
        a('v_add_u32 v%d, s%d, v%d' % (vT + 1, s.sOb, s.vL16))
        a('s_waitcnt vmcnt(8)')
        def chko(ok):
            for c in range(2):
                for i in range(8): a('ds_read_b128 %s, v%d offset:%d' % (vr(vB + 4 * i, 4), vT + 1, (8 * c + i) * 1024))
                for i in range(8):
                    a('s_waitcnt lgkmcnt(%d)' % (7 - i))
                    for h in range(2): a('v_max3_u32 v%d, v%d, v%d, v%d' % (vT, vT if c + i + h else vB, vB + 4 * i + 2 * h, vB + 4 * i + 2 * h + 1))
            a('v_cmp_eq_u32 vcc, -1, v%d' % vT)
            a('s_cbranch_vccz %s' % ok)
        s.spin(dm, chko, 0)
        a('s_barrier')
        s.mark(13)
        s.oproj(True, True)
        s.mark(14)
        a('s_waitcnt vmcnt(4)')
        for k in range(2):
            s.finish(s.vQ + 16 * k, vT + 2 + 2 * k)
            a('s_add_u32 s%d, s%d, 0x80000' % (s.sFo, s.sFo))
        def ldf():
            for i in range(4): a('buffer_load_dwordx4 %s, v%d, s[%d:%d], s%d offen offset:%d sc1' % (vr(vF + 4 * i, 4), s.vL16, S_WS, S_WS + 3, s.sFl, i * 1024))
        def chk(ok):
            a('v_max3_u32 v%d, v%d, v%d, v%d' % (vT, vF, vF + 1, vF + 2))
            for i in range(3, 15, 2): a('v_max3_u32 v%d, v%d, v%d, v%d' % (vT, vT, vF + i, vF + i + 1))
            a('v_max_u32 v%d, v%d, v%d' % (vT, vT, vF + 15))
            a('v_cmp_eq_u32 vcc, -1, v%d' % vT)
            a('s_cbranch_vccz %s' % ok)
        a('s_waitcnt vmcnt(2)')
        ldf()
        a('s_waitcnt vmcnt(0)')
        s.spin(ldf, chk, 1)
        s.finish()

class Conv:
    def mark(s, i): pass
    CH = 7600
    L_H = 8 * 7600
    HC = 4160
    L_W = 8 * 7600 + 16 * 4160
    def __init__(s, a): s.a = a
    def warm(s, NX=4):
        a = s.a
        a('s_and_b32 s%d, s%d, %d' % (sT0, sMem, 31 if NX == 4 else 15))
        a('s_lshl_b32 s%d, s%d, 2' % (sT0, sT0))
        a('s_add_u32 s%d, s%d, s%d' % (sT0, sT0, sW))
        a('s_lshl_b32 s%d, s%d, %d' % (sT0, sT0, 15 if NX == 4 else 16))
        a('s_lshl_b32 s%d, s%d, 9' % (sT1, sTeam))
        a('s_add_u32 s%d, s%d, s%d' % (sT0, sT0, sT1))
        if NX == 4: bits(a, 28, [(2, 4, 11), (0, 2, 7)])
        else:
            a('s_lshr_b32 s%d, s%d, 4' % (sT1, sMem))
            a('s_lshl_b32 s%d, s%d, 8' % (sT1, sT1))
            a('s_add_u32 s%d, s%d, s%d' % (sT0, sT0, sT1))
            bits(a, 28, [(1, 5, 11), (0, 1, 7)])
        for i, srd in enumerate((S_AK, S_AV, S_AQ)): a('buffer_load_dword v%d, v28, s[%d:%d], s%d offen' % (20 + i, srd, srd + 3, sT0))
        a('s_lshl_b32 s%d, s%d, 5' % (sT0, sTeam))
        a('s_add_u32 s%d, s%d, s%d' % (sT0, sT0, sMem))
        a('s_lshl_b32 s%d, s%d, 2' % (sT0, sT0))
        a('s_add_u32 s%d, s%d, s%d' % (sT0, sT0, sW))
        a('s_lshl_b32 s%d, s%d, 13' % (sT0, sT0))
        a('v_lshlrev_b32 v28, 7, v0')
        a('buffer_load_dword v23, v28, s[%d:%d], s%d offen' % (S_AH, S_AH + 3, sT0))
    def run(s, sKq=None, sCb=None):
        a = s.a
        WO = sKq is not None
        CH, L_H, HC = s.CH, s.L_H, s.HC
        sD0, sWs, sWl, sRaw = 45, 46, 47, 56
        vRow, vW, vG, vBp, vY, vHl, vHw, vWs, vWr, vT = 1, 2, 3, 4, 5, 6, 7, 8, 9, 10
        vKV = 32; vC = 64; vK = 104; vV = 148; vE = 180; hw = 232
        vm = []
        def issue(tag, x): a(x); vm.append(tag)
        def wait(tag):
            k = max(i for i, t in enumerate(vm) if t == tag)
            a('s_waitcnt vmcnt(%d)' % (len(vm) - 1 - k))
        a('s_barrier')
        a('s_lshl_b32 s%d, s%d, 5' % (sD0, sTeam))
        a('s_add_u32 s%d, s%d, s%d' % (sD0, sD0, sMem))
        a('s_load_dwordx2 s[72:73], s[0:1], %d' % KA['A_shift'])
        a('s_load_dwordx2 s[74:75], s[0:1], %d' % KA['A_ssmD'])
        a('s_lshl_b32 s%d, s%d, 6' % (sT0, sD0))
        a('s_lshl_b32 s%d, s%d, 4' % (sT1, sD0))
        a('s_waitcnt lgkmcnt(0)')
        a('s_load_dwordx16 s[56:71], s[72:73], s%d' % sT0)
        a('s_load_dwordx4 s[48:51], s[74:75], s%d' % sT1)
        a('s_lshl_b32 s%d, s%d, 20' % (sT0, sW))
        a('s_add_u32 s%d, s%d, s%d' % (sT0, sT0, sT1))
        bits(a, vRow, [(0, 6, 14)], 's%d' % sT0)
        for r in range(-3, 8):
            a('v_add_u32 v%d, 0x%x, v%d' % (vT, (r * 2048) & 0xffffffff, vRow))
            issue('kv', 'buffer_load_dwordx4 %s, v%d, s[%d:%d], 0 offen' % (vr(vK + 4 * (r + 3), 4), vT, S_AK, S_AK + 3))
            if r >= 0: issue('kv', 'buffer_load_dwordx4 %s, v%d, s[%d:%d], 0 offen' % (vr(vV + 4 * r, 4), vT, S_AV, S_AV + 3))
        a('s_lshl_b32 s%d, s%d, 15' % (sT0, sD0))
        a('s_lshl_b32 s%d, s%d, 13' % (sT1, sW))
        a('s_add_u32 s%d, s%d, s%d' % (sT0, sT0, sT1))
        bits(a, vHl, [(0, 6, 4)], 's%d' % sT0)
        def hload(ch):
            if ch: a('v_add_u32 v%d, 4096, v%d' % (vHl, vHl))
            a('v_subrev_u32 v%d, 8, v%d' % (vT + 1, vHl))
            for i in range(4):
                issue('h%d' % ch, 'buffer_load_dwordx2 %s, v%d, s[%d:%d], 0 offen offset:%d' % (vr(hw + 6 * i, 2), vT + 1 if i == 0 else vHl, S_AH, S_AH + 3, 0 if i == 0 else i * 1024 - 8))
                issue('h%d' % ch, 'buffer_load_dwordx4 %s, v%d, s[%d:%d], 0 offen offset:%d' % (vr(hw + 6 * i + 2, 4), vHl, S_AH, S_AH + 3, i * 1024))
        hload(0)
        if WO:
            a('s_lshl_b32 s%d, s%d, 21' % (sWs, sKq))
            a('s_lshl_b32 s%d, s%d, 8' % (sT0, sCb))
            a('s_add_u32 s%d, s%d, s%d' % (sWs, sWs, sT0))
            a('s_lshl_b32 s%d, s%d, 6' % (sT0, sW))
            a('s_add_u32 s%d, s%d, s%d' % (sWs, sWs, sT0))
            bits(a, vWs, [(2, 4, 11), (0, 2, 4)])
            a('s_lshl_b32 s%d, s%d, 13' % (sWl, sW))
            a('s_add_u32 s%d, s%d, %d' % (sWl, sWl, s.L_W))
            bits(a, vWr, [(2, 4, 6), (0, 2, 3)], 's%d' % sWl)
        def wdma(j):
            a('s_add_u32 m0, s%d, %d' % (sWl, (j % 8) * 1024))
            issue('w%d' % j, 'buffer_load_dwordx4 v%d, s[%d:%d], s%d offen lds' % (vWs, S_WO, S_WO + 3, sWs))
            a('s_add_u32 s%d, s%d, 0x8000' % (sWs, sWs))
        def wtr(j):
            wait('w%d' % j)
            for nt in range(2):
                a('ds_read_b64_tr_b16 %s, v%d offset:%d' % (ar(((j // 2) * 2 + nt) * 4 + 2 * (j % 2), 2), vWr, (j % 8) * 1024 + nt * 32))
        for j in range(7 if WO else 0): wdma(j)
        for i in range(4): a('v_mov_b32 v%d, 0' % (vT + 4 + i))
        a('s_lshl_b32 s%d, s%d, 10' % (sT0, sW))
        bits(a, vT, [(0, 6, 4)], 's%d' % sT0)
        a('v_cmp_gt_u32 vcc, 2480, v%d' % vT)
        a('s_and_saveexec_b64 s[72:73], vcc')
        for ch in range(8): a('ds_write_b128 v%d, %s offset:%d' % (vT, vr(vT + 4, 4), ch * CH))
        a('s_mov_b64 exec, 0xffff')
        a('s_mul_i32 s%d, s%d, %d' % (sT2, sW, 4 * HC))
        a('s_add_u32 s%d, s%d, %d' % (sT2, sT2, L_H))
        a('s_add_u32 s%d, s%d, 4096' % (sT0, sT2))
        bits(a, vT, [(2, 2, 12), (2, 2, 6), (0, 2, 4)], 's%d' % sT0)
        a('ds_write_b128 v%d, %s' % (vT, vr(vT + 4, 4)))
        a('s_mov_b64 exec, -1')
        a('s_mul_i32 s%d, s%d, %d' % (sT0, sW, 16 * 80))
        a('s_add_u32 s%d, s%d, %d' % (sT0, sT0, 31 * 80))
        bits(a, vW, [(2, 4, 6), (2, 4, 4), (0, 2, 4)], 's%d' % sT0)
        a('v_and_b32 v%d, 31, v0' % vT)
        a('v_sub_u32 v%d, 31, v%d' % (vT, vT))
        a('v_and_b32 v%d, 3, v%d' % (vT + 1, vT))
        a('v_and_b32 v%d, 28, v%d' % (vT, vT))
        a('v_mul_u32_u24 v%d, %d, v%d' % (vT + 1, HC, vT + 1))
        a('v_lshl_add_u32 v%d, v%d, 1, v%d' % (vT, vT, vT + 1))
        bits(a, vG, [(5, 1, 4)], 's%d' % sT2)
        a('v_add_u32 v%d, v%d, v%d' % (vG, vG, vT))
        a('v_sub_u32 v%d, 63, v0' % vT)
        a('v_lshlrev_b32 v%d, 4, v%d' % (vT, vT))
        a('v_add_u32 v%d, s%d, v%d' % (vHw, sT2, vT))
        a('s_mul_i32 s%d, s%d, %d' % (sT1, sW, 2 * CH))
        bits(a, vBp, [(0, 5, 6), (0, 5, 4), (5, 1, 4)], 's%d' % sT1)
        a('s_add_u32 s%d, s%d, %d' % (sT1, sT1, 31 * 80))
        bits(a, vY, [(0, 5, 6), (0, 5, 4), (5, 1, 3)], 's%d' % sT1)
        a('s_waitcnt lgkmcnt(0)')
        for ch in range(8):
            for j in range(4):
                src = sRaw + 2 * ch + j // 2
                if j % 2 == 0: a('v_lshlrev_b32 v%d, 16, s%d' % (vC + 8 * j + ch, src))
                else:
                    a('s_and_b32 s%d, s%d, 0xffff0000' % (sT0, src))
                    a('v_mov_b32 v%d, s%d' % (vC + 8 * j + ch, sT0))
            if ch % 2 == 0: a('v_lshlrev_b32 v%d, 16, s%d' % (vC + 32 + ch, 48 + ch // 2))
            else:
                a('s_and_b32 s%d, s%d, 0xffff0000' % (sT0, 48 + ch // 2))
                a('v_mov_b32 v%d, s%d' % (vC + 32 + ch, sT0))
        a('s_mov_b32 s72, 0xffff')
        wait('kv')
        s.mark(6)
        def unpack(dst, src):
            a('v_lshlrev_b32 v%d, 16, v%d' % (dst, src))
            a('v_and_b32 v%d, 0xffff0000, v%d' % (dst + 1, src))
        for cp in range(4):
            kf = vE; ac = vE + 22; vf = vE + 38
            for r in range(11): unpack(kf + 2 * r, vK + 4 * r + cp)
            for r in range(8):
                a('v_pk_mul_f32 %s, %s, %s' % (vr(ac + 2 * r, 2), vr(kf + 2 * r, 2), vr(vC + 24 + 2 * cp, 2)))
            for j in (2, 1, 0):
                for r in range(8):
                    a('v_pk_fma_f32 %s, %s, %s, %s' % (vr(ac + 2 * r, 2), vr(kf + 2 * (r + 3 - j), 2), vr(vC + 8 * j + 2 * cp, 2), vr(ac + 2 * r, 2)))
            for r in range(8):
                unpack(vf + 2 * (r % 4), vV + 4 * r + cp)
                a('v_pk_mul_f32 %s, %s, %s' % (vr(ac + 2 * r, 2), vr(ac + 2 * r, 2), vr(vf + 2 * (r % 4), 2)))
            for e in range(2):
                ch = 2 * cp + e
                for k in range(4): a('v_cvt_pk_bf16_f32 v%d, v%d, v%d' % (vKV + 4 * ch + k, ac + 4 * k + e, ac + 4 * k + 2 + e))
                a('ds_write_b128 v%d, %s offset:%d' % (vW, vr(vKV + 4 * ch, 4), ch * CH))
        wj = {'tr': 0}
        for chn in range(2):
            a('v_cmp_ne_u32 vcc, 0, v0')
            wait('h%d' % chn)
            for k in range(2): a('v_cndmask_b32 v%d, 0, v%d, vcc' % (hw + k, hw + k))
            for i in range(4):
                wv = lambda idx: hw + 6 * i + 2 + idx
                for r in range(4):
                    o = vE + 16 * (i % 2) + 4 * r
                    for k in range(4):
                        if r % 2 == 0:
                            x = wv((6 - r - 2 * k) // 2)
                            a('v_alignbit_b32 v%d, v%d, v%d, 16' % (o + k, x, x))
                        else:
                            e0 = (7 - r - 2 * k) // 2
                            a('v_bfi_b32 v%d, s72, v%d, v%d' % (o + k, wv(e0), wv(e0 - 1)))
                    a('ds_write_b128 v%d, %s offset:%d' % (vHw, vr(o, 4), r * HC + (3 - i) * 1024))
                a('s_waitcnt lgkmcnt(4)')
            a('s_waitcnt lgkmcnt(0)')
            if chn == 0:
                a('s_barrier')
                s.mark(7)
                hload(1)
            steps = [(c, kk) for c in range(64) for kk in range(2)]
            NB, AH = 4, 3
            cb = chn * CH
            def rd(i):
                c, kk = steps[i]; m = 2 * c - kk; b = vE + 12 * (i % NB); n = 3
                for h in range(2): a('ds_read_b64 %s, v%d offset:%d' % (vr(b + 2 * h, 2), vG, (126 - m) * 32 + 8 * h))
                a('ds_read_b128 %s, v%d offset:%d' % (vr(b + 4, 4), vBp, cb + (63 - c) * 80 + kk * 32))
                if c < 32:
                    a('ds_read_b128 %s, v%d offset:%d' % (vr(b + 8, 4), vBp, cb + (31 - c) * 80 + kk * 32)); n = 4
                return n
            cnt = [rd(i) for i in range(AH)]
            y0, y1 = vr(vK, 16), vr(vK + 16, 16)
            nm = 0
            for i, (c, kk) in enumerate(steps):
                a('s_waitcnt lgkmcnt(%d)' % sum(cnt[i + 1:]))
                b = vE + 12 * (i % NB)
                a('v_mfma_f32_32x32x16_bf16 %s, %s, %s, %s' % (y1, vr(b, 4), vr(b + 4, 4), '0' if i == 0 else y1))
                n = rd(i + AH) if i + AH < len(steps) else 0
                if c < 32: a('v_mfma_f32_32x32x16_bf16 %s, %s, %s, %s' % (y0, vr(b, 4), vr(b + 8, 4), '0' if i == 0 else y0))
                pm = nm; nm += 2 if c < 32 else 1
                if WO and nm // 6 != pm // 6:
                    j = wj['tr']; wj['tr'] += 1
                    if j >= 1 and j + 6 < 64: wdma(j + 6)
                    wtr(j); n += 2
                if chn == 1 and i % 8 == 4 and i < 64:
                    r = i // 8
                    a('v_add_u32 v%d, 0x%x, v%d' % (vT, r * 2048, vRow))
                    issue('q', 'buffer_load_dwordx4 %s, v%d, s[%d:%d], 0 offen' % (vr(vV + 4 * r, 4), vT, S_AQ, S_AQ + 3))
                cnt.append(n)
            for half in range(2):
                for q in range(4):
                    o = vK + 16 * half + 4 * q
                    for h in range(2): a('v_cvt_pk_bf16_f32 v%d, v%d, v%d' % (o + h, o + 2 * h, o + 1 + 2 * h))
                    a('ds_write_b64 v%d, %s offset:%d' % (vY, vr(o, 2), cb + half * 32 * 80 + q * 16))
        assert not WO or wj['tr'] == 64
        a('s_waitcnt vmcnt(0) lgkmcnt(0)')
        a('s_barrier')
        s.mark(8)
        yb = vK
        for ch in range(8): a('ds_read_b128 %s, v%d offset:%d' % (vr(yb + 4 * ch, 4), vW, ch * CH))
        a('s_lshl_b32 s%d, s%d, 21' % (sT0, sW))
        a('s_lshl_b32 s%d, s%d, 4' % (sT1, sD0))
        a('s_add_u32 s%d, s%d, s%d' % (sT0, sT0, sT1))
        bits(a, vRow, [(0, 6, 15)])
        a('s_waitcnt lgkmcnt(0)')
        for k in range(4):
            for cp in range(4):
                t = vE + 12 * (cp % 2)
                for e in range(2):
                    ch = 2 * cp + e
                    unpack(t + 4 * e, yb + 4 * ch + k)
                    unpack(t + 4 * e + 2, vKV + 4 * ch + k)
                    for h in range(2): a('v_fma_f32 v%d, v%d, v%d, v%d' % (t + 4 * e + h, t + 4 * e + 2 + h, vC + 32 + ch, t + 4 * e + h))
                for h in range(2):
                    q = vV + 4 * (2 * k + h) + cp
                    unpack(t + 8, q)
                    for e in range(2): a('v_mul_f32 v%d, v%d, v%d' % (t + 8 + e, t + 8 + e, t + 4 * e + h))
                    a('v_cvt_pk_bf16_f32 v%d, v%d, v%d' % (q, t + 8, t + 9))
            for h in range(2):
                a('buffer_store_dwordx4 %s, v%d, s[%d:%d], s%d offen' % (vr(vV + 4 * (2 * k + h), 4), vRow, S_OUT, S_OUT + 3, sT0))
                a('s_add_u32 s%d, s%d, 4096' % (sT0, sT0))

class Conv2:
    def mark(s, i): pass
    CH = 7600; L_H = 8 * 7600; HC = 4160
    def __init__(s, a): s.a = a
    def unpack(s, dst, src):
        s.a('v_lshlrev_b32 v%d, 16, v%d' % (dst, src))
        s.a('v_and_b32 v%d, 0xffff0000, v%d' % (dst + 1, src))
    P1R = (20, 21, 22, 140, 48, 64, 108, 172, 220)
    sP1 = 59
    nnew = 0
    fake = 0
    NTO = ''
    NTQ = ''
    NT = ''
    S_AH = S_AH; S_AQ = S_AQ; sDv = 48
    RM = dict(vKV=32, vC=64, vQ=72, vK=104, vE=136, hw0=208)
    ld = dict(sW=sW, s1=sT1, s2=sT2, va=6, vb=7, tmp=31)
    def p1_load(s, S_SH):
        a = s.a
        vRow, vO, vT, vC, vR, vK, vV, vE, vP = s.P1R
        a('s_lshl_b32 s%d, s%d, 5' % (sT2, sTeam))
        a('s_add_u32 s%d, s%d, s%d' % (sT2, sT2, sMem))
        a('s_lshr_b32 s%d, s%d, 3' % (sT3, sT2))
        a('s_and_b32 s%d, s%d, 7' % (sT2, sT2))
        a('s_lshl_b32 s%d, s%d, 2' % (sT2, sT2))
        a('s_add_u32 s%d, s%d, s%d' % (sT2, sT2, sW))
        a('s_lshl_b32 s%d, s%d, 17' % (sT0, sT2))
        a('s_lshl_b32 s%d, s%d, 7' % (sT1, sT3))
        a('s_add_u32 s%d, s%d, s%d' % (sT0, sT0, sT1))
        bits(a, vRow, [(3, 3, 14), (0, 3, 4)], 's%d' % sT0)
        a('s_lshl_b32 s%d, s%d, 9' % (sT0, sT3))
        bits(a, vT, [(0, 3, 6)], 's%d' % sT0)
        for i in range(4): a('buffer_load_dwordx4 %s, v%d, s[%d:%d], 0 offen offset:%d' % (vr(vR + 4 * i, 4), vT, S_SH, S_SH + 3, 16 * i))
        for r in range(-3, 8):
            a('v_add_u32 v%d, 0x%x, v%d' % (vT + 1, (r * 2048) & 0xffffffff, vRow))
            a('buffer_load_dwordx4 %s, v%d, s[%d:%d], 0 offen%s' % (vr(vK + 4 * (r + 3), 4), vT + 1, S_AK, S_AK + 3, s.NT))
        for r in range(8):
            a('v_add_u32 v%d, 0x%x, v%d' % (vT + 1, r * 2048, vRow))
            a('buffer_load_dwordx4 %s, v%d, s[%d:%d], 0 offen%s' % (vr(vV + 4 * r, 4), vT + 1, S_AV, S_AV + 3, s.NT))
        a('s_lshl_b32 s%d, s%d, 18' % (sT0, sT3))
        a('s_lshl_b32 s%d, s%d, 7' % (sT1, sT2))
        a('s_add_u32 s%d, s%d, s%d' % (sT0, sT0, sT1))
        a('s_add_u32 s%d, s%d, 0x%x' % (s.sP1, sT0, WS_KVT))
        bits(a, vO, [(3, 3, 15), (0, 3, 4)])
    def p1_compute(s):
        a = s.a
        vRow, vO, vT, vC, vR, vK, vV, vE, vP = s.P1R
        a('s_lshl_b32 s%d, s%d, 13' % (sT0, sW))
        a('s_add_u32 s%d, s%d, 131072' % (sT0, sT0))
        a('v_lshrrev_b32 v%d, 3, v0' % vT)
        a('v_xor_b32 v%d, v0, v%d' % (vT, vT))
        a('v_and_b32 v%d, 7, v%d' % (vT, vT))
        a('v_lshlrev_b32 v%d, 4, v%d' % (vT, vT))
        a('v_add_u32 v%d, s%d, v%d' % (vT, sT0, vT))
        a('v_and_b32 v%d, 7, v0' % vRow)
        a('v_lshl_add_u32 v%d, v%d, 7, v%d' % (vRow, vRow, vT))
        a('v_lshrrev_b32 v31, 3, v0')
        a('v_lshl_add_u32 v%d, v31, 7, v%d' % (vT, vT))
        for ch in range(8):
            for jp in range(2):
                src = vR + 2 * ch + jp
                a('v_lshlrev_b32 v%d, 16, v%d' % (vC + 8 * (2 * jp) + ch, src))
                a('v_and_b32 v%d, 0xffff0000, v%d' % (vC + 8 * (2 * jp + 1) + ch, src))
        for cp in range(4):
            kf = vE; ac = vE + 22; vf = vE + 38
            for r in range(11): s.unpack(kf + 2 * r, vK + 4 * r + cp)
            for r in range(8):
                a('v_pk_mul_f32 %s, %s, %s' % (vr(ac + 2 * r, 2), vr(kf + 2 * r, 2), vr(vC + 24 + 2 * cp, 2)))
            for j in (2, 1, 0):
                for r in range(8):
                    a('v_pk_fma_f32 %s, %s, %s, %s' % (vr(ac + 2 * r, 2), vr(kf + 2 * (r + 3 - j), 2), vr(vC + 8 * j + 2 * cp, 2), vr(ac + 2 * r, 2)))
            for r in range(8):
                s.unpack(vf + 2 * (r % 4), vV + 4 * r + cp)
                a('v_pk_mul_f32 %s, %s, %s' % (vr(ac + 2 * r, 2), vr(ac + 2 * r, 2), vr(vf + 2 * (r % 4), 2)))
            for e in range(2):
                ch = 2 * cp + e
                for k in range(4): a('v_cvt_pk_bf16_f32 v%d, v%d, v%d' % (vP + 4 * ch + k, ac + 4 * k + e, ac + 4 * k + 2 + e))
                a('ds_write_b128 v%d, %s offset:%d' % (vRow, vr(vP + 4 * ch, 4), ch * 1024))
        a('s_waitcnt lgkmcnt(0)')
        for ch in range(8): a('ds_read_b128 %s, v%d offset:%d' % (vr(vP + 4 * ch, 4), vT, ch * 1024))
        for ch in range(8):
            a('s_waitcnt lgkmcnt(%d)' % (7 - ch))
            a('buffer_store_dwordx4 %s, v%d, s[%d:%d], s%d offen sc1' % (vr(vP + 4 * ch, 4), vO, S_WS, S_WS + 3, s.sP1))
            a('s_add_u32 s%d, s%d, 4096' % (s.sP1, s.sP1))
    def hload(s, hi, sIdx):
        a = s.a
        vHl, vX, hw0 = s.ld['va'], s.ld['vb'], s.RM['hw0']
        sW, sT1, sT2 = s.ld['sW'], s.ld['s1'], s.ld['s2']
        a('s_lshl_b32 s%d, s%d, 15' % (sT1, sIdx))
        a('s_lshl_b32 s%d, s%d, 13' % (sT2, sW))
        a('s_add_u32 s%d, s%d, s%d' % (sT1, sT1, sT2))
        bits(a, vHl, [(0, 6, 4)], 's%d' % sT1, s.ld['tmp'])
        for ch in range(2):
            hw = hw0 + 24 * ch
            if ch: a('v_add_u32 v%d, 4096, v%d' % (vHl, vHl))
            a('v_subrev_u32 v%d, 8, v%d' % (vX, vHl))
            for i in range(4 if hi else 2):
                a('buffer_load_dwordx2 %s, v%d, s[%d:%d], 0 offen offset:%d' % (vr(hw + 6 * i, 2), vX if i == 0 else vHl, s.S_AH, s.S_AH + 3, 0 if i == 0 else i * 1024 - 8))
                a('buffer_load_dwordx4 %s, v%d, s[%d:%d], 0 offen offset:%d' % (vr(hw + 6 * i + 2, 4), vHl, s.S_AH, s.S_AH + 3, i * 1024))
    WO = False
    at_bar = None
    pre_final = None
    in_loop = None
    sWs, sWl, vWs, vWr = 57, 58, 26, 27
    L_W = 8 * 7600 + 16 * 4160
    def wo_setup(s, sKq, sCb):
        a = s.a
        s.WO = True
        a('s_lshl_b32 s%d, s%d, 21' % (s.sWs, sKq))
        a('s_lshl_b32 s%d, s%d, 8' % (sT0, sCb))
        a('s_add_u32 s%d, s%d, s%d' % (s.sWs, s.sWs, sT0))
        a('s_lshl_b32 s%d, s%d, 6' % (sT0, sW))
        a('s_add_u32 s%d, s%d, s%d' % (s.sWs, s.sWs, sT0))
        bits(a, s.vWs, [(2, 4, 11), (0, 2, 4)])
        a('s_lshl_b32 s%d, s%d, 13' % (s.sWl, sW))
        a('s_add_u32 s%d, s%d, %d' % (s.sWl, s.sWl, s.L_W))
        bits(a, s.vWr, [(2, 4, 6), (0, 2, 3)], 's%d' % s.sWl)
    def wdma(s, j):
        a = s.a
        a('s_add_u32 m0, s%d, %d' % (s.sWl, (j % 8) * 1024))
        a('buffer_load_dwordx4 v%d, s[%d:%d], s%d offen lds' % (s.vWs, S_WO, S_WO + 3, s.sWs))
        a('s_add_u32 s%d, s%d, 0x8000' % (s.sWs, s.sWs))
    def kvload(s, hi, sIdx):
        a = s.a
        sW, sT1, sT2, vb = s.ld['sW'], s.ld['s1'], s.ld['s2'], s.ld['vb']
        a('s_lshl_b32 s%d, s%d, 15' % (sT2, sIdx))
        a('s_lshl_b32 s%d, s%d, 10' % (sT1, sW))
        a('s_add_u32 s%d, s%d, s%d' % (sT2, sT2, sT1))
        a('s_add_u32 s%d, s%d, 0x%x' % (sT2, sT2, WS_KVT))
        if not hi:
            a('s_cmp_lt_u32 s%d, 2' % sW)
            a('s_cselect_b32 s%d, s%d, 0x%x' % (sT2, sT2, WS_DUMP))
        a('v_lshlrev_b32 v%d, 4, v0' % vb)
        for ch in range(8):
            a('buffer_load_dwordx4 %s, v%d, s[%d:%d], s%d offen sc1' % (vr(s.RM['vKV'] + 4 * ch, 4), vb, S_WS, S_WS + 3, sT2))
            a('s_add_u32 s%d, s%d, 4096' % (sT2, sT2))
    def core(s, wait_p1, hi, sIdx, pre_h=False):
        a = s.a
        CH, L_H, HC = s.CH, s.L_H, s.HC
        sD0, sCh = 45, 56
        vRow, vW, vG, vBp, vY, vHl, vHw, vR, vT = 1, 2, 3, 4, 5, 6, 7, 8, 10
        vKV, vC, vQ, vK, vE, hw0 = [s.RM[k] for k in ('vKV', 'vC', 'vQ', 'vK', 'vE', 'hw0')]
        NI = 4 if hi else 2
        tg = 'h' if hi else 'l'
        FULL = hi == 2
        if FULL: hi = 0
        RW = 4 if FULL else 2
        a('s_mov_b32 s%d, s%d' % (sD0, sIdx))
        if s.sDv == 48: a('s_load_dwordx2 s[74:75], s[0:1], %d' % KA['A_ssmD'])
        if not pre_h: s.hload(hi, sIdx)
        if not pre_h: s.kvload(hi, sIdx)
        a('s_lshl_b32 s%d, s%d, 4' % (sT1, sD0))
        if s.sDv == 48:
            a('s_waitcnt lgkmcnt(0)')
            a('s_load_dwordx4 s[48:51], s[74:75], s%d' % sT1)
        a('s_lshl_b32 s%d, s%d, %d' % (sT0, sW, 19 + FULL))
        a('s_add_u32 s%d, s%d, s%d' % (sT0, sT0, sT1))
        if hi: a('s_add_u32 s%d, s%d, 0x200000' % (sT0, sT0))
        bits(a, vRow, [(0, 6, 13 + FULL)], 's%d' % sT0)
        if wait_p1: wait_p1()
        def qld():
            for r in range(0 if FULL else 4):
                a('buffer_load_dwordx4 %s, v%d, s[%d:%d], 0 offen offset:%d' % (vr(vQ + 4 * r, 4), vRow, s.S_AQ, s.S_AQ + 3, (r % 2) * 2048))
                if r == 1: a('v_add_u32 v%d, 4096, v%d' % (vRow, vRow))
        a('s_barrier')
        if s.WO:
            for j in range(6): s.wdma(j)
        for i in range(4): a('v_mov_b32 v%d, 0' % (vT + 4 + i))
        a('s_lshl_b32 s%d, s%d, 10' % (sT0, sW))
        bits(a, vT, [(0, 6, 4)], 's%d' % sT0)
        a('v_cmp_gt_u32 vcc, 2480, v%d' % vT)
        a('s_and_saveexec_b64 s[72:73], vcc')
        for ch in range(8): a('ds_write_b128 v%d, %s offset:%d' % (vT, vr(vT + 4, 4), ch * CH))
        a('s_mov_b64 exec, 0xffff')
        a('s_mul_i32 s%d, s%d, %d' % (sT2, sW, 4 * HC))
        a('s_add_u32 s%d, s%d, %d' % (sT2, sT2, L_H))
        a('s_add_u32 s%d, s%d, 4096' % (sT0, sT2))
        bits(a, vT, [(2, 2, 12), (2, 2, 6), (0, 2, 4)], 's%d' % sT0)
        a('ds_write_b128 v%d, %s' % (vT, vr(vT + 4, 4)))
        a('s_mov_b64 exec, -1')
        a('s_mul_i32 s%d, s%d, %d' % (sT0, sW, 16 * 80))
        a('s_add_u32 s%d, s%d, %d' % (sT0, sT0, 31 * 80))
        bits(a, vW, [(2, 4, 6), (2, 4, 4), (0, 2, 4)], 's%d' % sT0)
        a('s_mul_i32 s%d, s%d, %d' % (sT0, sW, 8 * 80))
        a('s_add_u32 s%d, s%d, %d' % (sT0, sT0, (31 + 32 * hi) * 80))
        bits(a, vR, [(3, 3, 6), (3, 3, 4), (0, 3, 3)], 's%d' % sT0)
        a('v_and_b32 v%d, 31, v0' % vT)
        a('v_sub_u32 v%d, 31, v%d' % (vT, vT))
        a('v_and_b32 v%d, 3, v%d' % (vT + 1, vT))
        a('v_and_b32 v%d, 28, v%d' % (vT, vT))
        a('v_mul_u32_u24 v%d, %d, v%d' % (vT + 1, HC, vT + 1))
        a('v_lshl_add_u32 v%d, v%d, 1, v%d' % (vT, vT, vT + 1))
        bits(a, vG, [(5, 1, 4)], 's%d' % sT2)
        a('v_add_u32 v%d, v%d, v%d' % (vG, vG, vT))
        a('v_sub_u32 v%d, 63, v0' % vT)
        a('v_lshlrev_b32 v%d, 4, v%d' % (vT, vT))
        a('v_add_u32 v%d, s%d, v%d' % (vHw, sT2, vT))
        a('s_mul_i32 s%d, s%d, %d' % (sT1, sW, 2 * CH))
        bits(a, vBp, [(0, 5, 6), (0, 5, 4), (5, 1, 4)], 's%d' % sT1)
        a('s_add_u32 s%d, s%d, %d' % (sT1, sT1, (31 + 32 * hi) * 80))
        bits(a, vY, [(0, 5, 6), (0, 5, 4), (5, 1, 3)], 's%d' % sT1)
        a('s_mov_b32 s72, 0xffff')
        a('s_waitcnt vmcnt(%d) lgkmcnt(0)' % s.nnew)
        s.mark(6)
        for ch in range(8): a('ds_write_b128 v%d, %s offset:%d' % (vW, vr(vKV + 4 * ch, 4), ch * CH))
        for ch in range(8):
            if ch % 2 == 0: a('v_lshlrev_b32 v%d, 16, s%d' % (vC + ch, s.sDv + ch // 2))
            else:
                a('s_and_b32 s%d, s%d, 0xffff0000' % (sT0, s.sDv + ch // 2))
                a('v_mov_b32 v%d, s%d' % (vC + ch, sT0))
        if not FULL:
            a('s_waitcnt lgkmcnt(0)')
            a('s_barrier')
            if s.at_bar: s.at_bar()
            for ch in range(8): a('ds_read_b64 %s, v%d offset:%d' % (vr(vKV + 2 * ch, 2), vR, ch * CH))
        a('s_mov_b32 s%d, 0' % sCh)
        a.label('L_cv2' + tg)
        hw = hw0
        a('v_cmp_ne_u32 vcc, 0, v0')
        for k in range(2): a('v_cndmask_b32 v%d, 0, v%d, vcc' % (hw + k, hw + k))
        for i in range(NI):
            wv = lambda idx: hw + 6 * i + 2 + idx
            for r in range(4):
                o = vE + 16 * (i % 2) + 4 * r
                for k in range(4):
                    if r % 2 == 0:
                        x = wv((6 - r - 2 * k) // 2)
                        a('v_alignbit_b32 v%d, v%d, v%d, 16' % (o + k, x, x))
                    else:
                        e0 = (7 - r - 2 * k) // 2
                        a('v_bfi_b32 v%d, s72, v%d, v%d' % (o + k, wv(e0), wv(e0 - 1)))
                a('ds_write_b128 v%d, %s offset:%d' % (vHw, vr(o, 4), r * HC + (3 - i) * 1024))
            a('s_waitcnt lgkmcnt(4)')
        a('s_waitcnt lgkmcnt(0)')
        a('s_barrier')
        if FULL:
            steps = [(c, kk) for c in range(32) for kk in range(2)]
            NB, AH = 4, 2
            def rd(i):
                c, kk = steps[i]; m = 2 * c - kk; b = vE + 16 * (i % NB)
                return (['ds_read_b64 %s, v%d offset:%d' % (vr(b + 2 * h, 2), vG, (126 - m) * 32 + 8 * h) for h in range(2)] +
                        ['ds_read_b128 %s, v%d offset:%d' % (vr(b + 4, 4), vBp, (63 - c) * 80 + kk * 32),
                         'ds_read_b128 %s, v%d offset:%d' % (vr(b + 8, 4), vBp, (31 - c) * 80 + kk * 32)] +
                        ['ds_read_b64 %s, v%d offset:%d' % (vr(b + 12 + 2 * h, 2), vG, (62 - m) * 32 + 8 * h) for h in range(2)])
            for i in range(AH):
                for x in rd(i): a(x)
            y0, y1 = vr(vK, 16), vr(vK + 16, 16)
            for i in range(64):
                a('s_waitcnt lgkmcnt(%d)' % (6 if i < 63 else 0))
                b = vE + 16 * (i % NB)
                nx = rd(i + AH) if i + AH < 64 else []
                a('v_mfma_f32_32x32x16_bf16 %s, %s, %s, %s' % (y1, vr(b, 4), vr(b + 4, 4), '0' if i == 0 else y1))
                for x in nx[:2]: a(x)
                a('v_mfma_f32_32x32x16_bf16 %s, %s, %s, %s' % (y0, vr(b, 4), vr(b + 8, 4), '0' if i == 0 else y0))
                for x in nx[2:4]: a(x)
                a('v_mfma_f32_32x32x16_bf16 %s, %s, %s, %s' % (y1, vr(b + 12, 4), vr(b + 8, 4), y1))
                for x in nx[4:]: a(x)
                if i < 24: a('v_mov_b32 v%d, v%d' % (hw + i, hw + 24 + i))
                if i == 0: a('s_waitcnt vmcnt(0)')
                if i < 16: a('v_mov_b32 v%d, v%d' % (vQ + i, vQ + 16 + i))
                if i >= 16 and i % 8 == 4 and i < 48:
                    a('buffer_load_dwordx4 %s, v%d, s[%d:%d], 0 offen' % (vr(vQ + 16 + 4 * (i // 8 - 2), 4), vRow, s.S_AQ, s.S_AQ + 3))
                    a('v_add_u32 v%d, 2048, v%d' % (vRow, vRow))
            for half in range(2):
                for q in range(4):
                    o = vK + 16 * half + 4 * q
                    for h in range(2): a('v_cvt_pk_bf16_f32 v%d, v%d, v%d' % (o + h, o + 2 * h, o + 1 + 2 * h))
                    a('ds_write_b64 v%d, %s offset:%d' % (vY, vr(o, 2), half * 32 * 80 + q * 16))
        else:
            steps = [(c, kk) for c in range(64 if hi else 32) for kk in range(2)]
            NB, AH = 6, 4
            n = len(steps)
            def rd(i):
                c, kk = steps[i]; m = 2 * c - kk; b = vE + 8 * (i % NB)
                return (['ds_read_b64 %s, v%d offset:%d' % (vr(b + 2 * h, 2), vG, (126 - m) * 32 + 8 * h) for h in range(2)] +
                        ['ds_read_b128 %s, v%d offset:%d' % (vr(b + 4, 4), vBp, (31 + 32 * hi - c) * 80 + kk * 32)])
            lq = []
            def rdi(i):
                for x in rd(i): a(x); lq.append(i)
            for i in range(AH): rdi(i)
            y = vr(vK, 16)
            for i in range(n):
                a('s_waitcnt lgkmcnt(%d)' % (len(lq) - 1 - max(k for k, t in enumerate(lq) if t == i)))
                b = vE + 8 * (i % NB)
                a('v_mfma_f32_32x32x16_bf16 %s, %s, %s, %s' % (y, vr(b, 4), vr(b + 4, 4), '0' if i == 0 else y))
                if i + AH < n: rdi(i + AH)
                if i < 6 * NI: a('v_mov_b32 v%d, v%d' % (hw + i, hw + 24 + i))
                if s.WO:
                    j = i // 4
                    dst = [((j // 2) * 2 + nt) * 4 + 2 * (j % 2) for nt in range(2)]
                    if i % 4 == 0: s.wdma(j + 6)
                    if i % 4 in (1, 2):
                        for e in range(2): a('v_accvgpr_mov_b32 a%d, a%d' % (dst[i % 4 - 1] + e, 128 + dst[i % 4 - 1] + e))
                    if i % 4 == 3:
                        a('s_waitcnt vmcnt(6)')
                        for nt in range(2):
                            a('ds_read_b64_tr_b16 %s, v%d offset:%d' % (ar(128 + dst[nt], 2), s.vWr, (j % 8) * 1024 + nt * 32)); lq.append('w')
                if i == n - 40 and s.in_loop: s.in_loop()
                if i in (2, 10, 18, 26):
                    l = a.newlabel('Lq')
                    a('s_cmp_eq_u32 s%d, 1' % sCh)
                    a('s_cbranch_scc1 %s' % l)
                    a('buffer_load_dwordx4 %s, v%d, s[%d:%d], 0 offen%s' % (vr(vQ + 4 * (i // 8), 4), vRow, s.S_AQ, s.S_AQ + 3, s.NTQ))
                    a('v_add_u32 v%d, 2048, v%d' % (vRow, vRow))
                    a.label(l)
            for q in range(4):
                o = vK + 4 * q
                for h in range(2): a('v_cvt_pk_bf16_f32 v%d, v%d, v%d' % (o + h, o + 2 * h, o + 1 + 2 * h))
                a('ds_write_b64 v%d, %s offset:%d' % (vY, vr(o, 2), q * 16))
        a('v_add_u32 v%d, %d, v%d' % (vBp, CH, vBp))
        a('v_add_u32 v%d, %d, v%d' % (vY, CH, vY))
        a('s_add_u32 s%d, s%d, 1' % (sCh, sCh))
        a('s_cmp_lt_u32 s%d, 2' % sCh)
        a('s_cbranch_scc1 L_cv2' + tg)
        if s.pre_final: s.pre_final()
        a('s_waitcnt lgkmcnt(0)')
        a('s_barrier')
        s.mark(8)
        yb = vK
        for ch in range(8): a('ds_read_b%d %s, v%d offset:%d' % (32 * RW, vr(yb + RW * ch, RW), vW if FULL else vR, ch * CH))
        a('s_lshl_b32 s%d, s%d, %d' % (sT0, sW, 20 + FULL))
        a('s_lshl_b32 s%d, s%d, 4' % (sT1, sD0))
        a('s_add_u32 s%d, s%d, s%d' % (sT0, sT0, sT1))
        if hi: a('s_add_u32 s%d, s%d, 0x400000' % (sT0, sT0))
        bits(a, vRow, [(3, 3, 14), (0, 3, 4)] if s.fake & 2 else [(0, 6, 14 + FULL)])
        if s.fake & 2: a('s_and_b32 s%d, s%d, 0xffffff80' % (sT0, sT0))
        a('s_waitcnt vmcnt(%d) lgkmcnt(0)' % (7 if s.pre_final else 0))
        for k in range(RW):
            for cp in range(4):
                t = vE + 12 * (cp % 2)
                for e in range(2):
                    ch = 2 * cp + e
                    s.unpack(t + 4 * e, yb + RW * ch + k)
                    s.unpack(t + 4 * e + 2, vKV + RW * ch + k)
                    for h in range(2): a('v_fma_f32 v%d, v%d, v%d, v%d' % (t + 4 * e + h, t + 4 * e + 2 + h, vC + ch, t + 4 * e + h))
                for h in range(2):
                    q = vQ + 4 * (2 * k + h) + cp
                    s.unpack(t + 8, q)
                    for e in range(2): a('v_mul_f32 v%d, v%d, v%d' % (t + 8 + e, t + 8 + e, t + 4 * e + h))
                    a('v_cvt_pk_bf16_f32 v%d, v%d, v%d' % (q, t + 8, t + 9))
            for h in range(2):
                a('buffer_store_dwordx4 %s, v%d, s[%d:%d], s%d offen%s' % (vr(vQ + 4 * (2 * k + h), 4), vRow, S_OUT, S_OUT + 3, sT0, s.NTO))
                a('s_add_u32 s%d, s%d, 4096' % (sT0, sT0))
```

```python
import math, struct
from ag import *
from common import *

def f2u(x): return struct.unpack('<I', struct.pack('<f', x))[0]

L_R, L_P, L_KX, L_VX = 0, 20480, 32768, 65536
R_W, R_T, R_G = 4864, 776, 192
L_END = 131072
QKV_G = 12288
QKV_SLOT = 16 * QKV_G
PART_SLOT = 524288
WS_PART = 160 * MB
MT_SLOT = 131072

S_WS, S_WQ, S_WK, S_WV, S_WO, S_M0, S_DBG = 4, 8, 12, 16, 20, 24, 28
sW, sX, sC, sG, sJ, sStep, sLocal, sTmo = 32, 33, 34, 35, 36, 37, 38, 39
sQKst, sVst, sPARTst, sREDld, sMTst, sMTld, sCld, sKVMst, sKVoff = 40, 41, 42, 43, 44, 45, 46, 47, 48
sT0, sT1, sT2, sT3 = 49, 50, 51, 52
sA, sB, sCc, sD, sE, sF, sH = 53, 54, 55, 56, 57, 58, 59
sHiMask = 60
sTS = 62
sPrev = 64
sLdsC = 65
sScale = 66
sAcc = 68
sWarm = 84
sStMask = 86
sP = 88
sKst = 96
sK2 = 97
vL16, vL4, vRw, vRr, vRr2, vPw, vPw2, vKX, vVX, vIdx, vGate, vRed, vMld, vMst = range(1, 15)
vT = 16
vSent = 28
vD = 32
vU = 64
vWo2 = 128
vM = 192
vF = 224
vSel = 240
vK = 64
vX = 96

def wo(tt, off, n):
    return ar(192 + 32 * tt + off, n) if tt < 2 else vr(vWo2 + 32 * (tt - 2) + off, n)

class Chain:
    def __init__(s, a, prof=False, nsteps=64, opt=None):
        s.a = a; s.prof = prof; s.nsteps = nsteps; s.opt = opt or {}
        s.NX = s.opt.get('NX', 4); s.NP = s.NX // 4
    def stamp(s, i):
        a = s.a
        if s.opt.get('trace'):
            if i in s.opt['trace'] and getattr(s, 'inS', False):
                a('s_memrealtime s[%d:%d]' % (sTS, sTS + 1))
                a('s_waitcnt lgkmcnt(0)')
                a('s_mov_b32 m0, s%d' % sStep)
                a('s_nop 0')
                a('v_writelane_b32 v%d, s%d, m0' % (244 + i, sTS))
            return
        if not s.prof: return
        if s.opt.get('gprof') is not None:
            if i < 20: return
            i -= 20
        elif i >= 20: return
        a('s_memtime s[%d:%d]' % (sTS, sTS + 1))
        a('s_waitcnt lgkmcnt(0)')
        a('s_sub_u32 s%d, s%d, s%d' % (sTS + 1, sTS, sPrev))
        a('s_add_u32 s%d, s%d, s%d' % (sAcc + i, sAcc + i, sTS + 1))
        a('s_mov_b32 s%d, s%d' % (sPrev, sTS))
    def count(s, i):
        if s.prof: s.a('s_add_u32 s%d, s%d, 1' % (sAcc + i, sAcc + i))
    def st(s, data, voff, soff, off=0, n=1, sc1=True):
        op = {1: 'buffer_store_dword', 2: 'buffer_store_dwordx2', 4: 'buffer_store_dwordx4'}[n]
        s.a('%s %s, v%d, s[%d:%d], s%d offen offset:%d%s' % (op, vr(data, n), voff, S_WS, S_WS + 3, soff, off, ' sc1' if sc1 else ''))
    def lst(s, data, voff, soff, off=0, n=1): s.st(data, voff, soff, off, n, sc1=not s.local)
    def dma(s, soff, off, voff=vL16): s.a('buffer_load_dwordx4 v%d, s[%d:%d], s%d offen offset:%d sc1 lds' % (voff, S_WS, S_WS + 3, soff, off))
    def delay(s, key):
        for i in range(s.opt.get(key, 0)): s.a('s_nop 7')
    def tmo(s, retry):
        a = s.a
        a('s_sub_u32 s%d, s%d, 1' % (sTmo, sTmo))
        a('s_cbranch_scc0 %s' % retry)
        a('s_branch L_chain_fail')
    def maxtree(s, base, n, dst, first=True):
        a = s.a
        i = 0
        if first:
            a('v_max3_u32 v%d, v%d, v%d, v%d' % (dst, base, base + 1, base + 2)); i = 3
        while i + 1 < n:
            a('v_max3_u32 v%d, v%d, v%d, v%d' % (dst, dst, base + i, base + i + 1)); i += 2
        if i < n: a('v_max_u32 v%d, v%d, v%d' % (dst, dst, base + i))
    def halfsum(s, d, dst=None):
        s.a('v_pk_add_f32 %s, %s, %s' % (vr(d if dst is None else dst, 2), vr(d, 2), vr(d + 2, 2)))
    def zero(s, regs):
        regs = list(regs)
        for i in range(0, len(regs), 2):
            assert regs[i] % 2 == 0 and regs[i + 1] == regs[i] + 1
            s.a('v_mov_b64 %s, 0' % vr(regs[i], 2))
    def hopb_s1(s, tag, tail=None, after=()):
        if not s.opt.get('tree', True): return s.hopb_seq(tag, tail)
        if s.opt.get('queue'): return s.hopb_q(tag, after)
        a = s.a
        def ld(u): a('buffer_load_dwordx4 %s, v%d, s[%d:%d], s%d offen offset:%d sc1' % (vr(vM + 4 * u, 4), vMld, S_WS, S_WS + 3, sH, u * 1024))
        def chk(u, n):
            return ['s_waitcnt vmcnt(%d)' % n,
                    'v_max3_u32 v%d, v%d, v%d, v%d' % (vT, vM + 4 * u, vM + 4 * u + 1, vM + 4 * u + 2),
                    'v_max_u32 v%d, v%d, v%d' % (vT, vT, vM + 4 * u + 3),
                    'v_cmp_eq_u32 vcc, -1, v%d' % vT]
        def mf(u, t6): a('v_smfmac_f32_16x16x64_bf16 %s, %s, %s, v%d' % (vr(vD + 4 * t6, 4), vr(vM + 4 * u, 4), ar((t6 * 4 + u) * 8, 8), vIdx))
        nm = lambda kind, F, R: 'L_b%s_%s_%s_%s' % (kind, ''.join(map(str, F)), ''.join(map(str, R)), tag)
        todo, seen = [], set()
        def want(kind, F, R):
            key = (kind, F, R)
            if key not in seen: seen.add(key); todo.append(key)
            return nm(kind, F, R)
        def chain(F, R):
            while True:
                u, rest = R[0], R[1:]
                a('s_cbranch_vccnz %s' % want('f', F + (u,), rest))
                if rest:
                    c = chk(rest[0], len(rest) - 1)
                    mf(u, 0); mf(u, 1); a(c[0]); a(c[1]); mf(u, 2); a(c[2]); a(c[3]); mf(u, 3); mf(u, 4); mf(u, 5)
                    R = rest
                    continue
                if F:
                    for x in F: ld(x)
                    for t6 in range(6): mf(u, t6)
                    a('s_branch %s' % want('c', (), F))
                else:
                    for t6 in range(6): mf(u, t6)
                    a('s_branch L_loop_%s' % tag)
                return
        for u in range(4): ld(u)
        for x in after: a(x)
        seen.add(('c', (), (0, 1, 2, 3)))
        a.label(nm('c', (), (0, 1, 2, 3)))
        for x in chk(0, 3): a(x)
        chain((), (0, 1, 2, 3))
        def stubs():
            while todo:
                kind, F, R = todo.pop(0)
                if kind == 'c' and (kind, F, R, 'done') in seen: continue
                a.label(nm(kind, F, R))
                if kind == 'f' and not R:
                    for x in F: ld(x)
                    s.count(11)
                    a('s_sub_u32 s%d, s%d, 1' % (sTmo, sTmo))
                    a('s_cbranch_scc1 L_chain_fail')
                    if ('c', (), F) in emitted:
                        a('s_branch %s' % nm('c', (), F))
                        continue
                    seen.add(('c', (), F)); seen.add(('c', (), F, 'done'))
                    a.label(nm('c', (), F))
                    F, R = (), F
                    kind = 'c'
                if kind == 'c': emitted.add(('c', F, R))
                for x in chk(R[0], len(R) - 1): a(x)
                chain(F, R)
        emitted = {('c', (), (0, 1, 2, 3))}
        return stubs
    def hopb_q(s, tag, after):
        a = s.a
        def ld(u): a('buffer_load_dwordx4 %s, v%d, s[%d:%d], s%d offen offset:%d sc1' % (vr(vM + 4 * u, 4), vMld, S_WS, S_WS + 3, sH, u * 1024))
        def chk(u, n):
            return ['s_waitcnt vmcnt(%d)' % n,
                    'v_max3_u32 v%d, v%d, v%d, v%d' % (vT, vM + 4 * u, vM + 4 * u + 1, vM + 4 * u + 2),
                    'v_max_u32 v%d, v%d, v%d' % (vT, vT, vM + 4 * u + 3),
                    'v_cmp_eq_u32 vcc, -1, v%d' % vT]
        def mf(u, t6): a('v_smfmac_f32_16x16x64_bf16 %s, %s, %s, v%d' % (vr(vD + 4 * t6, 4), vr(vM + 4 * u, 4), ar((t6 * 4 + u) * 8, 8), vIdx))
        nm = lambda k, Q: 'L_q%s%s_%s' % (k, ''.join(map(str, Q)), tag)
        todo, want, done = [], set(), set()
        pos = s.opt.get('qpos', 4)
        def chain(Q, early):
            while True:
                if Q in done:
                    a('s_branch %s' % nm('t', Q)); return
                if not early:
                    done.add(Q); a.label(nm('t', Q))
                if Q not in want: want.add(Q); todo.append(Q)
                a('s_cbranch_vccnz %s' % nm('f', Q))
                u, rest = Q[0], Q[1:]
                if not rest:
                    for t6 in range(6): mf(u, t6)
                    if s.opt.get('inl', True):
                        s.s1write()
                        a('s_branch L_loopw_%s' % tag); return
                    a('s_branch L_loop_%s' % tag); return
                c = chk(rest[0], len(rest) - 1)
                p = 2 if early else pos
                for t6 in range(6):
                    if t6 == p: a(c[0]); a(c[1])
                    if t6 == p + 1: a(c[2]); a(c[3])
                    mf(u, t6)
                if p >= 6: a(c[0]); a(c[1])
                if p + 1 >= 6: a(c[2]); a(c[3])
                Q = rest
        for u in range(4): ld(u)
        for x in after: a(x)
        for x in chk(0, 3): a(x)
        chain((0, 1, 2, 3), True)
        def stubs():
            while todo:
                Q = todo.pop(0)
                a.label(nm('f', Q))
                ld(Q[0])
                R = Q[1:] + Q[:1]
                if Q[0] == max(Q):
                    s.count(11)
                    a('s_sub_u32 s%d, s%d, 1' % (sTmo, sTmo))
                    a('s_cbranch_scc1 L_chain_fail')
                for x in chk(R[0], len(R) - 1): a(x)
                if R in done:
                    a('s_cbranch_vccnz %s' % nm('f', R))
                chain(R, False)
        return stubs
    def hopb_seq(s, tag, tail=None):
        a = s.a
        def ld(u): a('buffer_load_dwordx4 %s, v%d, s[%d:%d], s%d offen offset:%d sc1' % (vr(vM + 4 * u, 4), vMld, S_WS, S_WS + 3, sH, u * 1024))
        def chk(u):
            return ['s_waitcnt vmcnt(%d)' % (3 - u),
                    'v_max3_u32 v%d, v%d, v%d, v%d' % (vT, vM + 4 * u, vM + 4 * u + 1, vM + 4 * u + 2),
                    'v_max_u32 v%d, v%d, v%d' % (vT, vT, vM + 4 * u + 3),
                    'v_cmp_eq_u32 vcc, -1, v%d' % vT]
        def mf(u, t6): a('v_smfmac_f32_16x16x64_bf16 %s, %s, %s, v%d' % (vr(vD + 4 * t6, 4), vr(vM + 4 * u, 4), ar((t6 * 4 + u) * 8, 8), vIdx))
        for u in range(4): ld(u)
        for x in chk(0): a(x)
        for u in range(4):
            a('s_cbranch_vccnz L_b%d_retry_%s' % (u, tag))
            a.label('L_b%d_ok_%s' % (u, tag))
            if u < 3:
                c = chk(u + 1)
                mf(u, 0); mf(u, 1); a(c[0]); a(c[1]); mf(u, 2); a(c[2]); a(c[3]); mf(u, 3); mf(u, 4); mf(u, 5)
            else:
                for t6 in range(6):
                    mf(u, t6)
                    if tail and t6 < len(tail): tail[t6]()
        a('s_branch L_loop_%s' % tag)
        def stubs():
            for u in range(4):
                a.label('L_b%d_retry_%s' % (u, tag))
                s.count(11)
                a('s_sub_u32 s%d, s%d, 1' % (sTmo, sTmo))
                a('s_cbranch_scc1 L_chain_fail')
                for uu in range(u, 4): ld(uu)
                for x in chk(u): a(x)
                a('s_cbranch_vccnz L_b%d_retry_%s' % (u, tag))
                a('s_branch L_b%d_ok_%s' % (u, tag))
        return stubs
    def s1unit(s, u, base=vM):
        for t6 in range(6):
            s.a('v_smfmac_f32_16x16x64_bf16 %s, %s, %s, v%d' % (vr(vD + 4 * t6, 4), vr(base + 4 * u, 4), ar((t6 * 4 + u) * 8, 8), vIdx))
    def ux(s, hooks=None):
        a = s.a
        hooks = hooks or {}
        seq = [(hl, tau, t) for hl in range(2) for tau in range(2) for t in range(4)]
        def rd(i):
            hl, tau, t = seq[i]
            a('ds_read_b128 %s, v%d offset:%d' % (vr(vM + 4 * (i % 8), 4), vVX, hl * 8192 + tau * 4096 + t * 1024))
        for i in range(6): rd(i)
        def cvt(gi, tt, h):
            hl, tau = gi // 2, gi % 2
            d = vD + 16 * (gi % 2) + 4 * tt
            u = vU + 16 * tt + 8 * hl + 2 * tau
            a('v_cvt_pk_bf16_f32 v%d, v%d, v%d' % (u + h, d + 2 * h, d + 2 * h + 1))
        n = 0
        for i, (hl, tau, t) in enumerate(seq):
            if i + 6 < 16: rd(i + 6)
            a('s_waitcnt lgkmcnt(%d)' % min(6, 15 - i))
            gi = i // 4
            for tt in range(4):
                if n in hooks: hooks[n]()
                n += 1
                d = vD + 16 * (gi % 2) + 4 * tt
                if s.opt.get('noux') and hooks: a('s_nop 3')
                else: a('v_mfma_f32_16x16x32_bf16 %s, %s, %s, %s' % (vr(d, 4), vr(vM + 4 * (i % 8), 4), wo(tt, 16 * hl + 4 * t, 4), '0' if t == 0 else vr(d, 4)))
                if gi > 0 and t >= 2: cvt(gi - 1, tt, t - 2)
        for tt in range(4):
            for h in range(2): cvt(3, tt, h)
        a('v_xor_b32 v%d, 0x4000, v%d' % (vVX, vVX))
    def dma_kv(s, sSeg, wsbase, lds):
        a = s.a
        a('s_lshl_b32 s%d, s%d, 18' % (sT0, sSeg))
        a('s_add_u32 s%d, s%d, s%d' % (sT0, sT0, sKVoff))
        a('s_and_b32 s%d, s%d, 1' % (sT1, sW))
        a('s_lshl_b32 s%d, s%d, 13' % (sT1, sT1))
        a('s_add_u32 s%d, s%d, %s' % (sT1, sT1, lds))
        for tau in range(2):
            a('s_add_u32 s%d, s%d, 0x%x' % (sT0, sT0, wsbase if tau == 0 else 131072))
            a('s_add_u32 m0, s%d, %d' % (sT1, tau * 4096))
            for t in range(4): s.dma(sT0, t * 1024)
    def bits(s, dst, terms, init=None):
        a = s.a
        first = init is None
        if not first: a('v_mov_b32 v%d, %s' % (dst, init))
        for (src, n, sh) in terms:
            a('v_bfe_u32 v%d, v0, %d, %d' % (vT + 11, src, n))
            if first: a('v_lshlrev_b32 v%d, %d, v%d' % (dst, sh, vT + 11)); first = False
            else: a('v_lshl_add_u32 v%d, v%d, %d, v%d' % (dst, vT + 11, sh, dst))
    def init(s):
        a = s.a
        a('s_and_b32 s%d, s2, 7' % sX)
        a('s_lshr_b32 s%d, s2, 3' % sC)
        a('s_and_b32 s%d, s%d, 7' % (sJ, sC))
        a('s_lshr_b32 s%d, s%d, 3' % (sG, sC))
        a('s_mul_i32 s%d, s%d, %d' % (sT0, sX, 16 // s.NX))
        a('s_add_u32 s%d, s%d, s%d' % (sG, sG, sT0))
        s.get_wave()
        vA, vB = vT + 8, vT + 9
        a('s_bitcmp1_b32 s%d, 1' % sJ)
        a('s_cselect_b64 s[%d:%d], s[%d:%d], s[%d:%d]' % (sP, sP + 1, S_WK, S_WK + 1, S_WQ, S_WQ + 1))
        a('s_mov_b32 s%d, 0x%x' % (sP + 2, 8 * MB)); a('s_mov_b32 s%d, 0x20000' % (sP + 3))
        s.bits(vA, [(3, 3, 13), (0, 3, 4)])
        a('s_lshl_b32 s%d, s%d, 9' % (sA, sG))
        a('s_lshl_b32 s%d, s%d, 21' % (sT0, sW))
        a('s_add_u32 s%d, s%d, s%d' % (sA, sA, sT0))
        a('s_lshr_b32 s%d, s%d, 2' % (sT0, sJ))
        a('s_lshl_b32 s%d, s%d, 8' % (sT0, sT0))
        a('s_and_b32 s%d, s%d, 1' % (sT1, sJ))
        a('s_lshl_b32 s%d, s%d, 7' % (sT1, sT1))
        a('s_add_u32 s%d, s%d, s%d' % (sT0, sT0, sT1))
        a('s_add_u32 s%d, s%d, s%d' % (sT0, sT0, sA))
        a('s_lshl_b32 s%d, s%d, 15' % (sT1, sW))
        for i in range(32):
            a('s_add_u32 m0, s%d, %d' % (sT1, i * 1024))
            a('buffer_load_dwordx4 v%d, s[%d:%d], s%d offen%s lds' % (vA, sP, sP + 3, sT0, s.nt(S_WQ)))
            a('s_add_u32 s%d, s%d, 0x10000' % (sT0, sT0))
        s.claim()
        a('s_xor_b32 s%d, s%d, 4' % (sB, sJ))
        a('s_lshl_b32 s%d, s%d, 6' % (sT0, sB))
        a('s_add_u32 s%d, s%d, s%d' % (sT0, sT0, sA))
        a('s_mov_b32 s%d, s%d' % (sE, sT0))
        s.bits(vA, [(2, 4, 13), (0, 2, 4)])
        a('s_lshl_b32 s%d, s%d, 8' % (sT0, sJ))
        s.bits(vT + 6, [(4, 2, 11), (0, 4, 4)], 's%d' % sT0)
        a('s_lshl_b32 s%d, s%d, 19' % (sH, sG))
        a('s_lshl_b32 s%d, s%d, 17' % (sT1, sW))
        a('s_add_u32 s%d, s%d, s%d' % (sH, sH, sT1))
        def ldv(i):
            a('buffer_load_dwordx4 %s, v%d, s[%d:%d], s%d offen%s' % (vr(64 + 4 * i, 4), vA, S_WV, S_WV + 3, sE, s.nt(S_WV)))
            a('s_add_u32 s%d, s%d, 0x20000' % (sE, sE))
        def ldo(i):
            a('buffer_load_dwordx4 %s, v%d, s[%d:%d], s%d offen%s' % (vr(128 + 4 * i, 4), vT + 6, S_WO, S_WO + 3, sH, s.nt(S_WO)))
            a('s_add_u32 s%d, s%d, 8192' % (sH, sH))
        for i in range(4): ldv(i)
        a('s_mov_b32 s%d, 0x%x' % (sTmo, 400000))
        for i in range(2): a('s_mov_b32 s%d, 0x%x' % (sScale + i, f2u(math.log2(math.e) / math.sqrt(128))))
        for i in range(2): a('s_mov_b32 s%d, 0xcccccccc' % (sHiMask + i))
        for i in range(2): a('s_mov_b32 s%d, 0x00ff00ff' % (sStMask + i))
        a('v_lshlrev_b32 v%d, 4, v0' % vL16)
        a('v_lshlrev_b32 v%d, 2, v0' % vL4)
        for i in range(4): a('v_mov_b32 v%d, -1' % (vSent + i))
        a('v_mov_b32 v%d, 0x4444' % vT)
        a('v_mov_b32 v%d, 0xeeee' % (vT + 1))
        a('v_cndmask_b32 v%d, v%d, v%d, s[%d:%d]' % (vIdx, vT, vT + 1, sHiMask, sHiMask + 1))
        s.bits(vGate, [(0, 6, 7)])
        s.bits(vRed, [(4, 1, 12), (5, 1, 14), (0, 4, 4)])
        LIN = s.opt.get('lin')
        if LIN:
            s.bits(vMld, [(0, 6, 4)])
            s.bits(vMst, [(4, 2, 8), (0, 4, 2)])
        else:
            s.bits(vMld, [(2, 2, 8), (4, 2, 6), (0, 2, 4)])
            s.bits(vMst, [(0, 6, 2)])
        a('s_mul_i32 s%d, s%d, %d' % (sT0, sW, R_W))
        s.bits(vRw, [(0, 4, 3), (4, 2, 7), (4, 2, 6)], 's%d' % sT0)
        a('s_lshr_b32 s%d, s%d, 1' % (sT0, sW))
        a('s_mul_i32 s%d, s%d, %d' % (sT0, sT0, 2 * R_T))
        a('s_and_b32 s%d, s%d, 1' % (sT1, sW))
        a('s_lshl_b32 s%d, s%d, 6' % (sT1, sT1))
        a('s_add_u32 s%d, s%d, s%d' % (sT0, sT0, sT1))
        s.bits(vRr, [(0, 1, 9), (0, 1, 8), (0, 1, 3), (4, 2, 7), (4, 2, 6), (1, 1, 5), (3, 1, 4), (2, 1, 2)], 's%d' % sT0)
        a('v_add_u32 v%d, 8, v%d' % (vRr2, vRr))
        a('v_bfe_u32 v%d, v0, 2, 1' % vT)
        a('v_lshlrev_b32 v%d, 4, v%d' % (vT, vT))
        a('v_mov_b32 v%d, 0x3f80' % (vT + 1))
        a('v_lshlrev_b32 v%d, v%d, v%d' % (vT, vT, vT + 1))
        a('v_bfe_u32 v%d, v0, 0, 2' % (vT + 1))
        for k in range(4):
            a('v_cmp_eq_u32 vcc, %d, v%d' % (k, vT + 1))
            a('v_cndmask_b32 v%d, 0, v%d, vcc' % (vSel + k, vT))
        a('s_and_b32 s%d, s%d, 1' % (sT3, sW))
        a('s_lshl_b32 s%d, s%d, 10' % (sT0, sT3))
        a('s_add_u32 s%d, s%d, %d' % (sT0, sT0, L_P))
        a('v_add_u32 v%d, s%d, v%d' % (vPw, sT0, vL4))
        s.bits(vPw2, [(2, 4, 4), (0, 1, 3), (1, 1, 2)], 's%d' % sT0)
        lh = a.newlabel('Li')
        a('s_cmp_lt_u32 s%d, 2' % sW)
        a('s_cbranch_scc1 %s' % lh)
        s.bits(vPw, [(5, 1, 9), (3, 1, 8), (0, 2, 6), (4, 1, 5), (2, 1, 3)], str(L_P))
        a('v_add_u32 v%d, %d, v%d' % (vPw2, 2 * R_T, vRr))
        a('v_add_u32 v%d, %d, v%d' % (vRed, 2 * R_T + 8, vRr))
        a.label(lh)
        a('s_lshl_b32 s%d, s%d, 13' % (sT0, sT3))
        a('s_add_u32 s%d, s%d, %d' % (sT0, sT0, L_KX))
        a('s_mov_b32 s%d, s%d' % (sLdsC, sT0))
        s.bits(vKX, [(2, 4, 6), (0, 1, 5), (1, 1, 4)], 's%d' % sT0)
        a('v_add_u32 v%d, %d, v%d' % (vVX, L_VX, vL16))
        a('s_mul_i32 s%d, s%d, %d' % (sCld, sG, QKV_G))
        a('s_add_u32 s%d, s%d, 0x%x' % (sCld, sCld, WS_QKV))
        a('s_lshl_b32 s%d, s%d, 10' % (sT0, sJ))
        a('s_lshl_b32 s%d, s%d, 8' % (sT1, sW))
        a('s_add_u32 s%d, s%d, s%d' % (sT0, sT0, sT1))
        a('s_add_u32 s%d, s%d, s%d' % (sQKst, sCld, sT0))
        a('s_lshl_b32 s%d, s%d, 13' % (sT2, sG))
        a('s_add_u32 s%d, s%d, 0x%x' % (sT2, sT2, WS_KVM))
        a('s_add_u32 s%d, s%d, s%d' % (sKst, sT2, sT0))
        a('s_sub_u32 s%d, s%d, 2048' % (sKst, sKst))
        a('s_bitcmp1_b32 s%d, 1' % sJ)
        a('s_cselect_b32 s%d, s%d, 0x%x' % (sKst, sKst, WS_DUMP))
        a('s_lshl_b32 s%d, s%d, 9' % (sT0, sB))
        a('s_lshl_b32 s%d, s%d, 8' % (sT1, sT3))
        a('s_add_u32 s%d, s%d, s%d' % (sT0, sT0, sT1))
        a('s_add_u32 s%d, s%d, s%d' % (sVst, sCld, sT0))
        a('s_add_u32 s%d, s%d, 8192' % (sVst, sVst))
        a('s_and_b32 s%d, s%d, 2048' % (sT1, sT0))
        a('s_add_u32 s%d, s%d, s%d' % (sT0, sT0, sT1))
        a('s_add_u32 s%d, s%d, s%d' % (sKVMst, sT2, sT0))
        a('s_min_u32 s%d, s%d, 2' % (sT0, sW))
        a('s_lshl_b32 s%d, s%d, 12' % (sT0, sT0))
        a('s_add_u32 s%d, s%d, s%d' % (sCld, sCld, sT0))
        a('s_lshl_b32 s%d, s%d, 1' % (sT0, sJ))
        a('s_add_u32 s%d, s%d, s%d' % (sT0, sT0, sT3))
        a('s_lshl_b32 s%d, s%d, 15' % (sT0, sT0))
        a('s_and_b32 s%d, s%d, 8' % (sT1, sG))
        a('s_add_u32 s%d, s%d, s%d' % (sT1, sT1, sG))
        a('s_lshl_b32 s%d, s%d, 10' % (sT1, sT1))
        a('s_add_u32 s%d, s%d, s%d' % (sPARTst, sT0, sT1))
        a('s_add_u32 s%d, s%d, 0x%x' % (sPARTst, sPARTst, WS_PART))
        a('s_lshl_b32 s%d, s%d, 1' % (sT0, sC))
        a('s_add_u32 s%d, s%d, s%d' % (sT0, sT0, sT3))
        a('s_mul_i32 s%d, s%d, %d' % (sT0, sT0, s.NP))
        GL = s.opt.get('glob')
        if GL:
            a('s_lshr_b32 s%d, s%d, 1' % (sT0, sC))
            a('s_lshl4_add_u32 s%d, s%d, s%d' % (sT0, sX, sT0))
        if s.NP == 2: a('v_lshlrev_b32 v%d, 3, v0' % vMst)
        a('s_lshr_b32 s%d, s%d, 2' % (sT1, sT0))
        a('s_lshl_b32 s%d, s%d, 15' % (sREDld, sT1))
        a('s_and_b32 s%d, s%d, 3' % (sT1, sT0))
        a('s_lshl_b32 s%d, s%d, 8' % (sT1, sT1))
        a('s_add_u32 s%d, s%d, s%d' % (sREDld, sREDld, sT1))
        a('s_add_u32 s%d, s%d, 0x%x' % (sREDld, sREDld, WS_PART))
        a('s_lshl_b32 s%d, s%d, 14' % (sMTld, sX))
        a('s_add_u32 s%d, s%d, 0x%x' % (sMTld, sMTld, WS_MT))
        a('s_lshl_b32 s%d, s%d, 8' % (sT0, sT0))
        if LIN:
            a('s_sub_u32 s%d, s%d, s%d' % (sT0, sT0, sT1))
            a('s_lshr_b32 s%d, s%d, 2' % (sT1, sT1))
            a('s_add_u32 s%d, s%d, s%d' % (sT0, sT0, sT1))
        a('s_add_u32 s%d, s%d, s%d' % (sMTst, sMTld, sT0))
        if GL:
            a('s_and_b32 s%d, s%d, 8192' % (sT1, sT0))
            a('s_add_u32 s%d, s%d, s%d' % (sT0, sT0, sT1))
            a('s_add_u32 s%d, s%d, 0x%x' % (sMTst, sT0, WS_PART + 36 * MB))
            a('s_lshr_b32 s%d, s%d, 1' % (sT0, sW))
            a('s_lshl_b32 s%d, s%d, 13' % (sT0, sT0))
            a('s_add_u32 s%d, s%d, s%d' % (sMTst, sMTst, sT0))
            a('s_add_u32 s%d, s%d, 0x%x' % (sMTld, sT0, WS_PART + 36 * MB))
        a('s_lshl_b32 s%d, s%d, 12' % (sT0, sW))
        a('s_add_u32 s%d, s%d, s%d' % (sMTld, sMTld, sT0))
        a('s_lshl_b32 s%d, s%d, 1' % (sKVoff, sG))
        a('s_add_u32 s%d, s%d, s%d' % (sKVoff, sKVoff, sT3))
        a('s_lshl_b32 s%d, s%d, 12' % (sKVoff, sKVoff))
        a('s_and_b32 s%d, s%d, 1' % (sT0, sJ))
        a('s_lshl_b32 s%d, s%d, 12' % (sT0, sT0))
        a('s_lshl_b32 s%d, s%d, 13' % (sWarm, sG))
        a('s_add_u32 s%d, s%d, s%d' % (sWarm, sWarm, sT0))
        a('s_bfe_u32 s%d, s%d, 0x10001' % (sT0, sJ))
        a('s_lshl_b32 s%d, s%d, 17' % (sT0, sT0))
        a('s_add_u32 s%d, s%d, s%d' % (sWarm, sWarm, sT0))
        a('s_lshr_b32 s%d, s%d, 2' % (sT0, sJ))
        a('s_mul_i32 s%d, s%d, 0x%x' % (sT0, sT0, WS_VF - WS_KF + 262144))
        a('s_add_u32 s%d, s%d, s%d' % (sWarm, sWarm, sT0))
        a('s_add_u32 s%d, s%d, 0x%x' % (sWarm, sWarm, WS_KF + 2 * 262144))
        a('s_lshl_b32 s%d, s%d, 11' % (sT0, sT3))
        a('s_add_u32 s%d, s%d, s%d' % (sWarm, sWarm, sT0))
        a('s_lshl_b32 s%d, s%d, 15' % (sT0, sW))
        s.bits(vB, [(0, 2, 3), (4, 1, 11), (5, 1, 8), (2, 2, 6)], 's%d' % sT0)
        s.bits(vT + 10, [(0, 2, 3), (4, 1, 12), (5, 1, 9), (2, 2, 7)], 's%d' % sT0)
        a('v_add_u32 v%d, s%d, v%d' % (vT + 7, sT0, vL16))
        def tr_w1(vaddr, t0, nt, rowb, Tls=range(4)):
            for Tl in Tls:
                for tl in range(nt):
                    for v in range(4):
                        a('ds_read_b64_tr_b16 %s, v%d offset:%d' % (ar(((t0 + tl) * 4 + Tl) * 8 + 2 * v, 2), vaddr, (Tl * 64 + 8 * (v // 2) + 16 * (v % 2)) * rowb + tl * 32))
                    a('s_waitcnt lgkmcnt(4)')
            a('s_waitcnt lgkmcnt(0)')
        s.mark(5)
        for q in range(4):
            for i in range(4): (ldv if q < 3 else ldo)(4 * q + 4 + i if q < 3 else i)
            a('s_waitcnt vmcnt(%d)' % (8 * (3 - q) + 4 * (q + 2)))
            tr_w1(vT + 10, 0, 4, 128, (q,))
        s.mark(6)
        s.verify()
        for i in range(4, 10): ldo(i)
        a('s_and_b32 s%d, s%d, 15' % (sA, sC))
        a('s_lshl_b32 s%d, s%d, 16' % (sA, sA))
        a('s_lshr_b32 s%d, s%d, 4' % (sT1, sC))
        a('s_lshl2_add_u32 s%d, s%d, s%d' % (sT1, sT1, sX))
        a('s_lshl_b32 s%d, s%d, 8' % (sT1, sT1))
        a('s_add_u32 s%d, s%d, s%d' % (sA, sA, sT1))
        a('s_add_u32 s%d, s%d, 0x%x' % (sA, sA, WS_PART + (s.opt.get('pring', 64) + 2) * PART_SLOT))
        for slot in range(4):
            a('s_add_u32 s%d, s%d, 0x%x' % (sT0, sQKst, slot * QKV_SLOT)); s.st(vSent, vL4, sT0)
            a('s_add_u32 s%d, s%d, 0x%x' % (sT0, sVst, slot * QKV_SLOT))
            a('s_add_u32 s%d, s%d, %d' % (sT1, sA, (0, 2, 5, 7)[slot] * 4096))
            a('s_cmp_eq_u32 s%d, 1' % sW)
            a('s_cselect_b32 s%d, s%d, s%d' % (sT0, sT1, sT0))
            s.st(vSent, vL4, sT0)
            if slot < 2:
                a('s_lshr_b32 s%d, s%d, 1' % (sT0, sW))
                a('s_lshl_b32 s%d, s%d, 13' % (sT0, sT0))
                a('s_add_u32 s%d, s%d, s%d' % (sT0, sT0, sPARTst))
                a('s_add_u32 s%d, s%d, 0x%x' % (sT0, sT0, slot * PART_SLOT)); s.st(vSent, vL16, sT0, n=4)
            a('s_add_u32 s%d, s%d, 0x%x' % (sT0, sMTst, slot * MT_SLOT)); s.st(vSent, vMst, sT0, n=s.NP)
        for i in range(10, 16): ldo(i)
        a('s_waitcnt vmcnt(30)')
        a('s_lshl_b32 s%d, s%d, 9' % (sT0, sW))
        s.bits(vA, [(2, 2, 12), (0, 1, 11), (4, 2, 3), (1, 1, 2)], 's%d' % sT0)
        for u in range(4):
            for p in range(4):
                a('buffer_load_dword v%d, v%d, s[%d:%d], 0 offen offset:%d' % (vF + 4 * u + p, vA, S_M0, S_M0 + 3, u * 128 + p * 32))
        for i in range(16):
            a('ds_write_b128 v%d, %s offset:%d' % (vT + 7, vr(64 + 4 * i, 4), i * 1024))
            if i % 8 == 7: a('s_waitcnt lgkmcnt(0)')
        tr_w1(vB, 4, 2, 64)
        a('s_waitcnt vmcnt(16)')
        s.counted()
        s.mark(7)
        a('v_lshrrev_b32 v%d, 4, v0' % (vT + 2))
        a('v_lshlrev_b32 v%d, 5, v%d' % (vT + 2, vT + 2))
        a('v_xor_b32 v%d, v%d, v%d' % (vT + 2, vT + 2, vT + 7))
        a('v_xor_b32 v%d, 128, v%d' % (vT + 3, vT + 2))
        for i in range(16):
            a('ds_write_b128 v%d, %s offset:%d' % (vT + 2 + i % 2, vr(128 + 4 * i, 4), 16384 + i * 1024))
            if i % 8 == 7: a('s_waitcnt lgkmcnt(0)')
        a('s_waitcnt vmcnt(0)')
        a('s_barrier')
        lm = a.newlabel('Lms')
        a('s_and_b32 s%d, s%d, 3' % (sT0, sJ))
        a('s_lshl2_add_u32 s%d, s%d, s%d' % (sT0, sT0, sW))
        a('s_cmp_eq_u32 s%d, 0' % sT0)
        a('s_cbranch_scc0 %s' % lm)
        a('s_and_b32 s%d, s%d, 15' % (sT0, sC))
        a('s_lshl_b32 s%d, s%d, 16' % (sT0, sT0))
        a('s_lshr_b32 s%d, s%d, 4' % (sT1, sC))
        a('s_lshl2_add_u32 s%d, s%d, s%d' % (sT1, sT1, sX))
        a('s_lshl_b32 s%d, s%d, 8' % (sT1, sT1))
        a('s_add_u32 s%d, s%d, s%d' % (sT0, sT0, sT1))
        a('s_add_u32 s%d, s%d, 0x%x' % (sT0, sT0, WS_PART + (s.opt.get('pring', 64) + 2) * PART_SLOT))
        a('s_mov_b32 s%d, -1' % sA); a('s_mov_b32 s%d, -1' % sB)
        for k in range(s.opt.get('nprobe', 4)):
            a('s_memtime s[%d:%d]' % (sTS, sTS + 1))
            a('s_waitcnt lgkmcnt(0)')
            a('s_mov_b32 s%d, s%d' % (sT1, sTS))
            a('buffer_load_dword v%d, off, s[%d:%d], s%d sc1' % (vT, S_WS, S_WS + 3, sT0))
            a('s_waitcnt vmcnt(0)')
            a('s_memtime s[%d:%d]' % (sTS, sTS + 1))
            a('s_waitcnt lgkmcnt(0)')
            a('s_sub_u32 s%d, s%d, s%d' % (sT1, sTS, sT1))
            r = sB if k % 2 else sA
            a('s_min_u32 s%d, s%d, s%d' % (r, r, sT1))
            a('s_add_u32 s%d, s%d, %d' % (sT0, sT0, 8192 if k % 2 == 0 else 12288 if k % 4 == 1 else 4096))
        a('s_cmp_le_u32 s%d, s%d' % (sA, sB))
        a('s_cselect_b32 s%d, 1, 0x10001' % sT0)
        a('v_mov_b32 v%d, s%d' % (vT, sT0))
        a('s_mov_b64 exec, 1')
        a('buffer_atomic_add v%d, off, s[%d:%d], 0 offset:32 sc1' % (vT, S_DBG, S_DBG + 3))
        a('s_mov_b64 exec, -1')
        a.label(lm)
        lskip = a.newlabel('Lann')
        a('s_getreg_b32 s%d, hwreg(HW_REG_XCC_ID)' % sT0)
        a('s_and_b32 s%d, s%d, 15' % (sT0, sT0))
        a('s_mul_i32 s%d, s%d, s%d' % (sT1, sT0, sT0))
        a('s_lshl_b32 s%d, s%d, 18' % (sT1, sT1))
        a('s_lshl_b32 s%d, s%d, 8' % (sT0, sT0))
        a('s_add_u32 s%d, s%d, s%d' % (sT0, sT0, sT1))
        a('s_add_u32 s%d, s%d, 1' % (sLocal, sT0))
        a('s_cmp_eq_u32 s%d, 0' % sW)
        a('s_cbranch_scc0 %s' % lskip)
        a('s_lshl_b32 s%d, s%d, 2' % (sT1, sX))
        a('v_mov_b32 v%d, s%d' % (vT + 6, sLocal))
        a('s_mov_b64 exec, 1')
        a('buffer_atomic_add v%d, off, s[%d:%d], s%d offset:16 sc1' % (vT + 6, S_DBG, S_DBG + 3, sT1))
        a('s_mov_b64 exec, -1')
        a.label(lskip)
        lj = a.newlabel('Li')
        a('s_cmp_lt_u32 s%d, 2' % sW)
        a('s_cbranch_scc1 %s' % lj)
        a('s_lshl_b32 s%d, s%d, 7' % (sT0, sT3))
        s.bits(vB, [(2, 4, 8), (2, 3, 5), (0, 2, 3)], '16384')
        a('v_xor_b32 v%d, s%d, v%d' % (vB, sT0, vB))
        for tt in range(4):
            a('v_xor_b32 v%d, %d, v%d' % (vT + 2, 32 * tt, vB))
            a('v_add_u32 v%d, 0x10000, v%d' % (vT + 3, vT + 2))
            for hl in range(2):
                for t in range(4):
                    for v2 in range(2):
                        a('ds_read_b64_tr_b16 %s, v%d offset:%d' % (wo(tt, 16 * hl + 4 * t + 2 * v2, 2), vT + 2 + hl, (t // 2) * 32768 + (32 * (t % 2) + 16 * v2) * 256))
                a('s_waitcnt lgkmcnt(6)')
        a('s_waitcnt lgkmcnt(0)')
        for i in range(8):
            a('v_mov_b32 v%d, 0' % (vU + 8 * i + 6)); a('v_mov_b32 v%d, 0' % (vU + 8 * i + 7))
        a.label(lj)
        a('s_barrier')
        if s.opt.get('touchr', True):
            a('v_bfe_u32 v%d, v0, 1, 2' % (vT + 1))
            a('v_and_b32 v%d, 1, v0' % (vT + 2))
            a('v_lshlrev_b32 v%d, 7, v%d' % (vT + 2, vT + 2))
            a('v_lshl_add_u32 v%d, v%d, 17, v%d' % (vT + 3, vT + 1, vT + 2))
            if s.opt.get('lin'):
                s.bits(vT + 3, [(1, 2, 17), (0, 1, 8)])
                a('s_and_b32 s%d, s%d, 1' % (sT0, sW))
                a('s_lshl_b32 s%d, s%d, 9' % (sT0, sT0))
                a('v_add_u32 v%d, s%d, v%d' % (vT + 3, sT0, vT + 3))
            a('v_mul_u32_u24 v%d, 0x%x, v%d' % (vT + 1, QKV_SLOT, vT + 1))
            a('v_add_u32 v%d, v%d, v%d' % (vT + 1, vT + 1, vT + 2))
            a('s_mov_b64 exec, 0xff')
            for k, (va, so) in enumerate(((vT + 1, sQKst), (vT + 1, sVst), (vT + 3, sMTst))):
                a('buffer_load_dword v%d, v%d, s[%d:%d], s%d offen sc1' % (vT + 4 + k, va, S_WS, S_WS + 3, so))
            a('s_mov_b64 exec, -1')
        s.kv_wait_init()
        a('s_mov_b32 s%d, 0' % sStep)
        lh, lj = a.newlabel('Li'), a.newlabel('Li')
        a('s_cmp_ge_u32 s%d, 2' % sW)
        a('s_cbranch_scc1 %s' % lh)
        s.dma_kv(sStep, WS_KF, str(L_KX))
        a('s_mov_b32 s%d, 1' % sT2)
        s.dma_kv(sT2, WS_VF, str(L_VX + 16384))
        a('v_mov_b32 v%d, 0' % (vT + 3))
        a('ds_write_b32 v%d, v%d offset:768' % (vPw, vT + 3))
        a('s_branch %s' % lj)
        a.label(lh)
        s.dma_kv(sStep, WS_VF, str(L_VX))
        a.label(lj)
        a('s_waitcnt vmcnt(0) lgkmcnt(0)')
        a('s_barrier')
        lj = a.newlabel('Li')
        a('s_cmp_lt_u32 s%d, 2' % sW)
        a('s_cbranch_scc1 %s' % lj)
        s.ux()
        a.label(lj)
        s.pre_loop()
        s.prep_stage1()
        for u in range(4): s.s1unit(u, vF)
        lw, lok, lb = a.newlabel('Lw'), a.newlabel('Lw'), a.newlabel('Lw')
        a('v_min_u32 v%d, 16, v%d' % (vT + 1, vL4))
        a('s_cmp_eq_u32 s%d, 0' % sW)
        a('s_cbranch_scc0 %s' % lb)
        a.label(lw)
        a('buffer_load_dword v%d, v%d, s[%d:%d], 0 offen offset:16 sc1' % (vT, vT + 1, S_DBG, S_DBG + 3))
        a('s_waitcnt vmcnt(0)')
        a('v_and_b32 v%d, 0xff, v%d' % (vT + 2, vT))
        a('v_cmp_ne_u32 vcc, 32, v%d' % (vT + 2))
        a('s_cbranch_vccz %s' % lok)
        a('s_sleep 12')
        s.tmo(lw)
        a.label(lok)
        a('ds_write_b32 v%d, v%d offset:%d' % (vT + 1, vT, L_P + 4096))
        a('s_waitcnt lgkmcnt(0)')
        a.label(lb)
        a('s_barrier')
        a('ds_read_b32 v%d, v%d offset:%d' % (vT, vT + 1, L_P + 4096))
        a('s_waitcnt lgkmcnt(0)')
        a('v_readlane_b32 s%d, v%d, 4' % (sT1, vT))
        a('s_cmp_gt_u32 s%d, 0x100020' % sT1)
        a('s_cselect_b32 s%d, 2, 0' % sT1)
        if 'near' in s.opt: a('s_mov_b32 s%d, %d' % (sT1, 2 * s.opt['near']))
        a('s_lshl_b32 s%d, s%d, 12' % (sT1, sT1))
        a('s_add_u32 s%d, s%d, s%d' % (sPARTst, sPARTst, sT1))
        a('s_add_u32 s%d, s%d, s%d' % (sREDld, sREDld, sT1))
        if s.opt.get('glob'):
            a('s_add_u32 s%d, s%d, s%d' % (sMTld, sMTld, sT1))
            a('s_add_u32 s%d, s%d, s%d' % (sMTst, sMTst, sT1))
            a('s_and_b32 s%d, s%d, 1' % (sC, sC))
            a('s_or_b32 s%d, s%d, s%d' % (sC, sC, sW))
            a('s_cselect_b32 s%d, 0x%x, s%d' % (sMTst, WS_DUMP, sMTst))
        a('v_readlane_b32 s%d, v%d, s%d' % (sT0, vT, sX))
        a('s_mul_i32 s%d, s%d, %d' % (sLocal, sLocal, 128 // s.NX))
        a('s_cmp_eq_u32 s%d, s%d' % (sT0, sLocal))
        a('s_cselect_b32 s%d, 1, 0' % sLocal)
        if s.opt.get('remote'): a('s_mov_b32 s%d, 0' % sLocal)
        s.mark(1)
        if s.opt.get('tot', True):
            a('s_memrealtime s[98:99]')
            a('s_memtime s[82:83]')
            a('s_waitcnt lgkmcnt(0)')
        if s.prof:
            for i in range(16): a('s_mov_b32 s%d, 0' % (sAcc + i))
            a('s_memtime s[%d:%d]' % (sTS, sTS + 1)); a('s_waitcnt lgkmcnt(0)'); a('s_mov_b32 s%d, s%d' % (sPrev, sTS))
    def slot(s, dst, base, mul, rst=False):
        a = s.a
        a('s_and_b32 s%d, s%d, 3' % (dst, sStep))
        if rst: a('s_xor_b32 s%d, s%d, 2' % (dst, dst))
        a('s_mul_i32 s%d, s%d, %d' % (dst, dst, mul))
        a('s_add_u32 s%d, s%d, s%d' % (dst, dst, base))
    def prep_stage1(s):
        a = s.a
        s.slot(sA, sQKst, QKV_SLOT); s.slot(sB, sVst, QKV_SLOT); s.slot(sCc, sCld, QKV_SLOT)
        s.zero(range(vD, vD + 24))
    def s1write(s):
        for t6 in range(6):
            s.halfsum(vD + 4 * t6)
            s.a('ds_write_b64 v%d, %s offset:%d' % (vRw, vr(vD + 4 * t6, 2), L_R + t6 * R_T))
    def s1finish(s, second, tag):
        a = s.a
        s.stamp(9 if s.opt.get('trace') else 12)
        s.s1write()
        a.label('L_loopw_%s' % tag)
        a('s_waitcnt lgkmcnt(0)')
        s.stamp(6)
        a('s_barrier')
        s.stamp(7)
        tiles = [(vRr, vRr2, vM + 16, vT + 10, sA)] + ([(vPw2, vRed, vM + 24, vT + 11, sB)] if second else [])
        k = R_W // 256
        for a0, a1, r, o, so in tiles:
            for e, ad in enumerate((a0, a1)):
                for h in range(2):
                    a('ds_read2st64_b32 %s, v%d offset0:%d offset1:%d' % (vr(r + 4 * e + 2 * h, 2), ad, 2 * h * k, (2 * h + 1) * k))
        for n, (a0, a1, r, o, so) in enumerate(tiles):
            rem = 4 * (len(tiles) - 1 - n)
            a('s_waitcnt lgkmcnt(%d)' % (rem + 2))
            a('v_pk_add_f32 %s, %s, %s' % (vr(r, 2), vr(r, 2), vr(r + 2, 2)))
            a('v_add_f32 v%d, v%d, v%d' % (r, r, r + 1))
            a('s_waitcnt lgkmcnt(%d)' % rem)
            a('v_pk_add_f32 %s, %s, %s' % (vr(r + 4, 2), vr(r + 4, 2), vr(r + 6, 2)))
            a('v_add_f32 v%d, v%d, v%d' % (r + 4, r + 4, r + 5))
            a('v_cvt_pk_bf16_f32 v%d, v%d, v%d' % (o, r, r + 4))
            s.lst(o, vL4, so)
        s.stamp(0)
    def hopc(s, tag):
        a = s.a
        a.label('L_hopc_%s' % tag)
        for i in range(4):
            a('buffer_load_dwordx4 %s, v%d, s[%d:%d], s%d offen offset:%d sc1' % (vr(vM + 4 * i, 4), vL16, S_WS, S_WS + 3, sCc, i * 1024))
        a('s_waitcnt vmcnt(2)')
        s.maxtree(vM, 8, vT)
        a('s_waitcnt vmcnt(0)')
        s.maxtree(vM + 8, 8, vT, first=False)
        a('v_cmp_eq_u32 vcc, -1, v%d' % vT)
        a('s_cbranch_vccnz L_cretry_%s' % tag)
    def cretry(s, tag):
        s.a.label('L_cretry_%s' % tag)
        s.count(9)
        s.tmo('L_hopc_%s' % tag)
    def loop_S(s, tag):
        a = s.a
        vS = vD + 24
        vSm = vF + 4
        for i in range(8): a('v_mov_b32 v%d, 0' % (vS + i))
        a.label('L_loop_%s' % tag)
        s.s1finish(False, tag)
        a('s_lshl_b32 s%d, s%d, 17' % (sK2, sStep))
        a('s_add_u32 s%d, s%d, s%d' % (sK2, sK2, sKst))
        a('s_cmp_eq_u32 s%d, %d' % (sStep, s.nsteps - 1))
        a('s_cbranch_scc1 L_lastk')
        A = a; buf = []
        s.a = a = buf.append
        for i in range(8): a('ds_read_b128 %s, v%d offset:%d' % (vr(vK + 4 * i, 4), vKX, i * 1024))
        a('s_min_u32 s%d, s%d, 60' % (sT2, sStep))
        a('s_lshl_b32 s%d, s%d, 18' % (sT2, sT2))
        a('s_add_u32 s%d, s%d, s%d' % (sT2, sT2, sWarm))
        a('s_and_b32 s%d, s%d, %d' % (sD, sStep, s.opt.get('pring', 64) - 1))
        a('s_lshl_b32 s%d, s%d, 19' % (sD, sD))
        a('s_add_u32 s%d, s%d, s%d' % (sD, sD, sREDld))
        a('s_and_b32 s%d, s%d, 4' % (sT3, sStep))
        a('s_lshl_b32 s%d, s%d, 11' % (sT3, sT3))
        a('s_xor_b32 s%d, s%d, s%d' % (sD, sD, sT3))
        s.slot(sE, sMTst, MT_SLOT); s.slot(sH, sMTld, MT_SLOT)
        s.slot(sB, sQKst, QKV_SLOT, True); s.slot(sF, sMTst, MT_SLOT, True)
        s.zero(range(vD, vD + 24))
        s.a = a = A
        npre = s.opt.get('npre', 20)
        def cld():
            for i in ((2, 0, 3, 1) if s.opt.get('memf', False) else range(4)):
                a('buffer_load_dwordx4 %s, v%d, s[%d:%d], s%d offen offset:%d sc1' % (vr(vM + 4 * i, 4), vL16, S_WS, S_WS + 3, sCc, i * 1024))
        for y in buf[:npre]: a(y)
        s.stamp(1)
        cld()
        for y in buf[npre:]: a(y)
        a('s_waitcnt lgkmcnt(0)')
        a.label('L_hopc_%s' % tag)
        mx = lambda k, first: 'v_max3_u32 v%d, v%d, v%d, v%d' % (vT, vM + 2 * k if first else vT, vM + 2 * k, vM + 2 * k + 1)
        sm = lambda T, tau: a('v_smfmac_f32_16x16x64_bf16 %s, %s, %s, v%d' % (vr(vS + 4 * tau, 4), vr(vM + 4 * T, 4), vr(vK + 16 * tau + 8 * T, 8), vIdx))
        mm_ = lambda T: a('v_mfma_f32_16x16x32_bf16 %s, %s, %s, %s' % (vr(vSm, 4), vr(vM + 4 * T, 4), vr(vM + 8 + 4 * T, 4), '0' if T == 0 else vr(vSm, 4)))
        def mempost():
            for i in range(2): a('v_cndmask_b32 v%d, v%d, v%d, s[%d:%d]' % (vT + 6 + i, vSm + i, vSm + 2 + i, sHiMask, sHiMask + 1))
        def memadd():
            for i in range(2): a('v_add_f32_dpp v%d, v%d, v%d quad_perm:[2,3,0,1] row_mask:0xf bank_mask:0xf' % (vT + 6 + i, vT + 6 + i, vT + 6 + i))
        if s.opt.get('memf', False):
            for T in range(2):
                a('s_waitcnt vmcnt(%d)' % (2 - 2 * T))
                mm_(T); a(mx(2 * T, T == 0)); sm(T, 0); a(mx(2 * T + 1, False)); sm(T, 1); a(mx(4 + 2 * T, False)); a(mx(5 + 2 * T, False))
            a('v_cmp_eq_u32 vcc, -1, v%d' % vT)
            mempost()
            s.halfsum(vS, vT + 2)
            memadd()
            s.halfsum(vS + 4, vT + 4)
        else:
            for T in range(2):
                a('s_waitcnt vmcnt(%d)' % (3 - T))
                for tau in range(2):
                    sm(T, tau); a(mx(2 * T + tau, T + tau == 0))
            for T in range(2):
                a('s_waitcnt vmcnt(%d)' % (1 - T))
                mm_(T)
                for k in range(2): a(mx(4 + 2 * T + k, False))
            a('v_cmp_eq_u32 vcc, -1, v%d' % vT)
            s.halfsum(vS, vT + 2); s.halfsum(vS + 4, vT + 4)
        a('s_cbranch_vccnz L_cretry_%s' % tag)
        s.stamp(2)
        def warm():
            a('s_mov_b64 exec, 0xffff')
            a('buffer_load_dword v%d, v%d, s[%d:%d], s%d offen sc1' % (vT + 11, vGate, S_WS, S_WS + 3, sT2))
            a('s_mov_b64 exec, -1')
        if s.opt.get('warm', 1) == 1: warm()
        x = vT + 2
        m = vT + 8
        if not s.opt.get('memf', False):
            mempost(); memadd()
        def xreduce(op):
            for sh in (8, 4, 2, 1):
                for i in range(2): s.a('%s_dpp v%d, v%d, v%d row_ror:%d row_mask:0xf bank_mask:0xf' % (op, m + i, m + i, m + i, sh))
        for i in range(2): a('v_max3_f32 v%d, v%d, v%d, v%d' % (m + i, x + i, x + 2 + i, x + 4 + i))
        xreduce('v_max_f32')
        a('v_pk_mul_f32 %s, %s, %s' % (vr(m, 2), vr(m, 2), sr(sScale, 2)))
        for k in range(3): a('v_pk_fma_f32 %s, %s, %s, %s neg_lo:[0,0,1] neg_hi:[0,0,1]' % (vr(x + 2 * k, 2), vr(x + 2 * k, 2), sr(sScale, 2), vr(m, 2)))
        for i in range(6): a('v_exp_f32 v%d, v%d' % (x + i, x + i))
        DN = s.opt.get('dn', True)
        def rowsum():
            s.a('v_pk_add_f32 %s, %s, %s' % (vr(m, 2), vr(x, 2), vr(x + 2, 2)))
            for i in range(2): s.a('v_fma_f32 v%d, v%d, 0.5, v%d' % (m + i, x + 4 + i, m + i))
            xreduce('v_add_f32')
            for i in range(2): s.a('v_rcp_f32 v%d, v%d' % (m + i, m + i))
        if not DN:
            rowsum()
            for k in range(3): a('v_pk_mul_f32 %s, %s, %s' % (vr(x + 2 * k, 2), vr(x + 2 * k, 2), vr(m, 2)))
        for k in range(3): a('v_cvt_pk_bf16_f32 v%d, v%d, v%d' % (vSm + k, x + 2 * k, x + 2 * k + 1))
        a('ds_write2_b32 v%d, v%d, v%d offset0:0 offset1:64' % (vPw, vSm, vSm + 1))
        a('ds_write_b32 v%d, v%d offset:512' % (vPw2, vSm + 2))
        if DN:
            A2 = a; b2 = []
            s.a = a = b2.append
            rowsum()
            s.a = a = A2
            for y in b2[:7]: a(y)
        a('s_waitcnt lgkmcnt(0)')
        s.stamp(3)
        a('s_barrier')
        if DN:
            for y in b2[7:]: a(y)
            a('ds_write2st64_b32 v%d, v%d, v%d offset0:8 offset1:9' % (vPw, m, m + 1))
            a('s_waitcnt lgkmcnt(0)')
            a('s_barrier')
        s.stamp(4)
        a('s_add_u32 s%d, s%d, 1' % (sStep, sStep))
        s.slot(sA, sQKst, QKV_SLOT); s.slot(sCc, sCld, QKV_SLOT)
        s.zero(range(vS, vS + 8))
        a('v_xor_b32 v%d, 0x4000, v%d' % (vKX, vKX))
        tail = None
        s.last_S(tag)
        if s.opt.get('b3a'): a('s_barrier')
        if s.opt.get('warm', 1) == 2: warm()
        s.st(vT + 10, vL4, sK2)
        s.lst(vSent, vL4, sB); (s.st if s.opt.get('glob') else s.lst)(vSent, vMst, sF, n=s.NP)
        if not s.opt.get('hst', True):
            s.lst(vSent, vL4, sB, 512)
            a('s_sub_u32 s%d, s%d, s%d' % (sT0, sB, sQKst))
            a('s_add_u32 s%d, s%d, s%d' % (sT0, sT0, sVst))
            s.lst(vSent, vL4, sT0)
            a('s_add_u32 s%d, s%d, 1' % (sT0, sStep))
            a('s_and_b32 s%d, s%d, 4' % (sT1, sT0))
            a('s_lshl_b32 s%d, s%d, 19' % (sT0, sT0))
            a('s_add_u32 s%d, s%d, s%d' % (sT0, sT0, sPARTst))
            a('s_lshl_b32 s%d, s%d, 11' % (sT1, sT1))
            a('s_xor_b32 s%d, s%d, s%d' % (sT3, sT0, sT1))
            if not s.opt.get('initlate'): s.st(vSent, vL16, sT3, n=4)
        a('s_barrier')
        s.delay('adelay')
        s.stamp(8)
        if s.opt.get('glob'):
            a('s_cmp_lg_u32 s%d, 0' % sC)
            a('s_cbranch_scc1 L_askip_%s' % tag)
        a.label('L_hopa_%s' % tag)
        NP = s.NP
        r = vF + 8
        for i in range(4 * NP):
            a('buffer_load_dwordx4 %s, v%d, s[%d:%d], s%d offen offset:%d sc1' % (vr(vM + 4 * i, 4), vRed, S_WS, S_WS + 3, sD, (i // NP) * 1024 + (i % NP) * 256))
        a('s_mov_b64 exec, -1')
        IL = 1 if s.opt.get('initlate') else 0
        if IL: s.st(vSent, vL16, sT3, n=4)
        for i in range(4 * NP):
            a('s_waitcnt vmcnt(%d)' % (4 * NP - 1 - i + IL))
            rr = vr(r + 4 * (i % NP), 4)
            a('v_mfma_f32_16x16x32_bf16 %s, %s, %s, %s' % (rr, vr(vM + 4 * i, 4), vr(vSel, 4), '0' if i < NP else rr))
        a('v_pk_add_f32 %s, %s, %s' % (vr(vT, 2), vr(r, 2), vr(r + 2, 2)))
        if NP == 2:
            a('v_pk_add_f32 %s, %s, %s' % (vr(vT, 2), vr(vT, 2), vr(r + 4, 2)))
            a('v_pk_add_f32 %s, %s, %s' % (vr(vT, 2), vr(vT, 2), vr(r + 6, 2)))
        for k in range(NP):
            for h in range(2): a('v_cvt_pk_bf16_f32 v%d, v%d, v%d' % (r + 4 * k + h, r + 4 * k + 2 * h, r + 4 * k + 2 * h + 1))
        a('v_cmp_u_f32 vcc, v%d, v%d' % (vT, vT + 1))
        for k in range(NP):
            a('v_cndmask_b32 v%d, v%d, v%d, s[%d:%d]' % (r + 4 * k, r + 4 * k + 1, r + 4 * k, sStMask, sStMask + 1))
        a('s_cbranch_vccnz L_aslow_%s' % tag)
        a.label('L_aok_%s' % tag)
        for k in range(NP): (s.st if s.opt.get('glob') else s.lst)(r + 4 * k, vMst, sE, 256 * k)
        a.label('L_askip_%s' % tag)
        s.stamp(5)
        if s.opt.get('b4'): a('s_barrier')
        s.delay('b4delay')
        stubs = s.hopb_s1(tag, tail)
        stubs()
        a.label('L_aslow_%s' % tag)
        s.maxtree(vM, 16 * NP, vT + 1)
        a('v_cmp_eq_u32 vcc, -1, v%d' % (vT + 1))
        a('s_cbranch_vccz L_aok_%s' % tag)
        a('s_mov_b64 exec, vcc')
        s.count(10)
        s.tmo('L_hopa_%s' % tag)
        a.label('L_cretry_%s' % tag)
        cld()
        s.zero(range(vS, vS + 8))
        s.count(9)
        s.tmo('L_hopc_%s' % tag)
    def um(s):
        a = s.a
        def cvt(hl, tt):
            d = vD + 16 * hl + 4 * tt
            a('v_cvt_pk_bf16_f32 v%d, v%d, v%d' % (vU + 16 * tt + 8 * hl + 4, d, d + 1))
            a('v_cvt_pk_bf16_f32 v%d, v%d, v%d' % (vU + 16 * tt + 8 * hl + 5, d + 2, d + 3))
        n = 0
        for hl in range(2):
            for T in range(2):
                indma = s.opt.get('dmapos', 'um') == 'um' and n < 4 - s.opt.get('split', 0)
                if indma: a('s_mov_b32 m0, s%d' % (sP + 4 + n))
                for tt in range(4):
                    a('v_smfmac_f32_16x16x64_bf16 %s, %s, %s, v%d' % (vr(vD + 16 * hl + 4 * tt, 4), vr(vM + 8 * hl + 4 * T, 4), wo(tt, 16 * hl + 8 * T, 8), vIdx))
                    if indma: s.dma(sP + n, tt * 1024)
                    if hl == 1 and T == 1: cvt(0, tt)
                n += 1
        for tt in range(4): cvt(1, tt)
    def kv_addr(s):
        a = s.a
        a('s_add_u32 s%d, s%d, 1' % (sT0, sStep))
        a('s_lshl_b32 s%d, s%d, 18' % (sP, sT0))
        a('s_add_u32 s%d, s%d, s%d' % (sP, sP, sKVoff))
        if WS_KF: a('s_add_u32 s%d, s%d, 0x%x' % (sP, sP, WS_KF))
        a('s_add_u32 s%d, s%d, 0x20000' % (sP + 1, sP))
        a('s_and_b32 s%d, s%d, 1' % (sT0, sT0))
        a('s_lshl_b32 s%d, s%d, 14' % (sT0, sT0))
        a('s_add_u32 s%d, s%d, s%d' % (sP + 4, sT0, sLdsC))
        a('s_add_u32 s%d, s%d, 4096' % (sP + 5, sP + 4))
        a('s_xor_b32 s%d, s%d, 0x4000' % (sP + 6, sP + 4))
        a('s_add_u32 s%d, s%d, %d' % (sP + 6, sP + 6, L_VX - L_KX))
        a('s_add_u32 s%d, s%d, 4096' % (sP + 7, sP + 6))
        a('s_add_u32 s%d, s%d, 2' % (sT0, sStep))
        a('s_min_u32 s%d, s%d, 63' % (sT0, sT0))
        a('s_lshl_b32 s%d, s%d, 18' % (sP + 2, sT0))
        a('s_add_u32 s%d, s%d, s%d' % (sP + 2, sP + 2, sKVoff))
        a('s_add_u32 s%d, s%d, 0x%x' % (sP + 2, sP + 2, WS_VF))
        a('s_add_u32 s%d, s%d, 0x20000' % (sP + 3, sP + 2))
    def loop_H(s, tag):
        a = s.a
        vO = vT + 2
        zs = [vD + i for i in range(32)] + [vF + i for i in range(16)]
        for z in zs[24:]: a('v_mov_b32 v%d, 0' % z)
        s.kv_addr()
        a.label('L_loop_%s' % tag)
        s.s1finish(True, tag)
        a('s_lshl_b32 s%d, s%d, 17' % (sF, sStep))
        a('s_add_u32 s%d, s%d, s%d' % (sK2, sF, sKst))
        a('s_add_u32 s%d, s%d, s%d' % (sF, sF, sKVMst))
        a('s_cmp_eq_u32 s%d, %d' % (sStep, s.nsteps - 1))
        a('s_cbranch_scc1 L_last_%s' % tag)
        for i in range(4): a('ds_read_b128 %s, v%d offset:%d' % (vr(vM + 16 + 4 * i, 4), vVX, i * 1024))
        a('s_and_b32 s%d, s%d, %d' % (sD, sStep, s.opt.get('pring', 64) - 1))
        a('s_lshl_b32 s%d, s%d, 19' % (sD, sD))
        a('s_add_u32 s%d, s%d, s%d' % (sD, sD, sPARTst))
        a('s_and_b32 s%d, s%d, 4' % (sT3, sStep))
        a('s_lshl_b32 s%d, s%d, 11' % (sT3, sT3))
        a('s_xor_b32 s%d, s%d, s%d' % (sD, sD, sT3))
        s.slot(sH, sMTld, MT_SLOT)
        vG = 240
        acc = {0: vG, 1: vD, 2: vD + 16, 3: vG}
        fr = lambda i: vM + 4 * ((i + 4) % 8) if i < 4 else vM + 4 * (i % 8)
        rd = lambda i: 'ds_read_b128 %s, v%d offset:%d' % (vr(fr(i), 4), vVX, i * 1024)
        def mm(i, tt):
            d = vr(acc[i // 4] + 4 * tt, 4)
            return 'v_mfma_f32_16x16x32_bf16 %s, %s, %s, %s' % (d, vr(fr(i), 4), wo(tt, 16 * (i // 8) + 4 * (i % 4), 4), '0' if i % 4 == 0 else d)
        def cvt(gi): return ['v_cvt_pk_bf16_f32 v%d, v%d, v%d' % (vU + 16 * tt + 8 * (gi // 2) + 2 * (gi % 2) + h, acc[gi] + 4 * tt + 2 * h, acc[gi] + 4 * tt + 2 * h + 1) for tt in range(4) for h in range(2)]
        zz = lambda b, n: ['v_mov_b64 %s, 0' % vr(b + 2 * k, 2) for k in range(n // 2)]
        def cld():
            for i in range(4):
                a('buffer_load_dwordx4 %s, v%d, s[%d:%d], s%d offen offset:%d sc1' % (vr(vM + 4 * i, 4), vL16, S_WS, S_WS + 3, sCc, i * 1024))
        z24 = zz(vD, 24)
        hp = s.opt.get('hpre', 6)
        for k in range(4): a(z24.pop(0))
        for n in range(16):
            if n % 4 == 0: a('s_waitcnt lgkmcnt(%d)' % (3 - n // 4))
            if n == hp:
                s.stamp(1)
                cld()
            a(mm(n // 4, n % 4))
            if z24: a(z24.pop(0))
        a.label('L_hopc_%s' % tag)
        a('s_waitcnt vmcnt(2)')
        s.maxtree(vM, 8, vT)
        a('s_waitcnt vmcnt(0)')
        s.maxtree(vM + 8, 8, vT, first=False)
        a('v_cmp_eq_u32 vcc, -1, v%d' % vT)
        a('s_cbranch_vccnz L_cretry_%s' % tag)
        s.stamp(2)
        for i in range(4, 8): a(rd(i))
        s.um()
        DN = s.opt.get('dn', True)
        if DN:
            for x in zz(vD, 16): a(x)
        s.stamp(3)
        a('s_barrier')
        s.stamp(4)
        for hl in range(2):
            for u in range(2):
                a('ds_read_b64_tr_b16 %s, v%d offset:%d' % (vr(vM + 4 * hl + 2 * u, 2), vPw, hl * 1024 + u * 16))
        fa = lambda hl, tt: (vD if DN and hl else vF) + 4 * tt
        for hl in range(2):
            a('s_waitcnt lgkmcnt(%d)' % (2 - 2 * hl))
            for tt in range(4):
                if DN and hl == 1 and tt == s.opt.get('dnpos', 0):
                    a('s_barrier')
                    for h in range(2): a('ds_read2st64_b32 %s, v%d offset0:%d offset1:%d' % (vr(vM + 8 + 2 * h, 2), vL4, L_P // 256 + 8 + 4 * h, L_P // 256 + 9 + 4 * h))
                a('v_smfmac_f32_16x16x64_bf16 %s, %s, %s, v%d' % (vr(fa(hl, tt), 4), vr(vM + 4 * hl, 4), vr(vU + 16 * tt + 8 * hl, 8), vIdx))
        if DN:
            for tt in range(4): s.halfsum(vF + 4 * tt)
            a('s_waitcnt lgkmcnt(0)')
            for tt in range(4): a('v_pk_mul_f32 %s, %s, %s' % (vr(vF + 4 * tt, 2), vr(vF + 4 * tt, 2), vr(vM + 8, 2)))
        for tt in range(4):
            s.halfsum(fa(1, tt))
            if DN: a('v_pk_fma_f32 %s, %s, %s, %s' % (vr(vF + 4 * tt, 2), vr(vD + 4 * tt, 2), vr(vM + 10, 2), vr(vF + 4 * tt, 2)))
            a('v_cvt_pk_bf16_f32 v%d, v%d, v%d' % (vO + tt, vF + 4 * tt, vF + 4 * tt + 1))
        s.st(vO, vL16, sD, n=4)
        s.stamp(5)
        A = a; buf = []
        s.a = a = buf.append
        HS = s.opt.get('hst', True)
        if HS:
            s.slot(sT2, sQKst, QKV_SLOT, True)
            a('s_sub_u32 s%d, s%d, s%d' % (sT1, sT2, sQKst))
            a('s_add_u32 s%d, s%d, s%d' % (sT1, sT1, sVst))
            a('s_add_u32 s%d, s%d, 0x%x' % (sD, sD, 2 * PART_SLOT))
            if s.opt.get('pring'): a('s_bitset0_b32 s%d, %d' % (sD, 18 + s.opt['pring'].bit_length()))
            a('s_and_b32 s%d, s%d, 2' % (sT3, sStep))
            a('s_lshl_b32 s%d, s%d, 12' % (sT3, sT3))
            a('s_xor_b32 s%d, s%d, s%d' % (sD, sD, sT3))
        a('s_add_u32 s%d, s%d, 1' % (sStep, sStep))
        s.kv_probe()
        s.slot(sA, sQKst, QKV_SLOT); s.slot(sB, sVst, QKV_SLOT); s.slot(sCc, sCld, QKV_SLOT)
        s.kv_addr()
        sal = list(buf); del buf[:]
        s.st(vT + 10, vL4, sK2); s.st(vT + 11, vL4, sF, 2048)
        if HS:
            s.st(vSent, vL16, sD, n=4); s.lst(vSent, vL4, sT2); s.lst(vSent, vL4, sT1)
        sts = list(buf)
        s.nlate = len(sts)
        s.a = a = A
        gaps = {n: [] for n in range(48)}
        for k, x in enumerate(cvt(0) + zz(vF, 16)): gaps[k].append(x)
        for k, x in enumerate(cvt(1)): gaps[20 + k].append(x)
        for k, x in enumerate(zz(vD, 16)): gaps[28 + k].append(x)
        for k, x in enumerate(cvt(2)): gaps[36 + k].append(x)
        SP = s.opt.get('split', 0)
        for k in range(4 * SP):
            n = 4 - SP + k // 4
            if k % 4 == 0: gaps[k].append('s_mov_b32 m0, s%d' % (sP + 4 + n))
            gaps[k + 1].insert(0, 'buffer_load_dwordx4 v%d, s[%d:%d], s%d offen offset:%d sc1 lds' % (vL16, S_WS, S_WS + 3, sP + n, (k % 4) * 1024))
        for k, x in enumerate(sal): gaps[k].append(x)
        lp = s.opt.get('latepos', 34)
        for k, x in enumerate(sts): gaps[lp + 2 * k].append(x)
        for i in range(8, 16): gaps[0 if i < 10 else 4 * (i - 8) - 4 if i < 12 else 4 * (i - 8 - 3) + 0].append(rd(i))
        order = sorted((n, i) for n in gaps for i in range(8, 16) if rd(i) in gaps[n])
        for n in range(48):
            i = 4 + n // 4
            if n % 4 == 0 and i >= 8:
                later = [j for (g, j) in order if g < n]
                a('s_waitcnt lgkmcnt(%d)' % (len(later) - 1 - later.index(i)))
            if n == s.opt.get('b3pos', 24) or (n == 1 and s.opt.get('b3a')): a('s_barrier')
            a(mm(i, n % 4))
            for x in gaps[n]: a(x)
        for x in zz(vD + 16, 16): a(x)
        a('v_xor_b32 v%d, 0x4000, v%d' % (vVX, vVX))
        s.kv_check(tag)
        s.stamp(8)
        if s.opt.get('b4'):
            for x in cvt(3): a(x)
            s.last_H(tag)
            a('s_barrier')
        s.delay('b4delay')
        stubs = s.hopb_s1(tag, None, () if s.opt.get('b4') else cvt(3))
        stubs()
        a.label('L_cretry_%s' % tag)
        cld()
        s.count(9)
        s.tmo('L_hopc_%s' % tag)
        s.kv_slow(tag)
        a.label('L_last_%s' % tag)
        s.st(vT + 11, vL4, sF, 2048)
        a('s_branch L_lastk')
    def emit(s):
        a = s.a
        s.init()
        a('s_cmp_eq_u32 s%d, 1' % sLocal)
        a('s_cbranch_scc0 L_remote')
        for local in (True, False):
            s.local = local
            t = 'l' if local else 'r'
            if not local: a.label('L_remote')
            a('s_cmp_ge_u32 s%d, 2' % sW)
            a('s_cbranch_scc1 L_H%s' % t)
            s.inS = True
            s.loop_S('S' + t)
            s.inS = False
            a.label('L_H%s' % t)
            s.loop_H('H' + t)
        a.label('L_lastk')
        s.st(vT + 10, vL4, sK2)
        a('s_branch L_chain_done')
        a.label('L_chain_fail')
        a('s_mov_b64 exec, -1')
        a('v_mov_b32 v%d, 1' % vT)
        a('buffer_atomic_add v%d, off, s[%d:%d], 0 offset:4 sc1' % (vT, S_DBG, S_DBG + 3))
        a.label('L_chain_done')
        if s.opt.get('tot', True):
            a('s_memrealtime s[100:101]')
            a('s_waitcnt lgkmcnt(0)')
            a('s_sub_u32 s100, s100, s98')
            a('v_mov_b32 v%d, s100' % vT)
            a('buffer_store_dword v%d, off, s[%d:%d], 0 offset:8' % (vT, S_DBG, S_DBG + 3))
            a('s_memtime s[100:101]')
            a('s_waitcnt lgkmcnt(0)')
            a('s_sub_u32 s100, s100, s82')
            a('v_mov_b32 v%d, s100' % vT)
            a('s_lshl_b32 s%d, s%d, 2' % (sT0, sX))
            a('buffer_store_dword v%d, off, s[%d:%d], s%d offset:64' % (vT, S_DBG, S_DBG + 3, sT0))
        if s.opt.get('trace'):
            a('s_lshl_b32 s%d, s2, 2' % sT0)
            a('s_add_u32 s%d, s%d, s%d' % (sT0, sT0, sW))
            a('s_lshl_b32 s%d, s%d, 12' % (sT0, sT0))
            a('s_add_u32 s%d, s%d, 0x%x' % (sT0, sT0, WS_PROF))
            for i in range(11): s.st(244 + i, vL4, sT0, 256 * i, sc1=False)
        if s.prof:
            a('s_lshl_b32 s%d, s2, 2' % sT0)
            a('s_add_u32 s%d, s%d, s%d' % (sT0, sT0, sW))
            a('s_lshl_b32 s%d, s%d, 6' % (sT0, sT0))
            a('s_add_u32 s%d, s%d, 0x%x' % (sT0, sT0, WS_PROF))
            a('s_mov_b32 s%d, s%d' % (sAcc + 15, sTmo))
            a('s_mov_b32 s%d, s%d' % (sAcc + 14, sLocal))
            for i in range(16):
                a('v_mov_b32 v%d, s%d' % (vT, sAcc + i))
                a('buffer_store_dword v%d, off, s[%d:%d], s%d offset:%d' % (vT, S_WS, S_WS + 3, sT0, 4 * i))
        if s.opt.get('endwait', True): a('s_waitcnt vmcnt(0)')
    def nt(s, srd): return ' nt' if srd in s.opt.get('nt', []) else ''
    def get_wave(s):
        a = s.a
        a('v_lshrrev_b32 v%d, 6, v0' % vT)
        a('v_readfirstlane_b32 s%d, v%d' % (sW, vT))
        a('v_and_b32 v0, 63, v0')
    def kv_probe(s): pass
    def kv_check(s, tag): pass
    def kv_slow(s, tag): pass
    def pre_loop(s): pass
    def claim(s): pass
    def last_S(s, tag): pass
    def last_H(s, tag): pass
    def verify(s): pass
    def counted(s): pass
    def mark(s, i): pass
    def early0(s): pass
    def early1(s): pass
    def kv_wait_init(s): pass
    def kv_wait_loop(s): pass

def chain_kernel(name='chain_kernel', prof=False, opt=None):
    a = Asm()
    NX = (opt or {}).get('NX', 4)
    a('s_and_b32 s3, s2, 7')
    a('s_cmp_ge_u32 s3, %d' % NX)
    a('s_cbranch_scc1 L_chain_exit')
    a('s_cmp_ge_u32 s2, %d' % (1024 // NX))
    a('s_cbranch_scc1 L_chain_exit')
    for sreg, k in [(S_WS, 'ws'), (S_WQ, 'Wq'), (S_WK, 'Wk'), (S_WV, 'Wv'), (S_WO, 'Wo'), (S_M0, 'B_mem0'), (S_DBG, 'dbg')]:
        a('s_load_dwordx2 s[%d:%d], s[0:1], %d' % (sreg, sreg + 1, KA[k]))
    a('s_waitcnt lgkmcnt(0)')
    for sreg, n in [(S_WS, WS_BYTES), (S_WQ, 8 * MB), (S_WK, 8 * MB), (S_WV, 8 * MB), (S_WO, 8 * MB), (S_M0, 16384), (S_DBG, 256)]:
        a('s_mov_b32 s%d, 0x%x' % (sreg + 2, n)); a('s_mov_b32 s%d, 0x20000' % (sreg + 3))
    Chain(a, prof, opt=opt).emit()
    a.label('L_chain_exit')
    a('s_endpgm')
    return kernel_head(name) + a.finalize()

def write(path, prof, opt):
    txt = '; @launch grid=(256,1,1) block=(256,1,1) lds=%d\n.amdgcn_target "amdgcn-amd-amdhsa--gfx950"\n.text\n' % L_END
    txt += chain_kernel(prof=prof, opt=opt)
    txt += '.section .rodata,"a"\n.p2align 6\n' + kernel_desc('chain_kernel')
    open(path, 'w').write(txt)

if __name__ == '__main__':
    import sys, json
    for spec in sys.argv[1:]:
        name, _, o = spec.partition('=')
        opt = json.loads(o) if o else {}
        write(name + '.s', 'prof' in name, opt)
```

```python
from ag import *
from common import *

S_WS, S_WQ, S_WK, S_WV, S_WO, S_M0, S_DBG = 4, 8, 12, 16, 20, 24, 28
S_X = 32
S_WC = 36
sW, sT0, sT1, sT2, sT3 = 40, 41, 42, 43, 44
sXo, sWo, sIt, sOut, sXl, sWl, sCnt = 45, 46, 47, 48, 49, 50, 51
sJob = 52
sSt, sXm, sWm, sRd, sOutN = 64, 65, 66, 67, 68
sSigN, sSigC, sSigD = 69, 70, 71
sNX, sNW, sNP = 74, 75, 76
vXr0, vXr1, vL16 = 1, 2, 3
vWr = 4
vXs = 8
vWs = 16
vT = 20
vFr = 0
vStg = 32
sKv, sKvN, sOutP, sDmp, sKvm = 72, 73, 78, 79, 14
sXp, sWp = 10, 11
vXp, vWp = 96, 97
vAcc = 128

class G1:
    def __init__(s, a, MT, tag):
        s.a = a; s.MT = MT; s.tag = tag
        s.XB = 32 * MT * 128
        s.ST = s.XB + 16384
        s.nxd = s.XB // 4096
        s.NS = 3
    def bits(s, dst, terms, init=None):
        a = s.a
        first = init is None
        if not first: a('v_mov_b32 v%d, %s' % (dst, init))
        for (src, n, sh) in terms:
            a('v_bfe_u32 v%d, v0, %d, %d' % (vT + 1, src, n))
            if first: a('v_lshlrev_b32 v%d, %d, v%d' % (dst, sh, vT + 1)); first = False
            else: a('v_lshl_add_u32 v%d, v%d, %d, v%d' % (dst, vT + 1, sh, dst))
    def setup(s):
        a = s.a; MT = s.MT
        a('v_lshrrev_b32 v%d, 3, v0' % vT)
        a('v_xor_b32 v%d, v0, v%d' % (vXs, vT))
        a('v_and_b32 v%d, 7, v%d' % (vXs, vXs))
        a('v_lshlrev_b32 v%d, 4, v%d' % (vXs, vXs))
        a('v_lshl_add_u32 v%d, v%d, 11, v%d' % (vXs, vT, vXs))
        a('s_mul_i32 s%d, s%d, %d' % (sT0, sW, s.nxd * 8 * 2048))
        a('v_add_u32 v%d, s%d, v%d' % (vXs, sT0, vXs))
        for i in range(1, s.nxd): a('v_add_u32 v%d, 0x%x, v%d' % (vXs + i, i * 8 * 2048, vXs))
        a('s_mul_i32 s%d, s%d, %d' % (sXl, sW, s.nxd * 1024))
        a('v_lshrrev_b32 v%d, 4, v0' % vT)
        a('s_and_b32 s%d, s%d, 1' % (sT0, sW))
        a('s_lshl_b32 s%d, s%d, 2' % (sT1, sT0))
        a('v_or_b32 v%d, s%d, v%d' % (vT + 1, sT1, vT))
        a('v_lshlrev_b32 v%d, 1, v%d' % (vT + 1, vT + 1))
        a('v_xor_b32 v%d, v0, v%d' % (vWs, vT + 1))
        a('v_and_b32 v%d, 15, v%d' % (vWs, vWs))
        a('v_lshlrev_b32 v%d, 4, v%d' % (vWs, vWs))
        a('v_lshl_add_u32 v%d, v%d, 13, v%d' % (vWs, vT, vWs))
        a('s_lshl_b32 s%d, s%d, 3' % (sT0, sT0))
        a('s_lshr_b32 s%d, s%d, 1' % (sT1, sW))
        a('s_lshl_b32 s%d, s%d, 2' % (sT1, sT1))
        a('s_add_u32 s%d, s%d, s%d' % (sT0, sT0, sT1))
        a('s_lshl_b32 s%d, s%d, 13' % (sT1, sT0))
        a('v_add_u32 v%d, s%d, v%d' % (vWs, sT1, vWs))
        for i in range(1, 4): a('v_add_u32 v%d, 0x%x, v%d' % (vWs + i, i * 16 * 8192, vWs))
        a('s_lshl_b32 s%d, s%d, 8' % (sWl, sT0))
        a('s_add_u32 s%d, s%d, %d' % (sWl, sWl, s.XB))
        a('v_lshrrev_b32 v%d, 4, v0' % vT)
        a('v_xor_b32 v%d, v0, v%d' % (vXr0, vT))
        a('v_and_b32 v%d, 7, v%d' % (vXr0, vXr0))
        a('v_lshlrev_b32 v%d, 4, v%d' % (vXr0, vXr0))
        a('v_and_b32 v%d, 15, v0' % vT)
        a('v_lshl_add_u32 v%d, v%d, 7, v%d' % (vXr0, vT, vXr0))
        a('s_and_b32 s%d, s%d, 1' % (sT0, sW))
        a('s_mul_i32 s%d, s%d, %d' % (sT0, sT0, MT * 2048))
        a('v_add_u32 v%d, s%d, v%d' % (vXr0, sT0, vXr0))
        a('v_xor_b32 v%d, 64, v%d' % (vXr1, vXr0))
        s.bits(vT, [(2, 3, 0)])
        a('s_lshr_b32 s%d, s%d, 1' % (sT0, sW))
        a('s_lshl_b32 s%d, s%d, 2' % (sT0, sT0))
        a('v_xor_b32 v%d, s%d, v%d' % (vT, sT0, vT))
        s.bits(vT + 2, [(4, 2, 11), (2, 2, 8), (0, 2, 3)], str(s.XB))
        for nt in range(4):
            a('v_xor_b32 v%d, %d, v%d' % (vT + 3, nt, vT))
            a('v_lshl_add_u32 v%d, v%d, 5, v%d' % (vWr + nt, vT + 3, vT + 2))
        a('v_lshlrev_b32 v%d, 4, v0' % vL16)
        a('s_mov_b32 s%d, 0x%x' % (sDmp, WS_DUMP))
        a('s_mov_b32 s%d, 0x%x' % (sKvm, WS_KVM))
    def dmas(s):
        out = []
        for i in range(s.nxd):
            out.append(('s_add_u32 m0, s%d, %d' % (sXm, i * 1024), 'buffer_load_dwordx4 v%d, s[%d:%d], s%d offen lds' % (vXs + i, S_X, S_X + 3, sXo)))
        for i in range(4):
            out.append(('s_add_u32 m0, s%d, %d' % (sWm, i * 4096), 'buffer_load_dwordx4 v%d, s[%d:%d], s%d offen lds' % (vWs + i, S_WC, S_WC + 3, sWo)))
        return out
    def adv(s, switch=False):
        if switch:
            o = ['s_mov_b32 s%d, s%d' % (sXo, sNX), 's_mov_b32 s%d, s%d' % (sWo, sNW), 's_mov_b64 s[%d:%d], s[%d:%d]' % (S_WC, S_WC + 1, sNP, sNP + 1)]
        else:
            o = ['s_add_u32 s%d, s%d, 128' % (sXo, sXo), 's_add_u32 s%d, s%d, 0x80000' % (sWo, sWo)]
        return o + ['s_add_u32 s%d, s%d, %d' % (sSt, sSt, s.ST),
                    ['s_cmp_eq_u32 s%d, %d' % (sSt, s.NS * s.ST), 's_cselect_b32 s%d, 0, s%d' % (sSt, sSt)],
                    's_add_u32 s%d, s%d, s%d' % (sXm, sXl, sSt), 's_add_u32 s%d, s%d, s%d' % (sWm, sWl, sSt),
                    ['s_cmp_eq_u32 s%d, %d' % (sSt, (s.NS - 1) * s.ST), 's_cselect_b32 s%d, s%d, %d' % (sT3, sRd, s.ST)]]
    def fx(s, st, mt): return vFr + st * (4 * s.MT + 16) + 4 * mt
    def fw(s, st, nt): return vFr + st * (4 * s.MT + 16) + 4 * s.MT + 4 * nt
    def reads(s, st, ks, flip=False):
        out = []
        for nt in range(4):
            for v2 in range(2):
                out.append('ds_read_b64_tr_b16 %s, v%d offset:%d' % (ar(s.fw(st, nt) + 2 * v2, 2), vWr + nt, (32 * ks + 4 * v2) * 256))
        xs = ['ds_read_b128 %s, v%d offset:%d' % (ar(s.fx(st, mt), 4), vXr1 if ks else vXr0, mt * 2048) for mt in range(s.MT)]
        return out[:2] + xs[:1] + out[2:] + xs[1:]
    def flips(s): return ['v_add_u32 v%d, s%d, v%d' % (r, sT3, r) for r in [vXr0, vWr, vWr + 1, vWr + 2, vWr + 3, vXr1]]
    def phase(s, st, slots, first=False):
        a = s.a
        k = 0
        for mt in range(s.MT):
            for nt in range(4):
                d = vr(vAcc + (mt * 4 + nt) * 4, 4)
                a('v_mfma_f32_16x16x32_bf16 %s, %s, %s, %s' % (d, ar(s.fw(st, nt), 4), ar(s.fx(st, mt), 4), '0' if first else d))
                for x in slots.get(k, []): a(x)
                k += 1
    def sched(s, reads, dm, tail, extra=()):
        n = 4 * s.MT
        slots = {}
        def put(k, x):
            slots.setdefault(min(k, n - 1), []).extend([x] if isinstance(x, str) else x)
        nr = len(reads)
        span = int(n * 0.72)
        for i, r in enumerate(reads): put(i * span // nr, r)
        last = 0
        for i, (m, d) in enumerate(dm):
            k = 1 + (i * max(n - 2 - (len(tail) + 1) // 2, 2 * len(dm) - 2)) // len(dm) if n > 8 else 2 * i
            put(k, m); put(k + 1, d); last = k + 1
        t0 = max(last + 1, n - (len(tail) + 1) // 2 - 1)
        for i, x in enumerate(tail):
            k = t0 + i // 2
            if isinstance(x, str) and x.startswith('v_add'): k = max(k, span)
            put(k, x)
        ex = list(extra)
        for i, x in enumerate(ex): put(i * n // max(len(ex), 1), x)
        return slots
    def run(s, next_job, more, signal, after_prologue=None, at_signal=None, immediate=False, pre_epi=None):
        a = s.a; t = s.tag
        nd = s.nxd + 4; h = nd // 2
        dl = s.dmas()
        def flat(L):
            for x in L:
                for y in ([x] if isinstance(x, str) else x): a(y)
        a('s_mov_b32 s%d, %d' % (sSt, (s.NS - 1) * s.ST))
        a('s_mov_b32 s%d, %d' % (sRd, (-(s.NS - 1) * s.ST) & 0xffffffff))
        flat(next_job())
        flat(s.adv(True))
        a('s_barrier')
        for k in range(s.NS):
            flat(dl if k < s.NS - 1 else dl[:h])
            if k < s.NS - 1: flat(s.adv())
        nx = after_prologue() if after_prologue else 0
        if s.touch and not immediate:
            a('s_add_u32 s%d, s%d, %d' % (sXp, sNX, (s.NS + s.touch) * 128))
            a('s_add_u32 s%d, s%d, 0x%x' % (sWp, sNW, (s.NS + s.touch) * 0x80000))
            a('s_mov_b64 s[%d:%d], s[%d:%d]' % (s.S_WP, s.S_WP + 1, sNP, sNP + 1))
            a('s_mov_b32 s%d, 0x%x' % (s.S_WP + 2, 8 * MB)); a('s_mov_b32 s%d, 0x20000' % (s.S_WP + 3))
            a('s_and_b32 s%d, s54, 1' % sT0)
            a('s_lshl_b32 s%d, s%d, 2' % (sT0, sT0))
            a('s_add_u32 s%d, s%d, s%d' % (sT0, sT0, sW))
            a('s_lshl_b32 s%d, s%d, 16' % (sT0, sT0))
            s.bits(vWp, [(1, 3, 13), (0, 1, 7)], 's%d' % sT0)
            a('s_and_b32 s%d, s54, 28' % sT0)
            a('s_add_u32 s%d, s%d, s%d' % (sT0, sT0, sW))
            a('s_lshl_b32 s%d, s%d, 14' % (sT0, sT0))
            s.bits(vXp, [(0, 3, 11)], 's%d' % sT0)
            for i in range(2): a('buffer_load_dword v98, off, s[%d:%d], 0' % (S_X, S_X + 3))
            nx += 2
        a('s_waitcnt vmcnt(%d)' % (nd * (s.NS - 2) + h + nx))
        if s.after_wait: s.after_wait()
        a('s_barrier')
        flat(s.reads(0, 0))
        a('s_mov_b32 s%d, 0' % sCnt)
        w = nd * (s.NS - 2)
        for i in range(4): a('v_mov_b32 v%d, -1' % (vT + 4 + i))
        a('s_mov_b32 s%d, 0x%x' % (sOutP, WS_DUMP))
        def body(first=False, wait=w, post=None, switch=False, extra=(), loop=None, extraB=(), slotsB=None):
            a('s_waitcnt lgkmcnt(0)')
            s.phase(0, s.sched(s.reads(1, 1), dl[h:], s.adv(switch) + s.flips(), extra), first)
            a('s_waitcnt vmcnt(%d) lgkmcnt(0)' % wait)
            a('s_barrier')
            if post: post()
            sl = s.sched(s.reads(0, 0), dl[:h], loop or [], extraB)
            for k, v in (slotsB or {}).items(): sl.setdefault(k, []).extend(v)
            s.phase(1, sl)
        def stores(sreg, mts):
            o = []
            for mt in mts:
                for pr in range(2):
                    o.append('buffer_store_dwordx4 %s, v%d, s[%d:%d], s%d offen offset:%d sc1' % (vr(vStg + 8 * mt + 4 * pr, 4), vL16, S_WS, S_WS + 3, sreg, pr * 1024))
                o.append('s_add_u32 s%d, s%d, 0x20000' % (sreg, sreg))
            return o
        kv = ['buffer_store_dwordx4 %s, v%d, s[%d:%d], s%d offen sc1' % (vr(vT + 4, 4), vL16, S_WS, S_WS + 3, sKv), 's_add_u32 s%d, s%d, 0x40000' % (sKv, sKv)]
        def post():
            l2 = a.newlabel('Lg1')
            a('s_cmp_eq_u32 s%d, 0' % sCnt)
            a('s_cbranch_scc1 %s' % l2)
            signal()
            a.label(l2)
        a.label('L_g1tile_%s' % t)
        a('s_mov_b32 s%d, s%d' % (sOut, sOutN))
        a('s_mov_b32 s%d, s%d' % (sSigC, sSigN))
        a('s_mov_b32 s%d, s%d' % (sKv, sKvN))
        if immediate:
            nk = s.MT // 4
            oob = ['s_mov_b32 s%d, 0x%x' % (sNX, 8 * MB), 's_mov_b32 s%d, 0x%x' % (sNW, 8 * MB)]
            body(first=True, extraB=kv * nk)
            body(wait=w + nk, extra=oob if s.single else next_job(), loop=['s_mov_b32 s%d, 2' % sIt], extraB=kv * nk)
            a.label('L_g1loop_%s' % t)
            body(loop=['s_add_u32 s%d, s%d, 1' % (sIt, sIt), 's_cmp_lt_u32 s%d, %d' % (sIt, 16 - s.NS)])
            a('s_cbranch_scc1 L_g1loop_%s' % t)
            body(switch=True)
            for i in range(s.NS - 2): body()
            last = {}
        else:
            NBs = s.spread
            q = s.MT // NBs
            D = s.touch
            prev = 2 if D else 0
            for i in range(16):
                ex = []; n = 0
                if D:
                    tc = ['s_mov_b64 exec, 0xffff',
                          'buffer_load_dword v%d, v%d, s[%d:%d], s%d offen' % (98, vWp, s.S_WP, s.S_WP + 3, sWp),
                          'buffer_load_dword v%d, v%d, s[%d:%d], s%d offen' % (99, vXp, S_X, S_X + 3, sXp), 's_mov_b64 exec, -1']
                    if i == 16 - s.NS - D - 1:
                        nx = ['s_mov_b32 s%d, s%d' % (sXp, sNX), 's_mov_b32 s%d, s%d' % (sWp, sNW), 's_mov_b64 s[%d:%d], s[%d:%d]' % (s.S_WP, s.S_WP + 1, sNP, sNP + 1)]
                    else:
                        nx = ['s_add_u32 s%d, s%d, 128' % (sXp, sXp), 's_add_u32 s%d, s%d, 0x80000' % (sWp, sWp)]
                    ex += [tc, nx]; n += 2
                if i < NBs:
                    ex += stores(sOutP, range(i * q, (i + 1) * q))
                    nk = [j for j in range(4) if j * NBs // 4 == i]
                    for j in nk: ex = ex + kv
                    n += 2 * q + len(nk)
                kw = dict(first=(i == 0), wait=w + prev, extra=next_job() if i == 1 else (), extraB=ex, post=post if i == NBs + 1 else None, switch=(i == 16 - s.NS))
                prev = n
                if i < 15: body(**kw)
                else: last = kw
        n = 4 * s.MT; LAG = 4
        cv = lambda k: ['v_cvt_pk_bf16_f32 v%d, v%d, v%d' % (vStg + 2 * k + i, vAcc + 4 * k + 2 * i, vAcc + 4 * k + 2 * i + 1) for i in range(2)]
        body(slotsB={k + LAG: cv(k) for k in range(n - LAG)}, **last)
        for k in range(n - LAG, n): flat(cv(k))
        if pre_epi: pre_epi()
        a('s_mov_b32 s%d, 1' % sCnt)
        a('s_mov_b32 s%d, s%d' % (sSigD, sSigC))
        a('s_mov_b32 s%d, s%d' % (sOutP, sOut))
        if not immediate:
            more()
            a('s_cbranch_scc1 L_g1tile_%s' % t)
        flat(stores(sOutP, range(s.MT)))
        if immediate:
            a('s_waitcnt lgkmcnt(0)')
            more()
            a('s_cbranch_scc0 L_g1end_%s' % t)
        a('s_waitcnt vmcnt(0) lgkmcnt(0)')
        a('s_barrier')
        signal()
        if immediate:
            a('s_branch L_g1tile_%s' % t)
            a.label('L_g1end_%s' % t)
            a('s_waitcnt vmcnt(%d)' % (2 * s.MT))
    spread = 8
    single = False
    after_wait = None
    touch = 0
    S_WP = 24
    def job(s, sRow, sCol):
        return ['s_mul_i32 s%d, s%d, %d' % (sNX, sRow, 32 * s.MT * 2048),
                's_and_b32 s%d, s%d, 31' % (sT0, sCol),
                's_lshl_b32 s%d, s%d, 8' % (sNW, sT0),
                's_lshr_b32 s%d, s%d, 5' % (sT1, sCol),
                ['s_cmp_eq_u32 s%d, 1' % sT1, 's_cselect_b64 s[%d:%d], s[%d:%d], s[%d:%d]' % (sNP, sNP + 1, S_WV, S_WV + 1, S_WK, S_WK + 1)],
                ['s_cmp_eq_u32 s%d, 2' % sT1, 's_cselect_b64 s[%d:%d], s[%d:%d], s[%d:%d]' % (sNP, sNP + 1, S_WQ, S_WQ + 1, sNP, sNP + 1)],
                's_lshl_b32 s%d, s%d, 24' % (sOutN, sT1),
                's_lshl_b32 s%d, s%d, 12' % (sT0, sT0),
                's_add_u32 s%d, s%d, s%d' % (sOutN, sOutN, sT0),
                's_lshl_b32 s%d, s%d, 1' % (sT0, sRow),
                's_and_b32 s%d, s%d, 1' % (sT1, sW),
                's_add_u32 s%d, s%d, s%d' % (sT0, sT0, sT1),
                's_mul_i32 s%d, s%d, %d' % (sT0, sT0, s.MT * 131072),
                's_add_u32 s%d, s%d, s%d' % (sOutN, sOutN, sT0),
                's_lshr_b32 s%d, s%d, 1' % (sT1, sW),
                's_lshl_b32 s%d, s%d, 11' % (sT1, sT1),
                's_add_u32 s%d, s%d, s%d' % (sOutN, sOutN, sT1),
                's_mul_i32 s%d, s%d, %d' % (sKvN, sRow, s.MT),
                's_lshr_b32 s%d, s%d, 1' % (sT0, sW),
                's_add_u32 s%d, s%d, s%d' % (sKvN, sKvN, sT0),
                's_lshl_b32 s%d, s%d, 17' % (sKvN, sKvN),
                's_lshl_b32 s%d, s%d, 4' % (sT0, sNW),
                's_add_u32 s%d, s%d, s%d' % (sKvN, sKvN, sT0),
                's_and_b32 s%d, s%d, 1' % (sT0, sW),
                's_lshl_b32 s%d, s%d, 10' % (sT0, sT0),
                's_add_u32 s%d, s%d, s%d' % (sKvN, sKvN, sT0),
                's_lshr_b32 s%d, s%d, 5' % (sT1, sCol),
                's_lshl_b32 s%d, s%d, 11' % (sT0, sT1),
                's_add_u32 s%d, s%d, s%d' % (sKvN, sKvN, sT0),
                ['s_cmp_eq_u32 s%d, 2' % sT1, 's_cselect_b32 s%d, s%d, s%d' % (sT0, sDmp, sKvm)],
                's_add_u32 s%d, s%d, s%d' % (sKvN, sKvN, sT0)]

def test_kernel(MT, RB, spread=8, touch=0):
    a = Asm()
    for sreg, k in [(S_WS, 'ws'), (S_WQ, 'Wq'), (S_WK, 'Wk'), (S_WV, 'Wv'), (S_X, 'B_x'), (S_DBG, 'dbg')]:
        a('s_load_dwordx2 s[%d:%d], s[0:1], %d' % (sreg, sreg + 1, KA[k]))
    a('s_waitcnt lgkmcnt(0)')
    for sreg, n in [(S_WS, WS_BYTES), (S_X, 4 * MB), (S_WC, 8 * MB), (S_DBG, 256)]:
        a('s_mov_b32 s%d, 0x%x' % (sreg + 2, n)); a('s_mov_b32 s%d, 0x20000' % (sreg + 3))
    a('s_mov_b64 s[%d:%d], s[%d:%d]' % (S_WC, S_WC + 1, S_WK, S_WK + 1))
    a('s_cmp_ge_u32 s2, 256'); a('s_cbranch_scc1 L_exit')
    a('s_and_b32 s53, s2, 7')
    a('s_cmp_lt_u32 s53, 4'); a('s_cbranch_scc1 L_exit')
    a('s_sub_u32 s53, s53, 4')
    a('s_lshr_b32 s54, s2, 3')
    a('v_lshrrev_b32 v%d, 6, v0' % vT)
    a('v_readfirstlane_b32 s%d, v%d' % (sW, vT))
    a('v_and_b32 v0, 63, v0')
    a('s_memrealtime s[60:61]')
    a('s_memtime s[80:81]')
    big = MT == 16
    if big: MT = 8
    g = G2(a, 'a') if big else G1(a, MT, 'a')
    NC = 12 if big else 24
    g.spread = spread; g.touch = touch
    g.setup()
    nrows = 2048 // (32 * MT)
    a('s_mov_b32 s%d, 0' % sJob)
    njobs = nrows * NC // 32
    CB = 32 // RB
    def next_job():
        nb_c = NC // CB
        return ['s_min_u32 s55, s%d, %d' % (sJob, njobs - 1),
                's_mul_i32 s56, s55, %d' % (65536 // nb_c + 1),
                's_lshr_b32 s56, s56, 16',
                's_mul_i32 s57, s56, %d' % nb_c,
                's_sub_u32 s57, s55, s57',
                's_mul_i32 s56, s56, %d' % RB,
                's_and_b32 s58, s54, %d' % (RB - 1),
                's_add_u32 s56, s56, s58',
                's_mul_i32 s57, s57, %d' % CB,
                's_lshr_b32 s58, s54, %d' % (RB.bit_length() - 1),
                's_add_u32 s57, s57, s58',
                's_mul_i32 s58, s53, %d' % NC,
                's_add_u32 s57, s57, s58'] + g.job(56, 57) + ['s_add_u32 s%d, s%d, 1' % (sJob, sJob)]
    g.run(next_job, lambda: a('s_cmp_le_u32 s%d, %d' % (sJob, njobs)), lambda: None)
    a('s_waitcnt vmcnt(0)')
    a('s_memrealtime s[62:63]')
    a('s_memtime s[82:83]')
    a('s_waitcnt lgkmcnt(0)')
    a('s_sub_u32 s82, s82, s80')
    a('v_mov_b32 v%d, s82' % vT)
    a('buffer_store_dword v%d, off, s[%d:%d], 0 offset:12' % (vT, S_DBG, S_DBG + 3))
    a('s_sub_u32 s62, s62, s60')
    a('v_mov_b32 v%d, s62' % vT)
    a('buffer_store_dword v%d, off, s[%d:%d], 0 offset:8' % (vT, S_DBG, S_DBG + 3))
    a.label('L_exit')
    a('s_endpgm')
    txt = '; @launch grid=(256,1,1) block=(256,1,1) lds=163840\n.amdgcn_target "amdgcn-amd-amdhsa--gfx950"\n.text\n'
    txt += kernel_head('g1_kernel') + a.finalize(True)
    txt += '.section .rodata,"a"\n.p2align 6\n' + kernel_desc('g1_kernel')
    return txt

class G2(G1):
    vWr8, vWs8, vF2 = 32, 40, 128
    _ = 0
    WB = 98304
    def mark(s, i): pass
    def cmark(s, i):
        l = s.a.newlabel('Lm')
        s.a('s_cmp_eq_u32 s%d, 0' % sCnt)
        s.a('s_cbranch_scc0 %s' % l)
        s.mark(i)
        s.a.label(l)
    def __init__(s, a, tag):
        G1.__init__(s, a, 8, tag)
    def setup(s):
        a = s.a
        G1.setup(s)
        for i in range(4):
            a('v_mov_b32 v%d, v%d' % (s.vWs8 + i, vWs + i))
            a('v_add_u32 v%d, 256, v%d' % (s.vWs8 + 4 + i, vWs + i))
        a('s_add_u32 s%d, s%d, %d' % (sWl, sWl, s.WB - s.XB))
        s.bits(vT, [(2, 3, 0)])
        a('s_lshr_b32 s%d, s%d, 1' % (sT0, sW))
        a('s_lshl_b32 s%d, s%d, 14' % (sT0, sT0))
        a('s_add_u32 s%d, s%d, %d' % (sT0, sT0, s.WB))
        s.bits(vT + 2, [(4, 2, 11), (2, 2, 8), (0, 2, 3)], 's%d' % sT0)
        for nt in range(8):
            a('v_xor_b32 v%d, %d, v%d' % (vT + 3, nt, vT))
            a('v_lshl_add_u32 v%d, v%d, 5, v%d' % (s.vWr8 + nt, vT + 3, vT + 2))
    def xd(s): return [('s_add_u32 m0, s%d, %d' % (sXm, i * 1024), 'buffer_load_dwordx4 v%d, s[%d:%d], s%d offen lds' % (vXs + i, S_X, S_X + 3, sXo)) for i in range(8)]
    def wd(s, par): return [('s_add_u32 m0, s%d, %d' % (sWl, par * 32768 + i * 4096), 'buffer_load_dwordx4 v%d, s[%d:%d], s%d offen lds' % (s.vWs8 + i, S_WC, S_WC + 3, sWo)) for i in range(8)]
    def xadv(s, sw):
        return ['s_mov_b32 s%d, s%d' % (sXo, sNX) if sw else 's_add_u32 s%d, s%d, 128' % (sXo, sXo), 's_add_u32 s%d, s%d, 32768' % (sSt, sSt),
                ['s_cmp_eq_u32 s%d, 98304' % sSt, 's_cselect_b32 s%d, 0, s%d' % (sSt, sSt)], 's_add_u32 s%d, s%d, s%d' % (sXm, sXl, sSt),
                ['s_cmp_eq_u32 s%d, 65536' % sSt, 's_cselect_b32 s%d, s%d, 32768' % (sT3, sRd)]]
    def wadv(s, sw):
        return ['s_mov_b32 s%d, s%d' % (sWo, sNW), 's_mov_b64 s[%d:%d], s[%d:%d]' % (S_WC, S_WC + 1, sNP, sNP + 1)] if sw else ['s_add_u32 s%d, s%d, 0x80000' % (sWo, sWo)]
    def rd2(s, st, ks, par):
        b = s.vF2 + 64 * st
        w = ['ds_read_b64_tr_b16 %s, v%d offset:%d' % (vr(b + 32 + 4 * nt + 2 * v2, 2), s.vWr8 + nt, par * 32768 + (32 * ks + 4 * v2) * 256) for nt in range(8) for v2 in range(2)]
        x = ['ds_read_b128 %s, v%d offset:%d' % (vr(b + 4 * mt, 4), vXr1 if ks else vXr0, mt * 2048) for mt in range(8)]
        return w[:2] + x[:1] + w[2:] + x[1:]
    def ph(s, st, reads, dm, tail, extra=(), first=False):
        a = s.a; n = 64
        slots = {}
        def put(k, x): slots.setdefault(min(k, n - 1), []).extend([x] if isinstance(x, str) else x)
        for i, r in enumerate(reads): put(2 * i, r)
        for i, (m, d) in enumerate(dm): put(1 + 6 * i, m); put(3 + 6 * i, d)
        for i, x in enumerate(tail): put(50 + i, x)
        ex = list(extra)
        for i, x in enumerate(ex): put(1 + (i * 60 // max(len(ex), 1)), x)
        b = s.vF2 + 64 * st
        k = 0
        for mt in range(8):
            for nt in range(8):
                d = ar((mt * 8 + nt) * 4, 4)
                a('v_mfma_f32_16x16x32_bf16 %s, %s, %s, %s' % (d, vr(b + 32 + 4 * nt, 4), vr(b + 4 * mt, 4), '0' if first else d))
                for x in slots.get(k, []): a(x)
                k += 1
    def run(s, next_job, more, signal, pre_epi=None, prev_signal=None):
        a = s.a; t = s.tag
        def flat(L):
            for x in L:
                for y in ([x] if isinstance(x, str) else x): a(y)
        a('s_mov_b32 s%d, 65536' % sSt)
        a('s_mov_b32 s%d, %d' % (sRd, (-65536) & 0xffffffff))
        flat(next_job()); flat(s.xadv(True)); flat(s.wadv(True))
        a('s_barrier')
        for k in range(2):
            flat(s.xd()); flat(s.xadv(False)); flat(s.wd(k)); flat(s.wadv(False))
        for i in range(4): a('v_mov_b32 v%d, -1' % (vT + 4 + i))
        a('s_mov_b32 s%d, 0' % sCnt)
        a('s_waitcnt vmcnt(16)')
        a('s_barrier')
        if prev_signal: prev_signal()
        flat(s.rd2(0, 0, 0)[:12]); a('s_waitcnt lgkmcnt(3)'); flat(s.rd2(0, 0, 0)[12:])
        a('s_waitcnt vmcnt(0)')
        s.mark(10)
        flips = ['v_add_u32 v%d, s%d, v%d' % (r, sT3, r) for r in (vXr0, vXr1)]
        kv = ['buffer_store_dwordx4 %s, v%d, s[%d:%d], s%d offen sc1' % (vr(vT + 4, 4), vL16, S_WS, S_WS + 3, sKv), 's_add_u32 s%d, s%d, 0x20000' % (sKv, sKv)]
        def body(par, first=False, sw=False, post=None, extra=(), tailB=(), nA=0):
            a('s_waitcnt lgkmcnt(0)')
            s.ph(0, s.rd2(1, 1, par), s.xd(), s.xadv(sw) + flips, extra, first)
            a('s_waitcnt vmcnt(%d) lgkmcnt(0)' % (8 + nA))
            a('s_barrier')
            if post: post()
            s.ph(1, s.rd2(0, 0, 1 - par), s.wd(par), s.wadv(sw) + list(tailB))
        def post():
            l2 = a.newlabel('Lg2')
            a('s_cmp_eq_u32 s%d, 0' % sCnt)
            a('s_cbranch_scc1 %s' % l2)
            signal()
            a.label(l2)
        a.label('L_g2tile_%s' % t)
        a('s_mov_b32 s%d, s%d' % (sOut, sOutN))
        a('s_mov_b32 s%d, s%d' % (sSigC, sSigN))
        a('s_mov_b32 s%d, s%d' % (sKv, sKvN))
        body(0, first=True, nA=32)
        body(1, post=post, extra=next_job(), tailB=['s_mov_b32 s%d, 0' % sIt])
        a.label('L_g2loop_%s' % t)
        body(0, extra=kv, nA=1)
        body(1, extra=kv, nA=1, tailB=['s_add_u32 s%d, s%d, 1' % (sIt, sIt), ['s_cmp_eq_u32 s%d, 4' % sIt, 's_cselect_b32 s%d, s%d, s%d' % (sKv, sDmp, sKv)], 's_cmp_lt_u32 s%d, 5' % sIt])
        a('s_cbranch_scc1 L_g2loop_%s' % t)
        body(0); body(1, sw=True); body(0); body(1)
        if pre_epi: pre_epi()
        s.cmark(11)
        e0 = s.vF2 + 64
        for mt in range(8):
            for pr in range(4):
                r = e0 + 12 * ((4 * mt + pr) % 5)
                for i in range(8): a('v_accvgpr_read_b32 v%d, a%d' % (r + 4 + i, (mt * 8 + 2 * pr) * 4 + i))
                for i in range(4): a('v_cvt_pk_bf16_f32 v%d, v%d, v%d' % (r + i, r + 4 + 2 * i, r + 5 + 2 * i))
                a('buffer_store_dwordx4 %s, v%d, s[%d:%d], s%d offen offset:%d sc1' % (vr(r, 4), vL16, S_WS, S_WS + 3, sOut, pr * 1024))
            a('s_add_u32 s%d, s%d, 0x20000' % (sOut, sOut))
        s.cmark(12)
        a('s_mov_b32 s%d, 1' % sCnt)
        a('s_mov_b32 s%d, s%d' % (sSigD, sSigC))
        more()
        a('s_cbranch_scc1 L_g2tile_%s' % t)
        if prev_signal: return
        a('s_waitcnt vmcnt(0) lgkmcnt(0)')
        a('s_barrier')
        signal()
    def job(s, sRow, sCol):
        return ['s_lshl_b32 s%d, s%d, 19' % (sNX, sRow),
                's_and_b32 s%d, s%d, 15' % (sT0, sCol),
                's_lshl_b32 s%d, s%d, 9' % (sNW, sT0),
                's_lshr_b32 s%d, s%d, 4' % (sT1, sCol),
                ['s_cmp_eq_u32 s%d, 1' % sT1, 's_cselect_b64 s[%d:%d], s[%d:%d], s[%d:%d]' % (sNP, sNP + 1, S_WV, S_WV + 1, S_WK, S_WK + 1)],
                ['s_cmp_eq_u32 s%d, 2' % sT1, 's_cselect_b64 s[%d:%d], s[%d:%d], s[%d:%d]' % (sNP, sNP + 1, S_WQ, S_WQ + 1, sNP, sNP + 1), 's_cselect_b32 s%d, s%d, s%d' % (sKvN, sDmp, sKvm)],
                's_lshl_b32 s%d, s%d, 24' % (sOutN, sT1),
                's_lshl_b32 s%d, s%d, 11' % (sT1, sT1),
                's_add_u32 s%d, s%d, s%d' % (sKvN, sKvN, sT1),
                's_lshl_b32 s%d, s%d, 1' % (sT0, sT0),
                's_lshr_b32 s%d, s%d, 1' % (sT1, sW),
                's_add_u32 s%d, s%d, s%d' % (sT0, sT0, sT1),
                's_lshl_b32 s%d, s%d, 12' % (sT0, sT0),
                's_add_u32 s%d, s%d, s%d' % (sOutN, sOutN, sT0),
                's_add_u32 s%d, s%d, s%d' % (sKvN, sKvN, sT0),
                's_lshl_b32 s%d, s%d, 20' % (sT0, sRow),
                's_add_u32 s%d, s%d, s%d' % (sKvN, sKvN, sT0),
                's_and_b32 s%d, s%d, 1' % (sT1, sW),
                's_lshl_b32 s%d, s%d, 10' % (sT0, sT1),
                's_add_u32 s%d, s%d, s%d' % (sKvN, sKvN, sT0),
                's_lshl_b32 s%d, s%d, 1' % (sT0, sRow),
                's_add_u32 s%d, s%d, s%d' % (sT0, sT0, sT1),
                's_lshl_b32 s%d, s%d, 20' % (sT0, sT0),
                's_add_u32 s%d, s%d, s%d' % (sOutN, sOutN, sT0)]

class G3(G1):
    NS = 4
    SPI = 2
    NT = ''
    vF3, vSt3, vAc = 32, 96, 128
    XL = 131072 - 32768
    def __init__(s, a, tag):
        G1.__init__(s, a, 4, tag)
        s.NS = 4
    def mark(s, i): pass
    def setup(s):
        a = s.a
        G1.setup(s)
        a('s_and_b32 s%d, s%d, 1' % (sT0, sW))
        a('s_mul_i32 s%d, s%d, %d' % (sT0, sT0, 4 * 2048))
        for r in (vXr0, vXr1): a('v_subrev_u32 v%d, s%d, v%d' % (r, sT0, r))
        a('s_sub_u32 s%d, s%d, %d' % (sWl, sWl, s.XB))
        s.bits(vT, [(2, 3, 0)])
        a('s_lshl_b32 s%d, s%d, 1' % (sT0, sW))
        a('v_xor_b32 v%d, s%d, v%d' % (vT, sT0, vT))
        s.bits(vT + 2, [(4, 2, 11), (2, 2, 8), (0, 2, 3)])
        for nt in range(2):
            a('v_xor_b32 v%d, %d, v%d' % (vT + 3, nt, vT))
            a('v_lshl_add_u32 v%d, v%d, 5, v%d' % (vWr + nt, vT + 3, vT + 2))
            a('v_add_u32 v%d, 0x10000, v%d' % (vWr + 2 + nt, vWr + nt))
        for r in (vXr0, vXr1): a('v_add_u32 v%d, 0x20000, v%d' % (r, r))
        for i in range(4): a('v_mov_b32 v%d, -1' % (vT + 4 + i))
    def xd(s): return [('s_add_u32 m0, s%d, %d' % (sXm, i * 1024), 'buffer_load_dwordx4 v%d, s[%d:%d], s%d offen lds' % (vXs + i, S_X, S_X + 3, sXo)) for i in range(4)]
    @property
    def LA(s): return 6 if s.NS == 8 else s.NS - 1
    def slot(s, k): return 163840 - s.NS * 16384 + ((k + s.NS - 2) % s.NS) * 16384
    def flat(s, L):
        for x in L:
            for y in ([x] if isinstance(x, str) else x): s.a(y)
    def xstage(s, k, sw=False):
        return ['s_add_u32 s%d, s%d, %d' % (sXm, sXl, s.slot(k))], s.xd(), ['s_mov_b32 s%d, s%d' % (sXo, sNX) if sw else 's_add_u32 s%d, s%d, 128' % (sXo, sXo)]
    def loadw(s, after_issue=None, after_first=None, late=None):
        a = s.a
        def dma(q):
            for i in range(16):
                a('s_add_u32 m0, s%d, %d' % (sWl, (q % 2) * 65536 + i * 4096))
                a('buffer_load_dwordx4 v%d, s[%d:%d], s%d offen%s lds' % (vWs + i % 4, S_WC, S_WC + 3, sWo, s.NT))
                if i % 4 == 3: a('s_add_u32 s%d, s%d, 0x80000' % (sWo, sWo))
        a('s_barrier')
        dma(0); s.mid_issue(); dma(1)
        nx = after_issue() if after_issue else 0
        for q in range(4):
            a('s_waitcnt vmcnt(%d)' % (16 + nx if q == 0 else 24 if q == 1 else 24 + nl if q == 2 else nl))
            if q == 0 and after_first: after_first()
            a('s_barrier')
            for k in range(8):
                for nt in range(2):
                    for v2 in range(2):
                        a('ds_read_b64_tr_b16 %s, v%d offset:%d' % (ar(((q * 8 + k) * 2 + nt) * 4 + 2 * v2, 2), vWr + 2 * (q % 2) + nt, (32 * k + 4 * v2) * 256))
                a('s_waitcnt lgkmcnt(8)')
            a('s_waitcnt lgkmcnt(0)')
            a('s_barrier')
            if q < 2: dma(q + 2)
            if q == 1: nl = late() if late else 0
            if q == 0:
                for k in range(2):
                    for p in s.xstage(k): s.flat(p)
        for k in range(2, s.LA):
            for p in s.xstage(k): s.flat(p)
    def rdx(s, st, ks): return ['ds_read_b128 %s, v%d offset:%d' % (vr(s.vF3 + 32 * st + 4 * mt, 4), vXr1 if ks else vXr0, mt * 2048) for mt in range(8)]
    def tiles(s, next_tile, more, signal, first_now, pre_sig=None):
        a = s.a; t = s.tag
        def ph(st, kk, fill, first):
            slots = {}
            for i, x in enumerate(fill): slots.setdefault(i * 15 // max(len(fill), 15), []).extend([x] if isinstance(x, str) else x)
            k = 0
            for mt in range(8):
                for nt in range(2):
                    d = vr(s.vAc + (mt * 2 + nt) * 4, 4)
                    a('v_mfma_f32_16x16x32_bf16 %s, %s, %s, %s' % (d, ar((kk * 2 + nt) * 4, 4), vr(s.vF3 + 32 * st + 4 * mt, 4), '0' if first else d))
                    for x in slots.get(k, []): a(x)
                    k += 1
        def mix(*Ls):
            out = []
            for i in range(max(len(L) for L in Ls)):
                for L in Ls:
                    if i < len(L): out.append(L[i])
            return out
        st1 = lambda mt: ['buffer_store_dwordx4 %s, v%d, s[%d:%d], s%d offen sc1' % (vr(s.vSt3 + 4 * mt, 4), vL16, S_WS, S_WS + 3, sOutP), 's_add_u32 s%d, s%d, 0x20000' % (sOutP, sOutP)]
        kv = ['buffer_store_dwordx4 %s, v%d, s[%d:%d], s%d offen sc1' % (vr(vT + 4, 4), vL16, S_WS, S_WS + 3, sKv), 's_add_u32 s%d, s%d, 0x40000' % (sKv, sKv)]
        cv = lambda k: ['v_cvt_pk_bf16_f32 v%d, v%d, v%d' % (s.vSt3 + 2 * k + i, s.vAc + 4 * k + 2 * i, s.vAc + 4 * k + 2 * i + 1) for i in range(2)]
        s.flat(s.rdx(0, 0))
        a('s_mov_b32 s%d, 0x%x' % (sOutP, WS_DUMP))
        a('s_mov_b32 s%d, 0x%x' % (sSigD, WS_DUMP))
        a.label('L_g3_%s' % t)
        a('s_mov_b32 s%d, s%d' % (sOut, sOutN))
        a('s_mov_b32 s%d, s%d' % (sSigC, sSigN))
        a('s_mov_b32 s%d, s%d' % (sKv, sKvN))
        LA = s.LA
        B2 = s.NS == 8
        def log(i):
            ex = ['e'] * (s.SPI if 0 <= i < 8 // s.SPI else 1 if i in (8, 9) else 0)
            return ([('x', i + LA)] * 2 + ex, [('x', i + LA)] * 2) if B2 else ([('x', i + LA)] * 4 + ex, [])
        for i in range(16):
            pre, dm, adv = s.xstage(i + LA, sw=(i == 15 - LA))
            dml = [x for p in dm for x in p]
            d = (s.slot(i + 1) - s.slot(i)) & 0xffffffff
            ex = sum((st1(s.SPI * i + k) for k in range(s.SPI)), []) if i < 8 // s.SPI else kv if i in (8, 9) else []
            fl = ['v_add_u32 v%d, 0x%x, v%d' % (r, d, r) for r in (vXr0, vXr1)]
            a('s_waitcnt lgkmcnt(0)')
            if B2: ph(0, 2 * i, mix(s.rdx(1, 1), pre + dml[:2] + [[]] * 2 + dml[2:4]) + ex + fl, i == 0)
            else: ph(0, 2 * i, mix(s.rdx(1, 1), pre + dml) + adv + ex + fl, i == 0)
            if B2 and i % 2 == 0: a('s_waitcnt lgkmcnt(0)')
            else:
                seq = sum((log(j)[0] + log(j)[1] for j in range(i - 8, i)), []) + log(i)[0]
                need = ('x', i + 2 if B2 else i + 1)
                a('s_waitcnt vmcnt(%d) lgkmcnt(0)' % (len(seq) - 1 - max(k for k, t_ in enumerate(seq) if t_ == need)))
                a('s_barrier')
            if i == (13 if B2 else 8 // s.SPI - 1 + LA): signal()
            fill = s.rdx(0, 0)
            if i == 15: fill = fill[:4] + [[fill[4 + k]] + cv(k) if k < 4 else cv(k) for k in range(11)]
            if B2:
                fill = [[x] if isinstance(x, str) else list(x) for x in fill] + [[] for _ in range(15 - len(fill))]
                for k, g in zip((2, 3, 8, 9, 11), dml[4:] + adv): fill[k].append(g)
            if i == 1: fill = mix(fill, next_tile())
            ph(1, 2 * i + 1, fill, False)
        for k in range(11, 16): s.flat(cv(k))
        a('s_mov_b32 s%d, s%d' % (sSigD, sSigC))
        a('s_mov_b32 s%d, s%d' % (sOutP, sOut))
        l1 = a.newlabel('Lg3')
        more()
        if not first_now:
            a('s_cbranch_scc1 L_g3_%s' % t)
            a('s_waitcnt vmcnt(0) lgkmcnt(0)')
            return
        a('s_cbranch_scc0 L_g3e_%s' % t)
        first_now()
        a('s_cbranch_scc0 L_g3_%s' % t)
        if pre_sig: pre_sig[0]()
        for mt in range(8): s.flat(st1(mt))
        a('s_waitcnt vmcnt(0)')
        a('s_barrier')
        if pre_sig: pre_sig[1]()
        signal()
        a('s_barrier')
        if pre_sig: pre_sig[2]()
        a('s_mov_b32 s%d, 0x%x' % (sOutP, WS_DUMP))
        a('s_mov_b32 s%d, 0x%x' % (sSigD, WS_DUMP))
        a('s_branch L_g3_%s' % t)
        a.label('L_g3e_%s' % t)
        a('s_waitcnt vmcnt(0) lgkmcnt(0)')
    def short(s, next_tile, more, signal, pre):
        a = s.a; LA = s.LA
        def ph(st, kk, fill, first):
            k = 0
            for mt in range(4):
                for nt in range(2):
                    d = vr(s.vAc + (mt * 2 + nt) * 4, 4)
                    a('v_mfma_f32_16x16x32_bf16 %s, %s, %s, %s' % (d, ar((kk * 2 + nt) * 4, 4), vr(s.vF3 + 32 * st + 4 * mt, 4), '0' if first else d))
                    s.flat(fill[k * len(fill) // 8:(k + 1) * len(fill) // 8])
                    k += 1
        s.flat(s.rdx(0, 0))
        a.label('L_g3s')
        a('buffer_store_dwordx4 %s, v%d, s[%d:%d], s%d offen sc1' % (vr(vT + 4, 4), vL16, S_WS, S_WS + 3, sKv))
        s.flat(next_tile())
        for i in range(16):
            pre_, dm, adv = s.xstage(i + LA, sw=(i == 15 - LA))
            d = (s.slot(i + 1) - s.slot(i)) & 0xffffffff
            a('s_waitcnt lgkmcnt(0)')
            ph(0, 2 * i, s.rdx(1, 1)[:4] + pre_ + [x for p in dm for x in p] + adv + ['v_add_u32 v%d, 0x%x, v%d' % (r, d, r) for r in (vXr0, vXr1)], i == 0)
            a('s_waitcnt vmcnt(%d) lgkmcnt(0)' % (4 * (LA - 1)))
            a('s_barrier')
            ph(1, 2 * i + 1, s.rdx(0, 0)[:4] + [[]] * 4, False)
        pre()
        for mt in range(4):
            for k in range(4): a('v_cvt_pk_bf16_f32 v%d, v%d, v%d' % (s.vSt3 + 4 * mt + k, s.vAc + 8 * mt + 2 * k, s.vAc + 8 * mt + 2 * k + 1))
            a('buffer_store_dwordx4 %s, v%d, s[%d:%d], s%d offen sc1' % (vr(s.vSt3 + 4 * mt, 4), vL16, S_WS, S_WS + 3, sOut))
            a('s_add_u32 s%d, s%d, 0x20000' % (sOut, sOut))
        a('s_waitcnt vmcnt(0)')
        a('s_barrier')
        signal()
        more()
        a('s_cbranch_scc1 L_g3s')
    def flush(s):
        for mt in range(8):
            s.a('buffer_store_dwordx4 %s, v%d, s[%d:%d], s%d offen sc1' % (vr(s.vSt3 + 4 * mt, 4), vL16, S_WS, S_WS + 3, sOutP))
            s.a('s_add_u32 s%d, s%d, 0x20000' % (sOutP, sOutP))
```

```python
import sys, json
from ag import *
from common import *
import gen_chain12 as gc
import gen_g1 as g1
import gen_ao as ao

NAME = 'concat_heads__ssm_conv_h3__memory_aug_recurrent_mem_tr__prompt'
LDS = 163840
WS_KVC = WS_CTR + 262144
sKVC = 85

sWave, sClaim = 100, 101
vClaim = 15
L_FLAG = 163840 - 16

def claim(a, st0, st1):
    a('s_lshr_b32 s%d, s2, 3' % st0)
    a('s_lshl_b32 s%d, 1, s%d' % (st0, st0))
    a('s_and_b32 s%d, s2, 7' % st1)
    a('s_lshl_b32 s%d, s%d, 2' % (st1, st1))
    a('v_mov_b32 v%d, s%d' % (vClaim, st0))
    a('s_mov_b64 exec, 1')
    a('buffer_atomic_or v%d, off, s[28:31], s%d offset:192 sc0 sc1' % (vClaim, st1))
    a('s_mov_b64 exec, -1')

def touch_code(a, target, sp, va, vd, nlines=64):
    l = a.newlabel('Lpc')
    return ['s_getpc_b64 s[%d:%d]\n%s:' % (sp, sp + 1, l), 'v_lshlrev_b32 v%d, 7, v0' % va, 'v_add_u32 v%d, %s-%s, v%d' % (va, target, l, va),
            'v_min_u32 v%d, L_code_end-%s-4, v%d' % (va, l, va), 'global_load_dword v%d, v%d, s[%d:%d]' % (vd, va, sp, sp + 1)]

def first_claim(a, st0, st1):
    lc = a.newlabel('Lcl')
    a('s_or_b32 s3, s%d, s%d' % (sWave, sClaim))
    a('s_cbranch_scc1 %s' % lc)
    claim(a, st0, st1)
    a.label(lc)

def verify_role(a, st0, st1, vt):
    l0, l1, l2, ok = [a.newlabel('Lvr') for _ in range(4)]
    a('s_cmp_lg_u32 s%d, 0' % sClaim)
    a('s_cbranch_scc1 %s' % ok)
    a('v_mov_b32 v%d, %d' % (vt, L_FLAG))
    a('s_cmp_eq_u32 s%d, 0' % sWave)
    a('s_cbranch_scc0 %s' % l2)
    a('s_mov_b32 s3, s2')
    a('s_mov_b32 vcc_hi, 600')
    a.label(l0)
    a('v_readfirstlane_b32 s%d, v%d' % (st1, vClaim))
    a('s_lshr_b32 s%d, s2, 3' % st0)
    a('s_bitcmp1_b32 s%d, s%d' % (st1, st0))
    a('s_cbranch_scc0 %s' % l1)
    a('s_cmp_eq_u32 s%d, -1' % st1)
    a('s_cselect_b32 s%d, 1, 8' % st0)
    a('s_add_u32 s2, s2, s%d' % st0)
    a('s_and_b32 s2, s2, 255')
    claim(a, st0, st1)
    a('s_waitcnt vmcnt(0)')
    a('s_sub_u32 vcc_hi, vcc_hi, 1')
    a('s_cbranch_scc0 %s' % l0)
    a('s_mov_b32 s2, 256')
    a.label(l1)
    a('v_mov_b32 v%d, s2' % (vt + 1))
    a('s_mov_b32 s2, s3')
    a('ds_write_b32 v%d, v%d' % (vt, vt + 1))
    a('s_waitcnt lgkmcnt(0)')
    a.label(l2)
    a('s_barrier')
    a('ds_read_b32 v%d, v%d' % (vt + 1, vt))
    a('s_mov_b32 s%d, 1' % sClaim)
    a('s_waitcnt lgkmcnt(0)')
    a('v_readfirstlane_b32 s%d, v%d' % (st0, vt + 1))
    a('s_cmp_eq_u32 s%d, s2' % st0)
    a('s_cbranch_scc1 %s' % ok)
    a('s_cmp_ge_u32 s%d, 256' % st0)
    a('s_cbranch_scc1 L_exit')
    a('s_and_b32 s2, s%d, 255' % st0)
    a('s_waitcnt vmcnt(0)')
    a('s_barrier')
    a('s_branch L_restart')
    a.label(ok)

class Chain(gc.Chain):
    def claim(s): first_claim(s.a, gc.sT0, gc.sT1)
    def get_wave(s): s.a('s_mov_b32 s%d, s%d' % (gc.sW, sWave))
    def verify(s):
        a = s.a
        verify_role(a, gc.sT0, gc.sT1, gc.vT)
        a('s_lshl_b32 s%d, s%d, 10' % (sKVC, gc.sG))
        a('s_add_u32 s%d, s%d, 0x%x' % (sKVC, sKVC, WS_KVC))
        a('s_or_b32 s%d, s%d, s%d' % (gc.sT2, gc.sJ, gc.sW))
        a('s_cselect_b32 s%d, 0x%x, s%d' % (gc.sT0, WS_DUMP, sKVC))
        a('v_mov_b32 v%d, 0' % (gc.vT + 1))
        a('buffer_store_dword v%d, v%d, s[4:7], s%d offen sc1' % (gc.vT + 1, gc.vL16, gc.sT0))
    def counted(s):
        a = s.a
        l = a.newlabel('Lct')
        a('s_or_b32 s%d, s%d, s%d' % (gc.sT0, gc.sJ, gc.sW))
        a('s_cbranch_scc1 %s' % l)
        a('v_mov_b32 v%d, 1' % (gc.vT + 5))
        a('s_mov_b64 exec, 1')
        a('buffer_atomic_add v%d, off, s[28:31], 0 offset:128 sc1' % (gc.vT + 5))
        a('s_mov_b64 exec, -1')
        a.label(l)
    def poll_ctr(s, soff):
        a = s.a
        l, ok = a.newlabel('Lkv'), a.newlabel('Lkv')
        a.label(l)
        a('buffer_load_dword v%d, off, s[4:7], s%d sc1' % (gc.vT, soff))
        a('s_waitcnt vmcnt(0)')
        a('v_readfirstlane_b32 s%d, v%d' % (gc.sT1, gc.vT))
        a('s_cmp_eq_u32 s%d, 8' % gc.sT1)
        a('s_cbranch_scc1 %s' % ok)
        a('s_sleep 4')
        s.tmo(l)
        a.label(ok)
    def kv_wait_init(s):
        a = s.a
        s.mark(3)
        l, ok, sk = a.newlabel('Lkv'), a.newlabel('Lkv'), a.newlabel('Lkv')
        a('s_cmp_eq_u32 s%d, 1' % gc.sW)
        a('s_cbranch_scc0 %s' % sk)
        a.label(l)
        a('buffer_load_dword v%d, off, s[28:31], 0 offset:128 sc1' % gc.vT)
        a('s_waitcnt vmcnt(0)')
        a('v_readfirstlane_b32 s%d, v%d' % (gc.sT1, gc.vT))
        a('s_cmp_eq_u32 s%d, 16' % gc.sT1)
        a('s_cbranch_scc1 %s' % ok)
        a('s_sleep 4')
        s.tmo(l)
        a.label(ok)
        s.poll_ctr(sKVC)
        a.label(sk)
        a('s_barrier')
        s.mark(4)
    def kv_probe(s):
        a = s.a
        a('s_add_u32 s%d, s%d, 2' % (gc.sE, gc.sStep))
        a('s_min_u32 s%d, s%d, 63' % (gc.sE, gc.sE))
        a('s_and_b32 s%d, s%d, 60' % (gc.sE, gc.sE))
        if not s.opt.get('cfull'): a('s_cmp_lg_u32 s%d, 53\ns_cselect_b32 s%d, s%d, 2' % (gc.sStep, gc.sE, gc.sE))
        a('s_lshl4_add_u32 s%d, s%d, s%d' % (gc.sE, gc.sE, sKVC))
        a('buffer_load_dword v%d, off, s[4:7], s%d sc1' % (gc.vT + 1, gc.sE))
    def last_S(s, tag):
        if s.opt.get('cfull') or s.opt.get('swap'): return
        a = s.a
        L = []
        s.cv.a = L.append
        s.cv.hload(0, 20); s.cv.kvload(0, 20)
        s.cv.a = a
        idx = [k for k, x in enumerate(L) if 'buffer_load' in x]
        NP = 8
        cuts = [0] + [idx[(k + 1) * len(idx) // NP - 1] + 1 for k in range(NP - 1)] + [len(L)]
        e = a.newlabel('Lls')
        a('s_cmp_lt_u32 s%d, %d' % (gc.sStep, 63 - NP))
        a('s_cbranch_scc1 %s' % e)
        for k in range(NP):
            l = a.newlabel('Lls')
            a('s_cmp_eq_u32 s%d, %d' % (gc.sStep, 63 - NP + k))
            a('s_cbranch_scc0 %s' % l)
            for x in L[cuts[k]:cuts[k + 1]]: a(x)
            if k == 0 and s.opt.get('tc2', True):
                l2 = a.newlabel('Lls')
                a('s_or_b32 s24, s%d, s%d' % (gc.sJ, gc.sW))
                a('s_cbranch_scc1 %s' % l2)
                for x in touch_code(a, 'L_chain_done', 24, 187, 186): a(x)
                a.label(l2)
            a.label(l)
        a.label(e)
    def pre_loop(s):
        a = s.a
        if s.opt.get('cfull'): return
        a('s_load_dwordx2 s[8:9], s[0:1], %d' % KA['A_q'])
        a('s_load_dwordx2 s[12:13], s[0:1], %d' % KA['A_ssmk'])
        a('s_load_dwordx2 s[16:17], s[0:1], %d' % KA['A_ssmD'])
        a('s_mov_b32 s10, 0x%x' % (4 * MB)); a('s_mov_b32 s14, 0x%x' % (4 * MB))
        a('s_lshl_b32 s20, s%d, 5' % gc.sX)
        a('s_add_u32 s20, s20, s%d' % gc.sC)
        a('s_lshl_b32 s21, s20, 4')
        a('s_waitcnt lgkmcnt(0)')
        a('s_load_dwordx4 s[68:71], s[16:17], s21')
        a('s_waitcnt lgkmcnt(0)')
    def kv_check(s, tag):
        a = s.a
        a('s_waitcnt vmcnt(%d)' % s.nlate)
        a('v_cmp_ne_u32 vcc, 8, v%d' % (gc.vT + 1))
        a('s_cbranch_vccnz L_kvs_%s' % tag)
        a.label('L_kvo_%s' % tag)
    def kv_slow(s, tag):
        s.a.label('L_kvs_%s' % tag)
        s.poll_ctr(gc.sE)
        s.a('s_branch L_kvo_%s' % tag)

def mark(a, i, opt, v=30):
    if not opt.get('marks'): return
    a('s_memrealtime vcc')
    a('s_waitcnt lgkmcnt(0)')
    a('v_mov_b32 v%d, vcc_lo' % v)
    a('s_lshl_b32 vcc_lo, s2, 6')
    a('s_add_u32 vcc_lo, vcc_lo, 0x%x' % (WS_PROF + 8 * MB))
    a('buffer_store_dword v%d, off, s[4:7], vcc_lo offset:%d' % (v, 4 * i))
    if i < 6:
        a('s_memtime vcc')
        a('s_waitcnt lgkmcnt(0)')
        a('v_mov_b32 v%d, vcc_lo' % v)
        a('s_lshl_b32 vcc_lo, s2, 6')
        a('s_add_u32 vcc_lo, vcc_lo, 0x%x' % (WS_PROF + 9 * MB))
        a('buffer_store_dword v%d, off, s[4:7], vcc_lo offset:%d' % (v, 4 * i))

def build(opt):
    a = Asm()
    ptrs = [(4, 'ws', WS_BYTES), (8, 'Wq', 8 * MB), (12, 'Wk', 8 * MB), (16, 'Wv', 8 * MB), (20, 'Wo', 8 * MB), (24, 'B_mem0', 16384), (28, 'dbg', 256)]
    side = [(g1.S_X, 'B_x', 4 * MB), (g1.S_WC, 'Wk', 8 * MB), (ao.S_OUT, 'out', 8 * MB), (ao.S_AQ, 'A_q', 4 * MB), (ao.S_AK, 'A_k', 4 * MB), (ao.S_AV, 'A_v', 4 * MB), (ao.S_AH, 'A_ssmk', 4 * MB)]
    a('s_cmp_ge_u32 s2, 256')
    a('s_cbranch_scc1 L_exit')
    a('v_lshrrev_b32 v1, 6, v0')
    a('v_readfirstlane_b32 s%d, v1' % 100)
    a('v_and_b32 v0, 63, v0')
    a('s_mov_b32 s%d, 0' % 101)
    a('s_getreg_b32 s3, hwreg(HW_REG_XCC_ID)')
    a('s_and_b32 s3, s3, %d' % opt.get('fakex', 7))
    if opt.get('fakeo'): a('s_or_b32 s3, s3, %d' % opt['fakeo'])
    a('s_and_b32 s2, s2, 248')
    a('s_or_b32 s2, s2, s3')
    a.label('L_restart')
    for r, k, n in ptrs + side: a('s_load_dwordx2 s[%d:%d], s[0:1], %d' % (r, r + 1, KA[k]))
    for r, k, n in ptrs + side:
        a('s_mov_b32 s%d, 0x%x' % (r + 2, n)); a('s_mov_b32 s%d, 0x20000' % (r + 3))
    a('s_waitcnt lgkmcnt(0)')
    if opt.get('touchc', True):
        lt = a.newlabel('Ltc')
        a('s_cmp_eq_u32 s%d, 3' % sWave)
        a('s_cbranch_scc0 %s' % lt)
        a('s_getpc_b64 s[40:41]')
        a.label('L_pc')
        a('s_lshr_b32 s42, s2, 3')
        a('s_lshl_b32 s42, s42, 12')
        a('v_lshlrev_b32 v1, 6, v0')
        a('v_add_u32 v1, s42, v1')
        a('v_min_u32 v1, L_code_end-L_pc-4, v1')
        a('global_load_dword v%d, v1, s[40:41]' % vClaim)
        a.label(lt)
    mark(a, 0, opt)
    if opt.get('empty'): a('s_endpgm')
    NX = opt.get('NX', 4)
    a('s_and_b32 s3, s2, 7')
    if NX == 4: a('s_cmp_ge_u32 s3, 4')
    else: a('s_cmp_ge_u32 s2, 128')
    a('s_cbranch_scc1 L_side')
    copt = dict(b3pos=21, b4=1, hpre=8, npre=34, warm=2, endwait=False, dn=False, queue=1, pring=16, tc2=opt.get('tc2', True), swap=opt.get('swap'), cfull=opt.get('cfull', False), tot=False, NX=NX)
    copt.update(opt.get('chain', {}))
    ch = Chain(a, opt=copt)
    ch.mark = lambda i: mark(a, i, opt, 255)
    c2 = ao.Conv2(a); c2.mark = lambda i: mark(a, i + 2, opt)
    c2.S_AQ = 8; c2.S_AH = 12; c2.sDv = 68
    c2.RM = dict(vKV=144, hw0=96, vC=32, vQ=40, vK=56, vE=192)
    c2.ld = dict(sW=gc.sW, s1=22, s2=23, va=188, vb=189, tmp=190)
    c2.nnew = 63; c2.at_bar = lambda: a('s_waitcnt vmcnt(0)'); c2.fake = opt.get('fake', 0)
    if opt.get('ntout'): c2.NTO = ' nt'
    if opt.get('ntq'): c2.NTQ = ' nt'
    ch.cv = c2
    if opt.get('only'): a('s_endpgm')
    ch.emit()
    mark(a, 2, opt)
    if True:
        a('s_mov_b32 s%d, s%d' % (g1.sW, sWave))
        if opt.get('swap'):
            c2.nnew = 0
            c2.hload(1, 20); c2.kvload(1, 20)
            c2.core(None, 1, 20, True)
        elif not opt.get('cfull', False):
            l = a.newlabel('Lhh')
            a('s_cmp_lt_u32 s%d, 2' % sWave)
            a('s_cbranch_scc1 %s' % l)
            c2.hload(0, 20)
            a.label(l)
            c2.core(None, 0, 20, True)
        def wait_p1(sampled):
            l, ok = a.newlabel('Lwp'), a.newlabel('Lwp')
            a.label(l)
            a('v_readfirstlane_b32 s%d, v20' % g1.sT1)
            a('s_cmp_eq_u32 s%d, 8' % g1.sT1)
            a('s_cbranch_scc1 %s' % ok)
            a('s_sleep 8')
            a('buffer_load_dword v20, off, s[4:7], s47 sc1')
            a('s_waitcnt vmcnt(0)')
            a('s_sub_u32 s%d, s%d, 1' % (ao.sTmo, ao.sTmo))
            a('s_cbranch_scc0 %s' % l)
            a('s_endpgm')
            a.label(ok)
        mark(a, 9, opt)
        if opt.get('marks'): a('s_waitcnt vmcnt(0)')
        mark(a, 11, opt)
    a('s_endpgm')
    a.label('L_side')
    sW, sT0, sT1 = g1.sW, g1.sT0, g1.sT1
    sTeam, sMem, sTmo = ao.sTeam, ao.sMem, ao.sTmo
    if NX == 4:
        a('s_sub_u32 s%d, s3, 4' % sTeam)
        a('s_lshr_b32 s%d, s2, 3' % sMem)
    else:
        a('s_lshr_b32 s%d, s3, 1' % sTeam)
        a('s_bfe_u32 s%d, s2, 0x40003' % sMem)
        a('s_and_b32 s3, s3, 1')
        a('s_lshl_b32 s3, s3, 4')
        a('s_add_u32 s%d, s%d, s3' % (sMem, sMem))
    a('s_mov_b32 s%d, 400000' % sTmo)
    a('s_mov_b32 s%d, s%d' % (sW, sWave))
    def one_lane_add(val, soff, off, srd=28):
        l = a.newlabel('Lone')
        a('s_cmp_eq_u32 s%d, 0' % sW)
        a('s_cbranch_scc0 %s' % l)
        a('v_mov_b32 v20, %s' % val)
        a('s_mov_b64 exec, 1')
        a('buffer_atomic_add v20, off, s[%d:%d], %s offset:%d sc1' % (srd, srd + 3, soff, off))
        a('s_mov_b64 exec, -1')
        a.label(l)
    sCol = 62
    sGrp = 63
    a('s_lshr_b32 s%d, s%d, 1' % (sCol, sMem))
    a('s_lshl_b32 s%d, s%d, 4' % (sT0, sTeam))
    a('s_add_u32 s%d, s%d, s%d' % (sCol, sCol, sT0))
    a('s_bfe_u32 s%d, s%d, 0x40001' % (sGrp, sCol))
    a('s_lshl_b32 s%d, s%d, 10' % (sGrp, sGrp))
    a('s_add_u32 s%d, s%d, 0x%x' % (sGrp, sGrp, WS_KVC))
    def wait_dbg(off, target, w0only):
        l, ok = a.newlabel('Lwg'), a.newlabel('Lwg')
        if w0only:
            a('s_cmp_eq_u32 s%d, 0' % sW)
            a('s_cbranch_scc0 %s' % ok)
        a.label(l)
        a('buffer_load_dword v20, off, s[28:31], 0 offset:%d sc1' % off)
        a('s_waitcnt vmcnt(0)')
        a('v_readfirstlane_b32 s%d, v20' % sT0)
        a('s_cmp_eq_u32 s%d, %d' % (sT0, target))
        a('s_cbranch_scc1 %s' % ok)
        a('s_sleep 16')
        a('s_sub_u32 s%d, s%d, 1' % (sTmo, sTmo))
        a('s_cbranch_scc0 %s' % l)
        a('s_branch L_side_fail')
        a.label(ok)
    sJob = g1.sJob
    if opt.get('x0first'):
        a('s_lshl2_add_u32 s%d, s%d, s%d' % (sT0, sMem, sW))
        a('s_lshl_b32 s%d, s%d, %d' % (sT0, sT0, 11 + opt['x0first']))
        a('v_lshlrev_b32 v29, %d, v0' % (5 + opt['x0first']))
        a('buffer_load_dword v30, v29, s[32:35], s%d offen' % sT0)
    g3 = g1.G3(a, 'a')
    cvp = ao.Conv2(a)
    cvp.fake = opt.get('fake', 0)
    if opt.get('ntout'): cvp.NTO = ' nt'
    if opt.get('ntq'): cvp.NTQ = ' nt'
    if opt.get('ntw'): g3.NT = ' nt'
    if opt.get('ntp', True): cvp.NT = ' nt'
    g3.NS = opt.get('ns3', 4); g3.SPI = opt.get('spi', 2)
    g3.setup()
    sPh, sRow, sStep_, sBaseO, sBaseK, sLeft = 56, 57, 58, 60, 61, sJob
    def describe():
        return ['s_lshl_b32 s%d, s%d, 18' % (g1.sNX, sRow), 's_lshl_b32 s%d, s%d, 20' % (g1.sOutN, sRow), 's_add_u32 s%d, s%d, s%d' % (g1.sOutN, g1.sOutN, sBaseO),
                's_lshl_b32 s%d, s%d, 19' % (g1.sKvN, sRow), 's_add_u32 s%d, s%d, s%d' % (g1.sKvN, g1.sKvN, sBaseK),
                's_lshl_b32 s%d, s%d, 6' % (g1.sSigN, sRow), 's_add_u32 s%d, s%d, s%d' % (g1.sSigN, g1.sSigN, sGrp), 's_add_u32 s%d, s%d, s%d' % (sRow, sRow, sStep_)]
    def bases():
        a('s_and_b32 s%d, s%d, 31' % (sT0, sCol))
        a('s_lshl_b32 s%d, s%d, 8' % (g1.sWo, sT0))
        a('s_lshl_b32 s%d, s%d, 12' % (sT0, sT0))
        a('s_lshr_b32 s%d, s%d, 5' % (sT1, sCol))
        a('s_lshl_b32 s%d, s%d, 24' % (sBaseO, sT1))
        a('s_add_u32 s%d, s%d, s%d' % (sBaseO, sBaseO, sT0))
        a('s_lshl_b32 s%d, s%d, 11' % (sT1, sT1))
        a('s_add_u32 s%d, s%d, s%d' % (sBaseK, sT0, sT1))
        a('s_lshl_b32 s%d, s%d, 10' % (sT0, sW))
        a('s_add_u32 s%d, s%d, s%d' % (sBaseO, sBaseO, sT0))
        a('s_and_b32 s%d, s%d, 1024' % (sT0, sT0))
        a('s_add_u32 s%d, s%d, s%d' % (sBaseK, sBaseK, sT0))
        a('s_lshr_b32 s%d, s%d, 1' % (sT0, sW))
        a('s_lshl_b32 s%d, s%d, 17' % (sT0, sT0))
        a('s_add_u32 s%d, s%d, s%d' % (sBaseK, sBaseK, sT0))
    a('s_cmp_ge_u32 s%d, 32' % sCol)
    a('s_cselect_b64 s[36:37], s[16:17], s[12:13]')
    bases()
    a('s_add_u32 s%d, s%d, 0x%x' % (sBaseK, sBaseK, WS_KVM))
    a('s_and_b32 s%d, s%d, 1' % (sRow, sMem))
    a('s_mov_b32 s%d, 2' % sStep_)
    a('s_mov_b32 s%d, 0' % sPh)
    a('s_mov_b32 s%d, 0x%x' % (g1.sSigD, WS_DUMP))
    SH = opt.get('short', True)
    if SH:
        a('s_lshl_b32 s%d, s%d, 17' % (g1.sXo, sRow))
        a('s_lshr_b32 s%d, s%d, 1' % (sT0, sW))
        a('s_lshl_b32 s%d, s%d, 22' % (sT0, sT0))
        a('s_add_u32 s%d, s%d, s%d' % (g1.sXo, g1.sXo, sT0))
        a('s_add_u32 s%d, s%d, 0x40000' % (g1.sSigC, g1.sXo))
        a('s_lshl_b32 s%d, s%d, 19' % (g1.sOut, sRow))
        a('s_add_u32 s%d, s%d, s%d' % (g1.sOut, g1.sOut, sBaseO))
        a('s_lshl_b32 s%d, s%d, 18' % (g1.sKv, sRow))
        a('s_add_u32 s%d, s%d, s%d' % (g1.sKv, g1.sKv, sBaseK))
        a('s_add_u32 s%d, s%d, 2' % (sRow, sRow))
        for x in describe(): a(x)
        a('s_mov_b32 s%d, s%d' % (g1.sCnt, g1.sNX))
        a('s_branch L_phase0')
    a.label('L_phase')
    for x in describe(): a(x)
    a('s_mov_b32 s%d, s%d' % (g1.sXo, g1.sNX))
    a.label('L_phase0')
    sig = lambda: one_lane_add(2, 's%d' % g1.sSigD, 0, 4)
    def zero_ctr():
        a('v_mov_b32 v28, 0')
        a('s_and_b32 s%d, s%d, 15' % (sT0, sMem))
        a('s_lshl_b32 s%d, s%d, 2' % (sT0, sT0))
        a('s_add_u32 s%d, s%d, s%d' % (sT0, sT0, sTeam))
        a('s_lshl_b32 s%d, s%d, 11' % (sT0, sT0))
        a('s_add_u32 s%d, s%d, 0x%x' % (sT0, sT0, WS_CTR))
        a('v_lshlrev_b32 v29, 5, v0')
        a('buffer_store_dword v28, v29, s[4:7], s%d offen sc1' % sT0)
        a('s_lshl2_add_u32 s%d, s%d, s%d' % (sT0, sMem, sW))
        a('s_lshl_b32 s%d, s%d, 12' % (sT0, sT0))
        a('s_lshl_b32 s%d, s%d, 22' % (sT1, sPh))
        a('s_add_u32 s%d, s%d, s%d' % (sT0, sT0, sT1))
        a('v_lshlrev_b32 v29, 6, v0')
        a('buffer_load_dword v23, v29, s[32:35], s%d offen' % sT0)
        l = a.newlabel('Lp1')
        a('s_cmp_eq_u32 s%d, 0' % sPh)
        a('s_cbranch_scc1 %s' % l)
        a('s_waitcnt vmcnt(34)')
        cvp.p1_compute()
        mark(a, 6, opt)
        a.label(l)
        return 2
    def touch_x():
        if not opt.get('touchx', True): return 0
        a('s_lshl_b32 s%d, s%d, 5' % (sT0, sTeam))
        a('s_add_u32 s%d, s%d, s%d' % (sT0, sT0, sMem))
        a('s_lshl2_add_u32 s%d, s%d, s%d' % (sT0, sT0, sW))
        a('s_lshl_b32 s%d, s%d, 13' % (sT0, sT0))
        a('s_lshl_b32 s%d, s%d, 22' % (sT1, sPh))
        a('s_add_u32 s%d, s%d, s%d' % (sT0, sT0, sT1))
        a('v_lshlrev_b32 v29, 7, v0')
        a('buffer_load_dword v22, v29, s[32:35], s%d offen' % sT0)
        return 1
    g3.mid_issue = lambda: first_claim(a, sT0, sT1)
    g3.loadw(zero_ctr, lambda: verify_role(a, sT0, sT1, 28), None)
    sig()
    a('s_lshl_b32 s%d, s%d, 2' % (sT1, sTeam))
    a('s_lshr_b32 s%d, s%d, 3' % (sT0, sMem))
    a('s_add_u32 s%d, s%d, s%d' % (sT1, sT1, sT0))
    a('s_lshl_b32 s%d, s%d, 10' % (sT1, sT1))
    a('s_add_u32 s%d, s%d, 0x%x' % (sT1, sT1, WS_KVC + 32))
    a('s_cmp_eq_u32 s%d, 0' % sPh)
    a('s_cselect_b32 s%d, 0x%x, s%d' % (sT1, WS_DUMP, sT1))
    one_lane_add(1, 's%d' % sT1, 0, 4)
    def pmark(i, ph):
        if not opt.get('marks'): return
        l = a.newlabel('Lmk')
        a('s_cmp_eq_u32 s%d, %d' % (sPh, ph))
        a('s_cbranch_scc0 %s' % l)
        mark(a, i, opt)
        a.label(l)
    pmark(14, 0); pmark(10, 1)
    def chk0():
        ok = a.newlabel('Ls0')
        a('v_readfirstlane_b32 s%d, v21' % sT0)
        a('s_cmp_eq_u32 s%d, 16' % sT0)
        a('s_cbranch_scc1 %s' % ok)
        wait_dbg(128, 16, True)
        a.label(ok)
        mark(a, 15, opt)
    if SH:
        a('s_cmp_eq_u32 s%d, 1' % sPh)
        a('s_cbranch_scc1 L_noshort')
        a('s_mov_b32 s%d, s%d' % (g1.sSigD, sGrp))
        def sigs():
            l = a.newlabel('Lss')
            a('s_cmp_eq_u32 s%d, s%d' % (g1.sSigD, sGrp))
            a('s_cbranch_scc0 %s' % l)
            chk0()
            a.label(l)
            one_lane_add(1, 's%d' % g1.sSigD, 0, 4)
            a('s_add_u32 s%d, s%d, 0x80000' % (g1.sOut, g1.sOut))
            a('s_add_u32 s%d, s%d, 0x80000' % (g1.sKv, g1.sKv))
            a('s_add_u32 s%d, s%d, 64' % (g1.sSigD, g1.sSigD))
            l = a.newlabel('Lss')
            a('s_bitcmp1_b32 s%d, 6' % g1.sSigD)
            a('s_cbranch_scc0 %s' % l)
            a('s_barrier')
            touch_x()
            a.label(l)
        g3.short(lambda: ['s_mov_b32 s%d, s%d' % (g1.sNX, g1.sSigC), 's_mov_b32 s%d, s%d' % (g1.sSigC, g1.sCnt)], lambda: a('s_bitcmp1_b32 s%d, 6' % g1.sSigD), sigs,
                 lambda: a('buffer_load_dword v21, off, s[28:31], 0 offset:128 sc1'))
        a.label('L_noshort')
        g3.tiles(describe, lambda: a('s_cmp_lt_u32 s%d, 0x%x' % (g1.sNX, 4 * MB)), sig, None)
    else:
        g3.tiles(describe, lambda: a('s_cmp_lt_u32 s%d, 0x%x' % (g1.sNX, 4 * MB)), sig, lambda: a('s_cmp_lt_u32 s%d, 6' % sRow),
                 (lambda: (mark(a, 13, opt), a('buffer_load_dword v21, off, s[28:31], 0 offset:128 sc1')), chk0, touch_x))
    a('s_cmp_eq_u32 s%d, 1' % sPh)
    a('s_cbranch_scc1 L_phase_end')
    mark(a, 1, opt)
    g3.flush()
    a('s_load_dwordx2 s[24:25], s[0:1], %d' % KA['A_shift'])
    a('s_mov_b32 s26, 8192')
    a('s_waitcnt lgkmcnt(0)')
    cvp.p1_load(24)
    a('s_waitcnt vmcnt(28)')
    a('s_mov_b64 s[36:37], s[8:9]')
    a('s_lshr_b32 s%d, s%d, 2' % (sCol, sMem))
    a('s_lshl3_add_u32 s%d, s%d, s%d' % (sCol, sTeam, sCol))
    a('s_add_u32 s%d, s%d, 64' % (sCol, sCol))
    bases()
    a('s_mov_b32 s%d, 0x%x' % (sBaseK, WS_DUMP))
    a('s_mov_b32 s%d, 0x%x' % (sGrp, WS_DUMP))
    a('s_and_b32 s%d, s%d, 3' % (sRow, sMem))
    a('s_mov_b32 s%d, 4' % sStep_)
    a('s_mov_b32 s%d, 1' % sPh)
    a('s_branch L_phase')
    a.label('L_phase_end')
    g3.flush()
    if opt.get('tc3', True):
        l = a.newlabel('Lpc')
        a('s_getpc_b64 s[24:25]')
        a.label(l)
        a('s_lshl2_add_u32 s%d, s%d, s%d' % (sT0, sMem, sW))
        a('s_lshl_b32 s%d, s%d, 8' % (sT0, sT0))
        a('v_and_b32 v29, 1, v0')
        a('v_lshlrev_b32 v29, 7, v29')
        a('v_add_u32 v29, s%d, v29' % sT0)
        a('v_min_u32 v29, L_code_end-%s-4, v29' % l)
        a('global_load_dword v30, v29, s[24:25]')
    mark(a, 2, opt)
    A = ao.AO2(a) if opt.get('ao2', False) else ao.AO(a)
    a('s_lshl_b32 s52, s%d, 5' % sTeam)
    a('s_add_u32 s52, s52, s%d' % sMem)
    a('s_lshr_b32 s%d, s%d, 3' % (sT0, sMem))
    a('s_and_b32 s%d, s%d, 7' % (sMem, sMem))
    a('s_lshl3_add_u32 s%d, s%d, s%d' % (sMem, sTeam, sMem))
    a('s_mov_b32 s%d, s%d' % (sTeam, sT0))
    if opt.get('nto'): A.NT = ' nt'
    A.RING = opt.get('ring', 0)
    if opt.get('ntout'): A.NTO = ' nt'
    A.ids()
    a('s_lshr_b32 s47, s52, 3')
    a('s_lshl_b32 s47, s47, 10')
    a('s_add_u32 s47, s47, 0x%x' % (WS_KVC + 32))
    def done():
        wait_p1(True)
        one_lane_add(1, '0', 64)
    if opt.get('woc', False) and not opt.get('cfull', False):
        a('buffer_load_dword v20, off, s[4:7], s47 sc1')
        cvp.hload(1, 52)
        cvp.wo_setup(A.sKq, A.sCb)
        cvp.nnew = 6
        cvp.at_bar = lambda: one_lane_add(1, '0', 64)
        cvp.mark = lambda i: mark(a, {6: 8, 8: 9}[i], opt)
        cvp.core(lambda: (a('s_waitcnt vmcnt(16)'), wait_p1(True), cvp.kvload(1, 52)), 1, 52, True)
    else:
        A.load_wo(lambda: a('buffer_load_dword v20, off, s[4:7], s47 sc1'), done, lambda: (cvp.hload(1, 52), cvp.kvload(1, 52)))
        mark(a, 7, opt)
        cvp.mark = lambda i: mark(a, {6: 8, 8: 9}[i], opt)
        if opt.get('early', True) and not opt.get('cfull', False):
            cvp.in_loop = lambda: a('buffer_load_dword v21, off, s[28:31], 0 offset:64 sc1')
            def pre_final():
                ok = a.newlabel('Lpf')
                a('s_waitcnt vmcnt(0)')
                a('v_readfirstlane_b32 s%d, v21' % sT0)
                a('s_cmp_eq_u32 s%d, 128' % sT0)
                a('s_cbranch_scc1 %s' % ok)
                wait_dbg(64, 128, False)
                a.label(ok)
                A.start_early()
            cvp.pre_final = pre_final
        cvp.core(None, 2 if opt.get('cfull', False) else 0 if opt.get('swap') else 1, 52, True)
    if opt.get('touchq', False) and not opt.get('cfull', False):
        a('s_lshl2_add_u32 s%d, s52, s%d' % (sT0, sW))
        a('s_lshl_b32 s%d, s%d, 12' % (sT0, sT0))
        a('v_lshlrev_b32 v29, 6, v0')
        a('buffer_load_dword v255, v29, s[84:87], s%d offen' % sT0)
    mark(a, 3, opt)
    if opt.get('early', True): mark(a, 4, opt)
    def wait_g1():
        wait_dbg(64, 128, True)
        mark(a, 4, opt)
    def amark(i):
        if not opt.get('marks'): return
        l = a.newlabel('Lmk')
        a('s_cmp_eq_u32 s52, %d' % (opt.get('aopass', 15) + (1 if i in (9, 108) else 0)))
        i %= 100
        a('s_cbranch_scc0 %s' % l)
        mark(a, i, opt)
        a.label(l)
    A.mark = amark
    if opt.get('tc2', True):
        def tail_touch():
            for x in touch_code(a, 'L_ao_tail', 24, 253, 254): a(x)
        A.tail_touch = tail_touch
    A.OS = opt.get('osent', True)
    A.MID = opt.get('mid2', 16); A.NL0 = opt.get('nl0', 38)
    A.DENS = opt.get('dens', 3); A.RB = opt.get('rb', False)
    A.run(wait_g1)
    if opt.get('marks'): a('s_waitcnt vmcnt(0)')
    mark(a, 5, opt)
    a.label('L_side_fail')
    a.label('L_exit')
    a('s_endpgm')
    a.label('L_code_end')
    head = open('cdna_kernels/%s.s.ref' % NAME).read().split('; Override launch')[0]
    txt = head + '; @launch grid=(256,1,1) block=(256,1,1) lds=%d\n.amdgcn_target "amdgcn-amd-amdhsa--gfx950"\n.text\n' % LDS
    txt += kernel_head(NAME + '_kernel') + a.finalize()
    txt += '.section .rodata,"a"\n.p2align 6\n' + kernel_desc(NAME + '_kernel')
    return txt

if __name__ == '__main__':
    for spec in sys.argv[1:]:
        name, _, o = spec.partition('=')
        open(name, 'w').write(build(json.loads(o) if o else {}))
```
